```python
import torch

def _softmax(x, axis=-1):
    return torch.softmax(x, dim=axis)

def _gelu(x):
    return torch.nn.functional.gelu(x, approximate='tanh')

def _silu(x):
    return torch.nn.functional.silu(x)

def _sigmoid(x):
    return torch.sigmoid(x)

def _layernorm(x, axis=-1, eps=1e-05):
    m = x.mean(dim=axis, keepdim=True)
    v = x.var(dim=axis, keepdim=True, unbiased=False)
    return (x - m) / torch.sqrt(v + eps)

def _scatter_add(tgt, idx, src, axis=0):
    return tgt.clone().index_add_(axis, idx, src)

def _segment_sum(src, seg, n):
    out = torch.zeros((n,) + src.shape[1:], dtype=src.dtype)
    return out.index_add_(0, seg, src)

def _pad(x, pw):
    flat = tuple((v for pair in reversed(pw) for v in pair))
    return torch.nn.functional.pad(x, flat)
kernel_name = 'adaLN_cond__mha_block_cached__geglu_ffn__decode'

def setup_inputs():

    _w = lambda a: (lambda t: t.to(torch.bfloat16) if t.is_floating_point() else t)(torch.as_tensor(a))

    def _A_setup():
        B, Sq, D = (4, 1, 512)
        H, Sk, Dh = (32, 8192, 128)
        return {'x': _w((lambda *s: torch.randn(*s, dtype=torch.bfloat16) * 0.05)(B, Sq, D)), 'k_cache': _w((lambda *s: torch.randn(*s, dtype=torch.bfloat16) * 3.2)(B, H, Sk, Dh)), 'v_cache': _w((lambda *s: torch.randn(*s, dtype=torch.bfloat16) * 0.4)(B, H, Sk, Dh)), 'wq': _w((lambda *s: torch.randn(*s, dtype=torch.bfloat16) * 3.2)(D, H * Dh) * D ** (-0.5)), 'wo': _w((lambda *s: torch.randn(*s, dtype=torch.bfloat16) * 0.4)(H * Dh, D) * (H * Dh) ** (-0.5))}
    _A_in = _A_setup()

    def _B_setup():
        B, S, D, F = (4, 1, 512, 1792)
        return {'x': _w((lambda *s: torch.randn(*s, dtype=torch.bfloat16) * 0.05)(B, S, D)), 'w_gate': _w((lambda *s: torch.randn(*s, dtype=torch.bfloat16) * 0.05)(D, F)), 'w_up': _w((lambda *s: torch.randn(*s, dtype=torch.bfloat16) * 0.05)(D, F)), 'w_down': _w((lambda *s: torch.randn(*s, dtype=torch.bfloat16) * 0.05)(F, D))}
    _B_in = _B_setup()
    return {'A_x': _A_in['x'], 'A_k_cache': _A_in['k_cache'], 'A_v_cache': _A_in['v_cache'], 'A_wq': _A_in['wq'], 'A_wo': _A_in['wo'], 'B_x': _B_in['x'], 'B_w_gate': _B_in['w_gate'], 'B_w_up': _B_in['w_up'], 'B_w_down': _B_in['w_down'], 'c': _w((lambda *s: torch.randn(*s, dtype=torch.bfloat16) * 0.1)(4, 512) * 8.0), 'w_mod': _w((lambda *s: torch.randn(*s, dtype=torch.bfloat16) * 0.1)(512, 6 * 512) * 512 ** (-0.5) * 8.0)}

def reference(A_x, A_k_cache, A_v_cache, A_wq, A_wo, B_x, B_w_gate, B_w_up, B_w_down, c, w_mod):

    def _A_ref(x, k_cache, v_cache, wq, wo):
        B, Sq, D = x.shape
        H, Dh = (32, 128)
        q = (lambda x, *d: x.permute(*d))((x @ wq).reshape(B, Sq, H, Dh), 0, 2, 1, 3)
        scores = torch.einsum('bhqd,bhkd->bhqk', q, k_cache) * Dh ** (-0.5)
        p = _softmax(scores, axis=-1)
        o = torch.einsum('bhqk,bhkd->bhqd', p, v_cache)
        return (lambda x, *d: x.permute(*d))(o, 0, 2, 1, 3).reshape(B, Sq, H * Dh) @ wo

    def _B_ref(x, w_gate, w_up, w_down):
        return _gelu(x @ w_gate) * (x @ w_up) @ w_down
    x = A_x
    mod = (_silu(c) @ w_mod).reshape(c.shape[0], 6, 1, -1)
    sa, ca, ga, sb, cb, gb = (mod[:, 0].clone(), mod[:, 1].clone(), mod[:, 2].clone(), mod[:, 3].clone(), mod[:, 4].clone(), mod[:, 5].clone())
    h = _layernorm(x, axis=-1) * (1 + ca) + sa
    x = x + ga * _A_ref(h, A_k_cache, A_v_cache, A_wq, A_wo)
    h = _layernorm(x, axis=-1) * (1 + cb) + sb
    x = x + gb * _B_ref(h, B_w_gate, B_w_up, B_w_down)
    return x
```

```python
import re
TRANS = ("v_exp_f32","v_log_f32","v_rcp_f32","v_rsq_f32","v_sqrt_f32","v_sin_f32","v_cos_f32","v_rcp_iflag_f32")
def regs(op):
    op = op.strip()
    if op.startswith("-"): op = op[1:]
    m = re.fullmatch(r"abs\((.*)\)", op)
    if m: op = m.group(1)
    m = re.fullmatch(r"\|(.*)\|", op)
    if m: op = m.group(1)
    m = re.fullmatch(r"([vsa])(\d+)", op)
    if m: return {(m.group(1), int(m.group(2)))}
    m = re.fullmatch(r"([vsa])\[(\d+):(\d+)\]", op)
    if m: return {(m.group(1), i) for i in range(int(m.group(2)), int(m.group(3))+1)}
    if op == "vcc": return {("s", 106), ("s", 107)}
    if op == "vcc_lo": return {("s", 106)}
    if op == "vcc_hi": return {("s", 107)}
    if op == "exec": return {("s", 126), ("s", 127)}
    if op == "exec_lo": return {("s", 126)}
    if op == "exec_hi": return {("s", 127)}
    if op == "m0": return {("s", 124)}
    return set()
class Ins:
    def __init__(self, text):
        self.text = text
        t = text.split(";")[0].strip()
        self.label = t.endswith(":")
        self.dir = t.startswith(".") or t == ""
        self.w = set(); self.r = set(); self.kind = None; self.mn = ""
        self.states = 0
        if self.label or self.dir: return
        p = t.split(None, 1); mn = p[0]; self.mn = mn
        rest = p[1] if len(p) > 1 else ""
        ops = []; cur = ""; d = 0
        for ch in rest:
            if ch in "[(": d += 1
            if ch in "])": d -= 1
            if ch == "," and d == 0: ops.append(cur.strip()); cur = ""
            else: cur += ch
        if cur.strip(): ops.append(cur.strip())
        mods = ""
        if ops:
            last = ops[-1].split(None, 1)
            ops[-1] = last[0]; mods = last[1] if len(last) > 1 else ""
        self.ops = ops; self.mods = mods
        self.states = 1
        R = [regs(o) for o in ops]
        U = lambda l: set().union(*l) if l else set()
        self.dpp = "_dpp" in mn
        if mn == "s_nop": self.states = int(ops[0], 0) + 1; self.kind = "nop"
        elif mn.startswith("v_mfma"):
            self.kind = "mfma"; self.w = R[0]; self.A = R[1]; self.B = R[2]; self.C = R[3]; self.r = U(R[1:])
            assert "16x16x32" in mn, mn
        elif mn.startswith("v_smfmac"):
            self.kind = "mfma"; self.w = R[0]; self.A = R[1]; self.B = R[2] | R[3]; self.C = R[0]; self.r = U(R)
            assert "16x16x64" in mn, mn
        elif mn.startswith("v_dot2"):
            self.kind = "dot"; self.w = R[0]
            if mn.startswith("v_dot2c"): self.C = R[0]; self.AB = U(R[1:3])
            else: self.C = R[3]; self.AB = U(R[1:3])
            self.r = self.C | self.AB
        elif mn.startswith("v_permlane"):
            self.kind = "valu"; self.w = U(R); self.r = U(R)
        elif mn.startswith("v_readlane") or mn.startswith("v_readfirstlane"):
            self.kind = "valu"; self.w = R[0]; self.r = U(R[1:])
        elif mn.startswith("v_"):
            self.kind = "valu"; self.w = R[0]; self.r = U(R[1:])
            if mn.startswith(("v_fmac", "v_writelane")) or self.dpp: self.r |= R[0]
            if mn.startswith("v_cmpx"): self.w |= regs("exec")
            if mn.startswith(("v_add_co", "v_sub_co", "v_addc_co")): self.w |= R[1]
        elif mn.startswith(("buffer_load", "global_load")):
            self.kind = "vmem"
            if "lds" in mods.split() or "_lds_" in mn: self.r = U(R) | regs("m0"); self.ldsdma = True
            else:
                self.w = R[0]; self.r = U(R[1:])
                if "d16" in mn: self.r |= R[0]
        elif mn.startswith(("buffer_store", "buffer_atomic")):
            self.kind = "vmem"; self.r = U(R); self.data = R[0]
        elif mn.startswith(("global_store", "global_atomic")):
            self.kind = "vmem"; self.r = U(R); self.data = R[1]
        elif mn.startswith("ds_read") or mn.startswith("ds_bpermute") or mn.startswith("ds_swizzle"):
            self.kind = "ds"; self.w = R[0]; self.r = U(R[1:])
        elif mn.startswith("ds_"):
            self.kind = "ds"; self.r = U(R)
        elif mn.startswith("s_"):
            self.kind = "salu"
            if mn.startswith(("s_cmp", "s_cbranch", "s_branch", "s_waitcnt", "s_barrier", "s_endpgm", "s_sleep", "s_setprio", "s_bitcmp")): self.r = U(R)
            else:
                self.w = R[0] if R else set(); self.r = U(R[1:])
                if "saveexec" in mn: self.w = self.w | regs("exec")
        else:
            raise Exception("unknown instr " + text)
def V(s): return {x for x in s if x[0] in "va"}
def S(s): return {x for x in s if x[0] == "s"}
def need(p, c):
    n = 0
    isvalu = lambda i: i.kind in ("valu", "dot")
    if p.kind == "mfma":
        D = p.w
        if c.kind == "mfma":
            if c.C & D: n = max(n, 0 if c.C == D else 6)
            if (c.A | c.B) & D: n = max(n, 8)
            if c.w & D and not (c.C == D): n = max(n, 6)
        elif isvalu(c):
            if (c.r | c.w) & D: n = max(n, 8)
            if c.w & p.C: n = max(n, 3)
        elif c.kind in ("vmem", "ds"):
            if (c.r | c.w) & D: n = max(n, 8)
    if isvalu(p):
        vw = V(p.w); sw = S(p.w)
        if c.kind == "mfma" and c.r & vw: n = max(n, 3 if p.kind == "dot" else 2)
        if c.kind == "mfma" and regs("exec") & sw: n = max(n, 4)
        if isvalu(c):
            if c.dpp and c.r & vw: n = max(n, 2)
            if c.dpp and regs("exec") & sw: n = max(n, 5)
            if c.mn.startswith(("v_readlane", "v_readfirstlane")) and c.r & vw: n = max(n, 1)
            if c.mn.startswith("v_permlane") and c.r & vw: n = max(n, 2)
            if c.r & sw: n = max(n, 4 if c.mn.startswith(("v_readlane", "v_writelane")) else 2)
            if regs("exec") & sw and c.mn.startswith(("v_readlane", "v_readfirstlane", "v_writelane", "v_permlane")): n = max(n, 4)
            if p.mn.startswith(TRANS) and not c.mn.startswith(TRANS) and c.r & vw: n = max(n, 1)
        if c.kind == "vmem" and c.r & sw: n = max(n, 5)
        if c.kind == "salu" and c.r & sw: n = max(n, 1)
        if p.kind == "dot":
            if c.kind == "dot" and c.mn.split("_e")[0] == p.mn.split("_e")[0]:
                if c.AB & vw: n = max(n, 3)
            elif c.kind in ("valu", "dot", "vmem", "ds") and (c.r | c.w) & vw: n = max(n, 3)
    if p.kind == "salu" and regs("m0") & p.w and getattr(c, "ldsdma", False): n = max(n, 1)
    if p.kind == "vmem" and hasattr(p, "data") and ("x4" in p.mn or "x3" in p.mn):
        if c.w & p.data: n = max(n, 2 if isvalu(c) else 1)
    return n
class Asm:
    def __init__(self): self.L = []; self.nops = 0
    def __call__(self, text):
        for line in text.split("\n"):
            line = line.rstrip()
            if not line.strip(): continue
            self.emit(line.strip())
    def emit(self, line):
        i = Ins(line)
        if not (i.label or i.dir):
            dist = 0; req = 0
            for p in reversed(self.L):
                if p.label or p.dir: continue
                if p.mn in ("s_branch", "s_endpgm"): break
                r = need(p, i) - dist
                if r > req: req = r
                dist += p.states
                if dist >= 12: break
            if req > 0:
                self.L.append(Ins(f"s_nop {req-1}")); self.nops += 1
        self.L.append(i)
    def text(self):
        return "\n".join((i.text if (i.label or i.dir) else "  " + i.text) for i in self.L) + "\n"
```

```python
import sys
from asmlib import Asm

NAME = "adaLN_cond__mha_block_cached__geglu_ffn__decode"
WS_MOD, WS_STATS, WS_PART1, WS_X1, WS_PART2, WS_DBG, WS_SIZE = 0x1000, 0x40000, 0x80000, 0x180000, 0x190000, 0x200000, 0x400000
MOD_REP, MOD_B = 49152, 12288
L_W, L_WM, L_ACT, L_HB, L_QP, L_OP, L_FAC, L_GB = 0, 0x20000, 0x24000, 0x25200, 0x25600, 0x25E00, 0x26300, 0x26400
ACT_STRIDE, OP_STRIDE, GB_STRIDE = 1088, 320, 192
LDS_BYTES = 0x26800
NFFN = 28
SPIN_MAX = 400000
P_X, P_K, P_V, P_WQ, P_WO, P_WG, P_WU, P_WD, P_C, P_WM, P_OUT, P_WS = 16, 18, 20, 22, 24, 28, 30, 32, 34, 36, 38, 42
TAG = "s45"
LOG2E, SCALE, HIMASK = "s64", "s65", "s66"

def gen(D=5, A=8, E=4, P=48, diag=False, wpol="nt"):
    a = Asm()
    stamps = {"n": 0}
    def stamp(k):
        if diag: a(f"s_memrealtime s[{72+2*k}:{73+2*k}]")
    def srd(reg, ptr, nbytes):
        a(f"s_mov_b32 s{reg}, s{ptr}\ns_mov_b32 s{reg+1}, s{ptr+1}\ns_mov_b32 s{reg+2}, {nbytes}\ns_mov_b32 s{reg+3}, 0x20000")
    def dump_stamps(n):
        if not diag: return
        a("s_waitcnt lgkmcnt(0)")
        a("s_mov_b64 exec, 1")
        a("s_lshl_b32 s46, s2, 3\ns_add_u32 s46, s46, s3\ns_lshl_b32 s46, s46, 6")
        a(f"s_add_u32 s46, s46, {WS_DBG}")
        a("v_mov_b32 v1, 0")
        for k in range(n):
            a(f"v_mov_b32 v2, s{72+2*k}")
            a(f"buffer_store_dword v2, v1, s[48:51], s46 offen offset:{4*k}")
    lab = {"n": 0}
    def newlab(p):
        lab["n"] += 1; return f"L_{p}{lab['n']}"
    def allreduce(op, rs, tmps, rows_only=False, steps=("quad_perm:[1,0,3,2]", "quad_perm:[2,3,0,1]", "row_half_mirror", "row_mirror")):
        for st in steps:
            for r in rs: a(f"{op}_dpp v{r}, v{r}, v{r} {st} row_mask:0xf bank_mask:0xf")
        if rows_only: return
        for sw in ("v_permlane16_swap_b32", "v_permlane32_swap_b32"):
            for r, t in zip(rs, tmps): a(f"v_mov_b32 v{t}, v{r}")
            for r, t in zip(rs, tmps): a(f"{sw} v{r}, v{t}")
            for r, t in zip(rs, tmps): a(f"{op} v{r}, v{r}, v{t}")
    def bf16r(d, s):
        a(f"v_cvt_pk_bf16_f32 v{d}, v{s}, v{s}\nv_and_b32 v{d}, {HIMASK}, v{d}")
    def bf16r2(lo, hi, t):
        a(f"v_cvt_pk_bf16_f32 v{t}, v{lo}, v{hi}\nv_lshlrev_b32 v{lo}, 16, v{t}\nv_and_b32 v{hi}, {HIMASK}, v{t}")
    def unpack(lo, hi, s):
        a(f"v_lshlrev_b32 v{lo}, 16, v{s}\nv_and_b32 v{hi}, {HIMASK}, v{s}")
    def spin_begin():
        a("s_mov_b32 s70, 0")
    def spin_check():
        a(f"s_add_u32 s70, s70, 1\ns_cmp_gt_u32 s70, {SPIN_MAX}\ns_cbranch_scc1 L_end")

    hdr = open("cdna_kernels/" + NAME + ".s.ref").read().split("; Override launch")[0]
    out = hdr + f"; @launch grid=(256,1,1) block=(512,1,1) lds={LDS_BYTES}\n"
    a('.amdgcn_target "amdgcn-amd-amdhsa--gfx950"')
    a(".text")
    a(f".globl {NAME}_kernel")
    a(".p2align 8")
    a(f".type {NAME}_kernel,@function")
    a(f"{NAME}_kernel:")
    a("""
    s_cmp_ge_u32 s2, 256
    s_cbranch_scc1 L_end
    s_load_dwordx16 s[16:31], s[0:1], 0
    s_load_dwordx8 s[32:39], s[0:1], 64
    s_load_dwordx4 s[40:43], s[0:1], 96
    """)
    stamp(0)
    a("""
    v_lshrrev_b32 v1, 6, v0
    v_and_b32 v0, 63, v0
    v_readfirstlane_b32 s3, v1
    v_lshlrev_b32 v1, 4, v0
    s_lshr_b32 s12, s2, 3
    s_and_b32 s4, s12, 3
    s_lshl_b32 s4, s4, 3
    s_and_b32 s13, s2, 7
    s_add_u32 s4, s4, s13
    s_bfe_u32 s5, s12, 0x20002
    s_lshr_b32 s6, s12, 4
    s_mov_b32 s64, 0x3fb8aa3b
    s_mov_b32 s65, 0x3db504f3
    s_mov_b32 s66, 0xffff0000
    s_lshl_b32 s15, s5, 5
    s_add_u32 s15, s15, s4
    s_waitcnt lgkmcnt(0)
    s_load_dword s44, s[42:43], 0
    """)
    srd(48, P_WS, WS_SIZE)
    a("s_cmp_ge_u32 s3, 4\ns_cbranch_scc1 L_helper")

    Q, MK, BB, ACC, PT, XX, YY, T0, T1, SC, RING = 2, 6, 10, 14, 18, 34, 42, 46, 47, 48, 64
    srd(8, P_K, 0x10000000)
    a("""
    s_lshl_b32 s13, s15, 21
    s_lshl_b32 s14, s6, 20
    s_add_u32 s13, s13, s14
    s_lshl_b32 s14, s3, 12
    s_add_u32 s13, s13, s14
    s_mov_b32 s12, s13
    """)
    st = {"issued": 0, "landed": 0}
    def slot(n): return RING + 4 * (n if n < P else n % 16)
    def issue(n):
        r = slot(n)
        a(f"buffer_load_dwordx4 v[{r}:{r+3}], v1, s[8:11], s12 offen offset:{(n&3)*1024} nt")
        if n & 3 == 3: a("s_add_u32 s12, s12, 0x4000")
        st["issued"] = n + 1
    def throttle():
        a(f"s_waitcnt vmcnt({D-1})")
        st["landed"] = max(st["landed"], st["issued"] - (D - 1))
    def ensure(n):
        if n >= st["landed"]:
            k = st["issued"] - 1 - n
            a(f"s_waitcnt vmcnt({k})"); st["landed"] = n + 1
    for n in range(P):
        if n >= D: throttle()
        issue(n)
        if n == D - 1:
            a(f"""
            s_mov_b32 s60, 0xaaaaaaaa
            s_mov_b32 s61, 0xaaaaaaaa
            s_mov_b32 s62, 0xcccccccc
            s_mov_b32 s63, 0xcccccccc
            v_and_b32 v{T0}, 15, v0
            v_and_b32 v{T1}, 1, v0
            v_lshlrev_b32 v{T1}, 4, v{T1}
            v_mov_b32 v{PT}, 0xffff
            v_lshlrev_b32 v{T1}, v{T1}, v{PT}
            v_lshrrev_b32 v{T0}, 1, v{T0}
            """)
            for t in range(4):
                a(f"v_cmp_eq_u32 vcc, {t}, v{T0}\nv_cndmask_b32 v{MK+t}, 0, v{T1}, vcc")
            for t in range(4): a(f"v_mov_b32 v{ACC+t}, 0")
    stamp(1)
    a("s_barrier")
    stamp(2)
    a(f"v_and_b32 v{T0}, 15, v0\nv_lshlrev_b32 v{T0}, 5, v{T0}\nv_add_u32 v{T0}, {L_QP}, v{T0}")
    QT = 50
    qregs = [18, 26, 48, 56]
    for hw in range(4):
        a(f"ds_read_b128 v[{qregs[hw]}:{qregs[hw]+3}], v{T0} offset:{hw*512}")
        a(f"ds_read_b128 v[{qregs[hw]+4}:{qregs[hw]+7}], v{T0} offset:{hw*512+16}")
    a("s_waitcnt lgkmcnt(0)\ns_mul_i32 s45, s44, 1664525\ns_add_u32 s45, s45, 1013904223")
    for i in range(8):
        a(f"v_add_f32 v{18+i}, v{18+i}, v{26+i}\nv_add_f32 v{48+i}, v{48+i}, v{56+i}")
    for i in range(8): a(f"v_add_f32 v{18+i}, v{18+i}, v{48+i}")
    for i in range(4): a(f"v_cvt_pk_bf16_f32 v{Q+i}, v{18+2*i}, v{19+2*i}")

    def kdots(n):
        r = slot(n); p = PT + n % 16
        a(f"v_dot2_f32_bf16 v{p}, v{r}, v{Q}, 0")
        for i in range(1, 4): a(f"v_dot2_f32_bf16 v{p}, v{r+i}, v{Q+i}, v{p}")
    def kreduce(dst):
        for j in range(8): a(f"v_add_f32_dpp v{XX+j}, v{PT+j}, v{PT+j} row_ror:8 row_mask:0xf bank_mask:0x3")
        for j in range(8): a(f"v_add_f32_dpp v{XX+j}, v{PT+8+j}, v{PT+8+j} row_ror:8 row_mask:0xf bank_mask:0xc")
        for j in range(4): a(f"v_add_f32_dpp v{YY+j}, v{XX+j}, v{XX+j} row_half_mirror row_mask:0xf bank_mask:0x5")
        for j in range(4): a(f"v_add_f32_dpp v{YY+j}, v{XX+4+j}, v{XX+4+j} row_half_mirror row_mask:0xf bank_mask:0xa")
        for j in range(2):
            a(f"v_cndmask_b32 v{XX+2*j}, v{YY+j+2}, v{YY+j}, s[62:63]")
            a(f"v_cndmask_b32 v{XX+2*j+1}, v{YY+j}, v{YY+j+2}, s[62:63]")
        for j in range(2):
            a(f"v_add_f32_dpp v{XX+4+j}, v{XX+2*j}, v{XX+2*j+1} quad_perm:[2,3,0,1] row_mask:0xf bank_mask:0xf")
        a(f"v_cndmask_b32 v{XX}, v{XX+5}, v{XX+4}, s[60:61]")
        a(f"v_cndmask_b32 v{XX+1}, v{XX+4}, v{XX+5}, s[60:61]")
        a(f"v_add_f32_dpp v{XX+2}, v{XX}, v{XX+1} quad_perm:[1,0,3,2] row_mask:0xf bank_mask:0xf")
        bf16r(XX+2, XX+2)
        a(f"v_mul_f32 v{XX+2}, {SCALE}, v{XX+2}")
        bf16r(dst, XX+2)
    NPEEL = P // 16 + 1
    KL = 16 - NPEEL
    cons = {"n": 0}
    def consume_k_upto(m):
        while cons["n"] < m:
            n = cons["n"]; ensure(n); kdots(n); cons["n"] += 1
            if n % 16 == 15: kreduce(SC + n // 16 + KL)
    tgt = NPEEL * 16
    nsteps = tgt + A - P
    for s in range(nsteps):
        n = P + s
        prev = n - P if n < P + 16 else n - 16
        rate = (P + 15) // 16
        want = max(prev + 1, min(1 + rate * s, P + 1) if s <= 16 else min(P + 1 + 2 * (s - 16), tgt))
        consume_k_upto(min(want, tgt))
        throttle(); issue(n)
    consume_k_upto(tgt)
    a(f"s_mov_b32 s14, 0")
    a("L_kloop:")
    for j in range(16):
        n = tgt + j
        a(f"s_waitcnt vmcnt({D-1})")
        if j == 16 - A:
            a(f"s_cmp_eq_u32 s14, {KL-1}\ns_cselect_b32 s8, s{P_V}, s8\ns_cselect_b32 s9, s{P_V+1}, s9\ns_cselect_b32 s12, s13, s12")
        issue(n + A)
        kdots(n)
        if j == 7:
            for i in range(15): a(f"v_mov_b32 v{SC+i}, v{SC+i+1}")
    kreduce(SC + 15)
    a(f"s_add_u32 s14, s14, 1\ns_cmp_lt_u32 s14, {KL}\ns_cbranch_scc1 L_kloop")
    stamp(3)
    ex = {"n": 256 + A}
    def extra():
        if ex["n"] < 256 + A + E:
            a(f"s_waitcnt vmcnt({D-1})"); issue(ex["n"]); ex["n"] += 1
    extra()
    M, Ls = PT, PT + 1
    a(f"v_max3_f32 v{M}, v{SC}, v{SC+1}, v{SC+2}")
    for i in range(3, 15, 2): a(f"v_max3_f32 v{M}, v{M}, v{SC+i}, v{SC+i+1}")
    a(f"v_max_f32 v{M}, v{M}, v{SC+15}")
    allreduce("v_max_f32", [M], [T0])
    a(f"v_mul_f32 v{T1}, {LOG2E}, v{M}")
    extra()
    for i in range(16): a(f"v_fma_f32 v{SC+i}, v{SC+i}, {LOG2E}, -v{T1}")
    for i in range(16): a(f"v_exp_f32 v{SC+i}, v{SC+i}")
    extra()
    a(f"v_add_f32 v{Ls}, v{SC}, v{SC+1}\nv_add_f32 v{Ls+1}, v{SC+2}, v{SC+3}")
    for i in range(4, 16, 2): a(f"v_add_f32 v{Ls}, v{Ls}, v{SC+i}\nv_add_f32 v{Ls+1}, v{Ls+1}, v{SC+i+1}")
    a(f"v_add_f32 v{Ls}, v{Ls}, v{Ls+1}")
    for i in range(16): a(f"v_cvt_pk_bf16_f32 v{SC+i}, v{SC+i}, v{SC+i}")
    extra()
    allreduce("v_add_f32", [Ls], [T0])
    a(f"""
    v_mov_b32 v{XX}, v{M}
    v_mov_b32 v{XX+1}, {TAG}
    v_mov_b32 v{XX+2}, v{Ls}
    v_mov_b32 v{XX+3}, {TAG}
    s_lshl_b32 s46, s15, 7
    s_lshl_b32 s47, s6, 6
    s_add_u32 s46, s46, s47
    s_lshl_b32 s47, s3, 4
    s_add_u32 s46, s46, s47
    s_add_u32 s46, s46, {WS_STATS}
    s_mov_b64 exec, 1
    buffer_store_dwordx4 v[{XX}:{XX+3}], v1, s[48:51], s46 offen sc1
    s_mov_b64 exec, -1
    s_lshl_b32 s47, s3, 3
    s_add_u32 s47, s47, {L_FAC}
    v_mov_b32 v{PT+4}, s47
    """)
    while ex["n"] < 256 + A + E: extra()
    AV = A + E
    assert AV <= 15
    a("s_mov_b32 s14, 0")
    a("L_vloop:")
    a(f"ds_read_b64 v[{T0}:{T1}], v{PT+4}")
    for j in range(16):
        n = 256 + j
        for t in range(4): a(f"v_and_b32_dpp v{BB+t}, v{SC}, v{MK+t} row_newbcast:{j} row_mask:0xf bank_mask:0xf")
        a(f"s_waitcnt vmcnt({D-1})")
        if j == 16 - AV:
            a("s_cmp_eq_u32 s14, 15\ns_cselect_b32 s10, 0, s10")
        issue(n + AV)
        r = slot(n)
        a(f"v_mfma_f32_16x16x32_bf16 v[{ACC}:{ACC+3}], v[{r}:{r+3}], v[{BB}:{BB+3}], v[{ACC}:{ACC+3}]")
    for i in range(15): a(f"v_mov_b32 v{SC+i}, v{SC+i+1}")
    a("s_add_u32 s14, s14, 1\ns_cmp_lt_u32 s14, 16\ns_cbranch_scc1 L_vloop")
    stamp(4)
    spin_begin()
    a("L_facspin:")
    a(f"s_waitcnt lgkmcnt(0)\nv_readfirstlane_b32 s46, v{T1}\ns_cmp_eq_u32 s46, 1\ns_cbranch_scc1 L_facok")
    spin_check()
    a(f"ds_read_b64 v[{T0}:{T1}], v{PT+4}\ns_branch L_facspin")
    a("L_facok:")
    a(f"""
    v_lshrrev_b32 v{PT}, 4, v0
    v_lshlrev_b32 v{PT}, 6, v{PT}
    v_and_b32 v{PT+1}, 15, v0
    v_lshl_add_u32 v{PT}, v{PT+1}, 1, v{PT}
    s_mul_i32 s46, s3, {OP_STRIDE}
    s_add_u32 s46, s46, {L_OP}
    v_add_u32 v{PT}, s46, v{PT}
    """)
    for t in range(4): a(f"v_mul_f32 v{ACC+t}, v{ACC+t}, v{T0}")
    a(f"v_cvt_pk_bf16_f32 v{ACC}, v{ACC}, v{ACC+1}\nv_cvt_pk_bf16_f32 v{ACC+2}, v{ACC+2}, v{ACC+3}")
    a(f"""
    s_mov_b32 exec_lo, 0x00ff00ff
    s_mov_b32 exec_hi, 0x00ff00ff
    ds_write_b16 v{PT}, v{ACC}
    ds_write_b16_d16_hi v{PT}, v{ACC} offset:16
    ds_write_b16 v{PT}, v{ACC+2} offset:32
    ds_write_b16_d16_hi v{PT}, v{ACC+2} offset:48
    s_waitcnt lgkmcnt(0)
    s_barrier
    """)
    stamp(5)
    dump_stamps(6)
    a("s_endpgm")

    a("L_helper:")
    a("s_sub_u32 s7, s3, 4")
    TRB, TRN, DA, DB, DN, TA, TB, TC = 2, 3, 4, 5, 6, 7, 8, 9
    a(f"""
    v_lshrrev_b32 v{TA}, 4, v0
    v_bfe_u32 v{TB}, v0, 2, 2
    v_and_b32 v{TC}, 3, v0
    v_lshl_add_u32 v{TRN}, v{TA}, 3, v{TB}
    v_lshlrev_b32 v{TRB}, 8, v{TRN}
    v_lshlrev_b32 v{TRN}, 5, v{TRN}
    v_lshl_add_u32 v{TRB}, v{TC}, 3, v{TRB}
    v_lshl_add_u32 v{TRN}, v{TC}, 3, v{TRN}
    v_and_b32 v{TC}, 1, v{TA}
    v_lshl_add_u32 v{TB}, v{TC}, 2, v{TB}
    v_lshl_add_u32 v{TRB}, v{TB}, 5, v{TRB}
    s_lshl_b32 s12, s7, 15
    v_add_u32 v{TRB}, s12, v{TRB}
    v_and_b32 v{TB}, 15, v0
    v_lshlrev_b32 v{TC}, 1, v{TA}
    v_xor_b32 v{TB}, v{TB}, v{TC}
    v_lshlrev_b32 v{DN}, 4, v{TB}
    """)
    def dma_wide(nins, rs_log2, soff):
        a(f"v_lshrrev_b32 v{TA}, 4, v0\nv_lshl_add_u32 v{DA}, v{TA}, {rs_log2}, v{DN}\nv_xor_b32 v{DB}, 0x80, v{DA}")
        a("s_lshl_b32 s14, s7, 15")
        for i in range(nins):
            a("s_mov_b32 m0, s14" if i == 0 else "s_add_u32 m0, m0, 0x400")
            if i: a(f"s_add_u32 {soff}, {soff}, {4 << rs_log2}")
            a(f"buffer_load_dwordx4 v{DB if (i >> 1) & 1 else DA}, s[8:11], {soff} offen {wpol} lds")
    def dma_narrow(rs, soff, ldsbase):
        a(f"v_lshrrev_b32 v{DA}, 1, v0\nv_mul_u32_u24 v{DA}, {rs}, v{DA}\nv_and_b32 v{DB}, 1, v0\nv_lshl_add_u32 v{DA}, v{DB}, 4, v{DA}")
        for i in range(16):
            a(f"s_mov_b32 m0, {ldsbase}" if i == 0 else "s_add_u32 m0, m0, 0x400")
            if i: a(f"s_add_u32 {soff}, {soff}, {32*rs}")
            a(f"buffer_load_dwordx4 v{DA}, s[8:11], {soff} offen {wpol} lds")
    def tr_wide(dst, nk):
        for t in range(8):
            ar = TA if t & 1 else TB
            a(f"v_xor_b32 v{ar}, {t << 5}, v{TRB}")
            for s in range(nk):
                r = dst + (t * nk + s) * 4
                a(f"ds_read_b64_tr_b16 v[{r}:{r+1}], v{ar} offset:{s*8192}")
                a(f"ds_read_b64_tr_b16 v[{r+2}:{r+3}], v{ar} offset:{s*8192+1024}")
            if t & 1: a("s_waitcnt lgkmcnt(0)")
    def tr_narrow(dst, areg, off):
        for s in range(16):
            r = dst + 4 * s
            a(f"ds_read_b64_tr_b16 v[{r}:{r+1}], v{areg} offset:{off+s*1024}")
            a(f"ds_read_b64_tr_b16 v[{r+2}:{r+3}], v{areg} offset:{off+s*1024+128}")
            if s & 3 == 3: a("s_waitcnt lgkmcnt(0)")
    def act_frags(dst):
        for s in range(16):
            a(f"ds_read_b128 v[{dst+4*s}:{dst+4*s+3}], v{TC} offset:{s*64}")
            if s == 7: a("s_waitcnt lgkmcnt(4)")
    XS, XP = 12, 10
    srd(52, P_X, 4096)
    a(f"""
    s_cmp_lg_u32 s7, 0
    s_cbranch_scc1 L_noA1
    s_cmp_ge_u32 s2, 192
    s_cbranch_scc1 L_noA1
    """)
    CC = 16
    srd(8, P_C, 4096)
    for i in range(4): a(f"buffer_load_dwordx4 v[{CC+4*i}:{CC+4*i+3}], v1, s[8:11], 0 offen offset:{1024*i}")
    srd(8, P_WM, 512 * 6144)
    a("""
    s_lshr_b32 s12, s2, 5
    s_lshl_b32 s12, s12, 3
    s_and_b32 s13, s2, 7
    s_add_u32 s12, s12, s13
    s_lshl_b32 s12, s12, 6
    s_bfe_u32 s13, s2, 0x20003
    s_lshl_b32 s13, s13, 4
    s_add_u32 s47, s12, s13
    s_lshl_b32 s13, s47, 1
    """)
    dma_narrow(6144, "s13", L_WM)
    a("s_waitcnt vmcnt(16)")
    stamp(1)
    W0 = 32
    for i in range(4):
        for k in range(4): unpack(W0 + 2*k, W0 + 2*k + 1, CC + 4*i + k)
        for k in range(8): a(f"v_mul_f32 v{W0+8+k}, {LOG2E}, v{W0+k}")
        for k in range(8): a(f"v_exp_f32 v{W0+8+k}, -v{W0+8+k}")
        for k in range(8): a(f"v_add_f32 v{W0+8+k}, 1.0, v{W0+8+k}")
        for k in range(8): a(f"v_rcp_f32 v{W0+8+k}, v{W0+8+k}")
        for k in range(8): a(f"v_mul_f32 v{W0+k}, v{W0+k}, v{W0+8+k}")
        for k in range(4): a(f"v_cvt_pk_bf16_f32 v{CC+4*i+k}, v{W0+2*k}, v{W0+2*k+1}")
    a(f"v_add_u32 v{TA}, {L_ACT}, v1")
    for i in range(4): a(f"ds_write_b128 v{TA}, v[{CC+4*i}:{CC+4*i+3}] offset:{i*ACT_STRIDE}")
    a(f"""
    v_and_b32 v{TC}, 3, v0
    v_mul_u32_u24 v{TC}, {ACT_STRIDE}, v{TC}
    v_lshrrev_b32 v{TA}, 4, v0
    v_lshl_add_u32 v{TC}, v{TA}, 4, v{TC}
    v_add_u32 v{TC}, {L_ACT}, v{TC}
    v_add_u32 v{TB}, {L_WM}, v{TRN}
    s_waitcnt lgkmcnt(0)
    """)
    act_frags(64)
    a("s_waitcnt vmcnt(0)")
    stamp(2)
    tr_narrow(128, TB, 0)
    for s in range(16):
        a(f"v_mfma_f32_16x16x32_bf16 v[{W0}:{W0+3}], v[{128+4*s}:{131+4*s}], v[{64+4*s}:{67+4*s}], " + ("0" if s == 0 else f"v[{W0}:{W0+3}]"))
    a("s_mul_i32 s45, s44, 1664525\ns_add_u32 s45, s45, 1013904223")
    a(f"""
    v_bfe_u32 v{TB}, v0, 2, 2
    v_mul_u32_u24 v{TB}, {MOD_REP}, v{TB}
    v_and_b32 v{TC}, 3, v0
    v_mul_u32_u24 v{TC}, {MOD_B}, v{TC}
    v_lshrrev_b32 v{TA}, 4, v0
    v_lshlrev_b32 v{TA}, 4, v{TA}
    v_add3_u32 v{TA}, v{TA}, v{TB}, v{TC}
    s_lshl_b32 s47, s47, 2
    s_add_u32 s47, s47, {WS_MOD}
    v_cvt_pk_bf16_f32 v{W0+4}, v{W0}, v{W0+1}
    v_mov_b32 v{W0+5}, {TAG}
    v_cvt_pk_bf16_f32 v{W0+6}, v{W0+2}, v{W0+3}
    v_mov_b32 v{W0+7}, {TAG}
    buffer_store_dwordx4 v[{W0+4}:{W0+7}], v{TA}, s[48:51], s47 offen sc1
    """)
    stamp(3)
    a("L_noA1:")
    a(f"""
    s_lshl_b32 s12, s5, 10
    buffer_load_dwordx4 v[{XS}:{XS+3}], v1, s[52:55], s12 offen
    v_and_b32 v{TA}, 31, v0
    v_lshlrev_b32 v{TA}, 3, v{TA}
    v_lshrrev_b32 v{TB}, 5, v0
    v_lshl_add_u32 v{XP+1}, v{TB}, 2, v{TA}
    s_lshl_b32 s13, s7, 8
    s_add_u32 s12, s12, s13
    buffer_load_dword v{XP}, v{XP+1}, s[52:55], s12 offen
    s_waitcnt vmcnt(0) lgkmcnt(0)
    s_mul_i32 s45, s44, 1664525
    s_add_u32 s45, s45, 1013904223
    """)
    srd(8, P_WQ, 512 * 8192)
    a("s_lshl_b32 s13, s7, 20\ns_lshl_b32 s12, s4, 8\ns_add_u32 s13, s13, s12")
    dma_wide(32, 13, "s13")
    def ln_stats(x0, t0):
        a(f"v_readfirstlane_b32 s46, v{x0}")
        for k in range(8): a(f"v_subrev_f32 v{t0+2+k}, s46, v{x0+k}")
        a(f"v_add_f32 v{t0}, v{t0+2}, v{t0+3}\nv_mul_f32 v{t0+1}, v{t0+2}, v{t0+2}")
        a(f"v_fmac_f32 v{t0+1}, v{t0+3}, v{t0+3}")
        for k in range(2, 8): a(f"v_add_f32 v{t0}, v{t0}, v{t0+2+k}\nv_fmac_f32 v{t0+1}, v{t0+2+k}, v{t0+2+k}")
        allreduce("v_add_f32", [t0, t0+1], [t0+2, t0+3])
        a(f"""
        v_mul_f32 v{t0}, 0x3b000000, v{t0}
        v_mul_f32 v{t0+1}, 0x3b000000, v{t0+1}
        v_fma_f32 v{t0+1}, -v{t0}, v{t0}, v{t0+1}
        v_add_f32 v{t0}, s46, v{t0}
        v_max_f32 v{t0+1}, 0, v{t0+1}
        """)
        bf16r2(t0, t0+1, t0+2)
        a(f"v_add_f32 v{t0+1}, 0x3727c5ac, v{t0+1}")
        bf16r(t0+1, t0+1)
        a(f"v_sqrt_f32 v{t0+1}, v{t0+1}")
        bf16r(t0+1, t0+1)
        a(f"v_rcp_f32 v{t0+1}, v{t0+1}")
    X8, ST = 16, 24
    for k in range(4): unpack(X8 + 2*k, X8 + 2*k + 1, XS + k)
    ln_stats(X8, ST)
    NA, NB = 12, 13
    unpack(NA, NB, XP)
    a(f"v_sub_f32 v{NA}, v{NA}, v{ST}\nv_sub_f32 v{NB}, v{NB}, v{ST}")
    bf16r2(NA, NB, 14)
    a(f"v_mul_f32 v{NA}, v{NA}, v{ST+1}\nv_mul_f32 v{NB}, v{NB}, v{ST+1}")
    bf16r2(NA, NB, 14)
    a(f"""
    v_mov_b32 v16, 0
    v_mov_b32 v17, 0
    s_lshl_b32 s12, s7, 3
    s_add_u32 s12, s12, {L_FAC}
    v_mov_b32 v18, s12
    ds_write_b64 v18, v[16:17]
    s_waitcnt vmcnt(0)
    """)
    stamp(4)
    tr_wide(64, 4)
    a(f"""
    v_and_b32 v{TA}, 31, v0
    v_lshlrev_b32 v{TA}, 4, v{TA}
    v_lshrrev_b32 v{TB}, 5, v0
    v_lshl_add_u32 v{TA}, v{TB}, 11, v{TA}
    s_and_b32 s12, s2, 3
    s_mul_i32 s12, s12, {MOD_REP}
    s_add_u32 s67, s12, {WS_MOD}
    s_mul_i32 s13, s5, {MOD_B}
    s_add_u32 s12, s67, s13
    s_lshl_b32 s13, s7, 9
    s_add_u32 s12, s12, s13
    """)
    spin_begin()
    a("L_poll_mod:")
    spin_check()
    a(f"""
    buffer_load_dwordx4 v[16:19], v{TA}, s[48:51], s12 offen sc1
    s_waitcnt vmcnt(0)
    v_cmp_eq_u32 vcc, {TAG}, v17
    v_cmp_eq_u32 s[56:57], {TAG}, v19
    s_and_b64 vcc, vcc, s[56:57]
    s_cmp_eq_u64 vcc, exec
    s_cbranch_scc0 L_poll_mod
    """)
    stamp(5)
    a("v_permlane32_swap_b32 v16, v18")
    unpack(20, 21, 18)
    unpack(22, 23, 16)
    a("v_add_f32 v20, 1.0, v20\nv_add_f32 v21, 1.0, v21")
    bf16r2(20, 21, 14)
    a(f"v_mul_f32 v20, v20, v{NA}\nv_mul_f32 v21, v21, v{NB}")
    bf16r2(20, 21, 14)
    a("v_add_f32 v20, v20, v22\nv_add_f32 v21, v21, v23\nv_cvt_pk_bf16_f32 v20, v20, v21")
    a(f"""
    s_lshl_b32 s12, s7, 8
    s_add_u32 s12, s12, {L_HB}
    v_add_u32 v{TA}, s12, v{XP+1}
    ds_write_b32 v{TA}, v20
    v_lshrrev_b32 v{TB}, 4, v0
    v_lshlrev_b32 v{TB}, 4, v{TB}
    v_add_u32 v{TB}, s12, v{TB}
    s_waitcnt lgkmcnt(0)
    """)
    AF, DD = 16, 32
    for s in range(4): a(f"ds_read_b128 v[{AF+4*s}:{AF+4*s+3}], v{TB} offset:{64*s}")
    a("s_waitcnt lgkmcnt(0)")
    def gemv_wide(bbase, nk):
        for t in range(8):
            for s in range(nk):
                r = bbase + (t * nk + s) * 4
                a(f"v_mfma_f32_16x16x32_bf16 v[{DD+4*t}:{DD+4*t+3}], v[{AF+4*s}:{AF+4*s+3}], v[{r}:{r+3}], " + ("0" if s == 0 else f"v[{DD+4*t}:{DD+4*t+3}]"))
    gemv_wide(64, 4)
    a(f"""
    s_lshl_b32 s12, s7, 9
    s_add_u32 s12, s12, {L_QP}
    v_lshlrev_b32 v{TA}, 2, v0
    v_add_u32 v{TA}, s12, v{TA}
    s_mov_b64 exec, 0xffff
    """)
    for t in range(8): a(f"ds_write_b32 v{TA}, v{DD+4*t} offset:{64*t}")
    a("s_mov_b64 exec, -1\ns_waitcnt lgkmcnt(0)\ns_barrier")
    stamp(6)
    srd(8, P_WO, 4096 * 1024)
    a("s_lshl_b32 s13, s4, 17\ns_lshl_b32 s12, s7, 8\ns_add_u32 s13, s13, s12")
    dma_wide(32, 10, "s13")
    a("s_waitcnt vmcnt(0)")
    tr_wide(64, 4)
    SB, CB = 10, 14
    TT = 60
    a(f"s_sub_u32 s68, s2, 128\ns_cmp_ge_u32 s68, {NFFN}\ns_cbranch_scc1 L_noffn1")
    srd(8, P_WD, 1792 * 1024)
    a("s_lshl_b32 s13, s68, 16\ns_lshl_b32 s12, s7, 8\ns_add_u32 s13, s13, s12")
    dma_wide(16, 10, "s13")
    a("s_waitcnt vmcnt(0)")
    tr_wide(192, 2)
    srd(8, P_WG, 512 * 3584)
    a("s_lshl_b32 s13, s68, 7\ns_lshl_b32 s12, s7, 5\ns_add_u32 s46, s13, s12\ns_mov_b32 s13, s46\ns_lshl_b32 s14, s7, 15")
    dma_narrow(3584, "s13", "s14")
    srd(8, P_WU, 512 * 3584)
    a("s_mov_b32 s13, s46\ns_add_u32 s14, s14, 0x4000")
    dma_narrow(3584, "s13", "s14")
    a(f"""
    v_lshrrev_b32 v{TA}, 3, v0
    v_lshlrev_b32 v{TA}, 5, v{TA}
    v_bfe_u32 v{TB}, v0, 2, 1
    v_lshl_add_u32 v{TA}, v{TB}, 3, v{TA}
    v_and_b32 v{TB}, 3, v0
    v_lshl_add_u32 v15, v{TB}, 1, v{TA}
    v_lshlrev_b32 v{TA}, 2, v15
    s_mul_i32 s12, s7, {MOD_B}
    s_add_u32 s12, s12, s67
    s_add_u32 s13, s12, {2048*4}
    s_add_u32 s12, s12, {1536*4}
    """)
    spin_begin()
    a("L_poll_sb:")
    spin_check()
    for i in range(2):
        for e in range(2):
            k = 2*i + e
            a(f"buffer_load_dwordx2 v[{16+2*k}:{17+2*k}], v{TA}, s[48:51], s12 offen offset:{(256*i+16*e)*4} sc1")
            a(f"buffer_load_dwordx2 v[{24+2*k}:{25+2*k}], v{TA}, s[48:51], s13 offen offset:{(256*i+16*e)*4} sc1")
    a("s_waitcnt vmcnt(0)")
    a(f"v_cmp_eq_u32 vcc, {TAG}, v17")
    for k in range(1, 8): a(f"v_cmp_eq_u32 s[56:57], {TAG}, v{17+2*k}\ns_and_b64 vcc, vcc, s[56:57]")
    a("s_cmp_eq_u64 vcc, exec\ns_cbranch_scc0 L_poll_sb")
    for k in range(4):
        a(f"v_mov_b32 v{SB+k}, v{16+2*k}")
        unpack(32, 33, 24 + 2*k)
        a(f"v_add_f32 v32, 1.0, v32\nv_add_f32 v33, 1.0, v33\nv_cvt_pk_bf16_f32 v{[4,5,6,14][k]}, v32, v33")
    TREG = [4, 5, 6, 14]
    a("L_noffn1:")
    RX, RGA, RGB = 10, 12, 14
    a("s_cmp_lg_u32 s7, 1\ns_cbranch_scc1 L_nored1\ns_cmp_ge_u32 s2, 128\ns_cbranch_scc1 L_nored1")
    a(f"""
    s_lshr_b32 s68, s2, 5
    s_and_b32 s69, s2, 31
    s_lshr_b32 s12, s69, 1
    s_lshl_b32 s12, s12, 5
    s_and_b32 s13, s69, 1
    s_lshl_b32 s13, s13, 3
    s_add_u32 s71, s12, s13
    v_and_b32 v{TA}, 7, v0
    v_add_u32 v{TA}, s71, v{TA}
    v_lshlrev_b32 v{DA}, 1, v{TA}
    s_lshl_b32 s12, s68, 10
    buffer_load_ushort v{RX}, v{DA}, s[52:55], s12 offen
    buffer_load_ushort v{RX+1}, v{DA}, s[52:55], s12 offen offset:32
    v_lshrrev_b32 v{TB}, 1, v{TA}
    v_lshlrev_b32 v{TB}, 3, v{TB}
    s_mul_i32 s12, s68, {MOD_B}
    s_add_u32 s12, s12, s67
    s_add_u32 s13, s12, {2560*4}
    s_add_u32 s12, s12, {1024*4}
    """)
    spin_begin()
    a("L_poll_ga:")
    spin_check()
    a(f"""
    buffer_load_dwordx2 v[16:17], v{TB}, s[48:51], s12 offen sc1
    buffer_load_dwordx2 v[18:19], v{TB}, s[48:51], s12 offen offset:64 sc1
    buffer_load_dwordx2 v[20:21], v{TB}, s[48:51], s13 offen sc1
    buffer_load_dwordx2 v[22:23], v{TB}, s[48:51], s13 offen offset:64 sc1
    s_waitcnt vmcnt(0)
    v_cmp_eq_u32 vcc, {TAG}, v17
    """)
    for k in range(1, 4): a(f"v_cmp_eq_u32 s[56:57], {TAG}, v{17+2*k}\ns_and_b64 vcc, vcc, s[56:57]")
    a("s_cmp_eq_u64 vcc, exec\ns_cbranch_scc0 L_poll_ga")
    a(f"v_and_b32 v{TB}, 1, v0\nv_cmp_eq_u32 vcc, 1, v{TB}")
    for k in range(4):
        unpack(24, 25, 16 + 2*k)
        a(f"v_cndmask_b32 v{RGA+k}, v24, v25, vcc")
    a(f"v_lshlrev_b32 v{RX}, 16, v{RX}\nv_lshlrev_b32 v{RX+1}, 16, v{RX+1}")
    a("L_nored1:")
    stamp(7)
    a("s_cmp_lg_u32 s7, 0\ns_cbranch_scc1 L_nofac")
    a(f"""
    v_and_b32 v{TA}, 7, v0
    v_lshlrev_b32 v{TA}, 4, v{TA}
    s_lshl_b32 s12, s15, 7
    s_add_u32 s12, s12, {WS_STATS}
    """)
    spin_begin()
    a("L_poll_st:")
    spin_check()
    a(f"""
    s_sleep 16
    buffer_load_dwordx4 v[16:19], v{TA}, s[48:51], s12 offen sc1
    s_waitcnt vmcnt(0)
    v_cmp_eq_u32 vcc, {TAG}, v17
    v_cmp_eq_u32 s[56:57], {TAG}, v19
    s_and_b64 vcc, vcc, s[56:57]
    s_cmp_eq_u64 vcc, exec
    s_cbranch_scc0 L_poll_st
    v_mov_b32 v20, v16
    """)
    s8 = ("quad_perm:[1,0,3,2]", "quad_perm:[2,3,0,1]", "row_half_mirror")
    allreduce("v_max_f32", [20], [], rows_only=True, steps=s8)
    a(f"v_sub_f32 v16, v16, v20\nv_mul_f32 v16, {LOG2E}, v16\nv_exp_f32 v16, v16\nv_mul_f32 v18, v18, v16")
    allreduce("v_add_f32", [18], [], rows_only=True, steps=s8)
    a(f"""
    v_rcp_f32 v18, v18
    v_mul_f32 v16, v16, v18
    v_mov_b32 v17, 1
    v_and_b32 v{TA}, 3, v0
    v_lshlrev_b32 v{TA}, 3, v{TA}
    v_add_u32 v{TA}, {L_FAC}, v{TA}
    s_lshl_b32 s12, s6, 2
    s_lshl_b64 exec, 15, s12
    ds_write_b64 v{TA}, v[16:17]
    s_mov_b64 exec, -1
    """)
    a("L_nofac:")
    a(f"""
    s_waitcnt vmcnt(0) lgkmcnt(0)
    v_and_b32 v{TB}, 3, v0
    v_mul_u32_u24 v{TB}, {OP_STRIDE}, v{TB}
    v_lshrrev_b32 v{TA}, 4, v0
    v_lshl_add_u32 v{TB}, v{TA}, 4, v{TB}
    v_add_u32 v{TB}, {L_OP}, v{TB}
    v_cmp_eq_u32 s[56:57], 1, v{TA}
    v_cmp_eq_u32 s[58:59], 2, v{TA}
    v_cmp_eq_u32 s[60:61], 3, v{TA}
    s_lshl_b32 s12, s15, 1
    s_add_u32 s12, s12, s6
    s_lshl_b32 s12, s12, 12
    s_lshl_b32 s13, s7, 10
    s_add_u32 s12, s12, s13
    s_add_u32 s12, s12, {WS_PART1}
    """)
    stamp(8)
    a("s_barrier")
    stamp(9)
    for s in range(4): a(f"ds_read_b128 v[{AF+4*s}:{AF+4*s+3}], v{TB} offset:{64*s}")
    a("s_waitcnt lgkmcnt(0)")
    gemv_wide(64, 4)
    for t in range(8):
        a(f"v_add_f32 v{DD+4*t}, v{DD+4*t}, v{DD+4*t+1}\nv_add_f32 v{DD+4*t+2}, v{DD+4*t+2}, v{DD+4*t+3}")
    for t in range(8): a(f"v_add_f32 v{DD+4*t}, v{DD+4*t}, v{DD+4*t+2}")
    for u in range(2):
        a(f"v_cndmask_b32 v{16+2*u}, v{DD+4*u}, v{DD+4*(2+u)}, s[56:57]")
        a(f"v_cndmask_b32 v{16+2*u}, v{16+2*u}, v{DD+4*(4+u)}, s[58:59]")
        a(f"v_cndmask_b32 v{16+2*u}, v{16+2*u}, v{DD+4*(6+u)}, s[60:61]")
    a(f"v_mov_b32 v17, {TAG}\nv_mov_b32 v19, {TAG}")
    a("buffer_store_dwordx4 v[16:19], v1, s[48:51], s12 offen sc1")
    stamp(10)
    a("s_cmp_lt_u32 s2, 128\ns_cbranch_scc1 L_reducer")
    a(f"s_cmp_ge_u32 s68, {NFFN}\ns_cbranch_scc1 L_hend")
    a(f"s_lshl_b32 s12, s7, 15\nv_add_u32 v{TB}, s12, v{TRN}")
    tr_narrow(64, TB, 0)
    tr_narrow(128, TB, 0x4000)
    a(f"""
    s_lshl_b32 s12, s7, 11
    s_add_u32 s12, s12, {WS_X1}
    s_mul_i32 s13, s7, {ACT_STRIDE}
    s_add_u32 s13, s13, {L_ACT}
    v_lshlrev_b32 v{TA}, 1, v15
    v_add_u32 v{TA}, s13, v{TA}
    v_bfe_u32 v{TC}, v0, 2, 2
    v_mul_u32_u24 v15, {GB_STRIDE}, v{TC}
    v_mul_u32_u24 v{TC}, {ACT_STRIDE}, v{TC}
    v_lshrrev_b32 v{TB}, 4, v0
    v_lshl_add_u32 v{TC}, v{TB}, 4, v{TC}
    v_lshl_add_u32 v15, v{TB}, 4, v15
    v_add_u32 v{TC}, {L_ACT}, v{TC}
    v_add_u32 v15, {L_GB}, v15
    v_mul_u32_u24 v{TRB}, {GB_STRIDE}, v{TB}
    v_and_b32 v{TRN}, 15, v0
    v_lshl_add_u32 v{TRB}, v{TRN}, 1, v{TRB}
    s_lshl_b32 s13, s7, 5
    s_add_u32 s13, s13, {L_GB}
    v_add_u32 v{TRB}, s13, v{TRB}
    v_lshlrev_b32 v{TB}, 12, v{TB}
    v_lshl_add_u32 v{TRN}, v{TRN}, 4, v{TB}
    s_lshl_b32 s13, s68, 14
    s_lshl_b32 s14, s7, 10
    s_add_u32 s13, s13, s14
    s_add_u32 s13, s13, {WS_PART2}
    """)
    spin_begin()
    a("L_poll_x1:")
    spin_check()
    a(f"""
    buffer_load_dwordx4 v[16:19], v1, s[48:51], s12 offen sc1
    buffer_load_dwordx4 v[20:23], v1, s[48:51], s12 offen offset:1024 sc1
    s_waitcnt vmcnt(0)
    v_cmp_eq_u32 vcc, {TAG}, v17
    """)
    for k in range(1, 4): a(f"v_cmp_eq_u32 s[56:57], {TAG}, v{17+2*k}\ns_and_b64 vcc, vcc, s[56:57]")
    a("s_cmp_eq_u64 vcc, exec\ns_cbranch_scc0 L_poll_x1")
    stamp(11)
    X2, S2 = 24, 32
    for i in range(2):
        unpack(X2 + 4*i, X2 + 4*i + 2, 16 + 4*i)
        unpack(X2 + 4*i + 1, X2 + 4*i + 3, 18 + 4*i)
    ln_stats(X2, S2)
    for k in range(8): a(f"v_sub_f32 v{X2+k}, v{X2+k}, v{S2}")
    for k in range(4): a(f"v_cvt_pk_bf16_f32 v{16+k}, v{X2+2*k}, v{X2+2*k+1}")
    for k in range(4): unpack(X2 + 2*k, X2 + 2*k + 1, 16 + k)
    for k in range(8): a(f"v_mul_f32 v{X2+k}, v{X2+k}, v{S2+1}")
    for k in range(4): a(f"v_cvt_pk_bf16_f32 v{16+k}, v{X2+2*k}, v{X2+2*k+1}")
    for k in range(4): unpack(X2 + 2*k, X2 + 2*k + 1, 16 + k)
    for k in range(4): unpack(S2 + 2*k, S2 + 2*k + 1, TREG[k])
    for k in range(8): a(f"v_mul_f32 v{X2+k}, v{X2+k}, v{S2+k}")
    for k in range(4): a(f"v_cvt_pk_bf16_f32 v{16+k}, v{X2+2*k}, v{X2+2*k+1}")
    for k in range(4): unpack(X2 + 2*k, X2 + 2*k + 1, 16 + k)
    for k in range(4): unpack(S2 + 2*k, S2 + 2*k + 1, SB + k)
    for k in range(8): a(f"v_add_f32 v{X2+k}, v{X2+k}, v{S2+k}")
    for k in range(4): a(f"v_cvt_pk_bf16_f32 v{16+k}, v{X2+2*k}, v{X2+2*k+1}")
    for k in range(4): a(f"ds_write_b32 v{TA}, v{16+k} offset:{(256*(k>>1)+16*(k&1))*2}")
    a("s_waitcnt lgkmcnt(0)\ns_barrier")
    G, U = 48, 52
    for hh in range(2):
        for s in range(8): a(f"ds_read_b128 v[{16+4*s}:{19+4*s}], v{TC} offset:{(8*hh+s)*64}")
        for s in range(8):
            a(f"s_waitcnt lgkmcnt({7-s})")
            k = 8*hh + s
            a(f"v_mfma_f32_16x16x32_bf16 v[{G}:{G+3}], v[{16+4*s}:{19+4*s}], v[{64+4*k}:{67+4*k}], " + ("0" if k == 0 else f"v[{G}:{G+3}]"))
            a(f"v_mfma_f32_16x16x32_bf16 v[{U}:{U+3}], v[{16+4*s}:{19+4*s}], v[{128+4*k}:{131+4*k}], " + ("0" if k == 0 else f"v[{U}:{U+3}]"))
    bf16r2(G, U, 56)
    a(f"""
    v_mul_f32 v56, v{G}, v{G}
    v_mul_f32 v56, 0x3d372713, v56
    v_fma_f32 v56, v56, v{G}, v{G}
    v_mul_f32 v56, 0x40135761, v56
    v_exp_f32 v56, -v56
    v_add_f32 v56, 1.0, v56
    v_rcp_f32 v56, v56
    v_mul_f32 v56, v56, v{G}
    """)
    bf16r(56, 56)
    a(f"""
    v_mul_f32 v56, v56, v{U}
    v_cvt_pk_bf16_f32 v56, v56, v56
    ds_write_b16 v{TRB}, v56
    s_waitcnt lgkmcnt(0)
    s_barrier
    ds_read_b128 v[{AF}:{AF+3}], v15
    ds_read_b128 v[{AF+4}:{AF+7}], v15 offset:64
    s_waitcnt lgkmcnt(0)
    """)
    gemv_wide(192, 2)
    for u in range(4):
        r = DD + 8*u
        a(f"v_mov_b32 v{r+1}, {TAG}\nv_mov_b32 v{r+2}, v{r+4}\nv_mov_b32 v{r+3}, {TAG}")
        a(f"buffer_store_dwordx4 v[{r}:{r+3}], v{TRN}, s[48:51], s13 offen offset:{256*u} sc1")
    stamp(12)
    a("s_branch L_hend")
    a("L_reducer:")
    a("s_cmp_lg_u32 s7, 1\ns_cbranch_scc1 L_hend")
    a(f"""
    v_lshrrev_b32 v{TA}, 3, v0
    v_and_b32 v{TB}, 7, v0
    v_lshlrev_b32 v{TC}, 14, v{TA}
    v_lshlrev_b32 v{TA}, 12, v{TA}
    v_lshl_add_u32 v{TA}, v{TB}, 4, v{TA}
    v_lshl_add_u32 v{TC}, v{TB}, 4, v{TC}
    v_lshlrev_b32 v{TB}, 3, v{TB}
    s_lshl_b32 s12, s68, 18
    s_lshl_b32 s13, s69, 7
    s_add_u32 s12, s12, s13
    s_add_u32 s12, s12, {WS_PART1}
    """)
    spin_begin()
    a("L_poll_p1:")
    spin_check()
    a("s_mov_b32 s14, s12")
    for i in range(8):
        a(f"buffer_load_dwordx4 v[{16+4*i}:{19+4*i}], v{TA}, s[48:51], s14 offen sc1")
        if i < 7: a("s_add_u32 s14, s14, 0x8000")
    a("s_waitcnt vmcnt(0)")
    a(f"v_cmp_eq_u32 vcc, {TAG}, v17")
    for k in range(1, 16): a(f"v_cmp_eq_u32 s[56:57], {TAG}, v{17+2*k}\ns_and_b64 vcc, vcc, s[56:57]")
    a("s_cmp_eq_u64 vcc, exec\ns_cbranch_scc0 L_poll_p1")
    stamp(11)
    def tree(n):
        st_ = 1
        while st_ < n:
            for i in range(0, n, 2*st_):
                a(f"v_add_f32 v{16+4*i}, v{16+4*i}, v{16+4*(i+st_)}\nv_add_f32 v{18+4*i}, v{18+4*i}, v{18+4*(i+st_)}")
            st_ *= 2
        allreduce("v_add_f32", [16, 18], [17, 19], steps=("row_ror:8",))
    tree(8)
    def resid(gate):
        bf16r2(16, 18, 17)
        a(f"v_mul_f32 v16, v16, v{gate}\nv_mul_f32 v18, v18, v{gate+1}")
        bf16r2(16, 18, 17)
        a(f"v_add_f32 v16, v16, v{RX}\nv_add_f32 v18, v18, v{RX+1}\nv_cvt_pk_bf16_f32 v16, v16, v18")
    resid(RGA)
    a(f"""
    v_mov_b32 v17, {TAG}
    s_lshl_b32 s12, s68, 11
    s_lshl_b32 s13, s69, 6
    s_add_u32 s12, s12, s13
    s_add_u32 s12, s12, {WS_X1}
    s_mov_b64 exec, 0xff
    buffer_store_dwordx2 v[16:17], v{TB}, s[48:51], s12 offen sc1
    s_mov_b64 exec, -1
    """)
    stamp(12)
    unpack(RX, RX+1, 16)
    a(f"""
    s_lshl_b32 s12, s68, 12
    s_lshl_b32 s13, s69, 7
    s_add_u32 s12, s12, s13
    s_add_u32 s12, s12, {WS_PART2}
    v_mov_b32 v28, 0
    v_mov_b32 v29, {TAG}
    v_mov_b32 v30, 0
    v_mov_b32 v31, {TAG}
    """)
    srd(52, P_OUT, 4096)
    spin_begin()
    a("L_poll_p2:")
    spin_check()
    a("s_mov_b32 s14, s12")
    for i in range(4):
        if i == 3: a("s_mov_b32 exec_hi, 0")
        a(f"buffer_load_dwordx4 v[{16+4*i}:{19+4*i}], v{TC}, s[48:51], s14 offen sc1")
        if i < 3: a("s_add_u32 s14, s14, 0x20000")
    a("s_mov_b64 exec, -1\ns_waitcnt vmcnt(0)")
    a(f"v_cmp_eq_u32 vcc, {TAG}, v17")
    for k in range(1, 8): a(f"v_cmp_eq_u32 s[56:57], {TAG}, v{17+2*k}\ns_and_b64 vcc, vcc, s[56:57]")
    a("s_cmp_eq_u64 vcc, exec\ns_cbranch_scc0 L_poll_p2")
    stamp(13)
    tree(4)
    resid(RGB)
    a(f"""
    s_lshl_b32 s12, s68, 10
    s_mov_b64 exec, 0xff
    buffer_store_short v16, v{DA}, s[52:55], s12 offen
    buffer_store_short_d16_hi v16, v{DA}, s[52:55], s12 offen offset:32
    s_cmp_lg_u32 s2, 0
    s_cbranch_scc1 L_hend
    s_mov_b64 exec, 1
    v_mov_b32 v17, {TAG}
    v_mov_b32 v18, 0
    buffer_store_dword v17, v18, s[48:51], 0 offen sc1
    """)
    a("L_hend:")
    stamp(14)
    dump_stamps(15)
    a("L_end:")
    a("s_endpgm")
    a('.section .rodata,"a"')
    a(".p2align 6")
    a(f".amdhsa_kernel {NAME}_kernel")
    a("""
    .amdhsa_next_free_vgpr 256
    .amdhsa_next_free_sgpr 102
    .amdhsa_accum_offset 256
    .amdhsa_group_segment_fixed_size 0
    .amdhsa_kernarg_size 112
    .amdhsa_user_sgpr_count 2
    .amdhsa_user_sgpr_kernarg_segment_ptr 1
    .amdhsa_system_sgpr_workgroup_id_x 1
    .amdhsa_float_denorm_mode_32 3
    .end_amdhsa_kernel
    """)
    return out + a.text()

if __name__ == "__main__":
    kw = eval("dict(" + (sys.argv[2] if len(sys.argv) > 2 else "") + ")")
    open(sys.argv[1], "w").write(gen(**kw))
```

```python
import sys
from asmlib import Asm

NAME = "adaLN_cond__mha_block_cached__geglu_ffn__decode"
WS_MOD, WS_STATS, WS_PART1, WS_X1, WS_PART2, WS_DBG, WS_SIZE = 0x1000, 0x40000, 0x80000, 0x180000, 0x190000, 0x200000, 0x400000
MOD_REP, MOD_B = 49152, 12288
L_W, L_WM, L_ACT, L_HB, L_QP, L_OP, L_FAC, L_GB = 0, 0x20000, 0x24000, 0x25200, 0x25600, 0x25E00, 0x26300, 0x26400
ACT_STRIDE, OP_STRIDE, GB_STRIDE = 1088, 320, 192
LDS_BYTES = 0x26800
NFFN = 28
SPIN_MAX = 400000
P_X, P_K, P_V, P_WQ, P_WO, P_WG, P_WU, P_WD, P_C, P_WM, P_OUT, P_WS = 16, 18, 20, 22, 24, 28, 30, 32, 34, 36, 38, 42
TAG = "s45"
LOG2E, SCALE, HIMASK = "s64", "s65", "s66"

def gen(D=5, A=8, E=4, P=48, diag=False, wpol="nt", thr=2, thrq=64, early_wq=True, hmap=0, vpol="nt", kpol="nt", gate=True, nowo=False):
    a = Asm()
    stamps = {"n": 0}
    def stamp(k):
        if diag: a(f"s_memrealtime s[{72+2*k}:{73+2*k}]")
    def srd(reg, ptr, nbytes):
        a(f"s_mov_b32 s{reg}, s{ptr}\ns_mov_b32 s{reg+1}, s{ptr+1}\ns_mov_b32 s{reg+2}, {nbytes}\ns_mov_b32 s{reg+3}, 0x20000")
    def dump_stamps(n):
        if not diag: return
        a("s_waitcnt lgkmcnt(0)")
        a("s_mov_b64 exec, 1")
        a("s_lshl_b32 s46, s2, 3\ns_add_u32 s46, s46, s3\ns_lshl_b32 s46, s46, 6")
        a(f"s_add_u32 s46, s46, {WS_DBG}")
        a("v_mov_b32 v1, 0")
        for k in range(n):
            a(f"v_mov_b32 v2, s{72+2*k}")
            a(f"buffer_store_dword v2, v1, s[48:51], s46 offen offset:{4*k}")
    lab = {"n": 0}
    def newlab(p):
        lab["n"] += 1; return f"L_{p}{lab['n']}"
    def allreduce(op, rs, tmps, rows_only=False, steps=("quad_perm:[1,0,3,2]", "quad_perm:[2,3,0,1]", "row_half_mirror", "row_mirror")):
        for st in steps:
            for r in rs: a(f"{op}_dpp v{r}, v{r}, v{r} {st} row_mask:0xf bank_mask:0xf")
        if rows_only: return
        for sw in ("v_permlane16_swap_b32", "v_permlane32_swap_b32"):
            for r, t in zip(rs, tmps): a(f"v_mov_b32 v{t}, v{r}")
            for r, t in zip(rs, tmps): a(f"{sw} v{r}, v{t}")
            for r, t in zip(rs, tmps): a(f"{op} v{r}, v{r}, v{t}")
    def bf16r(d, s):
        a(f"v_cvt_pk_bf16_f32 v{d}, v{s}, v{s}\nv_and_b32 v{d}, {HIMASK}, v{d}")
    def bf16r2(lo, hi, t):
        a(f"v_cvt_pk_bf16_f32 v{t}, v{lo}, v{hi}\nv_lshlrev_b32 v{lo}, 16, v{t}\nv_and_b32 v{hi}, {HIMASK}, v{t}")
    def unpack(lo, hi, s):
        a(f"v_lshlrev_b32 v{lo}, 16, v{s}\nv_and_b32 v{hi}, {HIMASK}, v{s}")
    def spin_begin():
        a("s_mov_b32 s70, 0")
    def spin_check():
        a(f"s_add_u32 s70, s70, 1\ns_cmp_gt_u32 s70, {SPIN_MAX}\ns_cbranch_scc1 L_end")

    hdr = open("cdna_kernels/" + NAME + ".s.ref").read().split("; Override launch")[0]
    out = hdr + f"; @launch grid=(256,1,1) block=(512,1,1) lds={LDS_BYTES}\n"
    a('.amdgcn_target "amdgcn-amd-amdhsa--gfx950"')
    a(".text")
    a(f".globl {NAME}_kernel")
    a(".p2align 8")
    a(f".type {NAME}_kernel,@function")
    a(f"{NAME}_kernel:")
    a("""
    s_cmp_ge_u32 s2, 256
    s_cbranch_scc1 L_end
    s_load_dwordx16 s[16:31], s[0:1], 0
    s_load_dwordx8 s[32:39], s[0:1], 64
    s_load_dwordx4 s[40:43], s[0:1], 96
    """)
    stamp(0)
    a(f"""
    v_lshrrev_b32 v1, 6, v0
    v_and_b32 v0, 63, v0
    v_readfirstlane_b32 s3, v1
    v_lshlrev_b32 v1, 4, v0
    s_lshr_b32 s12, s2, 3
    s_and_b32 s4, s12, 3
    s_and_b32 s13, s2, 7
    s_lshl_b32 {"s13, s13, 2" if hmap else "s4, s4, 3"}
    s_add_u32 s4, s4, s13
    s_bfe_u32 s5, s12, 0x20002
    s_lshr_b32 s6, s12, 4
    s_mov_b32 s64, 0x3fb8aa3b
    s_mov_b32 s65, 0x3db504f3
    s_mov_b32 s66, 0xffff0000
    s_lshl_b32 s15, s5, 5
    s_add_u32 s15, s15, s4
    s_waitcnt lgkmcnt(0)
    s_load_dword s44, s[42:43], 0
    """)
    srd(48, P_WS, WS_SIZE)
    a("s_cmp_ge_u32 s3, 4\ns_cbranch_scc1 L_helper")

    Q, MK, BB, ACC, PT, XX, YY, T0, T1, SC, RING = 2, 6, 10, 14, 18, 34, 42, 46, 47, 48, 64
    srd(8, P_K, 0x10000000)
    a("""
    s_lshl_b32 s13, s15, 21
    s_lshl_b32 s14, s6, 20
    s_add_u32 s13, s13, s14
    s_lshl_b32 s14, s3, 12
    s_add_u32 s13, s13, s14
    s_mov_b32 s12, s13
    """)
    st = {"issued": 0, "landed": 0}
    def slot(n): return RING + 4 * (n if n < P else n % 16)
    def issue(n):
        r = slot(n)
        a(f"buffer_load_dwordx4 v[{r}:{r+3}], v1, s[8:11], s12 offen offset:{(n&3)*1024} {kpol if n < 256 else vpol}")
        if n & 3 == 3: a("s_add_u32 s12, s12, 0x4000")
        st["issued"] = n + 1
    def throttle():
        a(f"s_waitcnt vmcnt({D-1})")
        st["landed"] = max(st["landed"], st["issued"] - (D - 1))
    def ensure(n):
        if n >= st["landed"]:
            k = st["issued"] - 1 - n
            a(f"s_waitcnt vmcnt({k})"); st["landed"] = n + 1
    for n in range(P):
        if n >= D: throttle()
        issue(n)
        if n == D - 1:
            a(f"""
            s_mov_b32 s60, 0xaaaaaaaa
            s_mov_b32 s61, 0xaaaaaaaa
            s_mov_b32 s62, 0xcccccccc
            s_mov_b32 s63, 0xcccccccc
            v_and_b32 v{T0}, 15, v0
            v_and_b32 v{T1}, 1, v0
            v_lshlrev_b32 v{T1}, 4, v{T1}
            v_mov_b32 v{PT}, 0xffff
            v_lshlrev_b32 v{T1}, v{T1}, v{PT}
            v_lshrrev_b32 v{T0}, 1, v{T0}
            """)
            for t in range(4):
                a(f"v_cmp_eq_u32 vcc, {t}, v{T0}\nv_cndmask_b32 v{MK+t}, 0, v{T1}, vcc")
            for t in range(4): a(f"v_mov_b32 v{ACC+t}, 0")
    stamp(1)
    a("s_barrier")
    stamp(2)
    a(f"v_and_b32 v{T0}, 15, v0\nv_lshlrev_b32 v{T0}, 5, v{T0}\nv_add_u32 v{T0}, {L_QP}, v{T0}")
    QT = 50
    qregs = [18, 26, 48, 56]
    for hw in range(4):
        a(f"ds_read_b128 v[{qregs[hw]}:{qregs[hw]+3}], v{T0} offset:{hw*512}")
        a(f"ds_read_b128 v[{qregs[hw]+4}:{qregs[hw]+7}], v{T0} offset:{hw*512+16}")
    a("s_waitcnt lgkmcnt(0)\ns_mul_i32 s45, s44, 1664525\ns_add_u32 s45, s45, 1013904223")
    for i in range(8):
        a(f"v_add_f32 v{18+i}, v{18+i}, v{26+i}\nv_add_f32 v{48+i}, v{48+i}, v{56+i}")
    for i in range(8): a(f"v_add_f32 v{18+i}, v{18+i}, v{48+i}")
    for i in range(4): a(f"v_cvt_pk_bf16_f32 v{Q+i}, v{18+2*i}, v{19+2*i}")

    def kdots(n):
        r = slot(n); p = PT + n % 16
        a(f"v_dot2_f32_bf16 v{p}, v{r}, v{Q}, 0")
        for i in range(1, 4): a(f"v_dot2_f32_bf16 v{p}, v{r+i}, v{Q+i}, v{p}")
    def kreduce(dst):
        for j in range(8): a(f"v_add_f32_dpp v{XX+j}, v{PT+j}, v{PT+j} row_ror:8 row_mask:0xf bank_mask:0x3")
        for j in range(8): a(f"v_add_f32_dpp v{XX+j}, v{PT+8+j}, v{PT+8+j} row_ror:8 row_mask:0xf bank_mask:0xc")
        for j in range(4): a(f"v_add_f32_dpp v{YY+j}, v{XX+j}, v{XX+j} row_half_mirror row_mask:0xf bank_mask:0x5")
        for j in range(4): a(f"v_add_f32_dpp v{YY+j}, v{XX+4+j}, v{XX+4+j} row_half_mirror row_mask:0xf bank_mask:0xa")
        for j in range(2):
            a(f"v_cndmask_b32 v{XX+2*j}, v{YY+j+2}, v{YY+j}, s[62:63]")
            a(f"v_cndmask_b32 v{XX+2*j+1}, v{YY+j}, v{YY+j+2}, s[62:63]")
        for j in range(2):
            a(f"v_add_f32_dpp v{XX+4+j}, v{XX+2*j}, v{XX+2*j+1} quad_perm:[2,3,0,1] row_mask:0xf bank_mask:0xf")
        a(f"v_cndmask_b32 v{XX}, v{XX+5}, v{XX+4}, s[60:61]")
        a(f"v_cndmask_b32 v{XX+1}, v{XX+4}, v{XX+5}, s[60:61]")
        a(f"v_add_f32_dpp v{XX+2}, v{XX}, v{XX+1} quad_perm:[1,0,3,2] row_mask:0xf bank_mask:0xf")
        bf16r(XX+2, XX+2)
        a(f"v_mul_f32 v{XX+2}, {SCALE}, v{XX+2}")
        bf16r(dst, XX+2)
    NPEEL = P // 16 + 1
    KL = 16 - NPEEL
    cons = {"n": 0}
    def consume_k_upto(m):
        while cons["n"] < m:
            n = cons["n"]; ensure(n); kdots(n); cons["n"] += 1
            if n % 16 == 15: kreduce(SC + n // 16 + KL)
    tgt = NPEEL * 16
    nsteps = tgt + A - P
    for s in range(nsteps):
        n = P + s
        prev = n - P if n < P + 16 else n - 16
        rate = (P + 15) // 16
        want = max(prev + 1, min(1 + rate * s, P + 1) if s <= 16 else min(P + 1 + 2 * (s - 16), tgt))
        consume_k_upto(min(want, tgt))
        throttle(); issue(n)
    consume_k_upto(tgt)
    a(f"s_mov_b32 s14, 0")
    a("L_kloop:")
    for j in range(16):
        n = tgt + j
        a(f"s_waitcnt vmcnt({D-1})")
        if j == 16 - A:
            a(f"s_cmp_eq_u32 s14, {KL-1}\ns_cselect_b32 s8, s{P_V}, s8\ns_cselect_b32 s9, s{P_V+1}, s9\ns_cselect_b32 s12, s13, s12")
        issue(n + A)
        kdots(n)
        if j == 7:
            for i in range(15): a(f"v_mov_b32 v{SC+i}, v{SC+i+1}")
    kreduce(SC + 15)
    a(f"s_add_u32 s14, s14, 1\ns_cmp_lt_u32 s14, {KL}\ns_cbranch_scc1 L_kloop")
    stamp(3)
    ex = {"n": 256 + A}
    def extra():
        if ex["n"] < 256 + A + E:
            a(f"s_waitcnt vmcnt({D-1})"); issue(ex["n"]); ex["n"] += 1
    extra()
    M, Ls = PT, PT + 1
    a(f"v_max3_f32 v{M}, v{SC}, v{SC+1}, v{SC+2}")
    for i in range(3, 15, 2): a(f"v_max3_f32 v{M}, v{M}, v{SC+i}, v{SC+i+1}")
    a(f"v_max_f32 v{M}, v{M}, v{SC+15}")
    allreduce("v_max_f32", [M], [T0])
    a(f"v_mul_f32 v{T1}, {LOG2E}, v{M}")
    extra()
    for i in range(16): a(f"v_fma_f32 v{SC+i}, v{SC+i}, {LOG2E}, -v{T1}")
    for i in range(16): a(f"v_exp_f32 v{SC+i}, v{SC+i}")
    extra()
    a(f"v_add_f32 v{Ls}, v{SC}, v{SC+1}\nv_add_f32 v{Ls+1}, v{SC+2}, v{SC+3}")
    for i in range(4, 16, 2): a(f"v_add_f32 v{Ls}, v{Ls}, v{SC+i}\nv_add_f32 v{Ls+1}, v{Ls+1}, v{SC+i+1}")
    a(f"v_add_f32 v{Ls}, v{Ls}, v{Ls+1}")
    for i in range(16): a(f"v_cvt_pk_bf16_f32 v{SC+i}, v{SC+i}, v{SC+i}")
    extra()
    allreduce("v_add_f32", [Ls], [T0])
    a(f"""
    v_mov_b32 v{XX}, v{M}
    v_mov_b32 v{XX+1}, {TAG}
    v_mov_b32 v{XX+2}, v{Ls}
    v_mov_b32 v{XX+3}, {TAG}
    s_lshl_b32 s46, s15, 7
    s_lshl_b32 s47, s6, 6
    s_add_u32 s46, s46, s47
    s_lshl_b32 s47, s3, 4
    s_add_u32 s46, s46, s47
    s_add_u32 s46, s46, {WS_STATS}
    s_mov_b64 exec, 1
    buffer_store_dwordx4 v[{XX}:{XX+3}], v1, s[48:51], s46 offen sc1
    s_mov_b64 exec, -1
    s_lshl_b32 s47, s3, 3
    s_add_u32 s47, s47, {L_FAC}
    v_mov_b32 v{PT+4}, s47
    s_lshl_b32 s47, s3, 2
    s_add_u32 s47, s47, {L_FAC+32}
    v_mov_b32 v{PT+5}, s47
    v_mov_b32 v{PT+6}, 1
    ds_write_b32 v{PT+5}, v{PT+6}
    """)
    while ex["n"] < 256 + A + E: extra()
    AV = A + E
    assert AV <= 15
    a("s_mov_b32 s14, 0")
    a("L_vloop:")
    a(f"ds_read_b64 v[{T0}:{T1}], v{PT+4}")
    for j in range(16):
        n = 256 + j
        for t in range(4): a(f"v_and_b32_dpp v{BB+t}, v{SC}, v{MK+t} row_newbcast:{j} row_mask:0xf bank_mask:0xf")
        a(f"s_waitcnt vmcnt({D-1})")
        if j == 16 - AV:
            a("s_cmp_eq_u32 s14, 15\ns_cselect_b32 s10, 0, s10")
        issue(n + AV)
        r = slot(n)
        a(f"v_mfma_f32_16x16x32_bf16 v[{ACC}:{ACC+3}], v[{r}:{r+3}], v[{BB}:{BB+3}], v[{ACC}:{ACC+3}]")
    for i in range(15): a(f"v_mov_b32 v{SC+i}, v{SC+i+1}")
    a("s_add_u32 s14, s14, 1\ns_cmp_lt_u32 s14, 16\ns_cbranch_scc1 L_vloop")
    stamp(4)
    spin_begin()
    a("L_facspin:")
    a(f"s_waitcnt lgkmcnt(0)\nv_readfirstlane_b32 s46, v{T1}\ns_cmp_eq_u32 s46, 1\ns_cbranch_scc1 L_facok")
    spin_check()
    a(f"ds_read_b64 v[{T0}:{T1}], v{PT+4}\ns_branch L_facspin")
    a("L_facok:")
    a(f"""
    v_lshrrev_b32 v{PT}, 4, v0
    v_lshlrev_b32 v{PT}, 6, v{PT}
    v_and_b32 v{PT+1}, 15, v0
    v_lshl_add_u32 v{PT}, v{PT+1}, 1, v{PT}
    s_mul_i32 s46, s3, {OP_STRIDE}
    s_add_u32 s46, s46, {L_OP}
    v_add_u32 v{PT}, s46, v{PT}
    """)
    for t in range(4): a(f"v_mul_f32 v{ACC+t}, v{ACC+t}, v{T0}")
    a(f"v_cvt_pk_bf16_f32 v{ACC}, v{ACC}, v{ACC+1}\nv_cvt_pk_bf16_f32 v{ACC+2}, v{ACC+2}, v{ACC+3}")
    a(f"""
    s_mov_b32 exec_lo, 0x00ff00ff
    s_mov_b32 exec_hi, 0x00ff00ff
    ds_write_b16 v{PT}, v{ACC}
    ds_write_b16_d16_hi v{PT}, v{ACC} offset:16
    ds_write_b16 v{PT}, v{ACC+2} offset:32
    ds_write_b16_d16_hi v{PT}, v{ACC+2} offset:48
    s_waitcnt lgkmcnt(0)
    s_barrier
    """)
    stamp(5)
    dump_stamps(6)
    a("s_endpgm")

    a("L_helper:")
    a("s_sub_u32 s7, s3, 4")
    TRB, TRN, DA, DB, DN, TA, TB, TC = 2, 3, 4, 5, 6, 7, 8, 9
    a(f"""
    v_lshrrev_b32 v{TA}, 4, v0
    v_bfe_u32 v{TB}, v0, 2, 2
    v_and_b32 v{TC}, 3, v0
    v_lshl_add_u32 v{TRN}, v{TA}, 3, v{TB}
    v_lshlrev_b32 v{TRB}, 8, v{TRN}
    v_lshlrev_b32 v{TRN}, 5, v{TRN}
    v_lshl_add_u32 v{TRB}, v{TC}, 3, v{TRB}
    v_lshl_add_u32 v{TRN}, v{TC}, 3, v{TRN}
    v_and_b32 v{TC}, 1, v{TA}
    v_lshl_add_u32 v{TB}, v{TC}, 2, v{TB}
    v_lshl_add_u32 v{TRB}, v{TB}, 5, v{TRB}
    s_lshl_b32 s12, s7, 15
    v_add_u32 v{TRB}, s12, v{TRB}
    v_and_b32 v{TB}, 15, v0
    v_lshlrev_b32 v{TC}, 1, v{TA}
    v_xor_b32 v{TB}, v{TB}, v{TC}
    v_lshlrev_b32 v{DN}, 4, v{TB}
    """)
    def dma_wide(nins, rs_log2, soff, infl):
        a(f"v_lshrrev_b32 v{TA}, 4, v0\nv_lshl_add_u32 v{DA}, v{TA}, {rs_log2}, v{DN}\nv_xor_b32 v{DB}, 0x80, v{DA}")
        a("s_lshl_b32 s14, s7, 15")
        for i in range(nins):
            a("s_mov_b32 m0, s14" if i == 0 else "s_add_u32 m0, m0, 0x400")
            if i: a(f"s_add_u32 {soff}, {soff}, {4 << rs_log2}")
            a(f"buffer_load_dwordx4 v{DB if (i >> 1) & 1 else DA}, s[8:11], {soff} offen {wpol} lds")
            if i >= infl - 1: a(f"s_waitcnt vmcnt({infl-1})")
    def dma_mid(soff, ldsbase, infl):
        a(f"""
        v_lshrrev_b32 v{DA}, 3, v0
        v_mul_u32_u24 v{DA}, 3584, v{DA}
        v_bfe_u32 v{DB}, v0, 4, 1
        v_lshlrev_b32 v{DB}, 1, v{DB}
        v_and_b32 v{TA}, 7, v0
        v_xor_b32 v{DB}, v{DB}, v{TA}
        v_lshl_add_u32 v{DA}, v{DB}, 4, v{DA}
        v_xor_b32 v{DB}, 64, v{DA}
        """)
        for i in range(16):
            a(f"s_mov_b32 m0, {ldsbase}" if i == 0 else "s_add_u32 m0, m0, 0x400")
            if i: a(f"s_add_u32 {soff}, {soff}, {8*3584}")
            a(f"buffer_load_dwordx4 v{DB if i & 1 else DA}, s[8:11], {soff} offen {wpol} lds")
            if i >= infl - 1: a(f"s_waitcnt vmcnt({infl-1})")
    def tr_mid(dst, off):
        for s in range(16):
            r = dst + 4 * s
            ar = TA if s < 8 else TB
            o = off + ((s >> 2) & 1) * 0x8000 + (s & 3) * 4096
            a(f"ds_read_b64_tr_b16 v[{r}:{r+1}], v{ar} offset:{o}")
            a(f"ds_read_b64_tr_b16 v[{r+2}:{r+3}], v{ar} offset:{o+512}")
            if s & 3 == 3: a("s_waitcnt lgkmcnt(0)")
    def dma_narrow(rs, soff, ldsbase):
        a(f"v_lshrrev_b32 v{DA}, 1, v0\nv_mul_u32_u24 v{DA}, {rs}, v{DA}\nv_and_b32 v{DB}, 1, v0\nv_lshl_add_u32 v{DA}, v{DB}, 4, v{DA}")
        for i in range(16):
            a(f"s_mov_b32 m0, {ldsbase}" if i == 0 else "s_add_u32 m0, m0, 0x400")
            if i: a(f"s_add_u32 {soff}, {soff}, {32*rs}")
            a(f"buffer_load_dwordx4 v{DA}, s[8:11], {soff} offen {wpol} lds")
    def tr_wide(dst, nk):
        for t in range(8):
            ar = TA if t & 1 else TB
            a(f"v_xor_b32 v{ar}, {t << 5}, v{TRB}")
            for s in range(nk):
                r = dst + (t * nk + s) * 4
                a(f"ds_read_b64_tr_b16 v[{r}:{r+1}], v{ar} offset:{s*8192}")
                a(f"ds_read_b64_tr_b16 v[{r+2}:{r+3}], v{ar} offset:{s*8192+1024}")
            if t & 1: a("s_waitcnt lgkmcnt(0)")
    def tr_narrow(dst, areg, off):
        for s in range(16):
            r = dst + 4 * s
            a(f"ds_read_b64_tr_b16 v[{r}:{r+1}], v{areg} offset:{off+s*1024}")
            a(f"ds_read_b64_tr_b16 v[{r+2}:{r+3}], v{areg} offset:{off+s*1024+128}")
            if s & 3 == 3: a("s_waitcnt lgkmcnt(0)")
    def act_frags(dst):
        for s in range(16):
            a(f"ds_read_b128 v[{dst+4*s}:{dst+4*s+3}], v{TC} offset:{s*64}")
            if s == 7: a("s_waitcnt lgkmcnt(4)")
    XS, XP = 12, 10
    srd(52, P_X, 4096)
    a(f"""
    s_cmp_lg_u32 s7, 0
    s_cbranch_scc1 L_noA1
    s_cmp_ge_u32 s2, 192
    s_cbranch_scc1 L_noA1
    """)
    CC = 16
    srd(8, P_C, 4096)
    for i in range(4): a(f"buffer_load_dwordx4 v[{CC+4*i}:{CC+4*i+3}], v1, s[8:11], 0 offen offset:{1024*i}")
    srd(8, P_WM, 512 * 6144)
    a("""
    s_lshr_b32 s12, s2, 5
    s_lshl_b32 s12, s12, 3
    s_and_b32 s13, s2, 7
    s_add_u32 s12, s12, s13
    s_lshl_b32 s12, s12, 6
    s_bfe_u32 s13, s2, 0x20003
    s_lshl_b32 s13, s13, 4
    s_add_u32 s47, s12, s13
    s_lshl_b32 s13, s47, 1
    """)
    dma_narrow(6144, "s13", L_WM)
    a("s_waitcnt vmcnt(16)")
    stamp(1)
    W0 = 32
    for i in range(4):
        for k in range(4): unpack(W0 + 2*k, W0 + 2*k + 1, CC + 4*i + k)
        for k in range(8): a(f"v_mul_f32 v{W0+8+k}, {LOG2E}, v{W0+k}")
        for k in range(8): a(f"v_exp_f32 v{W0+8+k}, -v{W0+8+k}")
        for k in range(8): a(f"v_add_f32 v{W0+8+k}, 1.0, v{W0+8+k}")
        for k in range(8): a(f"v_rcp_f32 v{W0+8+k}, v{W0+8+k}")
        for k in range(8): a(f"v_mul_f32 v{W0+k}, v{W0+k}, v{W0+8+k}")
        for k in range(4): a(f"v_cvt_pk_bf16_f32 v{CC+4*i+k}, v{W0+2*k}, v{W0+2*k+1}")
    a(f"v_add_u32 v{TA}, {L_ACT}, v1")
    for i in range(4): a(f"ds_write_b128 v{TA}, v[{CC+4*i}:{CC+4*i+3}] offset:{i*ACT_STRIDE}")
    a(f"""
    v_and_b32 v{TC}, 3, v0
    v_mul_u32_u24 v{TC}, {ACT_STRIDE}, v{TC}
    v_lshrrev_b32 v{TA}, 4, v0
    v_lshl_add_u32 v{TC}, v{TA}, 4, v{TC}
    v_add_u32 v{TC}, {L_ACT}, v{TC}
    v_add_u32 v{TB}, {L_WM}, v{TRN}
    s_waitcnt lgkmcnt(0)
    """)
    act_frags(64)
    a("s_waitcnt vmcnt(0)")
    stamp(2)
    tr_narrow(128, TB, 0)
    for s in range(16):
        a(f"v_mfma_f32_16x16x32_bf16 v[{W0}:{W0+3}], v[{128+4*s}:{131+4*s}], v[{64+4*s}:{67+4*s}], " + ("0" if s == 0 else f"v[{W0}:{W0+3}]"))
    a("s_mul_i32 s45, s44, 1664525\ns_add_u32 s45, s45, 1013904223")
    a(f"""
    v_bfe_u32 v{TB}, v0, 2, 2
    v_mul_u32_u24 v{TB}, {MOD_REP}, v{TB}
    v_and_b32 v{TC}, 3, v0
    v_mul_u32_u24 v{TC}, {MOD_B}, v{TC}
    v_lshrrev_b32 v{TA}, 4, v0
    v_lshlrev_b32 v{TA}, 4, v{TA}
    v_add3_u32 v{TA}, v{TA}, v{TB}, v{TC}
    s_lshl_b32 s47, s47, 2
    s_add_u32 s47, s47, {WS_MOD}
    v_cvt_pk_bf16_f32 v{W0+4}, v{W0}, v{W0+1}
    v_mov_b32 v{W0+5}, {TAG}
    v_cvt_pk_bf16_f32 v{W0+6}, v{W0+2}, v{W0+3}
    v_mov_b32 v{W0+7}, {TAG}
    buffer_store_dwordx4 v[{W0+4}:{W0+7}], v{TA}, s[48:51], s47 offen sc1
    """)
    stamp(3)
    a("L_noA1:")
    a(f"""
    s_lshl_b32 s12, s5, 10
    buffer_load_dwordx4 v[{XS}:{XS+3}], v1, s[52:55], s12 offen
    v_and_b32 v{TA}, 31, v0
    v_lshlrev_b32 v{TA}, 3, v{TA}
    v_lshrrev_b32 v{TB}, 5, v0
    v_lshl_add_u32 v{XP+1}, v{TB}, 2, v{TA}
    s_lshl_b32 s13, s7, 8
    s_add_u32 s12, s12, s13
    buffer_load_dword v{XP}, v{XP+1}, s[52:55], s12 offen
    """)
    if not early_wq: a("s_waitcnt vmcnt(0)")
    srd(8, P_WQ, 512 * 8192)
    a("s_lshl_b32 s13, s7, 20\ns_lshl_b32 s12, s4, 8\ns_add_u32 s13, s13, s12")
    dma_wide(32, 13, "s13", thrq)
    a("s_waitcnt vmcnt(32) lgkmcnt(0)\ns_mul_i32 s45, s44, 1664525\ns_add_u32 s45, s45, 1013904223")
    def ln_stats(x0, t0):
        a(f"v_readfirstlane_b32 s46, v{x0}")
        for k in range(8): a(f"v_subrev_f32 v{t0+2+k}, s46, v{x0+k}")
        a(f"v_add_f32 v{t0}, v{t0+2}, v{t0+3}\nv_mul_f32 v{t0+1}, v{t0+2}, v{t0+2}")
        a(f"v_fmac_f32 v{t0+1}, v{t0+3}, v{t0+3}")
        for k in range(2, 8): a(f"v_add_f32 v{t0}, v{t0}, v{t0+2+k}\nv_fmac_f32 v{t0+1}, v{t0+2+k}, v{t0+2+k}")
        allreduce("v_add_f32", [t0, t0+1], [t0+2, t0+3])
        a(f"""
        v_mul_f32 v{t0}, 0x3b000000, v{t0}
        v_mul_f32 v{t0+1}, 0x3b000000, v{t0+1}
        v_fma_f32 v{t0+1}, -v{t0}, v{t0}, v{t0+1}
        v_add_f32 v{t0}, s46, v{t0}
        v_max_f32 v{t0+1}, 0, v{t0+1}
        """)
        bf16r2(t0, t0+1, t0+2)
        a(f"v_add_f32 v{t0+1}, 0x3727c5ac, v{t0+1}")
        bf16r(t0+1, t0+1)
        a(f"v_sqrt_f32 v{t0+1}, v{t0+1}")
        bf16r(t0+1, t0+1)
        a(f"v_rcp_f32 v{t0+1}, v{t0+1}")
    X8, ST = 16, 24
    for k in range(4): unpack(X8 + 2*k, X8 + 2*k + 1, XS + k)
    ln_stats(X8, ST)
    NA, NB = 12, 13
    unpack(NA, NB, XP)
    a(f"v_sub_f32 v{NA}, v{NA}, v{ST}\nv_sub_f32 v{NB}, v{NB}, v{ST}")
    bf16r2(NA, NB, 14)
    a(f"v_mul_f32 v{NA}, v{NA}, v{ST+1}\nv_mul_f32 v{NB}, v{NB}, v{ST+1}")
    bf16r2(NA, NB, 14)
    a(f"""
    v_mov_b32 v16, 0
    v_mov_b32 v17, 0
    s_lshl_b32 s12, s7, 3
    s_add_u32 s12, s12, {L_FAC}
    v_mov_b32 v18, s12
    ds_write_b64 v18, v[16:17]
    s_lshl_b32 s12, s7, 2
    s_add_u32 s12, s12, {L_FAC+32}
    v_mov_b32 v18, s12
    ds_write_b32 v18, v16
    s_waitcnt vmcnt(0)
    """)
    stamp(4)
    tr_wide(64, 4)
    a(f"""
    v_and_b32 v{TA}, 31, v0
    v_lshlrev_b32 v{TA}, 4, v{TA}
    v_lshrrev_b32 v{TB}, 5, v0
    v_lshl_add_u32 v{TA}, v{TB}, 11, v{TA}
    s_and_b32 s12, s2, 3
    s_mul_i32 s12, s12, {MOD_REP}
    s_add_u32 s67, s12, {WS_MOD}
    s_mul_i32 s13, s5, {MOD_B}
    s_add_u32 s12, s67, s13
    s_lshl_b32 s13, s7, 9
    s_add_u32 s12, s12, s13
    """)
    spin_begin()
    a("L_poll_mod:")
    spin_check()
    a(f"""
    buffer_load_dwordx4 v[16:19], v{TA}, s[48:51], s12 offen sc1
    s_waitcnt vmcnt(0)
    v_cmp_eq_u32 vcc, {TAG}, v17
    v_cmp_eq_u32 s[56:57], {TAG}, v19
    s_and_b64 vcc, vcc, s[56:57]
    s_cmp_eq_u64 vcc, exec
    s_cbranch_scc0 L_poll_mod
    """)
    stamp(5)
    a("v_permlane32_swap_b32 v16, v18")
    unpack(20, 21, 18)
    unpack(22, 23, 16)
    a("v_add_f32 v20, 1.0, v20\nv_add_f32 v21, 1.0, v21")
    bf16r2(20, 21, 14)
    a(f"v_mul_f32 v20, v20, v{NA}\nv_mul_f32 v21, v21, v{NB}")
    bf16r2(20, 21, 14)
    a("v_add_f32 v20, v20, v22\nv_add_f32 v21, v21, v23\nv_cvt_pk_bf16_f32 v20, v20, v21")
    a(f"""
    s_lshl_b32 s12, s7, 8
    s_add_u32 s12, s12, {L_HB}
    v_add_u32 v{TA}, s12, v{XP+1}
    ds_write_b32 v{TA}, v20
    v_lshrrev_b32 v{TB}, 4, v0
    v_lshlrev_b32 v{TB}, 4, v{TB}
    v_add_u32 v{TB}, s12, v{TB}
    s_waitcnt lgkmcnt(0)
    """)
    AF, DD = 16, 32
    for s in range(4): a(f"ds_read_b128 v[{AF+4*s}:{AF+4*s+3}], v{TB} offset:{64*s}")
    a("s_waitcnt lgkmcnt(0)")
    def gemv_wide(bbase, nk):
        for t in range(8):
            for s in range(nk):
                r = bbase + (t * nk + s) * 4
                a(f"v_mfma_f32_16x16x32_bf16 v[{DD+4*t}:{DD+4*t+3}], v[{AF+4*s}:{AF+4*s+3}], v[{r}:{r+3}], " + ("0" if s == 0 else f"v[{DD+4*t}:{DD+4*t+3}]"))
    gemv_wide(64, 4)
    a(f"""
    s_lshl_b32 s12, s7, 9
    s_add_u32 s12, s12, {L_QP}
    v_lshlrev_b32 v{TA}, 2, v0
    v_add_u32 v{TA}, s12, v{TA}
    s_mov_b64 exec, 0xffff
    """)
    for t in range(8): a(f"ds_write_b32 v{TA}, v{DD+4*t} offset:{64*t}")
    a("s_mov_b64 exec, -1\ns_waitcnt lgkmcnt(0)\ns_barrier")
    stamp(6)
    srd(8, P_WO, 4096 * 1024)
    a("s_lshl_b32 s13, s4, 17\ns_lshl_b32 s12, s7, 8\ns_add_u32 s13, s13, s12")
    if nowo: a("s_mov_b32 s10, 0")
    dma_wide(32, 10, "s13", thr)
    a("s_waitcnt vmcnt(0)")
    tr_wide(64, 4)
    SB, CB = 10, 14
    TT = 60
    a(f"s_sub_u32 s68, s2, 128\ns_cmp_ge_u32 s68, {NFFN}\ns_cbranch_scc1 L_noffn1")
    srd(8, P_WD, 1792 * 1024)
    a("s_lshl_b32 s13, s68, 16\ns_lshl_b32 s12, s7, 8\ns_add_u32 s13, s13, s12")
    dma_wide(16, 10, "s13", thr)
    a("s_waitcnt vmcnt(0)")
    tr_wide(192, 2)
    srd(8, P_WG, 512 * 3584)
    a(f"s_lshl_b32 s13, s68, 7\ns_mul_i32 s12, s7, {128*3584}\ns_add_u32 s46, s13, s12\ns_mov_b32 s13, s46\ns_lshl_b32 s14, s7, 15")
    dma_mid("s13", "s14", thr)
    srd(8, P_WU, 512 * 3584)
    a("s_mov_b32 s13, s46\ns_add_u32 s14, s14, 0x4000")
    dma_mid("s13", "s14", thr)
    a(f"""
    v_lshrrev_b32 v{TA}, 3, v0
    v_lshlrev_b32 v{TA}, 5, v{TA}
    v_bfe_u32 v{TB}, v0, 2, 1
    v_lshl_add_u32 v{TA}, v{TB}, 3, v{TA}
    v_and_b32 v{TB}, 3, v0
    v_lshl_add_u32 v15, v{TB}, 1, v{TA}
    v_lshlrev_b32 v{TA}, 2, v15
    s_mul_i32 s12, s7, {MOD_B}
    s_add_u32 s12, s12, s67
    s_add_u32 s13, s12, {2048*4}
    s_add_u32 s12, s12, {1536*4}
    """)
    spin_begin()
    a("L_poll_sb:")
    spin_check()
    for i in range(2):
        for e in range(2):
            k = 2*i + e
            a(f"buffer_load_dwordx2 v[{16+2*k}:{17+2*k}], v{TA}, s[48:51], s12 offen offset:{(256*i+16*e)*4} sc1")
            a(f"buffer_load_dwordx2 v[{24+2*k}:{25+2*k}], v{TA}, s[48:51], s13 offen offset:{(256*i+16*e)*4} sc1")
    a("s_waitcnt vmcnt(0)")
    a(f"v_cmp_eq_u32 vcc, {TAG}, v17")
    for k in range(1, 8): a(f"v_cmp_eq_u32 s[56:57], {TAG}, v{17+2*k}\ns_and_b64 vcc, vcc, s[56:57]")
    a("s_cmp_eq_u64 vcc, exec\ns_cbranch_scc0 L_poll_sb")
    for k in range(4):
        a(f"v_mov_b32 v{SB+k}, v{16+2*k}")
        unpack(32, 33, 24 + 2*k)
        a(f"v_add_f32 v32, 1.0, v32\nv_add_f32 v33, 1.0, v33\nv_cvt_pk_bf16_f32 v{[4,5,6,14][k]}, v32, v33")
    TREG = [4, 5, 6, 14]
    a("L_noffn1:")
    RX, RGA, RGB = 10, 12, 14
    a("s_cmp_lg_u32 s7, 1\ns_cbranch_scc1 L_nored1\ns_cmp_ge_u32 s2, 128\ns_cbranch_scc1 L_nored1")
    a(f"""
    s_lshr_b32 s68, s2, 5
    s_and_b32 s69, s2, 31
    s_lshr_b32 s12, s69, 1
    s_lshl_b32 s12, s12, 5
    s_and_b32 s13, s69, 1
    s_lshl_b32 s13, s13, 3
    s_add_u32 s71, s12, s13
    v_and_b32 v{TA}, 7, v0
    v_add_u32 v{TA}, s71, v{TA}
    v_lshlrev_b32 v{DA}, 1, v{TA}
    s_lshl_b32 s12, s68, 10
    buffer_load_ushort v{RX}, v{DA}, s[52:55], s12 offen
    buffer_load_ushort v{RX+1}, v{DA}, s[52:55], s12 offen offset:32
    v_lshrrev_b32 v{TB}, 1, v{TA}
    v_lshlrev_b32 v{TB}, 3, v{TB}
    s_mul_i32 s12, s68, {MOD_B}
    s_add_u32 s12, s12, s67
    s_add_u32 s13, s12, {2560*4}
    s_add_u32 s12, s12, {1024*4}
    """)
    spin_begin()
    a("L_poll_ga:")
    spin_check()
    a(f"""
    buffer_load_dwordx2 v[16:17], v{TB}, s[48:51], s12 offen sc1
    buffer_load_dwordx2 v[18:19], v{TB}, s[48:51], s12 offen offset:64 sc1
    buffer_load_dwordx2 v[20:21], v{TB}, s[48:51], s13 offen sc1
    buffer_load_dwordx2 v[22:23], v{TB}, s[48:51], s13 offen offset:64 sc1
    s_waitcnt vmcnt(0)
    v_cmp_eq_u32 vcc, {TAG}, v17
    """)
    for k in range(1, 4): a(f"v_cmp_eq_u32 s[56:57], {TAG}, v{17+2*k}\ns_and_b64 vcc, vcc, s[56:57]")
    a("s_cmp_eq_u64 vcc, exec\ns_cbranch_scc0 L_poll_ga")
    a(f"v_and_b32 v{TB}, 1, v0\nv_cmp_eq_u32 vcc, 1, v{TB}")
    for k in range(4):
        unpack(24, 25, 16 + 2*k)
        a(f"v_cndmask_b32 v{RGA+k}, v24, v25, vcc")
    a(f"v_lshlrev_b32 v{RX}, 16, v{RX}\nv_lshlrev_b32 v{RX+1}, 16, v{RX+1}")
    a("L_nored1:")
    stamp(7)
    a("s_cmp_lg_u32 s7, 0\ns_cbranch_scc1 L_nofac")
    a(f"""
    v_and_b32 v{TA}, 7, v0
    v_lshlrev_b32 v{TA}, 4, v{TA}
    s_lshl_b32 s12, s15, 7
    s_add_u32 s12, s12, {WS_STATS}
    """)
    if gate:
        spin_begin()
        a(f"v_mov_b32 v20, {L_FAC+32}")
        a("L_poll_kd:")
        spin_check()
        a("""
        s_sleep 16
        ds_read_b128 v[16:19], v20
        s_waitcnt lgkmcnt(0)
        v_and_b32 v16, v16, v17
        v_and_b32 v18, v18, v19
        v_and_b32 v16, v16, v18
        v_readfirstlane_b32 s13, v16
        s_cmp_eq_u32 s13, 1
        s_cbranch_scc0 L_poll_kd
        """)
    spin_begin()
    a("L_poll_st:")
    spin_check()
    a(f"""
    s_sleep {64 if gate else 16}
    buffer_load_dwordx4 v[16:19], v{TA}, s[48:51], s12 offen sc1
    s_waitcnt vmcnt(0)
    v_cmp_eq_u32 vcc, {TAG}, v17
    v_cmp_eq_u32 s[56:57], {TAG}, v19
    s_and_b64 vcc, vcc, s[56:57]
    s_cmp_eq_u64 vcc, exec
    s_cbranch_scc0 L_poll_st
    v_mov_b32 v20, v16
    """)
    s8 = ("quad_perm:[1,0,3,2]", "quad_perm:[2,3,0,1]", "row_half_mirror")
    allreduce("v_max_f32", [20], [], rows_only=True, steps=s8)
    a(f"v_sub_f32 v16, v16, v20\nv_mul_f32 v16, {LOG2E}, v16\nv_exp_f32 v16, v16\nv_mul_f32 v18, v18, v16")
    allreduce("v_add_f32", [18], [], rows_only=True, steps=s8)
    a(f"""
    v_rcp_f32 v18, v18
    v_mul_f32 v16, v16, v18
    v_mov_b32 v17, 1
    v_and_b32 v{TA}, 3, v0
    v_lshlrev_b32 v{TA}, 3, v{TA}
    v_add_u32 v{TA}, {L_FAC}, v{TA}
    s_lshl_b32 s12, s6, 2
    s_lshl_b64 exec, 15, s12
    ds_write_b64 v{TA}, v[16:17]
    s_mov_b64 exec, -1
    """)
    a("L_nofac:")
    a(f"""
    s_waitcnt vmcnt(0) lgkmcnt(0)
    v_and_b32 v{TB}, 3, v0
    v_mul_u32_u24 v{TB}, {OP_STRIDE}, v{TB}
    v_lshrrev_b32 v{TA}, 4, v0
    v_lshl_add_u32 v{TB}, v{TA}, 4, v{TB}
    v_add_u32 v{TB}, {L_OP}, v{TB}
    v_cmp_eq_u32 s[56:57], 1, v{TA}
    v_cmp_eq_u32 s[58:59], 2, v{TA}
    v_cmp_eq_u32 s[60:61], 3, v{TA}
    s_lshl_b32 s12, s15, 1
    s_add_u32 s12, s12, s6
    s_lshl_b32 s12, s12, 12
    s_lshl_b32 s13, s7, 10
    s_add_u32 s12, s12, s13
    s_add_u32 s12, s12, {WS_PART1}
    """)
    stamp(8)
    a("s_barrier")
    stamp(9)
    for s in range(4): a(f"ds_read_b128 v[{AF+4*s}:{AF+4*s+3}], v{TB} offset:{64*s}")
    a("s_waitcnt lgkmcnt(0)")
    gemv_wide(64, 4)
    for t in range(8):
        a(f"v_add_f32 v{DD+4*t}, v{DD+4*t}, v{DD+4*t+1}\nv_add_f32 v{DD+4*t+2}, v{DD+4*t+2}, v{DD+4*t+3}")
    for t in range(8): a(f"v_add_f32 v{DD+4*t}, v{DD+4*t}, v{DD+4*t+2}")
    for u in range(2):
        a(f"v_cndmask_b32 v{16+2*u}, v{DD+4*u}, v{DD+4*(2+u)}, s[56:57]")
        a(f"v_cndmask_b32 v{16+2*u}, v{16+2*u}, v{DD+4*(4+u)}, s[58:59]")
        a(f"v_cndmask_b32 v{16+2*u}, v{16+2*u}, v{DD+4*(6+u)}, s[60:61]")
    a(f"v_mov_b32 v17, {TAG}\nv_mov_b32 v19, {TAG}")
    a("buffer_store_dwordx4 v[16:19], v1, s[48:51], s12 offen sc1")
    stamp(10)
    a("s_cmp_lt_u32 s2, 128\ns_cbranch_scc1 L_reducer")
    a(f"s_cmp_ge_u32 s68, {NFFN}\ns_cbranch_scc1 L_hend")
    a(f"""
    v_lshrrev_b32 v{TB}, 4, v0
    v_bfe_u32 v{TC}, v0, 2, 2
    v_lshl_add_u32 v{TA}, v{TB}, 3, v{TC}
    v_lshlrev_b32 v{TA}, 7, v{TA}
    v_and_b32 v{TB}, 1, v{TB}
    v_lshrrev_b32 v{TC}, 1, v{TC}
    v_lshl_add_u32 v{TB}, v{TB}, 1, v{TC}
    v_xor_b32 v{TB}, s7, v{TB}
    v_lshl_add_u32 v{TA}, v{TB}, 5, v{TA}
    v_and_b32 v{TB}, 3, v0
    v_lshl_add_u32 v{TA}, v{TB}, 3, v{TA}
    v_add_u32 v{TB}, 0x10000, v{TA}
    """)
    tr_mid(64, 0)
    tr_mid(128, 0x4000)
    a(f"""
    s_lshl_b32 s12, s7, 11
    s_add_u32 s12, s12, {WS_X1}
    s_mul_i32 s13, s7, {ACT_STRIDE}
    s_add_u32 s13, s13, {L_ACT}
    v_lshlrev_b32 v{TA}, 1, v15
    v_add_u32 v{TA}, s13, v{TA}
    v_bfe_u32 v{TC}, v0, 2, 2
    v_mul_u32_u24 v15, {GB_STRIDE}, v{TC}
    v_mul_u32_u24 v{TC}, {ACT_STRIDE}, v{TC}
    v_lshrrev_b32 v{TB}, 4, v0
    v_lshl_add_u32 v{TC}, v{TB}, 4, v{TC}
    v_lshl_add_u32 v15, v{TB}, 4, v15
    v_add_u32 v{TC}, {L_ACT}, v{TC}
    v_add_u32 v15, {L_GB}, v15
    v_mul_u32_u24 v{TRB}, {GB_STRIDE}, v{TB}
    v_and_b32 v{TRN}, 15, v0
    v_lshl_add_u32 v{TRB}, v{TRN}, 1, v{TRB}
    s_lshl_b32 s13, s7, 5
    s_add_u32 s13, s13, {L_GB}
    v_add_u32 v{TRB}, s13, v{TRB}
    v_lshlrev_b32 v{TB}, 12, v{TB}
    v_lshl_add_u32 v{TRN}, v{TRN}, 4, v{TB}
    s_lshl_b32 s13, s68, 14
    s_lshl_b32 s14, s7, 10
    s_add_u32 s13, s13, s14
    s_add_u32 s13, s13, {WS_PART2}
    """)
    spin_begin()
    a("L_poll_x1:")
    spin_check()
    a(f"""
    buffer_load_dwordx4 v[16:19], v1, s[48:51], s12 offen sc1
    buffer_load_dwordx4 v[20:23], v1, s[48:51], s12 offen offset:1024 sc1
    s_waitcnt vmcnt(0)
    v_cmp_eq_u32 vcc, {TAG}, v17
    """)
    for k in range(1, 4): a(f"v_cmp_eq_u32 s[56:57], {TAG}, v{17+2*k}\ns_and_b64 vcc, vcc, s[56:57]")
    a("s_cmp_eq_u64 vcc, exec\ns_cbranch_scc0 L_poll_x1")
    stamp(11)
    X2, S2 = 24, 32
    for i in range(2):
        unpack(X2 + 4*i, X2 + 4*i + 2, 16 + 4*i)
        unpack(X2 + 4*i + 1, X2 + 4*i + 3, 18 + 4*i)
    ln_stats(X2, S2)
    for k in range(8): a(f"v_sub_f32 v{X2+k}, v{X2+k}, v{S2}")
    for k in range(4): a(f"v_cvt_pk_bf16_f32 v{16+k}, v{X2+2*k}, v{X2+2*k+1}")
    for k in range(4): unpack(X2 + 2*k, X2 + 2*k + 1, 16 + k)
    for k in range(8): a(f"v_mul_f32 v{X2+k}, v{X2+k}, v{S2+1}")
    for k in range(4): a(f"v_cvt_pk_bf16_f32 v{16+k}, v{X2+2*k}, v{X2+2*k+1}")
    for k in range(4): unpack(X2 + 2*k, X2 + 2*k + 1, 16 + k)
    for k in range(4): unpack(S2 + 2*k, S2 + 2*k + 1, TREG[k])
    for k in range(8): a(f"v_mul_f32 v{X2+k}, v{X2+k}, v{S2+k}")
    for k in range(4): a(f"v_cvt_pk_bf16_f32 v{16+k}, v{X2+2*k}, v{X2+2*k+1}")
    for k in range(4): unpack(X2 + 2*k, X2 + 2*k + 1, 16 + k)
    for k in range(4): unpack(S2 + 2*k, S2 + 2*k + 1, SB + k)
    for k in range(8): a(f"v_add_f32 v{X2+k}, v{X2+k}, v{S2+k}")
    for k in range(4): a(f"v_cvt_pk_bf16_f32 v{16+k}, v{X2+2*k}, v{X2+2*k+1}")
    for k in range(4): a(f"ds_write_b32 v{TA}, v{16+k} offset:{(256*(k>>1)+16*(k&1))*2}")
    a("s_waitcnt lgkmcnt(0)\ns_barrier")
    G, U = 48, 52
    for hh in range(2):
        for s in range(8): a(f"ds_read_b128 v[{16+4*s}:{19+4*s}], v{TC} offset:{(8*hh+s)*64}")
        for s in range(8):
            a(f"s_waitcnt lgkmcnt({7-s})")
            k = 8*hh + s
            a(f"v_mfma_f32_16x16x32_bf16 v[{G}:{G+3}], v[{16+4*s}:{19+4*s}], v[{64+4*k}:{67+4*k}], " + ("0" if k == 0 else f"v[{G}:{G+3}]"))
            a(f"v_mfma_f32_16x16x32_bf16 v[{U}:{U+3}], v[{16+4*s}:{19+4*s}], v[{128+4*k}:{131+4*k}], " + ("0" if k == 0 else f"v[{U}:{U+3}]"))
    bf16r2(G, U, 56)
    a(f"""
    v_mul_f32 v56, v{G}, v{G}
    v_mul_f32 v56, 0x3d372713, v56
    v_fma_f32 v56, v56, v{G}, v{G}
    v_mul_f32 v56, 0x40135761, v56
    v_exp_f32 v56, -v56
    v_add_f32 v56, 1.0, v56
    v_rcp_f32 v56, v56
    v_mul_f32 v56, v56, v{G}
    """)
    bf16r(56, 56)
    a(f"""
    v_mul_f32 v56, v56, v{U}
    v_cvt_pk_bf16_f32 v56, v56, v56
    ds_write_b16 v{TRB}, v56
    s_waitcnt lgkmcnt(0)
    s_barrier
    ds_read_b128 v[{AF}:{AF+3}], v15
    ds_read_b128 v[{AF+4}:{AF+7}], v15 offset:64
    s_waitcnt lgkmcnt(0)
    """)
    gemv_wide(192, 2)
    for u in range(4):
        r = DD + 8*u
        a(f"v_mov_b32 v{r+1}, {TAG}\nv_mov_b32 v{r+2}, v{r+4}\nv_mov_b32 v{r+3}, {TAG}")
        a(f"buffer_store_dwordx4 v[{r}:{r+3}], v{TRN}, s[48:51], s13 offen offset:{256*u} sc1")
    stamp(12)
    a("s_branch L_hend")
    a("L_reducer:")
    a("s_cmp_lg_u32 s7, 1\ns_cbranch_scc1 L_hend")
    a(f"""
    v_lshrrev_b32 v{TA}, 3, v0
    v_and_b32 v{TB}, 7, v0
    v_lshlrev_b32 v{TC}, 14, v{TA}
    v_lshlrev_b32 v{TA}, 12, v{TA}
    v_lshl_add_u32 v{TA}, v{TB}, 4, v{TA}
    v_lshl_add_u32 v{TC}, v{TB}, 4, v{TC}
    v_lshlrev_b32 v{TB}, 3, v{TB}
    s_lshl_b32 s12, s68, 18
    s_lshl_b32 s13, s69, 7
    s_add_u32 s12, s12, s13
    s_add_u32 s12, s12, {WS_PART1}
    """)
    spin_begin()
    a("L_poll_p1:")
    spin_check()
    a("s_mov_b32 s14, s12")
    for i in range(8):
        a(f"buffer_load_dwordx4 v[{16+4*i}:{19+4*i}], v{TA}, s[48:51], s14 offen sc1")
        if i < 7: a("s_add_u32 s14, s14, 0x8000")
    a("s_waitcnt vmcnt(0)")
    a(f"v_cmp_eq_u32 vcc, {TAG}, v17")
    for k in range(1, 16): a(f"v_cmp_eq_u32 s[56:57], {TAG}, v{17+2*k}\ns_and_b64 vcc, vcc, s[56:57]")
    a("s_cmp_eq_u64 vcc, exec\ns_cbranch_scc0 L_poll_p1")
    stamp(11)
    def tree(n):
        st_ = 1
        while st_ < n:
            for i in range(0, n, 2*st_):
                a(f"v_add_f32 v{16+4*i}, v{16+4*i}, v{16+4*(i+st_)}\nv_add_f32 v{18+4*i}, v{18+4*i}, v{18+4*(i+st_)}")
            st_ *= 2
        allreduce("v_add_f32", [16, 18], [17, 19], steps=("row_ror:8",))
    tree(8)
    def resid(gate):
        bf16r2(16, 18, 17)
        a(f"v_mul_f32 v16, v16, v{gate}\nv_mul_f32 v18, v18, v{gate+1}")
        bf16r2(16, 18, 17)
        a(f"v_add_f32 v16, v16, v{RX}\nv_add_f32 v18, v18, v{RX+1}\nv_cvt_pk_bf16_f32 v16, v16, v18")
    resid(RGA)
    a(f"""
    v_mov_b32 v17, {TAG}
    s_lshl_b32 s12, s68, 11
    s_lshl_b32 s13, s69, 6
    s_add_u32 s12, s12, s13
    s_add_u32 s12, s12, {WS_X1}
    s_mov_b64 exec, 0xff
    buffer_store_dwordx2 v[16:17], v{TB}, s[48:51], s12 offen sc1
    s_mov_b64 exec, -1
    """)
    stamp(12)
    unpack(RX, RX+1, 16)
    a(f"""
    s_lshl_b32 s12, s68, 12
    s_lshl_b32 s13, s69, 7
    s_add_u32 s12, s12, s13
    s_add_u32 s12, s12, {WS_PART2}
    v_mov_b32 v28, 0
    v_mov_b32 v29, {TAG}
    v_mov_b32 v30, 0
    v_mov_b32 v31, {TAG}
    """)
    srd(52, P_OUT, 4096)
    spin_begin()
    a("L_poll_p2:")
    spin_check()
    a("s_mov_b32 s14, s12")
    for i in range(4):
        if i == 3: a("s_mov_b32 exec_hi, 0")
        a(f"buffer_load_dwordx4 v[{16+4*i}:{19+4*i}], v{TC}, s[48:51], s14 offen sc1")
        if i < 3: a("s_add_u32 s14, s14, 0x20000")
    a("s_mov_b64 exec, -1\ns_waitcnt vmcnt(0)")
    a(f"v_cmp_eq_u32 vcc, {TAG}, v17")
    for k in range(1, 8): a(f"v_cmp_eq_u32 s[56:57], {TAG}, v{17+2*k}\ns_and_b64 vcc, vcc, s[56:57]")
    a("s_cmp_eq_u64 vcc, exec\ns_cbranch_scc0 L_poll_p2")
    stamp(13)
    tree(4)
    resid(RGB)
    a(f"""
    s_lshl_b32 s12, s68, 10
    s_mov_b64 exec, 0xff
    buffer_store_short v16, v{DA}, s[52:55], s12 offen
    buffer_store_short_d16_hi v16, v{DA}, s[52:55], s12 offen offset:32
    s_cmp_lg_u32 s2, 0
    s_cbranch_scc1 L_hend
    s_mov_b64 exec, 1
    v_mov_b32 v17, {TAG}
    v_mov_b32 v18, 0
    buffer_store_dword v17, v18, s[48:51], 0 offen sc1
    """)
    a("L_hend:")
    stamp(14)
    dump_stamps(15)
    a("L_end:")
    a("s_endpgm")
    a('.section .rodata,"a"')
    a(".p2align 6")
    a(f".amdhsa_kernel {NAME}_kernel")
    a("""
    .amdhsa_next_free_vgpr 256
    .amdhsa_next_free_sgpr 102
    .amdhsa_accum_offset 256
    .amdhsa_group_segment_fixed_size 0
    .amdhsa_kernarg_size 112
    .amdhsa_user_sgpr_count 2
    .amdhsa_user_sgpr_kernarg_segment_ptr 1
    .amdhsa_system_sgpr_workgroup_id_x 1
    .amdhsa_float_denorm_mode_32 3
    .end_amdhsa_kernel
    """)
    return out + a.text()

if __name__ == "__main__":
    kw = eval("dict(" + (sys.argv[2] if len(sys.argv) > 2 else "") + ")")
    open(sys.argv[1], "w").write(gen(**kw))
```

```python
import sys
from asmlib import Asm

NAME = "adaLN_cond__mha_block_cached__geglu_ffn__decode"
WS_MOD, WS_STATS, WS_PART1, WS_X1, WS_PART2, WS_DBG, WS_SIZE = 0x1000, 0x40000, 0x80000, 0x180000, 0x190000, 0x200000, 0x400000
MOD_REP, MOD_B = 49152, 12288
WS_QP = 0x280000
L_W, L_WM, L_ACT, L_HB, L_QP, L_OP, L_FAC, L_GB = 0, 0x20000, 0x24000, 0x25200, 0x25600, 0x25E00, 0x26300, 0x26400
ACT_STRIDE, OP_STRIDE, GB_STRIDE = 1088, 320, 192
LDS_BYTES = 0x26800
NFFN = 28
SPIN_MAX = 400000
P_X, P_K, P_V, P_WQ, P_WO, P_WG, P_WU, P_WD, P_C, P_WM, P_OUT, P_WS = 16, 18, 20, 22, 24, 28, 30, 32, 34, 36, 38, 42
TAG = "s45"
LOG2E, SCALE, HIMASK = "s64", "s65", "s66"

def gen(dbgout=False, D=5, A=8, E=4, P=48, diag=False, wpol="nt", thr=2, hmap=0, vpol="nt", kpol="nt", gate=True, D2=10, NE=3, thrA=4, xpol=''):
    a = Asm()
    stamps = {"n": 0}
    def stamp(k):
        if diag: a(f"s_memrealtime s[{72+2*k}:{73+2*k}]")
    def srd(reg, ptr, nbytes):
        a(f"s_mov_b32 s{reg}, s{ptr}\ns_mov_b32 s{reg+1}, s{ptr+1}\ns_mov_b32 s{reg+2}, {nbytes}\ns_mov_b32 s{reg+3}, 0x20000")
    def dump_stamps(n):
        if not diag: return
        a("s_waitcnt lgkmcnt(0)")
        a("s_mov_b64 exec, 1")
        a("s_lshl_b32 s46, s2, 3\ns_add_u32 s46, s46, s3\ns_lshl_b32 s46, s46, 6")
        a(f"s_add_u32 s46, s46, {WS_DBG}")
        a("v_mov_b32 v1, 0")
        if dbgout:
            srd(8, 40, 256)
            a("s_not_b32 s72, s72")
            ks = list(range(6)) if n == 6 else [0, 3, 5, 6, 7, 10, 11, 12, 13, 14]
            for i, k in enumerate(ks):
                w = k if n == 6 else (0 if k == 0 else 5 + i)
                a(f"v_mov_b32 v2, s{72+2*k}")
                a(f"buffer_atomic_umax v2, v1, s[8:11], 0 offen offset:{4*w}")
            return
        for k in range(n):
            a(f"v_mov_b32 v2, s{72+2*k}")
            a(f"buffer_store_dword v2, v1, s[48:51], s46 offen offset:{4*k}")
    lab = {"n": 0}
    def newlab(p):
        lab["n"] += 1; return f"L_{p}{lab['n']}"
    def allreduce(op, rs, tmps, rows_only=False, steps=("quad_perm:[1,0,3,2]", "quad_perm:[2,3,0,1]", "row_half_mirror", "row_mirror")):
        for st in steps:
            for r in rs: a(f"{op}_dpp v{r}, v{r}, v{r} {st} row_mask:0xf bank_mask:0xf")
        if rows_only: return
        for sw in ("v_permlane16_swap_b32", "v_permlane32_swap_b32"):
            for r, t in zip(rs, tmps): a(f"v_mov_b32 v{t}, v{r}")
            for r, t in zip(rs, tmps): a(f"{sw} v{r}, v{t}")
            for r, t in zip(rs, tmps): a(f"{op} v{r}, v{r}, v{t}")
    def bf16r(d, s):
        a(f"v_cvt_pk_bf16_f32 v{d}, v{s}, v{s}\nv_and_b32 v{d}, {HIMASK}, v{d}")
    def bf16r2(lo, hi, t):
        a(f"v_cvt_pk_bf16_f32 v{t}, v{lo}, v{hi}\nv_lshlrev_b32 v{lo}, 16, v{t}\nv_and_b32 v{hi}, {HIMASK}, v{t}")
    def unpack(lo, hi, s):
        a(f"v_lshlrev_b32 v{lo}, 16, v{s}\nv_and_b32 v{hi}, {HIMASK}, v{s}")
    def spin_begin():
        a("s_mov_b32 s70, 0")
    def spin_check():
        a(f"s_add_u32 s70, s70, 1\ns_cmp_gt_u32 s70, {SPIN_MAX}\ns_cbranch_scc1 L_end")

    hdr = open("cdna_kernels/" + NAME + ".s.ref").read().split("; Override launch")[0]
    out = hdr + f"; @launch grid=(256,1,1) block=(512,1,1) lds={LDS_BYTES}\n"
    a('.amdgcn_target "amdgcn-amd-amdhsa--gfx950"')
    a(".text")
    a(f".globl {NAME}_kernel")
    a(".p2align 8")
    a(f".type {NAME}_kernel,@function")
    a(f"{NAME}_kernel:")
    a("""
    s_cmp_ge_u32 s2, 256
    s_cbranch_scc1 L_end
    s_load_dwordx16 s[16:31], s[0:1], 0
    s_load_dwordx8 s[32:39], s[0:1], 64
    s_load_dwordx4 s[40:43], s[0:1], 96
    """)
    if diag:
        for k in range(1, 15): a(f"s_mov_b32 s{72+2*k}, 0")
    stamp(0)
    a(f"""
    v_lshrrev_b32 v1, 6, v0
    v_and_b32 v0, 63, v0
    v_readfirstlane_b32 s3, v1
    v_lshlrev_b32 v1, 4, v0
    s_lshr_b32 s12, s2, 3
    s_and_b32 s4, s12, 3
    s_and_b32 s13, s2, 7
    s_lshl_b32 {"s13, s13, 2" if hmap else "s4, s4, 3"}
    s_add_u32 s4, s4, s13
    s_bfe_u32 s5, s12, 0x20002
    s_lshr_b32 s6, s12, 4
    s_mov_b32 s64, 0x3fb8aa3b
    s_mov_b32 s65, 0x3db504f3
    s_mov_b32 s66, 0xffff0000
    s_lshl_b32 s15, s5, 5
    s_add_u32 s15, s15, s4
    s_waitcnt lgkmcnt(0)
    """)
    srd(48, P_WS, WS_SIZE)
    a("s_cmp_ge_u32 s3, 4\ns_cbranch_scc1 L_helper")

    Q, MK, BB, ACC, PT, XX, YY, T0, T1, SC, RING = 2, 6, 10, 14, 18, 34, 42, 46, 47, 48, 64
    srd(8, P_K, 0x10000000)
    a("""
    s_lshl_b32 s13, s15, 21
    s_lshl_b32 s14, s6, 20
    s_add_u32 s13, s13, s14
    s_lshl_b32 s14, s3, 12
    s_add_u32 s13, s13, s14
    s_mov_b32 s12, s13
    """)
    st = {"issued": 0, "landed": 0}
    def slot(n): return RING + 4 * (n if n < P else n % 16)
    def issue(n):
        r = slot(n)
        a(f"buffer_load_dwordx4 v[{r}:{r+3}], v1, s[8:11], s12 offen offset:{(n&3)*1024} {kpol if n < 256 else vpol}")
        if n & 3 == 3: a("s_add_u32 s12, s12, 0x4000")
        st["issued"] = n + 1
    def throttle():
        a(f"s_waitcnt vmcnt({D-1})")
        st["landed"] = max(st["landed"], st["issued"] - (D - 1))
    def ensure(n):
        if n >= st["landed"]:
            k = st["issued"] - 1 - n
            a(f"s_waitcnt vmcnt({k})"); st["landed"] = n + 1
    for n in range(P):
        if n >= D: throttle()
        issue(n)
        if n == D - 1:
            a(f"""
            s_mov_b32 s60, 0xaaaaaaaa
            s_mov_b32 s61, 0xaaaaaaaa
            s_mov_b32 s62, 0xcccccccc
            s_mov_b32 s63, 0xcccccccc
            v_and_b32 v{T0}, 15, v0
            v_and_b32 v{T1}, 1, v0
            v_lshlrev_b32 v{T1}, 4, v{T1}
            v_mov_b32 v{PT}, 0xffff
            v_lshlrev_b32 v{T1}, v{T1}, v{PT}
            v_lshrrev_b32 v{T0}, 1, v{T0}
            """)
            for t in range(4):
                a(f"v_cmp_eq_u32 vcc, {t}, v{T0}\nv_cndmask_b32 v{MK+t}, 0, v{T1}, vcc")
            for t in range(4): a(f"v_mov_b32 v{ACC+t}, 0")
            a("s_waitcnt lgkmcnt(0)\ns_barrier\ns_load_dword s44, s[42:43], 0")
    stamp(1)
    a("s_barrier")
    stamp(2)
    a(f"v_and_b32 v{T0}, 15, v0\nv_lshlrev_b32 v{T0}, 5, v{T0}\nv_add_u32 v{T0}, {L_QP}, v{T0}")
    QT = 50
    qregs = [18, 26, 48, 56]
    for hw in range(4):
        a(f"ds_read_b128 v[{qregs[hw]}:{qregs[hw]+3}], v{T0} offset:{hw*512}")
        a(f"ds_read_b128 v[{qregs[hw]+4}:{qregs[hw]+7}], v{T0} offset:{hw*512+16}")
    a("s_waitcnt lgkmcnt(0)\ns_mul_i32 s45, s44, 1664525\ns_add_u32 s45, s45, 1013904223")
    for i in range(8):
        a(f"v_add_f32 v{18+i}, v{18+i}, v{26+i}\nv_add_f32 v{48+i}, v{48+i}, v{56+i}")
    for i in range(8): a(f"v_add_f32 v{18+i}, v{18+i}, v{48+i}")
    for i in range(4): a(f"v_cvt_pk_bf16_f32 v{Q+i}, v{18+2*i}, v{19+2*i}")

    def kdots(n):
        r = slot(n); p = PT + n % 16
        a(f"v_dot2_f32_bf16 v{p}, v{r}, v{Q}, 0")
        for i in range(1, 4): a(f"v_dot2_f32_bf16 v{p}, v{r+i}, v{Q+i}, v{p}")
    def kreduce(dst):
        for j in range(8): a(f"v_add_f32_dpp v{XX+j}, v{PT+j}, v{PT+j} row_ror:8 row_mask:0xf bank_mask:0x3")
        for j in range(8): a(f"v_add_f32_dpp v{XX+j}, v{PT+8+j}, v{PT+8+j} row_ror:8 row_mask:0xf bank_mask:0xc")
        for j in range(4): a(f"v_add_f32_dpp v{YY+j}, v{XX+j}, v{XX+j} row_half_mirror row_mask:0xf bank_mask:0x5")
        for j in range(4): a(f"v_add_f32_dpp v{YY+j}, v{XX+4+j}, v{XX+4+j} row_half_mirror row_mask:0xf bank_mask:0xa")
        for j in range(2):
            a(f"v_cndmask_b32 v{XX+2*j}, v{YY+j+2}, v{YY+j}, s[62:63]")
            a(f"v_cndmask_b32 v{XX+2*j+1}, v{YY+j}, v{YY+j+2}, s[62:63]")
        for j in range(2):
            a(f"v_add_f32_dpp v{XX+4+j}, v{XX+2*j}, v{XX+2*j+1} quad_perm:[2,3,0,1] row_mask:0xf bank_mask:0xf")
        a(f"v_cndmask_b32 v{XX}, v{XX+5}, v{XX+4}, s[60:61]")
        a(f"v_cndmask_b32 v{XX+1}, v{XX+4}, v{XX+5}, s[60:61]")
        a(f"v_add_f32_dpp v{XX+2}, v{XX}, v{XX+1} quad_perm:[1,0,3,2] row_mask:0xf bank_mask:0xf")
        bf16r(XX+2, XX+2)
        a(f"v_mul_f32 v{XX+2}, {SCALE}, v{XX+2}")
        bf16r(dst, XX+2)
    NPEEL = P // 16 + 1
    KL = 16 - NPEEL
    cons = {"n": 0}
    def consume_k_upto(m):
        while cons["n"] < m:
            n = cons["n"]; ensure(n); kdots(n); cons["n"] += 1
            if n % 16 == 15: kreduce(SC + n // 16 + KL)
    tgt = NPEEL * 16
    nsteps = tgt + A - P
    for s in range(nsteps):
        n = P + s
        prev = n - P if n < P + 16 else n - 16
        rate = (P + 15) // 16
        want = max(prev + 1, min(1 + rate * s, P + 1) if s <= 16 else min(P + 1 + 2 * (s - 16), tgt))
        consume_k_upto(min(want, tgt))
        throttle(); issue(n)
    consume_k_upto(tgt)
    a(f"s_mov_b32 s14, 0")
    a("L_kloop:")
    for j in range(16):
        n = tgt + j
        a(f"s_waitcnt vmcnt({D-1})")
        if j == 16 - A:
            a(f"s_cmp_eq_u32 s14, {KL-1}\ns_cselect_b32 s8, s{P_V}, s8\ns_cselect_b32 s9, s{P_V+1}, s9\ns_cselect_b32 s12, s13, s12")
        issue(n + A)
        kdots(n)
        if j == 7:
            for i in range(15): a(f"v_mov_b32 v{SC+i}, v{SC+i+1}")
    kreduce(SC + 15)
    a(f"s_add_u32 s14, s14, 1\ns_cmp_lt_u32 s14, {KL}\ns_cbranch_scc1 L_kloop")
    stamp(3)
    ex = {"n": 256 + A}
    def extra():
        if ex["n"] < 256 + A + E:
            a(f"s_waitcnt vmcnt({D-1})"); issue(ex["n"]); ex["n"] += 1
    extra()
    M, Ls = PT, PT + 1
    a(f"v_max3_f32 v{M}, v{SC}, v{SC+1}, v{SC+2}")
    for i in range(3, 15, 2): a(f"v_max3_f32 v{M}, v{M}, v{SC+i}, v{SC+i+1}")
    a(f"v_max_f32 v{M}, v{M}, v{SC+15}")
    allreduce("v_max_f32", [M], [T0])
    a(f"v_mul_f32 v{T1}, {LOG2E}, v{M}")
    extra()
    for i in range(16): a(f"v_fma_f32 v{SC+i}, v{SC+i}, {LOG2E}, -v{T1}")
    for i in range(16): a(f"v_exp_f32 v{SC+i}, v{SC+i}")
    extra()
    a(f"v_add_f32 v{Ls}, v{SC}, v{SC+1}\nv_add_f32 v{Ls+1}, v{SC+2}, v{SC+3}")
    for i in range(4, 16, 2): a(f"v_add_f32 v{Ls}, v{Ls}, v{SC+i}\nv_add_f32 v{Ls+1}, v{Ls+1}, v{SC+i+1}")
    a(f"v_add_f32 v{Ls}, v{Ls}, v{Ls+1}")
    for i in range(16): a(f"v_cvt_pk_bf16_f32 v{SC+i}, v{SC+i}, v{SC+i}")
    extra()
    allreduce("v_add_f32", [Ls], [T0])
    a(f"""
    v_mov_b32 v{XX}, v{M}
    v_mov_b32 v{XX+1}, {TAG}
    v_mov_b32 v{XX+2}, v{Ls}
    v_mov_b32 v{XX+3}, {TAG}
    s_lshl_b32 s46, s15, 7
    s_lshl_b32 s47, s6, 6
    s_add_u32 s46, s46, s47
    s_lshl_b32 s47, s3, 4
    s_add_u32 s46, s46, s47
    s_add_u32 s46, s46, {WS_STATS}
    s_mov_b64 exec, 1
    buffer_store_dwordx4 v[{XX}:{XX+3}], v1, s[48:51], s46 offen sc1
    s_mov_b64 exec, -1
    s_lshl_b32 s47, s3, 3
    s_add_u32 s47, s47, {L_FAC}
    v_mov_b32 v{PT+4}, s47
    s_lshl_b32 s47, s3, 2
    s_add_u32 s47, s47, {L_FAC+32}
    v_mov_b32 v{PT+5}, s47
    v_mov_b32 v{PT+6}, 1
    ds_write_b32 v{PT+5}, v{PT+6}
    """)
    while ex["n"] < 256 + A + E: extra()
    AV = A + E
    assert AV <= 15
    a("s_mov_b32 s14, 0")
    for lp, (dd, end) in enumerate([(D, 16 - NE), (D2, 16)]):
        if lp == 1 and NE == 0: break
        assert dd <= AV
        a(f"L_vloop{lp}:")
        a(f"ds_read_b64 v[{T0}:{T1}], v{PT+4}")
        for j in range(16):
            n = 256 + j
            for t in range(4): a(f"v_and_b32_dpp v{BB+t}, v{SC}, v{MK+t} row_newbcast:{j} row_mask:0xf bank_mask:0xf")
            a(f"s_waitcnt vmcnt({dd-1})")
            if j == 16 - AV and end == 16:
                a("s_cmp_eq_u32 s14, 15\ns_cselect_b32 s10, 0, s10")
            issue(n + AV)
            r = slot(n)
            a(f"v_mfma_f32_16x16x32_bf16 v[{ACC}:{ACC+3}], v[{r}:{r+3}], v[{BB}:{BB+3}], v[{ACC}:{ACC+3}]")
        for i in range(15): a(f"v_mov_b32 v{SC+i}, v{SC+i+1}")
        a(f"s_add_u32 s14, s14, 1\ns_cmp_lt_u32 s14, {end}\ns_cbranch_scc1 L_vloop{lp}")
    stamp(4)
    spin_begin()
    a("L_facspin:")
    a(f"s_waitcnt lgkmcnt(0)\nv_readfirstlane_b32 s46, v{T1}\ns_cmp_eq_u32 s46, 1\ns_cbranch_scc1 L_facok")
    spin_check()
    a(f"ds_read_b64 v[{T0}:{T1}], v{PT+4}\ns_branch L_facspin")
    a("L_facok:")
    a(f"""
    v_lshrrev_b32 v{PT}, 4, v0
    v_lshlrev_b32 v{PT}, 6, v{PT}
    v_and_b32 v{PT+1}, 15, v0
    v_lshl_add_u32 v{PT}, v{PT+1}, 1, v{PT}
    s_mul_i32 s46, s3, {OP_STRIDE}
    s_add_u32 s46, s46, {L_OP}
    v_add_u32 v{PT}, s46, v{PT}
    """)
    for t in range(4): a(f"v_mul_f32 v{ACC+t}, v{ACC+t}, v{T0}")
    a(f"v_cvt_pk_bf16_f32 v{ACC}, v{ACC}, v{ACC+1}\nv_cvt_pk_bf16_f32 v{ACC+2}, v{ACC+2}, v{ACC+3}")
    a(f"""
    s_mov_b32 exec_lo, 0x00ff00ff
    s_mov_b32 exec_hi, 0x00ff00ff
    ds_write_b16 v{PT}, v{ACC}
    ds_write_b16_d16_hi v{PT}, v{ACC} offset:16
    ds_write_b16 v{PT}, v{ACC+2} offset:32
    ds_write_b16_d16_hi v{PT}, v{ACC+2} offset:48
    s_waitcnt lgkmcnt(0)
    s_barrier
    """)
    stamp(5)
    dump_stamps(6)
    a("s_endpgm")

    a("L_helper:")
    a("s_sub_u32 s7, s3, 4")
    TRB, TRN, DA, DB, DN, TA, TB, TC = 2, 3, 4, 5, 6, 7, 8, 9
    a(f"""
    v_lshrrev_b32 v{TA}, 4, v0
    v_bfe_u32 v{TB}, v0, 2, 2
    v_and_b32 v{TC}, 3, v0
    v_lshl_add_u32 v{TRN}, v{TA}, 3, v{TB}
    v_lshlrev_b32 v{TRB}, 8, v{TRN}
    v_lshlrev_b32 v{TRN}, 5, v{TRN}
    v_lshl_add_u32 v{TRB}, v{TC}, 3, v{TRB}
    v_lshl_add_u32 v{TRN}, v{TC}, 3, v{TRN}
    v_and_b32 v{TC}, 1, v{TA}
    v_lshl_add_u32 v{TB}, v{TC}, 2, v{TB}
    v_lshl_add_u32 v{TRB}, v{TB}, 5, v{TRB}
    s_lshl_b32 s12, s7, 15
    v_add_u32 v{TRB}, s12, v{TRB}
    v_and_b32 v{TB}, 15, v0
    v_lshlrev_b32 v{TC}, 1, v{TA}
    v_xor_b32 v{TB}, v{TB}, v{TC}
    v_lshlrev_b32 v{DN}, 4, v{TB}
    """)
    def dma_wide(nins, rs_log2, soff, infl):
        a(f"v_lshrrev_b32 v{TA}, 4, v0\nv_lshl_add_u32 v{DA}, v{TA}, {rs_log2}, v{DN}\nv_xor_b32 v{DB}, 0x80, v{DA}")
        a("s_lshl_b32 s14, s7, 15")
        for i in range(nins):
            a("s_mov_b32 m0, s14" if i == 0 else "s_add_u32 m0, m0, 0x400")
            if i: a(f"s_add_u32 {soff}, {soff}, {4 << rs_log2}")
            a(f"buffer_load_dwordx4 v{DB if (i >> 1) & 1 else DA}, s[8:11], {soff} offen {wpol} lds")
            if i >= infl - 1: a(f"s_waitcnt vmcnt({infl-1})")
    def dma_mid(soff, ldsbase, infl, rs=3584):
        a(f"""
        v_lshrrev_b32 v{DA}, 3, v0
        v_mul_u32_u24 v{DA}, {rs}, v{DA}
        v_bfe_u32 v{DB}, v0, 4, 1
        v_lshlrev_b32 v{DB}, 1, v{DB}
        v_and_b32 v{TA}, 7, v0
        v_xor_b32 v{DB}, v{DB}, v{TA}
        v_lshl_add_u32 v{DA}, v{DB}, 4, v{DA}
        v_xor_b32 v{DB}, 64, v{DA}
        """)
        for i in range(16):
            a(f"s_mov_b32 m0, {ldsbase}" if i == 0 else "s_add_u32 m0, m0, 0x400")
            if i: a(f"s_add_u32 {soff}, {soff}, {8*rs}")
            a(f"buffer_load_dwordx4 v{DB if i & 1 else DA}, s[8:11], {soff} offen {wpol} lds")
            if i >= infl - 1: a(f"s_waitcnt vmcnt({infl-1})")
    def tr_mid(dst, off):
        for s in range(16):
            r = dst + 4 * s
            ar = TA if s < 8 else TB
            o = off + ((s >> 2) & 1) * 0x8000 + (s & 3) * 4096
            a(f"ds_read_b64_tr_b16 v[{r}:{r+1}], v{ar} offset:{o}")
            a(f"ds_read_b64_tr_b16 v[{r+2}:{r+3}], v{ar} offset:{o+512}")
            if s & 3 == 3: a("s_waitcnt lgkmcnt(0)")
    def dma_narrow(rs, soff, ldsbase, infl):
        a(f"v_lshrrev_b32 v{DA}, 1, v0\nv_mul_u32_u24 v{DA}, {rs}, v{DA}\nv_and_b32 v{DB}, 1, v0\nv_lshl_add_u32 v{DA}, v{DB}, 4, v{DA}")
        for i in range(16):
            a(f"s_mov_b32 m0, {ldsbase}" if i == 0 else "s_add_u32 m0, m0, 0x400")
            if i: a(f"s_add_u32 {soff}, {soff}, {32*rs}")
            a(f"buffer_load_dwordx4 v{DA}, s[8:11], {soff} offen {wpol} lds")
            if i >= infl - 1: a(f"s_waitcnt vmcnt({infl-1})")
    def mid_base(dst):
        a(f"""
        v_lshrrev_b32 v{TB}, 4, v0
        v_bfe_u32 v{TC}, v0, 2, 2
        v_lshl_add_u32 v{dst}, v{TB}, 3, v{TC}
        v_lshlrev_b32 v{dst}, 7, v{dst}
        v_and_b32 v{TB}, 1, v{TB}
        v_lshrrev_b32 v{TC}, 1, v{TC}
        v_lshl_add_u32 v{TB}, v{TB}, 1, v{TC}
        v_lshl_add_u32 v{dst}, v{TB}, 5, v{dst}
        v_and_b32 v{TB}, 3, v0
        v_lshl_add_u32 v{dst}, v{TB}, 3, v{dst}
        """)
    def tr_wide(dst, nk):
        for t in range(8):
            ar = TA if t & 1 else TB
            a(f"v_xor_b32 v{ar}, {t << 5}, v{TRB}")
            for s in range(nk):
                r = dst + (t * nk + s) * 4
                a(f"ds_read_b64_tr_b16 v[{r}:{r+1}], v{ar} offset:{s*8192}")
                a(f"ds_read_b64_tr_b16 v[{r+2}:{r+3}], v{ar} offset:{s*8192+1024}")
            if t & 1: a("s_waitcnt lgkmcnt(0)")
    def tr_narrow(dst, areg, off):
        for s in range(16):
            r = dst + 4 * s
            a(f"ds_read_b64_tr_b16 v[{r}:{r+1}], v{areg} offset:{off+s*1024}")
            a(f"ds_read_b64_tr_b16 v[{r+2}:{r+3}], v{areg} offset:{off+s*1024+128}")
            if s & 3 == 3: a("s_waitcnt lgkmcnt(0)")
    def act_frags(dst):
        for s in range(16):
            a(f"ds_read_b128 v[{dst+4*s}:{dst+4*s+3}], v{TC} offset:{s*64}")
            if s == 7: a("s_waitcnt lgkmcnt(4)")
    XS, XP = 12, 10
    W0 = 32
    def phaseA(infl, st_):
        CC = 16
        srd(8, P_C, 4096)
        for i in range(4): a(f"buffer_load_dwordx4 v[{CC+4*i}:{CC+4*i+3}], v1, s[8:11], 0 offen offset:{1024*i} {xpol}")
        srd(8, P_WM, 512 * 6144)
        a("""
        s_lshr_b32 s12, s2, 5
        s_lshl_b32 s12, s12, 3
        s_and_b32 s13, s2, 7
        s_add_u32 s12, s12, s13
        s_lshl_b32 s12, s12, 6
        s_bfe_u32 s13, s2, 0x20003
        s_lshl_b32 s13, s13, 4
        s_add_u32 s47, s12, s13
        s_lshl_b32 s13, s47, 1
        """)
        dma_narrow(6144, "s13", L_WM, infl)
        if st_: a("s_waitcnt lgkmcnt(0)\ns_barrier\ns_load_dword s44, s[42:43], 0")
        a("s_waitcnt vmcnt(16)")
        if st_: stamp(1)
        for i in range(4):
            for k in range(4): unpack(W0 + 2*k, W0 + 2*k + 1, CC + 4*i + k)
            for k in range(8): a(f"v_mul_f32 v{W0+8+k}, {LOG2E}, v{W0+k}")
            for k in range(8): a(f"v_exp_f32 v{W0+8+k}, -v{W0+8+k}")
            for k in range(8): a(f"v_add_f32 v{W0+8+k}, 1.0, v{W0+8+k}")
            for k in range(8): a(f"v_rcp_f32 v{W0+8+k}, v{W0+8+k}")
            for k in range(8): a(f"v_mul_f32 v{W0+k}, v{W0+k}, v{W0+8+k}")
            for k in range(4): a(f"v_cvt_pk_bf16_f32 v{CC+4*i+k}, v{W0+2*k}, v{W0+2*k+1}")
        a(f"v_add_u32 v{TA}, {L_ACT}, v1")
        for i in range(4): a(f"ds_write_b128 v{TA}, v[{CC+4*i}:{CC+4*i+3}] offset:{i*ACT_STRIDE}")
        a(f"""
        v_and_b32 v{TC}, 3, v0
        v_mul_u32_u24 v{TC}, {ACT_STRIDE}, v{TC}
        v_lshrrev_b32 v{TA}, 4, v0
        v_lshl_add_u32 v{TC}, v{TA}, 4, v{TC}
        v_add_u32 v{TC}, {L_ACT}, v{TC}
        v_add_u32 v{TB}, {L_WM}, v{TRN}
        s_waitcnt lgkmcnt(0)
        """)
        act_frags(64)
        a("s_waitcnt vmcnt(0)")
        if st_: stamp(2)
        tr_narrow(128, TB, 0)
        for s in range(16):
            a(f"v_mfma_f32_16x16x32_bf16 v[{W0}:{W0+3}], v[{128+4*s}:{131+4*s}], v[{64+4*s}:{67+4*s}], " + ("0" if s == 0 else f"v[{W0}:{W0+3}]"))
        a("s_mul_i32 s45, s44, 1664525\ns_add_u32 s45, s45, 1013904223")
        a(f"""
        v_bfe_u32 v{TB}, v0, 2, 2
        v_mul_u32_u24 v{TB}, {MOD_REP}, v{TB}
        v_and_b32 v{TC}, 3, v0
        v_mul_u32_u24 v{TC}, {MOD_B}, v{TC}
        v_lshrrev_b32 v{TA}, 4, v0
        v_lshlrev_b32 v{TA}, 4, v{TA}
        v_add3_u32 v{TA}, v{TA}, v{TB}, v{TC}
        s_lshl_b32 s47, s47, 2
        s_add_u32 s47, s47, {WS_MOD}
        v_cvt_pk_bf16_f32 v{W0+4}, v{W0}, v{W0+1}
        v_mov_b32 v{W0+5}, {TAG}
        v_cvt_pk_bf16_f32 v{W0+6}, v{W0+2}, v{W0+3}
        v_mov_b32 v{W0+7}, {TAG}
        buffer_store_dwordx4 v[{W0+4}:{W0+7}], v{TA}, s[48:51], s47 offen sc1
        """)
        if st_: stamp(3)
    def xloads():
        a(f"""
        s_lshl_b32 s12, s7, 10
        buffer_load_dwordx4 v[{XS}:{XS+3}], v1, s[52:55], s12 offen {xpol}
        v_and_b32 v{TA}, 31, v0
        v_lshlrev_b32 v{TA}, 3, v{TA}
        v_lshrrev_b32 v{TB}, 5, v0
        v_lshl_add_u32 v{XP+1}, v{TB}, 2, v{TA}
        s_lshr_b32 s13, s2, 6
        s_lshl_b32 s13, s13, 8
        s_add_u32 s12, s12, s13
        buffer_load_dword v{XP}, v{XP+1}, s[52:55], s12 offen {xpol}
        """)
    srd(52, P_X, 4096)
    a(f"""
    v_mov_b32 v16, 0
    v_mov_b32 v17, 0
    s_lshl_b32 s12, s7, 3
    s_add_u32 s12, s12, {L_FAC}
    v_mov_b32 v18, s12
    ds_write_b64 v18, v[16:17]
    ds_write_b64 v18, v[16:17] offset:32
    """)
    xloads()
    a("""
    s_cmp_eq_u32 s7, 1
    s_cbranch_scc1 L_wqdma
    s_cmp_lg_u32 s7, 0
    s_cbranch_scc1 L_bar0
    s_cmp_ge_u32 s2, 64
    s_cbranch_scc1 L_bar0
    """)
    phaseA(64, True)
    a("s_branch L_noA1")
    a("L_wqdma:")
    srd(8, P_WQ, 512 * 8192)
    a("s_lshr_b32 s13, s2, 6\ns_lshl_b32 s13, s13, 20\ns_and_b32 s12, s2, 63\ns_lshl_b32 s12, s12, 7\ns_add_u32 s13, s13, s12")
    dma_mid("s13", L_W, 64, rs=8192)
    a("s_waitcnt lgkmcnt(0)\ns_barrier\ns_load_dword s44, s[42:43], 0")
    a(f"""
    v_mov_b32 v16, 1
    v_mov_b32 v17, {L_FAC+48}
    s_waitcnt vmcnt(0)
    ds_write_b32 v17, v16
    s_branch L_noA1
    """)
    a("L_bar0:")
    a("s_waitcnt lgkmcnt(0)\ns_barrier\ns_load_dword s44, s[42:43], 0\ns_waitcnt vmcnt(0)")
    a("L_noA1:")
    a("s_waitcnt lgkmcnt(0)\ns_mul_i32 s45, s44, 1664525\ns_add_u32 s45, s45, 1013904223")
    def ln_stats(x0, t0):
        a(f"v_readfirstlane_b32 s46, v{x0}")
        for k in range(8): a(f"v_subrev_f32 v{t0+2+k}, s46, v{x0+k}")
        a(f"v_add_f32 v{t0}, v{t0+2}, v{t0+3}\nv_mul_f32 v{t0+1}, v{t0+2}, v{t0+2}")
        a(f"v_fmac_f32 v{t0+1}, v{t0+3}, v{t0+3}")
        for k in range(2, 8): a(f"v_add_f32 v{t0}, v{t0}, v{t0+2+k}\nv_fmac_f32 v{t0+1}, v{t0+2+k}, v{t0+2+k}")
        allreduce("v_add_f32", [t0, t0+1], [t0+2, t0+3])
        a(f"""
        v_mul_f32 v{t0}, 0x3b000000, v{t0}
        v_mul_f32 v{t0+1}, 0x3b000000, v{t0+1}
        v_fma_f32 v{t0+1}, -v{t0}, v{t0}, v{t0+1}
        v_add_f32 v{t0}, s46, v{t0}
        v_max_f32 v{t0+1}, 0, v{t0+1}
        """)
        bf16r2(t0, t0+1, t0+2)
        a(f"v_add_f32 v{t0+1}, 0x3727c5ac, v{t0+1}")
        bf16r(t0+1, t0+1)
        a(f"v_sqrt_f32 v{t0+1}, v{t0+1}")
        bf16r(t0+1, t0+1)
        a(f"v_rcp_f32 v{t0+1}, v{t0+1}")
    X8, ST = 16, 24
    for k in range(4): unpack(X8 + 2*k, X8 + 2*k + 1, XS + k)
    ln_stats(X8, ST)
    NA, NB = 12, 13
    unpack(NA, NB, XP)
    a(f"v_sub_f32 v{NA}, v{NA}, v{ST}\nv_sub_f32 v{NB}, v{NB}, v{ST}")
    bf16r2(NA, NB, 14)
    a(f"v_mul_f32 v{NA}, v{NA}, v{ST+1}\nv_mul_f32 v{NB}, v{NB}, v{ST+1}")
    bf16r2(NA, NB, 14)
    spin_begin()
    a(f"v_mov_b32 v17, {L_FAC+48}")
    a("L_poll_wq:")
    spin_check()
    a("""
    ds_read_b32 v16, v17
    s_waitcnt lgkmcnt(0)
    v_readfirstlane_b32 s13, v16
    s_cmp_eq_u32 s13, 1
    s_cbranch_scc0 L_poll_wq
    """)
    stamp(4)
    mid_base(TA)
    for t in range(4):
        a(f"v_xor_b32 v{TB}, {t << 5}, v{TA}")
        for sx in range(4):
            r = 64 + (t * 4 + sx) * 4
            a(f"ds_read_b64_tr_b16 v[{r}:{r+1}], v{TB} offset:{sx*4096}")
            a(f"ds_read_b64_tr_b16 v[{r+2}:{r+3}], v{TB} offset:{sx*4096+512}")
        a("s_waitcnt lgkmcnt(0)")
    a(f"""
    v_and_b32 v{TA}, 31, v0
    v_lshlrev_b32 v{TA}, 4, v{TA}
    v_lshrrev_b32 v{TB}, 5, v0
    v_lshl_add_u32 v{TA}, v{TB}, 11, v{TA}
    s_and_b32 s12, s2, 3
    s_mul_i32 s12, s12, {MOD_REP}
    s_add_u32 s67, s12, {WS_MOD}
    s_mul_i32 s13, s7, {MOD_B}
    s_add_u32 s12, s67, s13
    s_lshr_b32 s13, s2, 6
    s_lshl_b32 s13, s13, 9
    s_add_u32 s12, s12, s13
    """)
    def poll1(lbl, voff, soff):
        spin_begin()
        a(f"{lbl}:")
        spin_check()
        a(f"""
        buffer_load_dwordx4 v[16:19], v{voff}, s[48:51], {soff} offen sc1
        s_waitcnt vmcnt(0)
        v_cmp_eq_u32 vcc, {TAG}, v17
        v_cmp_eq_u32 s[56:57], {TAG}, v19
        s_and_b64 vcc, vcc, s[56:57]
        s_cmp_eq_u64 vcc, exec
        s_cbranch_scc0 {lbl}
        """)
    poll1("L_poll_mod", TA, "s12")
    stamp(5)
    a("v_permlane32_swap_b32 v16, v18")
    unpack(20, 21, 18)
    unpack(22, 23, 16)
    a("v_add_f32 v20, 1.0, v20\nv_add_f32 v21, 1.0, v21")
    bf16r2(20, 21, 14)
    a(f"v_mul_f32 v20, v20, v{NA}\nv_mul_f32 v21, v21, v{NB}")
    bf16r2(20, 21, 14)
    a("v_add_f32 v20, v20, v22\nv_add_f32 v21, v21, v23\nv_cvt_pk_bf16_f32 v20, v20, v21")
    a(f"""
    s_lshl_b32 s12, s7, 8
    s_add_u32 s12, s12, {L_HB}
    v_add_u32 v{TA}, s12, v{XP+1}
    ds_write_b32 v{TA}, v20
    v_lshrrev_b32 v{TC}, 4, v0
    v_lshlrev_b32 v{TB}, 4, v{TC}
    v_add_u32 v{TB}, s12, v{TB}
    s_waitcnt lgkmcnt(0)
    """)
    AF, DD = 16, 32
    for s in range(4): a(f"ds_read_b128 v[{AF+4*s}:{AF+4*s+3}], v{TB} offset:{64*s}")
    a(f"""
    v_cmp_eq_u32 vcc, 1, v{TC}
    s_lshl_b32 s12, s7, 17
    s_bfe_u32 s13, s2, 0x50001
    s_lshl_b32 s13, s13, 12
    s_add_u32 s12, s12, s13
    s_lshr_b32 s13, s2, 6
    s_lshl_b32 s13, s13, 10
    s_add_u32 s12, s12, s13
    s_and_b32 s13, s2, 1
    s_lshl_b32 s13, s13, 9
    s_add_u32 s12, s12, s13
    s_add_u32 s12, s12, {WS_QP}
    s_waitcnt lgkmcnt(0)
    """)
    def gemv_wide(bbase, nk, nt=8):
        for t in range(nt):
            for s in range(nk):
                r = bbase + (t * nk + s) * 4
                a(f"v_mfma_f32_16x16x32_bf16 v[{DD+4*t}:{DD+4*t+3}], v[{AF+4*s}:{AF+4*s+3}], v[{r}:{r+3}], " + ("0" if s == 0 else f"v[{DD+4*t}:{DD+4*t+3}]"))
    gemv_wide(64, 4, 4)
    a(f"""
    v_mov_b32 v49, {TAG}
    v_mov_b32 v51, {TAG}
    s_lshl_b32 s13, s15, 12
    s_lshl_b32 s14, s7, 10
    s_add_u32 s13, s13, s14
    s_add_u32 s13, s13, {WS_QP}
    v_cndmask_b32 v48, v{DD}, v{DD+8}, vcc
    v_cndmask_b32 v50, v{DD+4}, v{DD+12}, vcc
    s_mov_b32 exec_hi, 0
    buffer_store_dwordx4 v[48:51], v1, s[48:51], s12 offen sc1
    s_mov_b64 exec, -1
    v_lshrrev_b32 v{TA}, 4, v0
    v_lshlrev_b32 v{TA}, 7, v{TA}
    v_and_b32 v{TB}, 15, v0
    v_lshl_add_u32 v{TA}, v{TB}, 2, v{TA}
    s_lshl_b32 s12, s7, 9
    s_add_u32 s12, s12, {L_QP}
    v_add_u32 v{TA}, s12, v{TA}
    """)
    stamp(13)
    poll1("L_poll_q", 1, "s13")
    a(f"""
    ds_write_b32 v{TA}, v16
    ds_write_b32 v{TA}, v18 offset:64
    s_waitcnt lgkmcnt(0)
    s_barrier
    """)
    stamp(6)
    a("s_cmp_lg_u32 s7, 0\ns_cbranch_scc1 L_noA2\ns_sub_u32 s12, s2, 64\ns_cmp_ge_u32 s12, 128\ns_cbranch_scc1 L_noA2")
    phaseA(thrA, False)
    a("L_noA2:")
    srd(8, P_WO, 4096 * 1024)
    a("s_lshl_b32 s13, s4, 17\ns_lshl_b32 s12, s7, 8\ns_add_u32 s13, s13, s12")
    dma_wide(32, 10, "s13", thr)
    a("s_waitcnt vmcnt(0)")
    tr_wide(64, 4)
    SB, CB = 10, 14
    TT = 60
    a(f"s_sub_u32 s68, s2, 128\ns_cmp_ge_u32 s68, {NFFN}\ns_cbranch_scc1 L_noffn1")
    srd(8, P_WD, 1792 * 1024)
    a("s_lshl_b32 s13, s68, 16\ns_lshl_b32 s12, s7, 8\ns_add_u32 s13, s13, s12")
    dma_wide(16, 10, "s13", thr)
    a("s_waitcnt vmcnt(0)")
    tr_wide(192, 2)
    srd(8, P_WG, 512 * 3584)
    a(f"s_lshl_b32 s13, s68, 7\ns_mul_i32 s12, s7, {128*3584}\ns_add_u32 s46, s13, s12\ns_mov_b32 s13, s46\ns_lshl_b32 s14, s7, 15")
    dma_mid("s13", "s14", thr)
    srd(8, P_WU, 512 * 3584)
    a("s_mov_b32 s13, s46\ns_add_u32 s14, s14, 0x4000")
    dma_mid("s13", "s14", thr)
    a(f"""
    v_lshrrev_b32 v{TA}, 3, v0
    v_lshlrev_b32 v{TA}, 5, v{TA}
    v_bfe_u32 v{TB}, v0, 2, 1
    v_lshl_add_u32 v{TA}, v{TB}, 3, v{TA}
    v_and_b32 v{TB}, 3, v0
    v_lshl_add_u32 v15, v{TB}, 1, v{TA}
    v_lshlrev_b32 v{TA}, 2, v15
    s_mul_i32 s12, s7, {MOD_B}
    s_add_u32 s12, s12, s67
    s_add_u32 s13, s12, {2048*4}
    s_add_u32 s12, s12, {1536*4}
    """)
    spin_begin()
    a("L_poll_sb:")
    spin_check()
    for i in range(2):
        for e in range(2):
            k = 2*i + e
            a(f"buffer_load_dwordx2 v[{16+2*k}:{17+2*k}], v{TA}, s[48:51], s12 offen offset:{(256*i+16*e)*4} sc1")
            a(f"buffer_load_dwordx2 v[{24+2*k}:{25+2*k}], v{TA}, s[48:51], s13 offen offset:{(256*i+16*e)*4} sc1")
    a("s_waitcnt vmcnt(0)")
    a(f"v_cmp_eq_u32 vcc, {TAG}, v17")
    for k in range(1, 8): a(f"v_cmp_eq_u32 s[56:57], {TAG}, v{17+2*k}\ns_and_b64 vcc, vcc, s[56:57]")
    a("s_cmp_eq_u64 vcc, exec\ns_cbranch_scc0 L_poll_sb")
    for k in range(4):
        a(f"v_mov_b32 v{SB+k}, v{16+2*k}")
        unpack(32, 33, 24 + 2*k)
        a(f"v_add_f32 v32, 1.0, v32\nv_add_f32 v33, 1.0, v33\nv_cvt_pk_bf16_f32 v{[4,5,6,14][k]}, v32, v33")
    TREG = [4, 5, 6, 14]
    a("L_noffn1:")
    RX, RGA, RGB = 10, 12, 14
    a("s_cmp_lg_u32 s7, 1\ns_cbranch_scc1 L_nored1\ns_cmp_ge_u32 s2, 128\ns_cbranch_scc1 L_nored1")
    a(f"""
    s_lshr_b32 s68, s2, 5
    s_and_b32 s69, s2, 31
    s_lshr_b32 s12, s69, 1
    s_lshl_b32 s12, s12, 5
    s_and_b32 s13, s69, 1
    s_lshl_b32 s13, s13, 3
    s_add_u32 s71, s12, s13
    v_and_b32 v{TA}, 7, v0
    v_add_u32 v{TA}, s71, v{TA}
    v_lshlrev_b32 v{DA}, 1, v{TA}
    s_lshl_b32 s12, s68, 10
    buffer_load_ushort v{RX}, v{DA}, s[52:55], s12 offen
    buffer_load_ushort v{RX+1}, v{DA}, s[52:55], s12 offen offset:32
    v_lshrrev_b32 v{TB}, 1, v{TA}
    v_lshlrev_b32 v{TB}, 3, v{TB}
    s_mul_i32 s12, s68, {MOD_B}
    s_add_u32 s12, s12, s67
    s_add_u32 s13, s12, {2560*4}
    s_add_u32 s12, s12, {1024*4}
    """)
    spin_begin()
    a("L_poll_ga:")
    spin_check()
    a(f"""
    buffer_load_dwordx2 v[16:17], v{TB}, s[48:51], s12 offen sc1
    buffer_load_dwordx2 v[18:19], v{TB}, s[48:51], s12 offen offset:64 sc1
    buffer_load_dwordx2 v[20:21], v{TB}, s[48:51], s13 offen sc1
    buffer_load_dwordx2 v[22:23], v{TB}, s[48:51], s13 offen offset:64 sc1
    s_waitcnt vmcnt(0)
    v_cmp_eq_u32 vcc, {TAG}, v17
    """)
    for k in range(1, 4): a(f"v_cmp_eq_u32 s[56:57], {TAG}, v{17+2*k}\ns_and_b64 vcc, vcc, s[56:57]")
    a("s_cmp_eq_u64 vcc, exec\ns_cbranch_scc0 L_poll_ga")
    a(f"v_and_b32 v{TB}, 1, v0\nv_cmp_eq_u32 vcc, 1, v{TB}")
    for k in range(4):
        unpack(24, 25, 16 + 2*k)
        a(f"v_cndmask_b32 v{RGA+k}, v24, v25, vcc")
    a(f"v_lshlrev_b32 v{RX}, 16, v{RX}\nv_lshlrev_b32 v{RX+1}, 16, v{RX+1}")
    a("L_nored1:")
    stamp(7)
    a("s_cmp_lg_u32 s7, 0\ns_cbranch_scc1 L_nofac")
    a(f"""
    v_and_b32 v{TA}, 7, v0
    v_lshlrev_b32 v{TA}, 4, v{TA}
    s_lshl_b32 s12, s15, 7
    s_add_u32 s12, s12, {WS_STATS}
    """)
    if gate:
        spin_begin()
        a(f"v_mov_b32 v20, {L_FAC+32}")
        a("L_poll_kd:")
        spin_check()
        a("""
        s_sleep 16
        ds_read_b128 v[16:19], v20
        s_waitcnt lgkmcnt(0)
        v_and_b32 v16, v16, v17
        v_and_b32 v18, v18, v19
        v_and_b32 v16, v16, v18
        v_readfirstlane_b32 s13, v16
        s_cmp_eq_u32 s13, 1
        s_cbranch_scc0 L_poll_kd
        """)
    spin_begin()
    a("L_poll_st:")
    spin_check()
    a(f"""
    s_sleep {64 if gate else 16}
    buffer_load_dwordx4 v[16:19], v{TA}, s[48:51], s12 offen sc1
    s_waitcnt vmcnt(0)
    v_cmp_eq_u32 vcc, {TAG}, v17
    v_cmp_eq_u32 s[56:57], {TAG}, v19
    s_and_b64 vcc, vcc, s[56:57]
    s_cmp_eq_u64 vcc, exec
    s_cbranch_scc0 L_poll_st
    v_mov_b32 v20, v16
    """)
    s8 = ("quad_perm:[1,0,3,2]", "quad_perm:[2,3,0,1]", "row_half_mirror")
    allreduce("v_max_f32", [20], [], rows_only=True, steps=s8)
    a(f"v_sub_f32 v16, v16, v20\nv_mul_f32 v16, {LOG2E}, v16\nv_exp_f32 v16, v16\nv_mul_f32 v18, v18, v16")
    allreduce("v_add_f32", [18], [], rows_only=True, steps=s8)
    a(f"""
    v_rcp_f32 v18, v18
    v_mul_f32 v16, v16, v18
    v_mov_b32 v17, 1
    v_and_b32 v{TA}, 3, v0
    v_lshlrev_b32 v{TA}, 3, v{TA}
    v_add_u32 v{TA}, {L_FAC}, v{TA}
    s_lshl_b32 s12, s6, 2
    s_lshl_b64 exec, 15, s12
    ds_write_b64 v{TA}, v[16:17]
    s_mov_b64 exec, -1
    """)
    a("L_nofac:")
    a(f"""
    s_waitcnt vmcnt(0) lgkmcnt(0)
    v_and_b32 v{TB}, 3, v0
    v_mul_u32_u24 v{TB}, {OP_STRIDE}, v{TB}
    v_lshrrev_b32 v{TA}, 4, v0
    v_lshl_add_u32 v{TB}, v{TA}, 4, v{TB}
    v_add_u32 v{TB}, {L_OP}, v{TB}
    v_cmp_eq_u32 s[56:57], 1, v{TA}
    v_cmp_eq_u32 s[58:59], 2, v{TA}
    v_cmp_eq_u32 s[60:61], 3, v{TA}
    s_lshl_b32 s12, s15, 1
    s_add_u32 s12, s12, s6
    s_lshl_b32 s12, s12, 12
    s_lshl_b32 s13, s7, 10
    s_add_u32 s12, s12, s13
    s_add_u32 s12, s12, {WS_PART1}
    """)
    stamp(8)
    a("s_barrier")
    stamp(9)
    for s in range(4): a(f"ds_read_b128 v[{AF+4*s}:{AF+4*s+3}], v{TB} offset:{64*s}")
    a("s_waitcnt lgkmcnt(0)")
    gemv_wide(64, 4)
    for t in range(8):
        a(f"v_add_f32 v{DD+4*t}, v{DD+4*t}, v{DD+4*t+1}\nv_add_f32 v{DD+4*t+2}, v{DD+4*t+2}, v{DD+4*t+3}")
    for t in range(8): a(f"v_add_f32 v{DD+4*t}, v{DD+4*t}, v{DD+4*t+2}")
    for u in range(2):
        a(f"v_cndmask_b32 v{16+2*u}, v{DD+4*u}, v{DD+4*(2+u)}, s[56:57]")
        a(f"v_cndmask_b32 v{16+2*u}, v{16+2*u}, v{DD+4*(4+u)}, s[58:59]")
        a(f"v_cndmask_b32 v{16+2*u}, v{16+2*u}, v{DD+4*(6+u)}, s[60:61]")
    a(f"v_mov_b32 v17, {TAG}\nv_mov_b32 v19, {TAG}")
    a("buffer_store_dwordx4 v[16:19], v1, s[48:51], s12 offen sc1")
    stamp(10)
    a("s_cmp_lt_u32 s2, 128\ns_cbranch_scc1 L_reducer")
    a(f"s_cmp_ge_u32 s68, {NFFN}\ns_cbranch_scc1 L_hend")
    mid_base(TA)
    a(f"s_lshl_b32 s12, s7, 5\nv_xor_b32 v{TA}, s12, v{TA}\nv_add_u32 v{TB}, 0x10000, v{TA}")
    tr_mid(64, 0)
    tr_mid(128, 0x4000)
    a(f"""
    s_lshl_b32 s12, s7, 11
    s_add_u32 s12, s12, {WS_X1}
    s_mul_i32 s13, s7, {ACT_STRIDE}
    s_add_u32 s13, s13, {L_ACT}
    v_lshlrev_b32 v{TA}, 1, v15
    v_add_u32 v{TA}, s13, v{TA}
    v_bfe_u32 v{TC}, v0, 2, 2
    v_mul_u32_u24 v15, {GB_STRIDE}, v{TC}
    v_mul_u32_u24 v{TC}, {ACT_STRIDE}, v{TC}
    v_lshrrev_b32 v{TB}, 4, v0
    v_lshl_add_u32 v{TC}, v{TB}, 4, v{TC}
    v_lshl_add_u32 v15, v{TB}, 4, v15
    v_add_u32 v{TC}, {L_ACT}, v{TC}
    v_add_u32 v15, {L_GB}, v15
    v_mul_u32_u24 v{TRB}, {GB_STRIDE}, v{TB}
    v_and_b32 v{TRN}, 15, v0
    v_lshl_add_u32 v{TRB}, v{TRN}, 1, v{TRB}
    s_lshl_b32 s13, s7, 5
    s_add_u32 s13, s13, {L_GB}
    v_add_u32 v{TRB}, s13, v{TRB}
    v_lshlrev_b32 v{TB}, 12, v{TB}
    v_lshl_add_u32 v{TRN}, v{TRN}, 4, v{TB}
    s_lshl_b32 s13, s68, 14
    s_lshl_b32 s14, s7, 10
    s_add_u32 s13, s13, s14
    s_add_u32 s13, s13, {WS_PART2}
    """)
    spin_begin()
    a("L_poll_x1:")
    spin_check()
    a(f"""
    buffer_load_dwordx4 v[16:19], v1, s[48:51], s12 offen sc1
    buffer_load_dwordx4 v[20:23], v1, s[48:51], s12 offen offset:1024 sc1
    s_waitcnt vmcnt(0)
    v_cmp_eq_u32 vcc, {TAG}, v17
    """)
    for k in range(1, 4): a(f"v_cmp_eq_u32 s[56:57], {TAG}, v{17+2*k}\ns_and_b64 vcc, vcc, s[56:57]")
    a("s_cmp_eq_u64 vcc, exec\ns_cbranch_scc0 L_poll_x1")
    stamp(11)
    X2, S2 = 24, 32
    for i in range(2):
        unpack(X2 + 4*i, X2 + 4*i + 2, 16 + 4*i)
        unpack(X2 + 4*i + 1, X2 + 4*i + 3, 18 + 4*i)
    ln_stats(X2, S2)
    for k in range(8): a(f"v_sub_f32 v{X2+k}, v{X2+k}, v{S2}")
    for k in range(4): a(f"v_cvt_pk_bf16_f32 v{16+k}, v{X2+2*k}, v{X2+2*k+1}")
    for k in range(4): unpack(X2 + 2*k, X2 + 2*k + 1, 16 + k)
    for k in range(8): a(f"v_mul_f32 v{X2+k}, v{X2+k}, v{S2+1}")
    for k in range(4): a(f"v_cvt_pk_bf16_f32 v{16+k}, v{X2+2*k}, v{X2+2*k+1}")
    for k in range(4): unpack(X2 + 2*k, X2 + 2*k + 1, 16 + k)
    for k in range(4): unpack(S2 + 2*k, S2 + 2*k + 1, TREG[k])
    for k in range(8): a(f"v_mul_f32 v{X2+k}, v{X2+k}, v{S2+k}")
    for k in range(4): a(f"v_cvt_pk_bf16_f32 v{16+k}, v{X2+2*k}, v{X2+2*k+1}")
    for k in range(4): unpack(X2 + 2*k, X2 + 2*k + 1, 16 + k)
    for k in range(4): unpack(S2 + 2*k, S2 + 2*k + 1, SB + k)
    for k in range(8): a(f"v_add_f32 v{X2+k}, v{X2+k}, v{S2+k}")
    for k in range(4): a(f"v_cvt_pk_bf16_f32 v{16+k}, v{X2+2*k}, v{X2+2*k+1}")
    for k in range(4): a(f"ds_write_b32 v{TA}, v{16+k} offset:{(256*(k>>1)+16*(k&1))*2}")
    a("s_waitcnt lgkmcnt(0)\ns_barrier")
    G, U = 48, 52
    for hh in range(2):
        for s in range(8): a(f"ds_read_b128 v[{16+4*s}:{19+4*s}], v{TC} offset:{(8*hh+s)*64}")
        for s in range(8):
            a(f"s_waitcnt lgkmcnt({7-s})")
            k = 8*hh + s
            a(f"v_mfma_f32_16x16x32_bf16 v[{G}:{G+3}], v[{16+4*s}:{19+4*s}], v[{64+4*k}:{67+4*k}], " + ("0" if k == 0 else f"v[{G}:{G+3}]"))
            a(f"v_mfma_f32_16x16x32_bf16 v[{U}:{U+3}], v[{16+4*s}:{19+4*s}], v[{128+4*k}:{131+4*k}], " + ("0" if k == 0 else f"v[{U}:{U+3}]"))
    bf16r2(G, U, 56)
    a(f"""
    v_mul_f32 v56, v{G}, v{G}
    v_mul_f32 v56, 0x3d372713, v56
    v_fma_f32 v56, v56, v{G}, v{G}
    v_mul_f32 v56, 0x40135761, v56
    v_exp_f32 v56, -v56
    v_add_f32 v56, 1.0, v56
    v_rcp_f32 v56, v56
    v_mul_f32 v56, v56, v{G}
    """)
    bf16r(56, 56)
    a(f"""
    v_mul_f32 v56, v56, v{U}
    v_cvt_pk_bf16_f32 v56, v56, v56
    ds_write_b16 v{TRB}, v56
    s_waitcnt lgkmcnt(0)
    s_barrier
    ds_read_b128 v[{AF}:{AF+3}], v15
    ds_read_b128 v[{AF+4}:{AF+7}], v15 offset:64
    s_waitcnt lgkmcnt(0)
    """)
    gemv_wide(192, 2)
    for u in range(4):
        r = DD + 8*u
        a(f"v_mov_b32 v{r+1}, {TAG}\nv_mov_b32 v{r+2}, v{r+4}\nv_mov_b32 v{r+3}, {TAG}")
        a(f"buffer_store_dwordx4 v[{r}:{r+3}], v{TRN}, s[48:51], s13 offen offset:{256*u} sc1")
    stamp(12)
    a("s_branch L_hend")
    a("L_reducer:")
    a("s_cmp_lg_u32 s7, 1\ns_cbranch_scc1 L_hend")
    a(f"""
    v_lshrrev_b32 v{TA}, 3, v0
    v_and_b32 v{TB}, 7, v0
    v_lshlrev_b32 v{TC}, 14, v{TA}
    v_lshlrev_b32 v{TA}, 12, v{TA}
    v_lshl_add_u32 v{TA}, v{TB}, 4, v{TA}
    v_lshl_add_u32 v{TC}, v{TB}, 4, v{TC}
    v_lshlrev_b32 v{TB}, 3, v{TB}
    s_lshl_b32 s12, s68, 18
    s_lshl_b32 s13, s69, 7
    s_add_u32 s12, s12, s13
    s_add_u32 s12, s12, {WS_PART1}
    """)
    spin_begin()
    a("L_poll_p1:")
    spin_check()
    a("s_mov_b32 s14, s12")
    for i in range(8):
        a(f"buffer_load_dwordx4 v[{16+4*i}:{19+4*i}], v{TA}, s[48:51], s14 offen sc1")
        if i < 7: a("s_add_u32 s14, s14, 0x8000")
    a("s_waitcnt vmcnt(0)")
    a(f"v_cmp_eq_u32 vcc, {TAG}, v17")
    for k in range(1, 16): a(f"v_cmp_eq_u32 s[56:57], {TAG}, v{17+2*k}\ns_and_b64 vcc, vcc, s[56:57]")
    a("s_cmp_eq_u64 vcc, exec\ns_cbranch_scc0 L_poll_p1")
    stamp(11)
    def tree(n):
        st_ = 1
        while st_ < n:
            for i in range(0, n, 2*st_):
                a(f"v_add_f32 v{16+4*i}, v{16+4*i}, v{16+4*(i+st_)}\nv_add_f32 v{18+4*i}, v{18+4*i}, v{18+4*(i+st_)}")
            st_ *= 2
        allreduce("v_add_f32", [16, 18], [17, 19], steps=("row_ror:8",))
    tree(8)
    def resid(gate):
        bf16r2(16, 18, 17)
        a(f"v_mul_f32 v16, v16, v{gate}\nv_mul_f32 v18, v18, v{gate+1}")
        bf16r2(16, 18, 17)
        a(f"v_add_f32 v16, v16, v{RX}\nv_add_f32 v18, v18, v{RX+1}\nv_cvt_pk_bf16_f32 v16, v16, v18")
    resid(RGA)
    a(f"""
    v_mov_b32 v17, {TAG}
    s_lshl_b32 s12, s68, 11
    s_lshl_b32 s13, s69, 6
    s_add_u32 s12, s12, s13
    s_add_u32 s12, s12, {WS_X1}
    s_mov_b64 exec, 0xff
    buffer_store_dwordx2 v[16:17], v{TB}, s[48:51], s12 offen sc1
    s_mov_b64 exec, -1
    """)
    stamp(12)
    unpack(RX, RX+1, 16)
    a(f"""
    s_lshl_b32 s12, s68, 12
    s_lshl_b32 s13, s69, 7
    s_add_u32 s12, s12, s13
    s_add_u32 s12, s12, {WS_PART2}
    v_mov_b32 v28, 0
    v_mov_b32 v29, {TAG}
    v_mov_b32 v30, 0
    v_mov_b32 v31, {TAG}
    """)
    srd(52, P_OUT, 4096)
    spin_begin()
    a("L_poll_p2:")
    spin_check()
    a("s_mov_b32 s14, s12")
    for i in range(4):
        if i == 3: a("s_mov_b32 exec_hi, 0")
        a(f"buffer_load_dwordx4 v[{16+4*i}:{19+4*i}], v{TC}, s[48:51], s14 offen sc1")
        if i < 3: a("s_add_u32 s14, s14, 0x20000")
    a("s_mov_b64 exec, -1\ns_waitcnt vmcnt(0)")
    a(f"v_cmp_eq_u32 vcc, {TAG}, v17")
    for k in range(1, 8): a(f"v_cmp_eq_u32 s[56:57], {TAG}, v{17+2*k}\ns_and_b64 vcc, vcc, s[56:57]")
    a("s_cmp_eq_u64 vcc, exec\ns_cbranch_scc0 L_poll_p2")
    stamp(13)
    tree(4)
    resid(RGB)
    a(f"""
    s_lshl_b32 s12, s68, 10
    s_mov_b64 exec, 0xff
    buffer_store_short v16, v{DA}, s[52:55], s12 offen
    buffer_store_short_d16_hi v16, v{DA}, s[52:55], s12 offen offset:32
    s_cmp_lg_u32 s2, 0
    s_cbranch_scc1 L_hend
    s_mov_b64 exec, 1
    v_mov_b32 v17, {TAG}
    v_mov_b32 v18, 0
    buffer_store_dword v17, v18, s[48:51], 0 offen sc1
    """)
    a("L_hend:")
    stamp(14)
    dump_stamps(15)
    a("L_end:")
    a("s_endpgm")
    a('.section .rodata,"a"')
    a(".p2align 6")
    a(f".amdhsa_kernel {NAME}_kernel")
    a("""
    .amdhsa_next_free_vgpr 256
    .amdhsa_next_free_sgpr 102
    .amdhsa_accum_offset 256
    .amdhsa_group_segment_fixed_size 0
    .amdhsa_kernarg_size 112
    .amdhsa_user_sgpr_count 2
    .amdhsa_user_sgpr_kernarg_segment_ptr 1
    .amdhsa_system_sgpr_workgroup_id_x 1
    .amdhsa_float_denorm_mode_32 3
    .end_amdhsa_kernel
    """)
    return out + a.text()

if __name__ == "__main__":
    kw = eval("dict(" + (sys.argv[2] if len(sys.argv) > 2 else "") + ")")
    open(sys.argv[1], "w").write(gen(**kw))
```

```python
import sys
from asmlib import Asm

NAME = "adaLN_cond__mha_block_cached__geglu_ffn__decode"
WS_MOD = 0x1000
WS_Q = 0x10000
WS_STATS = 0x20000
WS_X1 = 0x28000
WS_PART2 = 0x40000
WS_PART1 = 0x80000
WS_DBG, WS_SIZE = 0x200000, 0x400000
L_W, L_WM, L_ACT, L_Q, L_OP, L_FL, L_GB = 0, 0x20000, 0x24000, 0x25200, 0x25400, 0x25A00, 0x25B00
ACT_STRIDE, OP_STRIDE, GB_STRIDE = 1088, 320, 192
LDS_BYTES = 0x26000
F_FAC, F_KD, F_WF, F_WQ, F_WQD, F_H, F_G1, F_G2, F_G3, F_ST = 0, 64, 80, 96, 112, 128, 144, 160, 176, 192
NFFN = 28
SPIN_MAX = 400000
P_X, P_K, P_V, P_WQ, P_WO, P_WG, P_WU, P_WD, P_C, P_WM, P_OUT, P_WS = 16, 18, 20, 22, 24, 28, 30, 32, 34, 36, 38, 42
TAG = "s45"
LOG2E, SCALE, HIMASK = "s64", "s65", "s66"

def gen(D=5, A=8, E=4, P=48, PL=32, DP=5, D2=7, NE=1, DK=None, thr=2, thrA=2, thrF=4, pace=0, ffnA=False, slp=16, diag=False, ctl=True, levels=((4,-50),(5,30),(6,100),(7,None)), tauf=55, off=55, gq=40, gm=20, gv=2):
    a = Asm()
    DK = DK or D
    def stamp(k):
        if diag: a(f"s_memrealtime s[{72+2*k}:{73+2*k}]")
    def srd(reg, ptr, nbytes):
        a(f"s_mov_b32 s{reg}, s{ptr}\ns_mov_b32 s{reg+1}, s{ptr+1}\ns_mov_b32 s{reg+2}, {nbytes}\ns_mov_b32 s{reg+3}, 0x20000")
    def dump_stamps(n):
        if not diag: return
        a("s_waitcnt lgkmcnt(0)")
        a("s_mov_b64 exec, 1")
        a("s_lshl_b32 s46, s2, 3\ns_add_u32 s46, s46, s3\ns_lshl_b32 s46, s46, 6")
        a(f"s_add_u32 s46, s46, {WS_DBG}")
        a("v_mov_b32 v1, 0")
        for k in range(n):
            a(f"v_mov_b32 v2, s{72+2*k}")
            a(f"buffer_store_dword v2, v1, s[48:51], s46 offen offset:{4*k}")
    FULL = "row_mask:0xf bank_mask:0xf"
    def allreduce(op, rs, tmps, rows_only=False, steps=("quad_perm:[1,0,3,2]", "quad_perm:[2,3,0,1]", "row_half_mirror", "row_mirror")):
        for st in steps:
            for r in rs: a(f"{op}_dpp v{r}, v{r}, v{r} {st} {FULL}")
        if rows_only: return
        for sw in ("v_permlane16_swap_b32", "v_permlane32_swap_b32"):
            for r, t in zip(rs, tmps): a(f"v_mov_b32 v{t}, v{r}")
            for r, t in zip(rs, tmps): a(f"{sw} v{r}, v{t}")
            for r, t in zip(rs, tmps): a(f"{op} v{r}, v{r}, v{t}")
    def bf16r(d, s):
        a(f"v_cvt_pk_bf16_f32 v{d}, v{s}, v{s}\nv_and_b32 v{d}, {HIMASK}, v{d}")
    def bf16r2(lo, hi, t):
        a(f"v_cvt_pk_bf16_f32 v{t}, v{lo}, v{hi}\nv_lshlrev_b32 v{lo}, 16, v{t}\nv_and_b32 v{hi}, {HIMASK}, v{t}")
    def unpack(lo, hi, s):
        a(f"v_lshlrev_b32 v{lo}, 16, v{s}\nv_and_b32 v{hi}, {HIMASK}, v{s}")
    def spin_begin(): a("s_mov_b32 s70, 0")
    def spin_check(): a(f"s_add_u32 s70, s70, 1\ns_cmp_gt_u32 s70, {SPIN_MAX}\ns_cbranch_scc1 L_end")
    MKTAG = "s_mul_i32 s45, s44, 1664525\ns_add_u32 s45, s45, 1013904223"
    BAR0 = "s_waitcnt lgkmcnt(0)\ns_barrier\ns_load_dword s44, s[42:43], 0"
    def set_flag(row, widx, va, vb):
        a(f"s_lshl_b32 s47, {widx}, 2\ns_add_u32 s47, s47, {L_FL+row}\nv_mov_b32 v{va}, s47\nv_mov_b32 v{vb}, 1\nds_write_b32 v{va}, v{vb}")
    def wait_flags(lbl, row, t, sleep):
        spin_begin()
        a(f"v_mov_b32 v{t+4}, {L_FL+row}")
        a(f"{lbl}:")
        spin_check()
        if sleep: a(f"s_sleep {sleep}")
        a(f"""
        ds_read_b128 v[{t}:{t+3}], v{t+4}
        s_waitcnt lgkmcnt(0)
        v_and_b32 v{t}, v{t}, v{t+1}
        v_and_b32 v{t+2}, v{t+2}, v{t+3}
        v_and_b32 v{t}, v{t}, v{t+2}
        v_readfirstlane_b32 s47, v{t}
        s_cmp_eq_u32 s47, 1
        s_cbranch_scc0 {lbl}
        """)

    hdr = open("cdna_kernels/" + NAME + ".s.ref").read().split("; Override launch")[0]
    out = hdr + f"; @launch grid=(256,1,1) block=(512,1,1) lds={LDS_BYTES}\n"
    a('.amdgcn_target "amdgcn-amd-amdhsa--gfx950"')
    a(".text")
    a(f".globl {NAME}_kernel")
    a(".p2align 8")
    a(f".type {NAME}_kernel,@function")
    a(f"{NAME}_kernel:")
    a("""
    s_cmp_ge_u32 s2, 256
    s_cbranch_scc1 L_end
    s_load_dwordx16 s[16:31], s[0:1], 0
    s_load_dwordx8 s[32:39], s[0:1], 64
    s_load_dwordx4 s[40:43], s[0:1], 96
    """)
    if diag:
        for k in range(1, 15): a(f"s_mov_b32 s{72+2*k}, 0")
    stamp(0)
    a("""
    v_lshrrev_b32 v1, 6, v0
    v_and_b32 v0, 63, v0
    v_readfirstlane_b32 s3, v1
    v_lshlrev_b32 v1, 4, v0
    s_lshr_b32 s12, s2, 3
    s_and_b32 s4, s12, 3
    s_lshl_b32 s4, s4, 3
    s_and_b32 s13, s2, 7
    s_add_u32 s4, s4, s13
    s_bfe_u32 s5, s12, 0x20002
    s_lshr_b32 s6, s12, 4
    s_mov_b32 s64, 0x3fb8aa3b
    s_mov_b32 s65, 0x3db504f3
    s_mov_b32 s66, 0xffff0000
    s_lshl_b32 s15, s5, 5
    s_add_u32 s15, s15, s4
    s_cmp_ge_u32 s3, 4
    s_cbranch_scc1 L_helper
    """)

    Q, MK, BB, ACC, PT, XX, YY, T0, T1, SC, RING = 2, 6, 10, 14, 18, 34, 42, 46, 47, 48, 64
    a("""
    s_lshl_b32 s13, s15, 21
    s_lshl_b32 s14, s6, 20
    s_add_u32 s13, s13, s14
    s_lshl_b32 s14, s3, 12
    s_add_u32 s13, s13, s14
    s_mov_b32 s12, s13
    s_lshl_b32 s14, s3, 15
    s_waitcnt lgkmcnt(0)
    """)
    srd(8, P_K, 0x10000000)
    st = {"issued": 0, "landed": 0}
    PT_ = P + PL
    assert P % 4 == 0 and PL <= 32
    def ldsoff(n): return ((n - P + 16) % 32) * 1024
    def slot(n):
        if n < P: return RING + 4 * n
        if n < PT_: return RING + 4 * (16 + n - P)
        return RING + 4 * ((n - PT_) % 16)
    def issue(n):
        if P <= n < PT_:
            if n & 3 == 0: a(f"s_add_u32 m0, s14, {ldsoff(n)}")
            a(f"buffer_load_dwordx4 v1, s[8:11], s12 offen offset:{(n&3)*1024} nt lds")
        else:
            r = slot(n)
            a(f"buffer_load_dwordx4 v[{r}:{r+3}], v1, s[8:11], s12 offen offset:{(n&3)*1024} nt")
        if n & 3 == 3: a("s_add_u32 s12, s12, 0x4000")
        st["issued"] = n + 1
    def throttle(d=None):
        d = d or D
        a(f"s_waitcnt vmcnt({d-1})")
        st["landed"] = max(st["landed"], st["issued"] - (d - 1))
    def ensure(n):
        if n >= st["landed"]:
            k = st["issued"] - 1 - n
            a(f"s_waitcnt vmcnt({k})"); st["landed"] = n + 1
    for n in range(PT_):
        if n == P + 16: wait_flags("L_wqd", F_WQD, PT, 0)
        if n >= DP: throttle(DP)
        issue(n)
        if n == DP - 1:
            srd(48, P_WS, WS_SIZE)
            a(f"""
            s_mov_b32 s60, 0xaaaaaaaa
            s_mov_b32 s61, 0xaaaaaaaa
            s_mov_b32 s62, 0xcccccccc
            s_mov_b32 s63, 0xcccccccc
            v_and_b32 v{T0}, 15, v0
            v_and_b32 v{T1}, 1, v0
            v_lshlrev_b32 v{T1}, 4, v{T1}
            v_mov_b32 v{PT}, 0xffff
            v_lshlrev_b32 v{T1}, v{T1}, v{PT}
            v_lshrrev_b32 v{PT}, 1, v{T0}
            """)
            for t in range(4):
                a(f"v_cmp_eq_u32 vcc, {t}, v{PT}\nv_cndmask_b32 v{MK+t}, 0, v{T1}, vcc")
            for t in range(4): a(f"v_mov_b32 v{ACC+t}, 0")
            a(f"v_lshlrev_b32 v{T0}, 4, v{T0}\nv_add_u32 v{T0}, {L_Q}, v{T0}")
            a("s_barrier")
        if n == gm: set_flag(F_G1, "s3", PT, PT+1)
        if n == gq: set_flag(F_G2, "s3", PT, PT+1)
    stamp(1)
    a("s_barrier")
    stamp(2)
    a(f"ds_read_b128 v[{Q}:{Q+3}], v{T0}\nv_add_u32 v{T0}, s14, v1\ns_waitcnt lgkmcnt(0)")
    def kdots(n):
        r = slot(n); p = PT + n % 16
        a(f"v_dot2_f32_bf16 v{p}, v{r}, v{Q}, 0")
        for i in range(1, 4): a(f"v_dot2_f32_bf16 v{p}, v{r+i}, v{Q+i}, v{p}")
    def kreduce(dst):
        for j in range(8): a(f"v_add_f32_dpp v{XX+j}, v{PT+j}, v{PT+j} row_ror:8 row_mask:0xf bank_mask:0x3")
        for j in range(8): a(f"v_add_f32_dpp v{XX+j}, v{PT+8+j}, v{PT+8+j} row_ror:8 row_mask:0xf bank_mask:0xc")
        for j in range(4): a(f"v_add_f32_dpp v{YY+j}, v{XX+j}, v{XX+j} row_half_mirror row_mask:0xf bank_mask:0x5")
        for j in range(4): a(f"v_add_f32_dpp v{YY+j}, v{XX+4+j}, v{XX+4+j} row_half_mirror row_mask:0xf bank_mask:0xa")
        for j in range(2):
            a(f"v_cndmask_b32 v{XX+2*j}, v{YY+j+2}, v{YY+j}, s[62:63]")
            a(f"v_cndmask_b32 v{XX+2*j+1}, v{YY+j}, v{YY+j+2}, s[62:63]")
        for j in range(2):
            a(f"v_add_f32_dpp v{XX+4+j}, v{XX+2*j}, v{XX+2*j+1} quad_perm:[2,3,0,1] {FULL}")
        a(f"v_cndmask_b32 v{XX}, v{XX+5}, v{XX+4}, s[60:61]")
        a(f"v_cndmask_b32 v{XX+1}, v{XX+4}, v{XX+5}, s[60:61]")
        a(f"v_add_f32_dpp v{XX+2}, v{XX}, v{XX+1} quad_perm:[1,0,3,2] {FULL}")
        bf16r(XX+2, XX+2)
        a(f"v_mul_f32 v{XX+2}, {SCALE}, v{XX+2}")
        bf16r(dst, XX+2)
    tgt = -(-(PT_ + 16 - A + 4) // 16) * 16
    NPEEL = tgt // 16
    KL = 16 - NPEEL
    cons = {"n": 0}
    def consume_k_upto(m):
        while cons["n"] < m:
            n = cons["n"]
            if n == P:
                a("s_waitcnt lgkmcnt(0)")
                set_flag(F_WF, "s3", T0, T1)
            ensure(n); kdots(n); cons["n"] += 1
            m2 = n - 16 + P
            if n >= 16 and P <= m2 < PT_:
                ensure(m2)
                r = slot(m2)
                a(f"ds_read_b128 v[{r}:{r+3}], v{T0} offset:{ldsoff(m2)}")
            if n % 16 == 15: kreduce(SC + n // 16 + KL)
    nsteps = tgt + A - PT_
    for s in range(nsteps):
        n = PT_ + s
        prev = s if s < 16 else n - 16
        if s <= 16: want = 1 + -(-PT_ * s // 16)
        else: want = PT_ + 1 + -(-(tgt - PT_ - 1) * (s - 16) // (nsteps - 16))
        want = min(want, max(st["landed"], PT_))
        consume_k_upto(min(max(want, prev + 1), tgt))
        throttle(DK); issue(n)
    consume_k_upto(tgt)
    a("s_mov_b32 s14, 0")
    a("L_kloop:")
    for j in range(16):
        n = tgt + j
        a(f"s_waitcnt vmcnt({DK-1})")
        if j == 16 - A:
            a(f"s_cmp_eq_u32 s14, {KL-1}\ns_cselect_b32 s8, s{P_V}, s8\ns_cselect_b32 s9, s{P_V+1}, s9\ns_cselect_b32 s12, s13, s12")
        issue(n + A)
        kdots(n)
        if j == 7:
            for i in range(15): a(f"v_mov_b32 v{SC+i}, v{SC+i+1}")
    kreduce(SC + 15)
    a(f"s_add_u32 s14, s14, 1\ns_cmp_lt_u32 s14, {KL}\ns_cbranch_scc1 L_kloop")
    stamp(3)
    a("s_memrealtime s[52:53]")
    ex = {"n": 256 + A}
    def extra():
        if ex["n"] < 256 + A + E:
            a(f"s_waitcnt vmcnt({D-1})"); issue(ex["n"]); ex["n"] += 1
    extra()
    M, Ls = PT, PT + 1
    a(f"v_max3_f32 v{M}, v{SC}, v{SC+1}, v{SC+2}")
    for i in range(3, 15, 2): a(f"v_max3_f32 v{M}, v{M}, v{SC+i}, v{SC+i+1}")
    a(f"v_max_f32 v{M}, v{M}, v{SC+15}")
    allreduce("v_max_f32", [M], [T0])
    a(f"v_mul_f32 v{T1}, {LOG2E}, v{M}")
    extra()
    for i in range(16): a(f"v_fma_f32 v{SC+i}, v{SC+i}, {LOG2E}, -v{T1}")
    for i in range(16): a(f"v_exp_f32 v{SC+i}, v{SC+i}")
    extra()
    a(f"v_add_f32 v{Ls}, v{SC}, v{SC+1}\nv_add_f32 v{Ls+1}, v{SC+2}, v{SC+3}")
    for i in range(4, 16, 2): a(f"v_add_f32 v{Ls}, v{Ls}, v{SC+i}\nv_add_f32 v{Ls+1}, v{Ls+1}, v{SC+i+1}")
    a(f"v_add_f32 v{Ls}, v{Ls}, v{Ls+1}")
    for i in range(16): a(f"v_cvt_pk_bf16_f32 v{SC+i}, v{SC+i}, v{SC+i}")
    extra()
    allreduce("v_add_f32", [Ls], [T0])
    a(f"""
    s_lshl_b32 s47, s3, 4
    s_add_u32 s47, s47, {L_FL+F_FAC}
    v_mov_b32 v{PT+4}, s47
    s_waitcnt lgkmcnt(0)
    v_mov_b32 v{PT+2}, s52
    ds_write_b96 v{PT+4}, v[{M}:{M+2}] offset:{F_ST-F_FAC}
    """)
    set_flag(F_KD, "s3", PT+5, PT+6)
    while ex["n"] < 256 + A + E: extra()
    AV = A + E
    assert AV <= 15
    a(f"""
    v_lshrrev_b32 v{PT}, 4, v0
    v_lshlrev_b32 v{PT}, 6, v{PT}
    v_and_b32 v{PT+1}, 15, v0
    v_lshl_add_u32 v{PT}, v{PT+1}, 1, v{PT}
    s_mul_i32 s46, s3, {OP_STRIDE}
    s_add_u32 s46, s46, {L_OP}
    v_add_u32 v{PT}, s46, v{PT}
    s_mov_b32 s14, 0
    """)
    FA = XX
    def vbody(dd, last):
        assert dd <= AV
        a(f"ds_read_b128 v[{FA}:{FA+3}], v{PT+4}")
        for j in range(16):
            n = 256 + j
            for t in range(4): a(f"v_and_b32_dpp v{BB+t}, v{SC}, v{MK+t} row_newbcast:{j} {FULL}")
            a(f"s_waitcnt vmcnt({dd-1})")
            if j == 16 - AV and last:
                a("s_cmp_eq_u32 s14, 15\ns_cselect_b32 s10, 0, s10")
            issue(n + AV)
            r = slot(n)
            a(f"v_mfma_f32_16x16x32_bf16 v[{ACC}:{ACC+3}], v[{r}:{r+3}], v[{BB}:{BB+3}], v[{ACC}:{ACC+3}]")
            if j == 15 and ctl and not last: a("s_memrealtime s[52:53]")
        for i in range(15): a(f"v_mov_b32 v{SC+i}, v{SC+i+1}")
        a("s_add_u32 s14, s14, 1")
    assert NE >= 1
    a(f"s_branch L_v{D}")
    a("L_vdisp:")
    a(f"s_cmp_eq_u32 s14, {gv}\ns_cbranch_scc0 L_vd1")
    set_flag(F_G3, "s3", PT+5, PT+6)
    a("L_vd1:")
    a(f"s_cmp_ge_u32 s14, {16-NE}\ns_cbranch_scc1 L_vlast")
    if ctl:
        a(f"""
        s_waitcnt lgkmcnt(0)
        v_readfirstlane_b32 s55, v{FA+3}
        v_readfirstlane_b32 s54, v{FA+2}
        s_cmp_eq_u32 s55, 0
        s_cbranch_scc1 L_v{D}
        s_mul_i32 s55, s55, s14
        s_sub_u32 s52, s52, s54
        s_sub_u32 s52, s52, s55
        """)
        for dd, th in levels:
            if th is None: a(f"s_branch L_v{dd}")
            else: a(f"s_cmp_lt_i32 s52, {th}\ns_cbranch_scc1 L_v{dd}")
    for dd in ([x[0] for x in levels] if ctl else [D]):
        a(f"L_v{dd}:")
        vbody(dd, False)
        a("s_branch L_vdisp")
    a("L_vlast:")
    vbody(D2, True)
    a("s_cmp_lt_u32 s14, 16\ns_cbranch_scc1 L_vlast")
    stamp(4)
    spin_begin()
    a("L_facspin:")
    a(f"s_waitcnt lgkmcnt(0)\nv_readfirstlane_b32 s46, v{FA+1}\ns_cmp_eq_u32 s46, 1\ns_cbranch_scc1 L_facok")
    spin_check()
    a(f"ds_read_b128 v[{FA}:{FA+3}], v{PT+4}\ns_branch L_facspin")
    a("L_facok:")
    for t in range(4): a(f"v_mul_f32 v{ACC+t}, v{ACC+t}, v{FA}")
    a(f"v_cvt_pk_bf16_f32 v{ACC}, v{ACC}, v{ACC+1}\nv_cvt_pk_bf16_f32 v{ACC+2}, v{ACC+2}, v{ACC+3}")
    a(f"""
    s_mov_b32 exec_lo, 0x00ff00ff
    s_mov_b32 exec_hi, 0x00ff00ff
    ds_write_b16 v{PT}, v{ACC}
    ds_write_b16_d16_hi v{PT}, v{ACC} offset:16
    ds_write_b16 v{PT}, v{ACC+2} offset:32
    ds_write_b16_d16_hi v{PT}, v{ACC+2} offset:48
    s_waitcnt lgkmcnt(0)
    s_barrier
    """)
    stamp(5)
    dump_stamps(6)
    a("s_endpgm")

    a("L_helper:")
    TRB, TRN, DA, DB, DN, TA, TB, TC = 2, 3, 4, 5, 6, 7, 8, 9
    a(f"""
    s_memrealtime s[60:61]
    s_sub_u32 s7, s3, 4
    v_lshrrev_b32 v{TA}, 4, v0
    v_bfe_u32 v{TB}, v0, 2, 2
    v_and_b32 v{TC}, 3, v0
    v_lshl_add_u32 v{TRN}, v{TA}, 3, v{TB}
    v_lshlrev_b32 v{TRB}, 8, v{TRN}
    v_lshlrev_b32 v{TRN}, 5, v{TRN}
    v_lshl_add_u32 v{TRB}, v{TC}, 3, v{TRB}
    v_lshl_add_u32 v{TRN}, v{TC}, 3, v{TRN}
    v_and_b32 v{TC}, 1, v{TA}
    v_lshl_add_u32 v{TB}, v{TC}, 2, v{TB}
    v_lshl_add_u32 v{TRB}, v{TB}, 5, v{TRB}
    s_lshl_b32 s12, s7, 15
    v_add_u32 v{TRB}, s12, v{TRB}
    v_and_b32 v{TB}, 15, v0
    v_lshlrev_b32 v{TC}, 1, v{TA}
    v_xor_b32 v{TB}, v{TB}, v{TC}
    v_lshlrev_b32 v{DN}, 4, v{TB}
    """)
    a(f"""
    s_cmp_lg_u32 s7, 3
    s_cbranch_scc1 L_noinit
    s_lshr_b32 s12, s2, 6
    s_cmp_lg_u32 s12, 1
    s_cselect_b32 s12, 1, 0
    v_lshrrev_b32 v16, 2, v0
    v_cmp_eq_u32 vcc, {F_WQD//16}, v16
    v_mov_b32 v17, s12
    v_cndmask_b32 v16, 0, v17, vcc
    v_lshlrev_b32 v17, 2, v0
    v_add_u32 v17, {L_FL}, v17
    ds_write_b32 v17, v16
    L_noinit:
    s_waitcnt lgkmcnt(0)
    """)
    srd(48, P_WS, WS_SIZE)
    srd(52, P_X, 4096)
    def dma_wait(i, infl, pc):
        if pc:
            if i % infl == infl - 1: a(f"s_waitcnt vmcnt(0)\ns_sleep {pc}")
        elif i >= infl - 1: a(f"s_waitcnt vmcnt({infl-1})")
    def dma_wide(nins, rs_log2, soff, infl, pc=0):
        a(f"v_lshrrev_b32 v{TA}, 4, v0\nv_lshl_add_u32 v{DA}, v{TA}, {rs_log2}, v{DN}\nv_xor_b32 v{DB}, 0x80, v{DA}")
        a("s_lshl_b32 s14, s7, 15")
        for i in range(nins):
            a("s_mov_b32 m0, s14" if i == 0 else "s_add_u32 m0, m0, 0x400")
            if i: a(f"s_add_u32 {soff}, {soff}, {4 << rs_log2}")
            a(f"buffer_load_dwordx4 v{DB if (i >> 1) & 1 else DA}, s[8:11], {soff} offen nt lds")
            dma_wait(i, infl, pc)
    def dma_mid(soff, ldsbase, infl, rs, pc=0):
        a(f"""
        v_lshrrev_b32 v{DA}, 3, v0
        v_mul_u32_u24 v{DA}, {rs}, v{DA}
        v_bfe_u32 v{DB}, v0, 4, 1
        v_lshlrev_b32 v{DB}, 1, v{DB}
        v_and_b32 v{TA}, 7, v0
        v_xor_b32 v{DB}, v{DB}, v{TA}
        v_lshl_add_u32 v{DA}, v{DB}, 4, v{DA}
        v_xor_b32 v{DB}, 64, v{DA}
        """)
        for i in range(16):
            a(f"s_mov_b32 m0, {ldsbase}" if i == 0 else "s_add_u32 m0, m0, 0x400")
            if i: a(f"s_add_u32 {soff}, {soff}, {8*rs}")
            a(f"buffer_load_dwordx4 v{DB if i & 1 else DA}, s[8:11], {soff} offen nt lds")
            dma_wait(i, infl, pc)
    def dma_narrow(rs, soff, ldsbase, infl):
        a(f"v_lshrrev_b32 v{DA}, 1, v0\nv_mul_u32_u24 v{DA}, {rs}, v{DA}\nv_and_b32 v{DB}, 1, v0\nv_lshl_add_u32 v{DA}, v{DB}, 4, v{DA}")
        for i in range(16):
            a(f"s_mov_b32 m0, {ldsbase}" if i == 0 else "s_add_u32 m0, m0, 0x400")
            if i: a(f"s_add_u32 {soff}, {soff}, {32*rs}")
            a(f"buffer_load_dwordx4 v{DA}, s[8:11], {soff} offen nt lds")
            if i >= infl - 1: a(f"s_waitcnt vmcnt({infl-1})")
    def mid_bases():
        a(f"""
        v_lshrrev_b32 v{TB}, 4, v0
        v_bfe_u32 v{TC}, v0, 2, 2
        v_lshl_add_u32 v{TA}, v{TB}, 3, v{TC}
        v_lshlrev_b32 v{TA}, 7, v{TA}
        v_and_b32 v{TB}, 1, v{TB}
        v_lshrrev_b32 v{TC}, 1, v{TC}
        v_lshl_add_u32 v{TB}, v{TB}, 1, v{TC}
        v_xor_b32 v{TB}, s7, v{TB}
        v_lshl_add_u32 v{TA}, v{TB}, 5, v{TA}
        v_and_b32 v{TB}, 3, v0
        v_lshl_add_u32 v{TA}, v{TB}, 3, v{TA}
        v_add_u32 v{TB}, 0x10000, v{TA}
        """)
    def tr_mid(dst, off):
        for s in range(16):
            r = dst + 4 * s
            ar = TA if s < 8 else TB
            o = off + ((s >> 2) & 1) * 0x8000 + (s & 3) * 4096
            a(f"ds_read_b64_tr_b16 v[{r}:{r+1}], v{ar} offset:{o}")
            a(f"ds_read_b64_tr_b16 v[{r+2}:{r+3}], v{ar} offset:{o+512}")
            if s & 3 == 3: a("s_waitcnt lgkmcnt(0)")
    def tr_wide(dst, nk):
        for t in range(8):
            ar = TA if t & 1 else TB
            a(f"v_xor_b32 v{ar}, {t << 5}, v{TRB}")
            for s in range(nk):
                r = dst + (t * nk + s) * 4
                a(f"ds_read_b64_tr_b16 v[{r}:{r+1}], v{ar} offset:{s*8192}")
                a(f"ds_read_b64_tr_b16 v[{r+2}:{r+3}], v{ar} offset:{s*8192+1024}")
            if t & 1: a("s_waitcnt lgkmcnt(0)")
    def tr_narrow(dst, areg):
        for s in range(16):
            r = dst + 4 * s
            a(f"ds_read_b64_tr_b16 v[{r}:{r+1}], v{areg} offset:{s*1024}")
            a(f"ds_read_b64_tr_b16 v[{r+2}:{r+3}], v{areg} offset:{s*1024+128}")
            if s & 3 == 3: a("s_waitcnt lgkmcnt(0)")
    def act_addr(dst, rowsel):
        a(f"v_and_b32 v{dst}, 3, v0" if rowsel == "lo" else f"v_bfe_u32 v{dst}, v0, 2, 2")
        a(f"v_mul_u32_u24 v{dst}, {ACT_STRIDE}, v{dst}\nv_lshrrev_b32 v11, 4, v0\nv_lshl_add_u32 v{dst}, v11, 4, v{dst}\nv_add_u32 v{dst}, {L_ACT}, v{dst}")
    def poll(lbl, loads, tags, sleep=0, pre="", post=""):
        spin_begin()
        if sleep: a(f"s_branch {lbl}_go")
        a(f"{lbl}:")
        spin_check()
        if sleep: a(f"s_sleep {sleep}\n{lbl}_go:")
        a(pre)
        for l in loads: a(l)
        a(post)
        a("s_waitcnt vmcnt(0)")
        tags()
        a(f"s_cmp_eq_u64 vcc, exec\ns_cbranch_scc0 {lbl}")
    def tags_words(regs):
        def f():
            a(f"v_cmp_eq_u32 vcc, {TAG}, v{regs[0]}")
            for r in regs[1:]: a(f"v_cmp_eq_u32 s[56:57], {TAG}, v{r}\ns_and_b64 vcc, vcc, s[56:57]")
        return f
    def tags_bytes(quads, t):
        def f():
            for i, q in enumerate(quads):
                a(f"v_perm_b32 v{t+2*i}, v{q+1}, v{q}, s58\nv_perm_b32 v{t+2*i+1}, v{q+3}, v{q+2}, s59")
            for i, q in enumerate(quads): a(f"v_or_b32 v{t+2*i}, v{t+2*i}, v{t+2*i+1}")
            tags_words([t + 2*i for i in range(len(quads))])()
        return f
    def ln_stats(x0, t0):
        a(f"v_readfirstlane_b32 s46, v{x0}")
        for k in range(8): a(f"v_subrev_f32 v{t0+2+k}, s46, v{x0+k}")
        a(f"v_add_f32 v{t0}, v{t0+2}, v{t0+3}\nv_mul_f32 v{t0+1}, v{t0+2}, v{t0+2}")
        a(f"v_fmac_f32 v{t0+1}, v{t0+3}, v{t0+3}")
        for k in range(2, 8): a(f"v_add_f32 v{t0}, v{t0}, v{t0+2+k}\nv_fmac_f32 v{t0+1}, v{t0+2+k}, v{t0+2+k}")
        allreduce("v_add_f32", [t0, t0+1], [t0+2, t0+3])
        a(f"""
        v_mul_f32 v{t0}, 0x3b000000, v{t0}
        v_mul_f32 v{t0+1}, 0x3b000000, v{t0+1}
        v_fma_f32 v{t0+1}, -v{t0}, v{t0}, v{t0+1}
        v_add_f32 v{t0}, s46, v{t0}
        v_max_f32 v{t0+1}, 0, v{t0+1}
        """)
        bf16r2(t0, t0+1, t0+2)
        a(f"v_add_f32 v{t0+1}, 0x3727c5ac, v{t0+1}")
        bf16r(t0+1, t0+1)
        a(f"v_sqrt_f32 v{t0+1}, v{t0+1}")
        bf16r(t0+1, t0+1)
        a(f"v_rcp_f32 v{t0+1}, v{t0+1}")
    def round8(x0, t):
        for k in range(4): a(f"v_cvt_pk_bf16_f32 v{t+k}, v{x0+2*k}, v{x0+2*k+1}")
        for k in range(4): unpack(x0 + 2*k, x0 + 2*k + 1, t + k)
    def ln_norm(x0, s0, t):
        for k in range(8): a(f"v_sub_f32 v{x0+k}, v{x0+k}, v{s0}")
        round8(x0, t)
        for k in range(8): a(f"v_mul_f32 v{x0+k}, v{x0+k}, v{s0+1}")
        round8(x0, t)
    def ln_affine(x0, sc8, sh8, t):
        for k in range(8): a(f"v_mul_f32 v{x0+k}, v{x0+k}, v{sc8+k}")
        round8(x0, t)
        for k in range(8): a(f"v_add_f32 v{x0+k}, v{x0+k}, v{sh8+k}")
        for k in range(4): a(f"v_cvt_pk_bf16_f32 v{t+k}, v{x0+2*k}, v{x0+2*k+1}")
    W0 = 32
    def store_tile(dreg, base_s):
        a(f"""
        v_and_b32 v{TC}, 3, v0
        v_lshrrev_b32 v{TA}, 4, v0
        v_lshlrev_b32 v{TA}, 4, v{TA}
        v_lshl_add_u32 v{TA}, v{TC}, 6, v{TA}
        v_mov_b32 v{dreg+5}, {TAG}
        v_mov_b32 v{dreg+7}, {TAG}
        v_cvt_pk_bf16_f32 v{dreg+4}, v{dreg}, v{dreg+1}
        v_cvt_pk_bf16_f32 v{dreg+6}, v{dreg+2}, v{dreg+3}
        s_mov_b32 exec_lo, 0x000f000f
        s_mov_b32 exec_hi, 0x000f000f
        buffer_store_dwordx4 v[{dreg+4}:{dreg+7}], v{TA}, s[48:51], {base_s} offen sc1
        s_mov_b64 exec, -1
        """)
    def phaseA(infl, first):
        CC = 16
        srd(8, P_C, 4096)
        for i in range(4): a(f"buffer_load_dwordx4 v[{CC+4*i}:{CC+4*i+3}], v1, s[8:11], 0 offen offset:{1024*i}")
        srd(8, P_WM, 512 * 6144)
        a("""
        s_lshr_b32 s13, s12, 5
        s_lshl_b32 s13, s13, 3
        s_and_b32 s14, s12, 7
        s_add_u32 s13, s13, s14
        s_lshl_b32 s13, s13, 2
        s_bfe_u32 s14, s12, 0x20003
        s_add_u32 s46, s13, s14
        s_lshl_b32 s13, s46, 5
        """)
        dma_narrow(6144, "s13", L_WM, infl)
        if first: a(BAR0)
        a("s_waitcnt vmcnt(16)")
        if first: stamp(1)
        for i in range(4):
            for k in range(4): unpack(W0 + 2*k, W0 + 2*k + 1, CC + 4*i + k)
            for k in range(8): a(f"v_mul_f32 v{W0+8+k}, {LOG2E}, v{W0+k}")
            for k in range(8): a(f"v_exp_f32 v{W0+8+k}, -v{W0+8+k}")
            for k in range(8): a(f"v_add_f32 v{W0+8+k}, 1.0, v{W0+8+k}")
            for k in range(8): a(f"v_rcp_f32 v{W0+8+k}, v{W0+8+k}")
            for k in range(8): a(f"v_mul_f32 v{W0+k}, v{W0+k}, v{W0+8+k}")
            for k in range(4): a(f"v_cvt_pk_bf16_f32 v{CC+4*i+k}, v{W0+2*k}, v{W0+2*k+1}")
        a(f"v_add_u32 v{TA}, {L_ACT}, v1")
        for i in range(4): a(f"ds_write_b128 v{TA}, v[{CC+4*i}:{CC+4*i+3}] offset:{i*ACT_STRIDE}")
        act_addr(TC, "lo")
        a(f"v_add_u32 v{TB}, {L_WM}, v{TRN}\ns_waitcnt lgkmcnt(0)")
        for s in range(16): a(f"ds_read_b128 v[{64+4*s}:{67+4*s}], v{TC} offset:{s*64}")
        a(MKTAG)
        a(f"s_lshl_b32 s46, s46, 8\ns_add_u32 s46, s46, {WS_MOD}\ns_waitcnt vmcnt(0)")
        if first: stamp(2)
        tr_narrow(128, TB)
        for s in range(16):
            a(f"v_mfma_f32_16x16x32_bf16 v[{W0}:{W0+3}], v[{128+4*s}:{131+4*s}], v[{64+4*s}:{67+4*s}], " + ("0" if s == 0 else f"v[{W0}:{W0+3}]"))
        store_tile(W0, "s46")
        if first: stamp(3)

    a("""
    s_lshr_b32 s12, s2, 6
    s_cmp_eq_u32 s12, 1
    s_cbranch_scc1 L_qgemv
    s_or_b32 s12, s12, s7
    s_cbranch_scc1 L_bar0
    s_mov_b32 s12, s2
    """)
    phaseA(64, True)
    a("s_branch L_getq")
    a("L_qgemv:")
    X8, ST, SA8, CA8 = 24, 32, 40, 48
    a(f"""
    v_lshlrev_b32 v10, 3, v0
    s_lshl_b32 s12, s7, 10
    buffer_load_dwordx2 v[12:13], v10, s[52:55], s12 offen
    buffer_load_dwordx2 v[14:15], v10, s[52:55], s12 offen offset:512
    """)
    srd(8, P_WQ, 512 * 8192)
    a("s_lshl_b32 s13, s7, 20\ns_and_b32 s12, s2, 63\ns_lshl_b32 s12, s12, 7\ns_add_u32 s13, s13, s12\ns_lshl_b32 s14, s7, 15")
    dma_mid("s13", "s14", 64, 8192)
    a(BAR0)
    a("s_waitcnt vmcnt(16)")
    for k in range(4): unpack(X8 + 2*k, X8 + 2*k + 1, 12 + k)
    ln_stats(X8, ST)
    ln_norm(X8, ST, 16)
    a("s_waitcnt vmcnt(0)")
    set_flag(F_WQ, "s7", 16, 17)
    wait_flags("L_wq", F_WQ, 16, 0)
    a(MKTAG)
    stamp(4)
    mid_bases()
    tr_mid(64, 0)
    set_flag(F_WQD, "s7", 16, 17)
    a(f"""
    v_lshrrev_b32 v{TA}, 2, v0
    v_lshlrev_b32 v{TA}, 8, v{TA}
    v_and_b32 v{TB}, 3, v0
    v_lshl_add_u32 v{TA}, v{TB}, 4, v{TA}
    s_lshl_b32 s12, s7, 6
    s_add_u32 s12, s12, {WS_MOD}
    s_add_u32 s13, s12, 0x1000
    s_add_u32 s14, s12, 0x2000
    s_add_u32 s46, s12, 0x3000
    s_mul_i32 s67, s7, {ACT_STRIDE}
    s_add_u32 s67, s67, {L_ACT}
    v_add_u32 v10, s67, v10
    s_and_b32 s67, s2, 63
    s_lshl_b32 s67, s67, 10
    s_lshl_b32 s68, s7, 8
    s_add_u32 s67, s67, s68
    s_add_u32 s67, s67, {WS_Q}
    """)
    act_addr(TC, "lo")
    if gm: wait_flags("L_g1", F_G1, 16, 4)
    G0 = 128
    poll("L_poll_mod", [f"buffer_load_dwordx4 v[{G0+4*i}:{G0+4*i+3}], v{TA}, s[48:51], {sr} offen sc1" for i, sr in enumerate(["s12", "s13", "s14", "s46"])],
         tags_words([G0 + 1 + 2*k for k in range(8)]), sleep=slp)
    stamp(5)
    for k in range(4): unpack(SA8 + 2*k, SA8 + 2*k + 1, G0 + 2*k)
    for k in range(4): unpack(CA8 + 2*k, CA8 + 2*k + 1, G0 + 8 + 2*k)
    for k in range(8): a(f"v_add_f32 v{CA8+k}, 1.0, v{CA8+k}")
    round8(CA8, 16)
    ln_affine(X8, CA8, SA8, 16)
    a("ds_write_b64 v10, v[16:17]\nds_write_b64 v10, v[18:19] offset:512")
    set_flag(F_H, "s7", 20, 21)
    wait_flags("L_h", F_H, 16, 0)
    for s in range(16): a(f"ds_read_b128 v[{128+4*s}:{131+4*s}], v{TC} offset:{s*64}")
    for s in range(16):
        if s in (0, 8): a(f"s_waitcnt lgkmcnt({8 - s})")
        a(f"v_mfma_f32_16x16x32_bf16 v[{W0}:{W0+3}], v[{64+4*s}:{67+4*s}], v[{128+4*s}:{131+4*s}], " + ("0" if s == 0 else f"v[{W0}:{W0+3}]"))
    store_tile(W0, "s67")
    stamp(13)
    a("s_branch L_getq")
    a("L_bar0:")
    a(BAR0)
    a("s_waitcnt lgkmcnt(0)")
    a(MKTAG)
    a("L_getq:")
    a("s_cmp_lg_u32 s7, 2\ns_cbranch_scc1 L_bar1")
    a(f"""
    v_bfe_u32 v{TA}, v0, 2, 3
    v_lshlrev_b32 v{TA}, 8, v{TA}
    v_and_b32 v{TB}, 3, v0
    v_lshl_add_u32 v{TA}, v{TB}, 4, v{TA}
    s_lshl_b32 s12, s4, 11
    s_lshl_b32 s13, s5, 6
    s_add_u32 s12, s12, s13
    s_add_u32 s12, s12, {WS_Q}
    v_and_b32 v{TB}, 31, v0
    v_lshlrev_b32 v{TB}, 3, v{TB}
    v_add_u32 v{TB}, {L_Q}, v{TB}
    """)
    if gq: wait_flags("L_g2", F_G2, 16, 4)
    poll("L_poll_q", [f"buffer_load_dwordx4 v[16:19], v{TA}, s[48:51], s12 offen sc1"], tags_words([17, 19]), sleep=slp)
    a(f"v_mov_b32 v17, v18\nds_write_b64 v{TB}, v[16:17]\ns_waitcnt lgkmcnt(0)")
    a("L_bar1:")
    a("s_barrier")
    stamp(6)
    if ffnA:
        a("s_cmp_lg_u32 s7, 0\ns_cbranch_scc1 L_noA2\ns_cmp_lt_u32 s2, 128\ns_cbranch_scc1 L_noA2\ns_sub_u32 s12, s2, 64")
    else:
        a("""
        s_cmp_lg_u32 s7, 0
        s_cbranch_scc1 L_noA2
        s_add_u32 s12, s2, 64
        s_cmp_lt_u32 s2, 32
        s_cbranch_scc1 L_A2
        s_cmp_lt_u32 s2, 160
        s_cbranch_scc1 L_noA2
        s_sub_u32 s12, s2, 64
        L_A2:
        """)
    phaseA(thrA, False)
    a("L_noA2:")
    wait_flags("L_wf", F_WF, 16, 16)
    srd(8, P_WO, 4096 * 1024)
    a("s_lshl_b32 s13, s4, 17\ns_lshl_b32 s12, s7, 8\ns_add_u32 s13, s13, s12")
    dma_wide(32, 10, "s13", thr)
    a("s_waitcnt vmcnt(0)")
    tr_wide(64, 4)
    a("s_mov_b32 s58, 0x0c0c0400\ns_mov_b32 s59, 0x04000c0c")
    SB, TREG = 10, [4, 5, 6, 14]
    a(f"s_sub_u32 s68, s2, 128\ns_cmp_ge_u32 s68, {NFFN}\ns_cbranch_scc1 L_noffn1")
    srd(8, P_WD, 1792 * 1024)
    a("s_lshl_b32 s13, s68, 16\ns_lshl_b32 s12, s7, 8\ns_add_u32 s13, s13, s12")
    dma_wide(16, 10, "s13", thrF, pace)
    a("s_waitcnt vmcnt(0)")
    tr_wide(192, 2)
    srd(8, P_WG, 512 * 3584)
    a(f"s_lshl_b32 s13, s68, 7\ns_mul_i32 s12, s7, {128*3584}\ns_add_u32 s46, s13, s12\ns_mov_b32 s13, s46\ns_lshl_b32 s14, s7, 15")
    dma_mid("s13", "s14", thrF, 3584, pace)
    srd(8, P_WU, 512 * 3584)
    a("s_mov_b32 s13, s46\ns_add_u32 s14, s14, 0x4000")
    dma_mid("s13", "s14", thrF, 3584, pace)
    a(f"""
    v_lshrrev_b32 v{TA}, 4, v0
    v_and_b32 v{TB}, 3, v0
    v_lshl_add_u32 v{TA}, v{TA}, 2, v{TB}
    v_bfe_u32 v{TB}, v0, 2, 2
    v_lshlrev_b32 v15, 5, v{TA}
    v_lshl_add_u32 v15, v{TB}, 3, v15
    v_lshlrev_b32 v{TA}, 8, v{TA}
    v_lshl_add_u32 v{TA}, v{TB}, 4, v{TA}
    s_lshl_b32 s12, s7, 6
    s_add_u32 s12, s12, {WS_MOD + 96*256}
    s_add_u32 s13, s12, 0x1000
    s_add_u32 s14, s12, 0x2000
    s_add_u32 s46, s12, 0x3000
    """)
    poll("L_poll_sb", [f"buffer_load_dwordx4 v[{16+4*i}:{19+4*i}], v{TA}, s[48:51], {sr} offen sc1" for i, sr in enumerate(["s12", "s13", "s14", "s46"])],
         tags_words([17 + 2*k for k in range(8)]), sleep=16)
    for k in range(4):
        a(f"v_mov_b32 v{SB+k}, v{16+2*k}")
        unpack(32, 33, 24 + 2*k)
        a(f"v_add_f32 v32, 1.0, v32\nv_add_f32 v33, 1.0, v33\nv_cvt_pk_bf16_f32 v{TREG[k]}, v32, v33")
    a("L_noffn1:")
    RX, RGA, RGB = 10, 12, 13
    a("s_cmp_lg_u32 s7, 1\ns_cbranch_scc1 L_nored1\ns_cmp_ge_u32 s2, 128\ns_cbranch_scc1 L_nored1")
    a(f"""
    s_lshr_b32 s68, s2, 5
    s_and_b32 s69, s2, 31
    s_lshr_b32 s12, s69, 2
    s_and_b32 s13, s69, 3
    v_bfe_u32 v{TA}, v0, 2, 2
    v_and_b32 v{TB}, 3, v0
    v_lshlrev_b32 v{DA}, 5, v{TA}
    v_lshl_add_u32 v{DA}, v{TB}, 1, v{DA}
    s_lshl_b32 s14, s12, 7
    s_lshl_b32 s46, s13, 3
    s_add_u32 s14, s14, s46
    s_lshl_b32 s46, s68, 10
    s_add_u32 s71, s14, s46
    buffer_load_ushort v{RX}, v{DA}, s[52:55], s71 offen
    v_lshlrev_b32 v{TA}, 8, v{TA}
    v_lshrrev_b32 v{TC}, 1, v{TB}
    v_lshl_add_u32 v{TA}, v{TC}, 3, v{TA}
    s_lshl_b32 s12, s12, 10
    s_lshl_b32 s13, s13, 4
    s_add_u32 s12, s12, s13
    s_lshl_b32 s13, s68, 6
    s_add_u32 s12, s12, s13
    s_add_u32 s13, s12, {WS_MOD + 160*256}
    s_add_u32 s12, s12, {WS_MOD + 64*256}
    """)
    poll("L_poll_ga", [f"buffer_load_dwordx2 v[16:17], v{TA}, s[48:51], s12 offen sc1", f"buffer_load_dwordx2 v[18:19], v{TA}, s[48:51], s13 offen sc1"],
         tags_words([17, 19]), sleep=16)
    a(f"v_and_b32 v{TB}, 1, v0\nv_cmp_eq_u32 vcc, 1, v{TB}")
    for k in range(2):
        unpack(24, 25, 16 + 2*k)
        a(f"v_cndmask_b32 v{RGA+k}, v24, v25, vcc")
    a(f"v_lshlrev_b32 v{RX}, 16, v{RX}")
    a("L_nored1:")
    stamp(7)
    a("s_cmp_lg_u32 s7, 0\ns_cbranch_scc1 L_nofac")
    wait_flags("L_kd", F_KD, 16, 16)
    q4 = ("quad_perm:[1,0,3,2]", "quad_perm:[2,3,0,1]")
    a(f"""
    v_and_b32 v{TA}, 3, v0
    v_lshlrev_b32 v{TA}, 4, v{TA}
    v_add_u32 v{TA}, {L_FL}, v{TA}
    ds_read_b96 v[24:26], v{TA} offset:{F_ST}
    s_waitcnt lgkmcnt(0)
    v_mov_b32 v20, v24
    v_subrev_u32 v26, s60, v26
    """)
    allreduce("v_max_f32", [20], [], rows_only=True, steps=q4)
    allreduce("v_add_u32", [26], [], rows_only=True, steps=q4)
    a(f"v_sub_f32 v22, v24, v20\nv_mul_f32 v22, {LOG2E}, v22\nv_exp_f32 v22, v22\nv_mul_f32 v22, v25, v22")
    allreduce("v_add_f32", [22], [], rows_only=True, steps=q4)
    a(f"""
    v_lshrrev_b32 v26, 2, v26
    v_add_u32 v26, s60, v26
    v_mov_b32 v27, s60
    v_cmp_eq_u32 vcc, 1, v0
    v_mov_b32 v29, {TAG}
    v_mov_b32 v31, {TAG}
    v_cndmask_b32 v28, v20, v26, vcc
    v_cndmask_b32 v30, v22, v27, vcc
    v_mov_b32 v{TB}, 0
    s_lshl_b32 s12, s15, 7
    s_add_u32 s12, s12, {WS_STATS}
    s_lshl_b32 s13, s6, 5
    s_add_u32 s14, s12, s13
    s_xor_b32 s13, s13, 32
    s_add_u32 s12, s12, s13
    s_mov_b64 exec, 3
    buffer_store_dwordx4 v[28:31], v1, s[48:51], s14 offen sc1
    s_mov_b64 exec, -1
    """)
    wait_flags("L_g3", F_G3, 32, 16)
    poll("L_poll_st", [f"buffer_load_dwordx4 v[16:19], v{TB}, s[48:51], s12 offen sc1"], tags_words([17, 19]), sleep=32)
    a(f"""
    v_max_f32 v17, v16, v20
    v_sub_f32 v16, v16, v17
    v_sub_f32 v20, v20, v17
    v_sub_f32 v24, v24, v17
    v_mul_f32 v16, {LOG2E}, v16
    v_mul_f32 v20, {LOG2E}, v20
    v_mul_f32 v24, {LOG2E}, v24
    v_exp_f32 v16, v16
    v_exp_f32 v20, v20
    v_exp_f32 v24, v24
    v_mul_f32 v16, v16, v18
    v_fmac_f32 v16, v20, v22
    v_rcp_f32 v16, v16
    v_mov_b32 v25, 1
    v_mul_f32 v24, v24, v16
    ds_write_b64 v{TA}, v[24:25] offset:{F_FAC}
    """)
    if ctl:
        a(f"""
        v_bfe_u32 v{TB}, v0, 2, 1
        v_lshl_add_u32 v{TB}, v0, 1, v{TB}
        v_lshlrev_b32 v{TB}, 7, v{TB}
        v_bfe_u32 v{TC}, v0, 3, 1
        v_lshl_add_u32 v{TB}, v{TC}, 5, v{TB}
        s_mov_b32 s12, {WS_STATS + 16}
        """)
        poll("L_poll_tm", [f"buffer_load_dwordx4 v[16:19], v{TB}, s[48:51], s12 offen sc1"], tags_words([17, 19]), sleep=64)
        a("v_sub_u32 v18, v16, v18\nv_subrev_u32 v16, s60, v16")
        allreduce("v_add_u32", [16, 18], [17, 19])
        a(f"""
        v_ashrrev_i32 v16, 6, v16
        v_add_u32 v16, s60, v16
        v_add_u32 v16, {off}, v16
        v_mul_u32_u24 v17, {tauf}, v18
        v_lshrrev_b32 v17, 16, v17
        ds_write_b64 v{TA}, v[16:17] offset:{F_FAC+8}
        """)
    a("L_nofac:")
    AF, DD = 16, 32
    a(f"""
    s_waitcnt vmcnt(0) lgkmcnt(0)
    v_and_b32 v{TB}, 3, v0
    v_mul_u32_u24 v{TB}, {OP_STRIDE}, v{TB}
    v_lshrrev_b32 v{TA}, 4, v0
    v_lshl_add_u32 v{TB}, v{TA}, 4, v{TB}
    v_add_u32 v{TB}, {L_OP}, v{TB}
    v_cmp_eq_u32 s[56:57], 1, v{TA}
    s_lshl_b32 s12, s15, 1
    s_add_u32 s12, s12, s6
    s_lshl_b32 s12, s12, 11
    s_lshl_b32 s13, s7, 9
    s_add_u32 s12, s12, s13
    s_add_u32 s12, s12, {WS_PART1}
    s_and_b32 s60, {TAG}, 0xff
    s_bfe_u32 s61, {TAG}, 0x80008
    s_bfe_u32 s62, {TAG}, 0x80010
    s_lshr_b32 s63, {TAG}, 24
    v_mov_b32 v{TC}, 0xffffff00
    """)
    stamp(8)
    a("s_barrier")
    stamp(9)
    for s in range(4): a(f"ds_read_b128 v[{AF+4*s}:{AF+4*s+3}], v{TB} offset:{64*s}")
    a("s_waitcnt lgkmcnt(0)")
    def gemv_wide(bbase, nk, order=range(8), after=None):
        for t in order:
            for s in range(nk):
                r = bbase + (t * nk + s) * 4
                a(f"v_mfma_f32_16x16x32_bf16 v[{DD+4*t}:{DD+4*t+3}], v[{AF+4*s}:{AF+4*s+3}], v[{r}:{r+3}], " + ("0" if s == 0 else f"v[{DD+4*t}:{DD+4*t+3}]"))
    gemv_wide(64, 4)
    for t in range(8):
        a(f"v_add_f32 v{DD+4*t}, v{DD+4*t}, v{DD+4*t+1}\nv_add_f32 v{DD+4*t+2}, v{DD+4*t+2}, v{DD+4*t+3}")
    for t in range(8): a(f"v_add_f32 v{DD+4*t}, v{DD+4*t}, v{DD+4*t+2}")
    for k in range(4): a(f"v_cndmask_b32 v{16+k}, v{DD+4*k}, v{DD+4*(4+k)}, s[56:57]")
    for k in range(4): a(f"v_and_or_b32 v{16+k}, v{16+k}, v{TC}, s{60+k}")
    a("s_mov_b32 exec_hi, 0\nbuffer_store_dwordx4 v[16:19], v1, s[48:51], s12 offen sc1\ns_mov_b64 exec, -1")
    stamp(10)
    a("s_cmp_lt_u32 s2, 128\ns_cbranch_scc1 L_reducer")
    a(f"s_cmp_ge_u32 s68, {NFFN}\ns_cbranch_scc1 L_hend")
    mid_bases()
    tr_mid(64, 0)
    tr_mid(128, 0x4000)
    SC8, SH8 = 48, 56
    for k in range(4): unpack(SC8 + 2*k, SC8 + 2*k + 1, TREG[k])
    for k in range(4): unpack(SH8 + 2*k, SH8 + 2*k + 1, SB + k)
    act_addr(TC, "hi")
    a(f"""
    s_lshl_b32 s12, s7, 11
    s_add_u32 s12, s12, {WS_X1}
    s_mul_i32 s13, s7, {ACT_STRIDE}
    s_add_u32 s13, s13, {L_ACT}
    v_add_u32 v{TA}, s13, v15
    v_bfe_u32 v15, v0, 2, 2
    v_mul_u32_u24 v15, {GB_STRIDE}, v15
    v_lshrrev_b32 v{TB}, 4, v0
    v_lshl_add_u32 v15, v{TB}, 4, v15
    v_add_u32 v15, {L_GB}, v15
    v_mul_u32_u24 v{TRB}, {GB_STRIDE}, v{TB}
    v_and_b32 v{TRN}, 15, v0
    v_lshl_add_u32 v{TRB}, v{TRN}, 1, v{TRB}
    s_lshl_b32 s13, s7, 5
    s_add_u32 s13, s13, {L_GB}
    v_add_u32 v{TRB}, s13, v{TRB}
    v_lshlrev_b32 v{TB}, 11, v{TB}
    v_lshl_add_u32 v{TRN}, v{TRN}, 4, v{TB}
    v_mov_b32 v14, 0xffffff00
    s_lshl_b32 s13, s68, 13
    s_lshl_b32 s14, s7, 9
    s_add_u32 s13, s13, s14
    s_add_u32 s13, s13, {WS_PART2}
    """)
    poll("L_poll_x1", ["buffer_load_dwordx4 v[16:19], v1, s[48:51], s12 offen sc1", "buffer_load_dwordx4 v[20:23], v1, s[48:51], s12 offen offset:1024 sc1"],
         tags_words([17, 19, 21, 23]))
    stamp(11)
    X2, S2 = 24, 32
    for k in range(4): unpack(X2 + 2*k, X2 + 2*k + 1, 16 + 2*k)
    ln_stats(X2, S2)
    ln_norm(X2, S2, 16)
    ln_affine(X2, SC8, SH8, 16)
    a(f"ds_write_b64 v{TA}, v[16:17]\nds_write_b64 v{TA}, v[18:19] offset:512\ns_waitcnt lgkmcnt(0)\ns_barrier")
    G, U = 48, 52
    for hh in range(2):
        for s in range(8): a(f"ds_read_b128 v[{16+4*s}:{19+4*s}], v{TC} offset:{(8*hh+s)*64}")
        for s in range(8):
            a(f"s_waitcnt lgkmcnt({7-s})")
            k = 8*hh + s
            a(f"v_mfma_f32_16x16x32_bf16 v[{G}:{G+3}], v[{16+4*s}:{19+4*s}], v[{64+4*k}:{67+4*k}], " + ("0" if k == 0 else f"v[{G}:{G+3}]"))
            a(f"v_mfma_f32_16x16x32_bf16 v[{U}:{U+3}], v[{16+4*s}:{19+4*s}], v[{128+4*k}:{131+4*k}], " + ("0" if k == 0 else f"v[{U}:{U+3}]"))
    bf16r2(G, U, 56)
    a(f"""
    v_mul_f32 v56, v{G}, v{G}
    v_mul_f32 v56, 0x3d372713, v56
    v_fma_f32 v56, v56, v{G}, v{G}
    v_mul_f32 v56, 0x40135761, v56
    v_exp_f32 v56, -v56
    v_add_f32 v56, 1.0, v56
    v_rcp_f32 v56, v56
    v_mul_f32 v56, v56, v{G}
    """)
    bf16r(56, 56)
    a(f"""
    v_mul_f32 v56, v56, v{U}
    v_cvt_pk_bf16_f32 v56, v56, v56
    ds_write_b16 v{TRB}, v56
    s_waitcnt lgkmcnt(0)
    s_barrier
    ds_read_b128 v[{AF}:{AF+3}], v15
    ds_read_b128 v[{AF+4}:{AF+7}], v15 offset:64
    s_waitcnt lgkmcnt(0)
    """)
    gemv_wide(192, 2)
    for g in range(2):
        for k in range(4): a(f"v_and_or_b32 v{24+4*g+k}, v{DD+4*(4*g+k)}, v14, s{60+k}")
        a(f"buffer_store_dwordx4 v[{24+4*g}:{27+4*g}], v{TRN}, s[48:51], s13 offen offset:{256*g} sc1")
    stamp(12)
    a("s_branch L_hend")
    a("L_reducer:")
    a("s_cmp_lg_u32 s7, 1\ns_cbranch_scc1 L_hend")
    a(f"""
    v_lshrrev_b32 v{TA}, 2, v0
    v_and_b32 v{TB}, 3, v0
    v_lshlrev_b32 v{DB}, 13, v{TA}
    v_lshlrev_b32 v{TA}, 11, v{TA}
    v_lshl_add_u32 v{TA}, v{TB}, 4, v{TA}
    v_lshl_add_u32 v{DB}, v{TB}, 4, v{DB}
    v_lshlrev_b32 v{TB}, 2, v0
    s_lshl_b32 s46, s69, 6
    s_lshl_b32 s12, s68, 17
    s_add_u32 s12, s12, s46
    s_add_u32 s12, s12, {WS_PART1}
    s_add_u32 s13, s12, 0x8000
    s_add_u32 s14, s12, 0x10000
    s_add_u32 s67, s12, 0x18000
    """)
    poll("L_poll_p1", [f"buffer_load_dwordx4 v[{16+4*i}:{19+4*i}], v{TA}, s[48:51], {sr} offen sc1" for i, sr in enumerate(["s12", "s13", "s14", "s67"])],
         tags_bytes([16, 20, 24, 28], 32))
    stamp(11)
    def colsum(n):
        st_ = 1
        while st_ < n:
            for i in range(0, n, 2*st_):
                for k in range(4): a(f"v_add_f32 v{16+4*i+k}, v{16+4*i+k}, v{16+4*(i+st_)+k}")
            st_ *= 2
        a("""
        v_add_f32_dpp v20, v16, v16 row_ror:8 row_mask:0xf bank_mask:0x3
        v_add_f32_dpp v21, v17, v17 row_ror:8 row_mask:0xf bank_mask:0x3
        v_add_f32_dpp v20, v18, v18 row_ror:8 row_mask:0xf bank_mask:0xc
        v_add_f32_dpp v21, v19, v19 row_ror:8 row_mask:0xf bank_mask:0xc
        v_add_f32_dpp v16, v20, v20 row_shl:4 row_mask:0xf bank_mask:0x5
        v_add_f32_dpp v16, v21, v21 row_shr:4 row_mask:0xf bank_mask:0xa
        """)
        allreduce("v_add_f32", [16], [17], steps=())
    def resid(gate):
        bf16r(16, 16)
        a(f"v_mul_f32 v16, v16, v{gate}")
        bf16r(16, 16)
        a(f"v_add_f32 v16, v16, v{RX}")
    colsum(4)
    resid(RGA)
    a(f"""
    v_mov_b32_dpp v17, v16 quad_perm:[1,1,1,1] {FULL}
    v_mov_b32_dpp v18, v16 quad_perm:[2,2,2,2] {FULL}
    v_mov_b32_dpp v19, v16 quad_perm:[3,3,3,3] {FULL}
    s_lshl_b32 s12, s68, 11
    s_add_u32 s12, s12, s46
    s_add_u32 s13, s12, {WS_X1}
    v_mov_b32 v21, {TAG}
    v_mov_b32 v23, {TAG}
    v_cvt_pk_bf16_f32 v20, v16, v17
    v_cvt_pk_bf16_f32 v22, v18, v19
    s_mov_b64 exec, 0x1111
    buffer_store_dwordx4 v[20:23], v{TB}, s[48:51], s13 offen sc1
    s_mov_b64 exec, -1
    """)
    stamp(12)
    bf16r(RX, 16)
    a(f"""
    s_add_u32 s12, s12, {WS_PART2}
    s_add_u32 s13, s12, 0x20000
    v_mov_b32 v20, s60
    v_mov_b32 v21, s61
    v_mov_b32 v22, s62
    v_mov_b32 v23, s63
    """)
    srd(52, P_OUT, 4096)
    poll("L_poll_p2", [f"buffer_load_dwordx4 v[16:19], v{DB}, s[48:51], s12 offen sc1", "s_mov_b32 exec_hi, 0xffff",
                       f"buffer_load_dwordx4 v[20:23], v{DB}, s[48:51], s13 offen sc1"],
         tags_bytes([16, 20], 32), post="s_mov_b64 exec, -1")
    stamp(13)
    colsum(2)
    resid(RGB)
    a(f"""
    v_cvt_pk_bf16_f32 v16, v16, v16
    s_mov_b64 exec, 0xffff
    buffer_store_short v16, v{DA}, s[52:55], s71 offen
    s_cmp_lg_u32 s2, 0
    s_cbranch_scc1 L_hend
    s_mov_b64 exec, 1
    v_mov_b32 v17, {TAG}
    v_mov_b32 v18, 0
    buffer_store_dword v17, v18, s[48:51], 0 offen sc1
    """)
    a("L_hend:")
    stamp(14)
    dump_stamps(15)
    a("L_end:")
    a("s_endpgm")
    a('.section .rodata,"a"')
    a(".p2align 6")
    a(f".amdhsa_kernel {NAME}_kernel")
    a("""
    .amdhsa_next_free_vgpr 256
    .amdhsa_next_free_sgpr 102
    .amdhsa_accum_offset 256
    .amdhsa_group_segment_fixed_size 0
    .amdhsa_kernarg_size 112
    .amdhsa_user_sgpr_count 2
    .amdhsa_user_sgpr_kernarg_segment_ptr 1
    .amdhsa_system_sgpr_workgroup_id_x 1
    .amdhsa_float_denorm_mode_32 3
    .end_amdhsa_kernel
    """)
    return out + a.text()

if __name__ == "__main__":
    kw = eval("dict(" + (sys.argv[2] if len(sys.argv) > 2 else "") + ")")
    open(sys.argv[1], "w").write(gen(**kw))
```

```python
import sys
from asmlib import Asm

NAME = "adaLN_cond__mha_block_cached__geglu_ffn__decode"
WS_MOD = 0x1000
WS_Q = 0x10000
WS_STATS = 0x20000
WS_X1 = 0x28000
WS_PART2 = 0x40000
WS_PART1 = 0x80000
WS_FAST = 0
WS_XCC = 0x30000
WS_TM, TMSTR = 0x280000, 4352
WS_DBG, WS_SIZE = 0x200000, 0x400000
L_W, L_ACT, L_Q, L_OP, L_GB, L_FL = 0, 0x20000, 0x21200, 0x21400, 0x21A00, 0x21E00
ACT_STRIDE, OP_STRIDE, GB_STRIDE = 1088, 320, 192
LDS_BYTES = 0x22200
F_FAC, F_KD, F_WF, F_WQ, F_WQD, F_H, F_G1, F_G2, F_ST, F_TT = 0, 64, 80, 96, 112, 128, 144, 160, 192, 256
NFFN = 28
SPIN_MAX = 400000
P_X, P_K, P_V, P_WQ, P_WO, P_WG, P_WU, P_WD, P_C, P_WM, P_OUT, P_WS = 16, 18, 20, 22, 24, 28, 30, 32, 34, 36, 38, 42
TAG = "s45"
LOG2E, SCALE, HIMASK = "s64", "s65", "s66"

def gen(D=5, A=8, E=4, P=48, PL=32, DP=5, D2=7, NE=1, thr=2, thrA=2, thrF=3, thrQ=3, thrD=2, slp=16, diag=False,
        levels=((4,-50),(5,30),(6,100),(7,None)), f1=0.147, f2=0.955, f3=0.995, m3=8, lagK=2, lagV=2, lag3=1, gq=40, gm=20,
        kctl=True, fast=True, fpol='', touch=10, touch1=False, dry=True, lastctl=True, skip=''):
    a = Asm()
    def stamp(k):
        if diag: a(f"s_memrealtime s[{72+2*k}:{73+2*k}]")
    def srd(reg, ptr, nbytes):
        a(f"s_mov_b32 s{reg}, s{ptr}\ns_mov_b32 s{reg+1}, s{ptr+1}\ns_mov_b32 s{reg+2}, {nbytes}\ns_mov_b32 s{reg+3}, 0x20000")
    def dump_stamps(n):
        if not diag: return
        a("s_waitcnt lgkmcnt(0)")
        a("s_mov_b64 exec, 1")
        a("s_lshl_b32 s46, s2, 3\ns_add_u32 s46, s46, s3\ns_lshl_b32 s46, s46, 6")
        a(f"s_add_u32 s46, s46, {WS_DBG}")
        a("v_mov_b32 v1, 0")
        for k in range(n):
            a(f"v_mov_b32 v2, s{72+2*k}")
            a(f"buffer_store_dword v2, v1, s[48:51], s46 offen offset:{4*k}")
    FULL = "row_mask:0xf bank_mask:0xf"
    def allreduce(op, rs, tmps, rows_only=False, steps=("quad_perm:[1,0,3,2]", "quad_perm:[2,3,0,1]", "row_half_mirror", "row_mirror")):
        for st in steps:
            for r in rs: a(f"{op}_dpp v{r}, v{r}, v{r} {st} {FULL}")
        if rows_only: return
        for sw in ("v_permlane16_swap_b32", "v_permlane32_swap_b32"):
            for r, t in zip(rs, tmps): a(f"v_mov_b32 v{t}, v{r}")
            for r, t in zip(rs, tmps): a(f"{sw} v{r}, v{t}")
            for r, t in zip(rs, tmps): a(f"{op} v{r}, v{r}, v{t}")
    def bf16r(d, s):
        a(f"v_cvt_pk_bf16_f32 v{d}, v{s}, v{s}\nv_and_b32 v{d}, {HIMASK}, v{d}")
    def bf16r2(lo, hi, t):
        a(f"v_cvt_pk_bf16_f32 v{t}, v{lo}, v{hi}\nv_lshlrev_b32 v{lo}, 16, v{t}\nv_and_b32 v{hi}, {HIMASK}, v{t}")
    def unpack(lo, hi, s):
        a(f"v_lshlrev_b32 v{lo}, 16, v{s}\nv_and_b32 v{hi}, {HIMASK}, v{s}")
    def spin_begin(): a("s_mov_b32 s70, 0")
    def spin_check(): a(f"s_add_u32 s70, s70, 1\ns_cmp_gt_u32 s70, {SPIN_MAX}\ns_cbranch_scc1 L_end")
    MKTAG = "s_mul_i32 s45, s44, 1664525\ns_add_u32 s45, s45, 1013904223"
    BAR0 = "s_waitcnt lgkmcnt(0)\ns_barrier\ns_load_dword s44, s[42:43], 0"
    def set_flag(row, widx, va, vb):
        a(f"s_lshl_b32 s47, {widx}, 2\ns_add_u32 s47, s47, {L_FL+row}\nv_mov_b32 v{va}, s47\nv_mov_b32 v{vb}, 1\nds_write_b32 v{va}, v{vb}")
    def wait_flags(lbl, row, t, sleep):
        spin_begin()
        a(f"v_mov_b32 v{t+4}, {L_FL+row}")
        a(f"{lbl}:")
        spin_check()
        if sleep: a(f"s_sleep {sleep}")
        a(f"""
        ds_read_b128 v[{t}:{t+3}], v{t+4}
        s_waitcnt lgkmcnt(0)
        v_and_b32 v{t}, v{t}, v{t+1}
        v_and_b32 v{t+2}, v{t+2}, v{t+3}
        v_and_b32 v{t}, v{t}, v{t+2}
        v_readfirstlane_b32 s47, v{t}
        s_cmp_eq_u32 s47, 1
        s_cbranch_scc0 {lbl}
        """)

    hdr = open("cdna_kernels/" + NAME + ".s.ref").read().split("; Override launch")[0]
    out = hdr + f"; @launch grid=(256,1,1) block=(512,1,1) lds={LDS_BYTES}\n"
    a('.amdgcn_target "amdgcn-amd-amdhsa--gfx950"')
    a(".text")
    a(f".globl {NAME}_kernel")
    a(".p2align 8")
    a(f".type {NAME}_kernel,@function")
    a(f"{NAME}_kernel:")
    a("""
    s_cmp_ge_u32 s2, 256
    s_cbranch_scc1 L_end
    s_load_dwordx16 s[16:31], s[0:1], 0
    s_load_dwordx8 s[32:39], s[0:1], 64
    s_load_dwordx4 s[40:43], s[0:1], 96
    """)
    if diag:
        for k in range(1, 15): a(f"s_mov_b32 s{72+2*k}, 0")
    stamp(0)
    a("""
    v_lshrrev_b32 v1, 6, v0
    v_and_b32 v0, 63, v0
    v_readfirstlane_b32 s3, v1
    v_lshlrev_b32 v1, 4, v0
    s_lshr_b32 s12, s2, 3
    s_and_b32 s4, s12, 3
    s_lshl_b32 s4, s4, 3
    s_and_b32 s13, s2, 7
    s_add_u32 s4, s4, s13
    s_bfe_u32 s5, s12, 0x20002
    s_lshr_b32 s6, s12, 4
    s_mov_b32 s64, 0x3fb8aa3b
    s_mov_b32 s65, 0x3db504f3
    s_mov_b32 s66, 0xffff0000
    s_lshl_b32 s15, s5, 5
    s_add_u32 s15, s15, s4
    s_cmp_ge_u32 s3, 4
    s_cbranch_scc1 L_helper
    """)

    Q, MK, BB, ACC, PT, XX, YY, T0, T1, SC, RING = 2, 6, 10, 14, 18, 34, 42, 46, 47, 48, 64
    a("""
    s_lshl_b32 s13, s15, 21
    s_lshl_b32 s14, s6, 20
    s_add_u32 s13, s13, s14
    s_lshl_b32 s14, s3, 12
    s_add_u32 s13, s13, s14
    s_mov_b32 s12, s13
    s_lshl_b32 s14, s3, 15
    s_waitcnt lgkmcnt(0)
    s_mov_b32 s0, 0
    """)
    srd(8, P_K, 0x10000000)
    st = {"issued": 0, "landed": 0}
    PT_ = P + PL
    assert P % 4 == 0 and PL <= 32
    def ldsoff(n): return ((n - P + 16) % 32) * 1024
    def slot(n):
        if n < P: return RING + 4 * n
        if n < PT_: return RING + 4 * (16 + n - P)
        return RING + 4 * ((n - PT_) % 16)
    def issue(n):
        if P <= n < PT_:
            if n & 3 == 0: a(f"s_add_u32 m0, s14, {ldsoff(n)}")
            a(f"buffer_load_dwordx4 v1, s[8:11], s12 offen offset:{(n&3)*1024} nt lds")
        else:
            r = slot(n)
            a(f"buffer_load_dwordx4 v[{r}:{r+3}], v1, s[8:11], s12 offen offset:{(n&3)*1024} nt")
        if n & 3 == 3: a("s_add_u32 s12, s12, 0x4000")
        st["issued"] = n + 1
    def throttle(d=None):
        d = d or D
        a(f"s_waitcnt vmcnt({d-1})")
        st["landed"] = max(st["landed"], st["issued"] - (d - 1))
    def ensure(n):
        if n >= st["landed"]:
            k = st["issued"] - 1 - n
            a(f"s_waitcnt vmcnt({k})"); st["landed"] = n + 1
    for n in range(PT_):
        if n == P + 16: wait_flags("L_wqd", F_WQD, PT, 0)
        if n >= DP: throttle(DP)
        issue(n)
        if n == DP - 1:
            srd(48, P_WS, WS_SIZE)
            a(f"""
            s_mov_b32 s60, 0xaaaaaaaa
            s_mov_b32 s61, 0xaaaaaaaa
            s_mov_b32 s62, 0xcccccccc
            s_mov_b32 s63, 0xcccccccc
            v_and_b32 v{T0}, 15, v0
            v_and_b32 v{T1}, 1, v0
            v_lshlrev_b32 v{T1}, 4, v{T1}
            v_mov_b32 v{PT}, 0xffff
            v_lshlrev_b32 v{T1}, v{T1}, v{PT}
            v_lshrrev_b32 v{PT}, 1, v{T0}
            """)
            for t in range(4):
                a(f"v_cmp_eq_u32 vcc, {t}, v{PT}\nv_cndmask_b32 v{MK+t}, 0, v{T1}, vcc")
            for t in range(4): a(f"v_mov_b32 v{ACC+t}, 0")
            a(f"v_lshlrev_b32 v{T0}, 4, v{T0}\nv_add_u32 v{T0}, {L_Q}, v{T0}")
            a("s_barrier")
        if n == gm: set_flag(F_G1, "s3", PT, PT+1)
        if n == gq: set_flag(F_G2, "s3", PT, PT+1)
    stamp(1)
    a("s_barrier")
    stamp(2)
    a(f"ds_read_b128 v[{Q}:{Q+3}], v{T0}\nv_add_u32 v{T0}, s14, v1\ns_waitcnt lgkmcnt(0)")
    def kdots(n):
        r = slot(n); p = PT + n % 16
        a(f"v_dot2_f32_bf16 v{p}, v{r}, v{Q}, 0")
        for i in range(1, 4): a(f"v_dot2_f32_bf16 v{p}, v{r+i}, v{Q+i}, v{p}")
    def kreduce(dst):
        for j in range(8): a(f"v_add_f32_dpp v{XX+j}, v{PT+j}, v{PT+j} row_ror:8 row_mask:0xf bank_mask:0x3")
        for j in range(8): a(f"v_add_f32_dpp v{XX+j}, v{PT+8+j}, v{PT+8+j} row_ror:8 row_mask:0xf bank_mask:0xc")
        for j in range(4): a(f"v_add_f32_dpp v{YY+j}, v{XX+j}, v{XX+j} row_half_mirror row_mask:0xf bank_mask:0x5")
        for j in range(4): a(f"v_add_f32_dpp v{YY+j}, v{XX+4+j}, v{XX+4+j} row_half_mirror row_mask:0xf bank_mask:0xa")
        for j in range(2):
            a(f"v_cndmask_b32 v{XX+2*j}, v{YY+j+2}, v{YY+j}, s[62:63]")
            a(f"v_cndmask_b32 v{XX+2*j+1}, v{YY+j}, v{YY+j+2}, s[62:63]")
        for j in range(2):
            a(f"v_add_f32_dpp v{XX+4+j}, v{XX+2*j}, v{XX+2*j+1} quad_perm:[2,3,0,1] {FULL}")
        a(f"v_cndmask_b32 v{XX}, v{XX+5}, v{XX+4}, s[60:61]")
        a(f"v_cndmask_b32 v{XX+1}, v{XX+4}, v{XX+5}, s[60:61]")
        a(f"v_add_f32_dpp v{XX+2}, v{XX}, v{XX+1} quad_perm:[1,0,3,2] {FULL}")
        bf16r(XX+2, XX+2)
        a(f"v_mul_f32 v{XX+2}, {SCALE}, v{XX+2}")
        bf16r(dst, XX+2)
    tgt = -(-(PT_ + 16 - A + 4) // 16) * 16
    NPEEL = tgt // 16
    KL = 16 - NPEEL
    cons = {"n": 0}
    def consume_k_upto(m):
        while cons["n"] < m:
            n = cons["n"]
            if n == P:
                a("s_waitcnt lgkmcnt(0)")
                set_flag(F_WF, "s3", T0, T1)
            ensure(n); kdots(n); cons["n"] += 1
            m2 = n - 16 + P
            if n >= 16 and P <= m2 < PT_:
                ensure(m2)
                r = slot(m2)
                a(f"ds_read_b128 v[{r}:{r+3}], v{T0} offset:{ldsoff(m2)}")
            if n % 16 == 15: kreduce(SC + n // 16 + KL)
    nsteps = tgt + A - PT_
    for s in range(nsteps):
        n = PT_ + s
        prev = s if s < 16 else n - 16
        if s <= 16: want = 1 + -(-PT_ * s // 16)
        else: want = PT_ + 1 + -(-(tgt - PT_ - 1) * (s - 16) // (nsteps - 16))
        want = min(want, max(st["landed"], PT_))
        consume_k_upto(min(max(want, prev + 1), tgt))
        throttle(); issue(n)
    a("s_memrealtime s[52:53]")
    consume_k_upto(tgt)
    FA, FAD, TTA, TTV = 128, 132, 133, 134
    LV = [x[0] for x in levels]
    a(f"""
    s_mov_b32 s14, 0
    s_mov_b32 s56, 0
    s_lshl_b32 s47, s3, 4
    s_add_u32 s47, s47, {L_FL+F_FAC}
    v_mov_b32 v{FAD}, s47
    s_lshl_b32 s47, s3, 2
    s_add_u32 s47, s47, {L_FL+F_TT}
    v_mov_b32 v{TTA}, s47
    v_mov_b32 v{FA+3}, 0
    """)
    def record():
        a(f"""
        s_waitcnt lgkmcnt(0)
        s_or_b32 s53, s52, 1
        v_mov_b32 v{TTV}, s53
        ds_write_b32 v{TTA}, v{TTV}
        v_add_u32 v{TTA}, 16, v{TTA}
        """)
    def dispatch(pre):
        a(f"""
        v_readfirstlane_b32 s55, v{FA+3}
        v_readfirstlane_b32 s54, v{FA+2}
        s_cmp_eq_u32 s55, 0
        s_cbranch_scc1 {pre}{D}
        s_mul_i32 s55, s55, s56
        s_lshr_b32 s55, s55, 4
        s_sub_u32 s52, s52, s54
        s_sub_u32 s52, s52, s55
        """)
        for dd, th in levels:
            if th is None: a(f"s_branch {pre}{dd}")
            else: a(f"s_cmp_lt_i32 s52, {th}\ns_cbranch_scc1 {pre}{dd}")
    a("L_kdisp:")
    record()
    a(f"s_cmp_ge_u32 s14, {KL}\ns_cbranch_scc1 L_kdone")
    if kctl: dispatch("L_k")
    for dd in (LV if kctl else [D]):
        assert dd <= A
        a(f"L_k{dd}:")
        a(f"ds_read_b128 v[{FA}:{FA+3}], v{FAD}")
        for j in range(16):
            n = tgt + j
            a(f"s_waitcnt vmcnt({dd-1})")
            if j == 16 - A:
                a(f"s_cmp_eq_u32 s14, {KL-1}\ns_cselect_b32 s8, s{P_V}, s8\ns_cselect_b32 s9, s{P_V+1}, s9\ns_cselect_b32 s12, s13, s12")
            issue(n + A)
            if j == 15: a("s_memrealtime s[52:53]")
            kdots(n)
            if j == 7:
                for i in range(15): a(f"v_mov_b32 v{SC+i}, v{SC+i+1}")
        kreduce(SC + 15)
        a("s_add_u32 s14, s14, 1\ns_add_u32 s56, s56, 4\ns_branch L_kdisp")
    a("L_kdone:")
    stamp(3)
    ex = {"n": 256 + A}
    def extra():
        if ex["n"] < 256 + A + E:
            a(f"s_waitcnt vmcnt({D-1})"); issue(ex["n"]); ex["n"] += 1
    extra()
    M, Ls = PT, PT + 1
    a(f"v_max3_f32 v{M}, v{SC}, v{SC+1}, v{SC+2}")
    for i in range(3, 15, 2): a(f"v_max3_f32 v{M}, v{M}, v{SC+i}, v{SC+i+1}")
    a(f"v_max_f32 v{M}, v{M}, v{SC+15}")
    allreduce("v_max_f32", [M], [T0])
    a(f"v_mul_f32 v{T1}, {LOG2E}, v{M}")
    extra()
    for i in range(16): a(f"v_fma_f32 v{SC+i}, v{SC+i}, {LOG2E}, -v{T1}")
    for i in range(16): a(f"v_exp_f32 v{SC+i}, v{SC+i}")
    extra()
    a(f"v_add_f32 v{Ls}, v{SC}, v{SC+1}\nv_add_f32 v{Ls+1}, v{SC+2}, v{SC+3}")
    for i in range(4, 16, 2): a(f"v_add_f32 v{Ls}, v{Ls}, v{SC+i}\nv_add_f32 v{Ls+1}, v{Ls+1}, v{SC+i+1}")
    a(f"v_add_f32 v{Ls}, v{Ls}, v{Ls+1}")
    for i in range(16): a(f"v_cvt_pk_bf16_f32 v{SC+i}, v{SC+i}, v{SC+i}")
    extra()
    allreduce("v_add_f32", [Ls], [T0])
    a(f"ds_write_b64 v{FAD}, v[{M}:{Ls}] offset:{F_ST-F_FAC}")
    set_flag(F_KD, "s3", PT+5, PT+6)
    while ex["n"] < 256 + A + E: extra()
    a("s_memrealtime s[52:53]")
    AV = A + E
    assert AV <= 15
    a(f"""
    v_lshrrev_b32 v{PT}, 4, v0
    v_lshlrev_b32 v{PT}, 6, v{PT}
    v_and_b32 v{PT+1}, 15, v0
    v_lshl_add_u32 v{PT}, v{PT+1}, 1, v{PT}
    s_mul_i32 s46, s3, {OP_STRIDE}
    s_add_u32 s46, s46, {L_OP}
    v_add_u32 v{PT}, s46, v{PT}
    s_mov_b32 s14, 0
    s_add_u32 s56, s56, {E//4}
    s_waitcnt lgkmcnt(0)
    """)
    def vbody(dd, last, timed):
        assert dd <= AV
        a(f"ds_read_b128 v[{FA}:{FA+3}], v{FAD}")
        for j in range(16):
            n = 256 + j
            for t in range(4): a(f"v_and_b32_dpp v{BB+t}, v{SC}, v{MK+t} row_newbcast:{j} {FULL}")
            a(f"s_waitcnt vmcnt({dd-1})")
            if j == 16 - AV and last:
                a("s_cmp_eq_u32 s14, 15\ns_cselect_b32 s10, 0, s10")
            issue(n + AV)
            r = slot(n)
            if j == 15 and timed: a("s_memrealtime s[52:53]")
            a(f"v_mfma_f32_16x16x32_bf16 v[{ACC}:{ACC+3}], v[{r}:{r+3}], v[{BB}:{BB+3}], v[{ACC}:{ACC+3}]")
        if lastctl: a("s_cmp_eq_u32 s14, 15\ns_cbranch_scc1 L_sepi")
        for i in range(15): a(f"v_mov_b32 v{SC+i}, v{SC+i+1}")
        a("s_add_u32 s14, s14, 1\ns_add_u32 s56, s56, 4")
    assert NE >= 1
    a("s_branch L_vd1")
    a("L_vdisp:")
    if lastctl:
        record()
    else:
        record()
        a(f"s_cmp_ge_u32 s14, {16-NE}\ns_cbranch_scc1 L_vlast")
    a("L_vd1:")
    dispatch("L_v")
    for dd in LV:
        a(f"L_v{dd}:")
        vbody(dd, lastctl, True)
        a("s_branch L_vdisp")
    if not lastctl:
        a("L_vlast:")
        vbody(D2, True, False)
        a("s_cmp_lt_u32 s14, 16\ns_cbranch_scc1 L_vlast")
    a("L_sepi:")
    a("s_nop 7")
    stamp(4)
    spin_begin()
    a("L_facspin:")
    a(f"s_waitcnt lgkmcnt(0)\nv_readfirstlane_b32 s46, v{FA+1}\ns_cmp_eq_u32 s46, 1\ns_cbranch_scc1 L_facok")
    spin_check()
    a(f"ds_read_b128 v[{FA}:{FA+3}], v{FAD}\ns_branch L_facspin")
    a("L_facok:")
    for t in range(4): a(f"v_mul_f32 v{ACC+t}, v{ACC+t}, v{FA}")
    a(f"v_cvt_pk_bf16_f32 v{ACC}, v{ACC}, v{ACC+1}\nv_cvt_pk_bf16_f32 v{ACC+2}, v{ACC+2}, v{ACC+3}")
    a(f"""
    s_mov_b32 exec_lo, 0x00ff00ff
    s_mov_b32 exec_hi, 0x00ff00ff
    ds_write_b16 v{PT}, v{ACC}
    ds_write_b16_d16_hi v{PT}, v{ACC} offset:16
    ds_write_b16 v{PT}, v{ACC+2} offset:32
    ds_write_b16_d16_hi v{PT}, v{ACC+2} offset:48
    s_waitcnt lgkmcnt(0)
    """)
    if dry: a("s_cmp_eq_u32 s0, 1\ns_cbranch_scc1 L_tail0")
    a("s_barrier")
    stamp(5)
    dump_stamps(6)
    a("s_endpgm")

    a("L_helper:")
    TRB, DA, DB, DN, TA, TB, TC = 2, 4, 5, 6, 7, 8, 9
    a(f"""
    s_memrealtime s[60:61]
    s_sub_u32 s7, s3, 4
    """)
    def lane_consts():
        a(f"""
        v_lshrrev_b32 v{TA}, 4, v0
        v_bfe_u32 v{TB}, v0, 2, 2
        v_and_b32 v{TC}, 3, v0
        v_lshl_add_u32 v{TRB}, v{TA}, 3, v{TB}
        v_lshlrev_b32 v{TRB}, 8, v{TRB}
        v_lshl_add_u32 v{TRB}, v{TC}, 3, v{TRB}
        v_and_b32 v{TC}, 1, v{TA}
        v_lshl_add_u32 v{TB}, v{TC}, 2, v{TB}
        v_lshl_add_u32 v{TRB}, v{TB}, 5, v{TRB}
        s_lshl_b32 s12, s7, 15
        v_add_u32 v{TRB}, s12, v{TRB}
        v_and_b32 v{TB}, 15, v0
        v_lshlrev_b32 v{TC}, 1, v{TA}
        v_xor_b32 v{TB}, v{TB}, v{TC}
        v_lshlrev_b32 v{DN}, 4, v{TB}
        """)
    lane_consts()
    a(f"""
    s_lshr_b32 s69, s2, 3
    s_and_b32 s12, s2, 7
    s_mov_b32 s68, 4
    s_cmp_lt_u32 s69, {NFFN}
    s_cselect_b32 s68, 5, s68
    s_cmp_eq_u32 s12, 0
    s_cbranch_scc1 L_role
    s_mul_i32 s69, s69, 7
    s_add_u32 s69, s69, s12
    s_sub_u32 s69, s69, 1
    s_mov_b32 s68, 1
    s_cmp_lt_u32 s69, 16
    s_cbranch_scc1 L_role
    s_sub_u32 s69, s69, 16
    s_mov_b32 s68, 3
    s_cmp_lt_u32 s69, 64
    s_cbranch_scc1 L_role
    s_sub_u32 s69, s69, 48
    s_mov_b32 s68, 2
    s_cmp_lt_u32 s69, 48
    s_cbranch_scc1 L_role
    s_mov_b32 s68, 0
    L_role:
    """)
    a(f"""
    s_cmp_lg_u32 s7, 3
    s_cbranch_scc1 L_noinit
    s_and_b32 s12, s68, 1
    s_xor_b32 s12, s12, 1
    v_cmp_eq_u32 vcc, {F_WQD//16}, v0
    v_mov_b32 v17, s12
    v_cndmask_b32 v16, 0, v17, vcc
    v_mov_b32 v17, v16
    v_mov_b32 v18, v16
    v_mov_b32 v19, v16
    v_add_u32 v20, {L_FL}, v1
    ds_write_b128 v20, v[16:19]
    L_noinit:
    s_waitcnt lgkmcnt(0)
    s_mov_b32 s0, 0
    s_mov_b32 s71, 0
    s_mov_b32 s58, 0x0c0c0400
    s_mov_b32 s59, 0x04000c0c
    """)
    srd(48, P_WS, WS_SIZE)
    def dma_wide(nins, rs_log2, soff, infl, hooks={}):
        a(f"v_lshrrev_b32 v{TA}, 4, v0\nv_lshl_add_u32 v{DA}, v{TA}, {rs_log2}, v{DN}\nv_xor_b32 v{DB}, 0x80, v{DA}")
        a("s_lshl_b32 s14, s7, 15")
        for i in range(nins):
            a("s_mov_b32 m0, s14" if i == 0 else "s_add_u32 m0, m0, 0x400")
            if i: a(f"s_add_u32 {soff}, {soff}, {4 << rs_log2}")
            a(f"buffer_load_dwordx4 v{DB if (i >> 1) & 1 else DA}, s[8:11], {soff} offen nt lds")
            if i in hooks: hooks[i]()
            if i >= infl - 1: a(f"s_waitcnt vmcnt({infl-1})")
    def dma_mid(soff, ldsbase, infl, rs, hooks={}):
        a(f"""
        v_lshrrev_b32 v{DA}, 3, v0
        v_mul_u32_u24 v{DA}, {rs}, v{DA}
        v_bfe_u32 v{DB}, v0, 4, 1
        v_lshlrev_b32 v{DB}, 1, v{DB}
        v_and_b32 v{TA}, 7, v0
        v_xor_b32 v{DB}, v{DB}, v{TA}
        v_lshl_add_u32 v{DA}, v{DB}, 4, v{DA}
        v_xor_b32 v{DB}, 64, v{DA}
        """)
        for i in range(16):
            a(f"s_mov_b32 m0, {ldsbase}" if i == 0 else "s_add_u32 m0, m0, 0x400")
            if i: a(f"s_add_u32 {soff}, {soff}, {8*rs}")
            a(f"buffer_load_dwordx4 v{DB if i & 1 else DA}, s[8:11], {soff} offen nt lds")
            if i in hooks: hooks[i]()
            if i >= infl - 1: a(f"s_waitcnt vmcnt({infl-1})")
    def mid_bases():
        a(f"""
        v_lshrrev_b32 v{TB}, 4, v0
        v_bfe_u32 v{TC}, v0, 2, 2
        v_lshl_add_u32 v{TA}, v{TB}, 3, v{TC}
        v_lshlrev_b32 v{TA}, 7, v{TA}
        v_and_b32 v{TB}, 1, v{TB}
        v_lshrrev_b32 v{TC}, 1, v{TC}
        v_lshl_add_u32 v{TB}, v{TB}, 1, v{TC}
        v_xor_b32 v{TB}, s7, v{TB}
        v_lshl_add_u32 v{TA}, v{TB}, 5, v{TA}
        v_and_b32 v{TB}, 3, v0
        v_lshl_add_u32 v{TA}, v{TB}, 3, v{TA}
        v_add_u32 v{TB}, 0x10000, v{TA}
        """)
    def tr_mid(dst, off):
        for s in range(16):
            r = dst + 4 * s
            ar = TA if s < 8 else TB
            o = off + ((s >> 2) & 1) * 0x8000 + (s & 3) * 4096
            a(f"ds_read_b64_tr_b16 v[{r}:{r+1}], v{ar} offset:{o}")
            a(f"ds_read_b64_tr_b16 v[{r+2}:{r+3}], v{ar} offset:{o+512}")
        a("s_waitcnt lgkmcnt(0)")
    def tr_wide(dst, nk):
        for t in range(8):
            ar = TA if t & 1 else TB
            a(f"v_xor_b32 v{ar}, {t << 5}, v{TRB}")
            for s in range(nk):
                r = dst + (t * nk + s) * 4
                a(f"ds_read_b64_tr_b16 v[{r}:{r+1}], v{ar} offset:{s*8192}")
                a(f"ds_read_b64_tr_b16 v[{r+2}:{r+3}], v{ar} offset:{s*8192+1024}")
        a("s_waitcnt lgkmcnt(0)")
    def act_addr(dst, rowsel, tmp):
        a(f"v_and_b32 v{dst}, 3, v0" if rowsel == "lo" else f"v_bfe_u32 v{dst}, v0, 2, 2")
        a(f"v_mul_u32_u24 v{dst}, {ACT_STRIDE}, v{dst}\nv_lshrrev_b32 v{tmp}, 4, v0\nv_lshl_add_u32 v{dst}, v{tmp}, 4, v{dst}\nv_add_u32 v{dst}, {L_ACT}, v{dst}")
    def poll(lbl, loads, tags, sleep=0, pre="", post=""):
        spin_begin()
        if sleep: a(f"s_branch {lbl}_go")
        a(f"{lbl}:")
        spin_check()
        if sleep: a(f"s_sleep {sleep}\n{lbl}_go:")
        a(pre)
        for l in loads: a(l)
        a(post)
        a("s_waitcnt vmcnt(0)")
        tags()
        a(f"s_cmp_eq_u64 vcc, exec\ns_cbranch_scc0 {lbl}")
    def tags_words(regs):
        def f():
            a(f"v_cmp_eq_u32 vcc, {TAG}, v{regs[0]}")
            for r in regs[1:]: a(f"v_cmp_eq_u32 s[56:57], {TAG}, v{r}\ns_and_b64 vcc, vcc, s[56:57]")
        return f
    def tags_xor(regs, t):
        def f():
            a(f"v_xor_b32 v{t}, {TAG}, v{regs[0]}")
            for r in regs[1:]: a(f"v_xor_b32 v{t+1}, {TAG}, v{r}\nv_or_b32 v{t}, v{t}, v{t+1}")
            a(f"v_cmp_eq_u32 vcc, 0, v{t}")
        return f
    def tags_bytes(quads, t):
        def f():
            for i, q in enumerate(quads):
                a(f"v_perm_b32 v{t+2*i}, v{q+1}, v{q}, s58\nv_perm_b32 v{t+2*i+1}, v{q+3}, v{q+2}, s59")
            for i, q in enumerate(quads): a(f"v_or_b32 v{t+2*i}, v{t+2*i}, v{t+2*i+1}")
            for i, q in enumerate(quads): a(f"v_xor_b32 v{t+2*i}, {TAG}, v{t+2*i}")
            n = len(quads)
            if n == 4: a(f"v_or3_b32 v{t}, v{t}, v{t+2}, v{t+4}\nv_or_b32 v{t}, v{t}, v{t+6}")
            else: a(f"v_or_b32 v{t}, v{t}, v{t+2}")
            a(f"v_cmp_eq_u32 vcc, 0, v{t}")
        return f
    def ln_stats(x0, t0):
        a(f"v_readfirstlane_b32 s46, v{x0}")
        for k in range(8): a(f"v_subrev_f32 v{t0+2+k}, s46, v{x0+k}")
        a(f"v_add_f32 v{t0}, v{t0+2}, v{t0+3}\nv_mul_f32 v{t0+1}, v{t0+2}, v{t0+2}")
        a(f"v_fmac_f32 v{t0+1}, v{t0+3}, v{t0+3}")
        for k in range(2, 8): a(f"v_add_f32 v{t0}, v{t0}, v{t0+2+k}\nv_fmac_f32 v{t0+1}, v{t0+2+k}, v{t0+2+k}")
        allreduce("v_add_f32", [t0, t0+1], [t0+2, t0+3])
        a(f"""
        v_mul_f32 v{t0}, 0x3b000000, v{t0}
        v_mul_f32 v{t0+1}, 0x3b000000, v{t0+1}
        v_fma_f32 v{t0+1}, -v{t0}, v{t0}, v{t0+1}
        v_add_f32 v{t0}, s46, v{t0}
        v_max_f32 v{t0+1}, 0, v{t0+1}
        """)
        bf16r2(t0, t0+1, t0+2)
        a(f"v_add_f32 v{t0+1}, 0x3727c5ac, v{t0+1}")
        bf16r(t0+1, t0+1)
        a(f"v_sqrt_f32 v{t0+1}, v{t0+1}")
        bf16r(t0+1, t0+1)
        a(f"v_rcp_f32 v{t0+1}, v{t0+1}")
    def round8(x0, t):
        for k in range(4): a(f"v_cvt_pk_bf16_f32 v{t+k}, v{x0+2*k}, v{x0+2*k+1}")
        for k in range(4): unpack(x0 + 2*k, x0 + 2*k + 1, t + k)
    def ln_norm(x0, s0, t):
        for k in range(8): a(f"v_sub_f32 v{x0+k}, v{x0+k}, v{s0}")
        round8(x0, t)
        for k in range(8): a(f"v_mul_f32 v{x0+k}, v{x0+k}, v{s0+1}")
        round8(x0, t)
    def ln_affine(x0, sc8, sh8, t):
        for k in range(8): a(f"v_mul_f32 v{x0+k}, v{x0+k}, v{sc8+k}")
        round8(x0, t)
        for k in range(8): a(f"v_add_f32 v{x0+k}, v{x0+k}, v{sh8+k}")
        for k in range(4): a(f"v_cvt_pk_bf16_f32 v{t+k}, v{x0+2*k}, v{x0+2*k+1}")
    X8, ST, SA8, CA8, BW, DT = 24, 32, 40, 48, 192, 56
    def gemv64(tagn, kind, infl, first):
        isq = kind == "q"
        srd(52, P_X if isq else P_C, 4096)
        a(f"""
        v_lshlrev_b32 v10, 3, v0
        s_lshl_b32 s12, s7, 10
        buffer_load_dwordx2 v[12:13], v10, s[52:55], s12 offen
        buffer_load_dwordx2 v[14:15], v10, s[52:55], s12 offen offset:512
        """)
        rs = 8192 if isq else 6144
        srd(8, P_WQ if isq else P_WM, 0 if ({"q": "q", "A": "A", "a": "a"}[kind] in skip) else 512 * rs)
        a(f"s_mul_i32 s13, s7, {128*rs}\ns_lshl_b32 s12, s69, 7\ns_add_u32 s13, s13, s12\ns_lshl_b32 s14, s7, 15")
        dma_mid("s13", "s14", infl, rs, hooks=({min(infl, 16) - 1: lambda: a(BAR0)} if first else {}))
        a("s_waitcnt vmcnt(16)")
        if kind == "A": stamp(1)
        for k in range(4): unpack(X8 + 2*k, X8 + 2*k + 1, 12 + k)
        a(f"s_mul_i32 s12, s7, {ACT_STRIDE}\ns_add_u32 s12, s12, {L_ACT}\nv_add_u32 v10, s12, v10")
        if isq:
            ln_stats(X8, ST)
            ln_norm(X8, ST, 16)
        else:
            for k in range(8): a(f"v_mul_f32 v{ST+k}, {LOG2E}, v{X8+k}")
            for k in range(8): a(f"v_exp_f32 v{ST+k}, -v{ST+k}")
            for k in range(8): a(f"v_add_f32 v{ST+k}, 1.0, v{ST+k}")
            for k in range(8): a(f"v_rcp_f32 v{ST+k}, v{ST+k}")
            for k in range(8): a(f"v_mul_f32 v{X8+k}, v{X8+k}, v{ST+k}")
            for k in range(4): a(f"v_cvt_pk_bf16_f32 v{16+k}, v{X8+2*k}, v{X8+2*k+1}")
            a("ds_write_b64 v10, v[16:17]\nds_write_b64 v10, v[18:19] offset:512")
        mid_bases()
        a("s_waitcnt vmcnt(0)")
        set_flag(F_WQ, "s7", 20, 21)
        wait_flags(f"L_wq{tagn}", F_WQ, 16, 0)
        if first: a(MKTAG)
        stamp(4 if isq else 2) if first else None
        tr_mid(BW, 0)
        if first: set_flag(F_WQD, "s7", 16, 17)
        act_addr(TC, "lo", TB)
        a(f"s_lshl_b32 s67, s69, 10\ns_lshl_b32 s12, s7, 8\ns_add_u32 s67, s67, s12\ns_add_u32 s67, s67, {WS_Q if isq else WS_MOD}")
        if isq:
            a(f"""
            v_lshrrev_b32 v{TA}, 2, v0
            v_lshlrev_b32 v{TA}, 8, v{TA}
            v_and_b32 v{TB}, 3, v0
            v_lshl_add_u32 v{TA}, v{TB}, 4, v{TA}
            s_lshl_b32 s12, s7, 6
            s_add_u32 s12, s12, {WS_MOD}
            s_add_u32 s13, s12, 0x1000
            s_add_u32 s14, s12, 0x2000
            s_add_u32 s46, s12, 0x3000
            """)
            if gm: wait_flags("L_g1", F_G1, 16, 4)
            G0 = 128
            poll("L_poll_mod", [f"buffer_load_dwordx4 v[{G0+4*i}:{G0+4*i+3}], v{TA}, s[48:51], {sr} offen sc1" for i, sr in enumerate(["s12", "s13", "s14", "s46"])],
                 tags_xor([G0 + 1 + 2*k for k in range(8)], 16), sleep=slp)
            stamp(5)
            for k in range(4): unpack(SA8 + 2*k, SA8 + 2*k + 1, G0 + 2*k)
            for k in range(4): unpack(CA8 + 2*k, CA8 + 2*k + 1, G0 + 8 + 2*k)
            for k in range(8): a(f"v_add_f32 v{CA8+k}, 1.0, v{CA8+k}")
            round8(CA8, 16)
            ln_affine(X8, CA8, SA8, 16)
            a("ds_write_b64 v10, v[16:17]\nds_write_b64 v10, v[18:19] offset:512")
            set_flag(F_H, "s7", 20, 21)
            wait_flags("L_h", F_H, 16, 0)
        for hh in range(2):
            for s in range(8): a(f"ds_read_b128 v[{16+4*s}:{19+4*s}], v{TC} offset:{(8*hh+s)*64}")
            for s in range(8):
                a(f"s_waitcnt lgkmcnt({7-s})")
                k = 8*hh + s
                a(f"v_mfma_f32_16x16x32_bf16 v[{DT}:{DT+3}], v[{BW+4*k}:{BW+4*k+3}], v[{16+4*s}:{19+4*s}], " + ("0" if k == 0 else f"v[{DT}:{DT+3}]"))
        a(f"""
        v_and_b32 v{TC}, 3, v0
        v_lshrrev_b32 v{TA}, 4, v0
        v_lshlrev_b32 v{TA}, 4, v{TA}
        v_lshl_add_u32 v{TA}, v{TC}, 6, v{TA}
        v_mov_b32 v{DT+5}, {TAG}
        v_mov_b32 v{DT+7}, {TAG}
        v_cvt_pk_bf16_f32 v{DT+4}, v{DT}, v{DT+1}
        v_cvt_pk_bf16_f32 v{DT+6}, v{DT+2}, v{DT+3}
        s_mov_b32 exec_lo, 0x000f000f
        s_mov_b32 exec_hi, 0x000f000f
        buffer_store_dwordx4 v[{DT+4}:{DT+7}], v{TA}, s[48:51], s67 offen sc1
        s_mov_b64 exec, -1
        """)
        if first: stamp(13 if isq else 3)

    a("""
    s_cmp_eq_u32 s68, 3
    s_cbranch_scc1 L_qgemv
    s_cmp_eq_u32 s68, 5
    s_cbranch_scc1 L_down
    s_cmp_lg_u32 s68, 1
    s_cbranch_scc1 L_bar0
    """)
    gemv64(1, "A", 64, True)
    a("s_branch L_getq")
    a("L_qgemv:")
    gemv64(2, "q", thrQ, True)
    a("s_branch L_getq")
    a("L_down:")
    srd(8, P_WD, 0 if 'f' in skip else 1792 * 1024)
    a("s_lshl_b32 s13, s69, 16\ns_lshl_b32 s12, s7, 8\ns_add_u32 s13, s13, s12")
    dma_wide(16, 10, "s13", thrD, hooks={min(thrD, 16) - 1: lambda: a(BAR0)})
    a("s_waitcnt vmcnt(0)")
    tr_wide(192, 2)
    a(MKTAG)
    set_flag(F_WQD, "s7", 16, 17)
    a("s_branch L_getq")
    a("L_bar0:")
    a(BAR0)
    a("s_waitcnt lgkmcnt(0)")
    a(MKTAG)
    a("L_getq:")
    a("s_cmp_lg_u32 s7, 2\ns_cbranch_scc1 L_bar1")
    a(f"""
    v_bfe_u32 v{TA}, v0, 2, 3
    v_lshlrev_b32 v{TA}, 8, v{TA}
    v_and_b32 v{TB}, 3, v0
    v_lshl_add_u32 v{TA}, v{TB}, 4, v{TA}
    s_lshl_b32 s12, s4, 11
    s_lshl_b32 s13, s5, 6
    s_add_u32 s12, s12, s13
    s_add_u32 s12, s12, {WS_Q}
    v_and_b32 v{TB}, 31, v0
    v_lshlrev_b32 v{TB}, 3, v{TB}
    v_add_u32 v{TB}, {L_Q}, v{TB}
    """)
    if gq: wait_flags("L_g2", F_G2, 16, 4)
    poll("L_poll_q", [f"buffer_load_dwordx4 v[16:19], v{TA}, s[48:51], s12 offen sc1"], tags_words([17, 19]), sleep=slp)
    a(f"v_mov_b32 v17, v18\nds_write_b64 v{TB}, v[16:17]\ns_waitcnt lgkmcnt(0)")
    a("L_bar1:")
    a("s_barrier")
    stamp(6)
    a(f"""
    s_getreg_b32 s62, hwreg(HW_REG_XCC_ID)
    s_cmp_lt_u32 s68, 4
    s_cbranch_scc1 L_noxcc
    s_cmp_lg_u32 s7, 1
    s_cbranch_scc1 L_noxcc
    v_mov_b32 v16, s62
    v_mov_b32 v17, {TAG}
    s_lshl_b32 s12, s69, 7
    s_add_u32 s12, s12, {WS_XCC}
    s_mov_b64 exec, 1
    buffer_store_dwordx2 v[16:17], v1, s[48:51], s12 offen sc1
    s_mov_b64 exec, -1
    L_noxcc:
    """)
    def wait_row(lbl, g):
        spin_begin()
        a(f"v_mov_b32 v20, {L_FL+F_TT+16*g}")
        a(f"s_branch {lbl}_go\n{lbl}:")
        spin_check()
        a(f"""
        s_sleep 8
        {lbl}_go:
        ds_read_b128 v[16:19], v20
        s_waitcnt lgkmcnt(0)
        v_and_b32 v21, v16, v17
        v_and_b32 v22, v18, v19
        v_and_b32 v21, v21, v22
        v_readfirstlane_b32 s47, v21
        s_bitcmp1_b32 s47, 0
        s_cbranch_scc0 {lbl}
        """)
    def tm_publish(m, g):
        a(f"""
        s_lshr_b32 s12, s15, 3
        s_xor_b32 s12, s12, s15
        s_and_b32 s12, s12, 1
        s_bfe_u32 s14, s15, 0x10004
        s_xor_b32 s14, s14, s6
        s_or_b32 s12, s12, s14
        s_or_b32 s12, s12, s7
        s_cbranch_scc1 L_tmp{m}
        """)
        wait_row(f"L_tr{m}", g)
        for k in range(4): a(f"v_subrev_u32 v{16+k}, s60, v{16+k}")
        a(f"""
        v_add3_u32 v16, v16, v17, v18
        v_add_u32 v16, v16, v19
        v_lshrrev_b32 v16, 2, v16
        v_add_u32 v16, s60, v16
        v_mov_b32 v17, {TAG}
        v_mov_b32 v18, s60
        v_mov_b32 v19, {TAG}
        s_lshr_b32 s12, s15, 1
        s_mul_i32 s12, s12, {TMSTR}
        s_add_u32 s12, s12, {WS_TM + 128*m}
        s_mov_b64 exec, 1
        buffer_store_dwordx4 v[16:19], v1, s[48:51], s12 offen sc1
        s_mov_b64 exec, -1
        L_tmp{m}:
        """)
    import struct
    def fhex(v): return hex(struct.unpack("<I", struct.pack("<f", v))[0])
    def tm_gather(m, gate, p_m, mult):
        a(f"s_cmp_lg_u32 s7, 0\ns_cbranch_scc1 L_tmg{m}")
        wait_row(f"L_tg{m}", gate)
        a(f"v_mul_u32_u24 v20, {TMSTR}, v0\ns_mov_b32 s12, {WS_TM + 128*m}")
        poll(f"L_poll_tm{m}", ["buffer_load_dwordx4 v[16:19], v20, s[48:51], s12 offen sc1"], tags_words([17, 19]), sleep=48)
        a("v_sub_u32 v18, v16, v18\nv_subrev_u32 v16, s60, v16")
        allreduce("v_add_u32", [16, 18], [17, 19])
        a("v_ashrrev_i32 v16, 6, v16\nv_lshrrev_b32 v18, 6, v18")
        if m > 1: a("v_subrev_u32 v18, s61, v16")
        a(f"""
        v_readfirstlane_b32 s61, v16
        v_cvt_f32_u32 v18, v18
        v_mul_f32 v18, {fhex(mult)}, v18
        v_cvt_u32_f32 v17, v18
        v_mul_u32_u24 v18, {p_m}, v17
        v_lshrrev_b32 v18, 4, v18
        v_sub_u32 v16, v16, v18
        v_add_u32 v16, s60, v16
        v_and_b32 v20, 3, v0
        v_lshlrev_b32 v20, 4, v20
        v_add_u32 v20, {L_FL+F_FAC+8}, v20
        ds_write_b64 v20, v[16:17]
        L_tmg{m}:
        """)
    wait_flags("L_wf", F_WF, 16, 4)
    srd(8, P_WO, 0 if 'w' in skip else 4096 * 1024)
    a("s_lshl_b32 s13, s4, 17\ns_lshl_b32 s12, s7, 8\ns_add_u32 s13, s13, s12")
    dma_wide(32, 10, "s13", thr, hooks={5: lambda: tm_publish(1, 0), 5 + 6*lagK: lambda: tm_gather(1, lagK, 0, 4*f1)})
    a("s_waitcnt vmcnt(0)")
    if dry:
        a(f"""
        s_mov_b32 s0, 1
        s_mov_b32 s1, {TAG}
        s_mov_b32 {TAG}, 0
        s_mov_b32 s50, 0
        s_mov_b32 s44, 1
        v_mov_b32 v{FA+1}, 1
        v_mov_b32 v{PT}, {L_OP}
        s_branch L_sepi
        L_afterdry:
        s_mov_b32 s0, 0
        s_mov_b32 {TAG}, s1
        s_mov_b32 s50, {WS_SIZE}
        s_mov_b64 exec, -1
        s_waitcnt vmcnt(0) lgkmcnt(0)
        """)
        lane_consts()
    tr_wide(64, 4)
    a("s_cmp_lg_u32 s68, 2\ns_cbranch_scc1 L_noA2")
    gemv64(3, "a", thrA, False)
    a("L_noA2:")
    SB, TREG = [10, 11, 12, 13], [4, 5, 6, 14]
    RX, RGA, RGB = 2, 3, 15
    def ffn_cols(dst_tile, dst_sub):
        a(f"""
        v_lshrrev_b32 v{dst_tile}, 4, v0
        v_and_b32 v{dst_sub}, 3, v0
        v_lshl_add_u32 v{dst_tile}, v{dst_tile}, 2, v{dst_sub}
        v_bfe_u32 v{dst_sub}, v0, 2, 2
        """)
    a("s_cmp_lt_u32 s68, 4\ns_cbranch_scc1 L_nored1\ns_cmp_lg_u32 s68, 5\ns_cbranch_scc1 L_noffn1")
    srd(8, P_WG, 0 if 'f' in skip else 512 * 3584)
    a(f"s_lshl_b32 s13, s69, 7\ns_mul_i32 s12, s7, {128*3584}\ns_add_u32 s46, s13, s12\ns_mov_b32 s13, s46\ns_lshl_b32 s14, s7, 15")
    dma_mid("s13", "s14", thrF, 3584)
    srd(8, P_WU, 0 if 'f' in skip else 512 * 3584)
    a("s_mov_b32 s13, s46\ns_add_u32 s14, s14, 0x4000")
    dma_mid("s13", "s14", thrF, 3584)
    a("L_noffn1:")
    a("L_nored1:")
    stamp(7)
    tm_publish(2, KL)
    a("s_cmp_lg_u32 s7, 0\ns_cbranch_scc1 L_nofac")
    wait_flags("L_kd", F_KD, 16, 16)
    q4 = ("quad_perm:[1,0,3,2]", "quad_perm:[2,3,0,1]")
    a(f"""
    v_and_b32 v{TA}, 3, v0
    v_lshlrev_b32 v{TA}, 4, v{TA}
    v_add_u32 v{TA}, {L_FL}, v{TA}
    ds_read_b64 v[24:25], v{TA} offset:{F_ST}
    s_waitcnt lgkmcnt(0)
    v_mov_b32 v28, v24
    """)
    allreduce("v_max_f32", [28], [], rows_only=True, steps=q4)
    a(f"v_sub_f32 v30, v24, v28\nv_mul_f32 v30, {LOG2E}, v30\nv_exp_f32 v30, v30\nv_mul_f32 v30, v25, v30")
    allreduce("v_add_f32", [30], [], rows_only=True, steps=q4)
    a(f"""
    v_mov_b32 v29, {TAG}
    v_mov_b32 v31, {TAG}
    s_lshl_b32 s13, s15, 7
    s_add_u32 s13, s13, {WS_STATS}
    s_lshl_b32 s12, s6, 4
    s_add_u32 s14, s13, s12
    s_xor_b32 s12, s12, 16
    s_add_u32 s13, s13, s12
    s_mov_b64 exec, 1
    buffer_store_dwordx4 v[28:31], v1, s[48:51], s14 offen sc1
    s_mov_b64 exec, -1
    """)
    tm_gather(2, KL + lagV, 4*KL, 4*f2/KL)
    a(f"v_mov_b32 v{TB}, 0")
    poll("L_poll_st", [f"buffer_load_dwordx4 v[16:19], v{TB}, s[48:51], s13 offen sc1"], tags_words([17, 19]), sleep=32)
    a(f"""
    v_max_f32 v17, v16, v28
    v_sub_f32 v16, v16, v17
    v_sub_f32 v28, v28, v17
    v_sub_f32 v24, v24, v17
    v_mul_f32 v16, {LOG2E}, v16
    v_mul_f32 v28, {LOG2E}, v28
    v_mul_f32 v24, {LOG2E}, v24
    v_exp_f32 v16, v16
    v_exp_f32 v28, v28
    v_exp_f32 v24, v24
    v_mul_f32 v16, v16, v18
    v_fmac_f32 v16, v28, v30
    v_rcp_f32 v16, v16
    v_mov_b32 v25, 1
    v_mul_f32 v24, v24, v16
    ds_write_b64 v{TA}, v[24:25] offset:{F_FAC}
    """)
    a("L_nofac:")
    a("s_cmp_lt_u32 s68, 4\ns_cbranch_scc1 L_nored2")
    wait_row("L_kd2", KL + 1)
    a("s_cmp_lg_u32 s68, 5\ns_cbranch_scc1 L_noffn2")
    ffn_cols(TA, TB)
    a(f"""
    v_lshlrev_b32 v{TA}, 8, v{TA}
    v_lshl_add_u32 v{TA}, v{TB}, 4, v{TA}
    s_lshl_b32 s12, s7, 6
    s_add_u32 s12, s12, {WS_MOD + 96*256}
    s_add_u32 s13, s12, 0x1000
    s_add_u32 s14, s12, 0x2000
    s_add_u32 s46, s12, 0x3000
    """)
    poll("L_poll_sb", [f"buffer_load_dwordx4 v[{16+4*i}:{19+4*i}], v{TA}, s[48:51], {sr} offen sc1" for i, sr in enumerate(["s12", "s13", "s14", "s46"])],
         tags_words([17 + 2*k for k in range(8)]), sleep=16)
    for k in range(4):
        a(f"v_mov_b32 v{SB[k]}, v{16+2*k}")
        unpack(32, 33, 24 + 2*k)
        a(f"v_add_f32 v32, 1.0, v32\nv_add_f32 v33, 1.0, v33\nv_cvt_pk_bf16_f32 v{TREG[k]}, v32, v33")
    a("L_noffn2:")
    srd(52, P_X, 4096)
    a(f"""
    v_bfe_u32 v{TA}, v0, 2, 2
    v_and_b32 v{TB}, 3, v0
    v_lshlrev_b32 v{TC}, 5, v{TA}
    v_lshl_add_u32 v{TC}, v{TB}, 1, v{TC}
    s_lshl_b32 s71, s69, 7
    s_lshl_b32 s12, s7, 3
    s_add_u32 s71, s71, s12
    buffer_load_ushort v{RX}, v{TC}, s[52:55], s71 offen
    v_lshlrev_b32 v{TA}, 8, v{TA}
    v_lshrrev_b32 v{TC}, 1, v{TB}
    v_lshl_add_u32 v{TA}, v{TC}, 3, v{TA}
    s_and_b32 s12, s69, 7
    s_lshl_b32 s12, s12, 10
    s_lshl_b32 s13, s7, 4
    s_add_u32 s12, s12, s13
    s_lshr_b32 s13, s69, 3
    s_lshl_b32 s13, s13, 6
    s_add_u32 s12, s12, s13
    s_add_u32 s13, s12, {WS_MOD + 160*256}
    s_add_u32 s12, s12, {WS_MOD + 64*256}
    """)
    poll("L_poll_ga", [f"buffer_load_dwordx2 v[16:17], v{TA}, s[48:51], s12 offen sc1", f"buffer_load_dwordx2 v[18:19], v{TA}, s[48:51], s13 offen sc1"],
         tags_words([17, 19]), sleep=16)
    a(f"v_and_b32 v{TB}, 1, v0\nv_cmp_eq_u32 vcc, 1, v{TB}")
    for k, r in enumerate([RGA, RGB]):
        unpack(24, 25, 16 + 2*k)
        a(f"v_cndmask_b32 v{r}, v24, v25, vcc")
    a(f"v_lshlrev_b32 v{RX}, 16, v{RX}")
    a(f"v_and_b32 v{TA}, 31, v0\nv_lshlrev_b32 v{TA}, 7, v{TA}\ns_mov_b32 s12, {WS_XCC}")
    poll("L_poll_xcc", [f"buffer_load_dwordx2 v[16:17], v{TA}, s[48:51], s12 offen sc1"], tags_words([17]), sleep=16)
    a(f"v_cmp_eq_u32 vcc, s62, v16\ns_cmp_eq_u64 vcc, exec\ns_cselect_b32 s44, {1 if fast else 0}, 0")
    a("L_nored2:")
    if m3:
        tm_publish(3, KL + m3)
        tm_gather(3, KL + m3 + lag3, 4*(KL + m3) + E//4, 16*f3/(4*m3 + E//4))
    if touch:
        a("s_cmp_lt_u32 s68, 4\ns_cbranch_scc1 L_notouch")
        wait_row("L_tch", KL + touch)
        a(f"""
        v_lshrrev_b32 v{TA}, 2, v0
        v_and_b32 v{TB}, 3, v0
        v_lshlrev_b32 v{TC}, 13, v{TA}
        v_lshl_add_u32 v{TC}, v{TB}, 4, v{TC}
        v_lshlrev_b32 v{TA}, 11, v{TA}
        v_lshl_add_u32 v{TA}, v{TB}, 4, v{TA}
        s_lshl_b32 s12, s7, 11
        s_add_u32 s12, s12, {WS_X1}
        buffer_load_dwordx4 v[16:19], v1, s[48:51], s12 offen sc1
        buffer_load_dwordx4 v[20:23], v1, s[48:51], s12 offen offset:1024 sc1
        s_lshl_b32 s12, s69, 8
        s_lshl_b32 s13, s7, 6
        s_add_u32 s12, s12, s13
        s_add_u32 s12, s12, {WS_PART2}
        s_add_u32 s13, s12, 0x20000
        buffer_load_dwordx4 v[24:27], v{TC}, s[48:51], s12 offen sc1
        buffer_load_dwordx4 v[28:31], v{TC}, s[48:51], s13 offen sc1
        """)
        if touch1:
            a(f"""
            s_and_b32 s12, s69, 7
            s_lshl_b32 s12, s12, 8
            s_lshl_b32 s13, s7, 6
            s_add_u32 s12, s12, s13
            s_lshr_b32 s13, s69, 3
            s_lshl_b32 s13, s13, 17
            s_add_u32 s12, s12, s13
            s_add_u32 s12, s12, {WS_PART1}
            """)
            for i in range(4):
                a(f"buffer_load_dwordx4 v[{32+4*i}:{35+4*i}], v{TA}, s[48:51], s12 offen sc1\ns_add_u32 s12, s12, 0x8000")
        a("L_notouch:")
    AF, DD = 16, 32
    bn = {"n": 0}
    def barrier():
        if not dry: a("s_barrier"); return
        bn["n"] += 1
        a(f"s_cmp_eq_u32 s0, 1\ns_cbranch_scc1 L_nb{bn['n']}\ns_barrier\nL_nb{bn['n']}:")
    a(f"""
    L_tail0:
    s_mov_b64 exec, -1
    s_waitcnt vmcnt(0) lgkmcnt(0)
    v_and_b32 v{TB}, 3, v0
    v_mul_u32_u24 v{TB}, {OP_STRIDE}, v{TB}
    v_lshrrev_b32 v{TA}, 4, v0
    v_lshl_add_u32 v{TB}, v{TA}, 4, v{TB}
    v_add_u32 v{TB}, {L_OP}, v{TB}
    v_cmp_eq_u32 s[56:57], 1, v{TA}
    s_lshl_b32 s12, s15, 1
    s_add_u32 s12, s12, s6
    s_lshl_b32 s12, s12, 11
    s_lshl_b32 s13, s7, 9
    s_add_u32 s12, s12, s13
    s_add_u32 s12, s12, {WS_PART1}
    s_and_b32 s18, {TAG}, 0xff
    s_bfe_u32 s19, {TAG}, 0x80008
    s_bfe_u32 s20, {TAG}, 0x80010
    s_lshr_b32 s21, {TAG}, 24
    v_mov_b32 v{TC}, 0xffffff00
    """)
    stamp(8)
    barrier()
    stamp(9)
    for s in range(4): a(f"ds_read_b128 v[{AF+4*s}:{AF+4*s+3}], v{TB} offset:{64*s}")
    a("s_waitcnt lgkmcnt(0)")
    def gemv_wide(bbase, nk):
        for t in range(8):
            for s in range(nk):
                r = bbase + (t * nk + s) * 4
                a(f"v_mfma_f32_16x16x32_bf16 v[{DD+4*t}:{DD+4*t+3}], v[{AF+4*s}:{AF+4*s+3}], v[{r}:{r+3}], " + ("0" if s == 0 else f"v[{DD+4*t}:{DD+4*t+3}]"))
    gemv_wide(64, 4)
    for t in range(8):
        a(f"v_add_f32 v{DD+4*t}, v{DD+4*t}, v{DD+4*t+1}\nv_add_f32 v{DD+4*t+2}, v{DD+4*t+2}, v{DD+4*t+3}")
    for t in range(8): a(f"v_add_f32 v{DD+4*t}, v{DD+4*t}, v{DD+4*t+2}")
    for k in range(4): a(f"v_cndmask_b32 v{16+k}, v{DD+4*k}, v{DD+4*(4+k)}, s[56:57]")
    for k in range(4): a(f"v_and_or_b32 v{16+k}, v{16+k}, v{TC}, s{18+k}")
    a("s_mov_b32 exec_hi, 0\nbuffer_store_dwordx4 v[16:19], v1, s[48:51], s12 offen sc1\ns_mov_b64 exec, -1")
    stamp(10)
    a("s_cmp_lt_u32 s68, 4\ns_cbranch_scc1 L_hend\ns_cmp_lg_u32 s68, 5\ns_cbranch_scc1 L_noffn3")
    SC8, SH8 = 48, 56
    HW_, HF_, GF_, GW_, PO_, MS_ = 10, 11, 12, 13, 4, 5
    mid_bases()
    tr_mid(64, 0)
    tr_mid(128, 0x4000)
    for k in range(4): unpack(SC8 + 2*k, SC8 + 2*k + 1, TREG[k])
    for k in range(4): unpack(SH8 + 2*k, SH8 + 2*k + 1, SB[k])
    act_addr(HF_, "hi", TB)
    ffn_cols(TA, TB)
    a(f"""
    v_lshlrev_b32 v{HW_}, 5, v{TA}
    v_lshl_add_u32 v{HW_}, v{TB}, 3, v{HW_}
    s_mul_i32 s13, s7, {ACT_STRIDE}
    s_add_u32 s13, s13, {L_ACT}
    v_add_u32 v{HW_}, s13, v{HW_}
    v_mul_u32_u24 v{GF_}, {GB_STRIDE}, v{TB}
    v_lshrrev_b32 v{TB}, 4, v0
    v_lshl_add_u32 v{GF_}, v{TB}, 4, v{GF_}
    v_add_u32 v{GF_}, {L_GB}, v{GF_}
    v_mul_u32_u24 v{GW_}, {GB_STRIDE}, v{TB}
    v_and_b32 v{TA}, 15, v0
    v_lshl_add_u32 v{GW_}, v{TA}, 1, v{GW_}
    s_lshl_b32 s13, s7, 5
    s_add_u32 s13, s13, {L_GB}
    v_add_u32 v{GW_}, s13, v{GW_}
    v_lshlrev_b32 v{TB}, 11, v{TB}
    v_lshl_add_u32 v{PO_}, v{TA}, 4, v{TB}
    v_mov_b32 v{MS_}, 0xffffff00
    """)
    a("L_noffn3:")
    a(f"""
    v_lshrrev_b32 v{TA}, 2, v0
    v_and_b32 v{TB}, 3, v0
    v_lshlrev_b32 v{TC}, 13, v{TA}
    v_lshlrev_b32 v{TA}, 11, v{TA}
    v_lshl_add_u32 v{TA}, v{TB}, 4, v{TA}
    v_lshl_add_u32 v{TC}, v{TB}, 4, v{TC}
    v_lshlrev_b32 v{TB}, 2, v0
    s_and_b32 s12, s69, 7
    s_lshl_b32 s12, s12, 8
    s_lshl_b32 s13, s7, 6
    s_add_u32 s12, s12, s13
    s_lshr_b32 s13, s69, 3
    s_lshl_b32 s14, s13, 11
    s_add_u32 s22, s12, s14
    s_lshl_b32 s13, s13, 17
    s_add_u32 s12, s12, s13
    s_add_u32 s12, s12, {WS_PART1}
    s_add_u32 s13, s12, 0x8000
    s_add_u32 s14, s12, 0x10000
    s_add_u32 s67, s12, 0x18000
    s_add_u32 s23, s22, {WS_X1}
    v_mov_b32 v41, {TAG}
    v_mov_b32 v43, {TAG}
    """)
    poll("L_poll_p1", [f"buffer_load_dwordx4 v[{16+4*i}:{19+4*i}], v{TA}, s[48:51], {sr} offen sc1" for i, sr in enumerate(["s12", "s13", "s14", "s67"])],
         tags_bytes([16, 20, 24, 28], 32))
    stamp(11)
    def colsum(n):
        st_ = 1
        while st_ < n:
            for i in range(0, n, 2*st_):
                for k in range(4): a(f"v_add_f32 v{16+4*i+k}, v{16+4*i+k}, v{16+4*(i+st_)+k}")
            st_ *= 2
        a("""
        v_add_f32_dpp v20, v16, v16 row_ror:8 row_mask:0xf bank_mask:0x3
        v_add_f32_dpp v21, v17, v17 row_ror:8 row_mask:0xf bank_mask:0x3
        v_add_f32_dpp v20, v18, v18 row_ror:8 row_mask:0xf bank_mask:0xc
        v_add_f32_dpp v21, v19, v19 row_ror:8 row_mask:0xf bank_mask:0xc
        v_add_f32_dpp v16, v20, v20 row_shl:4 row_mask:0xf bank_mask:0x5
        v_add_f32_dpp v16, v21, v21 row_shr:4 row_mask:0xf bank_mask:0xa
        """)
        allreduce("v_add_f32", [16], [17], steps=())
    def resid(gate):
        bf16r(16, 16)
        a(f"v_mul_f32 v16, v16, v{gate}")
        bf16r(16, 16)
        a(f"v_add_f32 v16, v16, v{RX}")
    colsum(4)
    resid(RGA)
    a(f"""
    v_mov_b32_dpp v17, v16 quad_perm:[1,1,1,1] {FULL}
    v_mov_b32_dpp v18, v16 quad_perm:[2,2,2,2] {FULL}
    v_mov_b32_dpp v19, v16 quad_perm:[3,3,3,3] {FULL}
    v_cvt_pk_bf16_f32 v40, v16, v17
    v_cvt_pk_bf16_f32 v42, v18, v19
    s_mov_b64 exec, 0x1111
    """)
    def hstore(lbl, stores):
        a(f"s_cmp_eq_u32 s44, 1\ns_cbranch_scc0 {lbl}_s")
        for st_ in stores: a(f"{st_} {fpol}")
        a(f"s_branch {lbl}_e\n{lbl}_s:")
        for st_ in stores: a(f"{st_} sc1")
        a(f"{lbl}_e:")
    hstore("L_sx1", [f"buffer_store_dwordx4 v[40:43], v{TB}, s[48:51], s23 offen"])
    a("s_mov_b64 exec, -1")
    stamp(12)
    bf16r(RX, 16)
    a("s_cmp_lg_u32 s68, 5\ns_cbranch_scc1 L_red2")
    a(f"""
    s_lshl_b32 s12, s7, 11
    s_add_u32 s12, s12, {WS_X1}
    s_lshl_b32 s13, s69, 13
    s_lshl_b32 s14, s7, 9
    s_add_u32 s13, s13, s14
    s_add_u32 s23, s13, {WS_PART2}
    """)
    poll("L_poll_x1", ["buffer_load_dwordx4 v[16:19], v1, s[48:51], s12 offen sc1", "buffer_load_dwordx4 v[20:23], v1, s[48:51], s12 offen offset:1024 sc1"],
         tags_xor([17, 19, 21, 23], 24))
    stamp(1)
    X2, S2 = 24, 32
    for k in range(4): unpack(X2 + 2*k, X2 + 2*k + 1, 16 + 2*k)
    ln_stats(X2, S2)
    ln_norm(X2, S2, 16)
    ln_affine(X2, SC8, SH8, 16)
    a(f"ds_write_b64 v{HW_}, v[16:17]\nds_write_b64 v{HW_}, v[18:19] offset:512\ns_waitcnt lgkmcnt(0)")
    barrier()
    G, U = 48, 52
    for hh in range(2):
        for s in range(8): a(f"ds_read_b128 v[{16+4*s}:{19+4*s}], v{HF_} offset:{(8*hh+s)*64}")
        for s in range(8):
            a(f"s_waitcnt lgkmcnt({7-s})")
            k = 8*hh + s
            a(f"v_mfma_f32_16x16x32_bf16 v[{G}:{G+3}], v[{16+4*s}:{19+4*s}], v[{64+4*k}:{67+4*k}], " + ("0" if k == 0 else f"v[{G}:{G+3}]"))
            a(f"v_mfma_f32_16x16x32_bf16 v[{U}:{U+3}], v[{16+4*s}:{19+4*s}], v[{128+4*k}:{131+4*k}], " + ("0" if k == 0 else f"v[{U}:{U+3}]"))
    bf16r2(G, U, 56)
    a(f"""
    v_mul_f32 v56, v{G}, v{G}
    v_mul_f32 v56, 0x3d372713, v56
    v_fma_f32 v56, v56, v{G}, v{G}
    v_mul_f32 v56, 0x40135761, v56
    v_exp_f32 v56, -v56
    v_add_f32 v56, 1.0, v56
    v_rcp_f32 v56, v56
    v_mul_f32 v56, v56, v{G}
    """)
    bf16r(56, 56)
    a(f"""
    v_mul_f32 v56, v56, v{U}
    v_cvt_pk_bf16_f32 v56, v56, v56
    ds_write_b16 v{GW_}, v56
    s_waitcnt lgkmcnt(0)
    """)
    barrier()
    a(f"""
    ds_read_b128 v[{AF}:{AF+3}], v{GF_}
    ds_read_b128 v[{AF+4}:{AF+7}], v{GF_} offset:64
    s_waitcnt lgkmcnt(0)
    """)
    gemv_wide(192, 2)
    for g in range(2):
        for k in range(4): a(f"v_and_or_b32 v{24+4*g+k}, v{DD+4*(4*g+k)}, v{MS_}, s{18+k}")
    hstore("L_sp2", [f"buffer_store_dwordx4 v[{24+4*g}:{27+4*g}], v{PO_}, s[48:51], s23 offen offset:{256*g}" for g in range(2)])
    stamp(2)
    a("L_red2:")
    a(f"""
    s_add_u32 s12, s22, {WS_PART2}
    s_add_u32 s13, s12, 0x20000
    v_mov_b32 v20, s18
    v_mov_b32 v21, s19
    v_mov_b32 v22, s20
    v_mov_b32 v23, s21
    v_bfe_u32 v{TA}, v0, 2, 2
    v_and_b32 v{TB}, 3, v0
    v_lshlrev_b32 v{TA}, 5, v{TA}
    v_lshl_add_u32 v{TA}, v{TB}, 1, v{TA}
    """)
    srd(52, P_OUT, 4096)
    if dry: a("s_cmp_eq_u32 s0, 1\ns_cselect_b32 s54, 0, s54")
    poll("L_poll_p2", [f"buffer_load_dwordx4 v[16:19], v{TC}, s[48:51], s12 offen sc1", "s_mov_b32 exec_hi, 0xffff",
                       f"buffer_load_dwordx4 v[20:23], v{TC}, s[48:51], s13 offen sc1"],
         tags_bytes([16, 20], 32), post="s_mov_b64 exec, -1")
    stamp(13)
    colsum(2)
    resid(RGB)
    a(f"""
    v_cvt_pk_bf16_f32 v16, v16, v16
    s_mov_b64 exec, 0xffff
    buffer_store_short v16, v{TA}, s[52:55], s71 offen
    s_or_b32 s12, s2, s7
    s_cbranch_scc1 L_hend
    s_mov_b64 exec, 1
    v_mov_b32 v17, {TAG}
    v_mov_b32 v18, 0
    buffer_store_dword v17, v18, s[48:51], 0 offen sc1
    """)
    a("L_hend:")
    if dry: a("s_cmp_eq_u32 s0, 1\ns_cbranch_scc1 L_afterdry")
    stamp(14)
    dump_stamps(15)
    a("L_end:")
    a("s_endpgm")
    a('.section .rodata,"a"')
    a(".p2align 6")
    a(f".amdhsa_kernel {NAME}_kernel")
    a("""
    .amdhsa_next_free_vgpr 256
    .amdhsa_next_free_sgpr 102
    .amdhsa_accum_offset 256
    .amdhsa_group_segment_fixed_size 0
    .amdhsa_kernarg_size 112
    .amdhsa_user_sgpr_count 2
    .amdhsa_user_sgpr_kernarg_segment_ptr 1
    .amdhsa_system_sgpr_workgroup_id_x 1
    .amdhsa_float_denorm_mode_32 3
    .end_amdhsa_kernel
    """)
    return out + a.text()

if __name__ == "__main__":
    kw = eval("dict(" + (sys.argv[2] if len(sys.argv) > 2 else "") + ")")
    open(sys.argv[1], "w").write(gen(**kw))
```

```python
import sys
from asmlib import Asm

NAME = "adaLN_cond__mha_block_cached__geglu_ffn__decode"
WS_MOD = 0x1000
WS_Q = 0x10000
WS_STATS = 0x20000
WS_X1 = 0x28000
WS_PART2 = 0x40000
WS_PART1 = 0x80000
WS_FAST = 0
WS_XCC = 0x30000
WS_TM, TMSTR = 0x280000, 4352
WS_DBG, WS_SIZE = 0x200000, 0x400000
L_W, L_ACT, L_Q, L_OP, L_GB, L_FL = 0, 0x20000, 0x21200, 0x21400, 0x21A00, 0x21E00
ACT_STRIDE, OP_STRIDE, GB_STRIDE = 1088, 320, 192
LDS_BYTES = 0x22200
F_FAC, F_KD, F_WF, F_WQ, F_WQD, F_H, F_G1, F_G2, F_ST, F_TT = 0, 64, 80, 96, 112, 128, 144, 160, 192, 256
NFFN = 28
SPIN_MAX = 400000
P_X, P_K, P_V, P_WQ, P_WO, P_WG, P_WU, P_WD, P_C, P_WM, P_OUT, P_WS = 16, 18, 20, 22, 24, 28, 30, 32, 34, 36, 38, 42
TAG = "s45"
LOG2E, SCALE, HIMASK = "s64", "s65", "s66"

def gen(D=5, A=8, E=4, P=48, PL=32, DP=5, D2=7, NE=1, thr=2, thrA=2, thrF=3, thrQ=3, thrD=2, slp=16, diag=False,
        levels=((4,-50),(5,30),(6,100),(7,None)), f1=0.147, f2=0.955, f3=0.995, m3=8, lagK=2, lagV=2, lag3=1, gq=40, gm=20,
        kctl=True, fast=True, fpol='', touch=10, touch1=False, dry=True, lastctl=True, tlb=True, skip=''):
    a = Asm()
    def stamp(k):
        if diag: a(f"s_memrealtime s[{72+2*k}:{73+2*k}]")
    def srd(reg, ptr, nbytes):
        a(f"s_mov_b32 s{reg}, s{ptr}\ns_mov_b32 s{reg+1}, s{ptr+1}\ns_mov_b32 s{reg+2}, {nbytes}\ns_mov_b32 s{reg+3}, 0x20000")
    def dump_stamps(n):
        if not diag: return
        a("s_waitcnt lgkmcnt(0)")
        a("s_mov_b64 exec, 1")
        a("s_lshl_b32 s46, s2, 3\ns_add_u32 s46, s46, s3\ns_lshl_b32 s46, s46, 6")
        a(f"s_add_u32 s46, s46, {WS_DBG}")
        a("v_mov_b32 v1, 0")
        for k in range(n):
            a(f"v_mov_b32 v2, s{72+2*k}")
            a(f"buffer_store_dword v2, v1, s[48:51], s46 offen offset:{4*k}")
    FULL = "row_mask:0xf bank_mask:0xf"
    def allreduce(op, rs, tmps, rows_only=False, steps=("quad_perm:[1,0,3,2]", "quad_perm:[2,3,0,1]", "row_half_mirror", "row_mirror")):
        for st in steps:
            for r in rs: a(f"{op}_dpp v{r}, v{r}, v{r} {st} {FULL}")
        if rows_only: return
        for sw in ("v_permlane16_swap_b32", "v_permlane32_swap_b32"):
            for r, t in zip(rs, tmps): a(f"v_mov_b32 v{t}, v{r}")
            for r, t in zip(rs, tmps): a(f"{sw} v{r}, v{t}")
            for r, t in zip(rs, tmps): a(f"{op} v{r}, v{r}, v{t}")
    def bf16r(d, s):
        a(f"v_cvt_pk_bf16_f32 v{d}, v{s}, v{s}\nv_and_b32 v{d}, {HIMASK}, v{d}")
    def bf16r2(lo, hi, t):
        a(f"v_cvt_pk_bf16_f32 v{t}, v{lo}, v{hi}\nv_lshlrev_b32 v{lo}, 16, v{t}\nv_and_b32 v{hi}, {HIMASK}, v{t}")
    def unpack(lo, hi, s):
        a(f"v_lshlrev_b32 v{lo}, 16, v{s}\nv_and_b32 v{hi}, {HIMASK}, v{s}")
    def spin_begin(): a("s_mov_b32 s70, 0")
    def spin_check(): a(f"s_add_u32 s70, s70, 1\ns_cmp_gt_u32 s70, {SPIN_MAX}\ns_cbranch_scc1 L_end")
    MKTAG = "s_mul_i32 s45, s44, 1664525\ns_add_u32 s45, s45, 1013904223"
    BAR0 = "s_waitcnt lgkmcnt(0)\ns_barrier\ns_load_dword s44, s[42:43], 0"
    def set_flag(row, widx, va, vb):
        a(f"s_lshl_b32 s47, {widx}, 2\ns_add_u32 s47, s47, {L_FL+row}\nv_mov_b32 v{va}, s47\nv_mov_b32 v{vb}, 1\nds_write_b32 v{va}, v{vb}")
    def wait_flags(lbl, row, t, sleep):
        spin_begin()
        a(f"v_mov_b32 v{t+4}, {L_FL+row}")
        a(f"{lbl}:")
        spin_check()
        if sleep: a(f"s_sleep {sleep}")
        a(f"""
        ds_read_b128 v[{t}:{t+3}], v{t+4}
        s_waitcnt lgkmcnt(0)
        v_and_b32 v{t}, v{t}, v{t+1}
        v_and_b32 v{t+2}, v{t+2}, v{t+3}
        v_and_b32 v{t}, v{t}, v{t+2}
        v_readfirstlane_b32 s47, v{t}
        s_cmp_eq_u32 s47, 1
        s_cbranch_scc0 {lbl}
        """)

    hdr = open("cdna_kernels/" + NAME + ".s.ref").read().split("; Override launch")[0]
    out = hdr + f"; @launch grid=(256,1,1) block=(512,1,1) lds={LDS_BYTES}\n"
    a('.amdgcn_target "amdgcn-amd-amdhsa--gfx950"')
    a(".text")
    a(f".globl {NAME}_kernel")
    a(".p2align 8")
    a(f".type {NAME}_kernel,@function")
    a(f"{NAME}_kernel:")
    a("""
    s_cmp_ge_u32 s2, 256
    s_cbranch_scc1 L_end
    s_load_dwordx16 s[16:31], s[0:1], 0
    s_load_dwordx8 s[32:39], s[0:1], 64
    s_load_dwordx4 s[40:43], s[0:1], 96
    """)
    if diag:
        for k in range(1, 15): a(f"s_mov_b32 s{72+2*k}, 0")
    stamp(0)
    a("""
    v_lshrrev_b32 v1, 6, v0
    v_and_b32 v0, 63, v0
    v_readfirstlane_b32 s3, v1
    v_lshlrev_b32 v1, 4, v0
    s_lshr_b32 s12, s2, 3
    s_and_b32 s4, s12, 3
    s_lshl_b32 s4, s4, 3
    s_and_b32 s13, s2, 7
    s_add_u32 s4, s4, s13
    s_bfe_u32 s5, s12, 0x20002
    s_lshr_b32 s6, s12, 4
    s_mov_b32 s64, 0x3fb8aa3b
    s_mov_b32 s65, 0x3db504f3
    s_mov_b32 s66, 0xffff0000
    s_lshl_b32 s15, s5, 5
    s_add_u32 s15, s15, s4
    s_cmp_ge_u32 s3, 4
    s_cbranch_scc1 L_helper
    """)

    Q, MK, BB, ACC, PT, XX, YY, T0, T1, SC, RING = 2, 6, 10, 14, 18, 34, 42, 46, 47, 48, 64
    a("""
    s_lshl_b32 s13, s15, 21
    s_lshl_b32 s14, s6, 20
    s_add_u32 s13, s13, s14
    s_lshl_b32 s14, s3, 12
    s_add_u32 s13, s13, s14
    s_mov_b32 s12, s13
    s_lshl_b32 s14, s3, 15
    s_waitcnt lgkmcnt(0)
    s_mov_b32 s0, 0
    """)
    srd(8, P_K, 0x10000000)
    st = {"issued": 0, "landed": 0}
    PT_ = P + PL
    assert P % 4 == 0 and PL <= 32
    def ldsoff(n): return ((n - P + 16) % 32) * 1024
    def slot(n):
        if n < P: return RING + 4 * n
        if n < PT_: return RING + 4 * (16 + n - P)
        return RING + 4 * ((n - PT_) % 16)
    def issue(n):
        if P <= n < PT_:
            if n & 3 == 0: a(f"s_add_u32 m0, s14, {ldsoff(n)}")
            a(f"buffer_load_dwordx4 v1, s[8:11], s12 offen offset:{(n&3)*1024} nt lds")
        else:
            r = slot(n)
            a(f"buffer_load_dwordx4 v[{r}:{r+3}], v1, s[8:11], s12 offen offset:{(n&3)*1024} nt")
        if n & 3 == 3: a("s_add_u32 s12, s12, 0x4000")
        st["issued"] = n + 1
    def throttle(d=None):
        d = d or D
        a(f"s_waitcnt vmcnt({d-1})")
        st["landed"] = max(st["landed"], st["issued"] - (d - 1))
    def ensure(n):
        if n >= st["landed"]:
            k = st["issued"] - 1 - n
            a(f"s_waitcnt vmcnt({k})"); st["landed"] = n + 1
    for n in range(PT_):
        if n == P + 16: wait_flags("L_wqd", F_WQD, PT, 0)
        if n >= DP: throttle(DP)
        issue(n)
        if n == DP - 1:
            srd(48, P_WS, WS_SIZE)
            a(f"""
            s_mov_b32 s60, 0xaaaaaaaa
            s_mov_b32 s61, 0xaaaaaaaa
            s_mov_b32 s62, 0xcccccccc
            s_mov_b32 s63, 0xcccccccc
            v_and_b32 v{T0}, 15, v0
            v_and_b32 v{T1}, 1, v0
            v_lshlrev_b32 v{T1}, 4, v{T1}
            v_mov_b32 v{PT}, 0xffff
            v_lshlrev_b32 v{T1}, v{T1}, v{PT}
            v_lshrrev_b32 v{PT}, 1, v{T0}
            """)
            for t in range(4):
                a(f"v_cmp_eq_u32 vcc, {t}, v{PT}\nv_cndmask_b32 v{MK+t}, 0, v{T1}, vcc")
            for t in range(4): a(f"v_mov_b32 v{ACC+t}, 0")
            a(f"v_lshlrev_b32 v{T0}, 4, v{T0}\nv_add_u32 v{T0}, {L_Q}, v{T0}")
            a("s_barrier")
        if n == gm: set_flag(F_G1, "s3", PT, PT+1)
        if n == gq: set_flag(F_G2, "s3", PT, PT+1)
    stamp(1)
    a("s_barrier")
    stamp(2)
    a(f"ds_read_b128 v[{Q}:{Q+3}], v{T0}\nv_add_u32 v{T0}, s14, v1\ns_waitcnt lgkmcnt(0)")
    def kdots(n):
        r = slot(n); p = PT + n % 16
        a(f"v_dot2_f32_bf16 v{p}, v{r}, v{Q}, 0")
        for i in range(1, 4): a(f"v_dot2_f32_bf16 v{p}, v{r+i}, v{Q+i}, v{p}")
    def kreduce(dst):
        for j in range(8): a(f"v_add_f32_dpp v{XX+j}, v{PT+j}, v{PT+j} row_ror:8 row_mask:0xf bank_mask:0x3")
        for j in range(8): a(f"v_add_f32_dpp v{XX+j}, v{PT+8+j}, v{PT+8+j} row_ror:8 row_mask:0xf bank_mask:0xc")
        for j in range(4): a(f"v_add_f32_dpp v{YY+j}, v{XX+j}, v{XX+j} row_half_mirror row_mask:0xf bank_mask:0x5")
        for j in range(4): a(f"v_add_f32_dpp v{YY+j}, v{XX+4+j}, v{XX+4+j} row_half_mirror row_mask:0xf bank_mask:0xa")
        for j in range(2):
            a(f"v_cndmask_b32 v{XX+2*j}, v{YY+j+2}, v{YY+j}, s[62:63]")
            a(f"v_cndmask_b32 v{XX+2*j+1}, v{YY+j}, v{YY+j+2}, s[62:63]")
        for j in range(2):
            a(f"v_add_f32_dpp v{XX+4+j}, v{XX+2*j}, v{XX+2*j+1} quad_perm:[2,3,0,1] {FULL}")
        a(f"v_cndmask_b32 v{XX}, v{XX+5}, v{XX+4}, s[60:61]")
        a(f"v_cndmask_b32 v{XX+1}, v{XX+4}, v{XX+5}, s[60:61]")
        a(f"v_add_f32_dpp v{XX+2}, v{XX}, v{XX+1} quad_perm:[1,0,3,2] {FULL}")
        bf16r(XX+2, XX+2)
        a(f"v_mul_f32 v{XX+2}, {SCALE}, v{XX+2}")
        bf16r(dst, XX+2)
    tgt = -(-(PT_ + 16 - A + 4) // 16) * 16
    NPEEL = tgt // 16
    KL = 16 - NPEEL
    cons = {"n": 0}
    def consume_k_upto(m):
        while cons["n"] < m:
            n = cons["n"]
            if n == P:
                a("s_waitcnt lgkmcnt(0)")
                set_flag(F_WF, "s3", T0, T1)
            ensure(n); kdots(n); cons["n"] += 1
            m2 = n - 16 + P
            if n >= 16 and P <= m2 < PT_:
                ensure(m2)
                r = slot(m2)
                a(f"ds_read_b128 v[{r}:{r+3}], v{T0} offset:{ldsoff(m2)}")
            if n % 16 == 15: kreduce(SC + n // 16 + KL)
    nsteps = tgt + A - PT_
    for s in range(nsteps):
        n = PT_ + s
        prev = s if s < 16 else n - 16
        if s <= 16: want = 1 + -(-PT_ * s // 16)
        else: want = PT_ + 1 + -(-(tgt - PT_ - 1) * (s - 16) // (nsteps - 16))
        want = min(want, max(st["landed"], PT_))
        consume_k_upto(min(max(want, prev + 1), tgt))
        throttle(); issue(n)
    a("s_memrealtime s[52:53]")
    consume_k_upto(tgt)
    FA, FAD, TTA, TTV = 128, 132, 133, 134
    LV = [x[0] for x in levels]
    a(f"""
    s_mov_b32 s14, 0
    s_mov_b32 s56, 0
    s_lshl_b32 s47, s3, 4
    s_add_u32 s47, s47, {L_FL+F_FAC}
    v_mov_b32 v{FAD}, s47
    s_lshl_b32 s47, s3, 2
    s_add_u32 s47, s47, {L_FL+F_TT}
    v_mov_b32 v{TTA}, s47
    v_mov_b32 v{FA+3}, 0
    """)
    def record():
        a(f"""
        s_waitcnt lgkmcnt(0)
        s_or_b32 s53, s52, 1
        v_mov_b32 v{TTV}, s53
        ds_write_b32 v{TTA}, v{TTV}
        v_add_u32 v{TTA}, 16, v{TTA}
        """)
    def dispatch(pre):
        a(f"""
        v_readfirstlane_b32 s55, v{FA+3}
        v_readfirstlane_b32 s54, v{FA+2}
        s_cmp_eq_u32 s55, 0
        s_cbranch_scc1 {pre}{D}
        s_mul_i32 s55, s55, s56
        s_lshr_b32 s55, s55, 4
        s_sub_u32 s52, s52, s54
        s_sub_u32 s52, s52, s55
        """)
        for dd, th in levels:
            if th is None: a(f"s_branch {pre}{dd}")
            else: a(f"s_cmp_lt_i32 s52, {th}\ns_cbranch_scc1 {pre}{dd}")
    a("L_kdisp:")
    record()
    a(f"s_cmp_ge_u32 s14, {KL}\ns_cbranch_scc1 L_kdone")
    if kctl: dispatch("L_k")
    for dd in (LV if kctl else [D]):
        assert dd <= A
        a(f"L_k{dd}:")
        a(f"ds_read_b128 v[{FA}:{FA+3}], v{FAD}")
        for j in range(16):
            n = tgt + j
            a(f"s_waitcnt vmcnt({dd-1})")
            if j == 16 - A:
                a(f"s_cmp_eq_u32 s14, {KL-1}\ns_cselect_b32 s8, s{P_V}, s8\ns_cselect_b32 s9, s{P_V+1}, s9\ns_cselect_b32 s12, s13, s12")
            issue(n + A)
            if j == 15: a("s_memrealtime s[52:53]")
            kdots(n)
            if j == 7:
                for i in range(15): a(f"v_mov_b32 v{SC+i}, v{SC+i+1}")
        kreduce(SC + 15)
        a("s_add_u32 s14, s14, 1\ns_add_u32 s56, s56, 4\ns_branch L_kdisp")
    a("L_kdone:")
    stamp(3)
    ex = {"n": 256 + A}
    def extra():
        if ex["n"] < 256 + A + E:
            a(f"s_waitcnt vmcnt({D-1})"); issue(ex["n"]); ex["n"] += 1
    extra()
    M, Ls = PT, PT + 1
    a(f"v_max3_f32 v{M}, v{SC}, v{SC+1}, v{SC+2}")
    for i in range(3, 15, 2): a(f"v_max3_f32 v{M}, v{M}, v{SC+i}, v{SC+i+1}")
    a(f"v_max_f32 v{M}, v{M}, v{SC+15}")
    allreduce("v_max_f32", [M], [T0])
    a(f"v_mul_f32 v{T1}, {LOG2E}, v{M}")
    extra()
    for i in range(16): a(f"v_fma_f32 v{SC+i}, v{SC+i}, {LOG2E}, -v{T1}")
    for i in range(16): a(f"v_exp_f32 v{SC+i}, v{SC+i}")
    extra()
    a(f"v_add_f32 v{Ls}, v{SC}, v{SC+1}\nv_add_f32 v{Ls+1}, v{SC+2}, v{SC+3}")
    for i in range(4, 16, 2): a(f"v_add_f32 v{Ls}, v{Ls}, v{SC+i}\nv_add_f32 v{Ls+1}, v{Ls+1}, v{SC+i+1}")
    a(f"v_add_f32 v{Ls}, v{Ls}, v{Ls+1}")
    for i in range(16): a(f"v_cvt_pk_bf16_f32 v{SC+i}, v{SC+i}, v{SC+i}")
    extra()
    allreduce("v_add_f32", [Ls], [T0])
    a(f"ds_write_b64 v{FAD}, v[{M}:{Ls}] offset:{F_ST-F_FAC}")
    set_flag(F_KD, "s3", PT+5, PT+6)
    while ex["n"] < 256 + A + E: extra()
    a("s_memrealtime s[52:53]")
    AV = A + E
    assert AV <= 15
    a(f"""
    v_lshrrev_b32 v{PT}, 4, v0
    v_lshlrev_b32 v{PT}, 6, v{PT}
    v_and_b32 v{PT+1}, 15, v0
    v_lshl_add_u32 v{PT}, v{PT+1}, 1, v{PT}
    s_mul_i32 s46, s3, {OP_STRIDE}
    s_add_u32 s46, s46, {L_OP}
    v_add_u32 v{PT}, s46, v{PT}
    s_mov_b32 s14, 0
    s_add_u32 s56, s56, {E//4}
    s_waitcnt lgkmcnt(0)
    """)
    def vbody(dd, last, timed):
        assert dd <= AV
        a(f"ds_read_b128 v[{FA}:{FA+3}], v{FAD}")
        for j in range(16):
            n = 256 + j
            for t in range(4): a(f"v_and_b32_dpp v{BB+t}, v{SC}, v{MK+t} row_newbcast:{j} {FULL}")
            a(f"s_waitcnt vmcnt({dd-1})")
            if j == 16 - AV and last:
                a("s_cmp_eq_u32 s14, 15\ns_cselect_b32 s10, 0, s10")
            issue(n + AV)
            r = slot(n)
            if j == 15 and timed: a("s_memrealtime s[52:53]")
            a(f"v_mfma_f32_16x16x32_bf16 v[{ACC}:{ACC+3}], v[{r}:{r+3}], v[{BB}:{BB+3}], v[{ACC}:{ACC+3}]")
        if lastctl: a("s_cmp_eq_u32 s14, 15\ns_cbranch_scc1 L_sepi")
        for i in range(15): a(f"v_mov_b32 v{SC+i}, v{SC+i+1}")
        a("s_add_u32 s14, s14, 1\ns_add_u32 s56, s56, 4")
    assert NE >= 1
    a("s_branch L_vd1")
    a("L_vdisp:")
    if lastctl:
        record()
    else:
        record()
        a(f"s_cmp_ge_u32 s14, {16-NE}\ns_cbranch_scc1 L_vlast")
    a("L_vd1:")
    dispatch("L_v")
    for dd in LV:
        a(f"L_v{dd}:")
        vbody(dd, lastctl, True)
        a("s_branch L_vdisp")
    if not lastctl:
        a("L_vlast:")
        vbody(D2, True, False)
        a("s_cmp_lt_u32 s14, 16\ns_cbranch_scc1 L_vlast")
    a("L_sepi:")
    a("s_nop 7")
    stamp(4)
    spin_begin()
    a("L_facspin:")
    a(f"s_waitcnt lgkmcnt(0)\nv_readfirstlane_b32 s46, v{FA+1}\ns_cmp_eq_u32 s46, 1\ns_cbranch_scc1 L_facok")
    spin_check()
    a(f"ds_read_b128 v[{FA}:{FA+3}], v{FAD}\ns_branch L_facspin")
    a("L_facok:")
    for t in range(4): a(f"v_mul_f32 v{ACC+t}, v{ACC+t}, v{FA}")
    a(f"v_cvt_pk_bf16_f32 v{ACC}, v{ACC}, v{ACC+1}\nv_cvt_pk_bf16_f32 v{ACC+2}, v{ACC+2}, v{ACC+3}")
    a(f"""
    s_mov_b32 exec_lo, 0x00ff00ff
    s_mov_b32 exec_hi, 0x00ff00ff
    ds_write_b16 v{PT}, v{ACC}
    ds_write_b16_d16_hi v{PT}, v{ACC} offset:16
    ds_write_b16 v{PT}, v{ACC+2} offset:32
    ds_write_b16_d16_hi v{PT}, v{ACC+2} offset:48
    s_waitcnt lgkmcnt(0)
    """)
    if dry: a("s_cmp_eq_u32 s0, 1\ns_cbranch_scc1 L_tail0")
    a("s_barrier")
    stamp(5)
    dump_stamps(6)
    a("s_endpgm")

    a("L_helper:")
    TRB, DA, DB, DN, TA, TB, TC = 2, 4, 5, 6, 7, 8, 9
    a(f"""
    s_memrealtime s[60:61]
    s_sub_u32 s7, s3, 4
    """)
    def lane_consts():
        a(f"""
        v_lshrrev_b32 v{TA}, 4, v0
        v_bfe_u32 v{TB}, v0, 2, 2
        v_and_b32 v{TC}, 3, v0
        v_lshl_add_u32 v{TRB}, v{TA}, 3, v{TB}
        v_lshlrev_b32 v{TRB}, 8, v{TRB}
        v_lshl_add_u32 v{TRB}, v{TC}, 3, v{TRB}
        v_and_b32 v{TC}, 1, v{TA}
        v_lshl_add_u32 v{TB}, v{TC}, 2, v{TB}
        v_lshl_add_u32 v{TRB}, v{TB}, 5, v{TRB}
        s_lshl_b32 s12, s7, 15
        v_add_u32 v{TRB}, s12, v{TRB}
        v_and_b32 v{TB}, 15, v0
        v_lshlrev_b32 v{TC}, 1, v{TA}
        v_xor_b32 v{TB}, v{TB}, v{TC}
        v_lshlrev_b32 v{DN}, 4, v{TB}
        """)
    lane_consts()
    a(f"""
    s_lshr_b32 s69, s2, 3
    s_and_b32 s12, s2, 7
    s_mov_b32 s68, 4
    s_cmp_lt_u32 s69, {NFFN}
    s_cselect_b32 s68, 5, s68
    s_cmp_eq_u32 s12, 0
    s_cbranch_scc1 L_role
    s_mul_i32 s69, s69, 7
    s_add_u32 s69, s69, s12
    s_sub_u32 s69, s69, 1
    s_mov_b32 s68, 1
    s_cmp_lt_u32 s69, 16
    s_cbranch_scc1 L_role
    s_sub_u32 s69, s69, 16
    s_mov_b32 s68, 3
    s_cmp_lt_u32 s69, 64
    s_cbranch_scc1 L_role
    s_sub_u32 s69, s69, 48
    s_mov_b32 s68, 2
    s_cmp_lt_u32 s69, 48
    s_cbranch_scc1 L_role
    s_mov_b32 s68, 0
    L_role:
    """)
    a(f"""
    s_cmp_lg_u32 s7, 3
    s_cbranch_scc1 L_noinit
    s_and_b32 s12, s68, 1
    s_xor_b32 s12, s12, 1
    v_cmp_eq_u32 vcc, {F_WQD//16}, v0
    v_mov_b32 v17, s12
    v_cndmask_b32 v16, 0, v17, vcc
    v_mov_b32 v17, v16
    v_mov_b32 v18, v16
    v_mov_b32 v19, v16
    v_add_u32 v20, {L_FL}, v1
    ds_write_b128 v20, v[16:19]
    L_noinit:
    s_waitcnt lgkmcnt(0)
    s_mov_b32 s0, 0
    s_mov_b32 s71, 0
    s_mov_b32 s58, 0x0c0c0400
    s_mov_b32 s59, 0x04000c0c
    """)
    srd(48, P_WS, WS_SIZE)
    def dma_wide(nins, rs_log2, soff, infl, hooks={}):
        a(f"v_lshrrev_b32 v{TA}, 4, v0\nv_lshl_add_u32 v{DA}, v{TA}, {rs_log2}, v{DN}\nv_xor_b32 v{DB}, 0x80, v{DA}")
        a("s_lshl_b32 s14, s7, 15")
        for i in range(nins):
            a("s_mov_b32 m0, s14" if i == 0 else "s_add_u32 m0, m0, 0x400")
            if i: a(f"s_add_u32 {soff}, {soff}, {4 << rs_log2}")
            a(f"buffer_load_dwordx4 v{DB if (i >> 1) & 1 else DA}, s[8:11], {soff} offen nt lds")
            if i in hooks: hooks[i]()
            if i >= infl - 1: a(f"s_waitcnt vmcnt({infl-1})")
    def dma_mid(soff, ldsbase, infl, rs, hooks={}):
        a(f"""
        v_lshrrev_b32 v{DA}, 3, v0
        v_mul_u32_u24 v{DA}, {rs}, v{DA}
        v_bfe_u32 v{DB}, v0, 4, 1
        v_lshlrev_b32 v{DB}, 1, v{DB}
        v_and_b32 v{TA}, 7, v0
        v_xor_b32 v{DB}, v{DB}, v{TA}
        v_lshl_add_u32 v{DA}, v{DB}, 4, v{DA}
        v_xor_b32 v{DB}, 64, v{DA}
        """)
        for i in range(16):
            a(f"s_mov_b32 m0, {ldsbase}" if i == 0 else "s_add_u32 m0, m0, 0x400")
            if i: a(f"s_add_u32 {soff}, {soff}, {8*rs}")
            a(f"buffer_load_dwordx4 v{DB if i & 1 else DA}, s[8:11], {soff} offen nt lds")
            if i in hooks: hooks[i]()
            if i >= infl - 1: a(f"s_waitcnt vmcnt({infl-1})")
    def mid_bases():
        a(f"""
        v_lshrrev_b32 v{TB}, 4, v0
        v_bfe_u32 v{TC}, v0, 2, 2
        v_lshl_add_u32 v{TA}, v{TB}, 3, v{TC}
        v_lshlrev_b32 v{TA}, 7, v{TA}
        v_and_b32 v{TB}, 1, v{TB}
        v_lshrrev_b32 v{TC}, 1, v{TC}
        v_lshl_add_u32 v{TB}, v{TB}, 1, v{TC}
        v_xor_b32 v{TB}, s7, v{TB}
        v_lshl_add_u32 v{TA}, v{TB}, 5, v{TA}
        v_and_b32 v{TB}, 3, v0
        v_lshl_add_u32 v{TA}, v{TB}, 3, v{TA}
        v_add_u32 v{TB}, 0x10000, v{TA}
        """)
    def tr_mid(dst, off):
        for s in range(16):
            r = dst + 4 * s
            ar = TA if s < 8 else TB
            o = off + ((s >> 2) & 1) * 0x8000 + (s & 3) * 4096
            a(f"ds_read_b64_tr_b16 v[{r}:{r+1}], v{ar} offset:{o}")
            a(f"ds_read_b64_tr_b16 v[{r+2}:{r+3}], v{ar} offset:{o+512}")
        a("s_waitcnt lgkmcnt(0)")
    def tr_wide(dst, nk):
        for t in range(8):
            ar = TA if t & 1 else TB
            a(f"v_xor_b32 v{ar}, {t << 5}, v{TRB}")
            for s in range(nk):
                r = dst + (t * nk + s) * 4
                a(f"ds_read_b64_tr_b16 v[{r}:{r+1}], v{ar} offset:{s*8192}")
                a(f"ds_read_b64_tr_b16 v[{r+2}:{r+3}], v{ar} offset:{s*8192+1024}")
        a("s_waitcnt lgkmcnt(0)")
    def act_addr(dst, rowsel, tmp):
        a(f"v_and_b32 v{dst}, 3, v0" if rowsel == "lo" else f"v_bfe_u32 v{dst}, v0, 2, 2")
        a(f"v_mul_u32_u24 v{dst}, {ACT_STRIDE}, v{dst}\nv_lshrrev_b32 v{tmp}, 4, v0\nv_lshl_add_u32 v{dst}, v{tmp}, 4, v{dst}\nv_add_u32 v{dst}, {L_ACT}, v{dst}")
    def poll(lbl, loads, tags, sleep=0, pre="", post=""):
        spin_begin()
        if sleep: a(f"s_branch {lbl}_go")
        a(f"{lbl}:")
        spin_check()
        if sleep: a(f"s_sleep {sleep}\n{lbl}_go:")
        a(pre)
        for l in loads: a(l)
        a(post)
        a("s_waitcnt vmcnt(0)")
        tags()
        a(f"s_cmp_eq_u64 vcc, exec\ns_cbranch_scc0 {lbl}")
    def tags_words(regs):
        def f():
            a(f"v_cmp_eq_u32 vcc, {TAG}, v{regs[0]}")
            for r in regs[1:]: a(f"v_cmp_eq_u32 s[56:57], {TAG}, v{r}\ns_and_b64 vcc, vcc, s[56:57]")
        return f
    def tags_xor(regs, t):
        def f():
            a(f"v_xor_b32 v{t}, {TAG}, v{regs[0]}")
            for r in regs[1:]: a(f"v_xor_b32 v{t+1}, {TAG}, v{r}\nv_or_b32 v{t}, v{t}, v{t+1}")
            a(f"v_cmp_eq_u32 vcc, 0, v{t}")
        return f
    def tags_bytes(quads, t):
        def f():
            for i, q in enumerate(quads):
                a(f"v_perm_b32 v{t+2*i}, v{q+1}, v{q}, s58\nv_perm_b32 v{t+2*i+1}, v{q+3}, v{q+2}, s59")
            for i, q in enumerate(quads): a(f"v_or_b32 v{t+2*i}, v{t+2*i}, v{t+2*i+1}")
            for i, q in enumerate(quads): a(f"v_xor_b32 v{t+2*i}, {TAG}, v{t+2*i}")
            n = len(quads)
            if n == 4: a(f"v_or3_b32 v{t}, v{t}, v{t+2}, v{t+4}\nv_or_b32 v{t}, v{t}, v{t+6}")
            else: a(f"v_or_b32 v{t}, v{t}, v{t+2}")
            a(f"v_cmp_eq_u32 vcc, 0, v{t}")
        return f
    def ln_stats(x0, t0):
        a(f"v_readfirstlane_b32 s46, v{x0}")
        for k in range(8): a(f"v_subrev_f32 v{t0+2+k}, s46, v{x0+k}")
        a(f"v_add_f32 v{t0}, v{t0+2}, v{t0+3}\nv_mul_f32 v{t0+1}, v{t0+2}, v{t0+2}")
        a(f"v_fmac_f32 v{t0+1}, v{t0+3}, v{t0+3}")
        for k in range(2, 8): a(f"v_add_f32 v{t0}, v{t0}, v{t0+2+k}\nv_fmac_f32 v{t0+1}, v{t0+2+k}, v{t0+2+k}")
        allreduce("v_add_f32", [t0, t0+1], [t0+2, t0+3])
        a(f"""
        v_mul_f32 v{t0}, 0x3b000000, v{t0}
        v_mul_f32 v{t0+1}, 0x3b000000, v{t0+1}
        v_fma_f32 v{t0+1}, -v{t0}, v{t0}, v{t0+1}
        v_add_f32 v{t0}, s46, v{t0}
        v_max_f32 v{t0+1}, 0, v{t0+1}
        """)
        bf16r2(t0, t0+1, t0+2)
        a(f"v_add_f32 v{t0+1}, 0x3727c5ac, v{t0+1}")
        bf16r(t0+1, t0+1)
        a(f"v_sqrt_f32 v{t0+1}, v{t0+1}")
        bf16r(t0+1, t0+1)
        a(f"v_rcp_f32 v{t0+1}, v{t0+1}")
    def round8(x0, t):
        for k in range(4): a(f"v_cvt_pk_bf16_f32 v{t+k}, v{x0+2*k}, v{x0+2*k+1}")
        for k in range(4): unpack(x0 + 2*k, x0 + 2*k + 1, t + k)
    def ln_norm(x0, s0, t):
        for k in range(8): a(f"v_sub_f32 v{x0+k}, v{x0+k}, v{s0}")
        round8(x0, t)
        for k in range(8): a(f"v_mul_f32 v{x0+k}, v{x0+k}, v{s0+1}")
        round8(x0, t)
    def ln_affine(x0, sc8, sh8, t):
        for k in range(8): a(f"v_mul_f32 v{x0+k}, v{x0+k}, v{sc8+k}")
        round8(x0, t)
        for k in range(8): a(f"v_add_f32 v{x0+k}, v{x0+k}, v{sh8+k}")
        for k in range(4): a(f"v_cvt_pk_bf16_f32 v{t+k}, v{x0+2*k}, v{x0+2*k+1}")
    X8, ST, SA8, CA8, BW, DT = 24, 32, 40, 48, 192, 56
    def gemv64(tagn, kind, infl, first):
        isq = kind == "q"
        srd(52, P_X if isq else P_C, 4096)
        a(f"""
        v_lshlrev_b32 v10, 3, v0
        s_lshl_b32 s12, s7, 10
        buffer_load_dwordx2 v[12:13], v10, s[52:55], s12 offen
        buffer_load_dwordx2 v[14:15], v10, s[52:55], s12 offen offset:512
        """)
        rs = 8192 if isq else 6144
        srd(8, P_WQ if isq else P_WM, 0 if ({"q": "q", "A": "A", "a": "a"}[kind] in skip) else 512 * rs)
        a(f"s_mul_i32 s13, s7, {128*rs}\ns_lshl_b32 s12, s69, 7\ns_add_u32 s13, s13, s12\ns_lshl_b32 s14, s7, 15")
        dma_mid("s13", "s14", infl, rs, hooks=({min(infl, 16) - 1: lambda: a(BAR0)} if first else {}))
        a("s_waitcnt vmcnt(16)")
        if kind == "A": stamp(1)
        for k in range(4): unpack(X8 + 2*k, X8 + 2*k + 1, 12 + k)
        a(f"s_mul_i32 s12, s7, {ACT_STRIDE}\ns_add_u32 s12, s12, {L_ACT}\nv_add_u32 v10, s12, v10")
        if isq:
            ln_stats(X8, ST)
            ln_norm(X8, ST, 16)
        else:
            for k in range(8): a(f"v_mul_f32 v{ST+k}, {LOG2E}, v{X8+k}")
            for k in range(8): a(f"v_exp_f32 v{ST+k}, -v{ST+k}")
            for k in range(8): a(f"v_add_f32 v{ST+k}, 1.0, v{ST+k}")
            for k in range(8): a(f"v_rcp_f32 v{ST+k}, v{ST+k}")
            for k in range(8): a(f"v_mul_f32 v{X8+k}, v{X8+k}, v{ST+k}")
            for k in range(4): a(f"v_cvt_pk_bf16_f32 v{16+k}, v{X8+2*k}, v{X8+2*k+1}")
            a("ds_write_b64 v10, v[16:17]\nds_write_b64 v10, v[18:19] offset:512")
        mid_bases()
        a("s_waitcnt vmcnt(0)")
        set_flag(F_WQ, "s7", 20, 21)
        wait_flags(f"L_wq{tagn}", F_WQ, 16, 0)
        if first: a(MKTAG)
        stamp(4 if isq else 2) if first else None
        tr_mid(BW, 0)
        if first: set_flag(F_WQD, "s7", 16, 17)
        act_addr(TC, "lo", TB)
        a(f"s_lshl_b32 s67, s69, 10\ns_lshl_b32 s12, s7, 8\ns_add_u32 s67, s67, s12\ns_add_u32 s67, s67, {WS_Q if isq else WS_MOD}")
        if isq:
            a(f"""
            v_lshrrev_b32 v{TA}, 2, v0
            v_lshlrev_b32 v{TA}, 8, v{TA}
            v_and_b32 v{TB}, 3, v0
            v_lshl_add_u32 v{TA}, v{TB}, 4, v{TA}
            s_lshl_b32 s12, s7, 6
            s_add_u32 s12, s12, {WS_MOD}
            s_add_u32 s13, s12, 0x1000
            s_add_u32 s14, s12, 0x2000
            s_add_u32 s46, s12, 0x3000
            """)
            if gm: wait_flags("L_g1", F_G1, 16, 4)
            G0 = 128
            poll("L_poll_mod", [f"buffer_load_dwordx4 v[{G0+4*i}:{G0+4*i+3}], v{TA}, s[48:51], {sr} offen sc1" for i, sr in enumerate(["s12", "s13", "s14", "s46"])],
                 tags_xor([G0 + 1 + 2*k for k in range(8)], 16), sleep=slp)
            stamp(5)
            for k in range(4): unpack(SA8 + 2*k, SA8 + 2*k + 1, G0 + 2*k)
            for k in range(4): unpack(CA8 + 2*k, CA8 + 2*k + 1, G0 + 8 + 2*k)
            for k in range(8): a(f"v_add_f32 v{CA8+k}, 1.0, v{CA8+k}")
            round8(CA8, 16)
            ln_affine(X8, CA8, SA8, 16)
            a("ds_write_b64 v10, v[16:17]\nds_write_b64 v10, v[18:19] offset:512")
            set_flag(F_H, "s7", 20, 21)
            wait_flags("L_h", F_H, 16, 0)
        for hh in range(2):
            for s in range(8): a(f"ds_read_b128 v[{16+4*s}:{19+4*s}], v{TC} offset:{(8*hh+s)*64}")
            for s in range(8):
                a(f"s_waitcnt lgkmcnt({7-s})")
                k = 8*hh + s
                a(f"v_mfma_f32_16x16x32_bf16 v[{DT}:{DT+3}], v[{BW+4*k}:{BW+4*k+3}], v[{16+4*s}:{19+4*s}], " + ("0" if k == 0 else f"v[{DT}:{DT+3}]"))
        a(f"""
        v_and_b32 v{TC}, 3, v0
        v_lshrrev_b32 v{TA}, 4, v0
        v_lshlrev_b32 v{TA}, 4, v{TA}
        v_lshl_add_u32 v{TA}, v{TC}, 6, v{TA}
        v_mov_b32 v{DT+5}, {TAG}
        v_mov_b32 v{DT+7}, {TAG}
        v_cvt_pk_bf16_f32 v{DT+4}, v{DT}, v{DT+1}
        v_cvt_pk_bf16_f32 v{DT+6}, v{DT+2}, v{DT+3}
        s_mov_b32 exec_lo, 0x000f000f
        s_mov_b32 exec_hi, 0x000f000f
        buffer_store_dwordx4 v[{DT+4}:{DT+7}], v{TA}, s[48:51], s67 offen sc1
        s_mov_b64 exec, -1
        """)
        if first: stamp(13 if isq else 3)

    a("""
    s_cmp_eq_u32 s68, 3
    s_cbranch_scc1 L_qgemv
    s_cmp_eq_u32 s68, 5
    s_cbranch_scc1 L_down
    s_cmp_lg_u32 s68, 1
    s_cbranch_scc1 L_bar0
    """)
    gemv64(1, "A", 64, True)
    a("s_branch L_getq")
    a("L_qgemv:")
    gemv64(2, "q", thrQ, True)
    a("s_branch L_getq")
    a("L_down:")
    srd(8, P_WD, 0 if 'f' in skip else 1792 * 1024)
    a("s_lshl_b32 s13, s69, 16\ns_lshl_b32 s12, s7, 8\ns_add_u32 s13, s13, s12")
    dma_wide(16, 10, "s13", thrD, hooks={min(thrD, 16) - 1: lambda: a(BAR0)})
    a("s_waitcnt vmcnt(0)")
    tr_wide(192, 2)
    a(MKTAG)
    set_flag(F_WQD, "s7", 16, 17)
    a("s_branch L_getq")
    a("L_bar0:")
    a(BAR0)
    a("s_waitcnt lgkmcnt(0)")
    a(MKTAG)
    a("L_getq:")
    a("s_cmp_lg_u32 s7, 2\ns_cbranch_scc1 L_bar1")
    a(f"""
    v_bfe_u32 v{TA}, v0, 2, 3
    v_lshlrev_b32 v{TA}, 8, v{TA}
    v_and_b32 v{TB}, 3, v0
    v_lshl_add_u32 v{TA}, v{TB}, 4, v{TA}
    s_lshl_b32 s12, s4, 11
    s_lshl_b32 s13, s5, 6
    s_add_u32 s12, s12, s13
    s_add_u32 s12, s12, {WS_Q}
    v_and_b32 v{TB}, 31, v0
    v_lshlrev_b32 v{TB}, 3, v{TB}
    v_add_u32 v{TB}, {L_Q}, v{TB}
    """)
    if gq: wait_flags("L_g2", F_G2, 16, 4)
    poll("L_poll_q", [f"buffer_load_dwordx4 v[16:19], v{TA}, s[48:51], s12 offen sc1"], tags_words([17, 19]), sleep=slp)
    a(f"v_mov_b32 v17, v18\nds_write_b64 v{TB}, v[16:17]\ns_waitcnt lgkmcnt(0)")
    a("L_bar1:")
    a("s_barrier")
    stamp(6)
    a(f"""
    s_getreg_b32 s62, hwreg(HW_REG_XCC_ID)
    s_cmp_lt_u32 s68, 4
    s_cbranch_scc1 L_noxcc
    s_cmp_lg_u32 s7, 1
    s_cbranch_scc1 L_noxcc
    v_mov_b32 v16, s62
    v_mov_b32 v17, {TAG}
    s_lshl_b32 s12, s69, 7
    s_add_u32 s12, s12, {WS_XCC}
    s_mov_b64 exec, 1
    buffer_store_dwordx2 v[16:17], v1, s[48:51], s12 offen sc1
    s_mov_b64 exec, -1
    L_noxcc:
    """)
    if tlb:
        a("s_cmp_lg_u32 s7, 3\ns_cbranch_scc1 L_notlb\ns_mov_b64 exec, 1")
        srd(8, P_V, 0x10000000)
        a("s_lshl_b32 s12, s15, 21\ns_lshl_b32 s13, s6, 20\ns_add_u32 s12, s12, s13\nbuffer_load_dword v16, v1, s[8:11], s12 offen nt")
        srd(8, P_OUT, 4096)
        a("buffer_load_dword v17, v1, s[8:11], 0 offen nt")
        a(f"s_mov_b32 s12, {WS_TM}\nbuffer_load_dword v18, v1, s[48:51], s12 offen offset:1024 nt")
        a("s_mov_b64 exec, -1\ns_waitcnt vmcnt(0)\nL_notlb:")
    def wait_row(lbl, g):
        spin_begin()
        a(f"v_mov_b32 v20, {L_FL+F_TT+16*g}")
        a(f"s_branch {lbl}_go\n{lbl}:")
        spin_check()
        a(f"""
        s_sleep 8
        {lbl}_go:
        ds_read_b128 v[16:19], v20
        s_waitcnt lgkmcnt(0)
        v_and_b32 v21, v16, v17
        v_and_b32 v22, v18, v19
        v_and_b32 v21, v21, v22
        v_readfirstlane_b32 s47, v21
        s_bitcmp1_b32 s47, 0
        s_cbranch_scc0 {lbl}
        """)
    def tm_publish(m, g):
        a(f"""
        s_lshr_b32 s12, s15, 3
        s_xor_b32 s12, s12, s15
        s_and_b32 s12, s12, 1
        s_bfe_u32 s14, s15, 0x10004
        s_xor_b32 s14, s14, s6
        s_or_b32 s12, s12, s14
        s_or_b32 s12, s12, s7
        s_cbranch_scc1 L_tmp{m}
        """)
        wait_row(f"L_tr{m}", g)
        for k in range(4): a(f"v_subrev_u32 v{16+k}, s60, v{16+k}")
        a(f"""
        v_add3_u32 v16, v16, v17, v18
        v_add_u32 v16, v16, v19
        v_lshrrev_b32 v16, 2, v16
        v_add_u32 v16, s60, v16
        v_mov_b32 v17, {TAG}
        v_mov_b32 v18, s60
        v_mov_b32 v19, {TAG}
        s_lshr_b32 s12, s15, 1
        s_mul_i32 s12, s12, {TMSTR}
        s_add_u32 s12, s12, {WS_TM + 128*m}
        s_mov_b64 exec, 1
        buffer_store_dwordx4 v[16:19], v1, s[48:51], s12 offen sc1
        s_mov_b64 exec, -1
        L_tmp{m}:
        """)
    import struct
    def fhex(v): return hex(struct.unpack("<I", struct.pack("<f", v))[0])
    def tm_gather(m, gate, p_m, mult):
        a(f"s_cmp_lg_u32 s7, 0\ns_cbranch_scc1 L_tmg{m}")
        wait_row(f"L_tg{m}", gate)
        a(f"v_mul_u32_u24 v20, {TMSTR}, v0\ns_mov_b32 s12, {WS_TM + 128*m}")
        poll(f"L_poll_tm{m}", ["buffer_load_dwordx4 v[16:19], v20, s[48:51], s12 offen sc1"], tags_words([17, 19]), sleep=48)
        a("v_sub_u32 v18, v16, v18\nv_subrev_u32 v16, s60, v16")
        allreduce("v_add_u32", [16, 18], [17, 19])
        a("v_ashrrev_i32 v16, 6, v16\nv_lshrrev_b32 v18, 6, v18")
        if m > 1: a("v_subrev_u32 v18, s61, v16")
        a(f"""
        v_readfirstlane_b32 s61, v16
        v_cvt_f32_u32 v18, v18
        v_mul_f32 v18, {fhex(mult)}, v18
        v_cvt_u32_f32 v17, v18
        v_mul_u32_u24 v18, {p_m}, v17
        v_lshrrev_b32 v18, 4, v18
        v_sub_u32 v16, v16, v18
        v_add_u32 v16, s60, v16
        v_and_b32 v20, 3, v0
        v_lshlrev_b32 v20, 4, v20
        v_add_u32 v20, {L_FL+F_FAC+8}, v20
        ds_write_b64 v20, v[16:17]
        L_tmg{m}:
        """)
    wait_flags("L_wf", F_WF, 16, 4)
    srd(8, P_WO, 0 if 'w' in skip else 4096 * 1024)
    a("s_lshl_b32 s13, s4, 17\ns_lshl_b32 s12, s7, 8\ns_add_u32 s13, s13, s12")
    dma_wide(32, 10, "s13", thr, hooks={5: lambda: tm_publish(1, 0), 5 + 6*lagK: lambda: tm_gather(1, lagK, 0, 4*f1)})
    a("s_waitcnt vmcnt(0)")
    if dry:
        a(f"""
        s_mov_b32 s0, 1
        s_mov_b32 s1, {TAG}
        s_mov_b32 {TAG}, 0
        s_mov_b32 s50, 0
        s_mov_b32 s44, 1
        v_mov_b32 v{FA+1}, 1
        v_mov_b32 v{PT}, {L_OP}
        s_branch L_sepi
        L_afterdry:
        s_mov_b32 s0, 0
        s_mov_b32 {TAG}, s1
        s_mov_b32 s50, {WS_SIZE}
        s_mov_b64 exec, -1
        s_waitcnt vmcnt(0) lgkmcnt(0)
        """)
        lane_consts()
    tr_wide(64, 4)
    a("s_cmp_lg_u32 s68, 2\ns_cbranch_scc1 L_noA2")
    gemv64(3, "a", thrA, False)
    a("L_noA2:")
    SB, TREG = [10, 11, 12, 13], [4, 5, 6, 14]
    RX, RGA, RGB = 2, 3, 15
    def ffn_cols(dst_tile, dst_sub):
        a(f"""
        v_lshrrev_b32 v{dst_tile}, 4, v0
        v_and_b32 v{dst_sub}, 3, v0
        v_lshl_add_u32 v{dst_tile}, v{dst_tile}, 2, v{dst_sub}
        v_bfe_u32 v{dst_sub}, v0, 2, 2
        """)
    a("s_cmp_lt_u32 s68, 4\ns_cbranch_scc1 L_nored1\ns_cmp_lg_u32 s68, 5\ns_cbranch_scc1 L_noffn1")
    srd(8, P_WG, 0 if 'f' in skip else 512 * 3584)
    a(f"s_lshl_b32 s13, s69, 7\ns_mul_i32 s12, s7, {128*3584}\ns_add_u32 s46, s13, s12\ns_mov_b32 s13, s46\ns_lshl_b32 s14, s7, 15")
    dma_mid("s13", "s14", thrF, 3584)
    srd(8, P_WU, 0 if 'f' in skip else 512 * 3584)
    a("s_mov_b32 s13, s46\ns_add_u32 s14, s14, 0x4000")
    dma_mid("s13", "s14", thrF, 3584)
    a("L_noffn1:")
    a("L_nored1:")
    stamp(7)
    tm_publish(2, KL)
    a("s_cmp_lg_u32 s7, 0\ns_cbranch_scc1 L_nofac")
    wait_flags("L_kd", F_KD, 16, 16)
    q4 = ("quad_perm:[1,0,3,2]", "quad_perm:[2,3,0,1]")
    a(f"""
    v_and_b32 v{TA}, 3, v0
    v_lshlrev_b32 v{TA}, 4, v{TA}
    v_add_u32 v{TA}, {L_FL}, v{TA}
    ds_read_b64 v[24:25], v{TA} offset:{F_ST}
    s_waitcnt lgkmcnt(0)
    v_mov_b32 v28, v24
    """)
    allreduce("v_max_f32", [28], [], rows_only=True, steps=q4)
    a(f"v_sub_f32 v30, v24, v28\nv_mul_f32 v30, {LOG2E}, v30\nv_exp_f32 v30, v30\nv_mul_f32 v30, v25, v30")
    allreduce("v_add_f32", [30], [], rows_only=True, steps=q4)
    a(f"""
    v_mov_b32 v29, {TAG}
    v_mov_b32 v31, {TAG}
    s_lshl_b32 s13, s15, 7
    s_add_u32 s13, s13, {WS_STATS}
    s_lshl_b32 s12, s6, 4
    s_add_u32 s14, s13, s12
    s_xor_b32 s12, s12, 16
    s_add_u32 s13, s13, s12
    s_mov_b64 exec, 1
    buffer_store_dwordx4 v[28:31], v1, s[48:51], s14 offen sc1
    s_mov_b64 exec, -1
    """)
    tm_gather(2, KL + lagV, 4*KL, 4*f2/KL)
    a(f"v_mov_b32 v{TB}, 0")
    poll("L_poll_st", [f"buffer_load_dwordx4 v[16:19], v{TB}, s[48:51], s13 offen sc1"], tags_words([17, 19]), sleep=32)
    a(f"""
    v_max_f32 v17, v16, v28
    v_sub_f32 v16, v16, v17
    v_sub_f32 v28, v28, v17
    v_sub_f32 v24, v24, v17
    v_mul_f32 v16, {LOG2E}, v16
    v_mul_f32 v28, {LOG2E}, v28
    v_mul_f32 v24, {LOG2E}, v24
    v_exp_f32 v16, v16
    v_exp_f32 v28, v28
    v_exp_f32 v24, v24
    v_mul_f32 v16, v16, v18
    v_fmac_f32 v16, v28, v30
    v_rcp_f32 v16, v16
    v_mov_b32 v25, 1
    v_mul_f32 v24, v24, v16
    ds_write_b64 v{TA}, v[24:25] offset:{F_FAC}
    """)
    a("L_nofac:")
    a("s_cmp_lt_u32 s68, 4\ns_cbranch_scc1 L_nored2")
    wait_row("L_kd2", KL + 1)
    a("s_cmp_lg_u32 s68, 5\ns_cbranch_scc1 L_noffn2")
    ffn_cols(TA, TB)
    a(f"""
    v_lshlrev_b32 v{TA}, 8, v{TA}
    v_lshl_add_u32 v{TA}, v{TB}, 4, v{TA}
    s_lshl_b32 s12, s7, 6
    s_add_u32 s12, s12, {WS_MOD + 96*256}
    s_add_u32 s13, s12, 0x1000
    s_add_u32 s14, s12, 0x2000
    s_add_u32 s46, s12, 0x3000
    """)
    poll("L_poll_sb", [f"buffer_load_dwordx4 v[{16+4*i}:{19+4*i}], v{TA}, s[48:51], {sr} offen sc1" for i, sr in enumerate(["s12", "s13", "s14", "s46"])],
         tags_words([17 + 2*k for k in range(8)]), sleep=16)
    for k in range(4):
        a(f"v_mov_b32 v{SB[k]}, v{16+2*k}")
        unpack(32, 33, 24 + 2*k)
        a(f"v_add_f32 v32, 1.0, v32\nv_add_f32 v33, 1.0, v33\nv_cvt_pk_bf16_f32 v{TREG[k]}, v32, v33")
    a("L_noffn2:")
    srd(52, P_X, 4096)
    a(f"""
    v_bfe_u32 v{TA}, v0, 2, 2
    v_and_b32 v{TB}, 3, v0
    v_lshlrev_b32 v{TC}, 5, v{TA}
    v_lshl_add_u32 v{TC}, v{TB}, 1, v{TC}
    s_lshl_b32 s71, s69, 7
    s_lshl_b32 s12, s7, 3
    s_add_u32 s71, s71, s12
    buffer_load_ushort v{RX}, v{TC}, s[52:55], s71 offen
    v_lshlrev_b32 v{TA}, 8, v{TA}
    v_lshrrev_b32 v{TC}, 1, v{TB}
    v_lshl_add_u32 v{TA}, v{TC}, 3, v{TA}
    s_and_b32 s12, s69, 7
    s_lshl_b32 s12, s12, 10
    s_lshl_b32 s13, s7, 4
    s_add_u32 s12, s12, s13
    s_lshr_b32 s13, s69, 3
    s_lshl_b32 s13, s13, 6
    s_add_u32 s12, s12, s13
    s_add_u32 s13, s12, {WS_MOD + 160*256}
    s_add_u32 s12, s12, {WS_MOD + 64*256}
    """)
    poll("L_poll_ga", [f"buffer_load_dwordx2 v[16:17], v{TA}, s[48:51], s12 offen sc1", f"buffer_load_dwordx2 v[18:19], v{TA}, s[48:51], s13 offen sc1"],
         tags_words([17, 19]), sleep=16)
    a(f"v_and_b32 v{TB}, 1, v0\nv_cmp_eq_u32 vcc, 1, v{TB}")
    for k, r in enumerate([RGA, RGB]):
        unpack(24, 25, 16 + 2*k)
        a(f"v_cndmask_b32 v{r}, v24, v25, vcc")
    a(f"v_lshlrev_b32 v{RX}, 16, v{RX}")
    a(f"v_and_b32 v{TA}, 31, v0\nv_lshlrev_b32 v{TA}, 7, v{TA}\ns_mov_b32 s12, {WS_XCC}")
    poll("L_poll_xcc", [f"buffer_load_dwordx2 v[16:17], v{TA}, s[48:51], s12 offen sc1"], tags_words([17]), sleep=16)
    a(f"v_cmp_eq_u32 vcc, s62, v16\ns_cmp_eq_u64 vcc, exec\ns_cselect_b32 s44, {1 if fast else 0}, 0")
    a("L_nored2:")
    if m3:
        tm_publish(3, KL + m3)
        tm_gather(3, KL + m3 + lag3, 4*(KL + m3) + E//4, 16*f3/(4*m3 + E//4))
    if touch:
        a("s_cmp_lt_u32 s68, 4\ns_cbranch_scc1 L_notouch")
        wait_row("L_tch", KL + touch)
        a(f"""
        v_lshrrev_b32 v{TA}, 2, v0
        v_and_b32 v{TB}, 3, v0
        v_lshlrev_b32 v{TC}, 13, v{TA}
        v_lshl_add_u32 v{TC}, v{TB}, 4, v{TC}
        v_lshlrev_b32 v{TA}, 11, v{TA}
        v_lshl_add_u32 v{TA}, v{TB}, 4, v{TA}
        s_lshl_b32 s12, s7, 11
        s_add_u32 s12, s12, {WS_X1}
        buffer_load_dwordx4 v[16:19], v1, s[48:51], s12 offen sc1
        buffer_load_dwordx4 v[20:23], v1, s[48:51], s12 offen offset:1024 sc1
        s_lshl_b32 s12, s69, 8
        s_lshl_b32 s13, s7, 6
        s_add_u32 s12, s12, s13
        s_add_u32 s12, s12, {WS_PART2}
        s_add_u32 s13, s12, 0x20000
        buffer_load_dwordx4 v[24:27], v{TC}, s[48:51], s12 offen sc1
        buffer_load_dwordx4 v[28:31], v{TC}, s[48:51], s13 offen sc1
        """)
        if touch1:
            a(f"""
            s_and_b32 s12, s69, 7
            s_lshl_b32 s12, s12, 8
            s_lshl_b32 s13, s7, 6
            s_add_u32 s12, s12, s13
            s_lshr_b32 s13, s69, 3
            s_lshl_b32 s13, s13, 17
            s_add_u32 s12, s12, s13
            s_add_u32 s12, s12, {WS_PART1}
            """)
            for i in range(4):
                a(f"buffer_load_dwordx4 v[{32+4*i}:{35+4*i}], v{TA}, s[48:51], s12 offen sc1\ns_add_u32 s12, s12, 0x8000")
        a("L_notouch:")
    AF, DD = 16, 32
    bn = {"n": 0}
    def barrier():
        if not dry: a("s_barrier"); return
        bn["n"] += 1
        a(f"s_cmp_eq_u32 s0, 1\ns_cbranch_scc1 L_nb{bn['n']}\ns_barrier\nL_nb{bn['n']}:")
    a(f"""
    L_tail0:
    s_mov_b64 exec, -1
    s_waitcnt vmcnt(0) lgkmcnt(0)
    v_and_b32 v{TB}, 3, v0
    v_mul_u32_u24 v{TB}, {OP_STRIDE}, v{TB}
    v_lshrrev_b32 v{TA}, 4, v0
    v_lshl_add_u32 v{TB}, v{TA}, 4, v{TB}
    v_add_u32 v{TB}, {L_OP}, v{TB}
    v_cmp_eq_u32 s[56:57], 1, v{TA}
    s_lshl_b32 s12, s15, 1
    s_add_u32 s12, s12, s6
    s_lshl_b32 s12, s12, 11
    s_lshl_b32 s13, s7, 9
    s_add_u32 s12, s12, s13
    s_add_u32 s12, s12, {WS_PART1}
    s_and_b32 s18, {TAG}, 0xff
    s_bfe_u32 s19, {TAG}, 0x80008
    s_bfe_u32 s20, {TAG}, 0x80010
    s_lshr_b32 s21, {TAG}, 24
    v_mov_b32 v{TC}, 0xffffff00
    """)
    stamp(8)
    barrier()
    stamp(9)
    for s in range(4): a(f"ds_read_b128 v[{AF+4*s}:{AF+4*s+3}], v{TB} offset:{64*s}")
    a("s_waitcnt lgkmcnt(0)")
    def gemv_wide(bbase, nk):
        for t in range(8):
            for s in range(nk):
                r = bbase + (t * nk + s) * 4
                a(f"v_mfma_f32_16x16x32_bf16 v[{DD+4*t}:{DD+4*t+3}], v[{AF+4*s}:{AF+4*s+3}], v[{r}:{r+3}], " + ("0" if s == 0 else f"v[{DD+4*t}:{DD+4*t+3}]"))
    gemv_wide(64, 4)
    for t in range(8):
        a(f"v_add_f32 v{DD+4*t}, v{DD+4*t}, v{DD+4*t+1}\nv_add_f32 v{DD+4*t+2}, v{DD+4*t+2}, v{DD+4*t+3}")
    for t in range(8): a(f"v_add_f32 v{DD+4*t}, v{DD+4*t}, v{DD+4*t+2}")
    for k in range(4): a(f"v_cndmask_b32 v{16+k}, v{DD+4*k}, v{DD+4*(4+k)}, s[56:57]")
    for k in range(4): a(f"v_and_or_b32 v{16+k}, v{16+k}, v{TC}, s{18+k}")
    a("s_mov_b32 exec_hi, 0\nbuffer_store_dwordx4 v[16:19], v1, s[48:51], s12 offen sc1\ns_mov_b64 exec, -1")
    stamp(10)
    a("s_cmp_lt_u32 s68, 4\ns_cbranch_scc1 L_hend\ns_cmp_lg_u32 s68, 5\ns_cbranch_scc1 L_noffn3")
    SC8, SH8 = 48, 56
    HW_, HF_, GF_, GW_, PO_, MS_ = 10, 11, 12, 13, 4, 5
    mid_bases()
    tr_mid(64, 0)
    tr_mid(128, 0x4000)
    for k in range(4): unpack(SC8 + 2*k, SC8 + 2*k + 1, TREG[k])
    for k in range(4): unpack(SH8 + 2*k, SH8 + 2*k + 1, SB[k])
    act_addr(HF_, "hi", TB)
    ffn_cols(TA, TB)
    a(f"""
    v_lshlrev_b32 v{HW_}, 5, v{TA}
    v_lshl_add_u32 v{HW_}, v{TB}, 3, v{HW_}
    s_mul_i32 s13, s7, {ACT_STRIDE}
    s_add_u32 s13, s13, {L_ACT}
    v_add_u32 v{HW_}, s13, v{HW_}
    v_mul_u32_u24 v{GF_}, {GB_STRIDE}, v{TB}
    v_lshrrev_b32 v{TB}, 4, v0
    v_lshl_add_u32 v{GF_}, v{TB}, 4, v{GF_}
    v_add_u32 v{GF_}, {L_GB}, v{GF_}
    v_mul_u32_u24 v{GW_}, {GB_STRIDE}, v{TB}
    v_and_b32 v{TA}, 15, v0
    v_lshl_add_u32 v{GW_}, v{TA}, 1, v{GW_}
    s_lshl_b32 s13, s7, 5
    s_add_u32 s13, s13, {L_GB}
    v_add_u32 v{GW_}, s13, v{GW_}
    v_lshlrev_b32 v{TB}, 11, v{TB}
    v_lshl_add_u32 v{PO_}, v{TA}, 4, v{TB}
    v_mov_b32 v{MS_}, 0xffffff00
    """)
    a("L_noffn3:")
    a(f"""
    v_lshrrev_b32 v{TA}, 2, v0
    v_and_b32 v{TB}, 3, v0
    v_lshlrev_b32 v{TC}, 13, v{TA}
    v_lshlrev_b32 v{TA}, 11, v{TA}
    v_lshl_add_u32 v{TA}, v{TB}, 4, v{TA}
    v_lshl_add_u32 v{TC}, v{TB}, 4, v{TC}
    v_lshlrev_b32 v{TB}, 2, v0
    s_and_b32 s12, s69, 7
    s_lshl_b32 s12, s12, 8
    s_lshl_b32 s13, s7, 6
    s_add_u32 s12, s12, s13
    s_lshr_b32 s13, s69, 3
    s_lshl_b32 s14, s13, 11
    s_add_u32 s22, s12, s14
    s_lshl_b32 s13, s13, 17
    s_add_u32 s12, s12, s13
    s_add_u32 s12, s12, {WS_PART1}
    s_add_u32 s13, s12, 0x8000
    s_add_u32 s14, s12, 0x10000
    s_add_u32 s67, s12, 0x18000
    s_add_u32 s23, s22, {WS_X1}
    v_mov_b32 v41, {TAG}
    v_mov_b32 v43, {TAG}
    """)
    poll("L_poll_p1", [f"buffer_load_dwordx4 v[{16+4*i}:{19+4*i}], v{TA}, s[48:51], {sr} offen sc1" for i, sr in enumerate(["s12", "s13", "s14", "s67"])],
         tags_bytes([16, 20, 24, 28], 32))
    stamp(11)
    def colsum(n):
        st_ = 1
        while st_ < n:
            for i in range(0, n, 2*st_):
                for k in range(4): a(f"v_add_f32 v{16+4*i+k}, v{16+4*i+k}, v{16+4*(i+st_)+k}")
            st_ *= 2
        a("""
        v_add_f32_dpp v20, v16, v16 row_ror:8 row_mask:0xf bank_mask:0x3
        v_add_f32_dpp v21, v17, v17 row_ror:8 row_mask:0xf bank_mask:0x3
        v_add_f32_dpp v20, v18, v18 row_ror:8 row_mask:0xf bank_mask:0xc
        v_add_f32_dpp v21, v19, v19 row_ror:8 row_mask:0xf bank_mask:0xc
        v_add_f32_dpp v16, v20, v20 row_shl:4 row_mask:0xf bank_mask:0x5
        v_add_f32_dpp v16, v21, v21 row_shr:4 row_mask:0xf bank_mask:0xa
        """)
        allreduce("v_add_f32", [16], [17], steps=())
    def resid(gate):
        bf16r(16, 16)
        a(f"v_mul_f32 v16, v16, v{gate}")
        bf16r(16, 16)
        a(f"v_add_f32 v16, v16, v{RX}")
    colsum(4)
    resid(RGA)
    a(f"""
    v_mov_b32_dpp v17, v16 quad_perm:[1,1,1,1] {FULL}
    v_mov_b32_dpp v18, v16 quad_perm:[2,2,2,2] {FULL}
    v_mov_b32_dpp v19, v16 quad_perm:[3,3,3,3] {FULL}
    v_cvt_pk_bf16_f32 v40, v16, v17
    v_cvt_pk_bf16_f32 v42, v18, v19
    s_mov_b64 exec, 0x1111
    """)
    def hstore(lbl, stores):
        a(f"s_cmp_eq_u32 s44, 1\ns_cbranch_scc0 {lbl}_s")
        for st_ in stores: a(f"{st_} {fpol}")
        a(f"s_branch {lbl}_e\n{lbl}_s:")
        for st_ in stores: a(f"{st_} sc1")
        a(f"{lbl}_e:")
    hstore("L_sx1", [f"buffer_store_dwordx4 v[40:43], v{TB}, s[48:51], s23 offen"])
    a("s_mov_b64 exec, -1")
    stamp(12)
    bf16r(RX, 16)
    a("s_cmp_lg_u32 s68, 5\ns_cbranch_scc1 L_red2")
    a(f"""
    s_lshl_b32 s12, s7, 11
    s_add_u32 s12, s12, {WS_X1}
    s_lshl_b32 s13, s69, 13
    s_lshl_b32 s14, s7, 9
    s_add_u32 s13, s13, s14
    s_add_u32 s23, s13, {WS_PART2}
    """)
    poll("L_poll_x1", ["buffer_load_dwordx4 v[16:19], v1, s[48:51], s12 offen sc1", "buffer_load_dwordx4 v[20:23], v1, s[48:51], s12 offen offset:1024 sc1"],
         tags_xor([17, 19, 21, 23], 24))
    stamp(1)
    X2, S2 = 24, 32
    for k in range(4): unpack(X2 + 2*k, X2 + 2*k + 1, 16 + 2*k)
    ln_stats(X2, S2)
    ln_norm(X2, S2, 16)
    ln_affine(X2, SC8, SH8, 16)
    a(f"ds_write_b64 v{HW_}, v[16:17]\nds_write_b64 v{HW_}, v[18:19] offset:512\ns_waitcnt lgkmcnt(0)")
    barrier()
    G, U = 48, 52
    for hh in range(2):
        for s in range(8): a(f"ds_read_b128 v[{16+4*s}:{19+4*s}], v{HF_} offset:{(8*hh+s)*64}")
        for s in range(8):
            a(f"s_waitcnt lgkmcnt({7-s})")
            k = 8*hh + s
            a(f"v_mfma_f32_16x16x32_bf16 v[{G}:{G+3}], v[{16+4*s}:{19+4*s}], v[{64+4*k}:{67+4*k}], " + ("0" if k == 0 else f"v[{G}:{G+3}]"))
            a(f"v_mfma_f32_16x16x32_bf16 v[{U}:{U+3}], v[{16+4*s}:{19+4*s}], v[{128+4*k}:{131+4*k}], " + ("0" if k == 0 else f"v[{U}:{U+3}]"))
    bf16r2(G, U, 56)
    a(f"""
    v_mul_f32 v56, v{G}, v{G}
    v_mul_f32 v56, 0x3d372713, v56
    v_fma_f32 v56, v56, v{G}, v{G}
    v_mul_f32 v56, 0x40135761, v56
    v_exp_f32 v56, -v56
    v_add_f32 v56, 1.0, v56
    v_rcp_f32 v56, v56
    v_mul_f32 v56, v56, v{G}
    """)
    bf16r(56, 56)
    a(f"""
    v_mul_f32 v56, v56, v{U}
    v_cvt_pk_bf16_f32 v56, v56, v56
    ds_write_b16 v{GW_}, v56
    s_waitcnt lgkmcnt(0)
    """)
    barrier()
    a(f"""
    ds_read_b128 v[{AF}:{AF+3}], v{GF_}
    ds_read_b128 v[{AF+4}:{AF+7}], v{GF_} offset:64
    s_waitcnt lgkmcnt(0)
    """)
    gemv_wide(192, 2)
    for g in range(2):
        for k in range(4): a(f"v_and_or_b32 v{24+4*g+k}, v{DD+4*(4*g+k)}, v{MS_}, s{18+k}")
    hstore("L_sp2", [f"buffer_store_dwordx4 v[{24+4*g}:{27+4*g}], v{PO_}, s[48:51], s23 offen offset:{256*g}" for g in range(2)])
    stamp(2)
    a("L_red2:")
    a(f"""
    s_add_u32 s12, s22, {WS_PART2}
    s_add_u32 s13, s12, 0x20000
    v_mov_b32 v20, s18
    v_mov_b32 v21, s19
    v_mov_b32 v22, s20
    v_mov_b32 v23, s21
    v_bfe_u32 v{TA}, v0, 2, 2
    v_and_b32 v{TB}, 3, v0
    v_lshlrev_b32 v{TA}, 5, v{TA}
    v_lshl_add_u32 v{TA}, v{TB}, 1, v{TA}
    """)
    srd(52, P_OUT, 4096)
    if dry: a("s_cmp_eq_u32 s0, 1\ns_cselect_b32 s54, 0, s54")
    poll("L_poll_p2", [f"buffer_load_dwordx4 v[16:19], v{TC}, s[48:51], s12 offen sc1", "s_mov_b32 exec_hi, 0xffff",
                       f"buffer_load_dwordx4 v[20:23], v{TC}, s[48:51], s13 offen sc1"],
         tags_bytes([16, 20], 32), post="s_mov_b64 exec, -1")
    stamp(13)
    colsum(2)
    resid(RGB)
    a(f"""
    v_cvt_pk_bf16_f32 v16, v16, v16
    s_mov_b64 exec, 0xffff
    buffer_store_short v16, v{TA}, s[52:55], s71 offen
    s_or_b32 s12, s2, s7
    s_cbranch_scc1 L_hend
    s_mov_b64 exec, 1
    v_mov_b32 v17, {TAG}
    v_mov_b32 v18, 0
    buffer_store_dword v17, v18, s[48:51], 0 offen sc1
    """)
    a("L_hend:")
    if dry: a("s_cmp_eq_u32 s0, 1\ns_cbranch_scc1 L_afterdry")
    stamp(14)
    dump_stamps(15)
    a("L_end:")
    a("s_endpgm")
    a('.section .rodata,"a"')
    a(".p2align 6")
    a(f".amdhsa_kernel {NAME}_kernel")
    a("""
    .amdhsa_next_free_vgpr 256
    .amdhsa_next_free_sgpr 102
    .amdhsa_accum_offset 256
    .amdhsa_group_segment_fixed_size 0
    .amdhsa_kernarg_size 112
    .amdhsa_user_sgpr_count 2
    .amdhsa_user_sgpr_kernarg_segment_ptr 1
    .amdhsa_system_sgpr_workgroup_id_x 1
    .amdhsa_float_denorm_mode_32 3
    .end_amdhsa_kernel
    """)
    return out + a.text()

if __name__ == "__main__":
    kw = eval("dict(" + (sys.argv[2] if len(sys.argv) > 2 else "") + ")")
    open(sys.argv[1], "w").write(gen(**kw))
```

```python
import sys
from asmlib import Asm

NAME = "adaLN_cond__mha_block_cached__geglu_ffn__decode"
WS_MOD = 0x1000
WS_Q = 0x10000
WS_STATS = 0x20000
WS_X1 = 0x28000
WS_PART2 = 0x40000
WS_PART1 = 0x80000
WS_FAST = 0
WS_XCC = 0x30000
WS_TM, TMSTR = 0x280000, 4352
WS_DBG, WS_SIZE = 0x200000, 0x400000
L_W, L_ACT, L_Q, L_OP, L_GB, L_FL = 0, 0x20000, 0x21200, 0x21400, 0x21A00, 0x21E00
ACT_STRIDE, OP_STRIDE, GB_STRIDE = 1088, 320, 192
LDS_BYTES = 0x22200
F_FAC, F_KD, F_WF, F_WQ, F_WQD, F_H, F_G1, F_G2, F_ST, F_TT = 0, 64, 80, 96, 112, 128, 144, 160, 192, 256
NFFN = 28
SPIN_MAX = 400000
P_X, P_K, P_V, P_WQ, P_WO, P_WG, P_WU, P_WD, P_C, P_WM, P_OUT, P_WS = 16, 18, 20, 22, 24, 28, 30, 32, 34, 36, 38, 42
TAG = "s45"
LOG2E, SCALE, HIMASK = "s64", "s65", "s66"

def gen(D=5, A=8, E=4, P=48, PL=32, DP=5, D2=7, NE=1, thr=2, thrA=2, thrF=3, thrQ=3, thrD=2, slp=16, diag=False,
        levels=((4,-50),(5,30),(6,100),(7,None)), f1=0.147, f2=0.955, f3=0.995, m3=8, lagK=2, lagV=2, lag3=1, gq=40, gm=20,
        kctl=True, fast=True, fpol='', touch=10, touch1=False, dry=True, lastctl=True, tlb=True, dbg=False, skip=''):
    a = Asm()
    def stamp(k):
        if diag: a(f"s_memrealtime s[{72+2*k}:{73+2*k}]")
    def srd(reg, ptr, nbytes):
        a(f"s_mov_b32 s{reg}, s{ptr}\ns_mov_b32 s{reg+1}, s{ptr+1}\ns_mov_b32 s{reg+2}, {nbytes}\ns_mov_b32 s{reg+3}, 0x20000")
    def dump_stamps(n):
        if not diag: return
        a("s_waitcnt lgkmcnt(0)")
        a("s_mov_b64 exec, 1")
        a("s_lshl_b32 s46, s2, 3\ns_add_u32 s46, s46, s3\ns_lshl_b32 s46, s46, 6")
        a(f"s_add_u32 s46, s46, {WS_DBG}")
        a("v_mov_b32 v1, 0")
        for k in range(n):
            a(f"v_mov_b32 v2, s{72+2*k}")
            a(f"buffer_store_dword v2, v1, s[48:51], s46 offen offset:{4*k}")
    FULL = "row_mask:0xf bank_mask:0xf"
    def allreduce(op, rs, tmps, rows_only=False, steps=("quad_perm:[1,0,3,2]", "quad_perm:[2,3,0,1]", "row_half_mirror", "row_mirror")):
        for st in steps:
            for r in rs: a(f"{op}_dpp v{r}, v{r}, v{r} {st} {FULL}")
        if rows_only: return
        for sw in ("v_permlane16_swap_b32", "v_permlane32_swap_b32"):
            for r, t in zip(rs, tmps): a(f"v_mov_b32 v{t}, v{r}")
            for r, t in zip(rs, tmps): a(f"{sw} v{r}, v{t}")
            for r, t in zip(rs, tmps): a(f"{op} v{r}, v{r}, v{t}")
    def bf16r(d, s):
        a(f"v_cvt_pk_bf16_f32 v{d}, v{s}, v{s}\nv_and_b32 v{d}, {HIMASK}, v{d}")
    def bf16r2(lo, hi, t):
        a(f"v_cvt_pk_bf16_f32 v{t}, v{lo}, v{hi}\nv_lshlrev_b32 v{lo}, 16, v{t}\nv_and_b32 v{hi}, {HIMASK}, v{t}")
    def unpack(lo, hi, s):
        a(f"v_lshlrev_b32 v{lo}, 16, v{s}\nv_and_b32 v{hi}, {HIMASK}, v{s}")
    def spin_begin(): a("s_mov_b32 s70, 0")
    def spin_check(): a(f"s_add_u32 s70, s70, 1\ns_cmp_gt_u32 s70, {SPIN_MAX}\ns_cbranch_scc1 L_end")
    MKTAG = "s_mul_i32 s45, s44, 1664525\ns_add_u32 s45, s45, 1013904223"
    BAR0 = "s_waitcnt lgkmcnt(0)\ns_barrier\ns_load_dword s44, s[42:43], 0"
    def set_flag(row, widx, va, vb):
        a(f"s_lshl_b32 s47, {widx}, 2\ns_add_u32 s47, s47, {L_FL+row}\nv_mov_b32 v{va}, s47\nv_mov_b32 v{vb}, 1\nds_write_b32 v{va}, v{vb}")
    def wait_flags(lbl, row, t, sleep):
        spin_begin()
        a(f"v_mov_b32 v{t+4}, {L_FL+row}")
        a(f"{lbl}:")
        spin_check()
        if sleep: a(f"s_sleep {sleep}")
        a(f"""
        ds_read_b128 v[{t}:{t+3}], v{t+4}
        s_waitcnt lgkmcnt(0)
        v_and_b32 v{t}, v{t}, v{t+1}
        v_and_b32 v{t+2}, v{t+2}, v{t+3}
        v_and_b32 v{t}, v{t}, v{t+2}
        v_readfirstlane_b32 s47, v{t}
        s_cmp_eq_u32 s47, 1
        s_cbranch_scc0 {lbl}
        """)

    hdr = open("cdna_kernels/" + NAME + ".s.ref").read().split("; Override launch")[0]
    out = hdr + f"; @launch grid=(256,1,1) block=(512,1,1) lds={LDS_BYTES}\n"
    a('.amdgcn_target "amdgcn-amd-amdhsa--gfx950"')
    a(".text")
    a(f".globl {NAME}_kernel")
    a(".p2align 8")
    a(f".type {NAME}_kernel,@function")
    a(f"{NAME}_kernel:")
    a("""
    s_cmp_ge_u32 s2, 256
    s_cbranch_scc1 L_end
    s_load_dwordx16 s[16:31], s[0:1], 0
    s_load_dwordx8 s[32:39], s[0:1], 64
    s_load_dwordx4 s[40:43], s[0:1], 96
    """)
    if diag:
        for k in range(1, 15): a(f"s_mov_b32 s{72+2*k}, 0")
    stamp(0)
    a("""
    v_lshrrev_b32 v1, 6, v0
    v_and_b32 v0, 63, v0
    v_readfirstlane_b32 s3, v1
    v_lshlrev_b32 v1, 4, v0
    s_lshr_b32 s12, s2, 3
    s_and_b32 s4, s12, 3
    s_lshl_b32 s4, s4, 3
    s_and_b32 s13, s2, 7
    s_add_u32 s4, s4, s13
    s_bfe_u32 s5, s12, 0x20002
    s_lshr_b32 s6, s12, 4
    s_mov_b32 s64, 0x3fb8aa3b
    s_mov_b32 s65, 0x3db504f3
    s_mov_b32 s66, 0xffff0000
    s_lshl_b32 s15, s5, 5
    s_add_u32 s15, s15, s4
    s_cmp_ge_u32 s3, 4
    s_cbranch_scc1 L_helper
    """)

    Q, MK, BB, ACC, PT, XX, YY, T0, T1, SC, RING = 2, 6, 10, 14, 18, 34, 42, 46, 47, 48, 64
    a("""
    s_lshl_b32 s13, s15, 21
    s_lshl_b32 s14, s6, 20
    s_add_u32 s13, s13, s14
    s_lshl_b32 s14, s3, 12
    s_add_u32 s13, s13, s14
    s_mov_b32 s12, s13
    s_lshl_b32 s14, s3, 15
    s_waitcnt lgkmcnt(0)
    s_mov_b32 s0, 0
    """)
    srd(8, P_K, 0x10000000)
    st = {"issued": 0, "landed": 0}
    PT_ = P + PL
    assert P % 4 == 0 and PL <= 32
    def ldsoff(n): return ((n - P + 16) % 32) * 1024
    def slot(n):
        if n < P: return RING + 4 * n
        if n < PT_: return RING + 4 * (16 + n - P)
        return RING + 4 * ((n - PT_) % 16)
    def issue(n):
        if P <= n < PT_:
            if n & 3 == 0: a(f"s_add_u32 m0, s14, {ldsoff(n)}")
            a(f"buffer_load_dwordx4 v1, s[8:11], s12 offen offset:{(n&3)*1024} nt lds")
        else:
            r = slot(n)
            a(f"buffer_load_dwordx4 v[{r}:{r+3}], v1, s[8:11], s12 offen offset:{(n&3)*1024} nt")
        if n & 3 == 3: a("s_add_u32 s12, s12, 0x4000")
        st["issued"] = n + 1
    def throttle(d=None):
        d = d or D
        a(f"s_waitcnt vmcnt({d-1})")
        st["landed"] = max(st["landed"], st["issued"] - (d - 1))
    def ensure(n):
        if n >= st["landed"]:
            k = st["issued"] - 1 - n
            a(f"s_waitcnt vmcnt({k})"); st["landed"] = n + 1
    for n in range(PT_):
        if n == P + 16: wait_flags("L_wqd", F_WQD, PT, 0)
        if n >= DP: throttle(DP)
        issue(n)
        if n == DP - 1:
            srd(48, P_WS, WS_SIZE)
            a(f"""
            s_mov_b32 s60, 0xaaaaaaaa
            s_mov_b32 s61, 0xaaaaaaaa
            s_mov_b32 s62, 0xcccccccc
            s_mov_b32 s63, 0xcccccccc
            v_and_b32 v{T0}, 15, v0
            v_and_b32 v{T1}, 1, v0
            v_lshlrev_b32 v{T1}, 4, v{T1}
            v_mov_b32 v{PT}, 0xffff
            v_lshlrev_b32 v{T1}, v{T1}, v{PT}
            v_lshrrev_b32 v{PT}, 1, v{T0}
            """)
            for t in range(4):
                a(f"v_cmp_eq_u32 vcc, {t}, v{PT}\nv_cndmask_b32 v{MK+t}, 0, v{T1}, vcc")
            for t in range(4): a(f"v_mov_b32 v{ACC+t}, 0")
            a(f"v_lshlrev_b32 v{T0}, 4, v{T0}\nv_add_u32 v{T0}, {L_Q}, v{T0}")
            a("s_barrier")
        if n == gm: set_flag(F_G1, "s3", PT, PT+1)
        if n == gq: set_flag(F_G2, "s3", PT, PT+1)
    stamp(1)
    a("s_barrier")
    stamp(2)
    a(f"ds_read_b128 v[{Q}:{Q+3}], v{T0}\nv_add_u32 v{T0}, s14, v1\ns_waitcnt lgkmcnt(0)")
    def kdots(n):
        r = slot(n); p = PT + n % 16
        a(f"v_dot2_f32_bf16 v{p}, v{r}, v{Q}, 0")
        for i in range(1, 4): a(f"v_dot2_f32_bf16 v{p}, v{r+i}, v{Q+i}, v{p}")
    def kreduce(dst):
        for j in range(8): a(f"v_add_f32_dpp v{XX+j}, v{PT+j}, v{PT+j} row_ror:8 row_mask:0xf bank_mask:0x3")
        for j in range(8): a(f"v_add_f32_dpp v{XX+j}, v{PT+8+j}, v{PT+8+j} row_ror:8 row_mask:0xf bank_mask:0xc")
        for j in range(4): a(f"v_add_f32_dpp v{YY+j}, v{XX+j}, v{XX+j} row_half_mirror row_mask:0xf bank_mask:0x5")
        for j in range(4): a(f"v_add_f32_dpp v{YY+j}, v{XX+4+j}, v{XX+4+j} row_half_mirror row_mask:0xf bank_mask:0xa")
        for j in range(2):
            a(f"v_cndmask_b32 v{XX+2*j}, v{YY+j+2}, v{YY+j}, s[62:63]")
            a(f"v_cndmask_b32 v{XX+2*j+1}, v{YY+j}, v{YY+j+2}, s[62:63]")
        for j in range(2):
            a(f"v_add_f32_dpp v{XX+4+j}, v{XX+2*j}, v{XX+2*j+1} quad_perm:[2,3,0,1] {FULL}")
        a(f"v_cndmask_b32 v{XX}, v{XX+5}, v{XX+4}, s[60:61]")
        a(f"v_cndmask_b32 v{XX+1}, v{XX+4}, v{XX+5}, s[60:61]")
        a(f"v_add_f32_dpp v{XX+2}, v{XX}, v{XX+1} quad_perm:[1,0,3,2] {FULL}")
        bf16r(XX+2, XX+2)
        a(f"v_mul_f32 v{XX+2}, {SCALE}, v{XX+2}")
        bf16r(dst, XX+2)
    tgt = -(-(PT_ + 16 - A + 4) // 16) * 16
    NPEEL = tgt // 16
    KL = 16 - NPEEL
    cons = {"n": 0}
    def consume_k_upto(m):
        while cons["n"] < m:
            n = cons["n"]
            if n == P:
                a("s_waitcnt lgkmcnt(0)")
                set_flag(F_WF, "s3", T0, T1)
            ensure(n); kdots(n); cons["n"] += 1
            m2 = n - 16 + P
            if n >= 16 and P <= m2 < PT_:
                ensure(m2)
                r = slot(m2)
                a(f"ds_read_b128 v[{r}:{r+3}], v{T0} offset:{ldsoff(m2)}")
            if n % 16 == 15: kreduce(SC + n // 16 + KL)
    nsteps = tgt + A - PT_
    for s in range(nsteps):
        n = PT_ + s
        prev = s if s < 16 else n - 16
        if s <= 16: want = 1 + -(-PT_ * s // 16)
        else: want = PT_ + 1 + -(-(tgt - PT_ - 1) * (s - 16) // (nsteps - 16))
        want = min(want, max(st["landed"], PT_))
        consume_k_upto(min(max(want, prev + 1), tgt))
        throttle(); issue(n)
    a("s_memrealtime s[52:53]")
    consume_k_upto(tgt)
    FA, FAD, TTA, TTV = 128, 132, 133, 134
    LV = [x[0] for x in levels]
    a(f"""
    s_mov_b32 s14, 0
    s_mov_b32 s56, 0
    s_lshl_b32 s47, s3, 4
    s_add_u32 s47, s47, {L_FL+F_FAC}
    v_mov_b32 v{FAD}, s47
    s_lshl_b32 s47, s3, 2
    s_add_u32 s47, s47, {L_FL+F_TT}
    v_mov_b32 v{TTA}, s47
    v_mov_b32 v{FA+3}, 0
    """)
    def record():
        a(f"""
        s_waitcnt lgkmcnt(0)
        s_or_b32 s53, s52, 1
        v_mov_b32 v{TTV}, s53
        ds_write_b32 v{TTA}, v{TTV}
        v_add_u32 v{TTA}, 16, v{TTA}
        """)
    def dispatch(pre):
        a(f"""
        v_readfirstlane_b32 s55, v{FA+3}
        v_readfirstlane_b32 s54, v{FA+2}
        s_cmp_eq_u32 s55, 0
        s_cbranch_scc1 {pre}{D}
        s_mul_i32 s55, s55, s56
        s_lshr_b32 s55, s55, 4
        s_sub_u32 s52, s52, s54
        s_sub_u32 s52, s52, s55
        """)
        for dd, th in levels:
            if th is None: a(f"s_branch {pre}{dd}")
            else: a(f"s_cmp_lt_i32 s52, {th}\ns_cbranch_scc1 {pre}{dd}")
    a("L_kdisp:")
    record()
    a(f"s_cmp_ge_u32 s14, {KL}\ns_cbranch_scc1 L_kdone")
    if kctl: dispatch("L_k")
    for dd in (LV if kctl else [D]):
        assert dd <= A
        a(f"L_k{dd}:")
        a(f"ds_read_b128 v[{FA}:{FA+3}], v{FAD}")
        for j in range(16):
            n = tgt + j
            a(f"s_waitcnt vmcnt({dd-1})")
            if j == 16 - A:
                a(f"s_cmp_eq_u32 s14, {KL-1}\ns_cselect_b32 s8, s{P_V}, s8\ns_cselect_b32 s9, s{P_V+1}, s9\ns_cselect_b32 s12, s13, s12")
            issue(n + A)
            if j == 15: a("s_memrealtime s[52:53]")
            kdots(n)
            if j == 7:
                for i in range(15): a(f"v_mov_b32 v{SC+i}, v{SC+i+1}")
        kreduce(SC + 15)
        a("s_add_u32 s14, s14, 1\ns_add_u32 s56, s56, 4\ns_branch L_kdisp")
    a("L_kdone:")
    stamp(3)
    ex = {"n": 256 + A}
    def extra():
        if ex["n"] < 256 + A + E:
            a(f"s_waitcnt vmcnt({D-1})"); issue(ex["n"]); ex["n"] += 1
    extra()
    M, Ls = PT, PT + 1
    a(f"v_max3_f32 v{M}, v{SC}, v{SC+1}, v{SC+2}")
    for i in range(3, 15, 2): a(f"v_max3_f32 v{M}, v{M}, v{SC+i}, v{SC+i+1}")
    a(f"v_max_f32 v{M}, v{M}, v{SC+15}")
    allreduce("v_max_f32", [M], [T0])
    a(f"v_mul_f32 v{T1}, {LOG2E}, v{M}")
    extra()
    for i in range(16): a(f"v_fma_f32 v{SC+i}, v{SC+i}, {LOG2E}, -v{T1}")
    for i in range(16): a(f"v_exp_f32 v{SC+i}, v{SC+i}")
    extra()
    a(f"v_add_f32 v{Ls}, v{SC}, v{SC+1}\nv_add_f32 v{Ls+1}, v{SC+2}, v{SC+3}")
    for i in range(4, 16, 2): a(f"v_add_f32 v{Ls}, v{Ls}, v{SC+i}\nv_add_f32 v{Ls+1}, v{Ls+1}, v{SC+i+1}")
    a(f"v_add_f32 v{Ls}, v{Ls}, v{Ls+1}")
    for i in range(16): a(f"v_cvt_pk_bf16_f32 v{SC+i}, v{SC+i}, v{SC+i}")
    extra()
    allreduce("v_add_f32", [Ls], [T0])
    a(f"ds_write_b64 v{FAD}, v[{M}:{Ls}] offset:{F_ST-F_FAC}")
    set_flag(F_KD, "s3", PT+5, PT+6)
    while ex["n"] < 256 + A + E: extra()
    a("s_memrealtime s[52:53]")
    AV = A + E
    assert AV <= 15
    a(f"""
    v_lshrrev_b32 v{PT}, 4, v0
    v_lshlrev_b32 v{PT}, 6, v{PT}
    v_and_b32 v{PT+1}, 15, v0
    v_lshl_add_u32 v{PT}, v{PT+1}, 1, v{PT}
    s_mul_i32 s46, s3, {OP_STRIDE}
    s_add_u32 s46, s46, {L_OP}
    v_add_u32 v{PT}, s46, v{PT}
    s_mov_b32 s14, 0
    s_add_u32 s56, s56, {E//4}
    s_waitcnt lgkmcnt(0)
    """)
    def vbody(dd, last, timed):
        assert dd <= AV
        a(f"ds_read_b128 v[{FA}:{FA+3}], v{FAD}")
        for j in range(16):
            n = 256 + j
            for t in range(4): a(f"v_and_b32_dpp v{BB+t}, v{SC}, v{MK+t} row_newbcast:{j} {FULL}")
            a(f"s_waitcnt vmcnt({dd-1})")
            if j == 16 - AV and last:
                a("s_cmp_eq_u32 s14, 15\ns_cselect_b32 s10, 0, s10")
            issue(n + AV)
            r = slot(n)
            if j == 15 and timed: a("s_memrealtime s[52:53]")
            a(f"v_mfma_f32_16x16x32_bf16 v[{ACC}:{ACC+3}], v[{r}:{r+3}], v[{BB}:{BB+3}], v[{ACC}:{ACC+3}]")
        if lastctl: a("s_cmp_eq_u32 s14, 15\ns_cbranch_scc1 L_sepi")
        for i in range(15): a(f"v_mov_b32 v{SC+i}, v{SC+i+1}")
        a("s_add_u32 s14, s14, 1\ns_add_u32 s56, s56, 4")
    assert NE >= 1
    a("s_branch L_vd1")
    a("L_vdisp:")
    if lastctl:
        record()
    else:
        record()
        a(f"s_cmp_ge_u32 s14, {16-NE}\ns_cbranch_scc1 L_vlast")
    a("L_vd1:")
    dispatch("L_v")
    for dd in LV:
        a(f"L_v{dd}:")
        vbody(dd, lastctl, True)
        a("s_branch L_vdisp")
    if not lastctl:
        a("L_vlast:")
        vbody(D2, True, False)
        a("s_cmp_lt_u32 s14, 16\ns_cbranch_scc1 L_vlast")
    a("L_sepi:")
    a("s_nop 7")
    stamp(4)
    spin_begin()
    a("L_facspin:")
    a(f"s_waitcnt lgkmcnt(0)\nv_readfirstlane_b32 s46, v{FA+1}\ns_cmp_eq_u32 s46, 1\ns_cbranch_scc1 L_facok")
    spin_check()
    a(f"ds_read_b128 v[{FA}:{FA+3}], v{FAD}\ns_branch L_facspin")
    a("L_facok:")
    for t in range(4): a(f"v_mul_f32 v{ACC+t}, v{ACC+t}, v{FA}")
    a(f"v_cvt_pk_bf16_f32 v{ACC}, v{ACC}, v{ACC+1}\nv_cvt_pk_bf16_f32 v{ACC+2}, v{ACC+2}, v{ACC+3}")
    a(f"""
    s_mov_b32 exec_lo, 0x00ff00ff
    s_mov_b32 exec_hi, 0x00ff00ff
    ds_write_b16 v{PT}, v{ACC}
    ds_write_b16_d16_hi v{PT}, v{ACC} offset:16
    ds_write_b16 v{PT}, v{ACC+2} offset:32
    ds_write_b16_d16_hi v{PT}, v{ACC+2} offset:48
    s_waitcnt lgkmcnt(0)
    """)
    if dry: a("s_cmp_eq_u32 s0, 1\ns_cbranch_scc1 L_tail0")
    a("s_barrier")
    stamp(5)
    dump_stamps(6)
    a("s_endpgm")

    a("L_helper:")
    TRB, DA, DB, DN, TA, TB, TC = 2, 4, 5, 6, 7, 8, 9
    a(f"""
    s_memrealtime s[60:61]
    s_sub_u32 s7, s3, 4
    """)
    def lane_consts():
        a(f"""
        v_lshrrev_b32 v{TA}, 4, v0
        v_bfe_u32 v{TB}, v0, 2, 2
        v_and_b32 v{TC}, 3, v0
        v_lshl_add_u32 v{TRB}, v{TA}, 3, v{TB}
        v_lshlrev_b32 v{TRB}, 8, v{TRB}
        v_lshl_add_u32 v{TRB}, v{TC}, 3, v{TRB}
        v_and_b32 v{TC}, 1, v{TA}
        v_lshl_add_u32 v{TB}, v{TC}, 2, v{TB}
        v_lshl_add_u32 v{TRB}, v{TB}, 5, v{TRB}
        s_lshl_b32 s12, s7, 15
        v_add_u32 v{TRB}, s12, v{TRB}
        v_and_b32 v{TB}, 15, v0
        v_lshlrev_b32 v{TC}, 1, v{TA}
        v_xor_b32 v{TB}, v{TB}, v{TC}
        v_lshlrev_b32 v{DN}, 4, v{TB}
        """)
    lane_consts()
    a(f"""
    s_lshr_b32 s69, s2, 3
    s_and_b32 s12, s2, 7
    s_mov_b32 s68, 4
    s_cmp_lt_u32 s69, {NFFN}
    s_cselect_b32 s68, 5, s68
    s_cmp_eq_u32 s12, 0
    s_cbranch_scc1 L_role
    s_mul_i32 s69, s69, 7
    s_add_u32 s69, s69, s12
    s_sub_u32 s69, s69, 1
    s_mov_b32 s68, 1
    s_cmp_lt_u32 s69, 16
    s_cbranch_scc1 L_role
    s_sub_u32 s69, s69, 16
    s_mov_b32 s68, 3
    s_cmp_lt_u32 s69, 64
    s_cbranch_scc1 L_role
    s_sub_u32 s69, s69, 48
    s_mov_b32 s68, 2
    s_cmp_lt_u32 s69, 48
    s_cbranch_scc1 L_role
    s_mov_b32 s68, 0
    L_role:
    """)
    a(f"""
    s_cmp_lg_u32 s7, 3
    s_cbranch_scc1 L_noinit
    s_and_b32 s12, s68, 1
    s_xor_b32 s12, s12, 1
    v_cmp_eq_u32 vcc, {F_WQD//16}, v0
    v_mov_b32 v17, s12
    v_cndmask_b32 v16, 0, v17, vcc
    v_mov_b32 v17, v16
    v_mov_b32 v18, v16
    v_mov_b32 v19, v16
    v_add_u32 v20, {L_FL}, v1
    ds_write_b128 v20, v[16:19]
    L_noinit:
    s_waitcnt lgkmcnt(0)
    s_mov_b32 s0, 0
    s_mov_b32 s71, 0
    s_mov_b32 s58, 0x0c0c0400
    s_mov_b32 s59, 0x04000c0c
    """)
    srd(48, P_WS, WS_SIZE)
    def dma_wide(nins, rs_log2, soff, infl, hooks={}):
        a(f"v_lshrrev_b32 v{TA}, 4, v0\nv_lshl_add_u32 v{DA}, v{TA}, {rs_log2}, v{DN}\nv_xor_b32 v{DB}, 0x80, v{DA}")
        a("s_lshl_b32 s14, s7, 15")
        for i in range(nins):
            a("s_mov_b32 m0, s14" if i == 0 else "s_add_u32 m0, m0, 0x400")
            if i: a(f"s_add_u32 {soff}, {soff}, {4 << rs_log2}")
            a(f"buffer_load_dwordx4 v{DB if (i >> 1) & 1 else DA}, s[8:11], {soff} offen nt lds")
            if i in hooks: hooks[i]()
            if i >= infl - 1: a(f"s_waitcnt vmcnt({infl-1})")
    def dma_mid(soff, ldsbase, infl, rs, hooks={}):
        a(f"""
        v_lshrrev_b32 v{DA}, 3, v0
        v_mul_u32_u24 v{DA}, {rs}, v{DA}
        v_bfe_u32 v{DB}, v0, 4, 1
        v_lshlrev_b32 v{DB}, 1, v{DB}
        v_and_b32 v{TA}, 7, v0
        v_xor_b32 v{DB}, v{DB}, v{TA}
        v_lshl_add_u32 v{DA}, v{DB}, 4, v{DA}
        v_xor_b32 v{DB}, 64, v{DA}
        """)
        for i in range(16):
            a(f"s_mov_b32 m0, {ldsbase}" if i == 0 else "s_add_u32 m0, m0, 0x400")
            if i: a(f"s_add_u32 {soff}, {soff}, {8*rs}")
            a(f"buffer_load_dwordx4 v{DB if i & 1 else DA}, s[8:11], {soff} offen nt lds")
            if i in hooks: hooks[i]()
            if i >= infl - 1: a(f"s_waitcnt vmcnt({infl-1})")
    def mid_bases():
        a(f"""
        v_lshrrev_b32 v{TB}, 4, v0
        v_bfe_u32 v{TC}, v0, 2, 2
        v_lshl_add_u32 v{TA}, v{TB}, 3, v{TC}
        v_lshlrev_b32 v{TA}, 7, v{TA}
        v_and_b32 v{TB}, 1, v{TB}
        v_lshrrev_b32 v{TC}, 1, v{TC}
        v_lshl_add_u32 v{TB}, v{TB}, 1, v{TC}
        v_xor_b32 v{TB}, s7, v{TB}
        v_lshl_add_u32 v{TA}, v{TB}, 5, v{TA}
        v_and_b32 v{TB}, 3, v0
        v_lshl_add_u32 v{TA}, v{TB}, 3, v{TA}
        v_add_u32 v{TB}, 0x10000, v{TA}
        """)
    def tr_mid(dst, off):
        for s in range(16):
            r = dst + 4 * s
            ar = TA if s < 8 else TB
            o = off + ((s >> 2) & 1) * 0x8000 + (s & 3) * 4096
            a(f"ds_read_b64_tr_b16 v[{r}:{r+1}], v{ar} offset:{o}")
            a(f"ds_read_b64_tr_b16 v[{r+2}:{r+3}], v{ar} offset:{o+512}")
        a("s_waitcnt lgkmcnt(0)")
    def tr_wide(dst, nk):
        for t in range(8):
            ar = TA if t & 1 else TB
            a(f"v_xor_b32 v{ar}, {t << 5}, v{TRB}")
            for s in range(nk):
                r = dst + (t * nk + s) * 4
                a(f"ds_read_b64_tr_b16 v[{r}:{r+1}], v{ar} offset:{s*8192}")
                a(f"ds_read_b64_tr_b16 v[{r+2}:{r+3}], v{ar} offset:{s*8192+1024}")
        a("s_waitcnt lgkmcnt(0)")
    def act_addr(dst, rowsel, tmp):
        a(f"v_and_b32 v{dst}, 3, v0" if rowsel == "lo" else f"v_bfe_u32 v{dst}, v0, 2, 2")
        a(f"v_mul_u32_u24 v{dst}, {ACT_STRIDE}, v{dst}\nv_lshrrev_b32 v{tmp}, 4, v0\nv_lshl_add_u32 v{dst}, v{tmp}, 4, v{dst}\nv_add_u32 v{dst}, {L_ACT}, v{dst}")
    def poll(lbl, loads, tags, sleep=0, pre="", post=""):
        spin_begin()
        if sleep: a(f"s_branch {lbl}_go")
        a(f"{lbl}:")
        spin_check()
        if sleep: a(f"s_sleep {sleep}\n{lbl}_go:")
        a(pre)
        for l in loads: a(l)
        a(post)
        a("s_waitcnt vmcnt(0)")
        tags()
        a(f"s_cmp_eq_u64 vcc, exec\ns_cbranch_scc0 {lbl}")
    def tags_words(regs):
        def f():
            a(f"v_cmp_eq_u32 vcc, {TAG}, v{regs[0]}")
            for r in regs[1:]: a(f"v_cmp_eq_u32 s[56:57], {TAG}, v{r}\ns_and_b64 vcc, vcc, s[56:57]")
        return f
    def tags_xor(regs, t):
        def f():
            a(f"v_xor_b32 v{t}, {TAG}, v{regs[0]}")
            for r in regs[1:]: a(f"v_xor_b32 v{t+1}, {TAG}, v{r}\nv_or_b32 v{t}, v{t}, v{t+1}")
            a(f"v_cmp_eq_u32 vcc, 0, v{t}")
        return f
    def tags_bytes(quads, t):
        def f():
            for i, q in enumerate(quads):
                a(f"v_perm_b32 v{t+2*i}, v{q+1}, v{q}, s58\nv_perm_b32 v{t+2*i+1}, v{q+3}, v{q+2}, s59")
            for i, q in enumerate(quads): a(f"v_or_b32 v{t+2*i}, v{t+2*i}, v{t+2*i+1}")
            for i, q in enumerate(quads): a(f"v_xor_b32 v{t+2*i}, {TAG}, v{t+2*i}")
            n = len(quads)
            if n == 4: a(f"v_or3_b32 v{t}, v{t}, v{t+2}, v{t+4}\nv_or_b32 v{t}, v{t}, v{t+6}")
            else: a(f"v_or_b32 v{t}, v{t}, v{t+2}")
            a(f"v_cmp_eq_u32 vcc, 0, v{t}")
        return f
    def ln_stats(x0, t0):
        a(f"v_readfirstlane_b32 s46, v{x0}")
        for k in range(8): a(f"v_subrev_f32 v{t0+2+k}, s46, v{x0+k}")
        a(f"v_add_f32 v{t0}, v{t0+2}, v{t0+3}\nv_mul_f32 v{t0+1}, v{t0+2}, v{t0+2}")
        a(f"v_fmac_f32 v{t0+1}, v{t0+3}, v{t0+3}")
        for k in range(2, 8): a(f"v_add_f32 v{t0}, v{t0}, v{t0+2+k}\nv_fmac_f32 v{t0+1}, v{t0+2+k}, v{t0+2+k}")
        allreduce("v_add_f32", [t0, t0+1], [t0+2, t0+3])
        a(f"""
        v_mul_f32 v{t0}, 0x3b000000, v{t0}
        v_mul_f32 v{t0+1}, 0x3b000000, v{t0+1}
        v_fma_f32 v{t0+1}, -v{t0}, v{t0}, v{t0+1}
        v_add_f32 v{t0}, s46, v{t0}
        v_max_f32 v{t0+1}, 0, v{t0+1}
        """)
        bf16r2(t0, t0+1, t0+2)
        a(f"v_add_f32 v{t0+1}, 0x3727c5ac, v{t0+1}")
        bf16r(t0+1, t0+1)
        a(f"v_sqrt_f32 v{t0+1}, v{t0+1}")
        bf16r(t0+1, t0+1)
        a(f"v_rcp_f32 v{t0+1}, v{t0+1}")
    def round8(x0, t):
        for k in range(4): a(f"v_cvt_pk_bf16_f32 v{t+k}, v{x0+2*k}, v{x0+2*k+1}")
        for k in range(4): unpack(x0 + 2*k, x0 + 2*k + 1, t + k)
    def ln_norm(x0, s0, t):
        for k in range(8): a(f"v_sub_f32 v{x0+k}, v{x0+k}, v{s0}")
        round8(x0, t)
        for k in range(8): a(f"v_mul_f32 v{x0+k}, v{x0+k}, v{s0+1}")
        round8(x0, t)
    def ln_affine(x0, sc8, sh8, t):
        for k in range(8): a(f"v_mul_f32 v{x0+k}, v{x0+k}, v{sc8+k}")
        round8(x0, t)
        for k in range(8): a(f"v_add_f32 v{x0+k}, v{x0+k}, v{sh8+k}")
        for k in range(4): a(f"v_cvt_pk_bf16_f32 v{t+k}, v{x0+2*k}, v{x0+2*k+1}")
    X8, ST, SA8, CA8, BW, DT = 24, 32, 40, 48, 192, 56
    def gemv64(tagn, kind, infl, first):
        isq = kind == "q"
        srd(52, P_X if isq else P_C, 4096)
        a(f"""
        v_lshlrev_b32 v10, 3, v0
        s_lshl_b32 s12, s7, 10
        buffer_load_dwordx2 v[12:13], v10, s[52:55], s12 offen
        buffer_load_dwordx2 v[14:15], v10, s[52:55], s12 offen offset:512
        """)
        rs = 8192 if isq else 6144
        srd(8, P_WQ if isq else P_WM, 0 if ({"q": "q", "A": "A", "a": "a"}[kind] in skip) else 512 * rs)
        a(f"s_mul_i32 s13, s7, {128*rs}\ns_lshl_b32 s12, s69, 7\ns_add_u32 s13, s13, s12\ns_lshl_b32 s14, s7, 15")
        dma_mid("s13", "s14", infl, rs, hooks=({min(infl, 16) - 1: lambda: a(BAR0)} if first else {}))
        a("s_waitcnt vmcnt(16)")
        if kind == "A": stamp(1)
        for k in range(4): unpack(X8 + 2*k, X8 + 2*k + 1, 12 + k)
        a(f"s_mul_i32 s12, s7, {ACT_STRIDE}\ns_add_u32 s12, s12, {L_ACT}\nv_add_u32 v10, s12, v10")
        if isq:
            ln_stats(X8, ST)
            ln_norm(X8, ST, 16)
        else:
            for k in range(8): a(f"v_mul_f32 v{ST+k}, {LOG2E}, v{X8+k}")
            for k in range(8): a(f"v_exp_f32 v{ST+k}, -v{ST+k}")
            for k in range(8): a(f"v_add_f32 v{ST+k}, 1.0, v{ST+k}")
            for k in range(8): a(f"v_rcp_f32 v{ST+k}, v{ST+k}")
            for k in range(8): a(f"v_mul_f32 v{X8+k}, v{X8+k}, v{ST+k}")
            for k in range(4): a(f"v_cvt_pk_bf16_f32 v{16+k}, v{X8+2*k}, v{X8+2*k+1}")
            a("ds_write_b64 v10, v[16:17]\nds_write_b64 v10, v[18:19] offset:512")
        mid_bases()
        a("s_waitcnt vmcnt(0)")
        set_flag(F_WQ, "s7", 20, 21)
        wait_flags(f"L_wq{tagn}", F_WQ, 16, 0)
        if first: a(MKTAG)
        stamp(4 if isq else 2) if first else None
        tr_mid(BW, 0)
        if first: set_flag(F_WQD, "s7", 16, 17)
        act_addr(TC, "lo", TB)
        a(f"s_lshl_b32 s67, s69, 10\ns_lshl_b32 s12, s7, 8\ns_add_u32 s67, s67, s12\ns_add_u32 s67, s67, {WS_Q if isq else WS_MOD}")
        if isq:
            a(f"""
            v_lshrrev_b32 v{TA}, 2, v0
            v_lshlrev_b32 v{TA}, 8, v{TA}
            v_and_b32 v{TB}, 3, v0
            v_lshl_add_u32 v{TA}, v{TB}, 4, v{TA}
            s_lshl_b32 s12, s7, 6
            s_add_u32 s12, s12, {WS_MOD}
            s_add_u32 s13, s12, 0x1000
            s_add_u32 s14, s12, 0x2000
            s_add_u32 s46, s12, 0x3000
            """)
            if gm: wait_flags("L_g1", F_G1, 16, 4)
            G0 = 128
            poll("L_poll_mod", [f"buffer_load_dwordx4 v[{G0+4*i}:{G0+4*i+3}], v{TA}, s[48:51], {sr} offen sc1" for i, sr in enumerate(["s12", "s13", "s14", "s46"])],
                 tags_xor([G0 + 1 + 2*k for k in range(8)], 16), sleep=slp)
            stamp(5)
            for k in range(4): unpack(SA8 + 2*k, SA8 + 2*k + 1, G0 + 2*k)
            for k in range(4): unpack(CA8 + 2*k, CA8 + 2*k + 1, G0 + 8 + 2*k)
            for k in range(8): a(f"v_add_f32 v{CA8+k}, 1.0, v{CA8+k}")
            round8(CA8, 16)
            ln_affine(X8, CA8, SA8, 16)
            a("ds_write_b64 v10, v[16:17]\nds_write_b64 v10, v[18:19] offset:512")
            set_flag(F_H, "s7", 20, 21)
            wait_flags("L_h", F_H, 16, 0)
        for hh in range(2):
            for s in range(8): a(f"ds_read_b128 v[{16+4*s}:{19+4*s}], v{TC} offset:{(8*hh+s)*64}")
            for s in range(8):
                a(f"s_waitcnt lgkmcnt({7-s})")
                k = 8*hh + s
                a(f"v_mfma_f32_16x16x32_bf16 v[{DT}:{DT+3}], v[{BW+4*k}:{BW+4*k+3}], v[{16+4*s}:{19+4*s}], " + ("0" if k == 0 else f"v[{DT}:{DT+3}]"))
        a(f"""
        v_and_b32 v{TC}, 3, v0
        v_lshrrev_b32 v{TA}, 4, v0
        v_lshlrev_b32 v{TA}, 4, v{TA}
        v_lshl_add_u32 v{TA}, v{TC}, 6, v{TA}
        v_mov_b32 v{DT+5}, {TAG}
        v_mov_b32 v{DT+7}, {TAG}
        v_cvt_pk_bf16_f32 v{DT+4}, v{DT}, v{DT+1}
        v_cvt_pk_bf16_f32 v{DT+6}, v{DT+2}, v{DT+3}
        s_mov_b32 exec_lo, 0x000f000f
        s_mov_b32 exec_hi, 0x000f000f
        buffer_store_dwordx4 v[{DT+4}:{DT+7}], v{TA}, s[48:51], s67 offen sc1
        s_mov_b64 exec, -1
        """)
        if first: stamp(13 if isq else 3)

    a("""
    s_cmp_eq_u32 s68, 3
    s_cbranch_scc1 L_qgemv
    s_cmp_eq_u32 s68, 5
    s_cbranch_scc1 L_down
    s_cmp_lg_u32 s68, 1
    s_cbranch_scc1 L_bar0
    """)
    gemv64(1, "A", 64, True)
    a("s_branch L_getq")
    a("L_qgemv:")
    gemv64(2, "q", thrQ, True)
    a("s_branch L_getq")
    a("L_down:")
    srd(8, P_WD, 0 if 'f' in skip else 1792 * 1024)
    a("s_lshl_b32 s13, s69, 16\ns_lshl_b32 s12, s7, 8\ns_add_u32 s13, s13, s12")
    dma_wide(16, 10, "s13", thrD, hooks={min(thrD, 16) - 1: lambda: a(BAR0)})
    a("s_waitcnt vmcnt(0)")
    tr_wide(192, 2)
    a(MKTAG)
    set_flag(F_WQD, "s7", 16, 17)
    a("s_branch L_getq")
    a("L_bar0:")
    a(BAR0)
    a("s_waitcnt lgkmcnt(0)")
    a(MKTAG)
    a("L_getq:")
    a("s_cmp_lg_u32 s7, 2\ns_cbranch_scc1 L_bar1")
    a(f"""
    v_bfe_u32 v{TA}, v0, 2, 3
    v_lshlrev_b32 v{TA}, 8, v{TA}
    v_and_b32 v{TB}, 3, v0
    v_lshl_add_u32 v{TA}, v{TB}, 4, v{TA}
    s_lshl_b32 s12, s4, 11
    s_lshl_b32 s13, s5, 6
    s_add_u32 s12, s12, s13
    s_add_u32 s12, s12, {WS_Q}
    v_and_b32 v{TB}, 31, v0
    v_lshlrev_b32 v{TB}, 3, v{TB}
    v_add_u32 v{TB}, {L_Q}, v{TB}
    """)
    if gq: wait_flags("L_g2", F_G2, 16, 4)
    poll("L_poll_q", [f"buffer_load_dwordx4 v[16:19], v{TA}, s[48:51], s12 offen sc1"], tags_words([17, 19]), sleep=slp)
    a(f"v_mov_b32 v17, v18\nds_write_b64 v{TB}, v[16:17]\ns_waitcnt lgkmcnt(0)")
    a("L_bar1:")
    a("s_barrier")
    if dbg: a("s_memrealtime s[98:99]")
    stamp(6)
    a(f"""
    s_getreg_b32 s62, hwreg(HW_REG_XCC_ID)
    s_cmp_lt_u32 s68, 4
    s_cbranch_scc1 L_noxcc
    s_cmp_lg_u32 s7, 1
    s_cbranch_scc1 L_noxcc
    v_mov_b32 v16, s62
    v_mov_b32 v17, {TAG}
    s_lshl_b32 s12, s69, 7
    s_add_u32 s12, s12, {WS_XCC}
    s_mov_b64 exec, 1
    buffer_store_dwordx2 v[16:17], v1, s[48:51], s12 offen sc1
    s_mov_b64 exec, -1
    L_noxcc:
    """)
    if tlb:
        a("s_cmp_lg_u32 s7, 3\ns_cbranch_scc1 L_notlb\ns_mov_b64 exec, 1")
        srd(8, P_V, 0x10000000)
        a("s_lshl_b32 s12, s15, 21\ns_lshl_b32 s13, s6, 20\ns_add_u32 s12, s12, s13\nbuffer_load_dword v16, v1, s[8:11], s12 offen nt")
        srd(8, P_OUT, 4096)
        a("buffer_load_dword v17, v1, s[8:11], 0 offen nt")
        a(f"s_mov_b32 s12, {WS_TM}\nbuffer_load_dword v18, v1, s[48:51], s12 offen offset:1024 nt")
        a("s_mov_b64 exec, -1\ns_waitcnt vmcnt(0)\nL_notlb:")
    def wait_row(lbl, g):
        spin_begin()
        a(f"v_mov_b32 v20, {L_FL+F_TT+16*g}")
        a(f"s_branch {lbl}_go\n{lbl}:")
        spin_check()
        a(f"""
        s_sleep 8
        {lbl}_go:
        ds_read_b128 v[16:19], v20
        s_waitcnt lgkmcnt(0)
        v_and_b32 v21, v16, v17
        v_and_b32 v22, v18, v19
        v_and_b32 v21, v21, v22
        v_readfirstlane_b32 s47, v21
        s_bitcmp1_b32 s47, 0
        s_cbranch_scc0 {lbl}
        """)
    def tm_publish(m, g):
        a(f"""
        s_lshr_b32 s12, s15, 3
        s_xor_b32 s12, s12, s15
        s_and_b32 s12, s12, 1
        s_bfe_u32 s14, s15, 0x10004
        s_xor_b32 s14, s14, s6
        s_or_b32 s12, s12, s14
        s_or_b32 s12, s12, s7
        s_cbranch_scc1 L_tmp{m}
        """)
        wait_row(f"L_tr{m}", g)
        for k in range(4): a(f"v_subrev_u32 v{16+k}, s60, v{16+k}")
        a(f"""
        v_add3_u32 v16, v16, v17, v18
        v_add_u32 v16, v16, v19
        v_lshrrev_b32 v16, 2, v16
        v_add_u32 v16, s60, v16
        v_mov_b32 v17, {TAG}
        v_mov_b32 v18, s60
        v_mov_b32 v19, {TAG}
        s_lshr_b32 s12, s15, 1
        s_mul_i32 s12, s12, {TMSTR}
        s_add_u32 s12, s12, {WS_TM + 128*m}
        s_mov_b64 exec, 1
        buffer_store_dwordx4 v[16:19], v1, s[48:51], s12 offen sc1
        s_mov_b64 exec, -1
        L_tmp{m}:
        """)
    import struct
    def fhex(v): return hex(struct.unpack("<I", struct.pack("<f", v))[0])
    def tm_gather(m, gate, p_m, mult):
        a(f"s_cmp_lg_u32 s7, 0\ns_cbranch_scc1 L_tmg{m}")
        wait_row(f"L_tg{m}", gate)
        a(f"v_mul_u32_u24 v20, {TMSTR}, v0\ns_mov_b32 s12, {WS_TM + 128*m}")
        poll(f"L_poll_tm{m}", ["buffer_load_dwordx4 v[16:19], v20, s[48:51], s12 offen sc1"], tags_words([17, 19]), sleep=48)
        a("v_sub_u32 v18, v16, v18\nv_subrev_u32 v16, s60, v16")
        allreduce("v_add_u32", [16, 18], [17, 19])
        a("v_ashrrev_i32 v16, 6, v16\nv_lshrrev_b32 v18, 6, v18")
        if m > 1: a("v_subrev_u32 v18, s61, v16")
        a(f"""
        v_readfirstlane_b32 s61, v16
        {f"v_readfirstlane_b32 s{90+m}, v16" if dbg else ""}
        v_cvt_f32_u32 v18, v18
        v_mul_f32 v18, {fhex(mult)}, v18
        v_cvt_u32_f32 v17, v18
        v_mul_u32_u24 v18, {p_m}, v17
        v_lshrrev_b32 v18, 4, v18
        v_sub_u32 v16, v16, v18
        v_add_u32 v16, s60, v16
        v_and_b32 v20, 3, v0
        v_lshlrev_b32 v20, 4, v20
        v_add_u32 v20, {L_FL+F_FAC+8}, v20
        ds_write_b64 v20, v[16:17]
        L_tmg{m}:
        """)
    wait_flags("L_wf", F_WF, 16, 4)
    srd(8, P_WO, 0 if 'w' in skip else 4096 * 1024)
    a("s_lshl_b32 s13, s4, 17\ns_lshl_b32 s12, s7, 8\ns_add_u32 s13, s13, s12")
    dma_wide(32, 10, "s13", thr, hooks={5: lambda: tm_publish(1, 0), 5 + 6*lagK: lambda: tm_gather(1, lagK, 0, 4*f1)})
    a("s_waitcnt vmcnt(0)")
    if dry:
        a(f"""
        s_mov_b32 s0, 1
        s_mov_b32 s1, {TAG}
        s_mov_b32 {TAG}, 0
        s_mov_b32 s50, 0
        s_mov_b32 s44, 1
        v_mov_b32 v{FA+1}, 1
        v_mov_b32 v{PT}, {L_OP}
        s_branch L_sepi
        L_afterdry:
        s_mov_b32 s0, 0
        s_mov_b32 {TAG}, s1
        s_mov_b32 s50, {WS_SIZE}
        s_mov_b64 exec, -1
        s_waitcnt vmcnt(0) lgkmcnt(0)
        """)
        lane_consts()
    tr_wide(64, 4)
    a("s_cmp_lg_u32 s68, 2\ns_cbranch_scc1 L_noA2")
    gemv64(3, "a", thrA, False)
    a("L_noA2:")
    SB, TREG = [10, 11, 12, 13], [4, 5, 6, 14]
    RX, RGA, RGB = 2, 3, 15
    def ffn_cols(dst_tile, dst_sub):
        a(f"""
        v_lshrrev_b32 v{dst_tile}, 4, v0
        v_and_b32 v{dst_sub}, 3, v0
        v_lshl_add_u32 v{dst_tile}, v{dst_tile}, 2, v{dst_sub}
        v_bfe_u32 v{dst_sub}, v0, 2, 2
        """)
    a("s_cmp_lt_u32 s68, 4\ns_cbranch_scc1 L_nored1\ns_cmp_lg_u32 s68, 5\ns_cbranch_scc1 L_noffn1")
    srd(8, P_WG, 0 if 'f' in skip else 512 * 3584)
    a(f"s_lshl_b32 s13, s69, 7\ns_mul_i32 s12, s7, {128*3584}\ns_add_u32 s46, s13, s12\ns_mov_b32 s13, s46\ns_lshl_b32 s14, s7, 15")
    dma_mid("s13", "s14", thrF, 3584)
    srd(8, P_WU, 0 if 'f' in skip else 512 * 3584)
    a("s_mov_b32 s13, s46\ns_add_u32 s14, s14, 0x4000")
    dma_mid("s13", "s14", thrF, 3584)
    a("L_noffn1:")
    a("L_nored1:")
    stamp(7)
    tm_publish(2, KL)
    a("s_cmp_lg_u32 s7, 0\ns_cbranch_scc1 L_nofac")
    wait_flags("L_kd", F_KD, 16, 16)
    q4 = ("quad_perm:[1,0,3,2]", "quad_perm:[2,3,0,1]")
    a(f"""
    v_and_b32 v{TA}, 3, v0
    v_lshlrev_b32 v{TA}, 4, v{TA}
    v_add_u32 v{TA}, {L_FL}, v{TA}
    ds_read_b64 v[24:25], v{TA} offset:{F_ST}
    s_waitcnt lgkmcnt(0)
    v_mov_b32 v28, v24
    """)
    allreduce("v_max_f32", [28], [], rows_only=True, steps=q4)
    a(f"v_sub_f32 v30, v24, v28\nv_mul_f32 v30, {LOG2E}, v30\nv_exp_f32 v30, v30\nv_mul_f32 v30, v25, v30")
    allreduce("v_add_f32", [30], [], rows_only=True, steps=q4)
    a(f"""
    v_mov_b32 v29, {TAG}
    v_mov_b32 v31, {TAG}
    s_lshl_b32 s13, s15, 7
    s_add_u32 s13, s13, {WS_STATS}
    s_lshl_b32 s12, s6, 4
    s_add_u32 s14, s13, s12
    s_xor_b32 s12, s12, 16
    s_add_u32 s13, s13, s12
    s_mov_b64 exec, 1
    buffer_store_dwordx4 v[28:31], v1, s[48:51], s14 offen sc1
    s_mov_b64 exec, -1
    """)
    tm_gather(2, KL + lagV, 4*KL, 4*f2/KL)
    a(f"v_mov_b32 v{TB}, 0")
    poll("L_poll_st", [f"buffer_load_dwordx4 v[16:19], v{TB}, s[48:51], s13 offen sc1"], tags_words([17, 19]), sleep=32)
    a(f"""
    v_max_f32 v17, v16, v28
    v_sub_f32 v16, v16, v17
    v_sub_f32 v28, v28, v17
    v_sub_f32 v24, v24, v17
    v_mul_f32 v16, {LOG2E}, v16
    v_mul_f32 v28, {LOG2E}, v28
    v_mul_f32 v24, {LOG2E}, v24
    v_exp_f32 v16, v16
    v_exp_f32 v28, v28
    v_exp_f32 v24, v24
    v_mul_f32 v16, v16, v18
    v_fmac_f32 v16, v28, v30
    v_rcp_f32 v16, v16
    v_mov_b32 v25, 1
    v_mul_f32 v24, v24, v16
    ds_write_b64 v{TA}, v[24:25] offset:{F_FAC}
    """)
    a("L_nofac:")
    a("s_cmp_lt_u32 s68, 4\ns_cbranch_scc1 L_nored2")
    wait_row("L_kd2", KL + 1)
    a("s_cmp_lg_u32 s68, 5\ns_cbranch_scc1 L_noffn2")
    ffn_cols(TA, TB)
    a(f"""
    v_lshlrev_b32 v{TA}, 8, v{TA}
    v_lshl_add_u32 v{TA}, v{TB}, 4, v{TA}
    s_lshl_b32 s12, s7, 6
    s_add_u32 s12, s12, {WS_MOD + 96*256}
    s_add_u32 s13, s12, 0x1000
    s_add_u32 s14, s12, 0x2000
    s_add_u32 s46, s12, 0x3000
    """)
    poll("L_poll_sb", [f"buffer_load_dwordx4 v[{16+4*i}:{19+4*i}], v{TA}, s[48:51], {sr} offen sc1" for i, sr in enumerate(["s12", "s13", "s14", "s46"])],
         tags_words([17 + 2*k for k in range(8)]), sleep=16)
    for k in range(4):
        a(f"v_mov_b32 v{SB[k]}, v{16+2*k}")
        unpack(32, 33, 24 + 2*k)
        a(f"v_add_f32 v32, 1.0, v32\nv_add_f32 v33, 1.0, v33\nv_cvt_pk_bf16_f32 v{TREG[k]}, v32, v33")
    a("L_noffn2:")
    srd(52, P_X, 4096)
    a(f"""
    v_bfe_u32 v{TA}, v0, 2, 2
    v_and_b32 v{TB}, 3, v0
    v_lshlrev_b32 v{TC}, 5, v{TA}
    v_lshl_add_u32 v{TC}, v{TB}, 1, v{TC}
    s_lshl_b32 s71, s69, 7
    s_lshl_b32 s12, s7, 3
    s_add_u32 s71, s71, s12
    buffer_load_ushort v{RX}, v{TC}, s[52:55], s71 offen
    v_lshlrev_b32 v{TA}, 8, v{TA}
    v_lshrrev_b32 v{TC}, 1, v{TB}
    v_lshl_add_u32 v{TA}, v{TC}, 3, v{TA}
    s_and_b32 s12, s69, 7
    s_lshl_b32 s12, s12, 10
    s_lshl_b32 s13, s7, 4
    s_add_u32 s12, s12, s13
    s_lshr_b32 s13, s69, 3
    s_lshl_b32 s13, s13, 6
    s_add_u32 s12, s12, s13
    s_add_u32 s13, s12, {WS_MOD + 160*256}
    s_add_u32 s12, s12, {WS_MOD + 64*256}
    """)
    poll("L_poll_ga", [f"buffer_load_dwordx2 v[16:17], v{TA}, s[48:51], s12 offen sc1", f"buffer_load_dwordx2 v[18:19], v{TA}, s[48:51], s13 offen sc1"],
         tags_words([17, 19]), sleep=16)
    a(f"v_and_b32 v{TB}, 1, v0\nv_cmp_eq_u32 vcc, 1, v{TB}")
    for k, r in enumerate([RGA, RGB]):
        unpack(24, 25, 16 + 2*k)
        a(f"v_cndmask_b32 v{r}, v24, v25, vcc")
    a(f"v_lshlrev_b32 v{RX}, 16, v{RX}")
    a(f"v_and_b32 v{TA}, 31, v0\nv_lshlrev_b32 v{TA}, 7, v{TA}\ns_mov_b32 s12, {WS_XCC}")
    poll("L_poll_xcc", [f"buffer_load_dwordx2 v[16:17], v{TA}, s[48:51], s12 offen sc1"], tags_words([17]), sleep=16)
    a(f"v_cmp_eq_u32 vcc, s62, v16\ns_cmp_eq_u64 vcc, exec\ns_cselect_b32 s44, {1 if fast else 0}, 0")
    a("L_nored2:")
    if m3:
        tm_publish(3, KL + m3)
        tm_gather(3, KL + m3 + lag3, 4*(KL + m3) + E//4, 16*f3/(4*m3 + E//4))
    if touch:
        a("s_cmp_lt_u32 s68, 4\ns_cbranch_scc1 L_notouch")
        wait_row("L_tch", KL + touch)
        a(f"""
        v_lshrrev_b32 v{TA}, 2, v0
        v_and_b32 v{TB}, 3, v0
        v_lshlrev_b32 v{TC}, 13, v{TA}
        v_lshl_add_u32 v{TC}, v{TB}, 4, v{TC}
        v_lshlrev_b32 v{TA}, 11, v{TA}
        v_lshl_add_u32 v{TA}, v{TB}, 4, v{TA}
        s_lshl_b32 s12, s7, 11
        s_add_u32 s12, s12, {WS_X1}
        buffer_load_dwordx4 v[16:19], v1, s[48:51], s12 offen sc1
        buffer_load_dwordx4 v[20:23], v1, s[48:51], s12 offen offset:1024 sc1
        s_lshl_b32 s12, s69, 8
        s_lshl_b32 s13, s7, 6
        s_add_u32 s12, s12, s13
        s_add_u32 s12, s12, {WS_PART2}
        s_add_u32 s13, s12, 0x20000
        buffer_load_dwordx4 v[24:27], v{TC}, s[48:51], s12 offen sc1
        buffer_load_dwordx4 v[28:31], v{TC}, s[48:51], s13 offen sc1
        """)
        if touch1:
            a(f"""
            s_and_b32 s12, s69, 7
            s_lshl_b32 s12, s12, 8
            s_lshl_b32 s13, s7, 6
            s_add_u32 s12, s12, s13
            s_lshr_b32 s13, s69, 3
            s_lshl_b32 s13, s13, 17
            s_add_u32 s12, s12, s13
            s_add_u32 s12, s12, {WS_PART1}
            """)
            for i in range(4):
                a(f"buffer_load_dwordx4 v[{32+4*i}:{35+4*i}], v{TA}, s[48:51], s12 offen sc1\ns_add_u32 s12, s12, 0x8000")
        a("L_notouch:")
    AF, DD = 16, 32
    bn = {"n": 0}
    def barrier():
        if not dry: a("s_barrier"); return
        bn["n"] += 1
        a(f"s_cmp_eq_u32 s0, 1\ns_cbranch_scc1 L_nb{bn['n']}\ns_barrier\nL_nb{bn['n']}:")
    a(f"""
    L_tail0:
    s_mov_b64 exec, -1
    s_waitcnt vmcnt(0) lgkmcnt(0)
    v_and_b32 v{TB}, 3, v0
    v_mul_u32_u24 v{TB}, {OP_STRIDE}, v{TB}
    v_lshrrev_b32 v{TA}, 4, v0
    v_lshl_add_u32 v{TB}, v{TA}, 4, v{TB}
    v_add_u32 v{TB}, {L_OP}, v{TB}
    v_cmp_eq_u32 s[56:57], 1, v{TA}
    s_lshl_b32 s12, s15, 1
    s_add_u32 s12, s12, s6
    s_lshl_b32 s12, s12, 11
    s_lshl_b32 s13, s7, 9
    s_add_u32 s12, s12, s13
    s_add_u32 s12, s12, {WS_PART1}
    s_and_b32 s18, {TAG}, 0xff
    s_bfe_u32 s19, {TAG}, 0x80008
    s_bfe_u32 s20, {TAG}, 0x80010
    s_lshr_b32 s21, {TAG}, 24
    v_mov_b32 v{TC}, 0xffffff00
    """)
    stamp(8)
    barrier()
    if dbg: a("s_memrealtime s[96:97]")
    stamp(9)
    for s in range(4): a(f"ds_read_b128 v[{AF+4*s}:{AF+4*s+3}], v{TB} offset:{64*s}")
    a("s_waitcnt lgkmcnt(0)")
    def gemv_wide(bbase, nk):
        for t in range(8):
            for s in range(nk):
                r = bbase + (t * nk + s) * 4
                a(f"v_mfma_f32_16x16x32_bf16 v[{DD+4*t}:{DD+4*t+3}], v[{AF+4*s}:{AF+4*s+3}], v[{r}:{r+3}], " + ("0" if s == 0 else f"v[{DD+4*t}:{DD+4*t+3}]"))
    gemv_wide(64, 4)
    for t in range(8):
        a(f"v_add_f32 v{DD+4*t}, v{DD+4*t}, v{DD+4*t+1}\nv_add_f32 v{DD+4*t+2}, v{DD+4*t+2}, v{DD+4*t+3}")
    for t in range(8): a(f"v_add_f32 v{DD+4*t}, v{DD+4*t}, v{DD+4*t+2}")
    for k in range(4): a(f"v_cndmask_b32 v{16+k}, v{DD+4*k}, v{DD+4*(4+k)}, s[56:57]")
    for k in range(4): a(f"v_and_or_b32 v{16+k}, v{16+k}, v{TC}, s{18+k}")
    a("s_mov_b32 exec_hi, 0\nbuffer_store_dwordx4 v[16:19], v1, s[48:51], s12 offen sc1\ns_mov_b64 exec, -1")
    stamp(10)
    a("s_cmp_lt_u32 s68, 4\ns_cbranch_scc1 L_hend\ns_cmp_lg_u32 s68, 5\ns_cbranch_scc1 L_noffn3")
    SC8, SH8 = 48, 56
    HW_, HF_, GF_, GW_, PO_, MS_ = 10, 11, 12, 13, 4, 5
    mid_bases()
    tr_mid(64, 0)
    tr_mid(128, 0x4000)
    for k in range(4): unpack(SC8 + 2*k, SC8 + 2*k + 1, TREG[k])
    for k in range(4): unpack(SH8 + 2*k, SH8 + 2*k + 1, SB[k])
    act_addr(HF_, "hi", TB)
    ffn_cols(TA, TB)
    a(f"""
    v_lshlrev_b32 v{HW_}, 5, v{TA}
    v_lshl_add_u32 v{HW_}, v{TB}, 3, v{HW_}
    s_mul_i32 s13, s7, {ACT_STRIDE}
    s_add_u32 s13, s13, {L_ACT}
    v_add_u32 v{HW_}, s13, v{HW_}
    v_mul_u32_u24 v{GF_}, {GB_STRIDE}, v{TB}
    v_lshrrev_b32 v{TB}, 4, v0
    v_lshl_add_u32 v{GF_}, v{TB}, 4, v{GF_}
    v_add_u32 v{GF_}, {L_GB}, v{GF_}
    v_mul_u32_u24 v{GW_}, {GB_STRIDE}, v{TB}
    v_and_b32 v{TA}, 15, v0
    v_lshl_add_u32 v{GW_}, v{TA}, 1, v{GW_}
    s_lshl_b32 s13, s7, 5
    s_add_u32 s13, s13, {L_GB}
    v_add_u32 v{GW_}, s13, v{GW_}
    v_lshlrev_b32 v{TB}, 11, v{TB}
    v_lshl_add_u32 v{PO_}, v{TA}, 4, v{TB}
    v_mov_b32 v{MS_}, 0xffffff00
    """)
    a("L_noffn3:")
    a(f"""
    v_lshrrev_b32 v{TA}, 2, v0
    v_and_b32 v{TB}, 3, v0
    v_lshlrev_b32 v{TC}, 13, v{TA}
    v_lshlrev_b32 v{TA}, 11, v{TA}
    v_lshl_add_u32 v{TA}, v{TB}, 4, v{TA}
    v_lshl_add_u32 v{TC}, v{TB}, 4, v{TC}
    v_lshlrev_b32 v{TB}, 2, v0
    s_and_b32 s12, s69, 7
    s_lshl_b32 s12, s12, 8
    s_lshl_b32 s13, s7, 6
    s_add_u32 s12, s12, s13
    s_lshr_b32 s13, s69, 3
    s_lshl_b32 s14, s13, 11
    s_add_u32 s22, s12, s14
    s_lshl_b32 s13, s13, 17
    s_add_u32 s12, s12, s13
    s_add_u32 s12, s12, {WS_PART1}
    s_add_u32 s13, s12, 0x8000
    s_add_u32 s14, s12, 0x10000
    s_add_u32 s67, s12, 0x18000
    s_add_u32 s23, s22, {WS_X1}
    v_mov_b32 v41, {TAG}
    v_mov_b32 v43, {TAG}
    """)
    poll("L_poll_p1", [f"buffer_load_dwordx4 v[{16+4*i}:{19+4*i}], v{TA}, s[48:51], {sr} offen sc1" for i, sr in enumerate(["s12", "s13", "s14", "s67"])],
         tags_bytes([16, 20, 24, 28], 32))
    stamp(11)
    def colsum(n):
        st_ = 1
        while st_ < n:
            for i in range(0, n, 2*st_):
                for k in range(4): a(f"v_add_f32 v{16+4*i+k}, v{16+4*i+k}, v{16+4*(i+st_)+k}")
            st_ *= 2
        a("""
        v_add_f32_dpp v20, v16, v16 row_ror:8 row_mask:0xf bank_mask:0x3
        v_add_f32_dpp v21, v17, v17 row_ror:8 row_mask:0xf bank_mask:0x3
        v_add_f32_dpp v20, v18, v18 row_ror:8 row_mask:0xf bank_mask:0xc
        v_add_f32_dpp v21, v19, v19 row_ror:8 row_mask:0xf bank_mask:0xc
        v_add_f32_dpp v16, v20, v20 row_shl:4 row_mask:0xf bank_mask:0x5
        v_add_f32_dpp v16, v21, v21 row_shr:4 row_mask:0xf bank_mask:0xa
        """)
        allreduce("v_add_f32", [16], [17], steps=())
    def resid(gate):
        bf16r(16, 16)
        a(f"v_mul_f32 v16, v16, v{gate}")
        bf16r(16, 16)
        a(f"v_add_f32 v16, v16, v{RX}")
    colsum(4)
    resid(RGA)
    a(f"""
    v_mov_b32_dpp v17, v16 quad_perm:[1,1,1,1] {FULL}
    v_mov_b32_dpp v18, v16 quad_perm:[2,2,2,2] {FULL}
    v_mov_b32_dpp v19, v16 quad_perm:[3,3,3,3] {FULL}
    v_cvt_pk_bf16_f32 v40, v16, v17
    v_cvt_pk_bf16_f32 v42, v18, v19
    s_mov_b64 exec, 0x1111
    """)
    def hstore(lbl, stores):
        a(f"s_cmp_eq_u32 s44, 1\ns_cbranch_scc0 {lbl}_s")
        for st_ in stores: a(f"{st_} {fpol}")
        a(f"s_branch {lbl}_e\n{lbl}_s:")
        for st_ in stores: a(f"{st_} sc1")
        a(f"{lbl}_e:")
    hstore("L_sx1", [f"buffer_store_dwordx4 v[40:43], v{TB}, s[48:51], s23 offen"])
    a("s_mov_b64 exec, -1")
    stamp(12)
    bf16r(RX, 16)
    a("s_cmp_lg_u32 s68, 5\ns_cbranch_scc1 L_red2")
    a(f"""
    s_lshl_b32 s12, s7, 11
    s_add_u32 s12, s12, {WS_X1}
    s_lshl_b32 s13, s69, 13
    s_lshl_b32 s14, s7, 9
    s_add_u32 s13, s13, s14
    s_add_u32 s23, s13, {WS_PART2}
    """)
    poll("L_poll_x1", ["buffer_load_dwordx4 v[16:19], v1, s[48:51], s12 offen sc1", "buffer_load_dwordx4 v[20:23], v1, s[48:51], s12 offen offset:1024 sc1"],
         tags_xor([17, 19, 21, 23], 24))
    stamp(1)
    X2, S2 = 24, 32
    for k in range(4): unpack(X2 + 2*k, X2 + 2*k + 1, 16 + 2*k)
    ln_stats(X2, S2)
    ln_norm(X2, S2, 16)
    ln_affine(X2, SC8, SH8, 16)
    a(f"ds_write_b64 v{HW_}, v[16:17]\nds_write_b64 v{HW_}, v[18:19] offset:512\ns_waitcnt lgkmcnt(0)")
    barrier()
    G, U = 48, 52
    for hh in range(2):
        for s in range(8): a(f"ds_read_b128 v[{16+4*s}:{19+4*s}], v{HF_} offset:{(8*hh+s)*64}")
        for s in range(8):
            a(f"s_waitcnt lgkmcnt({7-s})")
            k = 8*hh + s
            a(f"v_mfma_f32_16x16x32_bf16 v[{G}:{G+3}], v[{16+4*s}:{19+4*s}], v[{64+4*k}:{67+4*k}], " + ("0" if k == 0 else f"v[{G}:{G+3}]"))
            a(f"v_mfma_f32_16x16x32_bf16 v[{U}:{U+3}], v[{16+4*s}:{19+4*s}], v[{128+4*k}:{131+4*k}], " + ("0" if k == 0 else f"v[{U}:{U+3}]"))
    bf16r2(G, U, 56)
    a(f"""
    v_mul_f32 v56, v{G}, v{G}
    v_mul_f32 v56, 0x3d372713, v56
    v_fma_f32 v56, v56, v{G}, v{G}
    v_mul_f32 v56, 0x40135761, v56
    v_exp_f32 v56, -v56
    v_add_f32 v56, 1.0, v56
    v_rcp_f32 v56, v56
    v_mul_f32 v56, v56, v{G}
    """)
    bf16r(56, 56)
    a(f"""
    v_mul_f32 v56, v56, v{U}
    v_cvt_pk_bf16_f32 v56, v56, v56
    ds_write_b16 v{GW_}, v56
    s_waitcnt lgkmcnt(0)
    """)
    barrier()
    a(f"""
    ds_read_b128 v[{AF}:{AF+3}], v{GF_}
    ds_read_b128 v[{AF+4}:{AF+7}], v{GF_} offset:64
    s_waitcnt lgkmcnt(0)
    """)
    gemv_wide(192, 2)
    for g in range(2):
        for k in range(4): a(f"v_and_or_b32 v{24+4*g+k}, v{DD+4*(4*g+k)}, v{MS_}, s{18+k}")
    hstore("L_sp2", [f"buffer_store_dwordx4 v[{24+4*g}:{27+4*g}], v{PO_}, s[48:51], s23 offen offset:{256*g}" for g in range(2)])
    stamp(2)
    a("L_red2:")
    a(f"""
    s_add_u32 s12, s22, {WS_PART2}
    s_add_u32 s13, s12, 0x20000
    v_mov_b32 v20, s18
    v_mov_b32 v21, s19
    v_mov_b32 v22, s20
    v_mov_b32 v23, s21
    v_bfe_u32 v{TA}, v0, 2, 2
    v_and_b32 v{TB}, 3, v0
    v_lshlrev_b32 v{TA}, 5, v{TA}
    v_lshl_add_u32 v{TA}, v{TB}, 1, v{TA}
    """)
    srd(52, P_OUT, 4096)
    if dry: a("s_cmp_eq_u32 s0, 1\ns_cselect_b32 s54, 0, s54")
    poll("L_poll_p2", [f"buffer_load_dwordx4 v[16:19], v{TC}, s[48:51], s12 offen sc1", "s_mov_b32 exec_hi, 0xffff",
                       f"buffer_load_dwordx4 v[20:23], v{TC}, s[48:51], s13 offen sc1"],
         tags_bytes([16, 20], 32), post="s_mov_b64 exec, -1")
    stamp(13)
    colsum(2)
    resid(RGB)
    a(f"""
    v_cvt_pk_bf16_f32 v16, v16, v16
    s_mov_b64 exec, 0xffff
    buffer_store_short v16, v{TA}, s[52:55], s71 offen
    s_or_b32 s12, s2, s7
    s_cbranch_scc1 L_hend
    s_mov_b64 exec, 1
    v_mov_b32 v17, {TAG}
    v_mov_b32 v18, 0
    buffer_store_dword v17, v18, s[48:51], 0 offen sc1
    """)
    if dbg:
        a("s_cmp_eq_u32 s0, 1\ns_cbranch_scc1 L_hend\ns_memrealtime s[94:95]\ns_waitcnt lgkmcnt(0)\ns_sub_u32 s94, s94, s60\ns_sub_u32 s96, s96, s60\ns_sub_u32 s98, s98, s60")
        srd(8, 40, 256)
        for i, r in enumerate([98, 91, 92, 93, 96, 94]):
            a(f"v_mov_b32 v17, s{r}\nbuffer_store_dword v17, v18, s[8:11], 0 offen offset:{4*i}")
    a("L_hend:")
    if dry: a("s_cmp_eq_u32 s0, 1\ns_cbranch_scc1 L_afterdry")
    stamp(14)
    dump_stamps(15)
    a("L_end:")
    a("s_endpgm")
    a('.section .rodata,"a"')
    a(".p2align 6")
    a(f".amdhsa_kernel {NAME}_kernel")
    a("""
    .amdhsa_next_free_vgpr 256
    .amdhsa_next_free_sgpr 102
    .amdhsa_accum_offset 256
    .amdhsa_group_segment_fixed_size 0
    .amdhsa_kernarg_size 112
    .amdhsa_user_sgpr_count 2
    .amdhsa_user_sgpr_kernarg_segment_ptr 1
    .amdhsa_system_sgpr_workgroup_id_x 1
    .amdhsa_float_denorm_mode_32 3
    .end_amdhsa_kernel
    """)
    return out + a.text()

if __name__ == "__main__":
    kw = eval("dict(" + (sys.argv[2] if len(sys.argv) > 2 else "") + ")")
    open(sys.argv[1], "w").write(gen(**kw))
```

```python
import sys
from asmlib import Asm

NAME = "adaLN_cond__mha_block_cached__geglu_ffn__decode"
WS_MOD = 0x1000
WS_Q = 0x10000
WS_STATS = 0x20000
WS_X1 = 0x28000
WS_PART2 = 0x40000
WS_PART1 = 0x80000
WS_FAST = 0
WS_XCC = 0x30000
WS_TM, TMSTR = 0x280000, 4352
WS_DBG, WS_SIZE = 0x200000, 0x400000
L_W, L_ACT, L_Q, L_OP, L_GB, L_FL = 0, 0x20000, 0x21200, 0x21400, 0x21A00, 0x21E00
ACT_STRIDE, OP_STRIDE, GB_STRIDE = 1088, 320, 192
LDS_BYTES = 0x22200
F_FAC, F_KD, F_WF, F_WQ, F_WQD, F_H, F_G1, F_G2, F_ST, F_TT = 0, 64, 80, 96, 112, 128, 144, 160, 192, 256
NFFN = 28
SPIN_MAX = 400000
P_X, P_K, P_V, P_WQ, P_WO, P_WG, P_WU, P_WD, P_C, P_WM, P_OUT, P_WS = 16, 18, 20, 22, 24, 28, 30, 32, 34, 36, 38, 42
TAG = "s45"
LOG2E, SCALE, HIMASK = "s64", "s65", "s66"

def gen(D=5, A=8, E=4, P=48, PL=32, DP=5, D2=7, NE=1, thr=2, thrA=2, thrF=3, thrQ=4, thrD=3, slp=16, diag=False,
        levels=((4,-50),(5,30),(6,100),(7,None)), f1=0.147, f2=0.955, f3=0.985, ms=(4, 8, 12), lagK=2, lagV=1, lag3=1, early=30, D0=None, N0=0, gq=40, gm=20,
        kctl=True, fast=True, fpol='', touch=10, touch1=False, dry=True, lastctl=True, tlb=True, dbg=False, pad=0, l2warm=True, skip=''):
    a = Asm()
    def stamp(k):
        if diag: a(f"s_memrealtime s[{72+2*k}:{73+2*k}]")
    def srd(reg, ptr, nbytes):
        a(f"s_mov_b32 s{reg}, s{ptr}\ns_mov_b32 s{reg+1}, s{ptr+1}\ns_mov_b32 s{reg+2}, {nbytes}\ns_mov_b32 s{reg+3}, 0x20000")
    def dump_stamps(n):
        if not diag: return
        a("s_waitcnt lgkmcnt(0)")
        a("s_mov_b64 exec, 1")
        a("s_lshl_b32 s46, s2, 3\ns_add_u32 s46, s46, s3\ns_lshl_b32 s46, s46, 6")
        a(f"s_add_u32 s46, s46, {WS_DBG}")
        a("v_mov_b32 v1, 0")
        for k in range(n):
            a(f"v_mov_b32 v2, s{72+2*k}")
            a(f"buffer_store_dword v2, v1, s[48:51], s46 offen offset:{4*k}")
    FULL = "row_mask:0xf bank_mask:0xf"
    def allreduce(op, rs, tmps, rows_only=False, steps=("quad_perm:[1,0,3,2]", "quad_perm:[2,3,0,1]", "row_half_mirror", "row_mirror")):
        for st in steps:
            for r in rs: a(f"{op}_dpp v{r}, v{r}, v{r} {st} {FULL}")
        if rows_only: return
        for sw in ("v_permlane16_swap_b32", "v_permlane32_swap_b32"):
            for r, t in zip(rs, tmps): a(f"v_mov_b32 v{t}, v{r}")
            for r, t in zip(rs, tmps): a(f"{sw} v{r}, v{t}")
            for r, t in zip(rs, tmps): a(f"{op} v{r}, v{r}, v{t}")
    def bf16r(d, s):
        a(f"v_cvt_pk_bf16_f32 v{d}, 0, v{s}")
    def bf16r2(lo, hi, t):
        a(f"v_cvt_pk_bf16_f32 v{t}, v{lo}, v{hi}\nv_lshlrev_b32 v{lo}, 16, v{t}\nv_and_b32 v{hi}, {HIMASK}, v{t}")
    def unpack(lo, hi, s):
        a(f"v_lshlrev_b32 v{lo}, 16, v{s}\nv_and_b32 v{hi}, {HIMASK}, v{s}")
    def spin_begin(): a("s_mov_b32 s70, 0")
    def spin_check(): a(f"s_add_u32 s70, s70, 1\ns_cmp_gt_u32 s70, {SPIN_MAX}\ns_cbranch_scc1 L_end")
    MKTAG = "s_mul_i32 s45, s44, 1664525\ns_add_u32 s45, s45, 1013904223"
    BAR0 = "s_waitcnt lgkmcnt(0)\ns_barrier\ns_load_dword s44, s[42:43], 0"
    def set_flag(row, widx, va, vb):
        a(f"s_lshl_b32 s47, {widx}, 2\ns_add_u32 s47, s47, {L_FL+row}\nv_mov_b32 v{va}, s47\nv_mov_b32 v{vb}, 1\nds_write_b32 v{va}, v{vb}")
    def wait_flags(lbl, row, t, sleep):
        spin_begin()
        a(f"v_mov_b32 v{t+4}, {L_FL+row}")
        a(f"{lbl}:")
        spin_check()
        if sleep: a(f"s_sleep {sleep}")
        a(f"""
        ds_read_b128 v[{t}:{t+3}], v{t+4}
        s_waitcnt lgkmcnt(0)
        v_and_b32 v{t}, v{t}, v{t+1}
        v_and_b32 v{t+2}, v{t+2}, v{t+3}
        v_and_b32 v{t}, v{t}, v{t+2}
        v_readfirstlane_b32 s47, v{t}
        s_cmp_eq_u32 s47, 1
        s_cbranch_scc0 {lbl}
        """)

    hdr = open("cdna_kernels/" + NAME + ".s.ref").read().split("; Override launch")[0]
    out = hdr + f"; @launch grid=(256,1,1) block=(512,1,1) lds={LDS_BYTES}\n"
    a('.amdgcn_target "amdgcn-amd-amdhsa--gfx950"')
    a(".text")
    a(f".globl {NAME}_kernel")
    a(".p2align 8")
    a(f".type {NAME}_kernel,@function")
    a(f"{NAME}_kernel:")
    a("""
    s_cmp_ge_u32 s2, 256
    s_cbranch_scc1 L_end
    s_load_dwordx16 s[16:31], s[0:1], 0
    s_load_dwordx8 s[32:39], s[0:1], 64
    s_load_dwordx4 s[40:43], s[0:1], 96
    """)
    if diag:
        for k in range(1, 15): a(f"s_mov_b32 s{72+2*k}, 0")
    stamp(0)
    a("""
    v_lshrrev_b32 v1, 6, v0
    v_and_b32 v0, 63, v0
    v_readfirstlane_b32 s3, v1
    v_lshlrev_b32 v1, 4, v0
    s_lshr_b32 s12, s2, 3
    s_and_b32 s4, s12, 3
    s_lshl_b32 s4, s4, 3
    s_and_b32 s13, s2, 7
    s_add_u32 s4, s4, s13
    s_bfe_u32 s5, s12, 0x20002
    s_lshr_b32 s6, s12, 4
    s_mov_b32 s64, 0x3fb8aa3b
    s_mov_b32 s65, 0x3db504f3
    s_mov_b32 s66, 0xffff0000
    s_lshl_b32 s15, s5, 5
    s_add_u32 s15, s15, s4
    s_cmp_ge_u32 s3, 4
    s_cbranch_scc1 L_helper
    """)

    Q, MK, BB, ACC, PT, XX, YY, T0, T1, SC, RING = 2, 6, 10, 14, 18, 34, 42, 46, 47, 48, 64
    a("""
    s_lshl_b32 s13, s15, 21
    s_lshl_b32 s14, s6, 20
    s_add_u32 s13, s13, s14
    s_lshl_b32 s14, s3, 12
    s_add_u32 s13, s13, s14
    s_mov_b32 s12, s13
    s_lshl_b32 s14, s3, 15
    s_waitcnt lgkmcnt(0)
    s_mov_b32 s0, 0
    """)
    srd(8, P_K, 0x10000000)
    st = {"issued": 0, "landed": 0}
    PT_ = P + PL
    assert P % 4 == 0 and PL <= 32
    def ldsoff(n): return ((n - P + 16) % 32) * 1024
    def slot(n):
        if n < P: return RING + 4 * n
        if n < PT_: return RING + 4 * (16 + n - P)
        return RING + 4 * ((n - PT_) % 16)
    def issue(n):
        if P <= n < PT_:
            if n & 3 == 0: a(f"s_add_u32 m0, s14, {ldsoff(n)}")
            a(f"buffer_load_dwordx4 v1, s[8:11], s12 offen offset:{(n&3)*1024} nt lds")
        else:
            r = slot(n)
            a(f"buffer_load_dwordx4 v[{r}:{r+3}], v1, s[8:11], s12 offen offset:{(n&3)*1024} nt")
        if n & 3 == 3: a("s_add_u32 s12, s12, 0x4000")
        st["issued"] = n + 1
    def throttle(d=None):
        d = d or D
        a(f"s_waitcnt vmcnt({d-1})")
        st["landed"] = max(st["landed"], st["issued"] - (d - 1))
    def ensure(n):
        if n >= st["landed"]:
            k = st["issued"] - 1 - n
            a(f"s_waitcnt vmcnt({k})"); st["landed"] = n + 1
    for n in range(PT_):
        if n == P + 16: wait_flags("L_wqd", F_WQD, PT, 0)
        dd_ = D0 if (D0 and n < N0) else DP
        if n >= dd_: throttle(dd_)
        issue(n)
        if n == DP - 1:
            srd(48, P_WS, WS_SIZE)
            a(f"""
            s_mov_b32 s60, 0xaaaaaaaa
            s_mov_b32 s61, 0xaaaaaaaa
            s_mov_b32 s62, 0xcccccccc
            s_mov_b32 s63, 0xcccccccc
            v_and_b32 v{T0}, 15, v0
            v_and_b32 v{T1}, 1, v0
            v_lshlrev_b32 v{T1}, 4, v{T1}
            v_mov_b32 v{PT}, 0xffff
            v_lshlrev_b32 v{T1}, v{T1}, v{PT}
            v_lshrrev_b32 v{PT}, 1, v{T0}
            """)
            for t in range(4):
                a(f"v_cmp_eq_u32 vcc, {t}, v{PT}\nv_cndmask_b32 v{MK+t}, 0, v{T1}, vcc")
            for t in range(4): a(f"v_mov_b32 v{ACC+t}, 0")
            a(f"v_lshlrev_b32 v{T0}, 4, v{T0}\nv_add_u32 v{T0}, {L_Q}, v{T0}")
            a("s_barrier")
        if n == gm: set_flag(F_G1, "s3", PT, PT+1)
        if n == gq: set_flag(F_G2, "s3", PT, PT+1)
    stamp(1)
    a("s_barrier")
    stamp(2)
    a(f"ds_read_b128 v[{Q}:{Q+3}], v{T0}\nv_add_u32 v{T0}, s14, v1\ns_waitcnt lgkmcnt(0)")
    def kdots(n):
        r = slot(n); p = PT + n % 16
        a(f"v_dot2_f32_bf16 v{p}, v{r}, v{Q}, 0")
        for i in range(1, 4): a(f"v_dot2_f32_bf16 v{p}, v{r+i}, v{Q+i}, v{p}")
    def kreduce(dst):
        for j in range(8): a(f"v_add_f32_dpp v{XX+j}, v{PT+j}, v{PT+j} row_ror:8 row_mask:0xf bank_mask:0x3")
        for j in range(8): a(f"v_add_f32_dpp v{XX+j}, v{PT+8+j}, v{PT+8+j} row_ror:8 row_mask:0xf bank_mask:0xc")
        for j in range(4): a(f"v_add_f32_dpp v{YY+j}, v{XX+j}, v{XX+j} row_half_mirror row_mask:0xf bank_mask:0x5")
        for j in range(4): a(f"v_add_f32_dpp v{YY+j}, v{XX+4+j}, v{XX+4+j} row_half_mirror row_mask:0xf bank_mask:0xa")
        for j in range(2):
            a(f"v_cndmask_b32 v{XX+2*j}, v{YY+j+2}, v{YY+j}, s[62:63]")
            a(f"v_cndmask_b32 v{XX+2*j+1}, v{YY+j}, v{YY+j+2}, s[62:63]")
        for j in range(2):
            a(f"v_add_f32_dpp v{XX+4+j}, v{XX+2*j}, v{XX+2*j+1} quad_perm:[2,3,0,1] {FULL}")
        a(f"v_cndmask_b32 v{XX}, v{XX+5}, v{XX+4}, s[60:61]")
        a(f"v_cndmask_b32 v{XX+1}, v{XX+4}, v{XX+5}, s[60:61]")
        a(f"v_add_f32_dpp v{XX+2}, v{XX}, v{XX+1} quad_perm:[1,0,3,2] {FULL}")
        bf16r(XX+2, XX+2)
        a(f"v_mul_f32 v{XX+2}, {SCALE}, v{XX+2}")
        bf16r(dst, XX+2)
    tgt = -(-(PT_ + 16 - A + 4) // 16) * 16
    NPEEL = tgt // 16
    KL = 16 - NPEEL
    cons = {"n": 0}
    def consume_k_upto(m):
        while cons["n"] < m:
            n = cons["n"]
            if n == P:
                a("s_waitcnt lgkmcnt(0)")
                set_flag(F_WF, "s3", T0, T1)
            ensure(n); kdots(n); cons["n"] += 1
            m2 = n - 16 + P
            if n >= 16 and P <= m2 < PT_:
                ensure(m2)
                r = slot(m2)
                a(f"ds_read_b128 v[{r}:{r+3}], v{T0} offset:{ldsoff(m2)}")
            if n % 16 == 15: kreduce(SC + n // 16 + KL)
    nsteps = tgt + A - PT_
    for s in range(nsteps):
        n = PT_ + s
        prev = s if s < 16 else n - 16
        if s <= 16: want = 1 + -(-PT_ * s // 16)
        else: want = PT_ + 1 + -(-(tgt - PT_ - 1) * (s - 16) // (nsteps - 16))
        want = min(want, max(st["landed"], PT_))
        consume_k_upto(min(max(want, prev + 1), tgt))
        throttle(); issue(n)
    a("s_memrealtime s[52:53]")
    consume_k_upto(tgt)
    FA, FAD, TTA, TTV = 128, 132, 133, 134
    LV = [x[0] for x in levels]
    def ln_(dd): return str(dd).replace(".", "p")
    def dstep(dd, j):
        import math
        return int(math.floor((j + 1) * dd) - math.floor(j * dd))
    a(f"""
    s_mov_b32 s14, 0
    s_mov_b32 s56, 0
    s_lshl_b32 s47, s3, 4
    s_add_u32 s47, s47, {L_FL+F_FAC}
    v_mov_b32 v{FAD}, s47
    s_lshl_b32 s47, s3, 2
    s_add_u32 s47, s47, {L_FL+F_TT}
    v_mov_b32 v{TTA}, s47
    v_mov_b32 v{FA+3}, 0
    """)
    def record():
        a(f"""
        s_waitcnt lgkmcnt(0)
        s_or_b32 s53, s52, 1
        v_mov_b32 v{TTV}, s53
        ds_write_b32 v{TTA}, v{TTV}
        v_add_u32 v{TTA}, 16, v{TTA}
        """)
    def dispatch(pre):
        a(f"""
        v_readfirstlane_b32 s55, v{FA+3}
        v_readfirstlane_b32 s54, v{FA+2}
        s_cmp_eq_u32 s55, 0
        s_cbranch_scc1 {pre}{ln_(D)}
        s_mul_i32 s55, s55, s56
        s_lshr_b32 s55, s55, 4
        s_sub_u32 s52, s52, s54
        s_sub_u32 s52, s52, s55
        """)
        for dd, th in levels:
            if th is None: a(f"s_branch {pre}{ln_(dd)}")
            else: a(f"s_cmp_lt_i32 s52, {th}\ns_cbranch_scc1 {pre}{ln_(dd)}")
    a("L_kdisp:")
    record()
    a(f"s_cmp_ge_u32 s14, {KL}\ns_cbranch_scc1 L_kdone")
    if kctl: dispatch("L_k")
    for dd in (LV if kctl else [D]):
        assert dd <= A
        a(f"L_k{ln_(dd)}:")
        a(f"ds_read_b128 v[{FA}:{FA+3}], v{FAD}")
        for j in range(16):
            n = tgt + j
            a(f"s_waitcnt vmcnt({dstep(dd, j)-1})")
            if j == 16 - A:
                a(f"s_cmp_eq_u32 s14, {KL-1}\ns_cselect_b32 s8, s{P_V}, s8\ns_cselect_b32 s9, s{P_V+1}, s9\ns_cselect_b32 s12, s13, s12")
            issue(n + A)
            if j == 15: a("s_memrealtime s[52:53]")
            kdots(n)
            if j == 7:
                for i in range(15): a(f"v_mov_b32 v{SC+i}, v{SC+i+1}")
        kreduce(SC + 15)
        a("s_add_u32 s14, s14, 1\ns_add_u32 s56, s56, 4\ns_branch L_kdisp")
    a("L_kdone:")
    stamp(3)
    ex = {"n": 256 + A}
    def extra():
        if ex["n"] < 256 + A + E:
            a(f"s_waitcnt vmcnt({D-1})"); issue(ex["n"]); ex["n"] += 1
    extra()
    M, Ls = PT, PT + 1
    a(f"v_max3_f32 v{M}, v{SC}, v{SC+1}, v{SC+2}")
    for i in range(3, 15, 2): a(f"v_max3_f32 v{M}, v{M}, v{SC+i}, v{SC+i+1}")
    a(f"v_max_f32 v{M}, v{M}, v{SC+15}")
    allreduce("v_max_f32", [M], [T0])
    a(f"v_mul_f32 v{T1}, {LOG2E}, v{M}")
    extra()
    for i in range(16): a(f"v_fma_f32 v{SC+i}, v{SC+i}, {LOG2E}, -v{T1}")
    for i in range(16): a(f"v_exp_f32 v{SC+i}, v{SC+i}")
    extra()
    a(f"v_add_f32 v{Ls}, v{SC}, v{SC+1}\nv_add_f32 v{Ls+1}, v{SC+2}, v{SC+3}")
    for i in range(4, 16, 2): a(f"v_add_f32 v{Ls}, v{Ls}, v{SC+i}\nv_add_f32 v{Ls+1}, v{Ls+1}, v{SC+i+1}")
    a(f"v_add_f32 v{Ls}, v{Ls}, v{Ls+1}")
    for i in range(16): a(f"v_cvt_pk_bf16_f32 v{SC+i}, v{SC+i}, v{SC+i}")
    extra()
    allreduce("v_add_f32", [Ls], [T0])
    a(f"ds_write_b64 v{FAD}, v[{M}:{Ls}] offset:{F_ST-F_FAC}")
    set_flag(F_KD, "s3", PT+5, PT+6)
    while ex["n"] < 256 + A + E: extra()
    a("s_memrealtime s[52:53]")
    AV = A + E
    assert AV <= 15
    a(f"""
    v_lshrrev_b32 v{PT}, 4, v0
    v_lshlrev_b32 v{PT}, 6, v{PT}
    v_and_b32 v{PT+1}, 15, v0
    v_lshl_add_u32 v{PT}, v{PT+1}, 1, v{PT}
    s_mul_i32 s46, s3, {OP_STRIDE}
    s_add_u32 s46, s46, {L_OP}
    v_add_u32 v{PT}, s46, v{PT}
    s_mov_b32 s14, 0
    s_add_u32 s56, s56, {E//4}
    s_waitcnt lgkmcnt(0)
    """)
    def vbody(dd, last, timed):
        assert dd <= AV
        a(f"ds_read_b128 v[{FA}:{FA+3}], v{FAD}")
        for j in range(16):
            n = 256 + j
            for t in range(4): a(f"v_and_b32_dpp v{BB+t}, v{SC}, v{MK+t} row_newbcast:{j} {FULL}")
            a(f"s_waitcnt vmcnt({dstep(dd, j)-1})")
            if j == 16 - AV and last:
                a("s_cmp_eq_u32 s14, 15\ns_cselect_b32 s10, 0, s10")
            issue(n + AV)
            r = slot(n)
            if j == 15 and timed: a("s_memrealtime s[52:53]")
            a(f"v_mfma_f32_16x16x32_bf16 v[{ACC}:{ACC+3}], v[{r}:{r+3}], v[{BB}:{BB+3}], v[{ACC}:{ACC+3}]")
        if lastctl: a("s_cmp_eq_u32 s14, 15\ns_cbranch_scc1 L_sepi")
        for i in range(15): a(f"v_mov_b32 v{SC+i}, v{SC+i+1}")
        a("s_add_u32 s14, s14, 1\ns_add_u32 s56, s56, 4")
    assert NE >= 1
    a("s_branch L_vd1")
    a("L_vdisp:")
    if lastctl:
        record()
    else:
        record()
        a(f"s_cmp_ge_u32 s14, {16-NE}\ns_cbranch_scc1 L_vlast")
    a("L_vd1:")
    dispatch("L_v")
    for dd in LV:
        a(f"L_v{ln_(dd)}:")
        vbody(dd, lastctl, True)
        a("s_branch L_vdisp")
    if not lastctl:
        a("L_vlast:")
        vbody(D2, True, False)
        a("s_cmp_lt_u32 s14, 16\ns_cbranch_scc1 L_vlast")
    a("L_sepi:")
    a("s_nop 7")
    stamp(4)
    spin_begin()
    a("L_facspin:")
    a(f"s_waitcnt lgkmcnt(0)\nv_readfirstlane_b32 s46, v{FA+1}\ns_cmp_eq_u32 s46, 1\ns_cbranch_scc1 L_facok")
    spin_check()
    a(f"ds_read_b128 v[{FA}:{FA+3}], v{FAD}\ns_branch L_facspin")
    a("L_facok:")
    for t in range(4): a(f"v_mul_f32 v{ACC+t}, v{ACC+t}, v{FA}")
    a(f"v_cvt_pk_bf16_f32 v{ACC}, v{ACC}, v{ACC+1}\nv_cvt_pk_bf16_f32 v{ACC+2}, v{ACC+2}, v{ACC+3}")
    a(f"""
    s_mov_b32 exec_lo, 0x00ff00ff
    s_mov_b32 exec_hi, 0x00ff00ff
    ds_write_b16 v{PT}, v{ACC}
    ds_write_b16_d16_hi v{PT}, v{ACC} offset:16
    ds_write_b16 v{PT}, v{ACC+2} offset:32
    ds_write_b16_d16_hi v{PT}, v{ACC+2} offset:48
    s_waitcnt lgkmcnt(0)
    """)
    if dry: a("s_cmp_eq_u32 s0, 1\ns_cbranch_scc1 L_tail0")
    a("s_barrier")
    stamp(5)
    dump_stamps(6)
    a("s_endpgm")

    a("L_helper:")
    TRB, DA, DB, DN, TA, TB, TC = 2, 4, 5, 6, 7, 8, 9
    a(f"""
    s_memrealtime s[60:61]
    s_sub_u32 s7, s3, 4
    """)
    def lane_consts():
        a(f"""
        v_lshrrev_b32 v{TA}, 4, v0
        v_bfe_u32 v{TB}, v0, 2, 2
        v_and_b32 v{TC}, 3, v0
        v_lshl_add_u32 v{TRB}, v{TA}, 3, v{TB}
        v_lshlrev_b32 v{TRB}, 8, v{TRB}
        v_lshl_add_u32 v{TRB}, v{TC}, 3, v{TRB}
        v_and_b32 v{TC}, 1, v{TA}
        v_lshl_add_u32 v{TB}, v{TC}, 2, v{TB}
        v_lshl_add_u32 v{TRB}, v{TB}, 5, v{TRB}
        s_lshl_b32 s12, s7, 15
        v_add_u32 v{TRB}, s12, v{TRB}
        v_and_b32 v{TB}, 15, v0
        v_lshlrev_b32 v{TC}, 1, v{TA}
        v_xor_b32 v{TB}, v{TB}, v{TC}
        v_lshlrev_b32 v{DN}, 4, v{TB}
        v_mov_b32 v{DA}, 0
        """)
    lane_consts()
    a(f"""
    s_lshr_b32 s69, s2, 3
    s_and_b32 s12, s2, 7
    s_mov_b32 s68, 4
    s_cmp_lt_u32 s69, {NFFN}
    s_cselect_b32 s68, 5, s68
    s_cmp_eq_u32 s12, 0
    s_cbranch_scc1 L_role
    s_mul_i32 s69, s69, 7
    s_add_u32 s69, s69, s12
    s_sub_u32 s69, s69, 1
    s_mov_b32 s68, 1
    s_cmp_lt_u32 s69, 16
    s_cbranch_scc1 L_role
    s_sub_u32 s69, s69, 16
    s_mov_b32 s68, 3
    s_cmp_lt_u32 s69, 64
    s_cbranch_scc1 L_role
    s_sub_u32 s69, s69, 48
    s_mov_b32 s68, 2
    s_cmp_lt_u32 s69, 48
    s_cbranch_scc1 L_role
    s_mov_b32 s68, 0
    L_role:
    """)
    a(f"""
    s_cmp_lg_u32 s7, 3
    s_cbranch_scc1 L_noinit
    s_and_b32 s12, s68, 1
    s_xor_b32 s12, s12, 1
    v_cmp_eq_u32 vcc, {F_WQD//16}, v0
    v_mov_b32 v17, s12
    v_cndmask_b32 v16, 0, v17, vcc
    v_mov_b32 v17, v16
    v_mov_b32 v18, v16
    v_mov_b32 v19, v16
    v_add_u32 v20, {L_FL}, v1
    ds_write_b128 v20, v[16:19]
    L_noinit:
    s_waitcnt lgkmcnt(0)
    s_mov_b32 s0, 0
    s_mov_b32 s71, 0
    s_mov_b32 s58, 0x0c0c0400
    s_mov_b32 s59, 0x04000c0c
    """)
    srd(48, P_WS, WS_SIZE)
    def dma_wide(nins, rs_log2, soff, infl, hooks={}):
        a(f"v_lshrrev_b32 v{TA}, 4, v0\nv_lshl_add_u32 v{DA}, v{TA}, {rs_log2}, v{DN}\nv_xor_b32 v{DB}, 0x80, v{DA}")
        a("s_lshl_b32 s14, s7, 15")
        for i in range(nins):
            a("s_mov_b32 m0, s14" if i == 0 else "s_add_u32 m0, m0, 0x400")
            if i: a(f"s_add_u32 {soff}, {soff}, {4 << rs_log2}")
            a(f"buffer_load_dwordx4 v{DB if (i >> 1) & 1 else DA}, s[8:11], {soff} offen nt lds")
            if i in hooks: hooks[i]()
            if i >= infl - 1: a(f"s_waitcnt vmcnt({infl-1})")
    def dma_mid(soff, ldsbase, infl, rs, hooks={}):
        a(f"""
        v_lshrrev_b32 v{DA}, 3, v0
        v_mul_u32_u24 v{DA}, {rs}, v{DA}
        v_bfe_u32 v{DB}, v0, 4, 1
        v_lshlrev_b32 v{DB}, 1, v{DB}
        v_and_b32 v{TA}, 7, v0
        v_xor_b32 v{DB}, v{DB}, v{TA}
        v_lshl_add_u32 v{DA}, v{DB}, 4, v{DA}
        v_xor_b32 v{DB}, 64, v{DA}
        """)
        for i in range(16):
            a(f"s_mov_b32 m0, {ldsbase}" if i == 0 else "s_add_u32 m0, m0, 0x400")
            if i: a(f"s_add_u32 {soff}, {soff}, {8*rs}")
            a(f"buffer_load_dwordx4 v{DB if i & 1 else DA}, s[8:11], {soff} offen nt lds")
            if i in hooks: hooks[i]()
            if i >= infl - 1: a(f"s_waitcnt vmcnt({infl-1})")
    def mid_bases():
        a(f"""
        v_lshrrev_b32 v{TB}, 4, v0
        v_bfe_u32 v{TC}, v0, 2, 2
        v_lshl_add_u32 v{TA}, v{TB}, 3, v{TC}
        v_lshlrev_b32 v{TA}, 7, v{TA}
        v_and_b32 v{TB}, 1, v{TB}
        v_lshrrev_b32 v{TC}, 1, v{TC}
        v_lshl_add_u32 v{TB}, v{TB}, 1, v{TC}
        v_xor_b32 v{TB}, s7, v{TB}
        v_lshl_add_u32 v{TA}, v{TB}, 5, v{TA}
        v_and_b32 v{TB}, 3, v0
        v_lshl_add_u32 v{TA}, v{TB}, 3, v{TA}
        v_add_u32 v{TB}, 0x10000, v{TA}
        """)
    def tr_mid(dst, off):
        for s in range(16):
            r = dst + 4 * s
            ar = TA if s < 8 else TB
            o = off + ((s >> 2) & 1) * 0x8000 + (s & 3) * 4096
            a(f"ds_read_b64_tr_b16 v[{r}:{r+1}], v{ar} offset:{o}")
            a(f"ds_read_b64_tr_b16 v[{r+2}:{r+3}], v{ar} offset:{o+512}")
        a("s_waitcnt lgkmcnt(0)")
    def tr_wide(dst, nk):
        for t in range(8):
            ar = TA if t & 1 else TB
            a(f"v_xor_b32 v{ar}, {t << 5}, v{TRB}")
            for s in range(nk):
                r = dst + (t * nk + s) * 4
                a(f"ds_read_b64_tr_b16 v[{r}:{r+1}], v{ar} offset:{s*8192}")
                a(f"ds_read_b64_tr_b16 v[{r+2}:{r+3}], v{ar} offset:{s*8192+1024}")
        a("s_waitcnt lgkmcnt(0)")
    def act_addr(dst, rowsel, tmp):
        a(f"v_and_b32 v{dst}, 3, v0" if rowsel == "lo" else f"v_bfe_u32 v{dst}, v0, 2, 2")
        a(f"v_mul_u32_u24 v{dst}, {ACT_STRIDE}, v{dst}\nv_lshrrev_b32 v{tmp}, 4, v0\nv_lshl_add_u32 v{dst}, v{tmp}, 4, v{dst}\nv_add_u32 v{dst}, {L_ACT}, v{dst}")
    def poll(lbl, loads, tags, sleep=0, pre="", post=""):
        spin_begin()
        if sleep: a(f"s_branch {lbl}_go")
        a(f"{lbl}:")
        spin_check()
        if sleep: a(f"s_sleep {sleep}\n{lbl}_go:")
        a(pre)
        for l in loads: a(l)
        a(post)
        a("s_waitcnt vmcnt(0)")
        tags()
        a(f"s_cmp_eq_u64 vcc, exec\ns_cbranch_scc0 {lbl}")
    def tags_words(regs):
        def f():
            a(f"v_cmp_eq_u32 vcc, {TAG}, v{regs[0]}")
            for r in regs[1:]: a(f"v_cmp_eq_u32 s[56:57], {TAG}, v{r}\ns_and_b64 vcc, vcc, s[56:57]")
        return f
    def tags_xor(regs, t):
        def f():
            a(f"v_xor_b32 v{t}, {TAG}, v{regs[0]}")
            for r in regs[1:]: a(f"v_xor_b32 v{t+1}, {TAG}, v{r}\nv_or_b32 v{t}, v{t}, v{t+1}")
            a(f"v_cmp_eq_u32 vcc, 0, v{t}")
        return f
    def tags_bytes(quads, t):
        def f():
            for i, q in enumerate(quads):
                a(f"v_perm_b32 v{t+2*i}, v{q+1}, v{q}, s58\nv_perm_b32 v{t+2*i+1}, v{q+3}, v{q+2}, s59")
            for i, q in enumerate(quads): a(f"v_or_b32 v{t+2*i}, v{t+2*i}, v{t+2*i+1}")
            for i, q in enumerate(quads): a(f"v_xor_b32 v{t+2*i}, {TAG}, v{t+2*i}")
            n = len(quads)
            if n == 4: a(f"v_or3_b32 v{t}, v{t}, v{t+2}, v{t+4}\nv_or_b32 v{t}, v{t}, v{t+6}")
            else: a(f"v_or_b32 v{t}, v{t}, v{t+2}")
            a(f"v_cmp_eq_u32 vcc, 0, v{t}")
        return f
    def pk(op, d, x, y, mods=""):
        yy = y if isinstance(y, str) else f"v[{y}:{y+1}]"
        a(f"v_pk_{op}_f32 v[{d}:{d+1}], v[{x}:{x+1}], {yy} {mods}")
    NEG = "neg_lo:[0,1] neg_hi:[0,1]"
    def rnd8(x0):
        for k in range(8): bf16r(x0 + k, x0 + k)
    def ln_norm(x0, t0):
        a(f"v_readfirstlane_b32 s46, v{x0}")
        for k in range(4): pk("add", t0+4+2*k, x0+2*k, "s[46:47]", "op_sel_hi:[1,0] " + NEG)
        pk("mul", t0+2, t0+4, t0+4)
        pk("add", t0, t0+4, t0+6)
        a(f"v_pk_fma_f32 v[{t0+2}:{t0+3}], v[{t0+6}:{t0+7}], v[{t0+6}:{t0+7}], v[{t0+2}:{t0+3}]")
        pk("add", t0+4, t0+8, t0+10)
        a(f"v_pk_fma_f32 v[{t0+2}:{t0+3}], v[{t0+8}:{t0+9}], v[{t0+8}:{t0+9}], v[{t0+2}:{t0+3}]")
        pk("add", t0, t0, t0+4)
        a(f"v_pk_fma_f32 v[{t0+2}:{t0+3}], v[{t0+10}:{t0+11}], v[{t0+10}:{t0+11}], v[{t0+2}:{t0+3}]")
        m, q = t0, t0 + 2
        a(f"v_add_f32 v{m}, v{t0}, v{t0+1}\nv_add_f32 v{q}, v{t0+2}, v{t0+3}")
        allreduce("v_add_f32", [m, q], [], rows_only=True)
        for st_ in ("row_bcast:15 row_mask:0xa bank_mask:0xf", "row_bcast:31 row_mask:0xc bank_mask:0xf"):
            for r in (m, q): a(f"v_add_f32_dpp v{r}, v{r}, v{r} {st_}")
        a(f"""
        v_mul_f32 v{m}, 0x3b000000, v{m}
        v_mul_f32 v{q}, 0x3b000000, v{q}
        v_fma_f32 v{q}, -v{m}, v{m}, v{q}
        v_add_f32 v{m}, s46, v{m}
        v_max_f32 v{q}, 0, v{q}
        """)
        bf16r(m, m); bf16r(q, q)
        a(f"v_readlane_b32 s56, v{m}, 63\nv_add_f32 v{q}, 0x3727c5ac, v{q}")
        bf16r(q, q)
        a(f"v_sqrt_f32 v{q}, v{q}")
        for k in range(2): pk("add", x0+2*k, x0+2*k, "s[56:57]", "op_sel_hi:[1,0] " + NEG)
        bf16r(q, q)
        for k in range(2, 4): pk("add", x0+2*k, x0+2*k, "s[56:57]", "op_sel_hi:[1,0] " + NEG)
        a(f"v_rcp_f32 v{q}, v{q}")
        for k in range(3): bf16r(x0 + k, x0 + k)
        a(f"v_readlane_b32 s46, v{q}, 63")
        for k in range(3, 8): bf16r(x0 + k, x0 + k)
        for k in range(4): pk("mul", x0+2*k, x0+2*k, "s[46:47]", "op_sel_hi:[1,0]")
        rnd8(x0)
    def ln_affine(x0, sc8, sh8, t):
        for k in range(4): pk("mul", x0+2*k, x0+2*k, sc8+2*k)
        rnd8(x0)
        for k in range(4): pk("add", x0+2*k, x0+2*k, sh8+2*k)
        for k in range(4): a(f"v_cvt_pk_bf16_f32 v{t+k}, v{x0+2*k}, v{x0+2*k+1}")
    X8, ST, SA8, CA8, BW, DT = 24, 32, 40, 48, 192, 56
    def gemv64(tagn, kind, infl, first):
        isq = kind == "q"
        srd(52, P_X if isq else P_C, 4096)
        a(f"""
        v_lshlrev_b32 v10, 3, v0
        s_lshl_b32 s12, s7, 10
        buffer_load_dwordx2 v[12:13], v10, s[52:55], s12 offen
        buffer_load_dwordx2 v[14:15], v10, s[52:55], s12 offen offset:512
        """)
        rs = 8192 if isq else 6144
        srd(8, P_WQ if isq else P_WM, 0 if ({"q": "q", "A": "A", "a": "a"}[kind] in skip) else 512 * rs)
        a(f"s_mul_i32 s13, s7, {128*rs}\ns_lshl_b32 s12, s69, 7\ns_add_u32 s13, s13, s12\ns_lshl_b32 s14, s7, 15")
        dma_mid("s13", "s14", infl, rs, hooks=({min(infl, 16) - 1: lambda: a(BAR0)} if first else {}))
        a("s_waitcnt vmcnt(16)")
        if kind == "A": stamp(1)
        for k in range(4): unpack(X8 + 2*k, X8 + 2*k + 1, 12 + k)
        a(f"s_mul_i32 s12, s7, {ACT_STRIDE}\ns_add_u32 s12, s12, {L_ACT}\nv_add_u32 v10, s12, v10")
        if isq:
            ln_norm(X8, ST)
        else:
            for k in range(8): a(f"v_mul_f32 v{ST+k}, {LOG2E}, v{X8+k}")
            for k in range(8): a(f"v_exp_f32 v{ST+k}, -v{ST+k}")
            for k in range(8): a(f"v_add_f32 v{ST+k}, 1.0, v{ST+k}")
            for k in range(8): a(f"v_rcp_f32 v{ST+k}, v{ST+k}")
            for k in range(8): a(f"v_mul_f32 v{X8+k}, v{X8+k}, v{ST+k}")
            for k in range(4): a(f"v_cvt_pk_bf16_f32 v{16+k}, v{X8+2*k}, v{X8+2*k+1}")
            a("ds_write_b64 v10, v[16:17]\nds_write_b64 v10, v[18:19] offset:512")
        mid_bases()
        a("s_waitcnt vmcnt(0)")
        set_flag(F_WQ, "s7", 20, 21)
        wait_flags(f"L_wq{tagn}", F_WQ, 16, 0)
        if first: a(MKTAG)
        stamp(4 if isq else 2) if first else None
        tr_mid(BW, 0)
        if first: set_flag(F_WQD, "s7", 16, 17)
        act_addr(TC, "lo", TB)
        a(f"s_lshl_b32 s67, s69, 10\ns_lshl_b32 s12, s7, 8\ns_add_u32 s67, s67, s12\ns_add_u32 s67, s67, {WS_Q if isq else WS_MOD}")
        if isq:
            a(f"""
            v_lshrrev_b32 v{TA}, 2, v0
            v_lshlrev_b32 v{TA}, 8, v{TA}
            v_and_b32 v{TB}, 3, v0
            v_lshl_add_u32 v{TA}, v{TB}, 4, v{TA}
            s_lshl_b32 s12, s7, 6
            s_add_u32 s12, s12, {WS_MOD}
            s_add_u32 s13, s12, 0x1000
            s_add_u32 s14, s12, 0x2000
            s_add_u32 s46, s12, 0x3000
            """)
            if gm: wait_flags("L_g1", F_G1, 16, 4)
            G0 = 128
            poll("L_poll_mod", [f"buffer_load_dwordx4 v[{G0+4*i}:{G0+4*i+3}], v{TA}, s[48:51], {sr} offen sc1" for i, sr in enumerate(["s12", "s13", "s14", "s46"])],
                 tags_xor([G0 + 1 + 2*k for k in range(8)], 16), sleep=slp)
            stamp(5)
            for k in range(4): unpack(SA8 + 2*k, SA8 + 2*k + 1, G0 + 2*k)
            for k in range(4): unpack(CA8 + 2*k, CA8 + 2*k + 1, G0 + 8 + 2*k)
            for k in range(8): a(f"v_add_f32 v{CA8+k}, 1.0, v{CA8+k}")
            rnd8(CA8)
            ln_affine(X8, CA8, SA8, 16)
            a("ds_write_b64 v10, v[16:17]\nds_write_b64 v10, v[18:19] offset:512")
            set_flag(F_H, "s7", 20, 21)
            wait_flags("L_h", F_H, 16, 0)
        for hh in range(2):
            for s in range(8): a(f"ds_read_b128 v[{16+4*s}:{19+4*s}], v{TC} offset:{(8*hh+s)*64}")
            for s in range(8):
                a(f"s_waitcnt lgkmcnt({7-s})")
                k = 8*hh + s
                a(f"v_mfma_f32_16x16x32_bf16 v[{DT}:{DT+3}], v[{BW+4*k}:{BW+4*k+3}], v[{16+4*s}:{19+4*s}], " + ("0" if k == 0 else f"v[{DT}:{DT+3}]"))
        a(f"""
        v_and_b32 v{TC}, 3, v0
        v_lshrrev_b32 v{TA}, 4, v0
        v_lshlrev_b32 v{TA}, 4, v{TA}
        v_lshl_add_u32 v{TA}, v{TC}, 6, v{TA}
        v_mov_b32 v{DT+5}, {TAG}
        v_mov_b32 v{DT+7}, {TAG}
        v_cvt_pk_bf16_f32 v{DT+4}, v{DT}, v{DT+1}
        v_cvt_pk_bf16_f32 v{DT+6}, v{DT+2}, v{DT+3}
        s_mov_b32 exec_lo, 0x000f000f
        s_mov_b32 exec_hi, 0x000f000f
        buffer_store_dwordx4 v[{DT+4}:{DT+7}], v{TA}, s[48:51], s67 offen sc1
        s_mov_b64 exec, -1
        """)
        if first: stamp(13 if isq else 3)

    a("""
    s_cmp_eq_u32 s68, 3
    s_cbranch_scc1 L_qgemv
    s_cmp_eq_u32 s68, 5
    s_cbranch_scc1 L_down
    s_cmp_lg_u32 s68, 1
    s_cbranch_scc1 L_bar0
    """)
    gemv64(1, "A", 64, True)
    a("s_branch L_getq")
    a("L_qgemv:")
    gemv64(2, "q", thrQ, True)
    a("s_branch L_getq")
    a("L_down:")
    srd(8, P_WD, 0 if 'f' in skip else 1792 * 1024)
    a("s_lshl_b32 s13, s69, 16\ns_lshl_b32 s12, s7, 8\ns_add_u32 s13, s13, s12")
    dma_wide(16, 10, "s13", thrD, hooks={min(thrD, 16) - 1: lambda: a(BAR0)})
    a("s_waitcnt vmcnt(0)")
    tr_wide(192, 2)
    a(MKTAG)
    set_flag(F_WQD, "s7", 16, 17)
    a("s_branch L_getq")
    a("L_bar0:")
    if l2warm:
        a(f"""
        s_cmp_lg_u32 s7, 3
        s_cbranch_scc1 L_nowarm
        s_getpc_b64 s[12:13]
        L_pc:
        s_sub_u32 s12, s12, L_pc-{NAME}_kernel
        s_subb_u32 s13, s13, 0
        v_lshlrev_b32 v16, 7, v0
        s_mov_b32 s14, 0
        L_warm:
        v_cmp_gt_u32 vcc, L_end-{NAME}_kernel, v16
        s_and_saveexec_b64 s[46:47], vcc
        s_cbranch_execz L_warmd
        global_load_dword v17, v16, s[12:13]
        v_add_u32 v16, 0x2000, v16
        s_branch L_warm
        L_warmd:
        s_mov_b64 exec, -1
        L_nowarm:
        """)
    a(BAR0)
    a("s_waitcnt lgkmcnt(0)")
    a(MKTAG)
    a("L_getq:")
    def dryrun(n, cond):
        a(f"""
        s_cmp_lg_u32 s7, 1
        s_cbranch_scc1 L_nodry{n}
        {cond} s68, 4
        s_cbranch_scc1 L_nodry{n}
        s_waitcnt vmcnt(0)
        s_mov_b32 s0, 1
        s_mov_b32 s1, {TAG}
        s_mov_b32 {TAG}, 0
        s_mov_b32 s50, 0
        s_mov_b32 s44, 1
        v_mov_b32 v{PT}, {L_OP}
        s_branch L_facok
        L_afterdry{n}:
        s_mov_b32 s0, 0
        s_mov_b32 {TAG}, s1
        s_mov_b32 s50, {WS_SIZE}
        s_mov_b64 exec, -1
        s_waitcnt vmcnt(0) lgkmcnt(0)
        """)
        if n == 1: lane_consts()
        a(f"L_nodry{n}:")
    if dry: dryrun(1, "s_cmp_lt_u32")
    a("s_cmp_lg_u32 s7, 2\ns_cbranch_scc1 L_bar1")
    a(f"""
    v_bfe_u32 v{TA}, v0, 2, 3
    v_lshlrev_b32 v{TA}, 8, v{TA}
    v_and_b32 v{TB}, 3, v0
    v_lshl_add_u32 v{TA}, v{TB}, 4, v{TA}
    s_lshl_b32 s12, s4, 11
    s_lshl_b32 s13, s5, 6
    s_add_u32 s12, s12, s13
    s_add_u32 s12, s12, {WS_Q}
    v_and_b32 v{TB}, 31, v0
    v_lshlrev_b32 v{TB}, 3, v{TB}
    v_add_u32 v{TB}, {L_Q}, v{TB}
    """)
    if gq: wait_flags("L_g2", F_G2, 16, 4)
    poll("L_poll_q", [f"buffer_load_dwordx4 v[16:19], v{TA}, s[48:51], s12 offen sc1"], tags_words([17, 19]), sleep=slp)
    a(f"v_mov_b32 v17, v18\nds_write_b64 v{TB}, v[16:17]\ns_waitcnt lgkmcnt(0)")
    a("L_bar1:")
    a("s_barrier")
    if dbg: a("s_memrealtime s[98:99]")
    stamp(6)
    a(f"""
    s_getreg_b32 s62, hwreg(HW_REG_XCC_ID)
    s_cmp_lt_u32 s68, 4
    s_cbranch_scc1 L_noxcc
    s_cmp_lg_u32 s7, 1
    s_cbranch_scc1 L_noxcc
    v_mov_b32 v16, s62
    v_mov_b32 v17, {TAG}
    s_lshl_b32 s12, s69, 7
    s_add_u32 s12, s12, {WS_XCC}
    s_mov_b64 exec, 1
    buffer_store_dwordx2 v[16:17], v1, s[48:51], s12 offen sc1
    s_mov_b64 exec, -1
    L_noxcc:
    """)
    if tlb:
        a("s_cmp_lg_u32 s7, 3\ns_cbranch_scc1 L_notlb\ns_mov_b64 exec, 1")
        srd(8, P_V, 0x10000000)
        a("s_lshl_b32 s12, s15, 21\ns_lshl_b32 s13, s6, 20\ns_add_u32 s12, s12, s13\nbuffer_load_dword v16, v1, s[8:11], s12 offen nt")
        srd(8, P_OUT, 4096)
        a("buffer_load_dword v17, v1, s[8:11], 0 offen nt")
        a(f"s_mov_b32 s12, {WS_TM}\nbuffer_load_dword v18, v1, s[48:51], s12 offen offset:1024 nt")
        a("s_mov_b64 exec, -1\ns_waitcnt vmcnt(0)\nL_notlb:")
    def wait_row(lbl, g):
        spin_begin()
        a(f"v_mov_b32 v20, {L_FL+F_TT+16*g}")
        a(f"s_branch {lbl}_go\n{lbl}:")
        spin_check()
        a(f"""
        s_sleep 8
        {lbl}_go:
        ds_read_b128 v[16:19], v20
        s_waitcnt lgkmcnt(0)
        v_and_b32 v21, v16, v17
        v_and_b32 v22, v18, v19
        v_and_b32 v21, v21, v22
        v_readfirstlane_b32 s47, v21
        s_bitcmp1_b32 s47, 0
        s_cbranch_scc0 {lbl}
        """)
    def tm_publish(m, g):
        a(f"""
        s_lshr_b32 s12, s2, 5
        s_add_u32 s12, s12, s2
        s_lshr_b32 s14, s2, 3
        s_xor_b32 s12, s12, s14
        s_and_b32 s12, s12, 3
        s_lshr_b32 s14, s68, 2
        s_or_b32 s12, s12, s14
        s_or_b32 s12, s12, s7
        s_cbranch_scc1 L_tmp{m}
        """)
        wait_row(f"L_tr{m}", g)
        for k in range(4): a(f"v_subrev_u32 v{16+k}, s60, v{16+k}")
        a(f"""
        v_add3_u32 v16, v16, v17, v18
        v_add_u32 v16, v16, v19
        v_lshrrev_b32 v16, 2, v16
        v_add_u32 v16, s60, v16
        v_mov_b32 v17, {TAG}
        v_mov_b32 v18, s60
        v_mov_b32 v19, {TAG}
        s_lshr_b32 s12, s2, 5
        s_lshl_b32 s12, s12, 3
        s_and_b32 s14, s2, 7
        s_add_u32 s12, s12, s14
        s_mul_i32 s12, s12, {TMSTR}
        s_add_u32 s12, s12, {WS_TM + 128*m}
        s_mov_b64 exec, 1
        buffer_store_dwordx4 v[16:19], v1, s[48:51], s12 offen sc1
        s_mov_b64 exec, -1
        L_tmp{m}:
        """)
    import struct
    def fhex(v): return hex(struct.unpack("<I", struct.pack("<f", v))[0])
    def tm_gather(m, gate, p_m, mult):
        a(f"s_cmp_lg_u32 s7, 0\ns_cbranch_scc1 L_tmg{m}")
        wait_row(f"L_tg{m}", gate)
        a(f"""
        v_and_b32 v21, 7, v0
        v_lshrrev_b32 v20, 3, v0
        v_max_u32 v20, 1, v20
        v_cmp_eq_u32 vcc, 0, v21
        v_cndmask_b32 v20, 0, v20, vcc
        v_add_u32 v20, v20, v0
        v_mul_u32_u24 v20, {TMSTR}, v20
        s_mov_b32 s12, {WS_TM + 128*m}
        """)
        poll(f"L_poll_tm{m}", ["buffer_load_dwordx4 v[16:19], v20, s[48:51], s12 offen sc1"], tags_words([17, 19]), sleep=48)
        a("v_sub_u32 v18, v16, v18\nv_subrev_u32 v16, s60, v16")
        allreduce("v_add_u32", [16, 18], [17, 19])
        a("v_ashrrev_i32 v16, 6, v16\nv_lshrrev_b32 v18, 6, v18")
        if m > 1: a("v_subrev_u32 v18, s61, v16")
        a(f"""
        v_readfirstlane_b32 s61, v16
        {f"v_readfirstlane_b32 s{90+m}, v16" if dbg else ""}
        v_cvt_f32_u32 v18, v18
        v_mul_f32 v18, {fhex(mult)}, v18
        v_cvt_u32_f32 v17, v18
        v_mul_u32_u24 v18, {p_m}, v17
        v_lshrrev_b32 v18, 4, v18
        v_sub_u32 v16, v16, v18
        v_add_u32 v16, s60, v16
        s_cmp_ge_u32 s68, 4
        s_cselect_b32 s12, {early if m > 1 else 0}, 0
        v_subrev_u32 v16, s12, v16
        v_and_b32 v20, 3, v0
        v_lshlrev_b32 v20, 4, v20
        v_add_u32 v20, {L_FL+F_FAC+8}, v20
        ds_write_b64 v20, v[16:17]
        L_tmg{m}:
        """)
    wait_flags("L_wf", F_WF, 16, 4)
    srd(8, P_WO, 0 if 'w' in skip else 4096 * 1024)
    a("s_lshl_b32 s13, s4, 17\ns_lshl_b32 s12, s7, 8\ns_add_u32 s13, s13, s12")
    dma_wide(32, 10, "s13", thr, hooks={5: lambda: tm_publish(1, 0), 5 + 6*lagK: lambda: tm_gather(1, lagK, 0, 4*f1)})
    a("s_waitcnt vmcnt(0)")
    tr_wide(64, 4)
    a("s_cmp_lg_u32 s68, 2\ns_cbranch_scc1 L_noA2")
    gemv64(3, "a", thrA, False)
    a("L_noA2:")
    SB, TREG = [10, 11, 12, 13], [4, 5, 6, 14]
    RX, RGA, RGB = 2, 3, 15
    def ffn_cols(dst_tile, dst_sub):
        a(f"""
        v_lshrrev_b32 v{dst_tile}, 4, v0
        v_and_b32 v{dst_sub}, 3, v0
        v_lshl_add_u32 v{dst_tile}, v{dst_tile}, 2, v{dst_sub}
        v_bfe_u32 v{dst_sub}, v0, 2, 2
        """)
    a("s_cmp_lt_u32 s68, 4\ns_cbranch_scc1 L_nored1\ns_cmp_lg_u32 s68, 5\ns_cbranch_scc1 L_noffn1")
    srd(8, P_WG, 0 if 'f' in skip else 512 * 3584)
    a(f"s_lshl_b32 s13, s69, 7\ns_mul_i32 s12, s7, {128*3584}\ns_add_u32 s46, s13, s12\ns_mov_b32 s13, s46\ns_lshl_b32 s14, s7, 15")
    dma_mid("s13", "s14", thrF, 3584)
    srd(8, P_WU, 0 if 'f' in skip else 512 * 3584)
    a("s_mov_b32 s13, s46\ns_add_u32 s14, s14, 0x4000")
    dma_mid("s13", "s14", thrF, 3584)
    a("L_noffn1:")
    a("L_nored1:")
    if dry: dryrun(2, "s_cmp_ge_u32")
    stamp(7)
    tm_publish(2, KL)
    a("s_cmp_lg_u32 s7, 0\ns_cbranch_scc1 L_nofac")
    wait_flags("L_kd", F_KD, 16, 16)
    q4 = ("quad_perm:[1,0,3,2]", "quad_perm:[2,3,0,1]")
    a(f"""
    v_and_b32 v{TA}, 3, v0
    v_lshlrev_b32 v{TA}, 4, v{TA}
    v_add_u32 v{TA}, {L_FL}, v{TA}
    ds_read_b64 v[24:25], v{TA} offset:{F_ST}
    s_waitcnt lgkmcnt(0)
    v_mov_b32 v28, v24
    """)
    allreduce("v_max_f32", [28], [], rows_only=True, steps=q4)
    a(f"v_sub_f32 v30, v24, v28\nv_mul_f32 v30, {LOG2E}, v30\nv_exp_f32 v30, v30\nv_mul_f32 v30, v25, v30")
    allreduce("v_add_f32", [30], [], rows_only=True, steps=q4)
    a(f"""
    v_mov_b32 v29, {TAG}
    v_mov_b32 v31, {TAG}
    s_lshl_b32 s13, s15, 7
    s_add_u32 s13, s13, {WS_STATS}
    s_lshl_b32 s12, s6, 4
    s_add_u32 s14, s13, s12
    s_xor_b32 s12, s12, 16
    s_add_u32 s13, s13, s12
    s_mov_b64 exec, 1
    buffer_store_dwordx4 v[28:31], v1, s[48:51], s14 offen sc1
    s_mov_b64 exec, -1
    """)
    tm_gather(2, KL + lagV, 4*KL, 4*f2/KL)
    a(f"v_mov_b32 v{TB}, 0")
    poll("L_poll_st", [f"buffer_load_dwordx4 v[16:19], v{TB}, s[48:51], s13 offen sc1"], tags_words([17, 19]), sleep=32)
    a(f"""
    v_max_f32 v17, v16, v28
    v_sub_f32 v16, v16, v17
    v_sub_f32 v28, v28, v17
    v_sub_f32 v24, v24, v17
    v_mul_f32 v16, {LOG2E}, v16
    v_mul_f32 v28, {LOG2E}, v28
    v_mul_f32 v24, {LOG2E}, v24
    v_exp_f32 v16, v16
    v_exp_f32 v28, v28
    v_exp_f32 v24, v24
    v_mul_f32 v16, v16, v18
    v_fmac_f32 v16, v28, v30
    v_rcp_f32 v16, v16
    v_mov_b32 v25, 1
    v_mul_f32 v24, v24, v16
    ds_write_b64 v{TA}, v[24:25] offset:{F_FAC}
    """)
    a("L_nofac:")
    a("s_cmp_lt_u32 s68, 4\ns_cbranch_scc1 L_nored2")
    wait_row("L_kd2", KL + 1)
    a("s_cmp_lg_u32 s68, 5\ns_cbranch_scc1 L_noffn2")
    ffn_cols(TA, TB)
    a(f"""
    v_lshlrev_b32 v{TA}, 8, v{TA}
    v_lshl_add_u32 v{TA}, v{TB}, 4, v{TA}
    s_lshl_b32 s12, s7, 6
    s_add_u32 s12, s12, {WS_MOD + 96*256}
    s_add_u32 s13, s12, 0x1000
    s_add_u32 s14, s12, 0x2000
    s_add_u32 s46, s12, 0x3000
    """)
    poll("L_poll_sb", [f"buffer_load_dwordx4 v[{16+4*i}:{19+4*i}], v{TA}, s[48:51], {sr} offen sc1" for i, sr in enumerate(["s12", "s13", "s14", "s46"])],
         tags_words([17 + 2*k for k in range(8)]), sleep=16)
    for k in range(4):
        a(f"v_mov_b32 v{SB[k]}, v{16+2*k}")
        unpack(32, 33, 24 + 2*k)
        a(f"v_add_f32 v32, 1.0, v32\nv_add_f32 v33, 1.0, v33\nv_cvt_pk_bf16_f32 v{TREG[k]}, v32, v33")
    a("L_noffn2:")
    srd(52, P_X, 4096)
    a(f"""
    v_bfe_u32 v{TA}, v0, 2, 2
    v_and_b32 v{TB}, 3, v0
    v_lshlrev_b32 v{TC}, 5, v{TA}
    v_lshl_add_u32 v{TC}, v{TB}, 1, v{TC}
    s_lshl_b32 s71, s69, 7
    s_lshl_b32 s12, s7, 3
    s_add_u32 s71, s71, s12
    buffer_load_ushort v{RX}, v{TC}, s[52:55], s71 offen
    v_lshlrev_b32 v{TA}, 8, v{TA}
    v_lshrrev_b32 v{TC}, 1, v{TB}
    v_lshl_add_u32 v{TA}, v{TC}, 3, v{TA}
    s_and_b32 s12, s69, 7
    s_lshl_b32 s12, s12, 10
    s_lshl_b32 s13, s7, 4
    s_add_u32 s12, s12, s13
    s_lshr_b32 s13, s69, 3
    s_lshl_b32 s13, s13, 6
    s_add_u32 s12, s12, s13
    s_add_u32 s13, s12, {WS_MOD + 160*256}
    s_add_u32 s12, s12, {WS_MOD + 64*256}
    """)
    poll("L_poll_ga", [f"buffer_load_dwordx2 v[16:17], v{TA}, s[48:51], s12 offen sc1", f"buffer_load_dwordx2 v[18:19], v{TA}, s[48:51], s13 offen sc1"],
         tags_words([17, 19]), sleep=16)
    a(f"v_and_b32 v{TB}, 1, v0\nv_cmp_eq_u32 vcc, 1, v{TB}")
    for k, r in enumerate([RGA, RGB]):
        unpack(24, 25, 16 + 2*k)
        a(f"v_cndmask_b32 v{r}, v24, v25, vcc")
    a(f"v_lshlrev_b32 v{RX}, 16, v{RX}")
    a(f"v_and_b32 v{TA}, 31, v0\nv_lshlrev_b32 v{TA}, 7, v{TA}\ns_mov_b32 s12, {WS_XCC}")
    poll("L_poll_xcc", [f"buffer_load_dwordx2 v[16:17], v{TA}, s[48:51], s12 offen sc1"], tags_words([17]), sleep=16)
    a(f"v_cmp_eq_u32 vcc, s62, v16\ns_cmp_eq_u64 vcc, exec\ns_cselect_b32 s44, {1 if fast else 0}, 0")
    a("L_nored2:")
    prevp = 4 * KL
    def milestones(lst):
        nonlocal prevp
        for i, mv in lst:
            p_ = 4 * (KL + mv) + E // 4
            tm_publish(3 + i, KL + mv)
            tm_gather(3 + i, KL + mv + lag3, p_, 16 * f3 / (p_ - prevp))
            prevp = p_
    MS = list(enumerate(ms))
    milestones([x for x in MS if x[1] + lag3 <= touch])
    if touch:
        a("s_cmp_lt_u32 s68, 4\ns_cbranch_scc1 L_notouch")
        wait_row("L_tch", KL + touch)
        a(f"""
        v_lshrrev_b32 v{TA}, 2, v0
        v_and_b32 v{TB}, 3, v0
        v_lshlrev_b32 v{TC}, 13, v{TA}
        v_lshl_add_u32 v{TC}, v{TB}, 4, v{TC}
        v_lshlrev_b32 v{TA}, 11, v{TA}
        v_lshl_add_u32 v{TA}, v{TB}, 4, v{TA}
        s_lshl_b32 s12, s7, 11
        s_add_u32 s12, s12, {WS_X1}
        buffer_load_dwordx4 v[16:19], v1, s[48:51], s12 offen sc1
        buffer_load_dwordx4 v[20:23], v1, s[48:51], s12 offen offset:1024 sc1
        s_lshl_b32 s12, s69, 8
        s_lshl_b32 s13, s7, 6
        s_add_u32 s12, s12, s13
        s_add_u32 s12, s12, {WS_PART2}
        s_add_u32 s13, s12, 0x20000
        buffer_load_dwordx4 v[24:27], v{TC}, s[48:51], s12 offen sc1
        buffer_load_dwordx4 v[28:31], v{TC}, s[48:51], s13 offen sc1
        """)
        if touch1:
            a(f"""
            s_and_b32 s12, s69, 7
            s_lshl_b32 s12, s12, 8
            s_lshl_b32 s13, s7, 6
            s_add_u32 s12, s12, s13
            s_lshr_b32 s13, s69, 3
            s_lshl_b32 s13, s13, 17
            s_add_u32 s12, s12, s13
            s_add_u32 s12, s12, {WS_PART1}
            """)
            for i in range(4):
                a(f"buffer_load_dwordx4 v[{32+4*i}:{35+4*i}], v{TA}, s[48:51], s12 offen sc1\ns_add_u32 s12, s12, 0x8000")
        a("s_waitcnt vmcnt(0)\nL_notouch:")
    milestones([x for x in MS if x[1] + lag3 > touch])
    AF, DD = 16, 32
    bn = {"n": 0}
    def barrier():
        if not dry: a("s_barrier"); return
        bn["n"] += 1
        a(f"s_cmp_eq_u32 s0, 1\ns_cbranch_scc1 L_nb{bn['n']}\ns_barrier\nL_nb{bn['n']}:")
    a(f"""
    L_tail0:
    s_mov_b64 exec, -1
    s_waitcnt vmcnt(0) lgkmcnt(0)
    v_and_b32 v{TB}, 3, v0
    v_mul_u32_u24 v{TB}, {OP_STRIDE}, v{TB}
    v_lshrrev_b32 v{TA}, 4, v0
    v_lshl_add_u32 v{TB}, v{TA}, 4, v{TB}
    v_add_u32 v{TB}, {L_OP}, v{TB}
    v_cmp_eq_u32 s[56:57], 1, v{TA}
    s_lshl_b32 s12, s15, 1
    s_add_u32 s12, s12, s6
    s_lshl_b32 s12, s12, 11
    s_lshl_b32 s13, s7, 9
    s_add_u32 s12, s12, s13
    s_add_u32 s12, s12, {WS_PART1}
    s_and_b32 s18, {TAG}, 0xff
    s_bfe_u32 s19, {TAG}, 0x80008
    s_bfe_u32 s20, {TAG}, 0x80010
    s_lshr_b32 s21, {TAG}, 24
    v_mov_b32 v{TC}, 0xffffff00
    """)
    stamp(8)
    barrier()
    if dbg: a("s_memrealtime s[96:97]")
    stamp(9)
    for s in range(4): a(f"ds_read_b128 v[{AF+4*s}:{AF+4*s+3}], v{TB} offset:{64*s}")
    a("s_waitcnt lgkmcnt(0)")
    def gemv_wide(bbase, nk):
        for t in range(8):
            for s in range(nk):
                r = bbase + (t * nk + s) * 4
                a(f"v_mfma_f32_16x16x32_bf16 v[{DD+4*t}:{DD+4*t+3}], v[{AF+4*s}:{AF+4*s+3}], v[{r}:{r+3}], " + ("0" if s == 0 else f"v[{DD+4*t}:{DD+4*t+3}]"))
    order = [0, 4, 1, 5, 2, 6, 3, 7]
    OQ = DD
    def fin(t, step):
        d = DD + 4*t
        if step == 0: a(f"v_add_f32 v{d}, v{d}, v{d+1}\nv_add_f32 v{d+2}, v{d+2}, v{d+3}")
        elif step == 1: a(f"v_add_f32 v{d}, v{d}, v{d+2}")
        elif step == 2 and t >= 4: a(f"v_cndmask_b32 v{OQ+t-4}, v{DD+4*(t-4)}, v{d}, s[56:57]")
        elif step == 3 and t >= 4: a(f"v_and_or_b32 v{OQ+t-4}, v{OQ+t-4}, v{TC}, s{18+t-4}")
    for i, t in enumerate(order):
        for sx in range(4):
            r = 64 + (t * 4 + sx) * 4
            a(f"v_mfma_f32_16x16x32_bf16 v[{DD+4*t}:{DD+4*t+3}], v[{AF+4*sx}:{AF+4*sx+3}], v[{r}:{r+3}], " + ("0" if sx == 0 else f"v[{DD+4*t}:{DD+4*t+3}]"))
            if i >= 2: fin(order[i-2], sx)
    for t in order[-2:]:
        for sx in range(4): fin(t, sx)
    a(f"s_mov_b32 exec_hi, 0\nbuffer_store_dwordx4 v[{OQ}:{OQ+3}], v1, s[48:51], s12 offen sc1\ns_mov_b64 exec, -1")
    stamp(10)
    a("s_cmp_lt_u32 s68, 4\ns_cbranch_scc1 L_hend\ns_cmp_lg_u32 s68, 5\ns_cbranch_scc1 L_noffn3")
    SC8, SH8 = 48, 56
    HW_, HF_, GF_, GW_, PO_, MS_ = 10, 11, 12, 13, 4, 5
    mid_bases()
    tr_mid(64, 0)
    tr_mid(128, 0x4000)
    for k in range(4): unpack(SC8 + 2*k, SC8 + 2*k + 1, TREG[k])
    for k in range(4): unpack(SH8 + 2*k, SH8 + 2*k + 1, SB[k])
    act_addr(HF_, "hi", TB)
    ffn_cols(TA, TB)
    a(f"""
    v_lshlrev_b32 v{HW_}, 5, v{TA}
    v_lshl_add_u32 v{HW_}, v{TB}, 3, v{HW_}
    s_mul_i32 s13, s7, {ACT_STRIDE}
    s_add_u32 s13, s13, {L_ACT}
    v_add_u32 v{HW_}, s13, v{HW_}
    v_mul_u32_u24 v{GF_}, {GB_STRIDE}, v{TB}
    v_lshrrev_b32 v{TB}, 4, v0
    v_lshl_add_u32 v{GF_}, v{TB}, 4, v{GF_}
    v_add_u32 v{GF_}, {L_GB}, v{GF_}
    v_mul_u32_u24 v{GW_}, {GB_STRIDE}, v{TB}
    v_and_b32 v{TA}, 15, v0
    v_lshl_add_u32 v{GW_}, v{TA}, 1, v{GW_}
    s_lshl_b32 s13, s7, 5
    s_add_u32 s13, s13, {L_GB}
    v_add_u32 v{GW_}, s13, v{GW_}
    v_lshlrev_b32 v{TB}, 11, v{TB}
    v_lshl_add_u32 v{PO_}, v{TA}, 4, v{TB}
    v_mov_b32 v{MS_}, 0xffffff00
    """)
    a("L_noffn3:")
    a(f"""
    v_lshrrev_b32 v{TA}, 2, v0
    v_and_b32 v{TB}, 3, v0
    v_lshlrev_b32 v{TC}, 13, v{TA}
    v_lshlrev_b32 v{TA}, 11, v{TA}
    v_lshl_add_u32 v{TA}, v{TB}, 4, v{TA}
    v_lshl_add_u32 v{TC}, v{TB}, 4, v{TC}
    v_lshlrev_b32 v{TB}, 2, v0
    s_and_b32 s12, s69, 7
    s_lshl_b32 s12, s12, 8
    s_lshl_b32 s13, s7, 6
    s_add_u32 s12, s12, s13
    s_lshr_b32 s13, s69, 3
    s_lshl_b32 s14, s13, 11
    s_add_u32 s22, s12, s14
    s_lshl_b32 s13, s13, 17
    s_add_u32 s12, s12, s13
    s_add_u32 s12, s12, {WS_PART1}
    s_add_u32 s13, s12, 0x8000
    s_add_u32 s14, s12, 0x10000
    s_add_u32 s67, s12, 0x18000
    s_add_u32 s23, s22, {WS_X1}
    v_mov_b32 v41, {TAG}
    v_mov_b32 v43, {TAG}
    """)
    poll("L_poll_p1", [f"buffer_load_dwordx4 v[{16+4*i}:{19+4*i}], v{TA}, s[48:51], {sr} offen sc1" for i, sr in enumerate(["s12", "s13", "s14", "s67"])],
         tags_bytes([16, 20, 24, 28], 32))
    stamp(11)
    def colsum(n):
        st_ = 1
        while st_ < n:
            for i in range(0, n, 2*st_):
                for k in range(4): a(f"v_add_f32 v{16+4*i+k}, v{16+4*i+k}, v{16+4*(i+st_)+k}")
            st_ *= 2
        a("""
        v_add_f32_dpp v20, v16, v16 row_ror:8 row_mask:0xf bank_mask:0x3
        v_add_f32_dpp v21, v17, v17 row_ror:8 row_mask:0xf bank_mask:0x3
        v_add_f32_dpp v20, v18, v18 row_ror:8 row_mask:0xf bank_mask:0xc
        v_add_f32_dpp v21, v19, v19 row_ror:8 row_mask:0xf bank_mask:0xc
        v_add_f32_dpp v16, v20, v20 row_shl:4 row_mask:0xf bank_mask:0x5
        v_add_f32_dpp v16, v21, v21 row_shr:4 row_mask:0xf bank_mask:0xa
        """)
        allreduce("v_add_f32", [16], [17], steps=())
    def resid(gate):
        bf16r(16, 16)
        a(f"v_mul_f32 v16, v16, v{gate}")
        bf16r(16, 16)
        a(f"v_add_f32 v16, v16, v{RX}")
    colsum(4)
    resid(RGA)
    a(f"""
    v_mov_b32_dpp v17, v16 quad_perm:[1,1,1,1] {FULL}
    v_mov_b32_dpp v18, v16 quad_perm:[2,2,2,2] {FULL}
    v_mov_b32_dpp v19, v16 quad_perm:[3,3,3,3] {FULL}
    v_cvt_pk_bf16_f32 v40, v16, v17
    v_cvt_pk_bf16_f32 v42, v18, v19
    s_mov_b64 exec, 0x1111
    """)
    def hstore(lbl, stores):
        a(f"s_cmp_eq_u32 s44, 1\ns_cbranch_scc0 {lbl}_s")
        for st_ in stores: a(f"{st_} {fpol}")
        a(f"s_branch {lbl}_e\n{lbl}_s:")
        for st_ in stores: a(f"{st_} sc1")
        a(f"{lbl}_e:")
    hstore("L_sx1", [f"buffer_store_dwordx4 v[40:43], v{TB}, s[48:51], s23 offen"])
    a("s_mov_b64 exec, -1")
    stamp(12)
    bf16r(RX, 16)
    a("s_cmp_lg_u32 s68, 5\ns_cbranch_scc1 L_red2")
    a(f"""
    s_lshl_b32 s12, s7, 11
    s_add_u32 s12, s12, {WS_X1}
    s_lshl_b32 s13, s69, 13
    s_lshl_b32 s14, s7, 9
    s_add_u32 s13, s13, s14
    s_add_u32 s23, s13, {WS_PART2}
    """)
    poll("L_poll_x1", ["buffer_load_dwordx4 v[16:19], v1, s[48:51], s12 offen sc1", "buffer_load_dwordx4 v[20:23], v1, s[48:51], s12 offen offset:1024 sc1"],
         tags_xor([17, 19, 21, 23], 24))
    stamp(1)
    X2, S2 = 24, 32
    for k in range(4): unpack(X2 + 2*k, X2 + 2*k + 1, 16 + 2*k)
    ln_norm(X2, S2)
    ln_affine(X2, SC8, SH8, 16)
    a(f"ds_write_b64 v{HW_}, v[16:17]\nds_write_b64 v{HW_}, v[18:19] offset:512\ns_waitcnt lgkmcnt(0)")
    barrier()
    G, U, GT = 56, 60, 14
    def afr(k): return 16 + 4*k if k < 10 else 64 + 4*(k - 10)
    for k in range(10): a(f"ds_read_b128 v[{afr(k)}:{afr(k)+3}], v{HF_} offset:{k*64}")
    issued = 10
    for k in range(16):
        a(f"s_waitcnt lgkmcnt({issued - 1 - k})")
        a(f"v_mfma_f32_16x16x32_bf16 v[{G}:{G+3}], v[{afr(k)}:{afr(k)+3}], v[{64+4*k}:{67+4*k}], " + ("0" if k == 0 else f"v[{G}:{G+3}]"))
        if 1 <= k <= 6:
            a(f"ds_read_b128 v[{afr(issued)}:{afr(issued)+3}], v{HF_} offset:{issued*64}"); issued += 1
    gelu = [f"v_cvt_pk_bf16_f32 v{G}, 0, v{G}", f"v_mul_f32 v{GT}, v{G}, v{G}", f"v_mul_f32 v{GT}, 0x3d372713, v{GT}",
            f"v_fma_f32 v{GT}, v{GT}, v{G}, v{G}", f"v_mul_f32 v{GT}, 0x40135761, v{GT}", f"v_exp_f32 v{GT}, -v{GT}",
            f"v_add_f32 v{GT}, 1.0, v{GT}", f"v_rcp_f32 v{GT}, v{GT}", f"v_mul_f32 v{GT}, v{GT}, v{G}", f"v_cvt_pk_bf16_f32 v{GT}, 0, v{GT}"]
    for k in range(16):
        a(f"v_mfma_f32_16x16x32_bf16 v[{U}:{U+3}], v[{afr(k)}:{afr(k)+3}], v[{128+4*k}:{131+4*k}], " + ("0" if k == 0 else f"v[{U}:{U+3}]"))
        if k >= 5 and gelu: a(gelu.pop(0))
    assert not gelu
    bf16r(U, U)
    a(f"""
    v_mul_f32 v{GT}, v{GT}, v{U}
    v_cvt_pk_bf16_f32 v{GT}, v{GT}, v{GT}
    ds_write_b16 v{GW_}, v{GT}
    s_waitcnt lgkmcnt(0)
    """)
    barrier()
    a(f"""
    ds_read_b128 v[{AF}:{AF+3}], v{GF_}
    ds_read_b128 v[{AF+4}:{AF+7}], v{GF_} offset:64
    s_waitcnt lgkmcnt(0)
    """)
    gemv_wide(192, 2)
    for g in range(2):
        for k in range(4): a(f"v_and_or_b32 v{24+4*g+k}, v{DD+4*(4*g+k)}, v{MS_}, s{18+k}")
    hstore("L_sp2", [f"buffer_store_dwordx4 v[{24+4*g}:{27+4*g}], v{PO_}, s[48:51], s23 offen offset:{256*g}" for g in range(2)])
    stamp(2)
    a("L_red2:")
    a(f"""
    s_add_u32 s12, s22, {WS_PART2}
    s_add_u32 s13, s12, 0x20000
    v_mov_b32 v20, s18
    v_mov_b32 v21, s19
    v_mov_b32 v22, s20
    v_mov_b32 v23, s21
    v_bfe_u32 v{TA}, v0, 2, 2
    v_and_b32 v{TB}, 3, v0
    v_lshlrev_b32 v{TA}, 5, v{TA}
    v_lshl_add_u32 v{TA}, v{TB}, 1, v{TA}
    """)
    srd(52, P_OUT, 4096)
    if dry: a("s_cmp_eq_u32 s0, 1\ns_cselect_b32 s54, 0, s54")
    poll("L_poll_p2", [f"buffer_load_dwordx4 v[16:19], v{TC}, s[48:51], s12 offen sc1", "s_mov_b32 exec_hi, 0xffff",
                       f"buffer_load_dwordx4 v[20:23], v{TC}, s[48:51], s13 offen sc1"],
         tags_bytes([16, 20], 32), post="s_mov_b64 exec, -1")
    stamp(13)
    colsum(2)
    resid(RGB)
    a(f"""
    v_cvt_pk_bf16_f32 v16, v16, v16
    s_mov_b64 exec, 0xffff
    buffer_store_short v16, v{TA}, s[52:55], s71 offen
    s_or_b32 s12, s2, s7
    s_cbranch_scc1 L_hend
    s_mov_b64 exec, 1
    v_mov_b32 v17, {TAG}
    v_mov_b32 v18, 0
    buffer_store_dword v17, v18, s[48:51], 0 offen sc1
    """)
    if dbg:
        a("s_cmp_eq_u32 s0, 1\ns_cbranch_scc1 L_hend\ns_memrealtime s[94:95]\ns_waitcnt lgkmcnt(0)\ns_sub_u32 s94, s94, s60\ns_sub_u32 s96, s96, s60\ns_sub_u32 s98, s98, s60")
        srd(8, 40, 256)
        for i, r in enumerate([98, 91, 92, 93, 96, 94]):
            a(f"v_mov_b32 v17, s{r}\nbuffer_store_dword v17, v18, s[8:11], 0 offen offset:{4*i}")
    if pad:
        a(f"s_cmp_eq_u32 s0, 1\ns_cbranch_scc1 L_hend\nL_pad:\ns_memrealtime s[94:95]\ns_waitcnt lgkmcnt(0)\ns_sub_u32 s94, s94, s60\ns_cmp_lt_u32 s94, {pad}\ns_cbranch_scc1 L_pad")
    a("L_hend:")
    if dry: a("s_cmp_eq_u32 s0, 1\ns_cbranch_scc0 L_fin\ns_cmp_ge_u32 s68, 4\ns_cbranch_scc1 L_afterdry1\ns_branch L_afterdry2\nL_fin:")
    stamp(14)
    dump_stamps(15)
    a("L_end:")
    a("s_endpgm")
    a('.section .rodata,"a"')
    a(".p2align 6")
    a(f".amdhsa_kernel {NAME}_kernel")
    a("""
    .amdhsa_next_free_vgpr 256
    .amdhsa_next_free_sgpr 102
    .amdhsa_accum_offset 256
    .amdhsa_group_segment_fixed_size 0
    .amdhsa_kernarg_size 112
    .amdhsa_user_sgpr_count 2
    .amdhsa_user_sgpr_kernarg_segment_ptr 1
    .amdhsa_system_sgpr_workgroup_id_x 1
    .amdhsa_float_denorm_mode_32 3
    .end_amdhsa_kernel
    """)
    return out + a.text()

if __name__ == "__main__":
    kw = eval("dict(" + (sys.argv[2] if len(sys.argv) > 2 else "") + ")")
    open(sys.argv[1], "w").write(gen(**kw))
```

```python
import sys
from asmlib import Asm

NAME = "adaLN_cond__mha_block_cached__geglu_ffn__decode"
WS_MOD = 0x1000
WS_Q = 0x10000
WS_STATS = 0x20000
WS_X1 = 0x28000
WS_PART2 = 0x40000
WS_PART1 = 0x80000
WS_FAST = 0
WS_XCC = 0x30000
WS_TM, TMSTR = 0x280000, 4352
WS_DBG, WS_SIZE = 0x200000, 0x400000
L_W, L_ACT, L_Q, L_OP, L_GB, L_FL = 0, 0x20000, 0x21200, 0x21400, 0x21A00, 0x21E00
ACT_STRIDE, OP_STRIDE, GB_STRIDE = 1088, 320, 192
LDS_BYTES = 0x22200
F_FAC, F_KD, F_WF, F_WQ, F_WQD, F_H, F_G1, F_G2, F_ST, F_TT = 0, 64, 80, 96, 112, 128, 144, 160, 192, 256
NFFN = 28
SPIN_MAX = 400000
P_X, P_K, P_V, P_WQ, P_WO, P_WG, P_WU, P_WD, P_C, P_WM, P_OUT, P_WS = 16, 18, 20, 22, 24, 28, 30, 32, 34, 36, 38, 42
TAG = "s45"
LOG2E, SCALE, HIMASK = "s64", "s65", "s66"

def gen(D=5, A=8, E=4, P=48, PL=32, DP=5, D2=7, NE=1, thr=2, thrA=2, thrF=3, thrQ=4, thrD=3, slp=16, diag=False,
        levels=((4,-50),(5,30),(6,100),(7,None)), f1=0.147, f2=0.965, f3=0.985, ms=(4, 8, 12), lagK=2, lagV=1, lag3=1, early=30, D0=None, N0=0, gq=40, gm=20,
        kctl=True, fast=True, fpol='', touch=10, touch1=False, touchp=0, pwait=0, contig=False, mk=5, fk=0.97, nb0=8, mpoll=False, trlate=False, ilv=False, dry=True, lastctl=True, tlb=True, dbg=False, pad=0, l2warm=True, skip=''):
    a = Asm()
    def stamp(k):
        if diag: a(f"s_memrealtime s[{72+2*k}:{73+2*k}]")
    def srd(reg, ptr, nbytes):
        a(f"s_mov_b32 s{reg}, s{ptr}\ns_mov_b32 s{reg+1}, s{ptr+1}\ns_mov_b32 s{reg+2}, {nbytes}\ns_mov_b32 s{reg+3}, 0x20000")
    def dump_stamps(n):
        if not diag: return
        a("s_waitcnt lgkmcnt(0)")
        a("s_mov_b64 exec, 1")
        a("s_lshl_b32 s46, s2, 3\ns_add_u32 s46, s46, s3\ns_lshl_b32 s46, s46, 6")
        a(f"s_add_u32 s46, s46, {WS_DBG}")
        a("v_mov_b32 v1, 0")
        for k in range(n):
            a(f"v_mov_b32 v2, s{72+2*k}")
            a(f"buffer_store_dword v2, v1, s[48:51], s46 offen offset:{4*k}")
    FULL = "row_mask:0xf bank_mask:0xf"
    def allreduce(op, rs, tmps, rows_only=False, steps=("quad_perm:[1,0,3,2]", "quad_perm:[2,3,0,1]", "row_half_mirror", "row_mirror")):
        for st in steps:
            for r in rs: a(f"{op}_dpp v{r}, v{r}, v{r} {st} {FULL}")
        if rows_only: return
        for sw in ("v_permlane16_swap_b32", "v_permlane32_swap_b32"):
            for r, t in zip(rs, tmps): a(f"v_mov_b32 v{t}, v{r}")
            for r, t in zip(rs, tmps): a(f"{sw} v{r}, v{t}")
            for r, t in zip(rs, tmps): a(f"{op} v{r}, v{r}, v{t}")
    def bf16r(d, s):
        a(f"v_cvt_pk_bf16_f32 v{d}, 0, v{s}")
    def bf16r2(lo, hi, t):
        a(f"v_cvt_pk_bf16_f32 v{t}, v{lo}, v{hi}\nv_lshlrev_b32 v{lo}, 16, v{t}\nv_and_b32 v{hi}, {HIMASK}, v{t}")
    def unpack(lo, hi, s):
        a(f"v_lshlrev_b32 v{lo}, 16, v{s}\nv_and_b32 v{hi}, {HIMASK}, v{s}")
    def spin_begin(): a("s_mov_b32 s70, 0")
    def spin_check(): a(f"s_add_u32 s70, s70, 1\ns_cmp_gt_u32 s70, {SPIN_MAX}\ns_cbranch_scc1 L_end")
    MKTAG = "s_mul_i32 s45, s44, 1664525\ns_add_u32 s45, s45, 1013904223"
    BAR0 = "s_load_dword s44, s[42:43], 0\ns_barrier"
    def set_flag(row, widx, va, vb):
        a(f"s_lshl_b32 s47, {widx}, 2\ns_add_u32 s47, s47, {L_FL+row}\nv_mov_b32 v{va}, s47\nv_mov_b32 v{vb}, 1\nds_write_b32 v{va}, v{vb}")
    def wait_flags(lbl, row, t, sleep):
        spin_begin()
        a(f"v_mov_b32 v{t+4}, {L_FL+row}")
        a(f"{lbl}:")
        spin_check()
        if sleep: a(f"s_sleep {sleep}")
        a(f"""
        ds_read_b128 v[{t}:{t+3}], v{t+4}
        s_waitcnt lgkmcnt(0)
        v_and_b32 v{t}, v{t}, v{t+1}
        v_and_b32 v{t+2}, v{t+2}, v{t+3}
        v_and_b32 v{t}, v{t}, v{t+2}
        v_readfirstlane_b32 s47, v{t}
        s_cmp_eq_u32 s47, 1
        s_cbranch_scc0 {lbl}
        """)

    hdr = open("cdna_kernels/" + NAME + ".s.ref").read().split("; Override launch")[0]
    out = hdr + f"; @launch grid=(256,1,1) block=(512,1,1) lds={LDS_BYTES}\n"
    a('.amdgcn_target "amdgcn-amd-amdhsa--gfx950"')
    a(".text")
    a(f".globl {NAME}_kernel")
    a(".p2align 8")
    a(f".type {NAME}_kernel,@function")
    a(f"{NAME}_kernel:")
    a("""
    s_cmp_ge_u32 s2, 256
    s_cbranch_scc1 L_end
    s_load_dwordx16 s[16:31], s[0:1], 0
    s_load_dwordx8 s[32:39], s[0:1], 64
    s_load_dwordx4 s[40:43], s[0:1], 96
    """)
    if diag:
        for k in range(1, 15): a(f"s_mov_b32 s{72+2*k}, 0")
    stamp(0)
    a("""
    v_lshrrev_b32 v1, 6, v0
    v_and_b32 v0, 63, v0
    v_readfirstlane_b32 s3, v1
    v_lshlrev_b32 v1, 4, v0
    s_lshr_b32 s12, s2, 3
    s_and_b32 s4, s12, 3
    s_lshl_b32 s4, s4, 3
    s_and_b32 s13, s2, 7
    s_add_u32 s4, s4, s13
    s_bfe_u32 s5, s12, 0x20002
    s_lshr_b32 s6, s12, 4
    s_mov_b32 s64, 0x3fb8aa3b
    s_mov_b32 s65, 0x3db504f3
    s_mov_b32 s66, 0xffff0000
    s_lshl_b32 s15, s5, 5
    s_add_u32 s15, s15, s4
    s_cmp_ge_u32 s3, 4
    s_cbranch_scc1 L_helper
    """)

    Q, MK, BB, ACC, PT, XX, YY, T0, T1, SC, RING = 2, 6, 10, 14, 18, 34, 42, 46, 47, 48, 64
    a(f"""
    s_lshl_b32 s13, s15, 21
    s_lshl_b32 s14, s6, {14 if ilv else 20}
    s_add_u32 s13, s13, s14
    s_lshl_b32 s14, s3, 12
    s_add_u32 s13, s13, s14
    s_mov_b32 s12, s13
    s_lshl_b32 s14, s3, 15
    s_waitcnt lgkmcnt(0)
    s_mov_b32 s0, 0
    """)
    srd(8, P_K, 0x10000000)
    st = {"issued": 0, "landed": 0}
    PT_ = P + PL
    assert P % 4 == 0 and PL <= 32
    def ldsoff(n): return ((n - P + 16) % 32) * 1024
    def slot(n):
        if n < P: return RING + 4 * n
        if n < PT_: return RING + 4 * (16 + n - P)
        return RING + 4 * ((n - PT_) % 16)
    def issue(n):
        if P <= n < PT_:
            if n & 3 == 0: a(f"s_add_u32 m0, s14, {ldsoff(n)}")
            a(f"buffer_load_dwordx4 v1, s[8:11], s12 offen offset:{(n&3)*1024} nt lds")
        else:
            r = slot(n)
            a(f"buffer_load_dwordx4 v[{r}:{r+3}], v1, s[8:11], s12 offen offset:{(n&3)*1024} nt")
        if n & 3 == 3: a(f"s_add_u32 s12, s12, {0x8000 if ilv else 0x4000}")
        st["issued"] = n + 1
    def throttle(d=None):
        d = d or D
        a(f"s_waitcnt vmcnt({d-1})")
        st["landed"] = max(st["landed"], st["issued"] - (d - 1))
    def ensure(n):
        if n >= st["landed"]:
            k = st["issued"] - 1 - n
            a(f"s_waitcnt vmcnt({k})"); st["landed"] = n + 1
    for n in range(PT_):
        if n == P + 16: wait_flags("L_wqd", F_WQD, PT, 0)
        dd_ = D0 if (D0 and n < N0) else DP
        if n >= dd_: throttle(dd_)
        issue(n)
        if n == max(DP, D0 or 0) - 1:
            srd(48, P_WS, WS_SIZE)
            a(f"""
            s_mov_b32 s60, 0xaaaaaaaa
            s_mov_b32 s61, 0xaaaaaaaa
            s_mov_b32 s62, 0xcccccccc
            s_mov_b32 s63, 0xcccccccc
            v_and_b32 v{T0}, 15, v0
            v_and_b32 v{T1}, 1, v0
            v_lshlrev_b32 v{T1}, 4, v{T1}
            v_mov_b32 v{PT}, 0xffff
            v_lshlrev_b32 v{T1}, v{T1}, v{PT}
            v_lshrrev_b32 v{PT}, 1, v{T0}
            """)
            for t in range(4):
                a(f"v_cmp_eq_u32 vcc, {t}, v{PT}\nv_cndmask_b32 v{MK+t}, 0, v{T1}, vcc")
            for t in range(4): a(f"v_mov_b32 v{ACC+t}, 0")
            a(f"v_lshlrev_b32 v{T0}, 4, v{T0}\nv_add_u32 v{T0}, {L_Q}, v{T0}")
        if n == nb0: a("s_barrier")
        if n == gm: set_flag(F_G1, "s3", PT, PT+1)
        if n == gq: set_flag(F_G2, "s3", PT, PT+1)
    stamp(1)
    a("s_barrier")
    stamp(2)
    a(f"ds_read_b128 v[{Q}:{Q+3}], v{T0}\nv_add_u32 v{T0}, s14, v1\ns_waitcnt lgkmcnt(0)")
    def kdots(n):
        r = slot(n); p = PT + n % 16
        a(f"v_dot2_f32_bf16 v{p}, v{r}, v{Q}, 0")
        for i in range(1, 4): a(f"v_dot2_f32_bf16 v{p}, v{r+i}, v{Q+i}, v{p}")
    def kreduce(dst):
        for j in range(8): a(f"v_add_f32_dpp v{XX+j}, v{PT+j}, v{PT+j} row_ror:8 row_mask:0xf bank_mask:0x3")
        for j in range(8): a(f"v_add_f32_dpp v{XX+j}, v{PT+8+j}, v{PT+8+j} row_ror:8 row_mask:0xf bank_mask:0xc")
        for j in range(4): a(f"v_add_f32_dpp v{YY+j}, v{XX+j}, v{XX+j} row_half_mirror row_mask:0xf bank_mask:0x5")
        for j in range(4): a(f"v_add_f32_dpp v{YY+j}, v{XX+4+j}, v{XX+4+j} row_half_mirror row_mask:0xf bank_mask:0xa")
        for j in range(2):
            a(f"v_cndmask_b32 v{XX+2*j}, v{YY+j+2}, v{YY+j}, s[62:63]")
            a(f"v_cndmask_b32 v{XX+2*j+1}, v{YY+j}, v{YY+j+2}, s[62:63]")
        for j in range(2):
            a(f"v_add_f32_dpp v{XX+4+j}, v{XX+2*j}, v{XX+2*j+1} quad_perm:[2,3,0,1] {FULL}")
        a(f"v_cndmask_b32 v{XX}, v{XX+5}, v{XX+4}, s[60:61]")
        a(f"v_cndmask_b32 v{XX+1}, v{XX+4}, v{XX+5}, s[60:61]")
        a(f"v_add_f32_dpp v{XX+2}, v{XX}, v{XX+1} quad_perm:[1,0,3,2] {FULL}")
        bf16r(XX+2, XX+2)
        a(f"v_mul_f32 v{XX+2}, {SCALE}, v{XX+2}")
        bf16r(dst, XX+2)
    tgt = -(-(PT_ + 16 - A + 4) // 16) * 16
    NPEEL = tgt // 16
    KL = 16 - NPEEL
    cons = {"n": 0}
    def consume_k_upto(m):
        while cons["n"] < m:
            n = cons["n"]
            if n == P:
                a("s_waitcnt lgkmcnt(0)")
                set_flag(F_WF, "s3", T0, T1)
            ensure(n); kdots(n); cons["n"] += 1
            m2 = n - 16 + P
            if n >= 16 and P <= m2 < PT_:
                ensure(m2)
                r = slot(m2)
                a(f"ds_read_b128 v[{r}:{r+3}], v{T0} offset:{ldsoff(m2)}")
            if n % 16 == 15: kreduce(SC + n // 16 + KL)
    nsteps = tgt + A - PT_
    for s in range(nsteps):
        n = PT_ + s
        prev = s if s < 16 else n - 16
        if s <= 16: want = 1 + -(-PT_ * s // 16)
        else: want = PT_ + 1 + -(-(tgt - PT_ - 1) * (s - 16) // (nsteps - 16))
        want = min(want, max(st["landed"], PT_))
        consume_k_upto(min(max(want, prev + 1), tgt))
        throttle(); issue(n)
    a("s_memrealtime s[52:53]")
    consume_k_upto(tgt)
    FA, FAD, TTA, TTV = 128, 132, 133, 134
    LV = [x[0] for x in levels]
    def ln_(dd): return str(dd).replace(".", "p")
    def dstep(dd, j):
        import math
        return int(math.floor((j + 1) * dd) - math.floor(j * dd))
    a(f"""
    s_mov_b32 s14, 0
    s_mov_b32 s56, 0
    s_lshl_b32 s47, s3, 4
    s_add_u32 s47, s47, {L_FL+F_FAC}
    v_mov_b32 v{FAD}, s47
    s_lshl_b32 s47, s3, 2
    s_add_u32 s47, s47, {L_FL+F_TT}
    v_mov_b32 v{TTA}, s47
    v_mov_b32 v{FA+3}, 0
    """)
    def record():
        a(f"""
        s_waitcnt lgkmcnt(0)
        s_or_b32 s53, s52, 1
        v_mov_b32 v{TTV}, s53
        ds_write_b32 v{TTA}, v{TTV}
        v_add_u32 v{TTA}, 16, v{TTA}
        """)
    def dispatch(pre):
        a(f"""
        v_readfirstlane_b32 s55, v{FA+3}
        v_readfirstlane_b32 s54, v{FA+2}
        s_cmp_eq_u32 s55, 0
        s_cbranch_scc1 {pre}{ln_(D)}
        s_mul_i32 s55, s55, s56
        s_lshr_b32 s55, s55, 4
        s_sub_u32 s52, s52, s54
        s_sub_u32 s52, s52, s55
        """)
        for dd, th in levels:
            if th is None: a(f"s_branch {pre}{ln_(dd)}")
            else: a(f"s_cmp_lt_i32 s52, {th}\ns_cbranch_scc1 {pre}{ln_(dd)}")
    a("L_kdisp:")
    record()
    a(f"s_cmp_ge_u32 s14, {KL}\ns_cbranch_scc1 L_kdone")
    if kctl: dispatch("L_k")
    for dd in (LV if kctl else [D]):
        assert dd <= A
        a(f"L_k{ln_(dd)}:")
        a(f"ds_read_b128 v[{FA}:{FA+3}], v{FAD}")
        for j in range(16):
            n = tgt + j
            a(f"s_waitcnt vmcnt({dstep(dd, j)-1})")
            if j == 16 - A:
                a(f"s_cmp_eq_u32 s14, {KL-1}\ns_cselect_b32 s8, s{P_V}, s8\ns_cselect_b32 s9, s{P_V+1}, s9\ns_cselect_b32 s12, s13, s12")
            issue(n + A)
            if j == 15: a("s_memrealtime s[52:53]")
            kdots(n)
            if j == 7:
                for i in range(15): a(f"v_mov_b32 v{SC+i}, v{SC+i+1}")
        kreduce(SC + 15)
        a("s_add_u32 s14, s14, 1\ns_add_u32 s56, s56, 4\ns_branch L_kdisp")
    a("L_kdone:")
    stamp(3)
    ex = {"n": 256 + A}
    def extra():
        if ex["n"] < 256 + A + E:
            a(f"s_waitcnt vmcnt({D-1})"); issue(ex["n"]); ex["n"] += 1
    extra()
    M, Ls = PT, PT + 1
    a(f"v_max3_f32 v{M}, v{SC}, v{SC+1}, v{SC+2}")
    for i in range(3, 15, 2): a(f"v_max3_f32 v{M}, v{M}, v{SC+i}, v{SC+i+1}")
    a(f"v_max_f32 v{M}, v{M}, v{SC+15}")
    allreduce("v_max_f32", [M], [T0])
    a(f"v_mul_f32 v{T1}, {LOG2E}, v{M}")
    extra()
    for i in range(16): a(f"v_fma_f32 v{SC+i}, v{SC+i}, {LOG2E}, -v{T1}")
    for i in range(16): a(f"v_exp_f32 v{SC+i}, v{SC+i}")
    extra()
    a(f"v_add_f32 v{Ls}, v{SC}, v{SC+1}\nv_add_f32 v{Ls+1}, v{SC+2}, v{SC+3}")
    for i in range(4, 16, 2): a(f"v_add_f32 v{Ls}, v{Ls}, v{SC+i}\nv_add_f32 v{Ls+1}, v{Ls+1}, v{SC+i+1}")
    a(f"v_add_f32 v{Ls}, v{Ls}, v{Ls+1}")
    for i in range(16): a(f"v_cvt_pk_bf16_f32 v{SC+i}, v{SC+i}, v{SC+i}")
    extra()
    allreduce("v_add_f32", [Ls], [T0])
    a(f"ds_write_b64 v{FAD}, v[{M}:{Ls}] offset:{F_ST-F_FAC}")
    set_flag(F_KD, "s3", PT+5, PT+6)
    while ex["n"] < 256 + A + E: extra()
    a("s_memrealtime s[52:53]")
    AV = A + E
    assert AV <= 15
    a(f"""
    v_lshrrev_b32 v{PT}, 4, v0
    v_lshlrev_b32 v{PT}, 5, v{PT}
    v_bfe_u32 v{PT+1}, v0, 1, 1
    v_lshl_add_u32 v{PT}, v{PT+1}, 7, v{PT}
    v_bfe_u32 v{PT+1}, v0, 2, 1
    v_lshl_add_u32 v{PT}, v{PT+1}, 2, v{PT}
    v_and_b32 v{PT+1}, 1, v0
    v_lshl_add_u32 v{PT}, v{PT+1}, 1, v{PT}
    s_mul_i32 s46, s3, {OP_STRIDE}
    s_add_u32 s46, s46, {L_OP}
    v_add_u32 v{PT}, s46, v{PT}
    s_mov_b32 s14, 0
    s_add_u32 s56, s56, {E//4}
    s_waitcnt lgkmcnt(0)
    """)
    def vbody(dd, last, timed):
        assert dd <= AV
        a(f"ds_read_b128 v[{FA}:{FA+3}], v{FAD}")
        for j in range(16):
            n = 256 + j
            for t in range(4): a(f"v_and_b32_dpp v{BB+t}, v{SC}, v{MK+t} row_newbcast:{j} {FULL}")
            a(f"s_waitcnt vmcnt({dstep(dd, j)-1})")
            if j == 16 - AV and last:
                a("s_cmp_eq_u32 s14, 15\ns_cselect_b32 s10, 0, s10")
            issue(n + AV)
            r = slot(n)
            if j == 15 and timed: a("s_memrealtime s[52:53]")
            a(f"v_mfma_f32_16x16x32_bf16 v[{ACC}:{ACC+3}], v[{r}:{r+3}], v[{BB}:{BB+3}], v[{ACC}:{ACC+3}]")
        if lastctl: a("s_cmp_eq_u32 s14, 15\ns_cbranch_scc1 L_sepi")
        for i in range(15): a(f"v_mov_b32 v{SC+i}, v{SC+i+1}")
        a("s_add_u32 s14, s14, 1\ns_add_u32 s56, s56, 4")
    assert NE >= 1
    a("s_branch L_vd1")
    a("L_vdisp:")
    if lastctl:
        record()
    else:
        record()
        a(f"s_cmp_ge_u32 s14, {16-NE}\ns_cbranch_scc1 L_vlast")
    a("L_vd1:")
    dispatch("L_v")
    for dd in LV:
        a(f"L_v{ln_(dd)}:")
        vbody(dd, lastctl, True)
        a("s_branch L_vdisp")
    if not lastctl:
        a("L_vlast:")
        vbody(D2, True, False)
        a("s_cmp_lt_u32 s14, 16\ns_cbranch_scc1 L_vlast")
    a("L_sepi:")
    a("s_nop 7")
    stamp(4)
    spin_begin()
    a("L_facspin:")
    a(f"s_waitcnt lgkmcnt(0)\nv_readfirstlane_b32 s46, v{FA+1}\ns_cmp_eq_u32 s46, 1\ns_cbranch_scc1 L_facok")
    spin_check()
    a(f"ds_read_b128 v[{FA}:{FA+3}], v{FAD}\ns_branch L_facspin")
    a("L_facok:")
    for t in range(4): a(f"v_mul_f32 v{ACC+t}, v{ACC+t}, v{FA}")
    a(f"v_cvt_pk_bf16_f32 v{ACC}, v{ACC}, v{ACC+1}\nv_cvt_pk_bf16_f32 v{ACC+2}, v{ACC+2}, v{ACC+3}")
    a(f"""
    s_mov_b32 exec_lo, 0x00ff00ff
    s_mov_b32 exec_hi, 0x00ff00ff
    ds_write_b16 v{PT}, v{ACC}
    ds_write_b16_d16_hi v{PT}, v{ACC} offset:8
    ds_write_b16 v{PT}, v{ACC+2} offset:16
    ds_write_b16_d16_hi v{PT}, v{ACC+2} offset:24
    s_waitcnt lgkmcnt(0)
    """)
    if dry: a("s_cmp_eq_u32 s0, 1\ns_cbranch_scc1 L_tail0")
    a("s_barrier")
    stamp(5)
    dump_stamps(6)
    a("s_endpgm")

    a("L_helper:")
    TRB, DA, DB, DN, TA, TB, TC = 2, 4, 5, 6, 7, 8, 9
    a(f"""
    s_memrealtime s[60:61]
    s_sub_u32 s7, s3, 4
    """)
    def lane_consts():
        a(f"""
        v_lshrrev_b32 v{TA}, 4, v0
        v_bfe_u32 v{TB}, v0, 2, 2
        v_and_b32 v{TC}, 3, v0
        v_lshl_add_u32 v{TRB}, v{TA}, 3, v{TB}
        v_lshlrev_b32 v{TRB}, 8, v{TRB}
        v_lshl_add_u32 v{TRB}, v{TC}, 3, v{TRB}
        v_and_b32 v{TC}, 1, v{TA}
        v_lshl_add_u32 v{TB}, v{TC}, 2, v{TB}
        v_lshl_add_u32 v{TRB}, v{TB}, 5, v{TRB}
        s_lshl_b32 s12, s7, 15
        v_add_u32 v{TRB}, s12, v{TRB}
        v_and_b32 v{TB}, 15, v0
        v_lshlrev_b32 v{TC}, 1, v{TA}
        v_xor_b32 v{TB}, v{TB}, v{TC}
        v_lshlrev_b32 v{DN}, 4, v{TB}
        v_mov_b32 v{DA}, 0
        """)
    lane_consts()
    a(f"""
    s_lshr_b32 s69, s2, 3
    s_and_b32 s12, s2, 7
    s_mov_b32 s68, 4
    s_cmp_lt_u32 s69, {NFFN}
    s_cselect_b32 s68, 5, s68
    s_cmp_eq_u32 s12, 0
    s_cbranch_scc1 L_role
    s_mul_i32 s69, s69, 7
    s_add_u32 s69, s69, s12
    s_sub_u32 s69, s69, 1
    s_mov_b32 s68, 1
    s_cmp_lt_u32 s69, 16
    s_cbranch_scc1 L_role
    s_sub_u32 s69, s69, 16
    s_mov_b32 s68, 3
    s_cmp_lt_u32 s69, 64
    s_cbranch_scc1 L_role
    s_sub_u32 s69, s69, 48
    s_mov_b32 s68, 2
    s_cmp_lt_u32 s69, 48
    s_cbranch_scc1 L_role
    s_mov_b32 s68, 0
    L_role:
    """)
    a(f"""
    s_cmp_lg_u32 s7, 3
    s_cbranch_scc1 L_noinit
    s_and_b32 s12, s68, 1
    s_xor_b32 s12, s12, 1
    v_cmp_eq_u32 vcc, {F_WQD//16}, v0
    v_mov_b32 v17, s12
    v_cndmask_b32 v16, 0, v17, vcc
    v_mov_b32 v17, v16
    v_mov_b32 v18, v16
    v_mov_b32 v19, v16
    v_add_u32 v20, {L_FL}, v1
    ds_write_b128 v20, v[16:19]
    L_noinit:
    s_waitcnt lgkmcnt(0)
    s_mov_b32 s0, 0
    s_mov_b32 s71, 0
    s_mov_b32 s58, 0x0c0c0400
    s_mov_b32 s59, 0x04000c0c
    """)
    srd(48, P_WS, WS_SIZE)
    def dma_wide(nins, rs_log2, soff, infl, hooks={}):
        a(f"v_lshrrev_b32 v{TA}, 4, v0\nv_lshl_add_u32 v{DA}, v{TA}, {rs_log2}, v{DN}\nv_xor_b32 v{DB}, 0x80, v{DA}")
        a("s_lshl_b32 s14, s7, 15")
        for i in range(nins):
            a("s_mov_b32 m0, s14" if i == 0 else "s_add_u32 m0, m0, 0x400")
            if i: a(f"s_add_u32 {soff}, {soff}, {4 << rs_log2}")
            a(f"buffer_load_dwordx4 v{DB if (i >> 1) & 1 else DA}, s[8:11], {soff} offen nt lds")
            if i in hooks: hooks[i]()
            if i >= infl - 1: a(f"s_waitcnt vmcnt({infl-1})")
    def dma_mid(soff, ldsbase, infl, rs, hooks={}):
        a(f"""
        v_lshrrev_b32 v{DA}, 3, v0
        v_mul_u32_u24 v{DA}, {rs}, v{DA}
        v_bfe_u32 v{DB}, v0, 4, 1
        v_lshlrev_b32 v{DB}, 1, v{DB}
        v_and_b32 v{TA}, 7, v0
        v_xor_b32 v{DB}, v{DB}, v{TA}
        v_lshl_add_u32 v{DA}, v{DB}, 4, v{DA}
        v_xor_b32 v{DB}, 64, v{DA}
        """)
        for i in range(16):
            a(f"s_mov_b32 m0, {ldsbase}" if i == 0 else "s_add_u32 m0, m0, 0x400")
            if i: a(f"s_add_u32 {soff}, {soff}, {8*rs}")
            a(f"buffer_load_dwordx4 v{DB if i & 1 else DA}, s[8:11], {soff} offen nt lds")
            if i in hooks: hooks[i]()
            if i >= infl - 1: a(f"s_waitcnt vmcnt({infl-1})")
    def mid_bases():
        a(f"""
        v_lshrrev_b32 v{TB}, 4, v0
        v_bfe_u32 v{TC}, v0, 2, 2
        v_lshl_add_u32 v{TA}, v{TB}, 3, v{TC}
        v_lshlrev_b32 v{TA}, 7, v{TA}
        v_and_b32 v{TB}, 1, v{TB}
        v_lshrrev_b32 v{TC}, 1, v{TC}
        v_lshl_add_u32 v{TB}, v{TB}, 1, v{TC}
        v_xor_b32 v{TB}, s7, v{TB}
        v_lshl_add_u32 v{TA}, v{TB}, 5, v{TA}
        v_and_b32 v{TB}, 3, v0
        v_lshl_add_u32 v{TA}, v{TB}, 3, v{TA}
        v_add_u32 v{TB}, 0x10000, v{TA}
        """)
    def tr_mid(dst, off):
        for s in range(16):
            r = dst + 4 * s
            ar = TA if s < 8 else TB
            o = off + ((s >> 2) & 1) * 0x8000 + (s & 3) * 4096
            a(f"ds_read_b64_tr_b16 v[{r}:{r+1}], v{ar} offset:{o}")
            a(f"ds_read_b64_tr_b16 v[{r+2}:{r+3}], v{ar} offset:{o+512}")
        a("s_waitcnt lgkmcnt(0)")
    def tr_wide(dst, nk):
        for t in range(8):
            ar = TA if t & 1 else TB
            a(f"v_xor_b32 v{ar}, {t << 5}, v{TRB}")
            for s in range(nk):
                r = dst + (t * nk + s) * 4
                a(f"ds_read_b64_tr_b16 v[{r}:{r+1}], v{ar} offset:{s*8192}")
                a(f"ds_read_b64_tr_b16 v[{r+2}:{r+3}], v{ar} offset:{s*8192+1024}")
        a("s_waitcnt lgkmcnt(0)")
    def act_addr(dst, rowsel, tmp):
        a(f"v_and_b32 v{dst}, 3, v0" if rowsel == "lo" else f"v_bfe_u32 v{dst}, v0, 2, 2")
        a(f"v_mul_u32_u24 v{dst}, {ACT_STRIDE}, v{dst}\nv_lshrrev_b32 v{tmp}, 4, v0\nv_lshl_add_u32 v{dst}, v{tmp}, 4, v{dst}\nv_add_u32 v{dst}, {L_ACT}, v{dst}")
    def poll(lbl, loads, tags, sleep=0, pre="", post=""):
        spin_begin()
        if sleep: a(f"s_branch {lbl}_go")
        a(f"{lbl}:")
        spin_check()
        if sleep: a(f"s_sleep {sleep}\n{lbl}_go:")
        a(pre)
        for l in loads: a(l)
        a(post)
        a("s_waitcnt vmcnt(0)")
        tags()
        a(f"s_cmp_eq_u64 vcc, exec\ns_cbranch_scc0 {lbl}")
    def tags_words(regs):
        def f():
            a(f"v_cmp_eq_u32 vcc, {TAG}, v{regs[0]}")
            for r in regs[1:]: a(f"v_cmp_eq_u32 s[56:57], {TAG}, v{r}\ns_and_b64 vcc, vcc, s[56:57]")
        return f
    def tags_xor(regs, t):
        def f():
            a(f"v_xor_b32 v{t}, {TAG}, v{regs[0]}")
            for r in regs[1:]: a(f"v_xor_b32 v{t+1}, {TAG}, v{r}\nv_or_b32 v{t}, v{t}, v{t+1}")
            a(f"v_cmp_eq_u32 vcc, 0, v{t}")
        return f
    def tags_bytes(quads, t):
        def f():
            for i, q in enumerate(quads):
                a(f"v_perm_b32 v{t+2*i}, v{q+1}, v{q}, s58\nv_perm_b32 v{t+2*i+1}, v{q+3}, v{q+2}, s59")
            for i, q in enumerate(quads): a(f"v_or_b32 v{t+2*i}, v{t+2*i}, v{t+2*i+1}")
            for i, q in enumerate(quads): a(f"v_xor_b32 v{t+2*i}, {TAG}, v{t+2*i}")
            n = len(quads)
            if n == 4: a(f"v_or3_b32 v{t}, v{t}, v{t+2}, v{t+4}\nv_or_b32 v{t}, v{t}, v{t+6}")
            else: a(f"v_or_b32 v{t}, v{t}, v{t+2}")
            a(f"v_cmp_eq_u32 vcc, 0, v{t}")
        return f
    def pk(op, d, x, y, mods=""):
        yy = y if isinstance(y, str) else f"v[{y}:{y+1}]"
        a(f"v_pk_{op}_f32 v[{d}:{d+1}], v[{x}:{x+1}], {yy} {mods}")
    NEG = "neg_lo:[0,1] neg_hi:[0,1]"
    def rnd8(x0):
        for k in range(8): bf16r(x0 + k, x0 + k)
    def ln_norm(x0, t0):
        a(f"v_readfirstlane_b32 s46, v{x0}")
        for k in range(4): pk("add", t0+4+2*k, x0+2*k, "s[46:47]", "op_sel_hi:[1,0] " + NEG)
        pk("mul", t0+2, t0+4, t0+4)
        pk("add", t0, t0+4, t0+6)
        a(f"v_pk_fma_f32 v[{t0+2}:{t0+3}], v[{t0+6}:{t0+7}], v[{t0+6}:{t0+7}], v[{t0+2}:{t0+3}]")
        pk("add", t0+4, t0+8, t0+10)
        a(f"v_pk_fma_f32 v[{t0+2}:{t0+3}], v[{t0+8}:{t0+9}], v[{t0+8}:{t0+9}], v[{t0+2}:{t0+3}]")
        pk("add", t0, t0, t0+4)
        a(f"v_pk_fma_f32 v[{t0+2}:{t0+3}], v[{t0+10}:{t0+11}], v[{t0+10}:{t0+11}], v[{t0+2}:{t0+3}]")
        m, q = t0, t0 + 2
        a(f"v_add_f32 v{m}, v{t0}, v{t0+1}\nv_add_f32 v{q}, v{t0+2}, v{t0+3}")
        allreduce("v_add_f32", [m, q], [], rows_only=True)
        for st_ in ("row_bcast:15 row_mask:0xa bank_mask:0xf", "row_bcast:31 row_mask:0xc bank_mask:0xf"):
            for r in (m, q): a(f"v_add_f32_dpp v{r}, v{r}, v{r} {st_}")
        a(f"""
        v_mul_f32 v{m}, 0x3b000000, v{m}
        v_mul_f32 v{q}, 0x3b000000, v{q}
        v_fma_f32 v{q}, -v{m}, v{m}, v{q}
        v_add_f32 v{m}, s46, v{m}
        v_max_f32 v{q}, 0, v{q}
        """)
        bf16r(m, m); bf16r(q, q)
        a(f"v_readlane_b32 s56, v{m}, 63\nv_add_f32 v{q}, 0x3727c5ac, v{q}")
        bf16r(q, q)
        a(f"v_sqrt_f32 v{q}, v{q}")
        for k in range(2): pk("add", x0+2*k, x0+2*k, "s[56:57]", "op_sel_hi:[1,0] " + NEG)
        bf16r(q, q)
        for k in range(2, 4): pk("add", x0+2*k, x0+2*k, "s[56:57]", "op_sel_hi:[1,0] " + NEG)
        a(f"v_rcp_f32 v{q}, v{q}")
        for k in range(3): bf16r(x0 + k, x0 + k)
        a(f"v_readlane_b32 s46, v{q}, 63")
        for k in range(3, 8): bf16r(x0 + k, x0 + k)
        for k in range(4): pk("mul", x0+2*k, x0+2*k, "s[46:47]", "op_sel_hi:[1,0]")
        rnd8(x0)
    def ln_affine(x0, sc8, sh8, t):
        for k in range(4): pk("mul", x0+2*k, x0+2*k, sc8+2*k)
        rnd8(x0)
        for k in range(4): pk("add", x0+2*k, x0+2*k, sh8+2*k)
        for k in range(4): a(f"v_cvt_pk_bf16_f32 v{t+k}, v{x0+2*k}, v{x0+2*k+1}")
    X8, ST, SA8, CA8, BW, DT = 24, 32, 40, 48, 192, 56
    def gemv64(tagn, kind, infl, first):
        isq = kind == "q"
        srd(52, P_X if isq else P_C, 4096)
        a(f"""
        v_lshlrev_b32 v10, 3, v0
        s_lshl_b32 s12, s7, 10
        buffer_load_dwordx2 v[12:13], v10, s[52:55], s12 offen
        buffer_load_dwordx2 v[14:15], v10, s[52:55], s12 offen offset:512
        """)
        rs = 8192 if isq else 6144
        srd(8, P_WQ if isq else P_WM, 0 if ({"q": "q", "A": "A", "a": "a"}[kind] in skip) else 512 * rs)
        if contig: rs = 128
        a(f"s_mul_i32 s13, s7, {128*rs}\ns_lshl_b32 s12, s69, {16 if contig else 7}\ns_add_u32 s13, s13, s12\ns_lshl_b32 s14, s7, 15")
        dma_mid("s13", "s14", infl, rs, hooks=({min(infl, 16) - 1: lambda: a(BAR0)} if first else {}))
        a("s_waitcnt vmcnt(16)")
        if kind == "A": stamp(1)
        for k in range(4): unpack(X8 + 2*k, X8 + 2*k + 1, 12 + k)
        a(f"s_mul_i32 s12, s7, {ACT_STRIDE}\ns_add_u32 s12, s12, {L_ACT}\nv_add_u32 v10, s12, v10")
        if isq:
            ln_norm(X8, ST)
        else:
            for k in range(8): a(f"v_mul_f32 v{ST+k}, {LOG2E}, v{X8+k}")
            for k in range(8): a(f"v_exp_f32 v{ST+k}, -v{ST+k}")
            for k in range(8): a(f"v_add_f32 v{ST+k}, 1.0, v{ST+k}")
            for k in range(8): a(f"v_rcp_f32 v{ST+k}, v{ST+k}")
            for k in range(8): a(f"v_mul_f32 v{X8+k}, v{X8+k}, v{ST+k}")
            for k in range(4): a(f"v_cvt_pk_bf16_f32 v{16+k}, v{X8+2*k}, v{X8+2*k+1}")
            a("ds_write_b64 v10, v[16:17]\nds_write_b64 v10, v[18:19] offset:512")
        mid_bases()
        a("s_waitcnt vmcnt(0)")
        set_flag(F_WQ, "s7", 20, 21)
        wait_flags(f"L_wq{tagn}", F_WQ, 16, 0)
        if first: a(MKTAG)
        stamp(4 if isq else 2) if first else None
        tr_mid(BW, 0)
        if first: set_flag(F_WQD, "s7", 16, 17)
        act_addr(TC, "lo", TB)
        a(f"s_lshl_b32 s67, s69, 10\ns_lshl_b32 s12, s7, 8\ns_add_u32 s67, s67, s12\ns_add_u32 s67, s67, {WS_Q if isq else WS_MOD}")
        if isq:
            a(f"""
            v_lshrrev_b32 v{TA}, 2, v0
            v_lshlrev_b32 v{TA}, 8, v{TA}
            v_and_b32 v{TB}, 3, v0
            v_lshl_add_u32 v{TA}, v{TB}, 4, v{TA}
            s_lshl_b32 s12, s7, 6
            s_add_u32 s12, s12, {WS_MOD}
            s_add_u32 s13, s12, 0x1000
            s_add_u32 s14, s12, 0x2000
            s_add_u32 s46, s12, 0x3000
            """)
            if gm: wait_flags("L_g1", F_G1, 16, 4)
            G0 = 128
            poll("L_poll_mod", [f"buffer_load_dwordx4 v[{G0+4*i}:{G0+4*i+3}], v{TA}, s[48:51], {sr} offen sc1" for i, sr in enumerate(["s12", "s13", "s14", "s46"])],
                 tags_xor([G0 + 1 + 2*k for k in range(8)], 16), sleep=slp)
            stamp(5)
            for k in range(4): unpack(SA8 + 2*k, SA8 + 2*k + 1, G0 + 2*k)
            for k in range(4): unpack(CA8 + 2*k, CA8 + 2*k + 1, G0 + 8 + 2*k)
            for k in range(8): a(f"v_add_f32 v{CA8+k}, 1.0, v{CA8+k}")
            rnd8(CA8)
            ln_affine(X8, CA8, SA8, 16)
            a("ds_write_b64 v10, v[16:17]\nds_write_b64 v10, v[18:19] offset:512")
            set_flag(F_H, "s7", 20, 21)
            wait_flags("L_h", F_H, 16, 0)
        for hh in range(2):
            for s in range(8): a(f"ds_read_b128 v[{16+4*s}:{19+4*s}], v{TC} offset:{(8*hh+s)*64}")
            for s in range(8):
                a(f"s_waitcnt lgkmcnt({7-s})")
                k = 8*hh + s
                a(f"v_mfma_f32_16x16x32_bf16 v[{DT}:{DT+3}], v[{BW+4*k}:{BW+4*k+3}], v[{16+4*s}:{19+4*s}], " + ("0" if k == 0 else f"v[{DT}:{DT+3}]"))
        a(f"""
        v_and_b32 v{TC}, 3, v0
        v_lshrrev_b32 v{TA}, 4, v0
        v_lshlrev_b32 v{TA}, 4, v{TA}
        v_lshl_add_u32 v{TA}, v{TC}, 6, v{TA}
        v_mov_b32 v{DT+5}, {TAG}
        v_mov_b32 v{DT+7}, {TAG}
        v_cvt_pk_bf16_f32 v{DT+4}, v{DT}, v{DT+1}
        v_cvt_pk_bf16_f32 v{DT+6}, v{DT+2}, v{DT+3}
        s_mov_b32 exec_lo, 0x000f000f
        s_mov_b32 exec_hi, 0x000f000f
        buffer_store_dwordx4 v[{DT+4}:{DT+7}], v{TA}, s[48:51], s67 offen sc1
        s_mov_b64 exec, -1
        """)
        if first: stamp(13 if isq else 3)

    a("""
    s_cmp_eq_u32 s68, 3
    s_cbranch_scc1 L_qgemv
    s_cmp_eq_u32 s68, 5
    s_cbranch_scc1 L_down
    s_cmp_lg_u32 s68, 1
    s_cbranch_scc1 L_bar0
    """)
    gemv64(1, "A", 64, True)
    a("s_branch L_getq")
    a("L_qgemv:")
    gemv64(2, "q", thrQ, True)
    a("s_branch L_getq")
    a("L_down:")
    srd(8, P_WD, 0 if 'f' in skip else 1792 * 1024)
    a("s_lshl_b32 s13, s69, 16\ns_lshl_b32 s12, s7, 8\ns_add_u32 s13, s13, s12")
    dma_wide(16, 10, "s13", thrD, hooks={min(thrD, 16) - 1: lambda: a(BAR0)})
    a("s_waitcnt vmcnt(0)")
    tr_wide(192, 2)
    a(MKTAG)
    set_flag(F_WQD, "s7", 16, 17)
    a("s_branch L_getq")
    a("L_bar0:")
    if l2warm:
        a(f"""
        s_cmp_lg_u32 s7, 3
        s_cbranch_scc1 L_nowarm
        s_getpc_b64 s[12:13]
        L_pc:
        s_sub_u32 s12, s12, L_pc-{NAME}_kernel
        s_subb_u32 s13, s13, 0
        v_lshlrev_b32 v16, 7, v0
        s_mov_b32 s14, 0
        L_warm:
        v_cmp_gt_u32 vcc, L_end-{NAME}_kernel, v16
        s_and_saveexec_b64 s[46:47], vcc
        s_cbranch_execz L_warmd
        global_load_dword v17, v16, s[12:13]
        v_add_u32 v16, 0x2000, v16
        s_branch L_warm
        L_warmd:
        s_mov_b64 exec, -1
        L_nowarm:
        """)
    a(BAR0)
    a("s_waitcnt lgkmcnt(0)")
    a(MKTAG)
    a("L_getq:")
    def dryrun(n, cond):
        a(f"""
        s_cmp_lg_u32 s7, 1
        s_cbranch_scc1 L_nodry{n}
        {cond} s68, 4
        s_cbranch_scc1 L_nodry{n}
        s_waitcnt vmcnt(0)
        s_mov_b32 s0, 1
        s_mov_b32 s1, {TAG}
        s_mov_b32 {TAG}, 0
        s_mov_b32 s50, 0
        s_mov_b32 s44, 1
        v_mov_b32 v{PT}, {L_OP}
        s_branch L_facok
        L_afterdry{n}:
        s_mov_b32 s0, 0
        s_mov_b32 {TAG}, s1
        s_mov_b32 s50, {WS_SIZE}
        s_mov_b64 exec, -1
        s_waitcnt vmcnt(0) lgkmcnt(0)
        """)
        if n == 1: lane_consts()
        a(f"L_nodry{n}:")
    if dry: dryrun(1, "s_cmp_lt_u32")
    a("s_cmp_lg_u32 s7, 2\ns_cbranch_scc1 L_bar1")
    a(f"""
    v_bfe_u32 v{TA}, v0, 2, 3
    v_lshlrev_b32 v{TA}, 8, v{TA}
    v_and_b32 v{TB}, 3, v0
    v_lshl_add_u32 v{TA}, v{TB}, 4, v{TA}
    s_lshl_b32 s12, s4, 11
    s_lshl_b32 s13, s5, 6
    s_add_u32 s12, s12, s13
    s_add_u32 s12, s12, {WS_Q}
    v_and_b32 v{TB}, 31, v0
    v_lshlrev_b32 v{TB}, 3, v{TB}
    v_add_u32 v{TB}, {L_Q}, v{TB}
    """)
    if gq: wait_flags("L_g2", F_G2, 16, 4)
    poll("L_poll_q", [f"buffer_load_dwordx4 v[16:19], v{TA}, s[48:51], s12 offen sc1"], tags_words([17, 19]), sleep=slp)
    a(f"v_mov_b32 v17, v18\nds_write_b64 v{TB}, v[16:17]\ns_waitcnt lgkmcnt(0)")
    a("L_bar1:")
    a("s_barrier")
    if dbg: a("s_memrealtime s[98:99]")
    stamp(6)
    a(f"""
    s_getreg_b32 s62, hwreg(HW_REG_XCC_ID)
    s_cmp_lt_u32 s68, 4
    s_cbranch_scc1 L_noxcc
    s_cmp_lg_u32 s7, 1
    s_cbranch_scc1 L_noxcc
    v_mov_b32 v16, s62
    v_mov_b32 v17, {TAG}
    s_lshl_b32 s12, s69, 7
    s_add_u32 s12, s12, {WS_XCC}
    s_mov_b64 exec, 1
    buffer_store_dwordx2 v[16:17], v1, s[48:51], s12 offen sc1
    s_mov_b64 exec, -1
    L_noxcc:
    """)
    if tlb:
        a("s_cmp_lg_u32 s7, 3\ns_cbranch_scc1 L_notlb\ns_mov_b64 exec, 1")
        srd(8, P_V, 0x10000000)
        a("s_lshl_b32 s12, s15, 21\ns_lshl_b32 s13, s6, 20\ns_add_u32 s12, s12, s13\nbuffer_load_dword v16, v1, s[8:11], s12 offen nt")
        srd(8, P_OUT, 4096)
        a("buffer_load_dword v17, v1, s[8:11], 0 offen nt")
        a(f"s_mov_b32 s12, {WS_TM}\nbuffer_load_dword v18, v1, s[48:51], s12 offen offset:1024 nt")
        a("s_mov_b64 exec, -1\ns_waitcnt vmcnt(0)\nL_notlb:")
    def wait_row(lbl, g):
        spin_begin()
        a(f"v_mov_b32 v20, {L_FL+F_TT+16*g}")
        a(f"s_branch {lbl}_go\n{lbl}:")
        spin_check()
        a(f"""
        s_sleep 8
        {lbl}_go:
        ds_read_b128 v[16:19], v20
        s_waitcnt lgkmcnt(0)
        v_and_b32 v21, v16, v17
        v_and_b32 v22, v18, v19
        v_and_b32 v21, v21, v22
        v_readfirstlane_b32 s47, v21
        s_bitcmp1_b32 s47, 0
        s_cbranch_scc0 {lbl}
        """)
    def tm_publish(m, g):
        a(f"""
        s_lshr_b32 s12, s2, 5
        s_add_u32 s12, s12, s2
        s_lshr_b32 s14, s2, 3
        s_xor_b32 s12, s12, s14
        s_and_b32 s12, s12, 3
        s_lshr_b32 s14, s68, 2
        s_or_b32 s12, s12, s14
        s_or_b32 s12, s12, s7
        s_cbranch_scc1 L_tmp{m}
        """)
        wait_row(f"L_tr{m}", g)
        for k in range(4): a(f"v_subrev_u32 v{16+k}, s60, v{16+k}")
        a(f"""
        v_add3_u32 v16, v16, v17, v18
        v_add_u32 v16, v16, v19
        v_lshrrev_b32 v16, 2, v16
        v_add_u32 v16, s60, v16
        v_mov_b32 v17, {TAG}
        v_mov_b32 v18, s60
        v_mov_b32 v19, {TAG}
        s_lshr_b32 s12, s2, 5
        s_lshl_b32 s12, s12, 3
        s_and_b32 s14, s2, 7
        s_add_u32 s12, s12, s14
        s_mul_i32 s12, s12, {TMSTR}
        s_add_u32 s12, s12, {WS_TM + 128*m}
        s_mov_b64 exec, 1
        buffer_store_dwordx4 v[16:19], v1, s[48:51], s12 offen sc1
        s_mov_b64 exec, -1
        L_tmp{m}:
        """)
    import struct
    def fhex(v): return hex(struct.unpack("<I", struct.pack("<f", v))[0])
    def tm_gather(m, gate, p_m, mult):
        a(f"s_cmp_lg_u32 s7, 0\ns_cbranch_scc1 L_tmg{m}")
        wait_row(f"L_tg{m}", gate)
        a(f"""
        v_and_b32 v21, 7, v0
        v_lshrrev_b32 v20, 3, v0
        v_max_u32 v20, 1, v20
        v_cmp_eq_u32 vcc, 0, v21
        v_cndmask_b32 v20, 0, v20, vcc
        v_add_u32 v20, v20, v0
        v_mul_u32_u24 v20, {TMSTR}, v20
        s_mov_b32 s12, {WS_TM + 128*m}
        """)
        poll(f"L_poll_tm{m}", ["buffer_load_dwordx4 v[16:19], v20, s[48:51], s12 offen sc1"], tags_words([17, 19]), sleep=48)
        a("v_sub_u32 v18, v16, v18\nv_subrev_u32 v16, s60, v16")
        allreduce("v_add_u32", [16, 18], [17, 19])
        a("v_ashrrev_i32 v16, 6, v16\nv_lshrrev_b32 v18, 6, v18")
        if m > 1: a("v_subrev_u32 v18, s61, v16")
        a(f"""
        v_readfirstlane_b32 s61, v16
        {f"v_readfirstlane_b32 s{90+m}, v16" if dbg else ""}
        v_cvt_f32_u32 v18, v18
        v_mul_f32 v18, {fhex(mult)}, v18
        v_cvt_u32_f32 v17, v18
        v_mul_u32_u24 v18, {p_m}, v17
        v_lshrrev_b32 v18, 4, v18
        v_sub_u32 v16, v16, v18
        v_add_u32 v16, s60, v16
        s_cmp_ge_u32 s68, 4
        s_cselect_b32 s12, {early if 1 < m < 9 else 0}, 0
        v_subrev_u32 v16, s12, v16
        v_and_b32 v20, 3, v0
        v_lshlrev_b32 v20, 4, v20
        v_add_u32 v20, {L_FL+F_FAC+8}, v20
        ds_write_b64 v20, v[16:17]
        L_tmg{m}:
        """)
    wait_flags("L_wf", F_WF, 16, 4)
    srd(8, P_WO, 0 if 'w' in skip else 4096 * 1024)
    a("s_lshl_b32 s13, s4, 17\ns_lshl_b32 s12, s7, 8\ns_add_u32 s13, s13, s12")
    dma_wide(32, 10, "s13", thr, hooks={5: lambda: tm_publish(1, 0), 5 + 6*lagK: lambda: tm_gather(1, lagK, 0, 4*f1)})
    a("s_waitcnt vmcnt(0)")
    tr_wide(64, 4)
    if mk:
        tm_publish(9, mk)
        tm_gather(9, mk + 1, 4*mk, 4*fk/mk)
    a("s_cmp_lg_u32 s68, 2\ns_cbranch_scc1 L_noA2")
    gemv64(3, "a", thrA, False)
    a("L_noA2:")
    SB, TREG = [10, 11, 12, 13], [4, 5, 6, 14]
    RX, RGA, RGB = 2, 3, 15
    def ffn_cols(dst_tile, dst_sub):
        a(f"""
        v_lshrrev_b32 v{dst_tile}, 4, v0
        v_and_b32 v{dst_sub}, 3, v0
        v_lshl_add_u32 v{dst_tile}, v{dst_tile}, 2, v{dst_sub}
        v_bfe_u32 v{dst_sub}, v0, 2, 2
        """)
    a("s_cmp_lt_u32 s68, 4\ns_cbranch_scc1 L_nored1\ns_cmp_lg_u32 s68, 5\ns_cbranch_scc1 L_noffn1")
    srd(8, P_WG, 0 if 'f' in skip else 512 * 3584)
    RSF = 128 if contig else 3584
    a(f"s_lshl_b32 s13, s69, {16 if contig else 7}\ns_mul_i32 s12, s7, {128*RSF}\ns_add_u32 s46, s13, s12\ns_mov_b32 s13, s46\ns_lshl_b32 s14, s7, 15")
    dma_mid("s13", "s14", thrF, RSF)
    srd(8, P_WU, 0 if 'f' in skip else 512 * 3584)
    a("s_mov_b32 s13, s46\ns_add_u32 s14, s14, 0x4000")
    dma_mid("s13", "s14", thrF, RSF)
    a("L_noffn1:")
    a("L_nored1:")
    if dry: dryrun(2, "s_cmp_ge_u32")
    stamp(7)
    tm_publish(2, KL)
    a("s_cmp_lg_u32 s7, 0\ns_cbranch_scc1 L_nofac")
    wait_flags("L_kd", F_KD, 16, 16)
    q4 = ("quad_perm:[1,0,3,2]", "quad_perm:[2,3,0,1]")
    a(f"""
    v_and_b32 v{TA}, 3, v0
    v_lshlrev_b32 v{TA}, 4, v{TA}
    v_add_u32 v{TA}, {L_FL}, v{TA}
    ds_read_b64 v[24:25], v{TA} offset:{F_ST}
    s_waitcnt lgkmcnt(0)
    v_mov_b32 v28, v24
    """)
    allreduce("v_max_f32", [28], [], rows_only=True, steps=q4)
    a(f"v_sub_f32 v30, v24, v28\nv_mul_f32 v30, {LOG2E}, v30\nv_exp_f32 v30, v30\nv_mul_f32 v30, v25, v30")
    allreduce("v_add_f32", [30], [], rows_only=True, steps=q4)
    a(f"""
    v_mov_b32 v29, {TAG}
    v_mov_b32 v31, {TAG}
    s_lshl_b32 s13, s15, 7
    s_add_u32 s13, s13, {WS_STATS}
    s_lshl_b32 s12, s6, 4
    s_add_u32 s14, s13, s12
    s_xor_b32 s12, s12, 16
    s_add_u32 s13, s13, s12
    s_mov_b64 exec, 1
    buffer_store_dwordx4 v[28:31], v1, s[48:51], s14 offen sc1
    s_mov_b64 exec, -1
    """)
    tm_gather(2, KL + lagV, 4*KL, 4*f2/(KL - mk))
    a(f"v_mov_b32 v{TB}, 0")
    poll("L_poll_st", [f"buffer_load_dwordx4 v[16:19], v{TB}, s[48:51], s13 offen sc1"], tags_words([17, 19]), sleep=32)
    a(f"""
    v_max_f32 v17, v16, v28
    v_sub_f32 v16, v16, v17
    v_sub_f32 v28, v28, v17
    v_sub_f32 v24, v24, v17
    v_mul_f32 v16, {LOG2E}, v16
    v_mul_f32 v28, {LOG2E}, v28
    v_mul_f32 v24, {LOG2E}, v24
    v_exp_f32 v16, v16
    v_exp_f32 v28, v28
    v_exp_f32 v24, v24
    v_mul_f32 v16, v16, v18
    v_fmac_f32 v16, v28, v30
    v_rcp_f32 v16, v16
    v_mov_b32 v25, 1
    v_mul_f32 v24, v24, v16
    ds_write_b64 v{TA}, v[24:25] offset:{F_FAC}
    """)
    a("L_nofac:")
    a("s_cmp_lt_u32 s68, 4\ns_cbranch_scc1 L_nored2")
    wait_row("L_kd2", KL + 1)
    a("s_cmp_lg_u32 s68, 5\ns_cbranch_scc1 L_noffn2")
    ffn_cols(TA, TB)
    a(f"""
    v_lshlrev_b32 v{TA}, 8, v{TA}
    v_lshl_add_u32 v{TA}, v{TB}, 4, v{TA}
    s_lshl_b32 s12, s7, 6
    s_add_u32 s12, s12, {WS_MOD + 96*256}
    s_add_u32 s13, s12, 0x1000
    s_add_u32 s14, s12, 0x2000
    s_add_u32 s46, s12, 0x3000
    """)
    poll("L_poll_sb", [f"buffer_load_dwordx4 v[{16+4*i}:{19+4*i}], v{TA}, s[48:51], {sr} offen sc1" for i, sr in enumerate(["s12", "s13", "s14", "s46"])],
         tags_words([17 + 2*k for k in range(8)]), sleep=16)
    for k in range(4):
        a(f"v_mov_b32 v{SB[k]}, v{16+2*k}")
        unpack(32, 33, 24 + 2*k)
        a(f"v_add_f32 v32, 1.0, v32\nv_add_f32 v33, 1.0, v33\nv_cvt_pk_bf16_f32 v{TREG[k]}, v32, v33")
    a("L_noffn2:")
    srd(52, P_X, 4096)
    a(f"""
    v_bfe_u32 v{TA}, v0, 2, 2
    v_and_b32 v{TB}, 3, v0
    v_lshlrev_b32 v{TC}, 5, v{TA}
    v_lshl_add_u32 v{TC}, v{TB}, 1, v{TC}
    s_lshl_b32 s71, s69, 7
    s_lshl_b32 s12, s7, 3
    s_add_u32 s71, s71, s12
    buffer_load_ushort v{RX}, v{TC}, s[52:55], s71 offen
    v_lshlrev_b32 v{TA}, 8, v{TA}
    v_lshrrev_b32 v{TC}, 1, v{TB}
    v_lshl_add_u32 v{TA}, v{TC}, 3, v{TA}
    s_and_b32 s12, s69, 7
    s_lshl_b32 s12, s12, 10
    s_lshl_b32 s13, s7, 4
    s_add_u32 s12, s12, s13
    s_lshr_b32 s13, s69, 3
    s_lshl_b32 s13, s13, 6
    s_add_u32 s12, s12, s13
    s_add_u32 s13, s12, {WS_MOD + 160*256}
    s_add_u32 s12, s12, {WS_MOD + 64*256}
    """)
    poll("L_poll_ga", [f"buffer_load_dwordx2 v[16:17], v{TA}, s[48:51], s12 offen sc1", f"buffer_load_dwordx2 v[18:19], v{TA}, s[48:51], s13 offen sc1"],
         tags_words([17, 19]), sleep=16)
    a(f"v_and_b32 v{TB}, 1, v0\nv_cmp_eq_u32 vcc, 1, v{TB}")
    for k, r in enumerate([RGA, RGB]):
        unpack(24, 25, 16 + 2*k)
        a(f"v_cndmask_b32 v{r}, v24, v25, vcc")
    a(f"v_lshlrev_b32 v{RX}, 16, v{RX}")
    a(f"v_and_b32 v{TA}, 31, v0\nv_lshlrev_b32 v{TA}, 7, v{TA}\ns_mov_b32 s12, {WS_XCC}")
    poll("L_poll_xcc", [f"buffer_load_dwordx2 v[16:17], v{TA}, s[48:51], s12 offen sc1"], tags_words([17]), sleep=16)
    a(f"v_cmp_eq_u32 vcc, s62, v16\ns_cmp_eq_u64 vcc, exec\ns_cselect_b32 s44, {1 if fast else 0}, 0")
    a("L_nored2:")
    prevp = 4 * KL
    def milestones(lst):
        nonlocal prevp
        for i, mv in lst:
            p_ = 4 * (KL + mv) + E // 4
            tm_publish(3 + i, KL + mv)
            tm_gather(3 + i, KL + mv + lag3, p_, 16 * f3 / (p_ - prevp))
            prevp = p_
    MS = list(enumerate(ms))
    if touchp:
        wait_row("L_tchp", KL + touchp)
        a(f"""
        s_lshl_b32 s12, s15, 1
        s_add_u32 s12, s12, s6
        s_lshl_b32 s12, s12, 11
        s_lshl_b32 s13, s7, 9
        s_add_u32 s12, s12, s13
        s_add_u32 s12, s12, {WS_PART1}
        s_mov_b32 exec_hi, 0
        buffer_load_dwordx4 v[24:27], v1, s[48:51], s12 offen sc1
        s_mov_b64 exec, -1
        s_waitcnt vmcnt(0)
        """)
    milestones([x for x in MS if x[1] + lag3 <= touch])
    if touch:
        a("s_cmp_lt_u32 s68, 4\ns_cbranch_scc1 L_notouch")
        wait_row("L_tch", KL + touch)
        a(f"""
        v_lshrrev_b32 v{TA}, 2, v0
        v_and_b32 v{TB}, 3, v0
        v_lshlrev_b32 v{TC}, 13, v{TA}
        v_lshl_add_u32 v{TC}, v{TB}, 4, v{TC}
        v_lshlrev_b32 v{TA}, 11, v{TA}
        v_lshl_add_u32 v{TA}, v{TB}, 4, v{TA}
        s_lshl_b32 s12, s7, 11
        s_add_u32 s12, s12, {WS_X1}
        buffer_load_dwordx4 v[16:19], v1, s[48:51], s12 offen sc1
        buffer_load_dwordx4 v[20:23], v1, s[48:51], s12 offen offset:1024 sc1
        s_lshl_b32 s12, s69, 8
        s_lshl_b32 s13, s7, 6
        s_add_u32 s12, s12, s13
        s_add_u32 s12, s12, {WS_PART2}
        s_add_u32 s13, s12, 0x20000
        buffer_load_dwordx4 v[24:27], v{TC}, s[48:51], s12 offen sc1
        buffer_load_dwordx4 v[28:31], v{TC}, s[48:51], s13 offen sc1
        """)
        if touch1:
            a(f"""
            s_and_b32 s12, s69, 7
            s_lshl_b32 s12, s12, 8
            s_lshl_b32 s13, s7, 6
            s_add_u32 s12, s12, s13
            s_lshr_b32 s13, s69, 3
            s_lshl_b32 s13, s13, 17
            s_add_u32 s12, s12, s13
            s_add_u32 s12, s12, {WS_PART1}
            """)
            for i in range(4):
                a(f"buffer_load_dwordx4 v[{32+4*i}:{35+4*i}], v{TA}, s[48:51], s12 offen sc1\ns_add_u32 s12, s12, 0x8000")
        a("s_waitcnt vmcnt(0)\nL_notouch:")
    milestones([x for x in MS if x[1] + lag3 > touch])
    AF, DD = 16, 32
    bn = {"n": 0}
    def barrier():
        if not dry: a("s_barrier"); return
        bn["n"] += 1
        a(f"s_cmp_eq_u32 s0, 1\ns_cbranch_scc1 L_nb{bn['n']}\ns_barrier\nL_nb{bn['n']}:")
    a(f"""
    L_tail0:
    s_mov_b64 exec, -1
    s_waitcnt vmcnt(0) lgkmcnt(0)
    v_bfe_u32 v{TB}, v0, 1, 2
    v_mul_u32_u24 v{TB}, {OP_STRIDE}, v{TB}
    v_lshrrev_b32 v{TA}, 4, v0
    v_lshl_add_u32 v{TB}, v{TA}, 4, v{TB}
    v_and_b32 v{TA}, 1, v0
    v_lshl_add_u32 v{TB}, v{TA}, 7, v{TB}
    v_add_u32 v{TB}, {L_OP}, v{TB}
    v_mul_u32_u24 v{TA}, 0xaaaa, v{TA}
    v_add_u32 v{TA}, 0x4444, v{TA}
    s_lshl_b32 s12, s15, 1
    s_add_u32 s12, s12, s6
    s_lshl_b32 s12, s12, 11
    s_lshl_b32 s13, s7, 9
    s_add_u32 s12, s12, s13
    s_add_u32 s12, s12, {WS_PART1}
    s_and_b32 s18, {TAG}, 0xff
    s_bfe_u32 s19, {TAG}, 0x80008
    s_bfe_u32 s20, {TAG}, 0x80010
    s_lshr_b32 s21, {TAG}, 24
    v_mov_b32 v{TC}, 0xffffff00
    """)
    for i in range(32): a(f"v_mov_b32 v{DD+i}, 0")
    stamp(8)
    barrier()
    if dbg: a("s_memrealtime s[96:97]")
    stamp(9)
    for s in range(2): a(f"ds_read_b128 v[{AF+4*s}:{AF+4*s+3}], v{TB} offset:{64*s}")
    a("s_waitcnt lgkmcnt(0)")
    def smf(d, af, b, ix): a(f"v_smfmac_f32_16x16x64_bf16 v[{d}:{d+3}], v[{af}:{af+3}], v[{b}:{b+7}], v{ix}")
    order = [0, 4, 1, 5, 2, 6, 3, 7]
    OQ = 24
    work = []
    def fin(t):
        d = DD + 4*t
        w_ = [f"v_pk_add_f32 v[{d}:{d+1}], v[{d}:{d+1}], v[{d+2}:{d+3}]", f"v_add_f32 v{d}, v{d}, v{d+1}"]
        return w_
    def fin2(k):
        x, y = DD + 4*k, DD + 4*(k+4)
        return [f"v_permlane16_swap_b32 v{x}, v{y}", f"v_add_f32 v{OQ+k}, v{x}, v{y}", f"v_and_or_b32 v{OQ+k}, v{OQ+k}, v{TC}, s{18+k}"]
    for i, t in enumerate(order):
        if i >= 3: work += fin(order[i-3])
        if i >= 5 and (i - 5) % 2 == 0: work += fin2((i - 5) // 2)
        for sx in range(2):
            smf(DD + 4*t, AF + 4*sx, 64 + (t*4 + 2*sx)*4, TA)
            for _ in range(2):
                if work: a(work.pop(0))
    work += fin(order[5]) + fin(order[6]) + fin2(2) + fin(order[7]) + fin2(3)
    for w_ in work: a(w_)
    a(f"s_mov_b32 exec_hi, 0\nbuffer_store_dwordx4 v[{OQ}:{OQ+3}], v1, s[48:51], s12 offen sc1\ns_mov_b64 exec, -1")
    stamp(10)
    a("s_cmp_lt_u32 s68, 4\ns_cbranch_scc1 L_hend\ns_cmp_lg_u32 s68, 5\ns_cbranch_scc1 L_noffn3")
    SC8, SH8 = 48, 56
    HW_, HF_, GF_, GW_, PO_, MS_ = 10, 11, 12, 13, 4, 5
    mid_bases()
    tr_mid(64, 0)
    tr_mid(128, 0x4000)
    for k in range(4): unpack(SC8 + 2*k, SC8 + 2*k + 1, TREG[k])
    for k in range(4): unpack(SH8 + 2*k, SH8 + 2*k + 1, SB[k])
    IX_ = 6
    act_addr(HF_, "hi", TB)
    ffn_cols(TA, TB)
    a(f"""
    v_lshlrev_b32 v{HW_}, 4, v{TA}
    v_lshl_add_u32 v{HW_}, v{TB}, 2, v{HW_}
    s_mul_i32 s13, s7, {ACT_STRIDE}
    s_add_u32 s13, s13, {L_ACT}
    v_add_u32 v{HW_}, s13, v{HW_}
    v_mul_u32_u24 v{GF_}, {GB_STRIDE}, v{TB}
    v_lshlrev_b32 v{GW_}, 2, v{TB}
    v_and_b32 v{IX_}, 1, v0
    v_lshl_add_u32 v{HF_}, v{IX_}, 9, v{HF_}
    v_lshl_add_u32 v{GF_}, v{IX_}, 6, v{GF_}
    v_lshl_add_u32 v{GW_}, v{IX_}, 1, v{GW_}
    v_mul_u32_u24 v{IX_}, 0xaaaa, v{IX_}
    v_add_u32 v{IX_}, 0x4444, v{IX_}
    v_bfe_u32 v{TB}, v0, 1, 1
    v_lshl_add_u32 v{GW_}, v{TB}, 6, v{GW_}
    v_lshrrev_b32 v{TB}, 4, v0
    v_lshl_add_u32 v{GF_}, v{TB}, 4, v{GF_}
    v_add_u32 v{GF_}, {L_GB}, v{GF_}
    v_mul_u32_u24 v{TA}, {GB_STRIDE}, v{TB}
    s_lshl_b32 s13, s7, 4
    s_add_u32 s13, s13, {L_GB}
    v_add3_u32 v{GW_}, v{GW_}, v{TA}, s13
    v_and_b32 v{TA}, 15, v0
    v_lshlrev_b32 v{TB}, 11, v{TB}
    v_lshl_add_u32 v{PO_}, v{TA}, 4, v{TB}
    v_mov_b32 v{MS_}, 0xffffff00
    """)
    a("L_noffn3:")
    a(f"""
    v_lshrrev_b32 v{TA}, 2, v0
    v_and_b32 v{TB}, 3, v0
    v_lshlrev_b32 v{TC}, 13, v{TA}
    v_lshlrev_b32 v{TA}, 11, v{TA}
    v_lshl_add_u32 v{TA}, v{TB}, 4, v{TA}
    v_lshl_add_u32 v{TC}, v{TB}, 4, v{TC}
    v_lshlrev_b32 v{TB}, 2, v0
    s_and_b32 s12, s69, 7
    s_lshl_b32 s12, s12, 8
    s_lshl_b32 s13, s7, 6
    s_add_u32 s12, s12, s13
    s_lshr_b32 s13, s69, 3
    s_lshl_b32 s14, s13, 11
    s_add_u32 s22, s12, s14
    s_lshl_b32 s13, s13, 17
    s_add_u32 s12, s12, s13
    s_add_u32 s12, s12, {WS_PART1}
    s_add_u32 s13, s12, 0x8000
    s_add_u32 s14, s12, 0x10000
    s_add_u32 s67, s12, 0x18000
    s_add_u32 s23, s22, {WS_X1}
    v_mov_b32 v41, {TAG}
    v_mov_b32 v43, {TAG}
    """)
    if pwait: a(f"s_sleep {pwait}")
    if not mpoll:
        poll("L_poll_p1", [f"buffer_load_dwordx4 v[{16+4*i}:{19+4*i}], v{TA}, s[48:51], {sr} offen sc1" for i, sr in enumerate(["s12", "s13", "s14", "s67"])],
             tags_bytes([16, 20, 24, 28], 32))
    else:
        MK_ = [26, 32, 40, 42]
        for mreg in MK_: a(f"s_mov_b64 s[{mreg}:{mreg+1}], -1")
        spin_begin()
        a("L_poll_p1:")
        spin_check()
        for i, sr in enumerate(["s12", "s13", "s14", "s67"]):
            a(f"s_mov_b64 exec, s[{MK_[i]}:{MK_[i]+1}]\ns_cbranch_execz L_p1s{i}\nbuffer_load_dwordx4 v[{16+4*i}:{19+4*i}], v{TA}, s[48:51], {sr} offen sc1\nL_p1s{i}:")
        a("s_mov_b64 exec, -1")
        if trlate: trl()
        a("s_waitcnt vmcnt(0)")
        for i in range(4):
            q = 16 + 4*i
            a(f"v_perm_b32 v{32+2*i}, v{q+1}, v{q}, s58\nv_perm_b32 v{33+2*i}, v{q+3}, v{q+2}, s59")
        for i in range(4): a(f"v_or_b32 v{32+2*i}, v{32+2*i}, v{33+2*i}")
        for i in range(4): a(f"v_cmp_ne_u32 s[{MK_[i]}:{MK_[i]+1}], {TAG}, v{32+2*i}")
        a("s_or_b64 s[46:47], s[26:27], s[32:33]\ns_or_b64 s[56:57], s[40:41], s[42:43]\ns_or_b64 s[46:47], s[46:47], s[56:57]\ns_cbranch_scc1 L_poll_p1")
    stamp(11)
    def colsum(n):
        st_ = 1
        while st_ < n:
            for i in range(0, n, 2*st_):
                for k in range(4): a(f"v_add_f32 v{16+4*i+k}, v{16+4*i+k}, v{16+4*(i+st_)+k}")
            st_ *= 2
        a("""
        v_add_f32_dpp v20, v16, v16 row_ror:8 row_mask:0xf bank_mask:0x3
        v_add_f32_dpp v21, v17, v17 row_ror:8 row_mask:0xf bank_mask:0x3
        v_add_f32_dpp v20, v18, v18 row_ror:8 row_mask:0xf bank_mask:0xc
        v_add_f32_dpp v21, v19, v19 row_ror:8 row_mask:0xf bank_mask:0xc
        v_add_f32_dpp v16, v20, v20 row_shl:4 row_mask:0xf bank_mask:0x5
        v_add_f32_dpp v16, v21, v21 row_shr:4 row_mask:0xf bank_mask:0xa
        """)
        allreduce("v_add_f32", [16], [17], steps=())
    def resid(gate):
        bf16r(16, 16)
        a(f"v_mul_f32 v16, v16, v{gate}")
        bf16r(16, 16)
        a(f"v_add_f32 v16, v16, v{RX}")
    colsum(4)
    resid(RGA)
    a(f"""
    v_mov_b32_dpp v17, v16 quad_perm:[1,1,1,1] {FULL}
    v_mov_b32_dpp v18, v16 quad_perm:[2,2,2,2] {FULL}
    v_mov_b32_dpp v19, v16 quad_perm:[3,3,3,3] {FULL}
    v_cvt_pk_bf16_f32 v40, v16, v17
    v_cvt_pk_bf16_f32 v42, v18, v19
    s_mov_b64 exec, 0x1111
    """)
    def hstore(lbl, stores):
        a(f"s_cmp_eq_u32 s44, 1\ns_cbranch_scc0 {lbl}_s")
        for st_ in stores: a(f"{st_} {fpol}")
        a(f"s_branch {lbl}_e\n{lbl}_s:")
        for st_ in stores: a(f"{st_} sc1")
        a(f"{lbl}_e:")
    hstore("L_sx1", [f"buffer_store_dwordx4 v[40:43], v{TB}, s[48:51], s23 offen"])
    a("s_mov_b64 exec, -1")
    stamp(12)
    bf16r(RX, 16)
    a("s_cmp_lg_u32 s68, 5\ns_cbranch_scc1 L_red2")
    a(f"""
    s_lshl_b32 s12, s7, 11
    s_add_u32 s12, s12, {WS_X1}
    s_lshl_b32 s13, s69, 13
    s_lshl_b32 s14, s7, 9
    s_add_u32 s13, s13, s14
    s_add_u32 s23, s13, {WS_PART2}
    """)
    poll("L_poll_x1", ["buffer_load_dwordx4 v[16:19], v1, s[48:51], s12 offen sc1", "buffer_load_dwordx4 v[20:23], v1, s[48:51], s12 offen offset:1024 sc1"],
         tags_xor([17, 19, 21, 23], 24))
    stamp(1)
    X2, S2 = 24, 32
    for k in range(4): unpack(X2 + 2*k, X2 + 2*k + 1, 16 + 2*k)
    ln_norm(X2, S2)
    ln_affine(X2, SC8, SH8, 16)
    G, U, GT = 56, 60, 14
    a(f"ds_write2_b32 v{HW_}, v16, v17 offset0:0 offset1:128\nds_write2_b32 v{HW_}, v18, v19 offset0:64 offset1:192")
    for i in range(8): a(f"v_mov_b32 v{G+i}, 0")
    a("s_waitcnt lgkmcnt(0)")
    barrier()
    for k in range(8): a(f"ds_read_b128 v[{16+4*k}:{19+4*k}], v{HF_} offset:{k*64}")
    for k in range(8):
        a(f"s_waitcnt lgkmcnt({7-k})")
        smf(G, 16 + 4*k, 64 + 8*k, IX_)
    DZ = 64
    gelu = [f"v_add_f32 v{G}, v{G}, v{G+1}", f"v_cvt_pk_bf16_f32 v{G}, 0, v{G}", f"v_mul_f32 v{GT}, v{G}, v{G}", f"v_mul_f32 v{GT}, 0x3d372713, v{GT}",
            f"v_fma_f32 v{GT}, v{GT}, v{G}, v{G}", f"v_mul_f32 v{GT}, 0x40135761, v{GT}", f"v_exp_f32 v{GT}, -v{GT}",
            f"v_add_f32 v{GT}, 1.0, v{GT}", f"v_rcp_f32 v{GT}, v{GT}", f"v_mul_f32 v{GT}, v{GT}, v{G}", f"v_cvt_pk_bf16_f32 v{GT}, 0, v{GT}"]
    zero = [f"v_mov_b32 v{DZ+4*t+r}, 0" for t in range(8) for r in range(2)]
    for k in range(8):
        smf(U, 16 + 4*k, 128 + 8*k, IX_)
        if k < 3:
            for _ in range(2): a(zero.pop(0))
        else:
            a(gelu.pop(0)); a(gelu.pop(0))
    while gelu: a(gelu.pop(0))
    a(f"v_add_f32 v{U}, v{U}, v{U+1}")
    bf16r(U, U)
    a(f"""
    v_mul_f32 v{GT}, v{GT}, v{U}
    v_cvt_pk_bf16_f32 v{GT}, v{GT}, v{GT}
    ds_write_b16 v{GW_}, v{GT}
    """)
    while zero: a(zero.pop(0))
    a("s_waitcnt lgkmcnt(0)")
    barrier()
    a(f"""
    ds_read_b128 v[{AF}:{AF+3}], v{GF_}
    s_waitcnt lgkmcnt(0)
    """)
    assert not zero
    fw = []
    for t in range(8):
        smf(DZ + 4*t, AF, 192 + 8*t, IX_)
        if t >= 4:
            tt = t - 4
            a(f"v_add_f32 v{24+tt}, v{DZ+4*tt}, v{DZ+4*tt+1}")
            a(f"v_and_or_b32 v{24+tt}, v{24+tt}, v{MS_}, s{18+(tt&3)}")
    for tt in range(4, 8):
        a(f"v_add_f32 v{24+tt}, v{DZ+4*tt}, v{DZ+4*tt+1}")
        a(f"v_and_or_b32 v{24+tt}, v{24+tt}, v{MS_}, s{18+(tt&3)}")
    hstore("L_sp2", [f"buffer_store_dwordx4 v[{24+4*g}:{27+4*g}], v{PO_}, s[48:51], s23 offen offset:{256*g}" for g in range(2)])
    stamp(2)
    a("L_red2:")
    a(f"""
    s_add_u32 s12, s22, {WS_PART2}
    s_add_u32 s13, s12, 0x20000
    v_mov_b32 v20, s18
    v_mov_b32 v21, s19
    v_mov_b32 v22, s20
    v_mov_b32 v23, s21
    v_bfe_u32 v{TA}, v0, 2, 2
    v_and_b32 v{TB}, 3, v0
    v_lshlrev_b32 v{TA}, 5, v{TA}
    v_lshl_add_u32 v{TA}, v{TB}, 1, v{TA}
    """)
    srd(52, P_OUT, 4096)
    if dry: a("s_cmp_eq_u32 s0, 1\ns_cselect_b32 s54, 0, s54")
    poll("L_poll_p2", [f"buffer_load_dwordx4 v[16:19], v{TC}, s[48:51], s12 offen sc1", "s_mov_b32 exec_hi, 0xffff",
                       f"buffer_load_dwordx4 v[20:23], v{TC}, s[48:51], s13 offen sc1"],
         tags_bytes([16, 20], 32), post="s_mov_b64 exec, -1")
    stamp(13)
    colsum(2)
    resid(RGB)
    a(f"""
    v_cvt_pk_bf16_f32 v16, v16, v16
    s_mov_b64 exec, 0xffff
    buffer_store_short v16, v{TA}, s[52:55], s71 offen
    s_or_b32 s12, s2, s7
    s_cbranch_scc1 L_hend
    s_mov_b64 exec, 1
    v_mov_b32 v17, {TAG}
    v_mov_b32 v18, 0
    buffer_store_dword v17, v18, s[48:51], 0 offen sc1
    """)
    if dbg:
        a("s_cmp_eq_u32 s0, 1\ns_cbranch_scc1 L_hend\ns_memrealtime s[94:95]\ns_waitcnt lgkmcnt(0)\ns_sub_u32 s94, s94, s60\ns_sub_u32 s96, s96, s60\ns_sub_u32 s98, s98, s60")
        srd(8, 40, 256)
        for i, r in enumerate([98, 91, 92, 93, 96, 94]):
            a(f"v_mov_b32 v17, s{r}\nbuffer_store_dword v17, v18, s[8:11], 0 offen offset:{4*i}")
    if pad:
        a(f"s_cmp_eq_u32 s0, 1\ns_cbranch_scc1 L_hend\nL_pad:\ns_memrealtime s[94:95]\ns_waitcnt lgkmcnt(0)\ns_sub_u32 s94, s94, s60\ns_cmp_lt_u32 s94, {pad}\ns_cbranch_scc1 L_pad")
    a("L_hend:")
    if dry: a("s_cmp_eq_u32 s0, 1\ns_cbranch_scc0 L_fin\ns_cmp_ge_u32 s68, 4\ns_cbranch_scc1 L_afterdry1\ns_branch L_afterdry2\nL_fin:")
    stamp(14)
    dump_stamps(15)
    a("L_end:")
    a("s_endpgm")
    a('.section .rodata,"a"')
    a(".p2align 6")
    a(f".amdhsa_kernel {NAME}_kernel")
    a("""
    .amdhsa_next_free_vgpr 256
    .amdhsa_next_free_sgpr 102
    .amdhsa_accum_offset 256
    .amdhsa_group_segment_fixed_size 0
    .amdhsa_kernarg_size 112
    .amdhsa_user_sgpr_count 2
    .amdhsa_user_sgpr_kernarg_segment_ptr 1
    .amdhsa_system_sgpr_workgroup_id_x 1
    .amdhsa_float_denorm_mode_32 3
    .end_amdhsa_kernel
    """)
    return out + a.text()

if __name__ == "__main__":
    kw = eval("dict(" + (sys.argv[2] if len(sys.argv) > 2 else "") + ")")
    open(sys.argv[1], "w").write(gen(**kw))
```

```python
import sys
from asmlib import Asm

NAME = "adaLN_cond__mha_block_cached__geglu_ffn__decode"
WS_MOD = 0x1000
WS_Q = 0x10000
WS_STATS = 0x20000
WS_X1 = 0x28000
WS_PART2 = 0x40000
WS_PART1 = 0x80000
WS_FAST = 0
WS_XCC = 0x30000
WS_TM, TMSTR = 0x280000, 4352
WS_DBG, WS_SIZE = 0x200000, 0x400000
L_W, L_ACT, L_Q, L_OP, L_GB, L_FL = 0, 0x20000, 0x21200, 0x21400, 0x21A00, 0x21E00
ACT_STRIDE, OP_STRIDE, GB_STRIDE = 1088, 320, 192
LDS_BYTES = 0x22200
F_FAC, F_KD, F_WF, F_WQ, F_WQD, F_H, F_G1, F_G2, F_ST, F_TT = 0, 64, 80, 96, 112, 128, 144, 160, 192, 256
NFFN = 28
SPIN_MAX = 400000
P_X, P_K, P_V, P_WQ, P_WO, P_WG, P_WU, P_WD, P_C, P_WM, P_OUT, P_WS = 16, 18, 20, 22, 24, 28, 30, 32, 34, 36, 38, 42
TAG = "s45"
LOG2E, SCALE, HIMASK = "s64", "s65", "s66"

def gen(D=5, A=8, E=4, P=48, PL=32, DP=5, D2=7, NE=1, thr=2, thrA=2, thrF=3, thrQ=4, thrD=3, slp=16, diag=False,
        levels=((4,-50),(5,30),(6,100),(7,None)), f1=0.147, f2=0.965, f3=0.985, ms=(4, 8, 12), lagK=2, lagV=1, lag3=1, early=30, D0=None, N0=0, gq=40, gm=20,
        kctl=True, fast=True, fpol='', touch=10, touch1=False, touchp=0, pwait=0, contig=False, mk=5, fk=0.97, nb0=8, mpoll=False, trlate=False, ilv=False, diag2=False, fa_at=13, wpol='nt', noround=0, J=80, up=1.03, eth=45, boost=0.92, dry=True, lastctl=True, tlb=True, dbg=False, pad=0, l2warm=True, skip=''):
    a = Asm()
    def stamp(k):
        if diag: a(f"s_memrealtime s[{72+2*k}:{73+2*k}]")
    def srd(reg, ptr, nbytes):
        a(f"s_mov_b32 s{reg}, s{ptr}\ns_mov_b32 s{reg+1}, s{ptr+1}\ns_mov_b32 s{reg+2}, {nbytes}\ns_mov_b32 s{reg+3}, 0x20000")
    def dump_stamps(n):
        if not diag: return
        a("s_waitcnt lgkmcnt(0)")
        a("s_mov_b64 exec, 1")
        a("s_lshl_b32 s46, s2, 3\ns_add_u32 s46, s46, s3\ns_lshl_b32 s46, s46, 6")
        a(f"s_add_u32 s46, s46, {WS_DBG}")
        a("v_mov_b32 v1, 0")
        for k in range(n):
            a(f"v_mov_b32 v2, s{72+2*k}")
            a(f"buffer_store_dword v2, v1, s[48:51], s46 offen offset:{4*k}")
    FULL = "row_mask:0xf bank_mask:0xf"
    def allreduce(op, rs, tmps, rows_only=False, steps=("quad_perm:[1,0,3,2]", "quad_perm:[2,3,0,1]", "row_half_mirror", "row_mirror")):
        for st in steps:
            for r in rs: a(f"{op}_dpp v{r}, v{r}, v{r} {st} {FULL}")
        if rows_only: return
        for sw in ("v_permlane16_swap_b32", "v_permlane32_swap_b32"):
            for r, t in zip(rs, tmps): a(f"v_mov_b32 v{t}, v{r}")
            for r, t in zip(rs, tmps): a(f"{sw} v{r}, v{t}")
            for r, t in zip(rs, tmps): a(f"{op} v{r}, v{r}, v{t}")
    def bf16r(d, s):
        a(f"v_cvt_pk_bf16_f32 v{d}, 0, v{s}")
    def bf16r2(lo, hi, t):
        a(f"v_cvt_pk_bf16_f32 v{t}, v{lo}, v{hi}\nv_lshlrev_b32 v{lo}, 16, v{t}\nv_and_b32 v{hi}, {HIMASK}, v{t}")
    def unpack(lo, hi, s):
        a(f"v_lshlrev_b32 v{lo}, 16, v{s}\nv_and_b32 v{hi}, {HIMASK}, v{s}")
    def spin_begin(): a("s_mov_b32 s70, 0")
    def spin_check(): a(f"s_add_u32 s70, s70, 1\ns_cmp_gt_u32 s70, {SPIN_MAX}\ns_cbranch_scc1 L_end")
    MKTAG = "s_mul_i32 s45, s44, 1664525\ns_add_u32 s45, s45, 1013904223"
    BAR0 = "s_load_dword s44, s[42:43], 0\ns_barrier"
    def set_flag(row, widx, va, vb):
        a(f"s_lshl_b32 s47, {widx}, 2\ns_add_u32 s47, s47, {L_FL+row}\nv_mov_b32 v{va}, s47\nv_mov_b32 v{vb}, 1\nds_write_b32 v{va}, v{vb}")
    def wait_flags(lbl, row, t, sleep):
        spin_begin()
        a(f"v_mov_b32 v{t+4}, {L_FL+row}")
        a(f"{lbl}:")
        spin_check()
        if sleep: a(f"s_sleep {sleep}")
        a(f"""
        ds_read_b128 v[{t}:{t+3}], v{t+4}
        s_waitcnt lgkmcnt(0)
        v_and_b32 v{t}, v{t}, v{t+1}
        v_and_b32 v{t+2}, v{t+2}, v{t+3}
        v_and_b32 v{t}, v{t}, v{t+2}
        v_readfirstlane_b32 s47, v{t}
        s_cmp_eq_u32 s47, 1
        s_cbranch_scc0 {lbl}
        """)

    hdr = open("cdna_kernels/" + NAME + ".s.ref").read().split("; Override launch")[0]
    out = hdr + f"; @launch grid=(256,1,1) block=(512,1,1) lds={LDS_BYTES}\n"
    a('.amdgcn_target "amdgcn-amd-amdhsa--gfx950"')
    a(".text")
    a(f".globl {NAME}_kernel")
    a(".p2align 8")
    a(f".type {NAME}_kernel,@function")
    a(f"{NAME}_kernel:")
    a("""
    s_cmp_ge_u32 s2, 256
    s_cbranch_scc1 L_end
    s_load_dwordx16 s[16:31], s[0:1], 0
    s_load_dwordx8 s[32:39], s[0:1], 64
    s_load_dwordx4 s[40:43], s[0:1], 96
    """)
    if diag:
        for k in range(1, 15): a(f"s_mov_b32 s{72+2*k}, 0")
    stamp(0)
    a("""
    v_lshrrev_b32 v1, 6, v0
    v_and_b32 v0, 63, v0
    v_readfirstlane_b32 s3, v1
    v_lshlrev_b32 v1, 4, v0
    s_lshr_b32 s12, s2, 3
    s_and_b32 s4, s12, 3
    s_lshl_b32 s4, s4, 3
    s_and_b32 s13, s2, 7
    s_add_u32 s4, s4, s13
    s_bfe_u32 s5, s12, 0x20002
    s_lshr_b32 s6, s12, 4
    s_mov_b32 s64, 0x3fb8aa3b
    s_mov_b32 s65, 0x3db504f3
    s_mov_b32 s66, 0xffff0000
    s_lshl_b32 s15, s5, 5
    s_add_u32 s15, s15, s4
    s_cmp_ge_u32 s3, 4
    s_cbranch_scc1 L_helper
    """)

    Q, MK, BB, ACC, PT, XX, YY, T0, T1, SC, RING = 2, 6, 10, 14, 18, 34, 42, 46, 47, 48, 64
    a(f"""
    s_lshl_b32 s13, s15, 21
    s_lshl_b32 s14, s6, {14 if ilv else 20}
    s_add_u32 s13, s13, s14
    s_lshl_b32 s14, s3, 12
    s_add_u32 s13, s13, s14
    s_mov_b32 s12, s13
    s_lshl_b32 s14, s3, 15
    s_waitcnt lgkmcnt(0)
    s_mov_b32 s0, 0
    """)
    if diag2: stamp(1)
    srd(8, P_K, 0x10000000)
    st = {"issued": 0, "landed": 0}
    PT_ = P + PL
    assert P % 4 == 0 and PL <= 32
    def ldsoff(n): return ((n - P + 16) % 32) * 1024
    def slot(n):
        if n < P: return RING + 4 * n
        if n < PT_: return RING + 4 * (16 + n - P)
        return RING + 4 * ((n - PT_) % 16)
    def issue(n):
        if P <= n < PT_:
            if n & 3 == 0: a(f"s_add_u32 m0, s14, {ldsoff(n)}")
            a(f"buffer_load_dwordx4 v1, s[8:11], s12 offen offset:{(n&3)*1024} nt lds")
        else:
            r = slot(n)
            a(f"buffer_load_dwordx4 v[{r}:{r+3}], v1, s[8:11], s12 offen offset:{(n&3)*1024} nt")
        if n & 3 == 3: a(f"s_add_u32 s12, s12, {0x8000 if ilv else 0x4000}")
        st["issued"] = n + 1
    def throttle(d=None):
        d = d or D
        a(f"s_waitcnt vmcnt({d-1})")
        st["landed"] = max(st["landed"], st["issued"] - (d - 1))
    def ensure(n):
        if n >= st["landed"]:
            k = st["issued"] - 1 - n
            a(f"s_waitcnt vmcnt({k})"); st["landed"] = n + 1
    for n in range(PT_):
        if n == P + 16: wait_flags("L_wqd", F_WQD, PT, 0)
        dd_ = D0 if (D0 and n < N0) else DP
        if n >= dd_: throttle(dd_)
        if diag2 and n == dd_: stamp(2)
        if diag2 and n == 2*dd_: stamp(3)
        if diag2 and n == 20: stamp(5)
        issue(n)
        if n == max(DP, D0 or 0) - 1:
            srd(48, P_WS, WS_SIZE)
            a(f"""
            s_mov_b32 s60, 0xaaaaaaaa
            s_mov_b32 s61, 0xaaaaaaaa
            s_mov_b32 s62, 0xcccccccc
            s_mov_b32 s63, 0xcccccccc
            v_and_b32 v{T0}, 15, v0
            v_and_b32 v{T1}, 1, v0
            v_lshlrev_b32 v{T1}, 4, v{T1}
            v_mov_b32 v{PT}, 0xffff
            v_lshlrev_b32 v{T1}, v{T1}, v{PT}
            v_lshrrev_b32 v{PT}, 1, v{T0}
            """)
            for t in range(4):
                a(f"v_cmp_eq_u32 vcc, {t}, v{PT}\nv_cndmask_b32 v{MK+t}, 0, v{T1}, vcc")
            for t in range(4): a(f"v_mov_b32 v{ACC+t}, 0")
            a(f"v_lshlrev_b32 v{T0}, 4, v{T0}\nv_add_u32 v{T0}, {L_Q}, v{T0}")
        if n == nb0: a("s_barrier")
        if n == gm: set_flag(F_G1, "s3", PT, PT+1)
        if n == gq: set_flag(F_G2, "s3", PT, PT+1)
    if not diag2: stamp(1)
    a("s_barrier")
    if not diag2: stamp(2)
    a(f"ds_read_b128 v[{Q}:{Q+3}], v{T0}\nv_add_u32 v{T0}, s14, v1\ns_waitcnt lgkmcnt(0)")
    def kdots(n):
        r = slot(n); p = PT + n % 16
        a(f"v_dot2_f32_bf16 v{p}, v{r}, v{Q}, 0")
        for i in range(1, 4): a(f"v_dot2_f32_bf16 v{p}, v{r+i}, v{Q+i}, v{p}")
    def kreduce(dst):
        for j in range(8): a(f"v_add_f32_dpp v{XX+j}, v{PT+j}, v{PT+j} row_ror:8 row_mask:0xf bank_mask:0x3")
        for j in range(8): a(f"v_add_f32_dpp v{XX+j}, v{PT+8+j}, v{PT+8+j} row_ror:8 row_mask:0xf bank_mask:0xc")
        for j in range(4): a(f"v_add_f32_dpp v{YY+j}, v{XX+j}, v{XX+j} row_half_mirror row_mask:0xf bank_mask:0x5")
        for j in range(4): a(f"v_add_f32_dpp v{YY+j}, v{XX+4+j}, v{XX+4+j} row_half_mirror row_mask:0xf bank_mask:0xa")
        for j in range(2):
            a(f"v_cndmask_b32 v{XX+2*j}, v{YY+j+2}, v{YY+j}, s[62:63]")
            a(f"v_cndmask_b32 v{XX+2*j+1}, v{YY+j}, v{YY+j+2}, s[62:63]")
        for j in range(2):
            a(f"v_add_f32_dpp v{XX+4+j}, v{XX+2*j}, v{XX+2*j+1} quad_perm:[2,3,0,1] {FULL}")
        a(f"v_cndmask_b32 v{XX}, v{XX+5}, v{XX+4}, s[60:61]")
        a(f"v_cndmask_b32 v{XX+1}, v{XX+4}, v{XX+5}, s[60:61]")
        a(f"v_add_f32_dpp v{XX+2}, v{XX}, v{XX+1} quad_perm:[1,0,3,2] {FULL}")
        if noround < 1: bf16r(XX+2, XX+2)
        a(f"v_mul_f32 v{XX+2}, {SCALE}, v{XX+2}")
        if noround < 2: bf16r(dst, XX+2)
        else: a(f"v_mov_b32 v{dst}, v{XX+2}")
    tgt = -(-(PT_ + 16 - A + 4) // 16) * 16
    NPEEL = tgt // 16
    KL = 16 - NPEEL
    cons = {"n": 0}
    def consume_k_upto(m):
        while cons["n"] < m:
            n = cons["n"]
            if n == P:
                a("s_waitcnt lgkmcnt(0)")
                set_flag(F_WF, "s3", T0, T1)
            ensure(n); kdots(n); cons["n"] += 1
            m2 = n - 16 + P
            if n >= 16 and P <= m2 < PT_:
                ensure(m2)
                r = slot(m2)
                a(f"ds_read_b128 v[{r}:{r+3}], v{T0} offset:{ldsoff(m2)}")
            if n % 16 == 15: kreduce(SC + n // 16 + KL)
    nsteps = tgt + A - PT_
    for s in range(nsteps):
        n = PT_ + s
        prev = s if s < 16 else n - 16
        if s <= 16: want = 1 + -(-PT_ * s // 16)
        else: want = PT_ + 1 + -(-(tgt - PT_ - 1) * (s - 16) // (nsteps - 16))
        want = min(want, max(st["landed"], PT_))
        consume_k_upto(min(max(want, prev + 1), tgt))
        throttle(); issue(n)
    a("s_memrealtime s[52:53]")
    consume_k_upto(tgt)
    FA, FAD, TTA, TTV = 128, 132, 133, 134
    LV = [x[0] for x in levels]
    def ln_(dd): return str(dd).replace(".", "p")
    def dstep(dd, j):
        import math
        return int(math.floor((j + 1) * dd) - math.floor(j * dd))
    a(f"""
    s_mov_b32 s14, 0
    s_mov_b32 s56, 0
    s_mov_b32 s57, 0
    s_mov_b32 s58, 0
    s_mov_b32 s59, 0
    s_lshl_b32 s47, s3, 4
    s_add_u32 s47, s47, {L_FL+F_FAC}
    v_mov_b32 v{FAD}, s47
    s_lshl_b32 s47, s3, 2
    s_add_u32 s47, s47, {L_FL+F_TT}
    v_mov_b32 v{TTA}, s47
    v_mov_b32 v{FA+3}, 0
    """)
    def record():
        a(f"""
        s_waitcnt lgkmcnt(0)
        s_or_b32 s53, s52, 1
        v_mov_b32 v{TTV}, s53
        ds_write_b32 v{TTA}, v{TTV}
        v_add_u32 v{TTA}, 16, v{TTA}
        """)
    def dispatch(pre):
        a(f"""
        v_readfirstlane_b32 s55, v{FA+3}
        v_readfirstlane_b32 s54, v{FA+2}
        s_cmp_eq_u32 s55, 0
        s_cbranch_scc1 {pre}{ln_(D)}
        s_mul_i32 s55, s55, s56
        s_lshr_b32 s55, s55, 4
        s_sub_u32 s52, s52, s54
        s_sub_u32 s52, s52, s55
        """)
        if J:
            a(f"""
            s_sub_u32 s55, s52, s57
            s_mov_b32 s57, s52
            s_cmp_gt_i32 s55, {J}
            s_cselect_b32 s55, s55, 0
            s_add_u32 s59, s59, s55
            s_cmp_eq_u32 s54, s58
            s_cselect_b32 s59, s59, 0
            s_mov_b32 s58, s54
            s_sub_u32 s52, s52, s59
            """)
        for dd, th in levels:
            if th is None: a(f"s_branch {pre}{ln_(dd)}")
            else: a(f"s_cmp_lt_i32 s52, {th}\ns_cbranch_scc1 {pre}{ln_(dd)}")
    a("L_kdisp:")
    record()
    a(f"s_cmp_ge_u32 s14, {KL}\ns_cbranch_scc1 L_kdone")
    if kctl: dispatch("L_k")
    for dd in (LV if kctl else [D]):
        assert dd <= A
        a(f"L_k{ln_(dd)}:")
        for j in range(16):
            n = tgt + j
            if j == fa_at: a(f"ds_read_b128 v[{FA}:{FA+3}], v{FAD}")
            a(f"s_waitcnt vmcnt({dstep(dd, j)-1})")
            if j == 16 - A:
                a(f"s_cmp_eq_u32 s14, {KL-1}\ns_cselect_b32 s8, s{P_V}, s8\ns_cselect_b32 s9, s{P_V+1}, s9\ns_cselect_b32 s12, s13, s12")
            issue(n + A)
            if j == 15: a("s_memrealtime s[52:53]")
            kdots(n)
            if j == 7:
                for i in range(15): a(f"v_mov_b32 v{SC+i}, v{SC+i+1}")
        kreduce(SC + 15)
        a("s_add_u32 s14, s14, 1\ns_add_u32 s56, s56, 4\ns_branch L_kdisp")
    a("L_kdone:")
    if not diag2: stamp(3)
    ex = {"n": 256 + A}
    def extra():
        if ex["n"] < 256 + A + E:
            a(f"s_waitcnt vmcnt({D-1})"); issue(ex["n"]); ex["n"] += 1
    extra()
    M, Ls = PT, PT + 1
    a(f"v_max3_f32 v{M}, v{SC}, v{SC+1}, v{SC+2}")
    for i in range(3, 15, 2): a(f"v_max3_f32 v{M}, v{M}, v{SC+i}, v{SC+i+1}")
    a(f"v_max_f32 v{M}, v{M}, v{SC+15}")
    allreduce("v_max_f32", [M], [T0])
    a(f"v_mul_f32 v{T1}, {LOG2E}, v{M}")
    extra()
    for i in range(16): a(f"v_fma_f32 v{SC+i}, v{SC+i}, {LOG2E}, -v{T1}")
    for i in range(16): a(f"v_exp_f32 v{SC+i}, v{SC+i}")
    extra()
    a(f"v_add_f32 v{Ls}, v{SC}, v{SC+1}\nv_add_f32 v{Ls+1}, v{SC+2}, v{SC+3}")
    for i in range(4, 16, 2): a(f"v_add_f32 v{Ls}, v{Ls}, v{SC+i}\nv_add_f32 v{Ls+1}, v{Ls+1}, v{SC+i+1}")
    a(f"v_add_f32 v{Ls}, v{Ls}, v{Ls+1}")
    for i in range(16): a(f"v_cvt_pk_bf16_f32 v{SC+i}, v{SC+i}, v{SC+i}")
    extra()
    allreduce("v_add_f32", [Ls], [T0])
    a(f"ds_write_b64 v{FAD}, v[{M}:{Ls}] offset:{F_ST-F_FAC}")
    set_flag(F_KD, "s3", PT+5, PT+6)
    while ex["n"] < 256 + A + E: extra()
    a("s_memrealtime s[52:53]")
    AV = A + E
    assert AV <= 15
    a(f"""
    v_lshrrev_b32 v{PT}, 4, v0
    v_lshlrev_b32 v{PT}, 5, v{PT}
    v_bfe_u32 v{PT+1}, v0, 1, 1
    v_lshl_add_u32 v{PT}, v{PT+1}, 7, v{PT}
    v_bfe_u32 v{PT+1}, v0, 2, 1
    v_lshl_add_u32 v{PT}, v{PT+1}, 2, v{PT}
    v_and_b32 v{PT+1}, 1, v0
    v_lshl_add_u32 v{PT}, v{PT+1}, 1, v{PT}
    s_mul_i32 s46, s3, {OP_STRIDE}
    s_add_u32 s46, s46, {L_OP}
    v_add_u32 v{PT}, s46, v{PT}
    s_mov_b32 s14, 0
    s_add_u32 s56, s56, {E//4}
    s_waitcnt lgkmcnt(0)
    """)
    def vbody(dd, last, timed):
        assert dd <= AV
        for j in range(16):
            n = 256 + j
            if j == fa_at: a(f"ds_read_b128 v[{FA}:{FA+3}], v{FAD}")
            for t in range(4): a(f"v_and_b32_dpp v{BB+t}, v{SC}, v{MK+t} row_newbcast:{j} {FULL}")
            a(f"s_waitcnt vmcnt({dstep(dd, j)-1})")
            if j == 16 - AV and last:
                a("s_cmp_eq_u32 s14, 15\ns_cselect_b32 s10, 0, s10")
            issue(n + AV)
            r = slot(n)
            if j == 15 and timed: a("s_memrealtime s[52:53]")
            a(f"v_mfma_f32_16x16x32_bf16 v[{ACC}:{ACC+3}], v[{r}:{r+3}], v[{BB}:{BB+3}], v[{ACC}:{ACC+3}]")
        if lastctl: a("s_cmp_eq_u32 s14, 15\ns_cbranch_scc1 L_sepi")
        for i in range(15): a(f"v_mov_b32 v{SC+i}, v{SC+i+1}")
        a("s_add_u32 s14, s14, 1\ns_add_u32 s56, s56, 4")
    assert NE >= 1
    a("s_branch L_vd1")
    a("L_vdisp:")
    if lastctl:
        record()
    else:
        record()
        a(f"s_cmp_ge_u32 s14, {16-NE}\ns_cbranch_scc1 L_vlast")
    a("L_vd1:")
    dispatch("L_v")
    for dd in LV:
        a(f"L_v{ln_(dd)}:")
        vbody(dd, lastctl, True)
        a("s_branch L_vdisp")
    if not lastctl:
        a("L_vlast:")
        vbody(D2, True, False)
        a("s_cmp_lt_u32 s14, 16\ns_cbranch_scc1 L_vlast")
    a("L_sepi:")
    a("s_nop 7")
    stamp(4)
    spin_begin()
    a("L_facspin:")
    a(f"s_waitcnt lgkmcnt(0)\nv_readfirstlane_b32 s46, v{FA+1}\ns_cmp_eq_u32 s46, 1\ns_cbranch_scc1 L_facok")
    spin_check()
    a(f"ds_read_b128 v[{FA}:{FA+3}], v{FAD}\ns_branch L_facspin")
    a("L_facok:")
    for t in range(4): a(f"v_mul_f32 v{ACC+t}, v{ACC+t}, v{FA}")
    a(f"v_cvt_pk_bf16_f32 v{ACC}, v{ACC}, v{ACC+1}\nv_cvt_pk_bf16_f32 v{ACC+2}, v{ACC+2}, v{ACC+3}")
    a(f"""
    s_mov_b32 exec_lo, 0x00ff00ff
    s_mov_b32 exec_hi, 0x00ff00ff
    ds_write_b16 v{PT}, v{ACC}
    ds_write_b16_d16_hi v{PT}, v{ACC} offset:8
    ds_write_b16 v{PT}, v{ACC+2} offset:16
    ds_write_b16_d16_hi v{PT}, v{ACC+2} offset:24
    s_waitcnt lgkmcnt(0)
    """)
    if dry: a("s_cmp_eq_u32 s0, 1\ns_cbranch_scc1 L_tail0")
    a("s_barrier")
    if not diag2: stamp(5)
    dump_stamps(6)
    a("s_endpgm")

    a("L_helper:")
    TRB, DA, DB, DN, TA, TB, TC = 2, 4, 5, 6, 7, 8, 9
    a(f"""
    s_memrealtime s[60:61]
    s_sub_u32 s7, s3, 4
    """)
    def lane_consts():
        a(f"""
        v_lshrrev_b32 v{TA}, 4, v0
        v_bfe_u32 v{TB}, v0, 2, 2
        v_and_b32 v{TC}, 3, v0
        v_lshl_add_u32 v{TRB}, v{TA}, 3, v{TB}
        v_lshlrev_b32 v{TRB}, 8, v{TRB}
        v_lshl_add_u32 v{TRB}, v{TC}, 3, v{TRB}
        v_and_b32 v{TC}, 1, v{TA}
        v_lshl_add_u32 v{TB}, v{TC}, 2, v{TB}
        v_lshl_add_u32 v{TRB}, v{TB}, 5, v{TRB}
        s_lshl_b32 s12, s7, 15
        v_add_u32 v{TRB}, s12, v{TRB}
        v_and_b32 v{TB}, 15, v0
        v_lshlrev_b32 v{TC}, 1, v{TA}
        v_xor_b32 v{TB}, v{TB}, v{TC}
        v_lshlrev_b32 v{DN}, 4, v{TB}
        v_mov_b32 v{DA}, 0
        """)
    lane_consts()
    a(f"""
    s_lshr_b32 s69, s2, 3
    s_and_b32 s12, s2, 7
    s_mov_b32 s68, 4
    s_cmp_lt_u32 s69, {NFFN}
    s_cselect_b32 s68, 5, s68
    s_cmp_eq_u32 s12, 0
    s_cbranch_scc1 L_role
    s_mul_i32 s69, s69, 7
    s_add_u32 s69, s69, s12
    s_sub_u32 s69, s69, 1
    s_mov_b32 s68, 1
    s_cmp_lt_u32 s69, 16
    s_cbranch_scc1 L_role
    s_sub_u32 s69, s69, 16
    s_mov_b32 s68, 3
    s_cmp_lt_u32 s69, 64
    s_cbranch_scc1 L_role
    s_sub_u32 s69, s69, 48
    s_mov_b32 s68, 2
    s_cmp_lt_u32 s69, 48
    s_cbranch_scc1 L_role
    s_mov_b32 s68, 0
    L_role:
    """)
    a(f"""
    s_cmp_lg_u32 s7, 3
    s_cbranch_scc1 L_noinit
    s_and_b32 s12, s68, 1
    s_xor_b32 s12, s12, 1
    v_cmp_eq_u32 vcc, {F_WQD//16}, v0
    v_mov_b32 v17, s12
    v_cndmask_b32 v16, 0, v17, vcc
    v_mov_b32 v17, v16
    v_mov_b32 v18, v16
    v_mov_b32 v19, v16
    v_add_u32 v20, {L_FL}, v1
    ds_write_b128 v20, v[16:19]
    L_noinit:
    s_waitcnt lgkmcnt(0)
    s_mov_b32 s0, 0
    s_mov_b32 s71, 0
    """)
    srd(48, P_WS, WS_SIZE)
    def dma_wide(nins, rs_log2, soff, infl, hooks={}, pol='nt'):
        a(f"v_lshrrev_b32 v{TA}, 4, v0\nv_lshl_add_u32 v{DA}, v{TA}, {rs_log2}, v{DN}\nv_xor_b32 v{DB}, 0x80, v{DA}")
        a("s_lshl_b32 s14, s7, 15")
        for i in range(nins):
            a("s_mov_b32 m0, s14" if i == 0 else "s_add_u32 m0, m0, 0x400")
            if i: a(f"s_add_u32 {soff}, {soff}, {4 << rs_log2}")
            a(f"buffer_load_dwordx4 v{DB if (i >> 1) & 1 else DA}, s[8:11], {soff} offen {pol} lds")
            if i in hooks: hooks[i]()
            if i >= infl - 1: a(f"s_waitcnt vmcnt({infl-1})")
    def dma_mid(soff, ldsbase, infl, rs, hooks={}):
        a(f"""
        v_lshrrev_b32 v{DA}, 3, v0
        v_mul_u32_u24 v{DA}, {rs}, v{DA}
        v_bfe_u32 v{DB}, v0, 4, 1
        v_lshlrev_b32 v{DB}, 1, v{DB}
        v_and_b32 v{TA}, 7, v0
        v_xor_b32 v{DB}, v{DB}, v{TA}
        v_lshl_add_u32 v{DA}, v{DB}, 4, v{DA}
        v_xor_b32 v{DB}, 64, v{DA}
        """)
        for i in range(16):
            a(f"s_mov_b32 m0, {ldsbase}" if i == 0 else "s_add_u32 m0, m0, 0x400")
            if i: a(f"s_add_u32 {soff}, {soff}, {8*rs}")
            a(f"buffer_load_dwordx4 v{DB if i & 1 else DA}, s[8:11], {soff} offen nt lds")
            if i in hooks: hooks[i]()
            if i >= infl - 1: a(f"s_waitcnt vmcnt({infl-1})")
    def mid_bases():
        a(f"""
        v_lshrrev_b32 v{TB}, 4, v0
        v_bfe_u32 v{TC}, v0, 2, 2
        v_lshl_add_u32 v{TA}, v{TB}, 3, v{TC}
        v_lshlrev_b32 v{TA}, 7, v{TA}
        v_and_b32 v{TB}, 1, v{TB}
        v_lshrrev_b32 v{TC}, 1, v{TC}
        v_lshl_add_u32 v{TB}, v{TB}, 1, v{TC}
        v_xor_b32 v{TB}, s7, v{TB}
        v_lshl_add_u32 v{TA}, v{TB}, 5, v{TA}
        v_and_b32 v{TB}, 3, v0
        v_lshl_add_u32 v{TA}, v{TB}, 3, v{TA}
        v_add_u32 v{TB}, 0x10000, v{TA}
        """)
    def tr_mid(dst, off):
        for s in range(16):
            r = dst + 4 * s
            ar = TA if s < 8 else TB
            o = off + ((s >> 2) & 1) * 0x8000 + (s & 3) * 4096
            a(f"ds_read_b64_tr_b16 v[{r}:{r+1}], v{ar} offset:{o}")
            a(f"ds_read_b64_tr_b16 v[{r+2}:{r+3}], v{ar} offset:{o+512}")
        a("s_waitcnt lgkmcnt(0)")
    def tr_wide(dst, nk):
        for t in range(8):
            ar = TA if t & 1 else TB
            a(f"v_xor_b32 v{ar}, {t << 5}, v{TRB}")
            for s in range(nk):
                r = dst + (t * nk + s) * 4
                a(f"ds_read_b64_tr_b16 v[{r}:{r+1}], v{ar} offset:{s*8192}")
                a(f"ds_read_b64_tr_b16 v[{r+2}:{r+3}], v{ar} offset:{s*8192+1024}")
        a("s_waitcnt lgkmcnt(0)")
    def act_addr(dst, rowsel, tmp):
        a(f"v_and_b32 v{dst}, 3, v0" if rowsel == "lo" else f"v_bfe_u32 v{dst}, v0, 2, 2")
        a(f"v_mul_u32_u24 v{dst}, {ACT_STRIDE}, v{dst}\nv_lshrrev_b32 v{tmp}, 4, v0\nv_lshl_add_u32 v{dst}, v{tmp}, 4, v{dst}\nv_add_u32 v{dst}, {L_ACT}, v{dst}")
    def poll(lbl, loads, tags, sleep=0, pre="", post=""):
        spin_begin()
        if sleep: a(f"s_branch {lbl}_go")
        a(f"{lbl}:")
        spin_check()
        if sleep: a(f"s_sleep {sleep}\n{lbl}_go:")
        a(pre)
        for l in loads: a(l)
        a(post)
        if not getattr(tags, "waits", False): a("s_waitcnt vmcnt(0)")
        tags()
        a(f"s_cmp_eq_u64 vcc, exec\ns_cbranch_scc0 {lbl}")
    def tags_words(regs):
        def f():
            a(f"v_cmp_eq_u32 vcc, {TAG}, v{regs[0]}")
            for r in regs[1:]: a(f"v_cmp_eq_u32 s[56:57], {TAG}, v{r}\ns_and_b64 vcc, vcc, s[56:57]")
        return f
    def tags_xor(regs, t):
        def f():
            a(f"v_xor_b32 v{t}, {TAG}, v{regs[0]}")
            for r in regs[1:]: a(f"v_xor_b32 v{t+1}, {TAG}, v{r}\nv_or_b32 v{t}, v{t}, v{t+1}")
            a(f"v_cmp_eq_u32 vcc, 0, v{t}")
        return f
    def tags_bytes(n, t):
        def f():
            for q in range(n):
                a(f"s_waitcnt vmcnt({n-1-q})")
                for i in range(4*q, 4*q + 4): a(f"v_xor_b32 v{16+i}, s{18+(i&3)}, v{32+i}")
                b_ = 16 + 4*q
                if q == 0: a(f"v_or3_b32 v{t}, v{b_}, v{b_+1}, v{b_+2}\nv_or_b32 v{t}, v{t}, v{b_+3}")
                else: a(f"v_or3_b32 v{t}, v{t}, v{b_}, v{b_+1}\nv_or3_b32 v{t}, v{t}, v{b_+2}, v{b_+3}")
            a(f"v_lshlrev_b32 v{t}, 24, v{t}\nv_cmp_eq_u32 vcc, 0, v{t}")
        f.waits = True
        return f
    def pk(op, d, x, y, mods=""):
        yy = y if isinstance(y, str) else f"v[{y}:{y+1}]"
        a(f"v_pk_{op}_f32 v[{d}:{d+1}], v[{x}:{x+1}], {yy} {mods}")
    NEG = "neg_lo:[0,1] neg_hi:[0,1]"
    def rnd8(x0):
        for k in range(8): bf16r(x0 + k, x0 + k)
    def ln_norm(x0, t0):
        a(f"v_readfirstlane_b32 s46, v{x0}")
        for k in range(4): pk("add", t0+4+2*k, x0+2*k, "s[46:47]", "op_sel_hi:[1,0] " + NEG)
        pk("mul", t0+2, t0+4, t0+4)
        pk("add", t0, t0+4, t0+6)
        a(f"v_pk_fma_f32 v[{t0+2}:{t0+3}], v[{t0+6}:{t0+7}], v[{t0+6}:{t0+7}], v[{t0+2}:{t0+3}]")
        pk("add", t0+4, t0+8, t0+10)
        a(f"v_pk_fma_f32 v[{t0+2}:{t0+3}], v[{t0+8}:{t0+9}], v[{t0+8}:{t0+9}], v[{t0+2}:{t0+3}]")
        pk("add", t0, t0, t0+4)
        a(f"v_pk_fma_f32 v[{t0+2}:{t0+3}], v[{t0+10}:{t0+11}], v[{t0+10}:{t0+11}], v[{t0+2}:{t0+3}]")
        m, q = t0, t0 + 2
        a(f"v_add_f32 v{m}, v{t0}, v{t0+1}\nv_add_f32 v{q}, v{t0+2}, v{t0+3}")
        allreduce("v_add_f32", [m, q], [], rows_only=True)
        for st_ in ("row_bcast:15 row_mask:0xa bank_mask:0xf", "row_bcast:31 row_mask:0xc bank_mask:0xf"):
            for r in (m, q): a(f"v_add_f32_dpp v{r}, v{r}, v{r} {st_}")
        a(f"""
        v_mul_f32 v{m}, 0x3b000000, v{m}
        v_mul_f32 v{q}, 0x3b000000, v{q}
        v_fma_f32 v{q}, -v{m}, v{m}, v{q}
        v_add_f32 v{m}, s46, v{m}
        v_max_f32 v{q}, 0, v{q}
        """)
        bf16r(m, m); bf16r(q, q)
        a(f"v_readlane_b32 s56, v{m}, 63\nv_add_f32 v{q}, 0x3727c5ac, v{q}")
        bf16r(q, q)
        a(f"v_sqrt_f32 v{q}, v{q}")
        for k in range(2): pk("add", x0+2*k, x0+2*k, "s[56:57]", "op_sel_hi:[1,0] " + NEG)
        bf16r(q, q)
        for k in range(2, 4): pk("add", x0+2*k, x0+2*k, "s[56:57]", "op_sel_hi:[1,0] " + NEG)
        a(f"v_rcp_f32 v{q}, v{q}")
        for k in range(3): bf16r(x0 + k, x0 + k)
        a(f"v_readlane_b32 s46, v{q}, 63")
        for k in range(3, 8): bf16r(x0 + k, x0 + k)
        for k in range(4): pk("mul", x0+2*k, x0+2*k, "s[46:47]", "op_sel_hi:[1,0]")
        rnd8(x0)
    def ln_affine(x0, sc8, sh8, t):
        for k in range(4): pk("mul", x0+2*k, x0+2*k, sc8+2*k)
        rnd8(x0)
        for k in range(4): pk("add", x0+2*k, x0+2*k, sh8+2*k)
        for k in range(4): a(f"v_cvt_pk_bf16_f32 v{t+k}, v{x0+2*k}, v{x0+2*k+1}")
    X8, ST, SA8, CA8, BW, DT = 24, 32, 40, 48, 192, 56
    def gemv64(tagn, kind, infl, first):
        isq = kind == "q"
        srd(52, P_X if isq else P_C, 4096)
        a(f"""
        v_lshlrev_b32 v10, 3, v0
        s_lshl_b32 s12, s7, 10
        buffer_load_dwordx2 v[12:13], v10, s[52:55], s12 offen
        buffer_load_dwordx2 v[14:15], v10, s[52:55], s12 offen offset:512
        """)
        rs = 8192 if isq else 6144
        srd(8, P_WQ if isq else P_WM, 0 if ({"q": "q", "A": "A", "a": "a"}[kind] in skip) else 512 * rs)
        if contig: rs = 128
        a(f"s_mul_i32 s13, s7, {128*rs}\ns_lshl_b32 s12, s69, {16 if contig else 7}\ns_add_u32 s13, s13, s12\ns_lshl_b32 s14, s7, 15")
        dma_mid("s13", "s14", infl, rs, hooks=({min(infl, 16) - 1: lambda: a(BAR0)} if first else {}))
        a("s_waitcnt vmcnt(16)")
        if kind == "A": stamp(1)
        for k in range(4): unpack(X8 + 2*k, X8 + 2*k + 1, 12 + k)
        a(f"s_mul_i32 s12, s7, {ACT_STRIDE}\ns_add_u32 s12, s12, {L_ACT}\nv_add_u32 v10, s12, v10")
        if isq:
            ln_norm(X8, ST)
        else:
            for k in range(8): a(f"v_mul_f32 v{ST+k}, {LOG2E}, v{X8+k}")
            for k in range(8): a(f"v_exp_f32 v{ST+k}, -v{ST+k}")
            for k in range(8): a(f"v_add_f32 v{ST+k}, 1.0, v{ST+k}")
            for k in range(8): a(f"v_rcp_f32 v{ST+k}, v{ST+k}")
            for k in range(8): a(f"v_mul_f32 v{X8+k}, v{X8+k}, v{ST+k}")
            for k in range(4): a(f"v_cvt_pk_bf16_f32 v{16+k}, v{X8+2*k}, v{X8+2*k+1}")
            a("ds_write_b64 v10, v[16:17]\nds_write_b64 v10, v[18:19] offset:512")
        mid_bases()
        a("s_waitcnt vmcnt(0)")
        set_flag(F_WQ, "s7", 20, 21)
        wait_flags(f"L_wq{tagn}", F_WQ, 16, 0)
        if first: a(MKTAG)
        stamp(4 if isq else 2) if first else None
        tr_mid(BW, 0)
        if first: set_flag(F_WQD, "s7", 16, 17)
        act_addr(TC, "lo", TB)
        a(f"s_lshl_b32 s67, s69, 10\ns_lshl_b32 s12, s7, 8\ns_add_u32 s67, s67, s12\ns_add_u32 s67, s67, {WS_Q if isq else WS_MOD}")
        if isq:
            a(f"""
            v_lshrrev_b32 v{TA}, 2, v0
            v_lshlrev_b32 v{TA}, 8, v{TA}
            v_and_b32 v{TB}, 3, v0
            v_lshl_add_u32 v{TA}, v{TB}, 4, v{TA}
            s_lshl_b32 s12, s7, 6
            s_add_u32 s12, s12, {WS_MOD}
            s_add_u32 s13, s12, 0x1000
            s_add_u32 s14, s12, 0x2000
            s_add_u32 s46, s12, 0x3000
            """)
            if gm: wait_flags("L_g1", F_G1, 16, 4)
            G0 = 128
            poll("L_poll_mod", [f"buffer_load_dwordx4 v[{G0+4*i}:{G0+4*i+3}], v{TA}, s[48:51], {sr} offen sc1" for i, sr in enumerate(["s12", "s13", "s14", "s46"])],
                 tags_xor([G0 + 1 + 2*k for k in range(8)], 16), sleep=slp)
            stamp(5)
            for k in range(4): unpack(SA8 + 2*k, SA8 + 2*k + 1, G0 + 2*k)
            for k in range(4): unpack(CA8 + 2*k, CA8 + 2*k + 1, G0 + 8 + 2*k)
            for k in range(8): a(f"v_add_f32 v{CA8+k}, 1.0, v{CA8+k}")
            rnd8(CA8)
            ln_affine(X8, CA8, SA8, 16)
            a("ds_write_b64 v10, v[16:17]\nds_write_b64 v10, v[18:19] offset:512")
            set_flag(F_H, "s7", 20, 21)
            wait_flags("L_h", F_H, 16, 0)
        for hh in range(2):
            for s in range(8): a(f"ds_read_b128 v[{16+4*s}:{19+4*s}], v{TC} offset:{(8*hh+s)*64}")
            for s in range(8):
                a(f"s_waitcnt lgkmcnt({7-s})")
                k = 8*hh + s
                a(f"v_mfma_f32_16x16x32_bf16 v[{DT}:{DT+3}], v[{BW+4*k}:{BW+4*k+3}], v[{16+4*s}:{19+4*s}], " + ("0" if k == 0 else f"v[{DT}:{DT+3}]"))
        a(f"""
        v_and_b32 v{TC}, 3, v0
        v_lshrrev_b32 v{TA}, 4, v0
        v_lshlrev_b32 v{TA}, 4, v{TA}
        v_lshl_add_u32 v{TA}, v{TC}, 6, v{TA}
        v_mov_b32 v{DT+5}, {TAG}
        v_mov_b32 v{DT+7}, {TAG}
        v_cvt_pk_bf16_f32 v{DT+4}, v{DT}, v{DT+1}
        v_cvt_pk_bf16_f32 v{DT+6}, v{DT+2}, v{DT+3}
        s_mov_b32 exec_lo, 0x000f000f
        s_mov_b32 exec_hi, 0x000f000f
        buffer_store_dwordx4 v[{DT+4}:{DT+7}], v{TA}, s[48:51], s67 offen sc1
        s_mov_b64 exec, -1
        """)
        if first: stamp(13 if isq else 3)

    a("""
    s_cmp_eq_u32 s68, 3
    s_cbranch_scc1 L_qgemv
    s_cmp_eq_u32 s68, 5
    s_cbranch_scc1 L_down
    s_cmp_lg_u32 s68, 1
    s_cbranch_scc1 L_bar0
    """)
    gemv64(1, "A", 64, True)
    a("s_branch L_getq")
    a("L_qgemv:")
    gemv64(2, "q", thrQ, True)
    a("s_branch L_getq")
    a("L_down:")
    srd(8, P_WD, 0 if 'f' in skip else 1792 * 1024)
    a("s_lshl_b32 s13, s69, 16\ns_lshl_b32 s12, s7, 8\ns_add_u32 s13, s13, s12")
    dma_wide(16, 10, "s13", thrD, hooks={min(thrD, 16) - 1: lambda: a(BAR0)})
    a("s_waitcnt vmcnt(0)")
    tr_wide(192, 2)
    a(MKTAG)
    set_flag(F_WQD, "s7", 16, 17)
    a("s_branch L_getq")
    a("L_bar0:")
    if l2warm:
        a(f"""
        s_cmp_lg_u32 s7, 3
        s_cbranch_scc1 L_nowarm
        s_getpc_b64 s[12:13]
        L_pc:
        s_sub_u32 s12, s12, L_pc-{NAME}_kernel
        s_subb_u32 s13, s13, 0
        v_lshlrev_b32 v16, 7, v0
        s_mov_b32 s14, 0
        L_warm:
        v_cmp_gt_u32 vcc, L_end-{NAME}_kernel, v16
        s_and_saveexec_b64 s[46:47], vcc
        s_cbranch_execz L_warmd
        global_load_dword v17, v16, s[12:13]
        v_add_u32 v16, 0x2000, v16
        s_branch L_warm
        L_warmd:
        s_mov_b64 exec, -1
        L_nowarm:
        """)
    a(BAR0)
    a("s_waitcnt lgkmcnt(0)")
    a(MKTAG)
    a("L_getq:")
    def dryrun(n, cond):
        a(f"""
        s_cmp_lg_u32 s7, 1
        s_cbranch_scc1 L_nodry{n}
        {cond} s68, 4
        s_cbranch_scc1 L_nodry{n}
        s_waitcnt vmcnt(0)
        s_mov_b32 s0, 1
        s_mov_b32 s1, {TAG}
        s_mov_b32 {TAG}, 0
        s_mov_b32 s50, 0
        s_mov_b32 s44, 1
        v_mov_b32 v{PT}, {L_OP}
        s_branch L_facok
        L_afterdry{n}:
        s_mov_b32 s0, 0
        s_mov_b32 {TAG}, s1
        s_mov_b32 s50, {WS_SIZE}
        s_mov_b64 exec, -1
        s_waitcnt vmcnt(0) lgkmcnt(0)
        """)
        if n == 1: lane_consts()
        a(f"L_nodry{n}:")
    if dry: dryrun(1, "s_cmp_lt_u32")
    a("s_cmp_lg_u32 s7, 2\ns_cbranch_scc1 L_bar1")
    a(f"""
    v_bfe_u32 v{TA}, v0, 2, 3
    v_lshlrev_b32 v{TA}, 8, v{TA}
    v_and_b32 v{TB}, 3, v0
    v_lshl_add_u32 v{TA}, v{TB}, 4, v{TA}
    s_lshl_b32 s12, s4, 11
    s_lshl_b32 s13, s5, 6
    s_add_u32 s12, s12, s13
    s_add_u32 s12, s12, {WS_Q}
    v_and_b32 v{TB}, 31, v0
    v_lshlrev_b32 v{TB}, 3, v{TB}
    v_add_u32 v{TB}, {L_Q}, v{TB}
    """)
    if gq: wait_flags("L_g2", F_G2, 16, 4)
    poll("L_poll_q", [f"buffer_load_dwordx4 v[16:19], v{TA}, s[48:51], s12 offen sc1"], tags_words([17, 19]), sleep=slp)
    a(f"v_mov_b32 v17, v18\nds_write_b64 v{TB}, v[16:17]\ns_waitcnt lgkmcnt(0)")
    a("L_bar1:")
    a("s_barrier")
    if dbg: a("s_memrealtime s[98:99]")
    stamp(6)
    a(f"""
    s_getreg_b32 s62, hwreg(HW_REG_XCC_ID)
    s_cmp_lt_u32 s68, 4
    s_cbranch_scc1 L_noxcc
    s_cmp_lg_u32 s7, 1
    s_cbranch_scc1 L_noxcc
    v_mov_b32 v16, s62
    v_mov_b32 v17, {TAG}
    s_lshl_b32 s12, s69, 7
    s_add_u32 s12, s12, {WS_XCC}
    s_mov_b64 exec, 1
    buffer_store_dwordx2 v[16:17], v1, s[48:51], s12 offen sc1
    s_mov_b64 exec, -1
    L_noxcc:
    """)
    if tlb:
        a("s_cmp_lg_u32 s7, 3\ns_cbranch_scc1 L_notlb\ns_mov_b64 exec, 1")
        srd(8, P_V, 0x10000000)
        a("s_lshl_b32 s12, s15, 21\ns_lshl_b32 s13, s6, 20\ns_add_u32 s12, s12, s13\nbuffer_load_dword v16, v1, s[8:11], s12 offen nt")
        srd(8, P_OUT, 4096)
        a("buffer_load_dword v17, v1, s[8:11], 0 offen nt")
        a(f"s_mov_b32 s12, {WS_TM}\nbuffer_load_dword v18, v1, s[48:51], s12 offen offset:1024 nt")
        a("s_mov_b64 exec, -1\ns_waitcnt vmcnt(0)\nL_notlb:")
    def wait_row(lbl, g):
        spin_begin()
        a(f"v_mov_b32 v20, {L_FL+F_TT+16*g}")
        a(f"s_branch {lbl}_go\n{lbl}:")
        spin_check()
        a(f"""
        s_sleep 8
        {lbl}_go:
        ds_read_b128 v[16:19], v20
        s_waitcnt lgkmcnt(0)
        v_and_b32 v21, v16, v17
        v_and_b32 v22, v18, v19
        v_and_b32 v21, v21, v22
        v_readfirstlane_b32 s47, v21
        s_bitcmp1_b32 s47, 0
        s_cbranch_scc0 {lbl}
        """)
    def tm_publish(m, g):
        a(f"""
        s_lshr_b32 s12, s2, 5
        s_add_u32 s12, s12, s2
        s_lshr_b32 s14, s2, 3
        s_xor_b32 s12, s12, s14
        s_and_b32 s12, s12, 3
        s_lshr_b32 s14, s68, 2
        s_or_b32 s12, s12, s14
        s_or_b32 s12, s12, s7
        s_cbranch_scc1 L_tmp{m}
        """)
        wait_row(f"L_tr{m}", g)
        for k in range(4): a(f"v_subrev_u32 v{16+k}, s60, v{16+k}")
        a(f"""
        v_add3_u32 v16, v16, v17, v18
        v_add_u32 v16, v16, v19
        v_lshrrev_b32 v16, 2, v16
        v_add_u32 v16, s60, v16
        v_mov_b32 v17, {TAG}
        v_mov_b32 v18, s60
        v_mov_b32 v19, {TAG}
        s_lshr_b32 s12, s2, 5
        s_lshl_b32 s12, s12, 3
        s_and_b32 s14, s2, 7
        s_add_u32 s12, s12, s14
        s_mul_i32 s12, s12, {TMSTR}
        s_add_u32 s12, s12, {WS_TM + 128*m}
        s_mov_b64 exec, 1
        buffer_store_dwordx4 v[16:19], v1, s[48:51], s12 offen sc1
        s_mov_b64 exec, -1
        L_tmp{m}:
        """)
    import struct
    def fhex(v): return hex(struct.unpack("<I", struct.pack("<f", v))[0])
    def tm_gather(m, gate, p_m, mult):
        a(f"s_cmp_lg_u32 s7, 0\ns_cbranch_scc1 L_tmg{m}")
        wait_row(f"L_tg{m}", gate)
        a(f"""
        v_and_b32 v21, 7, v0
        v_lshrrev_b32 v20, 3, v0
        v_max_u32 v20, 1, v20
        v_cmp_eq_u32 vcc, 0, v21
        v_cndmask_b32 v20, 0, v20, vcc
        v_add_u32 v20, v20, v0
        v_mul_u32_u24 v20, {TMSTR}, v20
        s_mov_b32 s12, {WS_TM + 128*m}
        """)
        poll(f"L_poll_tm{m}", ["buffer_load_dwordx4 v[16:19], v20, s[48:51], s12 offen sc1"], tags_words([17, 19]), sleep=48)
        a("v_sub_u32 v18, v16, v18\nv_subrev_u32 v16, s60, v16")
        allreduce("v_add_u32", [16, 18], [17, 19])
        a("v_ashrrev_i32 v16, 6, v16\nv_lshrrev_b32 v18, 6, v18")
        if m > 1: a("v_subrev_u32 v18, s61, v16")
        a(f"""
        v_readfirstlane_b32 s61, v16
        {f"v_readfirstlane_b32 s{90+m}, v16" if dbg else ""}
        v_cvt_f32_u32 v18, v18
        v_mul_f32 v18, {fhex(mult)}, v18
        """)
        if m > 1 and up:
            a(f"""
            s_mul_i32 s12, s63, {p_m}
            s_lshr_b32 s12, s12, 4
            s_add_u32 s12, s12, s1
            s_sub_u32 s12, s12, {eth}
            v_mul_f32 v19, {fhex(boost)}, v18
            v_cmp_gt_i32 vcc, s12, v16
            v_cvt_f32_u32 v17, s63
            v_cndmask_b32 v18, v18, v19, vcc
            v_mul_f32 v17, {fhex(1.0 if m == 2 else up)}, v17
            v_min_f32 v18, v18, v17
            """)
        a(f"""
        v_cvt_u32_f32 v17, v18
        v_mul_u32_u24 v18, {p_m}, v17
        v_lshrrev_b32 v18, 4, v18
        v_sub_u32 v16, v16, v18
        v_readfirstlane_b32 s63, v17
        v_readfirstlane_b32 s1, v16
        v_add_u32 v16, s60, v16
        s_cmp_ge_u32 s68, 4
        s_cselect_b32 s12, {early if 1 < m < 9 else 0}, 0
        v_subrev_u32 v16, s12, v16
        v_and_b32 v20, 3, v0
        v_lshlrev_b32 v20, 4, v20
        v_add_u32 v20, {L_FL+F_FAC+8}, v20
        ds_write_b64 v20, v[16:17]
        L_tmg{m}:
        """)
    wait_flags("L_wf", F_WF, 16, 4)
    srd(8, P_WO, 0 if 'w' in skip else 4096 * 1024)
    a("s_lshl_b32 s13, s4, 17\ns_lshl_b32 s12, s7, 8\ns_add_u32 s13, s13, s12")
    dma_wide(32, 10, "s13", thr, hooks={5: lambda: tm_publish(1, 0), 5 + 6*lagK: lambda: tm_gather(1, lagK, 0, 4*f1)}, pol=wpol)
    a("s_waitcnt vmcnt(0)")
    tr_wide(64, 4)
    if mk:
        tm_publish(9, mk)
        tm_gather(9, mk + 1, 4*mk, 4*fk/mk)
    a("s_cmp_lg_u32 s68, 2\ns_cbranch_scc1 L_noA2")
    gemv64(3, "a", thrA, False)
    a("L_noA2:")
    SB, TREG = [10, 11, 12, 13], [4, 5, 6, 14]
    RX, RGA, RGB = 2, 3, 15
    def ffn_cols(dst_tile, dst_sub):
        a(f"""
        v_lshrrev_b32 v{dst_tile}, 4, v0
        v_and_b32 v{dst_sub}, 3, v0
        v_lshl_add_u32 v{dst_tile}, v{dst_tile}, 2, v{dst_sub}
        v_bfe_u32 v{dst_sub}, v0, 2, 2
        """)
    a("s_cmp_lt_u32 s68, 4\ns_cbranch_scc1 L_nored1\ns_cmp_lg_u32 s68, 5\ns_cbranch_scc1 L_noffn1")
    srd(8, P_WG, 0 if 'f' in skip else 512 * 3584)
    RSF = 128 if contig else 3584
    a(f"s_lshl_b32 s13, s69, {16 if contig else 7}\ns_mul_i32 s12, s7, {128*RSF}\ns_add_u32 s46, s13, s12\ns_mov_b32 s13, s46\ns_lshl_b32 s14, s7, 15")
    dma_mid("s13", "s14", thrF, RSF)
    srd(8, P_WU, 0 if 'f' in skip else 512 * 3584)
    a("s_mov_b32 s13, s46\ns_add_u32 s14, s14, 0x4000")
    dma_mid("s13", "s14", thrF, RSF)
    a("L_noffn1:")
    a("L_nored1:")
    if dry: dryrun(2, "s_cmp_ge_u32")
    stamp(7)
    tm_publish(2, KL)
    a("s_cmp_lg_u32 s7, 0\ns_cbranch_scc1 L_nofac")
    wait_flags("L_kd", F_KD, 16, 16)
    q4 = ("quad_perm:[1,0,3,2]", "quad_perm:[2,3,0,1]")
    a(f"""
    v_and_b32 v{TA}, 3, v0
    v_lshlrev_b32 v{TA}, 4, v{TA}
    v_add_u32 v{TA}, {L_FL}, v{TA}
    ds_read_b64 v[24:25], v{TA} offset:{F_ST}
    s_waitcnt lgkmcnt(0)
    v_mov_b32 v28, v24
    """)
    allreduce("v_max_f32", [28], [], rows_only=True, steps=q4)
    a(f"v_sub_f32 v30, v24, v28\nv_mul_f32 v30, {LOG2E}, v30\nv_exp_f32 v30, v30\nv_mul_f32 v30, v25, v30")
    allreduce("v_add_f32", [30], [], rows_only=True, steps=q4)
    a(f"""
    v_mov_b32 v29, {TAG}
    v_mov_b32 v31, {TAG}
    s_lshl_b32 s13, s15, 7
    s_add_u32 s13, s13, {WS_STATS}
    s_lshl_b32 s12, s6, 4
    s_add_u32 s14, s13, s12
    s_xor_b32 s12, s12, 16
    s_add_u32 s13, s13, s12
    s_mov_b64 exec, 1
    buffer_store_dwordx4 v[28:31], v1, s[48:51], s14 offen sc1
    s_mov_b64 exec, -1
    """)
    tm_gather(2, KL + lagV, 4*KL, 4*f2/(KL - mk))
    a(f"v_mov_b32 v{TB}, 0")
    poll("L_poll_st", [f"buffer_load_dwordx4 v[16:19], v{TB}, s[48:51], s13 offen sc1"], tags_words([17, 19]), sleep=32)
    a(f"""
    v_max_f32 v17, v16, v28
    v_sub_f32 v16, v16, v17
    v_sub_f32 v28, v28, v17
    v_sub_f32 v24, v24, v17
    v_mul_f32 v16, {LOG2E}, v16
    v_mul_f32 v28, {LOG2E}, v28
    v_mul_f32 v24, {LOG2E}, v24
    v_exp_f32 v16, v16
    v_exp_f32 v28, v28
    v_exp_f32 v24, v24
    v_mul_f32 v16, v16, v18
    v_fmac_f32 v16, v28, v30
    v_rcp_f32 v16, v16
    v_mov_b32 v25, 1
    v_mul_f32 v24, v24, v16
    ds_write_b64 v{TA}, v[24:25] offset:{F_FAC}
    """)
    a("L_nofac:")
    a("s_cmp_lt_u32 s68, 4\ns_cbranch_scc1 L_nored2")
    wait_row("L_kd2", KL + 1)
    a("s_cmp_lg_u32 s68, 5\ns_cbranch_scc1 L_noffn2")
    ffn_cols(TA, TB)
    a(f"""
    v_lshlrev_b32 v{TA}, 8, v{TA}
    v_lshl_add_u32 v{TA}, v{TB}, 4, v{TA}
    s_lshl_b32 s12, s7, 6
    s_add_u32 s12, s12, {WS_MOD + 96*256}
    s_add_u32 s13, s12, 0x1000
    s_add_u32 s14, s12, 0x2000
    s_add_u32 s46, s12, 0x3000
    """)
    poll("L_poll_sb", [f"buffer_load_dwordx4 v[{16+4*i}:{19+4*i}], v{TA}, s[48:51], {sr} offen sc1" for i, sr in enumerate(["s12", "s13", "s14", "s46"])],
         tags_words([17 + 2*k for k in range(8)]), sleep=16)
    for k in range(4):
        a(f"v_mov_b32 v{SB[k]}, v{16+2*k}")
        unpack(32, 33, 24 + 2*k)
        a(f"v_add_f32 v32, 1.0, v32\nv_add_f32 v33, 1.0, v33\nv_cvt_pk_bf16_f32 v{TREG[k]}, v32, v33")
    a("L_noffn2:")
    srd(52, P_X, 4096)
    a(f"""
    v_bfe_u32 v{TA}, v0, 2, 2
    v_and_b32 v{TB}, 3, v0
    v_lshlrev_b32 v{TC}, 5, v{TA}
    v_lshl_add_u32 v{TC}, v{TB}, 1, v{TC}
    s_lshl_b32 s71, s69, 7
    s_lshl_b32 s12, s7, 3
    s_add_u32 s71, s71, s12
    buffer_load_ushort v{RX}, v{TC}, s[52:55], s71 offen
    v_lshlrev_b32 v{TA}, 8, v{TA}
    v_lshrrev_b32 v{TC}, 1, v{TB}
    v_lshl_add_u32 v{TA}, v{TC}, 3, v{TA}
    s_and_b32 s12, s69, 7
    s_lshl_b32 s12, s12, 10
    s_lshl_b32 s13, s7, 4
    s_add_u32 s12, s12, s13
    s_lshr_b32 s13, s69, 3
    s_lshl_b32 s13, s13, 6
    s_add_u32 s12, s12, s13
    s_add_u32 s13, s12, {WS_MOD + 160*256}
    s_add_u32 s12, s12, {WS_MOD + 64*256}
    """)
    poll("L_poll_ga", [f"buffer_load_dwordx2 v[16:17], v{TA}, s[48:51], s12 offen sc1", f"buffer_load_dwordx2 v[18:19], v{TA}, s[48:51], s13 offen sc1"],
         tags_words([17, 19]), sleep=16)
    a(f"v_and_b32 v{TB}, 1, v0\nv_cmp_eq_u32 vcc, 1, v{TB}")
    for k, r in enumerate([RGA, RGB]):
        unpack(24, 25, 16 + 2*k)
        a(f"v_cndmask_b32 v{r}, v24, v25, vcc")
    a(f"v_lshlrev_b32 v{RX}, 16, v{RX}")
    a(f"v_and_b32 v{TA}, 31, v0\nv_lshlrev_b32 v{TA}, 7, v{TA}\ns_mov_b32 s12, {WS_XCC}")
    poll("L_poll_xcc", [f"buffer_load_dwordx2 v[16:17], v{TA}, s[48:51], s12 offen sc1"], tags_words([17]), sleep=16)
    a(f"v_cmp_eq_u32 vcc, s62, v16\ns_cmp_eq_u64 vcc, exec\ns_cselect_b32 s44, {1 if fast else 0}, 0")
    a("L_nored2:")
    prevp = 4 * KL
    def milestones(lst):
        nonlocal prevp
        for i, mv in lst:
            p_ = 4 * (KL + mv) + E // 4
            tm_publish(3 + i, KL + mv)
            tm_gather(3 + i, KL + mv + lag3, p_, 16 * f3 / (p_ - prevp))
            prevp = p_
    MS = list(enumerate(ms))
    if touchp:
        wait_row("L_tchp", KL + touchp)
        a(f"""
        s_lshl_b32 s12, s15, 1
        s_add_u32 s12, s12, s6
        s_lshl_b32 s12, s12, 11
        s_lshl_b32 s13, s7, 9
        s_add_u32 s12, s12, s13
        s_add_u32 s12, s12, {WS_PART1}
        s_mov_b32 exec_hi, 0
        buffer_load_dwordx4 v[24:27], v1, s[48:51], s12 offen sc1
        s_mov_b64 exec, -1
        s_waitcnt vmcnt(0)
        """)
    milestones([x for x in MS if x[1] + lag3 <= touch])
    if touch:
        a("s_cmp_lt_u32 s68, 4\ns_cbranch_scc1 L_notouch")
        wait_row("L_tch", KL + touch)
        a(f"""
        v_lshrrev_b32 v{TA}, 2, v0
        v_and_b32 v{TB}, 3, v0
        v_lshlrev_b32 v{TC}, 13, v{TA}
        v_lshl_add_u32 v{TC}, v{TB}, 4, v{TC}
        v_lshlrev_b32 v{TA}, 11, v{TA}
        v_lshl_add_u32 v{TA}, v{TB}, 4, v{TA}
        s_lshl_b32 s12, s7, 11
        s_add_u32 s12, s12, {WS_X1}
        buffer_load_dwordx4 v[16:19], v1, s[48:51], s12 offen sc1
        buffer_load_dwordx4 v[20:23], v1, s[48:51], s12 offen offset:1024 sc1
        s_lshl_b32 s12, s69, 8
        s_lshl_b32 s13, s7, 6
        s_add_u32 s12, s12, s13
        s_add_u32 s12, s12, {WS_PART2}
        s_add_u32 s13, s12, 0x20000
        buffer_load_dwordx4 v[24:27], v{TC}, s[48:51], s12 offen sc1
        buffer_load_dwordx4 v[28:31], v{TC}, s[48:51], s13 offen sc1
        """)
        if touch1:
            a(f"""
            s_and_b32 s12, s69, 7
            s_lshl_b32 s12, s12, 8
            s_lshl_b32 s13, s7, 6
            s_add_u32 s12, s12, s13
            s_lshr_b32 s13, s69, 3
            s_lshl_b32 s13, s13, 17
            s_add_u32 s12, s12, s13
            s_add_u32 s12, s12, {WS_PART1}
            """)
            for i in range(4):
                a(f"buffer_load_dwordx4 v[{32+4*i}:{35+4*i}], v{TA}, s[48:51], s12 offen sc1\ns_add_u32 s12, s12, 0x8000")
        a("s_waitcnt vmcnt(0)\nL_notouch:")
    milestones([x for x in MS if x[1] + lag3 > touch])
    AF, DD = 16, 32
    bn = {"n": 0}
    def barrier():
        if not dry: a("s_barrier"); return
        bn["n"] += 1
        a(f"s_cmp_eq_u32 s0, 1\ns_cbranch_scc1 L_nb{bn['n']}\ns_barrier\nL_nb{bn['n']}:")
    a(f"""
    L_tail0:
    s_mov_b64 exec, -1
    s_waitcnt vmcnt(0) lgkmcnt(0)
    v_bfe_u32 v{TB}, v0, 1, 2
    v_mul_u32_u24 v{TB}, {OP_STRIDE}, v{TB}
    v_lshrrev_b32 v{TA}, 4, v0
    v_lshl_add_u32 v{TB}, v{TA}, 4, v{TB}
    v_and_b32 v{TA}, 1, v0
    v_lshl_add_u32 v{TB}, v{TA}, 7, v{TB}
    v_add_u32 v{TB}, {L_OP}, v{TB}
    v_mul_u32_u24 v{TA}, 0xaaaa, v{TA}
    v_add_u32 v{TA}, 0x4444, v{TA}
    s_lshl_b32 s12, s15, 1
    s_add_u32 s12, s12, s6
    s_lshl_b32 s12, s12, 11
    s_lshl_b32 s13, s7, 9
    s_add_u32 s12, s12, s13
    s_add_u32 s12, s12, {WS_PART1}
    s_and_b32 s18, {TAG}, 0xff
    s_bfe_u32 s19, {TAG}, 0x80008
    s_bfe_u32 s20, {TAG}, 0x80010
    s_lshr_b32 s21, {TAG}, 24
    v_mov_b32 v{TC}, 0xffffff00
    """)
    for i in range(32): a(f"v_mov_b32 v{DD+i}, 0")
    stamp(8)
    barrier()
    if dbg: a("s_memrealtime s[96:97]")
    stamp(9)
    for s in range(2): a(f"ds_read_b128 v[{AF+4*s}:{AF+4*s+3}], v{TB} offset:{64*s}")
    a("s_waitcnt lgkmcnt(0)")
    def smf(d, af, b, ix): a(f"v_smfmac_f32_16x16x64_bf16 v[{d}:{d+3}], v[{af}:{af+3}], v[{b}:{b+7}], v{ix}")
    order = [0, 4, 1, 5, 2, 6, 3, 7]
    OQ = 24
    work = []
    def fin(t):
        d = DD + 4*t
        w_ = [f"v_pk_add_f32 v[{d}:{d+1}], v[{d}:{d+1}], v[{d+2}:{d+3}]", f"v_add_f32 v{d}, v{d}, v{d+1}"]
        return w_
    def fin2(k):
        x, y = DD + 4*k, DD + 4*(k+4)
        return [f"v_permlane16_swap_b32 v{x}, v{y}", f"v_add_f32 v{OQ+k}, v{x}, v{y}", f"v_and_or_b32 v{OQ+k}, v{OQ+k}, v{TC}, s{18+k}"]
    for i, t in enumerate(order):
        if i >= 3: work += fin(order[i-3])
        if i >= 5 and (i - 5) % 2 == 0: work += fin2((i - 5) // 2)
        for sx in range(2):
            smf(DD + 4*t, AF + 4*sx, 64 + (t*4 + 2*sx)*4, TA)
            for _ in range(2):
                if work: a(work.pop(0))
    work += fin(order[5]) + fin(order[6]) + fin2(2) + fin(order[7]) + fin2(3)
    for w_ in work: a(w_)
    a(f"s_mov_b32 exec_hi, 0\nbuffer_store_dwordx4 v[{OQ}:{OQ+3}], v1, s[48:51], s12 offen sc1\ns_mov_b64 exec, -1")
    stamp(10)
    a("s_cmp_lt_u32 s68, 4\ns_cbranch_scc1 L_hend\ns_cmp_lg_u32 s68, 5\ns_cbranch_scc1 L_noffn3")
    SC8, SH8 = 48, 56
    HW_, HF_, GF_, GW_, PO_, MS_ = 10, 11, 12, 13, 4, 5
    mid_bases()
    tr_mid(64, 0)
    tr_mid(128, 0x4000)
    for k in range(4): unpack(SC8 + 2*k, SC8 + 2*k + 1, TREG[k])
    for k in range(4): unpack(SH8 + 2*k, SH8 + 2*k + 1, SB[k])
    IX_ = 6
    act_addr(HF_, "hi", TB)
    ffn_cols(TA, TB)
    a(f"""
    v_lshlrev_b32 v{HW_}, 4, v{TA}
    v_lshl_add_u32 v{HW_}, v{TB}, 2, v{HW_}
    s_mul_i32 s13, s7, {ACT_STRIDE}
    s_add_u32 s13, s13, {L_ACT}
    v_add_u32 v{HW_}, s13, v{HW_}
    v_mul_u32_u24 v{GF_}, {GB_STRIDE}, v{TB}
    v_lshlrev_b32 v{GW_}, 2, v{TB}
    v_and_b32 v{IX_}, 1, v0
    v_lshl_add_u32 v{HF_}, v{IX_}, 9, v{HF_}
    v_lshl_add_u32 v{GF_}, v{IX_}, 6, v{GF_}
    v_lshl_add_u32 v{GW_}, v{IX_}, 1, v{GW_}
    v_mul_u32_u24 v{IX_}, 0xaaaa, v{IX_}
    v_add_u32 v{IX_}, 0x4444, v{IX_}
    v_bfe_u32 v{TB}, v0, 1, 1
    v_lshl_add_u32 v{GW_}, v{TB}, 6, v{GW_}
    v_lshrrev_b32 v{TB}, 4, v0
    v_lshl_add_u32 v{GF_}, v{TB}, 4, v{GF_}
    v_add_u32 v{GF_}, {L_GB}, v{GF_}
    v_mul_u32_u24 v{TA}, {GB_STRIDE}, v{TB}
    s_lshl_b32 s13, s7, 4
    s_add_u32 s13, s13, {L_GB}
    v_add3_u32 v{GW_}, v{GW_}, v{TA}, s13
    v_and_b32 v{TA}, 15, v0
    v_lshlrev_b32 v{TB}, 11, v{TB}
    v_lshl_add_u32 v{PO_}, v{TA}, 4, v{TB}
    v_mov_b32 v{MS_}, 0xffffff00
    """)
    a("L_noffn3:")
    a(f"""
    v_lshrrev_b32 v{TA}, 2, v0
    v_and_b32 v{TB}, 3, v0
    v_lshlrev_b32 v{TC}, 13, v{TA}
    v_lshlrev_b32 v{TA}, 11, v{TA}
    v_lshl_add_u32 v{TA}, v{TB}, 4, v{TA}
    v_lshl_add_u32 v{TC}, v{TB}, 4, v{TC}
    v_lshlrev_b32 v{TB}, 2, v0
    s_and_b32 s12, s69, 7
    s_lshl_b32 s12, s12, 8
    s_lshl_b32 s13, s7, 6
    s_add_u32 s12, s12, s13
    s_lshr_b32 s13, s69, 3
    s_lshl_b32 s14, s13, 11
    s_add_u32 s22, s12, s14
    s_lshl_b32 s13, s13, 17
    s_add_u32 s12, s12, s13
    s_add_u32 s12, s12, {WS_PART1}
    s_add_u32 s13, s12, 0x8000
    s_add_u32 s14, s12, 0x10000
    s_add_u32 s67, s12, 0x18000
    s_add_u32 s23, s22, {WS_X1}
    """)
    if pwait: a(f"s_sleep {pwait}")
    poll("L_poll_p1", [f"buffer_load_dwordx4 v[{32+4*i}:{35+4*i}], v{TA}, s[48:51], {sr} offen sc1" for i, sr in enumerate(["s12", "s13", "s14", "s67"])],
         tags_bytes(4, 32))
    stamp(11)
    def colsum(n):
        st_ = 1
        while st_ < n:
            for i in range(0, n, 2*st_):
                for k in (0, 2): pk("add", 16+4*i+k, 16+4*i+k, 16+4*(i+st_)+k)
            st_ *= 2
        a("""
        v_add_f32_dpp v20, v16, v16 row_ror:8 row_mask:0xf bank_mask:0x3
        v_add_f32_dpp v21, v17, v17 row_ror:8 row_mask:0xf bank_mask:0x3
        v_add_f32_dpp v20, v18, v18 row_ror:8 row_mask:0xf bank_mask:0xc
        v_add_f32_dpp v21, v19, v19 row_ror:8 row_mask:0xf bank_mask:0xc
        v_add_f32_dpp v16, v20, v20 row_shl:4 row_mask:0xf bank_mask:0x5
        v_add_f32_dpp v16, v21, v21 row_shr:4 row_mask:0xf bank_mask:0xa
        """)
        allreduce("v_add_f32", [16], [17], steps=())
    def resid(gate):
        bf16r(16, 16)
        a(f"v_mul_f32 v16, v16, v{gate}")
        bf16r(16, 16)
        a(f"v_add_f32 v16, v16, v{RX}")
    colsum(4)
    resid(RGA)
    a(f"""
    v_mov_b32 v41, {TAG}
    v_mov_b32 v43, {TAG}
    v_mov_b32_dpp v17, v16 quad_perm:[1,1,1,1] {FULL}
    v_mov_b32_dpp v18, v16 quad_perm:[2,2,2,2] {FULL}
    v_mov_b32_dpp v19, v16 quad_perm:[3,3,3,3] {FULL}
    v_cvt_pk_bf16_f32 v40, v16, v17
    v_cvt_pk_bf16_f32 v42, v18, v19
    s_mov_b64 exec, 0x1111
    """)
    def hstore(lbl, stores):
        a(f"s_cmp_eq_u32 s44, 1\ns_cbranch_scc0 {lbl}_s")
        for st_ in stores: a(f"{st_} {fpol}")
        a(f"s_branch {lbl}_e\n{lbl}_s:")
        for st_ in stores: a(f"{st_} sc1")
        a(f"{lbl}_e:")
    hstore("L_sx1", [f"buffer_store_dwordx4 v[40:43], v{TB}, s[48:51], s23 offen"])
    a("s_mov_b64 exec, -1")
    stamp(12)
    bf16r(RX, 16)
    a("s_cmp_lg_u32 s68, 5\ns_cbranch_scc1 L_red2")
    a(f"""
    s_lshl_b32 s12, s7, 11
    s_add_u32 s12, s12, {WS_X1}
    s_lshl_b32 s13, s69, 13
    s_lshl_b32 s14, s7, 9
    s_add_u32 s13, s13, s14
    s_add_u32 s23, s13, {WS_PART2}
    """)
    poll("L_poll_x1", ["buffer_load_dwordx4 v[16:19], v1, s[48:51], s12 offen sc1", "buffer_load_dwordx4 v[20:23], v1, s[48:51], s12 offen offset:1024 sc1"],
         tags_xor([17, 19, 21, 23], 24))
    stamp(1)
    X2, S2 = 24, 32
    for k in range(4): unpack(X2 + 2*k, X2 + 2*k + 1, 16 + 2*k)
    ln_norm(X2, S2)
    ln_affine(X2, SC8, SH8, 16)
    G, U, GT = 56, 60, 14
    a(f"ds_write2_b32 v{HW_}, v16, v17 offset0:0 offset1:128\nds_write2_b32 v{HW_}, v18, v19 offset0:64 offset1:192")
    for i in range(8): a(f"v_mov_b32 v{G+i}, 0")
    a("s_waitcnt lgkmcnt(0)")
    barrier()
    for k in range(8): a(f"ds_read_b128 v[{16+4*k}:{19+4*k}], v{HF_} offset:{k*64}")
    for k in range(8):
        a(f"s_waitcnt lgkmcnt({7-k})")
        smf(G, 16 + 4*k, 64 + 8*k, IX_)
    DZ = 64
    gelu = [f"v_add_f32 v{G}, v{G}, v{G+1}", f"v_cvt_pk_bf16_f32 v{G}, 0, v{G}", f"v_mul_f32 v{GT}, v{G}, v{G}", f"v_mul_f32 v{GT}, 0x3d372713, v{GT}",
            f"v_fma_f32 v{GT}, v{GT}, v{G}, v{G}", f"v_mul_f32 v{GT}, 0x40135761, v{GT}", f"v_exp_f32 v{GT}, -v{GT}",
            f"v_add_f32 v{GT}, 1.0, v{GT}", f"v_rcp_f32 v{GT}, v{GT}", f"v_mul_f32 v{GT}, v{GT}, v{G}", f"v_cvt_pk_bf16_f32 v{GT}, 0, v{GT}"]
    zero = [f"v_mov_b32 v{DZ+4*t+r}, 0" for t in range(8) for r in range(2)]
    for k in range(8):
        smf(U, 16 + 4*k, 128 + 8*k, IX_)
        if k < 3:
            for _ in range(2): a(zero.pop(0))
        else:
            a(gelu.pop(0)); a(gelu.pop(0))
    while gelu: a(gelu.pop(0))
    a(f"v_add_f32 v{U}, v{U}, v{U+1}")
    bf16r(U, U)
    a(f"""
    v_mul_f32 v{GT}, v{GT}, v{U}
    v_cvt_pk_bf16_f32 v{GT}, v{GT}, v{GT}
    ds_write_b16 v{GW_}, v{GT}
    """)
    while zero: a(zero.pop(0))
    a("s_waitcnt lgkmcnt(0)")
    barrier()
    a(f"""
    ds_read_b128 v[{AF}:{AF+3}], v{GF_}
    s_waitcnt lgkmcnt(0)
    """)
    assert not zero
    fw = []
    for t in range(8):
        smf(DZ + 4*t, AF, 192 + 8*t, IX_)
        if t >= 4:
            tt = t - 4
            a(f"v_add_f32 v{24+tt}, v{DZ+4*tt}, v{DZ+4*tt+1}")
            a(f"v_and_or_b32 v{24+tt}, v{24+tt}, v{MS_}, s{18+(tt&3)}")
    for tt in range(4, 8):
        a(f"v_add_f32 v{24+tt}, v{DZ+4*tt}, v{DZ+4*tt+1}")
        a(f"v_and_or_b32 v{24+tt}, v{24+tt}, v{MS_}, s{18+(tt&3)}")
    hstore("L_sp2", [f"buffer_store_dwordx4 v[{24+4*g}:{27+4*g}], v{PO_}, s[48:51], s23 offen offset:{256*g}" for g in range(2)])
    stamp(2)
    a("L_red2:")
    a(f"""
    s_add_u32 s12, s22, {WS_PART2}
    s_add_u32 s13, s12, 0x20000
    v_mov_b32 v36, s18
    v_mov_b32 v37, s19
    v_mov_b32 v38, s20
    v_mov_b32 v39, s21
    v_bfe_u32 v{TA}, v0, 2, 2
    v_and_b32 v{TB}, 3, v0
    v_lshlrev_b32 v{TA}, 5, v{TA}
    v_lshl_add_u32 v{TA}, v{TB}, 1, v{TA}
    """)
    srd(52, P_OUT, 4096)
    if dry: a("s_cmp_eq_u32 s0, 1\ns_cselect_b32 s54, 0, s54")
    poll("L_poll_p2", [f"buffer_load_dwordx4 v[32:35], v{TC}, s[48:51], s12 offen sc1", "s_mov_b32 exec_hi, 0xffff",
                       f"buffer_load_dwordx4 v[36:39], v{TC}, s[48:51], s13 offen sc1"],
         tags_bytes(2, 44), post="s_mov_b64 exec, -1")
    stamp(13)
    colsum(2)
    resid(RGB)
    a(f"""
    v_cvt_pk_bf16_f32 v16, v16, v16
    s_mov_b64 exec, 0xffff
    buffer_store_short v16, v{TA}, s[52:55], s71 offen
    s_or_b32 s12, s2, s7
    s_cbranch_scc1 L_hend
    s_mov_b64 exec, 1
    v_mov_b32 v17, {TAG}
    v_mov_b32 v18, 0
    buffer_store_dword v17, v18, s[48:51], 0 offen sc1
    """)
    if dbg:
        a("s_cmp_eq_u32 s0, 1\ns_cbranch_scc1 L_hend\ns_memrealtime s[94:95]\ns_waitcnt lgkmcnt(0)\ns_sub_u32 s94, s94, s60\ns_sub_u32 s96, s96, s60\ns_sub_u32 s98, s98, s60")
        srd(8, 40, 256)
        for i, r in enumerate([98, 91, 92, 93, 96, 94]):
            a(f"v_mov_b32 v17, s{r}\nbuffer_store_dword v17, v18, s[8:11], 0 offen offset:{4*i}")
    if pad:
        a(f"s_cmp_eq_u32 s0, 1\ns_cbranch_scc1 L_hend\nL_pad:\ns_memrealtime s[94:95]\ns_waitcnt lgkmcnt(0)\ns_sub_u32 s94, s94, s60\ns_cmp_lt_u32 s94, {pad}\ns_cbranch_scc1 L_pad")
    a("L_hend:")
    if dry: a("s_cmp_eq_u32 s0, 1\ns_cbranch_scc0 L_fin\ns_cmp_ge_u32 s68, 4\ns_cbranch_scc1 L_afterdry1\ns_branch L_afterdry2\nL_fin:")
    stamp(14)
    if diag:
        a(f"""
        s_mov_b64 exec, -1
        v_lshlrev_b32 v1, 4, v0
        v_add_u32 v20, {L_FL+F_TT}, v1
        s_mov_b32 exec_hi, 0
        ds_read_b128 v[16:19], v20
        s_lshl_b32 s12, s2, 9
        s_add_u32 s12, s12, {WS_DBG + 0x40000}
        s_waitcnt lgkmcnt(0)
        buffer_store_dwordx4 v[16:19], v1, s[48:51], s12 offen
        """)
    dump_stamps(15)
    a("L_end:")
    a("s_endpgm")
    a('.section .rodata,"a"')
    a(".p2align 6")
    a(f".amdhsa_kernel {NAME}_kernel")
    a("""
    .amdhsa_next_free_vgpr 256
    .amdhsa_next_free_sgpr 102
    .amdhsa_accum_offset 256
    .amdhsa_group_segment_fixed_size 0
    .amdhsa_kernarg_size 112
    .amdhsa_user_sgpr_count 2
    .amdhsa_user_sgpr_kernarg_segment_ptr 1
    .amdhsa_system_sgpr_workgroup_id_x 1
    .amdhsa_float_denorm_mode_32 3
    .end_amdhsa_kernel
    """)
    return out + a.text()

if __name__ == "__main__":
    kw = eval("dict(" + (sys.argv[2] if len(sys.argv) > 2 else "") + ")")
    open(sys.argv[1], "w").write(gen(**kw))
```

```python
import sys
from asmlib import Asm

NAME = "adaLN_cond__mha_block_cached__geglu_ffn__decode"
WS_MOD = 0x1000
WS_Q = 0x10000
WS_STATS = 0x20000
WS_X1 = 0x28000
WS_PART2 = 0x40000
WS_PART1 = 0x80000
WS_FAST = 0
WS_XCC = 0x30000
WS_TM, TMSTR = 0x280000, 4352
WS_DBG, WS_SIZE = 0x200000, 0x400000
L_W, L_ACT, L_Q, L_OP, L_GB, L_FL = 0, 0x20000, 0x21200, 0x21400, 0x21A00, 0x21E00
ACT_STRIDE, OP_STRIDE, GB_STRIDE = 1088, 320, 192
LDS_BYTES = 0x22200
F_FAC, F_KD, F_WF, F_WQ, F_WQD, F_H, F_G1, F_G2, F_ST, F_TT = 0, 64, 80, 96, 112, 128, 144, 160, 192, 256
NFFN = 28
SPIN_MAX = 1 << 20
P_X, P_K, P_V, P_WQ, P_WO, P_WG, P_WU, P_WD, P_C, P_WM, P_OUT, P_WS = 16, 18, 20, 22, 24, 28, 30, 32, 34, 36, 38, 42
TAG = "s45"
LOG2E, SCALE, HIMASK = "s64", "s65", "s66"


DOC = """;
;    the partner workgroup, output projection, and (workgroups with id % 8 == 0) reduction, LayerNorm, GEGLU FFN.
;  * load balance: every streamer compares its progress with a pace line averaged over a sample of workgroups
;    and picks how many loads it keeps in flight for the next 16 KB (4..7), so that all CUs finish together.
;  * sleeps appear only as back-off inside polling loops; every polling loop is bounded.
"""

def gen(D=5, A=8, E=4, P=48, PL=32, DP=5, D2=7, NE=1, thr=2, thrA=2, thrF=3, thrQ=4, thrD=3, slp=16, diag=False,
        levels=((4,-50),(5,30),(6,100),(7,None)), f1=0.147, f2=0.965, f3=0.985, ms=(4, 8, 12), lagK=2, lagV=1, lag3=1, early=30, D0=None, N0=0, gq=40, gm=20,
        kctl=True, fast=True, fpol='', touch=10, touch1=False, touchp=0, pwait=0, contig=False, mk=5, fk=0.97, nb0=8, mpoll=False, trlate=False, ilv=False, diag2=False, fa_at=13, wpol='nt', noround=0, endat=99, endD=7, endbias=0, fin=7, epearly=True, opol='', otouch=False, p1first=False, p1q=False, wsh=0, psw=80, rotw=None, rotm=None, J=80, up=1.03, eth=45, boost=0.92, dry=True, lastctl=True, tlb=True, dbg=False, pad=0, l2warm=True, skip=''):
    a = Asm()
    def stamp(k):
        if diag: a(f"s_memrealtime s[{72+2*k}:{73+2*k}]")
    def srd(reg, ptr, nbytes):
        a(f"s_mov_b32 s{reg}, s{ptr}\ns_mov_b32 s{reg+1}, s{ptr+1}\ns_mov_b32 s{reg+2}, {nbytes}\ns_mov_b32 s{reg+3}, 0x20000")
    def dump_stamps(n):
        if not diag: return
        a("s_waitcnt lgkmcnt(0)")
        a("s_mov_b64 exec, 1")
        a("s_lshl_b32 s46, s2, 3\ns_add_u32 s46, s46, s3\ns_lshl_b32 s46, s46, 6")
        a(f"s_add_u32 s46, s46, {WS_DBG}")
        a("v_mov_b32 v1, 0")
        for k in range(n):
            a(f"v_mov_b32 v2, s{72+2*k}")
            a(f"buffer_store_dword v2, v1, s[48:51], s46 offen offset:{4*k}")
    FULL = "row_mask:0xf bank_mask:0xf"
    def allreduce(op, rs, tmps, rows_only=False, steps=("quad_perm:[1,0,3,2]", "quad_perm:[2,3,0,1]", "row_half_mirror", "row_mirror")):
        for st in steps:
            for r in rs: a(f"{op}_dpp v{r}, v{r}, v{r} {st} {FULL}")
        if rows_only: return
        for sw in ("v_permlane16_swap_b32", "v_permlane32_swap_b32"):
            for r, t in zip(rs, tmps): a(f"v_mov_b32 v{t}, v{r}")
            for r, t in zip(rs, tmps): a(f"{sw} v{r}, v{t}")
            for r, t in zip(rs, tmps): a(f"{op} v{r}, v{r}, v{t}")
    def bf16r(d, s):
        a(f"v_cvt_pk_bf16_f32 v{d}, 0, v{s}")
    def bf16r2(lo, hi, t):
        a(f"v_cvt_pk_bf16_f32 v{t}, v{lo}, v{hi}\nv_lshlrev_b32 v{lo}, 16, v{t}\nv_and_b32 v{hi}, {HIMASK}, v{t}")
    def unpack(lo, hi, s):
        a(f"v_lshlrev_b32 v{lo}, 16, v{s}\nv_and_b32 v{hi}, {HIMASK}, v{s}")
    def spin_begin(): a("s_mov_b32 s70, 0")
    def spin_check(): a(f"s_add_u32 s70, s70, 1\ns_cmp_gt_u32 s70, {SPIN_MAX}\ns_cbranch_scc1 L_end")
    MKTAG = "s_mul_i32 s45, s44, 1664525\ns_add_u32 s45, s45, 1013904223"
    BAR0 = "s_load_dword s44, s[42:43], 0\ns_barrier"
    def set_flag(row, widx, va, vb):
        a(f"s_lshl_b32 s47, {widx}, 2\ns_add_u32 s47, s47, {L_FL+row}\nv_mov_b32 v{va}, s47\nv_mov_b32 v{vb}, 1\nds_write_b32 v{va}, v{vb}")
    def wait_flags(lbl, row, t, sleep):
        spin_begin()
        a(f"v_mov_b32 v{t+4}, {L_FL+row}")
        a(f"{lbl}:")
        spin_check()
        if sleep: a(f"s_sleep {sleep}")
        a(f"""
        ds_read_b128 v[{t}:{t+3}], v{t+4}
        s_waitcnt lgkmcnt(0)
        v_and_b32 v{t}, v{t}, v{t+1}
        v_and_b32 v{t+2}, v{t+2}, v{t+3}
        v_and_b32 v{t}, v{t}, v{t+2}
        v_readfirstlane_b32 s47, v{t}
        s_cmp_eq_u32 s47, 1
        s_cbranch_scc0 {lbl}
        """)

    hdr = open("cdna_kernels/" + NAME + ".s.ref").read().split("; Override launch")[0]
    out = hdr + f"; @launch grid=(256,1,1) block=(512,1,1) lds={LDS_BYTES}\n" + DOC
    a('.amdgcn_target "amdgcn-amd-amdhsa--gfx950"')
    a(".text")
    a(f".globl {NAME}_kernel")
    a(".p2align 8")
    a(f".type {NAME}_kernel,@function")
    a(f"{NAME}_kernel:")
    a("""
    s_cmp_ge_u32 s2, 256
    s_cbranch_scc1 L_end
    s_load_dwordx16 s[16:31], s[0:1], 0
    s_load_dwordx8 s[32:39], s[0:1], 64
    s_load_dwordx4 s[40:43], s[0:1], 96
    """)
    if diag:
        for k in range(1, 15): a(f"s_mov_b32 s{72+2*k}, 0")
    stamp(0)
    a("""
    v_lshrrev_b32 v1, 6, v0
    v_and_b32 v0, 63, v0
    v_readfirstlane_b32 s3, v1
    v_lshlrev_b32 v1, 4, v0
    s_lshr_b32 s12, s2, 3
    s_and_b32 s4, s12, 3
    s_lshl_b32 s4, s4, 3
    s_and_b32 s13, s2, 7
    s_add_u32 s4, s4, s13
    s_bfe_u32 s5, s12, 0x20002
    s_lshr_b32 s6, s12, 4
    s_mov_b32 s64, 0x3fb8aa3b
    s_mov_b32 s65, 0x3db504f3
    s_mov_b32 s66, 0xffff0000
    s_lshl_b32 s15, s5, 5
    s_add_u32 s15, s15, s4
    s_cmp_ge_u32 s3, 4
    s_cbranch_scc1 L_helper
    """)

    Q, MK, BB, ACC, PT, XX, YY, T0, T1, SC, RING = 2, 6, 10, 14, 18, 34, 42, 46, 47, 48, 64
    a(f"""
    s_lshl_b32 s13, s15, 21
    s_lshl_b32 s14, s6, {14 if ilv else 20}
    s_add_u32 s13, s13, s14
    s_lshl_b32 s14, s3, 12
    s_add_u32 s13, s13, s14
    s_mov_b32 s12, s13
    s_lshl_b32 s14, s3, 15
    s_waitcnt lgkmcnt(0)
    s_mov_b32 s0, 0
    """)
    if diag2: stamp(1)
    srd(8, P_K, 0x10000000)
    st = {"issued": 0, "landed": 0}
    PT_ = P + PL
    assert P % 4 == 0 and PL <= 32
    def ldsoff(n): return ((n - P + 16) % 32) * 1024
    def slot(n):
        if n < P: return RING + 4 * n
        if n < PT_: return RING + 4 * (16 + n - P)
        return RING + 4 * ((n - PT_) % 16)
    def issue(n):
        if P <= n < PT_:
            if n & 3 == 0: a(f"s_add_u32 m0, s14, {ldsoff(n)}")
            a(f"buffer_load_dwordx4 v1, s[8:11], s12 offen offset:{(n&3)*1024} nt lds")
        else:
            r = slot(n)
            a(f"buffer_load_dwordx4 v[{r}:{r+3}], v1, s[8:11], s12 offen offset:{(n&3)*1024} nt")
        if n & 3 == 3: a(f"s_add_u32 s12, s12, {0x8000 if ilv else 0x4000}")
        st["issued"] = n + 1
    def throttle(d=None):
        d = d or D
        a(f"s_waitcnt vmcnt({d-1})")
        st["landed"] = max(st["landed"], st["issued"] - (d - 1))
    def ensure(n):
        if n >= st["landed"]:
            k = st["issued"] - 1 - n
            a(f"s_waitcnt vmcnt({k})"); st["landed"] = n + 1
    for n in range(PT_):
        if n == P + 16: wait_flags("L_wqd", F_WQD, PT, 0)
        dd_ = D0 if (D0 and n < N0) else DP
        if n >= dd_: throttle(dd_)
        if diag2 and n == dd_: stamp(2)
        if diag2 and n == 2*dd_: stamp(3)
        if diag2 and n == 20: stamp(5)
        issue(n)
        if n == max(DP, D0 or 0) - 1:
            srd(48, P_WS, WS_SIZE)
            a(f"""
            s_mov_b32 s60, 0xaaaaaaaa
            s_mov_b32 s61, 0xaaaaaaaa
            s_mov_b32 s62, 0xcccccccc
            s_mov_b32 s63, 0xcccccccc
            v_and_b32 v{T0}, 15, v0
            v_and_b32 v{T1}, 1, v0
            v_lshlrev_b32 v{T1}, 4, v{T1}
            v_mov_b32 v{PT}, 0xffff
            v_lshlrev_b32 v{T1}, v{T1}, v{PT}
            v_lshrrev_b32 v{PT}, 1, v{T0}
            """)
            for t in range(4):
                a(f"v_cmp_eq_u32 vcc, {t}, v{PT}\nv_cndmask_b32 v{MK+t}, 0, v{T1}, vcc")
            for t in range(4): a(f"v_mov_b32 v{ACC+t}, 0")
            a(f"v_lshlrev_b32 v{T0}, 4, v{T0}\nv_add_u32 v{T0}, {L_Q}, v{T0}")
        if n == nb0: a("s_barrier")
        if n == gm: set_flag(F_G1, "s3", PT, PT+1)
        if n == gq: set_flag(F_G2, "s3", PT, PT+1)
    if not diag2: stamp(1)
    a("s_barrier")
    if not diag2: stamp(2)
    a(f"ds_read_b128 v[{Q}:{Q+3}], v{T0}\nv_add_u32 v{T0}, s14, v1\ns_waitcnt lgkmcnt(0)")
    def kdots(n):
        r = slot(n); p = PT + n % 16
        a(f"v_dot2_f32_bf16 v{p}, v{r}, v{Q}, 0")
        for i in range(1, 4): a(f"v_dot2_f32_bf16 v{p}, v{r+i}, v{Q+i}, v{p}")
    def kreduce(dst):
        for j in range(8): a(f"v_add_f32_dpp v{XX+j}, v{PT+j}, v{PT+j} row_ror:8 row_mask:0xf bank_mask:0x3")
        for j in range(8): a(f"v_add_f32_dpp v{XX+j}, v{PT+8+j}, v{PT+8+j} row_ror:8 row_mask:0xf bank_mask:0xc")
        for j in range(4): a(f"v_add_f32_dpp v{YY+j}, v{XX+j}, v{XX+j} row_half_mirror row_mask:0xf bank_mask:0x5")
        for j in range(4): a(f"v_add_f32_dpp v{YY+j}, v{XX+4+j}, v{XX+4+j} row_half_mirror row_mask:0xf bank_mask:0xa")
        for j in range(2):
            a(f"v_cndmask_b32 v{XX+2*j}, v{YY+j+2}, v{YY+j}, s[62:63]")
            a(f"v_cndmask_b32 v{XX+2*j+1}, v{YY+j}, v{YY+j+2}, s[62:63]")
        for j in range(2):
            a(f"v_add_f32_dpp v{XX+4+j}, v{XX+2*j}, v{XX+2*j+1} quad_perm:[2,3,0,1] {FULL}")
        a(f"v_cndmask_b32 v{XX}, v{XX+5}, v{XX+4}, s[60:61]")
        a(f"v_cndmask_b32 v{XX+1}, v{XX+4}, v{XX+5}, s[60:61]")
        a(f"v_add_f32_dpp v{XX+2}, v{XX}, v{XX+1} quad_perm:[1,0,3,2] {FULL}")
        if noround < 1: bf16r(XX+2, XX+2)
        a(f"v_mul_f32 v{XX+2}, {SCALE}, v{XX+2}")
        if noround < 2: bf16r(dst, XX+2)
        else: a(f"v_mov_b32 v{dst}, v{XX+2}")
    tgt = -(-(PT_ + 16 - A + 4) // 16) * 16
    NPEEL = tgt // 16
    KL = 16 - NPEEL
    cons = {"n": 0}
    def consume_k_upto(m):
        while cons["n"] < m:
            n = cons["n"]
            if n == P:
                a("s_waitcnt lgkmcnt(0)")
                set_flag(F_WF, "s3", T0, T1)
            ensure(n); kdots(n); cons["n"] += 1
            m2 = n - 16 + P
            if n >= 16 and P <= m2 < PT_:
                ensure(m2)
                r = slot(m2)
                a(f"ds_read_b128 v[{r}:{r+3}], v{T0} offset:{ldsoff(m2)}")
            if n % 16 == 15: kreduce(SC + n // 16 + KL)
    nsteps = tgt + A - PT_
    for s in range(nsteps):
        n = PT_ + s
        prev = s if s < 16 else n - 16
        if s <= 16: want = 1 + -(-PT_ * s // 16)
        else: want = PT_ + 1 + -(-(tgt - PT_ - 1) * (s - 16) // (nsteps - 16))
        want = min(want, max(st["landed"], PT_))
        consume_k_upto(min(max(want, prev + 1), tgt))
        throttle(); issue(n)
    a("s_memrealtime s[52:53]")
    consume_k_upto(tgt)
    FA, FAD, TTA, TTV = 128, 132, 133, 134
    LV = [x[0] for x in levels]
    def ln_(dd): return str(dd).replace(".", "p")
    def dstep(dd, j):
        import math
        return int(math.floor((j + 1) * dd) - math.floor(j * dd))
    a(f"""
    s_mov_b32 s14, 0
    s_mov_b32 s56, 0
    s_mov_b32 s57, 0
    s_mov_b32 s58, 0
    s_mov_b32 s59, 0
    s_lshl_b32 s47, s3, 4
    s_add_u32 s47, s47, {L_FL+F_FAC}
    v_mov_b32 v{FAD}, s47
    s_lshl_b32 s47, s3, 2
    s_add_u32 s47, s47, {L_FL+F_TT}
    v_mov_b32 v{TTA}, s47
    v_mov_b32 v{FA+3}, 0
    """)
    def record():
        a(f"""
        s_waitcnt lgkmcnt(0)
        s_or_b32 s53, s52, 1
        v_mov_b32 v{TTV}, s53
        ds_write_b32 v{TTA}, v{TTV}
        v_add_u32 v{TTA}, 16, v{TTA}
        """)
    def dispatch(pre):
        a(f"""
        v_readfirstlane_b32 s55, v{FA+3}
        v_readfirstlane_b32 s54, v{FA+2}
        s_cmp_eq_u32 s55, 0
        s_cbranch_scc1 {pre}{ln_(D)}
        s_mul_i32 s55, s55, s56
        s_lshr_b32 s55, s55, 4
        s_sub_u32 s52, s52, s54
        s_sub_u32 s52, s52, s55
        """)
        if J:
            a(f"""
            s_sub_u32 s55, s52, s57
            s_mov_b32 s57, s52
            s_cmp_gt_i32 s55, {J}
            s_cselect_b32 s55, s55, 0
            s_add_u32 s59, s59, s55
            s_cmp_eq_u32 s54, s58
            s_cselect_b32 s59, s59, 0
            s_mov_b32 s58, s54
            s_sub_u32 s52, s52, s59
            """)
        if wsh: a(f"s_cmp_lt_u32 s56, {psw}\ns_cselect_b32 s55, {wsh}, 0\ns_ashr_i32 s52, s52, s55")
        for dd, th in levels:
            if th is None: a(f"s_branch {pre}{ln_(dd)}")
            else: a(f"s_cmp_lt_i32 s52, {th}\ns_cbranch_scc1 {pre}{ln_(dd)}")
    a("; ---- K loop: record progress, choose the prefetch depth, run one 16-tile body")
    a("L_kdisp:")
    record()
    a(f"s_cmp_ge_u32 s14, {KL}\ns_cbranch_scc1 L_kdone")
    if kctl: dispatch("L_k")
    for dd in (LV if kctl else [D]):
        assert dd <= A
        a(f"L_k{ln_(dd)}:")
        for j in range(16):
            n = tgt + j
            if j == fa_at: a(f"ds_read_b128 v[{FA}:{FA+3}], v{FAD}")
            a(f"s_waitcnt vmcnt({dstep(dd, j)-1})")
            if j == 16 - A:
                a(f"s_cmp_eq_u32 s14, {KL-1}\ns_cselect_b32 s8, s{P_V}, s8\ns_cselect_b32 s9, s{P_V+1}, s9\ns_cselect_b32 s12, s13, s12")
            issue(n + A)
            if j == 15: a("s_memrealtime s[52:53]")
            kdots(n)
            if j == 7:
                for i in range(15): a(f"v_mov_b32 v{SC+i}, v{SC+i+1}")
        kreduce(SC + 15)
        a("s_add_u32 s14, s14, 1\ns_add_u32 s56, s56, 4\ns_branch L_kdisp")
    a("L_kdone:")
    if not diag2: stamp(3)
    ex = {"n": 256 + A}
    def extra():
        if ex["n"] < 256 + A + E:
            a(f"s_waitcnt vmcnt({D-1})"); issue(ex["n"]); ex["n"] += 1
    extra()
    M, Ls = PT, PT + 1
    a(f"v_max3_f32 v{M}, v{SC}, v{SC+1}, v{SC+2}")
    for i in range(3, 15, 2): a(f"v_max3_f32 v{M}, v{M}, v{SC+i}, v{SC+i+1}")
    a(f"v_max_f32 v{M}, v{M}, v{SC+15}")
    allreduce("v_max_f32", [M], [T0])
    a(f"v_mul_f32 v{T1}, {LOG2E}, v{M}")
    extra()
    for i in range(16): a(f"v_fma_f32 v{SC+i}, v{SC+i}, {LOG2E}, -v{T1}")
    for i in range(16): a(f"v_exp_f32 v{SC+i}, v{SC+i}")
    extra()
    a(f"v_add_f32 v{Ls}, v{SC}, v{SC+1}\nv_add_f32 v{Ls+1}, v{SC+2}, v{SC+3}")
    for i in range(4, 16, 2): a(f"v_add_f32 v{Ls}, v{Ls}, v{SC+i}\nv_add_f32 v{Ls+1}, v{Ls+1}, v{SC+i+1}")
    a(f"v_add_f32 v{Ls}, v{Ls}, v{Ls+1}")
    for i in range(16): a(f"v_cvt_pk_bf16_f32 v{SC+i}, v{SC+i}, v{SC+i}")
    extra()
    allreduce("v_add_f32", [Ls], [T0])
    a(f"ds_write_b64 v{FAD}, v[{M}:{Ls}] offset:{F_ST-F_FAC}")
    set_flag(F_KD, "s3", PT+5, PT+6)
    while ex["n"] < 256 + A + E: extra()
    a("s_memrealtime s[52:53]")
    AV = A + E
    assert AV <= 15
    a(f"""
    v_lshrrev_b32 v{PT}, 4, v0
    v_lshlrev_b32 v{PT}, 5, v{PT}
    v_bfe_u32 v{PT+1}, v0, 1, 1
    v_lshl_add_u32 v{PT}, v{PT+1}, 7, v{PT}
    v_bfe_u32 v{PT+1}, v0, 2, 1
    v_lshl_add_u32 v{PT}, v{PT+1}, 2, v{PT}
    v_and_b32 v{PT+1}, 1, v0
    v_lshl_add_u32 v{PT}, v{PT+1}, 1, v{PT}
    s_mul_i32 s46, s3, {OP_STRIDE}
    s_add_u32 s46, s46, {L_OP}
    v_add_u32 v{PT}, s46, v{PT}
    s_mov_b32 s14, 0
    s_add_u32 s56, s56, {E//4}
    s_waitcnt lgkmcnt(0)
    """)
    def vbody(dd, last, timed):
        assert dd <= AV
        for j in range(16):
            n = 256 + j
            if j == fa_at: a(f"ds_read_b128 v[{FA}:{FA+3}], v{FAD}")
            for t in range(4): a(f"v_and_b32_dpp v{BB+t}, v{SC}, v{MK+t} row_newbcast:{j} {FULL}")
            a(f"s_waitcnt vmcnt({dstep(dd, j)-1})")
            if j == 16 - AV and last:
                a("s_cmp_eq_u32 s14, 15\ns_cselect_b32 s10, 0, s10")
            issue(n + AV)
            r = slot(n)
            if j == 15 and timed: a("s_memrealtime s[52:53]")
            a(f"v_mfma_f32_16x16x32_bf16 v[{ACC}:{ACC+3}], v[{r}:{r+3}], v[{BB}:{BB+3}], v[{ACC}:{ACC+3}]")
        if lastctl and not fin: a("s_cmp_eq_u32 s14, 15\ns_cbranch_scc1 L_sepi")
        for i in range(15): a(f"v_mov_b32 v{SC+i}, v{SC+i+1}")
        a("s_add_u32 s14, s14, 1\ns_add_u32 s56, s56, 4")
    assert NE >= 1
    a("s_branch L_vd1")
    a("; ---- V loop")
    a("L_vdisp:")
    if lastctl:
        record()
    else:
        record()
        a(f"s_cmp_ge_u32 s14, {16-NE}\ns_cbranch_scc1 L_vlast")
    if fin: a("s_cmp_eq_u32 s14, 15\ns_cbranch_scc1 L_vfin")
    if endat < 16: a(f"s_cmp_ge_u32 s14, {endat}\ns_cbranch_scc1 L_v{ln_(endD)}")
    if endbias: a(f"s_cmp_ge_u32 s14, 14\ns_cselect_b32 s55, {endbias}, 0\ns_add_u32 s52, s52, s55\ns_add_u32 s57, s57, s55")
    a("L_vd1:")
    dispatch("L_v")
    for dd in LV:
        a(f"L_v{ln_(dd)}:")
        vbody(dd, lastctl and not fin, True)
        a("s_branch L_vdisp")
    if fin:
        a("L_vfin:")
        a(f"ds_read_b128 v[{FA}:{FA+3}], v{FAD}")
        st["issued"] = 496 + AV; st["landed"] = 496 + AV - max(int(x + 0.999) for x in LV)
        def vcons(n):
            j = n - 496
            bb = BB if j & 1 else XX
            for t in range(4): a(f"v_and_b32_dpp v{bb+t}, v{SC}, v{MK+t} row_newbcast:{j} {FULL}")
            ensure(n)
            r = slot(n)
            a(f"v_mfma_f32_16x16x32_bf16 v[{ACC}:{ACC+3}], v[{r}:{r+3}], v[{bb}:{bb+3}], v[{ACC}:{ACC+3}]")
        c_ = 496
        for n in range(496 + AV, 512):
            throttle(fin); issue(n)
            for _ in range(2):
                if c_ < st["landed"]: vcons(c_); c_ += 1
        a("L_vfin2:")
        while c_ < 512: vcons(c_); c_ += 1
    if not lastctl:
        a("L_vlast:")
        vbody(D2, True, False)
        a("s_cmp_lt_u32 s14, 16\ns_cbranch_scc1 L_vlast")
    a("L_sepi:")
    if not fin: a("s_nop 7")
    stamp(4)
    a(f"s_waitcnt lgkmcnt(0)\nv_readfirstlane_b32 s46, v{FA+1}\ns_mov_b32 s70, 0\ns_or_b32 s46, s46, s0\ns_cmp_lg_u32 s46, 0\ns_cbranch_scc0 L_facspin")
    a("L_facok:")
    for t in range(4): a(f"v_mul_f32 v{ACC+t}, v{ACC+t}, v{FA}")
    a(f"v_cvt_pk_bf16_f32 v{ACC}, v{ACC}, v{ACC+1}\nv_cvt_pk_bf16_f32 v{ACC+2}, v{ACC+2}, v{ACC+3}")
    a(f"""
    s_mov_b32 exec_lo, 0x00ff00ff
    s_mov_b32 exec_hi, 0x00ff00ff
    ds_write_b16 v{PT}, v{ACC}
    ds_write_b16_d16_hi v{PT}, v{ACC} offset:8
    ds_write_b16 v{PT}, v{ACC+2} offset:16
    ds_write_b16_d16_hi v{PT}, v{ACC+2} offset:24
    s_waitcnt lgkmcnt(0)
    """)
    if dry: a("s_cmp_eq_u32 s0, 1\ns_cbranch_scc1 L_tail0")
    a("s_barrier")
    if not diag2: stamp(5)
    dump_stamps(6)
    a("s_endpgm")
    a("L_facspin:")
    spin_check()
    a(f"ds_read_b128 v[{FA}:{FA+3}], v{FAD}\ns_waitcnt lgkmcnt(0)\nv_readfirstlane_b32 s46, v{FA+1}\ns_cmp_eq_u32 s46, 1\ns_cbranch_scc0 L_facspin\ns_branch L_facok")

    a("L_helper:")
    TRB, DA, DB, DN, TA, TB, TC = 2, 4, 5, 6, 7, 8, 9
    a(f"""
    s_memrealtime s[60:61]
    s_sub_u32 s7, s3, 4
    """)
    def lane_consts():
        a(f"""
        v_lshrrev_b32 v{TA}, 4, v0
        v_bfe_u32 v{TB}, v0, 2, 2
        v_and_b32 v{TC}, 3, v0
        v_lshl_add_u32 v{TRB}, v{TA}, 3, v{TB}
        v_lshlrev_b32 v{TRB}, 8, v{TRB}
        v_lshl_add_u32 v{TRB}, v{TC}, 3, v{TRB}
        v_and_b32 v{TC}, 1, v{TA}
        v_lshl_add_u32 v{TB}, v{TC}, 2, v{TB}
        v_lshl_add_u32 v{TRB}, v{TB}, 5, v{TRB}
        s_lshl_b32 s12, s7, 15
        v_add_u32 v{TRB}, s12, v{TRB}
        v_and_b32 v{TB}, 15, v0
        v_lshlrev_b32 v{TC}, 1, v{TA}
        v_xor_b32 v{TB}, v{TB}, v{TC}
        v_lshlrev_b32 v{DN}, 4, v{TB}
        v_mov_b32 v{DA}, 0
        """)
    lane_consts()
    a(f"""
    s_lshr_b32 s69, s2, 3
    s_and_b32 s12, s2, 7
    s_mov_b32 s68, 4
    s_cmp_lt_u32 s69, {NFFN}
    s_cselect_b32 s68, 5, s68
    s_cmp_eq_u32 s12, 0
    s_cbranch_scc1 L_role
    s_mul_i32 s69, s69, 7
    s_add_u32 s69, s69, s12
    s_sub_u32 s69, s69, 1
    s_mov_b32 s68, 1
    s_cmp_lt_u32 s69, 16
    s_cbranch_scc1 L_role
    s_sub_u32 s69, s69, 16
    s_mov_b32 s68, 3
    s_cmp_lt_u32 s69, 64
    s_cbranch_scc1 L_role
    s_sub_u32 s69, s69, 48
    s_mov_b32 s68, 2
    s_cmp_lt_u32 s69, 48
    s_cbranch_scc1 L_role
    s_mov_b32 s68, 0
    L_role:
    """)
    a(f"""
    s_cmp_lg_u32 s7, 3
    s_cbranch_scc1 L_noinit
    s_and_b32 s12, s68, 1
    s_xor_b32 s12, s12, 1
    v_cmp_eq_u32 vcc, {F_WQD//16}, v0
    v_mov_b32 v17, s12
    v_cndmask_b32 v16, 0, v17, vcc
    v_mov_b32 v17, v16
    v_mov_b32 v18, v16
    v_mov_b32 v19, v16
    v_add_u32 v20, {L_FL}, v1
    ds_write_b128 v20, v[16:19]
    L_noinit:
    s_waitcnt lgkmcnt(0)
    s_mov_b32 s0, 0
    s_mov_b32 s71, 0
    """)
    srd(48, P_WS, WS_SIZE)
    def dma_seq(nins, stride, soff, ldsbase, infl, hooks, pol, sel, rot):
        if rot:
            a(rot)
            a(f"s_mov_b32 s59, {ldsbase}")
        for i in range(nins):
            if rot:
                if i: a(f"s_add_u32 s58, s58, 1\ns_and_b32 s58, s58, {nins-1}")
                a(f"s_lshl_b32 s57, s58, 10\ns_add_u32 m0, s59, s57\ns_mul_i32 s57, s58, {stride}\ns_add_u32 s57, s57, {soff}")
                so = "s57"
            else:
                a(f"s_mov_b32 m0, {ldsbase}" if i == 0 else "s_add_u32 m0, m0, 0x400")
                if i: a(f"s_add_u32 {soff}, {soff}, {stride}")
                so = soff
            a(f"buffer_load_dwordx4 v{DB if sel(i) else DA}, s[8:11], {so} offen {pol} lds")
            if i in hooks: hooks[i]()
            if i >= infl - 1: a(f"s_waitcnt vmcnt({infl-1})")
    def rot_code(src, mul, shr, gran, nins):
        return f"s_mul_i32 s58, {src}, {mul}\ns_lshr_b32 s58, s58, {shr}\ns_lshl_b32 s58, s58, {gran}\ns_and_b32 s58, s58, {nins-1}"
    def dma_wide(nins, rs_log2, soff, infl, hooks={}, pol='nt', key="s69"):
        a(f"v_lshrrev_b32 v{TA}, 4, v0\nv_lshl_add_u32 v{DA}, v{TA}, {rs_log2}, v{DN}\nv_xor_b32 v{DB}, 0x80, v{DA}")
        a("s_lshl_b32 s14, s7, 15")
        dma_seq(nins, 4 << rs_log2, soff, "s14", infl, hooks, pol, lambda i: (i >> 1) & 1, rot_code(key, rotw[0], rotw[1], 2, nins) if rotw else None)
    def dma_mid(soff, ldsbase, infl, rs, hooks={}):
        a(f"""
        v_lshrrev_b32 v{DA}, 3, v0
        v_mul_u32_u24 v{DA}, {rs}, v{DA}
        v_bfe_u32 v{DB}, v0, 4, 1
        v_lshlrev_b32 v{DB}, 1, v{DB}
        v_and_b32 v{TA}, 7, v0
        v_xor_b32 v{DB}, v{DB}, v{TA}
        v_lshl_add_u32 v{DA}, v{DB}, 4, v{DA}
        v_xor_b32 v{DB}, 64, v{DA}
        """)
        dma_seq(16, 8*rs, soff, ldsbase, infl, hooks, "nt", lambda i: i & 1, rot_code("s69", rotm[0], rotm[1], 1, 16) if rotm else None)
    def mid_bases():
        a(f"""
        v_lshrrev_b32 v{TB}, 4, v0
        v_bfe_u32 v{TC}, v0, 2, 2
        v_lshl_add_u32 v{TA}, v{TB}, 3, v{TC}
        v_lshlrev_b32 v{TA}, 7, v{TA}
        v_and_b32 v{TB}, 1, v{TB}
        v_lshrrev_b32 v{TC}, 1, v{TC}
        v_lshl_add_u32 v{TB}, v{TB}, 1, v{TC}
        v_xor_b32 v{TB}, s7, v{TB}
        v_lshl_add_u32 v{TA}, v{TB}, 5, v{TA}
        v_and_b32 v{TB}, 3, v0
        v_lshl_add_u32 v{TA}, v{TB}, 3, v{TA}
        v_add_u32 v{TB}, 0x10000, v{TA}
        """)
    def tr_mid(dst, off):
        for s in range(16):
            r = dst + 4 * s
            ar = TA if s < 8 else TB
            o = off + ((s >> 2) & 1) * 0x8000 + (s & 3) * 4096
            a(f"ds_read_b64_tr_b16 v[{r}:{r+1}], v{ar} offset:{o}")
            a(f"ds_read_b64_tr_b16 v[{r+2}:{r+3}], v{ar} offset:{o+512}")
        a("s_waitcnt lgkmcnt(0)")
    def tr_wide(dst, nk):
        for t in range(8):
            ar = TA if t & 1 else TB
            a(f"v_xor_b32 v{ar}, {t << 5}, v{TRB}")
            for s in range(nk):
                r = dst + (t * nk + s) * 4
                a(f"ds_read_b64_tr_b16 v[{r}:{r+1}], v{ar} offset:{s*8192}")
                a(f"ds_read_b64_tr_b16 v[{r+2}:{r+3}], v{ar} offset:{s*8192+1024}")
        a("s_waitcnt lgkmcnt(0)")
    def act_addr(dst, rowsel, tmp):
        a(f"v_and_b32 v{dst}, 3, v0" if rowsel == "lo" else f"v_bfe_u32 v{dst}, v0, 2, 2")
        a(f"v_mul_u32_u24 v{dst}, {ACT_STRIDE}, v{dst}\nv_lshrrev_b32 v{tmp}, 4, v0\nv_lshl_add_u32 v{dst}, v{tmp}, 4, v{dst}\nv_add_u32 v{dst}, {L_ACT}, v{dst}")
    def poll(lbl, loads, tags, sleep=0, pre="", post=""):
        spin_begin()
        if sleep: a(f"s_branch {lbl}_go")
        a(f"{lbl}:")
        spin_check()
        if sleep: a(f"s_sleep {sleep}\n{lbl}_go:")
        a(pre)
        for l in loads: a(l)
        a(post)
        if not getattr(tags, "waits", False): a("s_waitcnt vmcnt(0)")
        tags()
        a(f"s_cmp_eq_u64 vcc, exec\ns_cbranch_scc0 {lbl}")
    def tags_words(regs):
        def f():
            a(f"v_cmp_eq_u32 vcc, {TAG}, v{regs[0]}")
            for r in regs[1:]: a(f"v_cmp_eq_u32 s[56:57], {TAG}, v{r}\ns_and_b64 vcc, vcc, s[56:57]")
        return f
    def tags_xor(regs, t):
        def f():
            a(f"v_xor_b32 v{t}, {TAG}, v{regs[0]}")
            for r in regs[1:]: a(f"v_xor_b32 v{t+1}, {TAG}, v{r}\nv_or_b32 v{t}, v{t}, v{t+1}")
            a(f"v_cmp_eq_u32 vcc, 0, v{t}")
        return f
    def tags_bytes(n, t):
        def f():
            for q in range(n):
                a(f"s_waitcnt vmcnt({n-1-q})")
                for i in range(4*q, 4*q + 4): a(f"v_xor_b32 v{16+i}, s{18+(i&3)}, v{32+i}")
                b_ = 16 + 4*q
                if q == 0: a(f"v_or3_b32 v{t}, v{b_}, v{b_+1}, v{b_+2}\nv_or_b32 v{t}, v{t}, v{b_+3}")
                else: a(f"v_or3_b32 v{t}, v{t}, v{b_}, v{b_+1}\nv_or3_b32 v{t}, v{t}, v{b_+2}, v{b_+3}")
            a(f"v_lshlrev_b32 v{t}, 24, v{t}\nv_cmp_eq_u32 vcc, 0, v{t}")
        f.waits = True
        return f
    def pk(op, d, x, y, mods=""):
        yy = y if isinstance(y, str) else f"v[{y}:{y+1}]"
        a(f"v_pk_{op}_f32 v[{d}:{d+1}], v[{x}:{x+1}], {yy} {mods}")
    NEG = "neg_lo:[0,1] neg_hi:[0,1]"
    def rnd8(x0):
        for k in range(8): bf16r(x0 + k, x0 + k)
    def ln_norm(x0, t0):
        a(f"v_readfirstlane_b32 s46, v{x0}")
        for k in range(4): pk("add", t0+4+2*k, x0+2*k, "s[46:47]", "op_sel_hi:[1,0] " + NEG)
        pk("mul", t0+2, t0+4, t0+4)
        pk("add", t0, t0+4, t0+6)
        a(f"v_pk_fma_f32 v[{t0+2}:{t0+3}], v[{t0+6}:{t0+7}], v[{t0+6}:{t0+7}], v[{t0+2}:{t0+3}]")
        pk("add", t0+4, t0+8, t0+10)
        a(f"v_pk_fma_f32 v[{t0+2}:{t0+3}], v[{t0+8}:{t0+9}], v[{t0+8}:{t0+9}], v[{t0+2}:{t0+3}]")
        pk("add", t0, t0, t0+4)
        a(f"v_pk_fma_f32 v[{t0+2}:{t0+3}], v[{t0+10}:{t0+11}], v[{t0+10}:{t0+11}], v[{t0+2}:{t0+3}]")
        m, q = t0, t0 + 2
        a(f"v_add_f32 v{m}, v{t0}, v{t0+1}\nv_add_f32 v{q}, v{t0+2}, v{t0+3}")
        allreduce("v_add_f32", [m, q], [], rows_only=True)
        for st_ in ("row_bcast:15 row_mask:0xa bank_mask:0xf", "row_bcast:31 row_mask:0xc bank_mask:0xf"):
            for r in (m, q): a(f"v_add_f32_dpp v{r}, v{r}, v{r} {st_}")
        a(f"""
        v_mul_f32 v{m}, 0x3b000000, v{m}
        v_mul_f32 v{q}, 0x3b000000, v{q}
        v_fma_f32 v{q}, -v{m}, v{m}, v{q}
        v_add_f32 v{m}, s46, v{m}
        v_max_f32 v{q}, 0, v{q}
        """)
        bf16r(m, m); bf16r(q, q)
        a(f"v_readlane_b32 s56, v{m}, 63\nv_add_f32 v{q}, 0x3727c5ac, v{q}")
        bf16r(q, q)
        a(f"v_sqrt_f32 v{q}, v{q}")
        for k in range(2): pk("add", x0+2*k, x0+2*k, "s[56:57]", "op_sel_hi:[1,0] " + NEG)
        bf16r(q, q)
        for k in range(2, 4): pk("add", x0+2*k, x0+2*k, "s[56:57]", "op_sel_hi:[1,0] " + NEG)
        a(f"v_rcp_f32 v{q}, v{q}")
        for k in range(3): bf16r(x0 + k, x0 + k)
        a(f"v_readlane_b32 s46, v{q}, 63")
        for k in range(3, 8): bf16r(x0 + k, x0 + k)
        for k in range(4): pk("mul", x0+2*k, x0+2*k, "s[46:47]", "op_sel_hi:[1,0]")
        rnd8(x0)
    def ln_affine(x0, sc8, sh8, t):
        for k in range(4): pk("mul", x0+2*k, x0+2*k, sc8+2*k)
        rnd8(x0)
        for k in range(4): pk("add", x0+2*k, x0+2*k, sh8+2*k)
        for k in range(4): a(f"v_cvt_pk_bf16_f32 v{t+k}, v{x0+2*k}, v{x0+2*k+1}")
    X8, ST, SA8, CA8, BW, DT = 24, 32, 40, 48, 192, 56
    def gemv64(tagn, kind, infl, first):
        isq = kind == "q"
        srd(52, P_X if isq else P_C, 4096)
        a(f"""
        v_lshlrev_b32 v10, 3, v0
        s_lshl_b32 s12, s7, 10
        buffer_load_dwordx2 v[12:13], v10, s[52:55], s12 offen
        buffer_load_dwordx2 v[14:15], v10, s[52:55], s12 offen offset:512
        """)
        rs = 8192 if isq else 6144
        srd(8, P_WQ if isq else P_WM, 0 if ({"q": "q", "A": "A", "a": "a"}[kind] in skip) else 512 * rs)
        if contig: rs = 128
        a(f"s_mul_i32 s13, s7, {128*rs}\ns_lshl_b32 s12, s69, {16 if contig else 7}\ns_add_u32 s13, s13, s12\ns_lshl_b32 s14, s7, 15")
        dma_mid("s13", "s14", infl, rs, hooks=({min(infl, 16) - 1: lambda: a(BAR0)} if first else {}))
        a("s_waitcnt vmcnt(16)")
        if kind == "A": stamp(1)
        for k in range(4): unpack(X8 + 2*k, X8 + 2*k + 1, 12 + k)
        a(f"s_mul_i32 s12, s7, {ACT_STRIDE}\ns_add_u32 s12, s12, {L_ACT}\nv_add_u32 v10, s12, v10")
        if isq:
            ln_norm(X8, ST)
        else:
            for k in range(8): a(f"v_mul_f32 v{ST+k}, {LOG2E}, v{X8+k}")
            for k in range(8): a(f"v_exp_f32 v{ST+k}, -v{ST+k}")
            for k in range(8): a(f"v_add_f32 v{ST+k}, 1.0, v{ST+k}")
            for k in range(8): a(f"v_rcp_f32 v{ST+k}, v{ST+k}")
            for k in range(8): a(f"v_mul_f32 v{X8+k}, v{X8+k}, v{ST+k}")
            for k in range(4): a(f"v_cvt_pk_bf16_f32 v{16+k}, v{X8+2*k}, v{X8+2*k+1}")
            a("ds_write_b64 v10, v[16:17]\nds_write_b64 v10, v[18:19] offset:512")
        mid_bases()
        a("s_waitcnt vmcnt(0)")
        set_flag(F_WQ, "s7", 20, 21)
        wait_flags(f"L_wq{tagn}", F_WQ, 16, 0)
        if first: a(MKTAG)
        stamp(4 if isq else 2) if first else None
        tr_mid(BW, 0)
        if first: set_flag(F_WQD, "s7", 16, 17)
        act_addr(TC, "lo", TB)
        a(f"s_lshl_b32 s67, s69, 10\ns_lshl_b32 s12, s7, 8\ns_add_u32 s67, s67, s12\ns_add_u32 s67, s67, {WS_Q if isq else WS_MOD}")
        if isq:
            a(f"""
            v_lshrrev_b32 v{TA}, 2, v0
            v_lshlrev_b32 v{TA}, 8, v{TA}
            v_and_b32 v{TB}, 3, v0
            v_lshl_add_u32 v{TA}, v{TB}, 4, v{TA}
            s_lshl_b32 s12, s7, 6
            s_add_u32 s12, s12, {WS_MOD}
            s_add_u32 s13, s12, 0x1000
            s_add_u32 s14, s12, 0x2000
            s_add_u32 s46, s12, 0x3000
            """)
            if gm: wait_flags("L_g1", F_G1, 16, 4)
            G0 = 128
            poll("L_poll_mod", [f"buffer_load_dwordx4 v[{G0+4*i}:{G0+4*i+3}], v{TA}, s[48:51], {sr} offen sc1" for i, sr in enumerate(["s12", "s13", "s14", "s46"])],
                 tags_xor([G0 + 1 + 2*k for k in range(8)], 16), sleep=slp)
            stamp(5)
            for k in range(4): unpack(SA8 + 2*k, SA8 + 2*k + 1, G0 + 2*k)
            for k in range(4): unpack(CA8 + 2*k, CA8 + 2*k + 1, G0 + 8 + 2*k)
            for k in range(8): a(f"v_add_f32 v{CA8+k}, 1.0, v{CA8+k}")
            rnd8(CA8)
            ln_affine(X8, CA8, SA8, 16)
            a("ds_write_b64 v10, v[16:17]\nds_write_b64 v10, v[18:19] offset:512")
            set_flag(F_H, "s7", 20, 21)
            wait_flags("L_h", F_H, 16, 0)
        for hh in range(2):
            for s in range(8): a(f"ds_read_b128 v[{16+4*s}:{19+4*s}], v{TC} offset:{(8*hh+s)*64}")
            for s in range(8):
                a(f"s_waitcnt lgkmcnt({7-s})")
                k = 8*hh + s
                a(f"v_mfma_f32_16x16x32_bf16 v[{DT}:{DT+3}], v[{BW+4*k}:{BW+4*k+3}], v[{16+4*s}:{19+4*s}], " + ("0" if k == 0 else f"v[{DT}:{DT+3}]"))
        a(f"""
        v_and_b32 v{TC}, 3, v0
        v_lshrrev_b32 v{TA}, 4, v0
        v_lshlrev_b32 v{TA}, 4, v{TA}
        v_lshl_add_u32 v{TA}, v{TC}, 6, v{TA}
        v_mov_b32 v{DT+5}, {TAG}
        v_mov_b32 v{DT+7}, {TAG}
        v_cvt_pk_bf16_f32 v{DT+4}, v{DT}, v{DT+1}
        v_cvt_pk_bf16_f32 v{DT+6}, v{DT+2}, v{DT+3}
        s_mov_b32 exec_lo, 0x000f000f
        s_mov_b32 exec_hi, 0x000f000f
        buffer_store_dwordx4 v[{DT+4}:{DT+7}], v{TA}, s[48:51], s67 offen sc1
        s_mov_b64 exec, -1
        """)
        if first: stamp(13 if isq else 3)

    a("""
    s_cmp_eq_u32 s68, 3
    s_cbranch_scc1 L_qgemv
    s_cmp_eq_u32 s68, 5
    s_cbranch_scc1 L_down
    s_cmp_lg_u32 s68, 1
    s_cbranch_scc1 L_bar0
    """)
    gemv64(1, "A", 64, True)
    a("s_branch L_getq")
    a("L_qgemv:")
    gemv64(2, "q", thrQ, True)
    a("s_branch L_getq")
    a("L_down:")
    srd(8, P_WD, 0 if 'f' in skip else 1792 * 1024)
    a("s_lshl_b32 s13, s69, 16\ns_lshl_b32 s12, s7, 8\ns_add_u32 s13, s13, s12")
    dma_wide(16, 10, "s13", thrD, hooks={min(thrD, 16) - 1: lambda: a(BAR0)})
    a("s_waitcnt vmcnt(0)")
    tr_wide(192, 2)
    a(MKTAG)
    set_flag(F_WQD, "s7", 16, 17)
    a("s_branch L_getq")
    a("L_bar0:")
    if l2warm:
        a(f"""
        s_cmp_lg_u32 s7, 3
        s_cbranch_scc1 L_nowarm
        s_getpc_b64 s[12:13]
        L_pc:
        s_sub_u32 s12, s12, L_pc-{NAME}_kernel
        s_subb_u32 s13, s13, 0
        v_lshlrev_b32 v16, 7, v0
        s_mov_b32 s14, 0
        L_warm:
        v_cmp_gt_u32 vcc, L_end-{NAME}_kernel, v16
        s_and_saveexec_b64 s[46:47], vcc
        s_cbranch_execz L_warmd
        global_load_dword v17, v16, s[12:13]
        v_add_u32 v16, 0x2000, v16
        s_branch L_warm
        L_warmd:
        s_mov_b64 exec, -1
        L_nowarm:
        """)
    a(BAR0)
    a("s_waitcnt lgkmcnt(0)")
    a(MKTAG)
    a("L_getq:")
    def dryrun(n, cond):
        a(f"""
        s_cmp_lg_u32 s7, 1
        s_cbranch_scc1 L_nodry{n}
        {cond} s68, 4
        s_cbranch_scc1 L_nodry{n}
        s_waitcnt vmcnt(0)
        s_mov_b32 s0, 1
        s_mov_b32 s1, {TAG}
        s_mov_b32 {TAG}, 0
        s_mov_b32 s50, 0
        s_mov_b32 s44, 1
        v_mov_b32 v{PT}, {L_OP}
        s_branch {'L_vfin2' if fin else 'L_facok'}
        L_afterdry{n}:
        s_mov_b32 s0, 0
        s_mov_b32 {TAG}, s1
        s_mov_b32 s50, {WS_SIZE}
        s_mov_b64 exec, -1
        s_waitcnt vmcnt(0) lgkmcnt(0)
        """)
        if n == 1: lane_consts()
        a(f"L_nodry{n}:")
    if dry: dryrun(1, "s_cmp_lt_u32")
    a("s_cmp_lg_u32 s7, 2\ns_cbranch_scc1 L_bar1")
    a(f"""
    v_bfe_u32 v{TA}, v0, 2, 3
    v_lshlrev_b32 v{TA}, 8, v{TA}
    v_and_b32 v{TB}, 3, v0
    v_lshl_add_u32 v{TA}, v{TB}, 4, v{TA}
    s_lshl_b32 s12, s4, 11
    s_lshl_b32 s13, s5, 6
    s_add_u32 s12, s12, s13
    s_add_u32 s12, s12, {WS_Q}
    v_and_b32 v{TB}, 31, v0
    v_lshlrev_b32 v{TB}, 3, v{TB}
    v_add_u32 v{TB}, {L_Q}, v{TB}
    """)
    if gq: wait_flags("L_g2", F_G2, 16, 4)
    poll("L_poll_q", [f"buffer_load_dwordx4 v[16:19], v{TA}, s[48:51], s12 offen sc1"], tags_words([17, 19]), sleep=slp)
    a(f"v_mov_b32 v17, v18\nds_write_b64 v{TB}, v[16:17]\ns_waitcnt lgkmcnt(0)")
    a("L_bar1:")
    a("s_barrier")
    if dbg: a("s_memrealtime s[98:99]")
    stamp(6)
    a(f"""
    s_getreg_b32 s62, hwreg(HW_REG_XCC_ID)
    s_cmp_lt_u32 s68, 4
    s_cbranch_scc1 L_noxcc
    s_cmp_lg_u32 s7, 1
    s_cbranch_scc1 L_noxcc
    v_mov_b32 v16, s62
    v_mov_b32 v17, {TAG}
    s_lshl_b32 s12, s69, 7
    s_add_u32 s12, s12, {WS_XCC}
    s_mov_b64 exec, 1
    buffer_store_dwordx2 v[16:17], v1, s[48:51], s12 offen sc1
    s_mov_b64 exec, -1
    L_noxcc:
    """)
    if tlb:
        a("s_cmp_lg_u32 s7, 3\ns_cbranch_scc1 L_notlb\ns_mov_b64 exec, 1")
        srd(8, P_V, 0x10000000)
        a("s_lshl_b32 s12, s15, 21\ns_lshl_b32 s13, s6, 20\ns_add_u32 s12, s12, s13\nbuffer_load_dword v16, v1, s[8:11], s12 offen nt")
        srd(8, P_OUT, 4096)
        a("buffer_load_dword v17, v1, s[8:11], 0 offen nt")
        a(f"s_mov_b32 s12, {WS_TM}\nbuffer_load_dword v18, v1, s[48:51], s12 offen offset:1024 nt")
        a("s_mov_b64 exec, -1\ns_waitcnt vmcnt(0)\nL_notlb:")
    def wait_row(lbl, g):
        spin_begin()
        a(f"v_mov_b32 v20, {L_FL+F_TT+16*g}")
        a(f"s_branch {lbl}_go\n{lbl}:")
        spin_check()
        a(f"""
        s_sleep 8
        {lbl}_go:
        ds_read_b128 v[16:19], v20
        s_waitcnt lgkmcnt(0)
        v_and_b32 v21, v16, v17
        v_and_b32 v22, v18, v19
        v_and_b32 v21, v21, v22
        v_readfirstlane_b32 s47, v21
        s_bitcmp1_b32 s47, 0
        s_cbranch_scc0 {lbl}
        """)
    def tm_publish(m, g):
        a(f"""
        s_lshr_b32 s12, s2, 5
        s_add_u32 s12, s12, s2
        s_lshr_b32 s14, s2, 3
        s_xor_b32 s12, s12, s14
        s_and_b32 s12, s12, 3
        s_lshr_b32 s14, s68, 2
        s_or_b32 s12, s12, s14
        s_or_b32 s12, s12, s7
        s_cbranch_scc1 L_tmp{m}
        """)
        wait_row(f"L_tr{m}", g)
        for k in range(4): a(f"v_subrev_u32 v{16+k}, s60, v{16+k}")
        a(f"""
        v_add3_u32 v16, v16, v17, v18
        v_add_u32 v16, v16, v19
        v_lshrrev_b32 v16, 2, v16
        v_add_u32 v16, s60, v16
        v_mov_b32 v17, {TAG}
        v_mov_b32 v18, s60
        v_mov_b32 v19, {TAG}
        s_lshr_b32 s12, s2, 5
        s_lshl_b32 s12, s12, 3
        s_and_b32 s14, s2, 7
        s_add_u32 s12, s12, s14
        s_mul_i32 s12, s12, {TMSTR}
        s_add_u32 s12, s12, {WS_TM + 128*m}
        s_mov_b64 exec, 1
        buffer_store_dwordx4 v[16:19], v1, s[48:51], s12 offen sc1
        s_mov_b64 exec, -1
        L_tmp{m}:
        """)
    import struct
    def fhex(v): return hex(struct.unpack("<I", struct.pack("<f", v))[0])
    def tm_gather(m, gate, p_m, mult):
        a(f"s_cmp_lg_u32 s7, 0\ns_cbranch_scc1 L_tmg{m}")
        wait_row(f"L_tg{m}", gate)
        a(f"""
        v_and_b32 v21, 7, v0
        v_lshrrev_b32 v20, 3, v0
        v_max_u32 v20, 1, v20
        v_cmp_eq_u32 vcc, 0, v21
        v_cndmask_b32 v20, 0, v20, vcc
        v_add_u32 v20, v20, v0
        v_mul_u32_u24 v20, {TMSTR}, v20
        s_mov_b32 s12, {WS_TM + 128*m}
        """)
        poll(f"L_poll_tm{m}", ["buffer_load_dwordx4 v[16:19], v20, s[48:51], s12 offen sc1"], tags_words([17, 19]), sleep=48)
        a("v_sub_u32 v18, v16, v18\nv_subrev_u32 v16, s60, v16")
        allreduce("v_add_u32", [16, 18], [17, 19])
        a("v_ashrrev_i32 v16, 6, v16\nv_lshrrev_b32 v18, 6, v18")
        if m > 1: a("v_subrev_u32 v18, s61, v16")
        a(f"""
        v_readfirstlane_b32 s61, v16
        {f"v_readfirstlane_b32 s{90+m}, v16" if dbg else ""}
        v_cvt_f32_u32 v18, v18
        v_mul_f32 v18, {fhex(mult)}, v18
        """)
        if m > 1 and up:
            a(f"""
            s_mul_i32 s12, s63, {p_m}
            s_lshr_b32 s12, s12, 4
            s_add_u32 s12, s12, s1
            s_sub_u32 s12, s12, {eth}
            v_mul_f32 v19, {fhex(boost)}, v18
            v_cmp_gt_i32 vcc, s12, v16
            v_cvt_f32_u32 v17, s63
            v_cndmask_b32 v18, v18, v19, vcc
            v_mul_f32 v17, {fhex(1.0 if m == 2 else up)}, v17
            v_min_f32 v18, v18, v17
            """)
        a(f"""
        v_cvt_u32_f32 v17, v18
        v_mul_u32_u24 v18, {p_m}, v17
        v_lshrrev_b32 v18, 4, v18
        v_sub_u32 v16, v16, v18
        v_readfirstlane_b32 s63, v17
        v_readfirstlane_b32 s1, v16
        v_add_u32 v16, s60, v16
        s_cmp_ge_u32 s68, 4
        s_cselect_b32 s12, {early if 1 < m < 9 else 0}, 0
        v_subrev_u32 v16, s12, v16
        v_and_b32 v20, 3, v0
        v_lshlrev_b32 v20, 4, v20
        v_add_u32 v20, {L_FL+F_FAC+8}, v20
        ds_write_b64 v20, v[16:17]
        L_tmg{m}:
        """)
    wait_flags("L_wf", F_WF, 16, 4)
    srd(8, P_WO, 0 if 'w' in skip else 4096 * 1024)
    a("s_lshl_b32 s13, s4, 17\ns_lshl_b32 s12, s7, 8\ns_add_u32 s13, s13, s12")
    dma_wide(32, 10, "s13", thr, hooks={5: lambda: tm_publish(1, 0), 5 + 6*lagK: lambda: tm_gather(1, lagK, 0, 4*f1)}, pol=wpol, key='s4')
    a("s_waitcnt vmcnt(0)")
    tr_wide(64, 4)
    if mk:
        tm_publish(9, mk)
        tm_gather(9, mk + 1, 4*mk, 4*fk/mk)
    a("s_cmp_lg_u32 s68, 2\ns_cbranch_scc1 L_noA2")
    gemv64(3, "a", thrA, False)
    a("L_noA2:")
    SB, TREG = [10, 11, 12, 13], [4, 5, 6, 14]
    RX, RGA, RGB = 2, 3, 15
    def ffn_cols(dst_tile, dst_sub):
        a(f"""
        v_lshrrev_b32 v{dst_tile}, 4, v0
        v_and_b32 v{dst_sub}, 3, v0
        v_lshl_add_u32 v{dst_tile}, v{dst_tile}, 2, v{dst_sub}
        v_bfe_u32 v{dst_sub}, v0, 2, 2
        """)
    a("s_cmp_lt_u32 s68, 4\ns_cbranch_scc1 L_nored1\ns_cmp_lg_u32 s68, 5\ns_cbranch_scc1 L_noffn1")
    srd(8, P_WG, 0 if 'f' in skip else 512 * 3584)
    RSF = 128 if contig else 3584
    a(f"s_lshl_b32 s13, s69, {16 if contig else 7}\ns_mul_i32 s12, s7, {128*RSF}\ns_add_u32 s46, s13, s12\ns_mov_b32 s13, s46\ns_lshl_b32 s14, s7, 15")
    dma_mid("s13", "s14", thrF, RSF)
    srd(8, P_WU, 0 if 'f' in skip else 512 * 3584)
    a("s_mov_b32 s13, s46\ns_add_u32 s14, s14, 0x4000")
    dma_mid("s13", "s14", thrF, RSF)
    a("L_noffn1:")
    a("L_nored1:")
    if dry: dryrun(2, "s_cmp_ge_u32")
    stamp(7)
    tm_publish(2, KL)
    a("s_cmp_lg_u32 s7, 0\ns_cbranch_scc1 L_nofac")
    wait_flags("L_kd", F_KD, 16, 16)
    q4 = ("quad_perm:[1,0,3,2]", "quad_perm:[2,3,0,1]")
    a(f"""
    v_and_b32 v{TA}, 3, v0
    v_lshlrev_b32 v{TA}, 4, v{TA}
    v_add_u32 v{TA}, {L_FL}, v{TA}
    ds_read_b64 v[24:25], v{TA} offset:{F_ST}
    s_waitcnt lgkmcnt(0)
    v_mov_b32 v28, v24
    """)
    allreduce("v_max_f32", [28], [], rows_only=True, steps=q4)
    a(f"v_sub_f32 v30, v24, v28\nv_mul_f32 v30, {LOG2E}, v30\nv_exp_f32 v30, v30\nv_mul_f32 v30, v25, v30")
    allreduce("v_add_f32", [30], [], rows_only=True, steps=q4)
    a(f"""
    v_mov_b32 v29, {TAG}
    v_mov_b32 v31, {TAG}
    s_lshl_b32 s13, s15, 7
    s_add_u32 s13, s13, {WS_STATS}
    s_lshl_b32 s12, s6, 4
    s_add_u32 s14, s13, s12
    s_xor_b32 s12, s12, 16
    s_add_u32 s13, s13, s12
    s_mov_b64 exec, 1
    buffer_store_dwordx4 v[28:31], v1, s[48:51], s14 offen sc1
    s_mov_b64 exec, -1
    """)
    tm_gather(2, KL + lagV, 4*KL, 4*f2/(KL - mk))
    a(f"v_mov_b32 v{TB}, 0")
    poll("L_poll_st", [f"buffer_load_dwordx4 v[16:19], v{TB}, s[48:51], s13 offen sc1"], tags_words([17, 19]), sleep=32)
    a(f"""
    v_max_f32 v17, v16, v28
    v_sub_f32 v16, v16, v17
    v_sub_f32 v28, v28, v17
    v_sub_f32 v24, v24, v17
    v_mul_f32 v16, {LOG2E}, v16
    v_mul_f32 v28, {LOG2E}, v28
    v_mul_f32 v24, {LOG2E}, v24
    v_exp_f32 v16, v16
    v_exp_f32 v28, v28
    v_exp_f32 v24, v24
    v_mul_f32 v16, v16, v18
    v_fmac_f32 v16, v28, v30
    v_rcp_f32 v16, v16
    v_mov_b32 v25, 1
    v_mul_f32 v24, v24, v16
    ds_write_b64 v{TA}, v[24:25] offset:{F_FAC}
    """)
    a("L_nofac:")
    a("s_cmp_lt_u32 s68, 4\ns_cbranch_scc1 L_nored2")
    wait_row("L_kd2", KL + 1)
    a("s_cmp_lg_u32 s68, 5\ns_cbranch_scc1 L_noffn2")
    ffn_cols(TA, TB)
    a(f"""
    v_lshlrev_b32 v{TA}, 8, v{TA}
    v_lshl_add_u32 v{TA}, v{TB}, 4, v{TA}
    s_lshl_b32 s12, s7, 6
    s_add_u32 s12, s12, {WS_MOD + 96*256}
    s_add_u32 s13, s12, 0x1000
    s_add_u32 s14, s12, 0x2000
    s_add_u32 s46, s12, 0x3000
    """)
    poll("L_poll_sb", [f"buffer_load_dwordx4 v[{16+4*i}:{19+4*i}], v{TA}, s[48:51], {sr} offen sc1" for i, sr in enumerate(["s12", "s13", "s14", "s46"])],
         tags_words([17 + 2*k for k in range(8)]), sleep=16)
    for k in range(4):
        a(f"v_mov_b32 v{SB[k]}, v{16+2*k}")
        unpack(32, 33, 24 + 2*k)
        a(f"v_add_f32 v32, 1.0, v32\nv_add_f32 v33, 1.0, v33\nv_cvt_pk_bf16_f32 v{TREG[k]}, v32, v33")
    a("L_noffn2:")
    srd(52, P_X, 4096)
    a(f"""
    v_bfe_u32 v{TA}, v0, 2, 2
    v_and_b32 v{TB}, 3, v0
    v_lshlrev_b32 v{TC}, 5, v{TA}
    v_lshl_add_u32 v{TC}, v{TB}, 1, v{TC}
    s_lshl_b32 s71, s69, 7
    s_lshl_b32 s12, s7, 3
    s_add_u32 s71, s71, s12
    buffer_load_ushort v{RX}, v{TC}, s[52:55], s71 offen
    v_lshlrev_b32 v{TA}, 8, v{TA}
    v_lshrrev_b32 v{TC}, 1, v{TB}
    v_lshl_add_u32 v{TA}, v{TC}, 3, v{TA}
    s_and_b32 s12, s69, 7
    s_lshl_b32 s12, s12, 10
    s_lshl_b32 s13, s7, 4
    s_add_u32 s12, s12, s13
    s_lshr_b32 s13, s69, 3
    s_lshl_b32 s13, s13, 6
    s_add_u32 s12, s12, s13
    s_add_u32 s13, s12, {WS_MOD + 160*256}
    s_add_u32 s12, s12, {WS_MOD + 64*256}
    """)
    poll("L_poll_ga", [f"buffer_load_dwordx2 v[16:17], v{TA}, s[48:51], s12 offen sc1", f"buffer_load_dwordx2 v[18:19], v{TA}, s[48:51], s13 offen sc1"],
         tags_words([17, 19]), sleep=16)
    a(f"v_and_b32 v{TB}, 1, v0\nv_cmp_eq_u32 vcc, 1, v{TB}")
    for k, r in enumerate([RGA, RGB]):
        unpack(24, 25, 16 + 2*k)
        a(f"v_cndmask_b32 v{r}, v24, v25, vcc")
    a(f"v_lshlrev_b32 v{RX}, 16, v{RX}")
    a(f"v_and_b32 v{TA}, 31, v0\nv_lshlrev_b32 v{TA}, 7, v{TA}\ns_mov_b32 s12, {WS_XCC}")
    poll("L_poll_xcc", [f"buffer_load_dwordx2 v[16:17], v{TA}, s[48:51], s12 offen sc1"], tags_words([17]), sleep=16)
    a(f"v_cmp_eq_u32 vcc, s62, v16\ns_cmp_eq_u64 vcc, exec\ns_cselect_b32 s44, {1 if fast else 0}, 0")
    a("L_nored2:")
    prevp = 4 * KL
    def milestones(lst):
        nonlocal prevp
        for i, mv in lst:
            p_ = 4 * (KL + mv) + E // 4
            tm_publish(3 + i, KL + mv)
            tm_gather(3 + i, KL + mv + lag3, p_, 16 * f3 / (p_ - prevp))
            prevp = p_
    MS = list(enumerate(ms))
    if touchp:
        wait_row("L_tchp", KL + touchp)
        a(f"""
        s_lshl_b32 s12, s15, 1
        s_add_u32 s12, s12, s6
        s_lshl_b32 s12, s12, 11
        s_lshl_b32 s13, s7, 9
        s_add_u32 s12, s12, s13
        s_add_u32 s12, s12, {WS_PART1}
        s_mov_b32 exec_hi, 0
        buffer_load_dwordx4 v[24:27], v1, s[48:51], s12 offen sc1
        s_mov_b64 exec, -1
        s_waitcnt vmcnt(0)
        """)
    milestones([x for x in MS if x[1] + lag3 <= touch])
    if touch:
        a("s_cmp_lt_u32 s68, 4\ns_cbranch_scc1 L_notouch")
        wait_row("L_tch", KL + touch)
        a(f"""
        v_lshrrev_b32 v{TA}, 2, v0
        v_and_b32 v{TB}, 3, v0
        v_lshlrev_b32 v{TC}, 13, v{TA}
        v_lshl_add_u32 v{TC}, v{TB}, 4, v{TC}
        v_lshlrev_b32 v{TA}, 11, v{TA}
        v_lshl_add_u32 v{TA}, v{TB}, 4, v{TA}
        s_lshl_b32 s12, s7, 11
        s_add_u32 s12, s12, {WS_X1}
        buffer_load_dwordx4 v[16:19], v1, s[48:51], s12 offen sc1
        buffer_load_dwordx4 v[20:23], v1, s[48:51], s12 offen offset:1024 sc1
        s_lshl_b32 s12, s69, 8
        s_lshl_b32 s13, s7, 6
        s_add_u32 s12, s12, s13
        s_add_u32 s12, s12, {WS_PART2}
        s_add_u32 s13, s12, 0x20000
        buffer_load_dwordx4 v[24:27], v{TC}, s[48:51], s12 offen sc1
        buffer_load_dwordx4 v[28:31], v{TC}, s[48:51], s13 offen sc1
        """)
        if otouch:
            srd(52, P_OUT, 4096)
            a("buffer_load_ushort v32, v0, s[52:55], s71 offen")
        if touch1:
            a(f"""
            s_and_b32 s12, s69, 7
            s_lshl_b32 s12, s12, 8
            s_lshl_b32 s13, s7, 6
            s_add_u32 s12, s12, s13
            s_lshr_b32 s13, s69, 3
            s_lshl_b32 s13, s13, 17
            s_add_u32 s12, s12, s13
            s_add_u32 s12, s12, {WS_PART1}
            """)
            for i in range(4):
                a(f"buffer_load_dwordx4 v[{32+4*i}:{35+4*i}], v{TA}, s[48:51], s12 offen sc1\ns_add_u32 s12, s12, 0x8000")
        a("s_waitcnt vmcnt(0)\nL_notouch:")
    milestones([x for x in MS if x[1] + lag3 > touch])
    AF, DD = 16, 32
    bn = {"n": 0}
    def barrier():
        if not dry: a("s_barrier"); return
        bn["n"] += 1
        a(f"s_cmp_eq_u32 s0, 1\ns_cbranch_scc1 L_nb{bn['n']}\ns_barrier\nL_nb{bn['n']}:")
    a(f"""
    L_tail0:
    s_mov_b64 exec, -1
    s_waitcnt vmcnt(0) lgkmcnt(0)
    v_bfe_u32 v{TB}, v0, 1, 2
    v_mul_u32_u24 v{TB}, {OP_STRIDE}, v{TB}
    v_lshrrev_b32 v{TA}, 4, v0
    v_lshl_add_u32 v{TB}, v{TA}, 4, v{TB}
    v_and_b32 v{TA}, 1, v0
    v_lshl_add_u32 v{TB}, v{TA}, 7, v{TB}
    v_add_u32 v{TB}, {L_OP}, v{TB}
    v_mul_u32_u24 v{TA}, 0xaaaa, v{TA}
    v_add_u32 v{TA}, 0x4444, v{TA}
    s_lshl_b32 s12, s15, 1
    s_add_u32 s12, s12, s6
    s_lshl_b32 s12, s12, 11
    s_lshl_b32 s13, s7, 9
    s_add_u32 s12, s12, s13
    s_add_u32 s12, s12, {WS_PART1}
    s_and_b32 s18, {TAG}, 0xff
    s_bfe_u32 s19, {TAG}, 0x80008
    s_bfe_u32 s20, {TAG}, 0x80010
    s_lshr_b32 s21, {TAG}, 24
    v_mov_b32 v{TC}, 0xffffff00
    """)
    for i in range(32): a(f"v_mov_b32 v{DD+i}, 0")
    P1V = 28
    a(f"""
    v_lshrrev_b32 v{P1V}, 2, v0
    v_and_b32 v{P1V+1}, 3, v0
    v_lshlrev_b32 v{P1V}, 11, v{P1V}
    v_lshl_add_u32 v{P1V}, v{P1V+1}, 4, v{P1V}
    s_and_b32 s26, s69, 7
    s_lshl_b32 s26, s26, 8
    s_lshl_b32 s13, s7, 6
    s_add_u32 s26, s26, s13
    s_lshr_b32 s13, s69, 3
    s_lshl_b32 s14, s13, 11
    s_add_u32 s22, s26, s14
    s_lshl_b32 s13, s13, 17
    s_add_u32 s26, s26, s13
    s_add_u32 s26, s26, {WS_PART1}
    s_add_u32 s27, s26, 0x8000
    s_add_u32 s14, s26, 0x10000
    s_add_u32 s67, s26, 0x18000
    s_add_u32 s23, s22, {WS_X1}
    """)
    P1S = ["s26", "s27", "s14", "s67"]
    if p1q:
        a(f"""
        s_bfe_u32 s26, s69, 0x20001
        s_lshl_b32 s26, s26, 9
        s_and_b32 s27, s69, 1
        s_lshl_b32 s27, s27, 6
        s_add_u32 s26, s26, s27
        s_lshl_b32 s27, s7, 15
        s_add_u32 s26, s26, s27
        s_add_u32 s26, s26, s13
        s_add_u32 s26, s26, {WS_PART1}
        """)
        P1S = ["s26"]
    stamp(8)
    barrier()
    if dbg: a("s_memrealtime s[96:97]")
    stamp(9)
    for s in range(2): a(f"ds_read_b128 v[{AF+4*s}:{AF+4*s+3}], v{TB} offset:{64*s}")
    a("s_waitcnt lgkmcnt(0)")
    def smf(d, af, b, ix): a(f"v_smfmac_f32_16x16x64_bf16 v[{d}:{d+3}], v[{af}:{af+3}], v[{b}:{b+7}], v{ix}")
    order = [0, 4, 1, 5, 2, 6, 3, 7]
    OQ = 24
    work = []
    def fin(t):
        d = DD + 4*t
        w_ = [f"v_pk_add_f32 v[{d}:{d+1}], v[{d}:{d+1}], v[{d+2}:{d+3}]", f"v_add_f32 v{d}, v{d}, v{d+1}"]
        return w_
    def fin2(k):
        x, y = DD + 4*k, DD + 4*(k+4)
        return [f"v_permlane16_swap_b32 v{x}, v{y}", f"v_add_f32 v{OQ+k}, v{x}, v{y}", f"v_and_or_b32 v{OQ+k}, v{OQ+k}, v{TC}, s{18+k}"]
    for i, t in enumerate(order):
        if i >= 3: work += fin(order[i-3])
        if i >= 5 and (i - 5) % 2 == 0: work += fin2((i - 5) // 2)
        for sx in range(2):
            smf(DD + 4*t, AF + 4*sx, 64 + (t*4 + 2*sx)*4, TA)
            for _ in range(2):
                if work: a(work.pop(0))
    work += fin(order[5]) + fin(order[6]) + fin2(2) + fin(order[7]) + fin2(3)
    for w_ in work: a(w_)
    if p1q: a("s_mov_b32 exec_lo, 0xff")
    a(f"s_mov_b32 exec_hi, 0\nbuffer_store_dwordx4 v[{OQ}:{OQ+3}], v1, s[48:51], s12 offen sc1\ns_mov_b64 exec, -1")
    stamp(10)
    a("s_cmp_lt_u32 s68, 4\ns_cbranch_scc1 L_hend")
    if p1first:
        stamp(4)
        for i, sr in enumerate(P1S): a(f"buffer_load_dwordx4 v[{32+4*i}:{35+4*i}], v{P1V}, s[48:51], {sr} offen sc1")
    a("s_cmp_lg_u32 s68, 5\ns_cbranch_scc1 L_noffn3")
    SC8, SH8 = 48, 56
    HW_, HF_, GF_, GW_, PO_, MS_ = 10, 11, 12, 13, 4, 5
    mid_bases()
    tr_mid(64, 0)
    tr_mid(128, 0x4000)
    for k in range(4): unpack(SC8 + 2*k, SC8 + 2*k + 1, TREG[k])
    for k in range(4): unpack(SH8 + 2*k, SH8 + 2*k + 1, SB[k])
    IX_ = 6
    act_addr(HF_, "hi", TB)
    ffn_cols(TA, TB)
    a(f"""
    v_lshlrev_b32 v{HW_}, 4, v{TA}
    v_lshl_add_u32 v{HW_}, v{TB}, 2, v{HW_}
    s_mul_i32 s13, s7, {ACT_STRIDE}
    s_add_u32 s13, s13, {L_ACT}
    v_add_u32 v{HW_}, s13, v{HW_}
    v_mul_u32_u24 v{GF_}, {GB_STRIDE}, v{TB}
    v_lshlrev_b32 v{GW_}, 2, v{TB}
    v_and_b32 v{IX_}, 1, v0
    v_lshl_add_u32 v{HF_}, v{IX_}, 9, v{HF_}
    v_lshl_add_u32 v{GF_}, v{IX_}, 6, v{GF_}
    v_lshl_add_u32 v{GW_}, v{IX_}, 1, v{GW_}
    v_mul_u32_u24 v{IX_}, 0xaaaa, v{IX_}
    v_add_u32 v{IX_}, 0x4444, v{IX_}
    v_bfe_u32 v{TB}, v0, 1, 1
    v_lshl_add_u32 v{GW_}, v{TB}, 6, v{GW_}
    v_lshrrev_b32 v{TB}, 4, v0
    v_lshl_add_u32 v{GF_}, v{TB}, 4, v{GF_}
    v_add_u32 v{GF_}, {L_GB}, v{GF_}
    v_mul_u32_u24 v{TA}, {GB_STRIDE}, v{TB}
    s_lshl_b32 s13, s7, 4
    s_add_u32 s13, s13, {L_GB}
    v_add3_u32 v{GW_}, v{GW_}, v{TA}, s13
    v_and_b32 v{TA}, 15, v0
    v_lshlrev_b32 v{TB}, 11, v{TB}
    v_lshl_add_u32 v{PO_}, v{TA}, 4, v{TB}
    v_mov_b32 v{MS_}, 0xffffff00
    """)
    a("L_noffn3:")
    a(f"""
    v_lshrrev_b32 v{TC}, 2, v0
    v_and_b32 v{TB}, 3, v0
    v_lshlrev_b32 v{TC}, 13, v{TC}
    v_lshl_add_u32 v{TC}, v{TB}, 4, v{TC}
    v_lshlrev_b32 v{TB}, 2, v0
    v_mov_b32 v{TA}, v{P1V}
    """)
    if pwait: a(f"s_sleep {pwait}")
    if not p1first: stamp(4)
    spin_begin()
    if p1first: a("s_branch L_poll_p1w")
    a("L_poll_p1:")
    spin_check()
    for i, sr in enumerate(P1S): a(f"buffer_load_dwordx4 v[{32+4*i}:{35+4*i}], v{TA}, s[48:51], {sr} offen sc1")
    a("L_poll_p1w:")
    tags_bytes(len(P1S), 44 if p1q else 32)()
    a("s_cmp_eq_u64 vcc, exec\ns_cbranch_scc0 L_poll_p1")
    stamp(11)
    if diag: a("s_mov_b32 s82, s70")
    def colsum(n):
        st_ = 1
        while st_ < n:
            for i in range(0, n, 2*st_):
                for k in (0, 2): pk("add", 16+4*i+k, 16+4*i+k, 16+4*(i+st_)+k)
            st_ *= 2
        a("""
        v_add_f32_dpp v20, v16, v16 row_ror:8 row_mask:0xf bank_mask:0x3
        v_add_f32_dpp v21, v17, v17 row_ror:8 row_mask:0xf bank_mask:0x3
        v_add_f32_dpp v20, v18, v18 row_ror:8 row_mask:0xf bank_mask:0xc
        v_add_f32_dpp v21, v19, v19 row_ror:8 row_mask:0xf bank_mask:0xc
        v_add_f32_dpp v16, v20, v20 row_shl:4 row_mask:0xf bank_mask:0x5
        v_add_f32_dpp v16, v21, v21 row_shr:4 row_mask:0xf bank_mask:0xa
        """)
        allreduce("v_add_f32", [16], [17], steps=())
    def resid(gate):
        bf16r(16, 16)
        a(f"v_mul_f32 v16, v16, v{gate}")
        bf16r(16, 16)
        a(f"v_add_f32 v16, v16, v{RX}")
    colsum(4)
    resid(RGA)
    a(f"""
    v_mov_b32 v41, {TAG}
    v_mov_b32 v43, {TAG}
    v_mov_b32_dpp v17, v16 quad_perm:[1,1,1,1] {FULL}
    v_mov_b32_dpp v18, v16 quad_perm:[2,2,2,2] {FULL}
    v_mov_b32_dpp v19, v16 quad_perm:[3,3,3,3] {FULL}
    v_cvt_pk_bf16_f32 v40, v16, v17
    v_cvt_pk_bf16_f32 v42, v18, v19
    s_mov_b64 exec, 0x1111
    """)
    def hstore(lbl, stores):
        a(f"s_cmp_eq_u32 s44, 1\ns_cbranch_scc0 {lbl}_s")
        for st_ in stores: a(f"{st_} {fpol}")
        a(f"s_branch {lbl}_e\n{lbl}_s:")
        for st_ in stores: a(f"{st_} sc1")
        a(f"{lbl}_e:")
    hstore("L_sx1", [f"buffer_store_dwordx4 v[40:43], v{TB}, s[48:51], s23 offen"])
    a("s_mov_b64 exec, -1")
    stamp(12)
    bf16r(RX, 16)
    a("s_cmp_lg_u32 s68, 5\ns_cbranch_scc1 L_red2")
    a(f"""
    s_lshl_b32 s12, s7, 11
    s_add_u32 s12, s12, {WS_X1}
    s_lshl_b32 s13, s69, 13
    s_lshl_b32 s14, s7, 9
    s_add_u32 s13, s13, s14
    s_add_u32 s23, s13, {WS_PART2}
    """)
    poll("L_poll_x1", ["buffer_load_dwordx4 v[16:19], v1, s[48:51], s12 offen sc1", "buffer_load_dwordx4 v[20:23], v1, s[48:51], s12 offen offset:1024 sc1"],
         tags_xor([17, 19, 21, 23], 24))
    stamp(1)
    X2, S2 = 24, 32
    for k in range(4): unpack(X2 + 2*k, X2 + 2*k + 1, 16 + 2*k)
    ln_norm(X2, S2)
    ln_affine(X2, SC8, SH8, 16)
    G, U, GT = 56, 60, 14
    a(f"ds_write2_b32 v{HW_}, v16, v17 offset0:0 offset1:128\nds_write2_b32 v{HW_}, v18, v19 offset0:64 offset1:192")
    for i in range(8): a(f"v_mov_b32 v{G+i}, 0")
    a("s_waitcnt lgkmcnt(0)")
    barrier()
    for k in range(8): a(f"ds_read_b128 v[{16+4*k}:{19+4*k}], v{HF_} offset:{k*64}")
    for k in range(8):
        a(f"s_waitcnt lgkmcnt({7-k})")
        smf(G, 16 + 4*k, 64 + 8*k, IX_)
    DZ = 64
    gelu = [f"v_add_f32 v{G}, v{G}, v{G+1}", f"v_cvt_pk_bf16_f32 v{G}, 0, v{G}", f"v_mul_f32 v{GT}, v{G}, v{G}", f"v_mul_f32 v{GT}, 0x3d372713, v{GT}",
            f"v_fma_f32 v{GT}, v{GT}, v{G}, v{G}", f"v_mul_f32 v{GT}, 0x40135761, v{GT}", f"v_exp_f32 v{GT}, -v{GT}",
            f"v_add_f32 v{GT}, 1.0, v{GT}", f"v_rcp_f32 v{GT}, v{GT}", f"v_mul_f32 v{GT}, v{GT}, v{G}", f"v_cvt_pk_bf16_f32 v{GT}, 0, v{GT}"]
    zero = [f"v_mov_b32 v{DZ+4*t+r}, 0" for t in range(8) for r in range(2)]
    for k in range(8):
        smf(U, 16 + 4*k, 128 + 8*k, IX_)
        if k < 3:
            for _ in range(2): a(zero.pop(0))
        else:
            a(gelu.pop(0)); a(gelu.pop(0))
    while gelu: a(gelu.pop(0))
    a(f"v_add_f32 v{U}, v{U}, v{U+1}")
    bf16r(U, U)
    a(f"""
    v_mul_f32 v{GT}, v{GT}, v{U}
    v_cvt_pk_bf16_f32 v{GT}, v{GT}, v{GT}
    ds_write_b16 v{GW_}, v{GT}
    """)
    while zero: a(zero.pop(0))
    if epearly:
        a(f"""
        s_or_b32 s12, s2, s7
        s_cbranch_scc1 L_noep
        s_mov_b64 exec, 1
        v_mov_b32 v17, {TAG}
        buffer_store_dword v17, v1, s[48:51], 0 offen sc1
        s_mov_b64 exec, -1
        L_noep:
        """)
    a("s_waitcnt lgkmcnt(0)")
    barrier()
    a(f"""
    ds_read_b128 v[{AF}:{AF+3}], v{GF_}
    s_waitcnt lgkmcnt(0)
    """)
    assert not zero
    fw = []
    for t in range(8):
        smf(DZ + 4*t, AF, 192 + 8*t, IX_)
        if t >= 4:
            tt = t - 4
            a(f"v_add_f32 v{24+tt}, v{DZ+4*tt}, v{DZ+4*tt+1}")
            a(f"v_and_or_b32 v{24+tt}, v{24+tt}, v{MS_}, s{18+(tt&3)}")
    for tt in range(4, 8):
        a(f"v_add_f32 v{24+tt}, v{DZ+4*tt}, v{DZ+4*tt+1}")
        a(f"v_and_or_b32 v{24+tt}, v{24+tt}, v{MS_}, s{18+(tt&3)}")
    hstore("L_sp2", [f"buffer_store_dwordx4 v[{24+4*g}:{27+4*g}], v{PO_}, s[48:51], s23 offen offset:{256*g}" for g in range(2)])
    stamp(2)
    a("L_red2:")
    a(f"""
    s_add_u32 s12, s22, {WS_PART2}
    s_add_u32 s13, s12, 0x20000
    v_mov_b32 v36, s18
    v_mov_b32 v37, s19
    v_mov_b32 v38, s20
    v_mov_b32 v39, s21
    v_bfe_u32 v{TA}, v0, 2, 2
    v_and_b32 v{TB}, 3, v0
    v_lshlrev_b32 v{TA}, 5, v{TA}
    v_lshl_add_u32 v{TA}, v{TB}, 1, v{TA}
    """)
    srd(52, P_OUT, 4096)
    if dry: a("s_cmp_eq_u32 s0, 1\ns_cselect_b32 s54, 0, s54")
    poll("L_poll_p2", [f"buffer_load_dwordx4 v[32:35], v{TC}, s[48:51], s12 offen sc1", "s_mov_b32 exec_hi, 0xffff",
                       f"buffer_load_dwordx4 v[36:39], v{TC}, s[48:51], s13 offen sc1"],
         tags_bytes(2, 44), post="s_mov_b64 exec, -1")
    stamp(13)
    colsum(2)
    resid(RGB)
    a(f"""
    v_cvt_pk_bf16_f32 v16, v16, v16
    s_mov_b64 exec, 0xffff
    buffer_store_short v16, v{TA}, s[52:55], s71 offen {opol}
    """)
    if not epearly or dbg or pad:
        a(f"""
        s_or_b32 s12, s2, s7
        s_cbranch_scc1 L_hend
        s_mov_b64 exec, 1
        v_mov_b32 v17, {TAG}
        v_mov_b32 v18, 0
        buffer_store_dword v17, v18, s[48:51], 0 offen sc1
        """)
    if dbg:
        a("s_cmp_eq_u32 s0, 1\ns_cbranch_scc1 L_hend\ns_memrealtime s[94:95]\ns_waitcnt lgkmcnt(0)\ns_sub_u32 s94, s94, s60\ns_sub_u32 s96, s96, s60\ns_sub_u32 s98, s98, s60")
        srd(8, 40, 256)
        for i, r in enumerate([98, 91, 92, 93, 96, 94]):
            a(f"v_mov_b32 v17, s{r}\nbuffer_store_dword v17, v18, s[8:11], 0 offen offset:{4*i}")
    if pad:
        a(f"s_cmp_eq_u32 s0, 1\ns_cbranch_scc1 L_hend\nL_pad:\ns_memrealtime s[94:95]\ns_waitcnt lgkmcnt(0)\ns_sub_u32 s94, s94, s60\ns_cmp_lt_u32 s94, {pad}\ns_cbranch_scc1 L_pad")
    a("L_hend:")
    if dry: a("s_cmp_eq_u32 s0, 1\ns_cbranch_scc0 L_fin\ns_cmp_ge_u32 s68, 4\ns_cbranch_scc1 L_afterdry1\ns_branch L_afterdry2\nL_fin:")
    stamp(14)
    if diag:
        a(f"""
        s_mov_b64 exec, -1
        v_lshlrev_b32 v1, 4, v0
        v_add_u32 v20, {L_FL+F_TT}, v1
        s_mov_b32 exec_hi, 0
        ds_read_b128 v[16:19], v20
        s_lshl_b32 s12, s2, 9
        s_add_u32 s12, s12, {WS_DBG + 0x40000}
        s_waitcnt lgkmcnt(0)
        buffer_store_dwordx4 v[16:19], v1, s[48:51], s12 offen
        """)
    dump_stamps(15)
    a("L_end:")
    a("s_endpgm")
    a('.section .rodata,"a"')
    a(".p2align 6")
    a(f".amdhsa_kernel {NAME}_kernel")
    a("""
    .amdhsa_next_free_vgpr 256
    .amdhsa_next_free_sgpr 102
    .amdhsa_accum_offset 256
    .amdhsa_group_segment_fixed_size 0
    .amdhsa_kernarg_size 112
    .amdhsa_user_sgpr_count 2
    .amdhsa_user_sgpr_kernarg_segment_ptr 1
    .amdhsa_system_sgpr_workgroup_id_x 1
    .amdhsa_float_denorm_mode_32 3
    .end_amdhsa_kernel
    """)
    return out + a.text()

if __name__ == "__main__":
    kw = eval("dict(" + (sys.argv[2] if len(sys.argv) > 2 else "") + ")")
    open(sys.argv[1], "w").write(gen(**kw))
```

```python
import sys
from asmlib import Asm

NAME = "adaLN_cond__mha_block_cached__geglu_ffn__decode"
WS_MOD = 0x1000
WS_Q = 0x10000
WS_STATS = 0x20000
WS_X1 = 0x28000
WS_PART2 = 0x40000
WS_PART1 = 0x80000
WS_FAST = 0
WS_XCC = 0x30000
WS_LINE = 0x34000
AGG = 255
WS_TM, TMSTR = 0x280000, 4352
WS_DBG, WS_SIZE = 0x200000, 0x400000
L_W, L_ACT, L_Q, L_OP, L_GB, L_FL = 0, 0x20000, 0x21200, 0x21400, 0x21A00, 0x21E00
ACT_STRIDE, OP_STRIDE, GB_STRIDE = 1088, 320, 192
LDS_BYTES = 0x22200
F_FAC, F_KD, F_WF, F_WQ, F_WQD, F_H, F_G1, F_G2, F_ST, F_TT = 0, 64, 80, 96, 112, 128, 144, 160, 192, 256
NFFN = 28
SPIN_MAX = 1 << 20
P_X, P_K, P_V, P_WQ, P_WO, P_WG, P_WU, P_WD, P_C, P_WM, P_OUT, P_WS = 16, 18, 20, 22, 24, 28, 30, 32, 34, 36, 38, 42
TAG = "s45"
LOG2E, SCALE, HIMASK = "s64", "s65", "s66"


DOC = """;
;    the partner workgroup, output projection, and (workgroups with id % 8 == 0) reduction, LayerNorm, GEGLU FFN.
;  * load balance: every streamer compares its progress with a pace line averaged over a sample of workgroups
;    and picks how many loads it keeps in flight for the next 16 KB (4..7), so that all CUs finish together.
;  * sleeps appear only as back-off inside polling loops; every polling loop is bounded.
"""

def gen(D=5, A=8, E=4, P=48, PL=32, DP=5, D2=7, NE=1, thr=3, thrA=16, thrF=8, late1=True, hk=8, upk=None, up2=1.0, thrQ=4, thrD=3, slp=16, diag=False,
        levels=((4,-70),(4.5,-20),(5,40),(6,110),(7,None)), f1=0.147, f2=0.965, f3=0.985, ms=(3, 7, 11), lagK=2, lagV=1, lag3=1, early=30, D0=None, N0=0, gq=40, gm=20,
        kctl=True, fast=True, fpol='', touch=10, touch1=False, touchp=0, pwait=0, contig=False, mk=5, fk=0.97, nb0=8, mpoll=False, trlate=False, ilv=0, perm='w0 w1 t2 h t3', diag2=False, fa_at=13, wpol='nt', noround=0, endat=99, endD=7, endbias=0, fin=7, epearly=True, opol='', otouch=False, p1first=False, p1q=False, wsh=0, psw=80, rotw=None, rotm=None, pf='', pfthr=16, xp=0, agg=True, aslp=24, alag=1, flag_=1, J=80, up=1.03, eth=45, boost=0.92, dry=True, lastctl=True, tlb=True, dbg=False, pad=0, l2warm=True, skip=''):
    a = Asm()
    def stamp(k):
        if diag: a(f"s_memrealtime s[{72+2*k}:{73+2*k}]")
    def srd(reg, ptr, nbytes):
        a(f"s_mov_b32 s{reg}, s{ptr}\ns_mov_b32 s{reg+1}, s{ptr+1}\ns_mov_b32 s{reg+2}, {nbytes}\ns_mov_b32 s{reg+3}, 0x20000")
    def dump_stamps(n):
        if not diag: return
        a("s_waitcnt lgkmcnt(0)")
        a("s_mov_b64 exec, 1")
        a("s_lshl_b32 s46, s2, 3\ns_add_u32 s46, s46, s3\ns_lshl_b32 s46, s46, 6")
        a(f"s_add_u32 s46, s46, {WS_DBG}")
        a("v_mov_b32 v1, 0")
        for k in range(n):
            a(f"v_mov_b32 v2, s{72+2*k}")
            a(f"buffer_store_dword v2, v1, s[48:51], s46 offen offset:{4*k}")
    FULL = "row_mask:0xf bank_mask:0xf"
    def allreduce(op, rs, tmps, rows_only=False, steps=("quad_perm:[1,0,3,2]", "quad_perm:[2,3,0,1]", "row_half_mirror", "row_mirror")):
        for st in steps:
            for r in rs: a(f"{op}_dpp v{r}, v{r}, v{r} {st} {FULL}")
        if rows_only: return
        for sw in ("v_permlane16_swap_b32", "v_permlane32_swap_b32"):
            for r, t in zip(rs, tmps): a(f"v_mov_b32 v{t}, v{r}")
            for r, t in zip(rs, tmps): a(f"{sw} v{r}, v{t}")
            for r, t in zip(rs, tmps): a(f"{op} v{r}, v{r}, v{t}")
    def bf16r(d, s):
        a(f"v_cvt_pk_bf16_f32 v{d}, 0, v{s}")
    def bf16r2(lo, hi, t):
        a(f"v_cvt_pk_bf16_f32 v{t}, v{lo}, v{hi}\nv_lshlrev_b32 v{lo}, 16, v{t}\nv_and_b32 v{hi}, {HIMASK}, v{t}")
    def unpack(lo, hi, s):
        a(f"v_lshlrev_b32 v{lo}, 16, v{s}\nv_and_b32 v{hi}, {HIMASK}, v{s}")
    def spin_begin(): a("s_mov_b32 s70, 0")
    def spin_check(): a(f"s_add_u32 s70, s70, 1\ns_cmp_gt_u32 s70, {SPIN_MAX}\ns_cbranch_scc1 L_end")
    MKTAG = "s_mul_i32 s45, s44, 1664525\ns_add_u32 s45, s45, 1013904223"
    BAR0 = "s_load_dword s44, s[42:43], 0\ns_barrier"
    def set_flag(row, widx, va, vb):
        a(f"s_lshl_b32 s47, {widx}, 2\ns_add_u32 s47, s47, {L_FL+row}\nv_mov_b32 v{va}, s47\nv_mov_b32 v{vb}, 1\nds_write_b32 v{va}, v{vb}")
    def wait_flags(lbl, row, t, sleep):
        spin_begin()
        a(f"v_mov_b32 v{t+4}, {L_FL+row}")
        a(f"{lbl}:")
        spin_check()
        if sleep: a(f"s_sleep {sleep}")
        a(f"""
        ds_read_b128 v[{t}:{t+3}], v{t+4}
        s_waitcnt lgkmcnt(0)
        v_and_b32 v{t}, v{t}, v{t+1}
        v_and_b32 v{t+2}, v{t+2}, v{t+3}
        v_and_b32 v{t}, v{t}, v{t+2}
        v_readfirstlane_b32 s47, v{t}
        s_cmp_eq_u32 s47, 1
        s_cbranch_scc0 {lbl}
        """)

    hdr = open("cdna_kernels/" + NAME + ".s.ref").read().split("; Override launch")[0]
    out = hdr + f"; @launch grid=(256,1,1) block=(512,1,1) lds={LDS_BYTES}\n" + DOC
    a('.amdgcn_target "amdgcn-amd-amdhsa--gfx950"')
    a(".text")
    a(f".globl {NAME}_kernel")
    a(".p2align 8")
    a(f".type {NAME}_kernel,@function")
    a(f"{NAME}_kernel:")
    a("""
    s_cmp_ge_u32 s2, 256
    s_cbranch_scc1 L_end
    s_load_dwordx16 s[16:31], s[0:1], 0
    s_load_dwordx8 s[32:39], s[0:1], 64
    s_load_dwordx4 s[40:43], s[0:1], 96
    """)
    if diag:
        for k in range(1, 15): a(f"s_mov_b32 s{72+2*k}, 0")
    stamp(0)
    a("""
    v_lshrrev_b32 v1, 6, v0
    v_and_b32 v0, 63, v0
    v_readfirstlane_b32 s3, v1
    v_lshlrev_b32 v1, 4, v0
    s_lshr_b32 s12, s2, 3
    s_and_b32 s4, s12, 3
    s_lshl_b32 s4, s4, 3
    s_and_b32 s13, s2, 7
    s_add_u32 s4, s4, s13
    s_bfe_u32 s5, s12, 0x20002
    s_lshr_b32 s6, s12, 4
    s_mov_b32 s64, 0x3fb8aa3b
    s_mov_b32 s65, 0x3db504f3
    s_mov_b32 s66, 0xffff0000
    s_lshl_b32 s15, s5, 5
    s_add_u32 s15, s15, s4
    s_cmp_ge_u32 s3, 4
    s_cbranch_scc1 L_helper
    """)

    PB = {sym: 12 + i for i, sym in enumerate(perm.split())} if perm else {'w0': 12, 'w1': 13, 't2': 14, 't3': 15, 'h': 20}
    def goff(g): return ((g & 1) << PB['t2']) + (((g >> 1) & 1) << PB['t3']) + ((g >> 2) << ((17 + xp) if perm else 16))
    Q, MK, BB, ACC, PT, XX, YY, T0, T1, SC, RING = 2, 6, 10, 14, 18, 34, 42, 46, 47, 48, 64
    if xp:
        a(f"""
        s_lshr_b32 s13, s5, {xp}
        s_lshl_b32 s13, s13, 5
        s_add_u32 s13, s13, s4
        s_lshl_b32 s13, s13, {21 + xp}
        s_and_b32 s14, s5, {(1 << xp) - 1}
        s_lshl_b32 s14, s14, 17
        s_add_u32 s13, s13, s14
        """)
    else: a("s_lshl_b32 s13, s15, 21")
    a(f"""
    s_lshl_b32 s14, s6, {PB['h']}
    s_add_u32 s13, s13, s14
    s_and_b32 s14, s3, 1
    s_lshl_b32 s14, s14, {PB['w0']}
    s_add_u32 s13, s13, s14
    s_lshr_b32 s14, s3, 1
    s_lshl_b32 s14, s14, {PB['w1']}
    s_add_u32 s13, s13, s14
    s_mov_b32 s12, s13
    s_lshl_b32 s14, s3, 15
    s_waitcnt lgkmcnt(0)
    s_mov_b32 s0, 0
    """)
    if diag2: stamp(1)
    srd(8, P_K, 0x10000000)
    st = {"issued": 0, "landed": 0}
    PT_ = P + PL
    assert P % 4 == 0 and PL <= 32
    def ldsoff(n): return ((n - P + 16) % 32) * 1024
    def slot(n):
        if n < P: return RING + 4 * n
        if n < PT_: return RING + 4 * (16 + n - P)
        return RING + 4 * ((n - PT_) % 16)
    def issue(n):
        if P <= n < PT_:
            if n & 3 == 0: a(f"s_add_u32 m0, s14, {ldsoff(n)}")
            a(f"buffer_load_dwordx4 v1, s[8:11], s12 offen offset:{(n&3)*1024} nt lds")
        else:
            r = slot(n)
            a(f"buffer_load_dwordx4 v[{r}:{r+3}], v1, s[8:11], s12 offen offset:{(n&3)*1024} nt")
        if n & 3 == 3: a(f"s_add_u32 s12, s12, {(goff((n >> 2) + 1) - goff(n >> 2)) & 0xffffffff}")
        st["issued"] = n + 1
    def throttle(d=None):
        d = d or D
        a(f"s_waitcnt vmcnt({d-1})")
        st["landed"] = max(st["landed"], st["issued"] - (d - 1))
    def ensure(n):
        if n >= st["landed"]:
            k = st["issued"] - 1 - n
            a(f"s_waitcnt vmcnt({k})"); st["landed"] = n + 1
    for n in range(PT_):
        if n == P + 16: wait_flags("L_wqd", F_WQD, PT, 0)
        dd_ = D0 if (D0 and n < N0) else DP
        if n >= dd_: throttle(dd_)
        if diag2 and n == dd_: stamp(2)
        if diag2 and n == 2*dd_: stamp(3)
        if diag2 and n == 20: stamp(5)
        issue(n)
        if n == max(DP, D0 or 0) - 1:
            srd(48, P_WS, WS_SIZE)
            a(f"""
            s_mov_b32 s60, 0xaaaaaaaa
            s_mov_b32 s61, 0xaaaaaaaa
            s_mov_b32 s62, 0xcccccccc
            s_mov_b32 s63, 0xcccccccc
            v_and_b32 v{T0}, 15, v0
            v_and_b32 v{T1}, 1, v0
            v_lshlrev_b32 v{T1}, 4, v{T1}
            v_mov_b32 v{PT}, 0xffff
            v_lshlrev_b32 v{T1}, v{T1}, v{PT}
            v_lshrrev_b32 v{PT}, 1, v{T0}
            """)
            for t in range(4):
                a(f"v_cmp_eq_u32 vcc, {t}, v{PT}\nv_cndmask_b32 v{MK+t}, 0, v{T1}, vcc")
            for t in range(4): a(f"v_mov_b32 v{ACC+t}, 0")
            a(f"v_lshlrev_b32 v{T0}, 4, v{T0}\nv_add_u32 v{T0}, {L_Q}, v{T0}")
        if n == nb0: a("s_barrier")
        if n == gm: set_flag(F_G1, "s3", PT, PT+1)
        if n == gq: set_flag(F_G2, "s3", PT, PT+1)
    if not diag2: stamp(1)
    a("s_barrier")
    if not diag2: stamp(2)
    a(f"ds_read_b128 v[{Q}:{Q+3}], v{T0}\nv_add_u32 v{T0}, s14, v1\ns_waitcnt lgkmcnt(0)")
    def kdots(n):
        r = slot(n); p = PT + n % 16
        a(f"v_dot2_f32_bf16 v{p}, v{r}, v{Q}, 0")
        for i in range(1, 4): a(f"v_dot2_f32_bf16 v{p}, v{r+i}, v{Q+i}, v{p}")
    def kreduce(dst):
        for j in range(8): a(f"v_add_f32_dpp v{XX+j}, v{PT+j}, v{PT+j} row_ror:8 row_mask:0xf bank_mask:0x3")
        for j in range(8): a(f"v_add_f32_dpp v{XX+j}, v{PT+8+j}, v{PT+8+j} row_ror:8 row_mask:0xf bank_mask:0xc")
        for j in range(4): a(f"v_add_f32_dpp v{YY+j}, v{XX+j}, v{XX+j} row_half_mirror row_mask:0xf bank_mask:0x5")
        for j in range(4): a(f"v_add_f32_dpp v{YY+j}, v{XX+4+j}, v{XX+4+j} row_half_mirror row_mask:0xf bank_mask:0xa")
        for j in range(2):
            a(f"v_cndmask_b32 v{XX+2*j}, v{YY+j+2}, v{YY+j}, s[62:63]")
            a(f"v_cndmask_b32 v{XX+2*j+1}, v{YY+j}, v{YY+j+2}, s[62:63]")
        for j in range(2):
            a(f"v_add_f32_dpp v{XX+4+j}, v{XX+2*j}, v{XX+2*j+1} quad_perm:[2,3,0,1] {FULL}")
        a(f"v_cndmask_b32 v{XX}, v{XX+5}, v{XX+4}, s[60:61]")
        a(f"v_cndmask_b32 v{XX+1}, v{XX+4}, v{XX+5}, s[60:61]")
        a(f"v_add_f32_dpp v{XX+2}, v{XX}, v{XX+1} quad_perm:[1,0,3,2] {FULL}")
        if noround < 1: bf16r(XX+2, XX+2)
        a(f"v_mul_f32 v{XX+2}, {SCALE}, v{XX+2}")
        if noround < 2: bf16r(dst, XX+2)
        else: a(f"v_mov_b32 v{dst}, v{XX+2}")
    tgt = -(-(PT_ + 16 - A + 4) // 16) * 16
    NPEEL = tgt // 16
    KL = 16 - NPEEL
    cons = {"n": 0}
    def consume_k_upto(m):
        while cons["n"] < m:
            n = cons["n"]
            if n == P:
                a("s_waitcnt lgkmcnt(0)")
                set_flag(F_WF, "s3", T0, T1)
            ensure(n); kdots(n); cons["n"] += 1
            m2 = n - 16 + P
            if n >= 16 and P <= m2 < PT_:
                ensure(m2)
                r = slot(m2)
                a(f"ds_read_b128 v[{r}:{r+3}], v{T0} offset:{ldsoff(m2)}")
            if n % 16 == 15: kreduce(SC + n // 16 + KL)
    nsteps = tgt + A - PT_
    for s in range(nsteps):
        n = PT_ + s
        prev = s if s < 16 else n - 16
        if s <= 16: want = 1 + -(-PT_ * s // 16)
        else: want = PT_ + 1 + -(-(tgt - PT_ - 1) * (s - 16) // (nsteps - 16))
        want = min(want, max(st["landed"], PT_))
        consume_k_upto(min(max(want, prev + 1), tgt))
        throttle(); issue(n)
    a("s_memrealtime s[52:53]")
    consume_k_upto(tgt)
    FA, FAD, TTA, TTV = 128, 132, 133, 134
    LV = [x[0] for x in levels]
    def ln_(dd): return str(dd).replace(".", "p")
    def dstep(dd, j):
        import math
        return int(math.floor((j + 1) * dd) - math.floor(j * dd))
    a(f"""
    s_mov_b32 s14, 0
    s_mov_b32 s56, 0
    s_mov_b32 s57, 0
    s_mov_b32 s58, 0
    s_mov_b32 s59, 0
    s_lshl_b32 s47, s3, 4
    s_add_u32 s47, s47, {L_FL+F_FAC}
    v_mov_b32 v{FAD}, s47
    s_lshl_b32 s47, s3, 2
    s_add_u32 s47, s47, {L_FL+F_TT}
    v_mov_b32 v{TTA}, s47
    v_mov_b32 v{FA+3}, 0
    """)
    def record():
        a(f"""
        s_waitcnt lgkmcnt(0)
        s_or_b32 s53, s52, 1
        v_mov_b32 v{TTV}, s53
        ds_write_b32 v{TTA}, v{TTV}
        v_add_u32 v{TTA}, 16, v{TTA}
        """)
    def dispatch(pre):
        a(f"""
        v_readfirstlane_b32 s55, v{FA+3}
        v_readfirstlane_b32 s54, v{FA+2}
        s_cmp_eq_u32 s55, 0
        s_cbranch_scc1 {pre}{ln_(D)}
        s_mul_i32 s55, s55, s56
        s_lshr_b32 s55, s55, 4
        s_sub_u32 s52, s52, s54
        s_sub_u32 s52, s52, s55
        """)
        if J:
            a(f"""
            s_sub_u32 s55, s52, s57
            s_mov_b32 s57, s52
            s_cmp_gt_i32 s55, {J}
            s_cselect_b32 s55, s55, 0
            s_add_u32 s59, s59, s55
            s_cmp_eq_u32 s54, s58
            s_cselect_b32 s59, s59, 0
            s_mov_b32 s58, s54
            s_sub_u32 s52, s52, s59
            """)
        if wsh: a(f"s_cmp_lt_u32 s56, {psw}\ns_cselect_b32 s55, {wsh}, 0\ns_ashr_i32 s52, s52, s55")
        for dd, th in levels:
            if th is None: a(f"s_branch {pre}{ln_(dd)}")
            else: a(f"s_cmp_lt_i32 s52, {th}\ns_cbranch_scc1 {pre}{ln_(dd)}")
    a("; ---- K loop: record progress, choose the prefetch depth, run one 16-tile body")
    a("L_kdisp:")
    record()
    a(f"s_cmp_ge_u32 s14, {KL}\ns_cbranch_scc1 L_kdone")
    if kctl: dispatch("L_k")
    for dd in (LV if kctl else [D]):
        assert dd <= A
        a(f"L_k{ln_(dd)}:")
        for j in range(16):
            n = tgt + j
            if j == fa_at: a(f"ds_read_b128 v[{FA}:{FA+3}], v{FAD}")
            a(f"s_waitcnt vmcnt({dstep(dd, j)-1})")
            if j == 16 - A:
                a(f"s_cmp_eq_u32 s14, {KL-1}\ns_cselect_b32 s8, s{P_V}, s8\ns_cselect_b32 s9, s{P_V+1}, s9\ns_cselect_b32 s12, s13, s12")
            issue(n + A)
            if j == 15: a("s_memrealtime s[52:53]")
            kdots(n)
            if j == 7:
                for i in range(15): a(f"v_mov_b32 v{SC+i}, v{SC+i+1}")
        kreduce(SC + 15)
        a("s_add_u32 s14, s14, 1\ns_add_u32 s56, s56, 4\ns_branch L_kdisp")
    a("L_kdone:")
    if not diag2: stamp(3)
    ex = {"n": 256 + A}
    def extra():
        if ex["n"] < 256 + A + E:
            a(f"s_waitcnt vmcnt({D-1})"); issue(ex["n"]); ex["n"] += 1
    extra()
    M, Ls = PT, PT + 1
    a(f"v_max3_f32 v{M}, v{SC}, v{SC+1}, v{SC+2}")
    for i in range(3, 15, 2): a(f"v_max3_f32 v{M}, v{M}, v{SC+i}, v{SC+i+1}")
    a(f"v_max_f32 v{M}, v{M}, v{SC+15}")
    allreduce("v_max_f32", [M], [T0])
    a(f"v_mul_f32 v{T1}, {LOG2E}, v{M}")
    extra()
    for i in range(16): a(f"v_fma_f32 v{SC+i}, v{SC+i}, {LOG2E}, -v{T1}")
    for i in range(16): a(f"v_exp_f32 v{SC+i}, v{SC+i}")
    extra()
    a(f"v_add_f32 v{Ls}, v{SC}, v{SC+1}\nv_add_f32 v{Ls+1}, v{SC+2}, v{SC+3}")
    for i in range(4, 16, 2): a(f"v_add_f32 v{Ls}, v{Ls}, v{SC+i}\nv_add_f32 v{Ls+1}, v{Ls+1}, v{SC+i+1}")
    a(f"v_add_f32 v{Ls}, v{Ls}, v{Ls+1}")
    for i in range(16): a(f"v_cvt_pk_bf16_f32 v{SC+i}, v{SC+i}, v{SC+i}")
    extra()
    allreduce("v_add_f32", [Ls], [T0])
    a(f"ds_write_b64 v{FAD}, v[{M}:{Ls}] offset:{F_ST-F_FAC}")
    set_flag(F_KD, "s3", PT+5, PT+6)
    while ex["n"] < 256 + A + E: extra()
    a("s_memrealtime s[52:53]")
    AV = A + E
    assert AV <= 15
    a(f"""
    v_lshrrev_b32 v{PT}, 4, v0
    v_lshlrev_b32 v{PT}, 5, v{PT}
    v_bfe_u32 v{PT+1}, v0, 1, 1
    v_lshl_add_u32 v{PT}, v{PT+1}, 7, v{PT}
    v_bfe_u32 v{PT+1}, v0, 2, 1
    v_lshl_add_u32 v{PT}, v{PT+1}, 2, v{PT}
    v_and_b32 v{PT+1}, 1, v0
    v_lshl_add_u32 v{PT}, v{PT+1}, 1, v{PT}
    s_mul_i32 s46, s3, {OP_STRIDE}
    s_add_u32 s46, s46, {L_OP}
    v_add_u32 v{PT}, s46, v{PT}
    s_mov_b32 s14, 0
    s_add_u32 s56, s56, {E//4}
    s_waitcnt lgkmcnt(0)
    """)
    def vbody(dd, last, timed):
        assert dd <= AV
        for j in range(16):
            n = 256 + j
            if j == fa_at: a(f"ds_read_b128 v[{FA}:{FA+3}], v{FAD}")
            for t in range(4): a(f"v_and_b32_dpp v{BB+t}, v{SC}, v{MK+t} row_newbcast:{j} {FULL}")
            a(f"s_waitcnt vmcnt({dstep(dd, j)-1})")
            if j == 16 - AV and last:
                a("s_cmp_eq_u32 s14, 15\ns_cselect_b32 s10, 0, s10")
            issue(n + AV)
            r = slot(n)
            if j == 15 and timed: a("s_memrealtime s[52:53]")
            a(f"v_mfma_f32_16x16x32_bf16 v[{ACC}:{ACC+3}], v[{r}:{r+3}], v[{BB}:{BB+3}], v[{ACC}:{ACC+3}]")
        if lastctl and not fin: a("s_cmp_eq_u32 s14, 15\ns_cbranch_scc1 L_sepi")
        for i in range(15): a(f"v_mov_b32 v{SC+i}, v{SC+i+1}")
        a("s_add_u32 s14, s14, 1\ns_add_u32 s56, s56, 4")
    assert NE >= 1
    a("s_branch L_vd1")
    a("; ---- V loop")
    a("L_vdisp:")
    if lastctl:
        record()
    else:
        record()
        a(f"s_cmp_ge_u32 s14, {16-NE}\ns_cbranch_scc1 L_vlast")
    if fin: a("s_cmp_eq_u32 s14, 15\ns_cbranch_scc1 L_vfin")
    if endat < 16: a(f"s_cmp_ge_u32 s14, {endat}\ns_cbranch_scc1 L_v{ln_(endD)}")
    if endbias: a(f"s_cmp_ge_u32 s14, 14\ns_cselect_b32 s55, {endbias}, 0\ns_add_u32 s52, s52, s55\ns_add_u32 s57, s57, s55")
    a("L_vd1:")
    dispatch("L_v")
    for dd in LV:
        a(f"L_v{ln_(dd)}:")
        vbody(dd, lastctl and not fin, True)
        a("s_branch L_vdisp")
    if fin:
        a("L_vfin:")
        a(f"ds_read_b128 v[{FA}:{FA+3}], v{FAD}")
        st["issued"] = 496 + AV; st["landed"] = 496 + AV - max(int(x + 0.999) for x in LV)
        def vcons(n):
            j = n - 496
            bb = BB if j & 1 else XX
            for t in range(4): a(f"v_and_b32_dpp v{bb+t}, v{SC}, v{MK+t} row_newbcast:{j} {FULL}")
            ensure(n)
            r = slot(n)
            a(f"v_mfma_f32_16x16x32_bf16 v[{ACC}:{ACC+3}], v[{r}:{r+3}], v[{bb}:{bb+3}], v[{ACC}:{ACC+3}]")
        c_ = 496
        for n in range(496 + AV, 512):
            throttle(fin); issue(n)
            for _ in range(2):
                if c_ < st["landed"]: vcons(c_); c_ += 1
        a("L_vfin2:")
        while c_ < 512: vcons(c_); c_ += 1
    if not lastctl:
        a("L_vlast:")
        vbody(D2, True, False)
        a("s_cmp_lt_u32 s14, 16\ns_cbranch_scc1 L_vlast")
    a("L_sepi:")
    if not fin: a("s_nop 7")
    stamp(4)
    a(f"s_waitcnt lgkmcnt(0)\nv_readfirstlane_b32 s46, v{FA+1}\ns_mov_b32 s70, 0\ns_or_b32 s46, s46, s0\ns_cmp_lg_u32 s46, 0\ns_cbranch_scc0 L_facspin")
    a("L_facok:")
    for t in range(4): a(f"v_mul_f32 v{ACC+t}, v{ACC+t}, v{FA}")
    a(f"v_cvt_pk_bf16_f32 v{ACC}, v{ACC}, v{ACC+1}\nv_cvt_pk_bf16_f32 v{ACC+2}, v{ACC+2}, v{ACC+3}")
    a(f"""
    s_mov_b32 exec_lo, 0x00ff00ff
    s_mov_b32 exec_hi, 0x00ff00ff
    ds_write_b16 v{PT}, v{ACC}
    ds_write_b16_d16_hi v{PT}, v{ACC} offset:8
    ds_write_b16 v{PT}, v{ACC+2} offset:16
    ds_write_b16_d16_hi v{PT}, v{ACC+2} offset:24
    s_waitcnt lgkmcnt(0)
    """)
    if dry: a("s_cmp_eq_u32 s0, 1\ns_cbranch_scc1 L_tail0")
    a("s_barrier")
    if not diag2: stamp(5)
    dump_stamps(6)
    a("s_endpgm")
    a("L_facspin:")
    spin_check()
    a(f"ds_read_b128 v[{FA}:{FA+3}], v{FAD}\ns_waitcnt lgkmcnt(0)\nv_readfirstlane_b32 s46, v{FA+1}\ns_cmp_eq_u32 s46, 1\ns_cbranch_scc0 L_facspin\ns_branch L_facok")

    a("L_helper:")
    TRB, DA, DB, DN, TA, TB, TC = 2, 4, 5, 6, 7, 8, 9
    a(f"""
    s_memrealtime s[60:61]
    s_sub_u32 s7, s3, 4
    """)
    def lane_consts():
        a(f"""
        v_lshrrev_b32 v{TA}, 4, v0
        v_bfe_u32 v{TB}, v0, 2, 2
        v_and_b32 v{TC}, 3, v0
        v_lshl_add_u32 v{TRB}, v{TA}, 3, v{TB}
        v_lshlrev_b32 v{TRB}, 8, v{TRB}
        v_lshl_add_u32 v{TRB}, v{TC}, 3, v{TRB}
        v_and_b32 v{TC}, 1, v{TA}
        v_lshl_add_u32 v{TB}, v{TC}, 2, v{TB}
        v_lshl_add_u32 v{TRB}, v{TB}, 5, v{TRB}
        s_lshl_b32 s12, s7, 15
        v_add_u32 v{TRB}, s12, v{TRB}
        v_and_b32 v{TB}, 15, v0
        v_lshlrev_b32 v{TC}, 1, v{TA}
        v_xor_b32 v{TB}, v{TB}, v{TC}
        v_lshlrev_b32 v{DN}, 4, v{TB}
        v_mov_b32 v{DA}, 0
        """)
    lane_consts()
    a(f"""
    s_lshr_b32 s69, s2, 3
    s_and_b32 s12, s2, 7
    s_mov_b32 s68, 4
    s_cmp_lt_u32 s69, {NFFN}
    s_cselect_b32 s68, 5, s68
    s_cmp_eq_u32 s12, 0
    s_cbranch_scc1 L_role
    s_mul_i32 s69, s69, 7
    s_add_u32 s69, s69, s12
    s_sub_u32 s69, s69, 1
    s_mov_b32 s68, 1
    s_cmp_lt_u32 s69, 16
    s_cbranch_scc1 L_role
    s_sub_u32 s69, s69, 16
    s_mov_b32 s68, 3
    s_cmp_lt_u32 s69, 64
    s_cbranch_scc1 L_role
    s_sub_u32 s69, s69, 48
    s_mov_b32 s68, 2
    s_cmp_lt_u32 s69, 48
    s_cbranch_scc1 L_role
    s_mov_b32 s68, 0
    L_role:
    """)
    a(f"""
    s_cmp_lg_u32 s7, 3
    s_cbranch_scc1 L_noinit
    s_and_b32 s12, s68, 1
    s_xor_b32 s12, s12, 1
    v_cmp_eq_u32 vcc, {F_WQD//16}, v0
    v_mov_b32 v17, s12
    v_cndmask_b32 v16, 0, v17, vcc
    v_mov_b32 v17, v16
    v_mov_b32 v18, v16
    v_mov_b32 v19, v16
    v_add_u32 v20, {L_FL}, v1
    ds_write_b128 v20, v[16:19]
    L_noinit:
    s_waitcnt lgkmcnt(0)
    s_mov_b32 s0, 0
    s_mov_b32 s71, 0
    """)
    srd(48, P_WS, WS_SIZE)
    def dma_seq(nins, stride, soff, ldsbase, infl, hooks, pol, sel, rot):
        if rot:
            a(rot)
            a(f"s_mov_b32 s59, {ldsbase}")
        for i in range(nins):
            if rot:
                if i: a(f"s_add_u32 s58, s58, 1\ns_and_b32 s58, s58, {nins-1}")
                a(f"s_lshl_b32 s57, s58, 10\ns_add_u32 m0, s59, s57\ns_mul_i32 s57, s58, {stride}\ns_add_u32 s57, s57, {soff}")
                so = "s57"
            else:
                a(f"s_mov_b32 m0, {ldsbase}" if i == 0 else "s_add_u32 m0, m0, 0x400")
                if i: a(f"s_add_u32 {soff}, {soff}, {stride}")
                so = soff
            a(f"buffer_load_dwordx4 v{DB if sel(i) else DA}, s[8:11], {so} offen {pol} lds")
            if i in hooks: hooks[i]()
            if i >= infl - 1: a(f"s_waitcnt vmcnt({infl-1})")
    def rot_code(src, mul, shr, gran, nins):
        return f"s_mul_i32 s58, {src}, {mul}\ns_lshr_b32 s58, s58, {shr}\ns_lshl_b32 s58, s58, {gran}\ns_and_b32 s58, s58, {nins-1}"
    def dma_wide(nins, rs_log2, soff, infl, hooks={}, pol='nt', key="s69"):
        a(f"v_lshrrev_b32 v{TA}, 4, v0\nv_lshl_add_u32 v{DA}, v{TA}, {rs_log2}, v{DN}\nv_xor_b32 v{DB}, 0x80, v{DA}")
        a("s_lshl_b32 s14, s7, 15")
        dma_seq(nins, 4 << rs_log2, soff, "s14", infl, hooks, pol, lambda i: (i >> 1) & 1, rot_code(key, rotw[0], rotw[1], 2, nins) if rotw else None)
    def dma_mid(soff, ldsbase, infl, rs, hooks={}):
        a(f"""
        v_lshrrev_b32 v{DA}, 3, v0
        v_mul_u32_u24 v{DA}, {rs}, v{DA}
        v_bfe_u32 v{DB}, v0, 4, 1
        v_lshlrev_b32 v{DB}, 1, v{DB}
        v_and_b32 v{TA}, 7, v0
        v_xor_b32 v{DB}, v{DB}, v{TA}
        v_lshl_add_u32 v{DA}, v{DB}, 4, v{DA}
        v_xor_b32 v{DB}, 64, v{DA}
        """)
        dma_seq(16, 8*rs, soff, ldsbase, infl, hooks, "nt", lambda i: i & 1, rot_code("s69", rotm[0], rotm[1], 1, 16) if rotm else None)
    def mid_bases():
        a(f"""
        v_lshrrev_b32 v{TB}, 4, v0
        v_bfe_u32 v{TC}, v0, 2, 2
        v_lshl_add_u32 v{TA}, v{TB}, 3, v{TC}
        v_lshlrev_b32 v{TA}, 7, v{TA}
        v_and_b32 v{TB}, 1, v{TB}
        v_lshrrev_b32 v{TC}, 1, v{TC}
        v_lshl_add_u32 v{TB}, v{TB}, 1, v{TC}
        v_xor_b32 v{TB}, s7, v{TB}
        v_lshl_add_u32 v{TA}, v{TB}, 5, v{TA}
        v_and_b32 v{TB}, 3, v0
        v_lshl_add_u32 v{TA}, v{TB}, 3, v{TA}
        v_add_u32 v{TB}, 0x10000, v{TA}
        """)
    def tr_mid(dst, off):
        for s in range(16):
            r = dst + 4 * s
            ar = TA if s < 8 else TB
            o = off + ((s >> 2) & 1) * 0x8000 + (s & 3) * 4096
            a(f"ds_read_b64_tr_b16 v[{r}:{r+1}], v{ar} offset:{o}")
            a(f"ds_read_b64_tr_b16 v[{r+2}:{r+3}], v{ar} offset:{o+512}")
        a("s_waitcnt lgkmcnt(0)")
    def tr_wide(dst, nk):
        for t in range(8):
            ar = TA if t & 1 else TB
            a(f"v_xor_b32 v{ar}, {t << 5}, v{TRB}")
            for s in range(nk):
                r = dst + (t * nk + s) * 4
                a(f"ds_read_b64_tr_b16 v[{r}:{r+1}], v{ar} offset:{s*8192}")
                a(f"ds_read_b64_tr_b16 v[{r+2}:{r+3}], v{ar} offset:{s*8192+1024}")
        a("s_waitcnt lgkmcnt(0)")
    def act_addr(dst, rowsel, tmp):
        a(f"v_and_b32 v{dst}, 3, v0" if rowsel == "lo" else f"v_bfe_u32 v{dst}, v0, 2, 2")
        a(f"v_mul_u32_u24 v{dst}, {ACT_STRIDE}, v{dst}\nv_lshrrev_b32 v{tmp}, 4, v0\nv_lshl_add_u32 v{dst}, v{tmp}, 4, v{dst}\nv_add_u32 v{dst}, {L_ACT}, v{dst}")
    def poll(lbl, loads, tags, sleep=0, pre="", post=""):
        spin_begin()
        if sleep: a(f"s_branch {lbl}_go")
        a(f"{lbl}:")
        spin_check()
        if sleep: a(f"s_sleep {sleep}\n{lbl}_go:")
        a(pre)
        for l in loads: a(l)
        a(post)
        if not getattr(tags, "waits", False): a("s_waitcnt vmcnt(0)")
        tags()
        a(f"s_cmp_eq_u64 vcc, exec\ns_cbranch_scc0 {lbl}")
    def tags_words(regs):
        def f():
            a(f"v_cmp_eq_u32 vcc, {TAG}, v{regs[0]}")
            for r in regs[1:]: a(f"v_cmp_eq_u32 s[56:57], {TAG}, v{r}\ns_and_b64 vcc, vcc, s[56:57]")
        return f
    def tags_xor(regs, t):
        def f():
            a(f"v_xor_b32 v{t}, {TAG}, v{regs[0]}")
            for r in regs[1:]: a(f"v_xor_b32 v{t+1}, {TAG}, v{r}\nv_or_b32 v{t}, v{t}, v{t+1}")
            a(f"v_cmp_eq_u32 vcc, 0, v{t}")
        return f
    def tags_bytes(n, t):
        def f():
            for q in range(n):
                a(f"s_waitcnt vmcnt({n-1-q})")
                for i in range(4*q, 4*q + 4): a(f"v_xor_b32 v{16+i}, s{18+(i&3)}, v{32+i}")
                b_ = 16 + 4*q
                if q == 0: a(f"v_or3_b32 v{t}, v{b_}, v{b_+1}, v{b_+2}\nv_or_b32 v{t}, v{t}, v{b_+3}")
                else: a(f"v_or3_b32 v{t}, v{t}, v{b_}, v{b_+1}\nv_or3_b32 v{t}, v{t}, v{b_+2}, v{b_+3}")
            a(f"v_lshlrev_b32 v{t}, 24, v{t}\nv_cmp_eq_u32 vcc, 0, v{t}")
        f.waits = True
        return f
    def pk(op, d, x, y, mods=""):
        yy = y if isinstance(y, str) else f"v[{y}:{y+1}]"
        a(f"v_pk_{op}_f32 v[{d}:{d+1}], v[{x}:{x+1}], {yy} {mods}")
    NEG = "neg_lo:[0,1] neg_hi:[0,1]"
    def rnd8(x0):
        for k in range(8): bf16r(x0 + k, x0 + k)
    def ln_norm(x0, t0):
        a(f"v_readfirstlane_b32 s46, v{x0}")
        for k in range(4): pk("add", t0+4+2*k, x0+2*k, "s[46:47]", "op_sel_hi:[1,0] " + NEG)
        pk("mul", t0+2, t0+4, t0+4)
        pk("add", t0, t0+4, t0+6)
        a(f"v_pk_fma_f32 v[{t0+2}:{t0+3}], v[{t0+6}:{t0+7}], v[{t0+6}:{t0+7}], v[{t0+2}:{t0+3}]")
        pk("add", t0+4, t0+8, t0+10)
        a(f"v_pk_fma_f32 v[{t0+2}:{t0+3}], v[{t0+8}:{t0+9}], v[{t0+8}:{t0+9}], v[{t0+2}:{t0+3}]")
        pk("add", t0, t0, t0+4)
        a(f"v_pk_fma_f32 v[{t0+2}:{t0+3}], v[{t0+10}:{t0+11}], v[{t0+10}:{t0+11}], v[{t0+2}:{t0+3}]")
        m, q = t0, t0 + 2
        a(f"v_add_f32 v{m}, v{t0}, v{t0+1}\nv_add_f32 v{q}, v{t0+2}, v{t0+3}")
        allreduce("v_add_f32", [m, q], [], rows_only=True)
        for st_ in ("row_bcast:15 row_mask:0xa bank_mask:0xf", "row_bcast:31 row_mask:0xc bank_mask:0xf"):
            for r in (m, q): a(f"v_add_f32_dpp v{r}, v{r}, v{r} {st_}")
        a(f"""
        v_mul_f32 v{m}, 0x3b000000, v{m}
        v_mul_f32 v{q}, 0x3b000000, v{q}
        v_fma_f32 v{q}, -v{m}, v{m}, v{q}
        v_add_f32 v{m}, s46, v{m}
        v_max_f32 v{q}, 0, v{q}
        """)
        bf16r(m, m); bf16r(q, q)
        a(f"v_readlane_b32 s56, v{m}, 63\nv_add_f32 v{q}, 0x3727c5ac, v{q}")
        bf16r(q, q)
        a(f"v_sqrt_f32 v{q}, v{q}")
        for k in range(2): pk("add", x0+2*k, x0+2*k, "s[56:57]", "op_sel_hi:[1,0] " + NEG)
        bf16r(q, q)
        for k in range(2, 4): pk("add", x0+2*k, x0+2*k, "s[56:57]", "op_sel_hi:[1,0] " + NEG)
        a(f"v_rcp_f32 v{q}, v{q}")
        for k in range(3): bf16r(x0 + k, x0 + k)
        a(f"v_readlane_b32 s46, v{q}, 63")
        for k in range(3, 8): bf16r(x0 + k, x0 + k)
        for k in range(4): pk("mul", x0+2*k, x0+2*k, "s[46:47]", "op_sel_hi:[1,0]")
        rnd8(x0)
    def ln_affine(x0, sc8, sh8, t):
        for k in range(4): pk("mul", x0+2*k, x0+2*k, sc8+2*k)
        rnd8(x0)
        for k in range(4): pk("add", x0+2*k, x0+2*k, sh8+2*k)
        for k in range(4): a(f"v_cvt_pk_bf16_f32 v{t+k}, v{x0+2*k}, v{x0+2*k+1}")
    X8, ST, SA8, CA8, BW, DT = 24, 32, 40, 48, 192, 56
    def gemv64(tagn, kind, infl, first):
        isq = kind == "q"
        srd(52, P_X if isq else P_C, 4096)
        a(f"""
        v_lshlrev_b32 v10, 3, v0
        s_lshl_b32 s12, s7, 10
        buffer_load_dwordx2 v[12:13], v10, s[52:55], s12 offen
        buffer_load_dwordx2 v[14:15], v10, s[52:55], s12 offen offset:512
        """)
        rs = 8192 if isq else 6144
        srd(8, P_WQ if isq else P_WM, 0 if ({"q": "q", "A": "A", "a": "a"}[kind] in skip) else 512 * rs)
        if contig: rs = 128
        a(f"s_mul_i32 s13, s7, {128*rs}\ns_lshl_b32 s12, s69, {16 if contig else 7}\ns_add_u32 s13, s13, s12\ns_lshl_b32 s14, s7, 15")
        dma_mid("s13", "s14", infl, rs, hooks=({min(infl, 16) - 1: lambda: a(BAR0)} if first else {}))
        a("s_waitcnt vmcnt(16)")
        if kind == "A": stamp(1)
        for k in range(4): unpack(X8 + 2*k, X8 + 2*k + 1, 12 + k)
        a(f"s_mul_i32 s12, s7, {ACT_STRIDE}\ns_add_u32 s12, s12, {L_ACT}\nv_add_u32 v10, s12, v10")
        if isq:
            ln_norm(X8, ST)
        else:
            for k in range(8): a(f"v_mul_f32 v{ST+k}, {LOG2E}, v{X8+k}")
            for k in range(8): a(f"v_exp_f32 v{ST+k}, -v{ST+k}")
            for k in range(8): a(f"v_add_f32 v{ST+k}, 1.0, v{ST+k}")
            for k in range(8): a(f"v_rcp_f32 v{ST+k}, v{ST+k}")
            for k in range(8): a(f"v_mul_f32 v{X8+k}, v{X8+k}, v{ST+k}")
            for k in range(4): a(f"v_cvt_pk_bf16_f32 v{16+k}, v{X8+2*k}, v{X8+2*k+1}")
            a("ds_write_b64 v10, v[16:17]\nds_write_b64 v10, v[18:19] offset:512")
        mid_bases()
        a("s_waitcnt vmcnt(0)")
        set_flag(F_WQ, "s7", 20, 21)
        wait_flags(f"L_wq{tagn}", F_WQ, 16, 0)
        if first: a(MKTAG)
        stamp(4 if isq else 2) if first else None
        tr_mid(BW, 0)
        if first: set_flag(F_WQD, "s7", 16, 17)
        act_addr(TC, "lo", TB)
        a(f"s_lshl_b32 s67, s69, 10\ns_lshl_b32 s12, s7, 8\ns_add_u32 s67, s67, s12\ns_add_u32 s67, s67, {WS_Q if isq else WS_MOD}")
        if isq:
            a(f"""
            v_lshrrev_b32 v{TA}, 2, v0
            v_lshlrev_b32 v{TA}, 8, v{TA}
            v_and_b32 v{TB}, 3, v0
            v_lshl_add_u32 v{TA}, v{TB}, 4, v{TA}
            s_lshl_b32 s12, s7, 6
            s_add_u32 s12, s12, {WS_MOD}
            s_add_u32 s13, s12, 0x1000
            s_add_u32 s14, s12, 0x2000
            s_add_u32 s46, s12, 0x3000
            """)
            if gm: wait_flags("L_g1", F_G1, 16, 4)
            G0 = 128
            poll("L_poll_mod", [f"buffer_load_dwordx4 v[{G0+4*i}:{G0+4*i+3}], v{TA}, s[48:51], {sr} offen sc1" for i, sr in enumerate(["s12", "s13", "s14", "s46"])],
                 tags_xor([G0 + 1 + 2*k for k in range(8)], 16), sleep=slp)
            stamp(5)
            for k in range(4): unpack(SA8 + 2*k, SA8 + 2*k + 1, G0 + 2*k)
            for k in range(4): unpack(CA8 + 2*k, CA8 + 2*k + 1, G0 + 8 + 2*k)
            for k in range(8): a(f"v_add_f32 v{CA8+k}, 1.0, v{CA8+k}")
            rnd8(CA8)
            ln_affine(X8, CA8, SA8, 16)
            a("ds_write_b64 v10, v[16:17]\nds_write_b64 v10, v[18:19] offset:512")
            set_flag(F_H, "s7", 20, 21)
            wait_flags("L_h", F_H, 16, 0)
        for hh in range(2):
            for s in range(8): a(f"ds_read_b128 v[{16+4*s}:{19+4*s}], v{TC} offset:{(8*hh+s)*64}")
            for s in range(8):
                a(f"s_waitcnt lgkmcnt({7-s})")
                k = 8*hh + s
                a(f"v_mfma_f32_16x16x32_bf16 v[{DT}:{DT+3}], v[{BW+4*k}:{BW+4*k+3}], v[{16+4*s}:{19+4*s}], " + ("0" if k == 0 else f"v[{DT}:{DT+3}]"))
        a(f"""
        v_and_b32 v{TC}, 3, v0
        v_lshrrev_b32 v{TA}, 4, v0
        v_lshlrev_b32 v{TA}, 4, v{TA}
        v_lshl_add_u32 v{TA}, v{TC}, 6, v{TA}
        v_mov_b32 v{DT+5}, {TAG}
        v_mov_b32 v{DT+7}, {TAG}
        v_cvt_pk_bf16_f32 v{DT+4}, v{DT}, v{DT+1}
        v_cvt_pk_bf16_f32 v{DT+6}, v{DT+2}, v{DT+3}
        s_mov_b32 exec_lo, 0x000f000f
        s_mov_b32 exec_hi, 0x000f000f
        buffer_store_dwordx4 v[{DT+4}:{DT+7}], v{TA}, s[48:51], s67 offen sc1
        s_mov_b64 exec, -1
        """)
        if first: stamp(13 if isq else 3)

    a("""
    s_cmp_eq_u32 s68, 3
    s_cbranch_scc1 L_qgemv
    s_cmp_eq_u32 s68, 5
    s_cbranch_scc1 L_down
    s_cmp_lg_u32 s68, 1
    s_cbranch_scc1 L_bar0
    """)
    gemv64(1, "A", 64, True)
    a("s_branch L_getq")
    a("L_qgemv:")
    gemv64(2, "q", thrQ, True)
    a("s_branch L_getq")
    a("L_down:")
    srd(8, P_WD, 0 if 'f' in skip else 1792 * 1024)
    a("s_lshl_b32 s13, s69, 16\ns_lshl_b32 s12, s7, 8\ns_add_u32 s13, s13, s12")
    dma_wide(16, 10, "s13", thrD, hooks={min(thrD, 16) - 1: lambda: a(BAR0)})
    a("s_waitcnt vmcnt(0)")
    tr_wide(192, 2)
    a(MKTAG)
    set_flag(F_WQD, "s7", 16, 17)
    a("s_branch L_getq")
    a("L_bar0:")
    if l2warm:
        a(f"""
        s_cmp_lg_u32 s7, 3
        s_cbranch_scc1 L_nowarm
        s_getpc_b64 s[12:13]
        L_pc:
        s_sub_u32 s12, s12, L_pc-{NAME}_kernel
        s_subb_u32 s13, s13, 0
        v_lshlrev_b32 v16, 7, v0
        s_mov_b32 s14, 0
        L_warm:
        v_cmp_gt_u32 vcc, L_end-{NAME}_kernel, v16
        s_and_saveexec_b64 s[46:47], vcc
        s_cbranch_execz L_warmd
        global_load_dword v17, v16, s[12:13]
        v_add_u32 v16, 0x2000, v16
        s_branch L_warm
        L_warmd:
        s_mov_b64 exec, -1
        L_nowarm:
        """)
    a(BAR0)
    a("s_waitcnt lgkmcnt(0)")
    a(MKTAG)
    a("L_getq:")
    def dryrun(n, cond):
        a(f"""
        s_cmp_lg_u32 s7, 1
        s_cbranch_scc1 L_nodry{n}
        {cond} s68, 4
        s_cbranch_scc1 L_nodry{n}
        s_waitcnt vmcnt(0)
        s_mov_b32 s0, 1
        s_mov_b32 s1, {TAG}
        s_mov_b32 {TAG}, 0
        s_mov_b32 s50, 0
        s_mov_b32 s44, 1
        v_mov_b32 v{PT}, {L_OP}
        s_branch {'L_vfin2' if fin else 'L_facok'}
        L_afterdry{n}:
        s_mov_b32 s0, 0
        s_mov_b32 {TAG}, s1
        s_mov_b32 s50, {WS_SIZE}
        s_mov_b64 exec, -1
        s_waitcnt vmcnt(0) lgkmcnt(0)
        """)
        if n == 1: lane_consts()
        a(f"L_nodry{n}:")
    if dry: dryrun(1, "s_cmp_lt_u32")
    a("s_cmp_lg_u32 s7, 2\ns_cbranch_scc1 L_bar1")
    a(f"""
    v_bfe_u32 v{TA}, v0, 2, 3
    v_lshlrev_b32 v{TA}, 8, v{TA}
    v_and_b32 v{TB}, 3, v0
    v_lshl_add_u32 v{TA}, v{TB}, 4, v{TA}
    s_lshl_b32 s12, s4, 11
    s_lshl_b32 s13, s5, 6
    s_add_u32 s12, s12, s13
    s_add_u32 s12, s12, {WS_Q}
    v_and_b32 v{TB}, 31, v0
    v_lshlrev_b32 v{TB}, 3, v{TB}
    v_add_u32 v{TB}, {L_Q}, v{TB}
    """)
    if gq: wait_flags("L_g2", F_G2, 16, 4)
    poll("L_poll_q", [f"buffer_load_dwordx4 v[16:19], v{TA}, s[48:51], s12 offen sc1"], tags_words([17, 19]), sleep=slp)
    a(f"v_mov_b32 v17, v18\nds_write_b64 v{TB}, v[16:17]\ns_waitcnt lgkmcnt(0)")
    a("L_bar1:")
    a("s_barrier")
    if dbg: a("s_memrealtime s[98:99]")
    stamp(6)
    a(f"""
    s_getreg_b32 s62, hwreg(HW_REG_XCC_ID)
    s_cmp_lt_u32 s68, 4
    s_cbranch_scc1 L_noxcc
    s_cmp_lg_u32 s7, 1
    s_cbranch_scc1 L_noxcc
    v_mov_b32 v16, s62
    v_mov_b32 v17, {TAG}
    s_lshl_b32 s12, s69, 7
    s_add_u32 s12, s12, {WS_XCC}
    s_mov_b64 exec, 1
    buffer_store_dwordx2 v[16:17], v1, s[48:51], s12 offen sc1
    s_mov_b64 exec, -1
    L_noxcc:
    """)
    if tlb:
        a("s_cmp_lg_u32 s7, 3\ns_cbranch_scc1 L_notlb\ns_mov_b64 exec, 1")
        srd(8, P_V, 0x10000000)
        a("s_lshl_b32 s12, s15, 21\ns_lshl_b32 s13, s6, 20\ns_add_u32 s12, s12, s13\nbuffer_load_dword v16, v1, s[8:11], s12 offen nt")
        srd(8, P_OUT, 4096)
        a("buffer_load_dword v17, v1, s[8:11], 0 offen nt")
        a(f"s_mov_b32 s12, {WS_TM}\nbuffer_load_dword v18, v1, s[48:51], s12 offen offset:1024 nt")
        a("s_mov_b64 exec, -1\ns_waitcnt vmcnt(0)\nL_notlb:")
    def wait_row(lbl, g):
        spin_begin()
        a(f"v_mov_b32 v20, {L_FL+F_TT+16*g}")
        a(f"s_branch {lbl}_go\n{lbl}:")
        spin_check()
        a(f"""
        s_sleep 8
        {lbl}_go:
        ds_read_b128 v[16:19], v20
        s_waitcnt lgkmcnt(0)
        v_and_b32 v21, v16, v17
        v_and_b32 v22, v18, v19
        v_and_b32 v21, v21, v22
        v_readfirstlane_b32 s47, v21
        s_bitcmp1_b32 s47, 0
        s_cbranch_scc0 {lbl}
        """)
    def tm_publish(m, g):
        a(f"""
        s_lshr_b32 s12, s2, 3
        s_xor_b32 s12, s12, s2
        s_and_b32 s12, s12, 1
        s_xor_b32 s14, s6, 1
        s_or_b32 s12, s12, s14
        s_or_b32 s12, s12, s68
        s_or_b32 s12, s12, s7
        s_cbranch_scc1 L_tmp{m}
        """)
        wait_row(f"L_tr{m}", g)
        for k in range(4): a(f"v_subrev_u32 v{16+k}, s60, v{16+k}")
        a(f"""
        v_add3_u32 v16, v16, v17, v18
        v_add_u32 v16, v16, v19
        v_lshrrev_b32 v16, 2, v16
        v_add_u32 v16, s60, v16
        v_mov_b32 v17, {TAG}
        v_mov_b32 v18, s60
        v_mov_b32 v19, {TAG}
        s_bfe_u32 s12, s2, 0x30004
        s_lshl_b32 s12, s12, 3
        s_and_b32 s14, s2, 7
        s_add_u32 s12, s12, s14
        s_mul_i32 s12, s12, {TMSTR}
        s_add_u32 s12, s12, {WS_TM + 128*m}
        s_mov_b64 exec, 1
        buffer_store_dwordx4 v[16:19], v1, s[48:51], s12 offen sc1
        s_mov_b64 exec, -1
        L_tmp{m}:
        """)
    import struct
    def fhex(v): return hex(struct.unpack("<I", struct.pack("<f", v))[0])
    def sfetch(lbl, soff_reg, imm):
        a(f"""
        s_load_dwordx4 s[56:59], s[42:43], {soff_reg}
        s_waitcnt lgkmcnt(0)
        v_mov_b32 v16, s56
        v_mov_b32 v18, s58
        s_xor_b32 s57, s57, {TAG}
        s_xor_b32 s59, s59, {TAG}
        s_or_b32 s57, s57, s59
        s_cbranch_scc0 {lbl}_ok
        v_mov_b32 v20, 0
        """)
        poll(lbl, [f"buffer_load_dwordx4 v[16:19], v20, s[48:51], {soff_reg} offen sc1"], tags_words([17, 19]), sleep=32)
        a(f"{lbl}_ok:")
    def line_write(m):
        a(f"""
        s_cmp_ge_u32 s68, 4
        s_cselect_b32 s12, {early if 1 < m < 9 else 0}, 0
        v_subrev_u32 v16, s12, v16
        v_and_b32 v20, 3, v0
        v_lshlrev_b32 v20, 4, v20
        v_add_u32 v20, {L_FL+F_FAC+8}, v20
        ds_write_b64 v20, v[16:17]
        """)
    def tm_follow(m, gate):
        a(f"s_cmp_lg_u32 s7, 0\ns_cbranch_scc1 L_tmf{m}\ns_cmp_eq_u32 s2, {AGG}\ns_cbranch_scc1 L_tmf{m}")
        wait_row(f"L_tf{m}", gate + flag_)
        a(f"s_mov_b32 s12, {WS_LINE + 1280*m}")
        sfetch(f"L_poll_ln{m}", "s12", 0)
        a("v_mov_b32 v17, v18")
        line_write(m)
        a(f"L_tmf{m}:")
    def tm_gather(m, gate, p_m, mult, row, follow=True):
        a(f"s_cmp_lg_u32 s7, 0\ns_cbranch_scc1 L_tmg{m}")
        if agg: a(f"s_cmp_lg_u32 s2, {AGG}\ns_cbranch_scc1 L_tmg{m}")
        wait_row(f"L_tg{m}", row + alag if agg else gate)
        a(f"""
        v_and_b32 v21, 7, v0
        v_lshrrev_b32 v20, 3, v0
        v_max_u32 v20, 1, v20
        v_cmp_eq_u32 vcc, 0, v21
        v_cndmask_b32 v20, 0, v20, vcc
        v_add_u32 v20, v20, v0
        v_mul_u32_u24 v20, {TMSTR}, v20
        s_mov_b32 s12, {WS_TM + 128*m}
        """)
        poll(f"L_poll_tm{m}", ["buffer_load_dwordx4 v[16:19], v20, s[48:51], s12 offen sc1"], tags_words([17, 19]), sleep=aslp if agg else 48)
        a("v_sub_u32 v18, v16, v18\nv_subrev_u32 v16, s60, v16")
        allreduce("v_add_u32", [16, 18], [17, 19])
        a("v_ashrrev_i32 v16, 6, v16\nv_lshrrev_b32 v18, 6, v18")
        if m > 1: a("v_subrev_u32 v18, s61, v16")
        a(f"""
        v_readfirstlane_b32 s61, v16
        {f"v_readfirstlane_b32 s{90+m}, v16" if dbg else ""}
        v_cvt_f32_u32 v18, v18
        v_mul_f32 v18, {fhex(mult)}, v18
        """)
        if m > 1 and up:
            a(f"""
            s_mul_i32 s12, s63, {p_m}
            s_lshr_b32 s12, s12, 4
            s_add_u32 s12, s12, s1
            s_sub_u32 s12, s12, {eth}
            v_mul_f32 v19, {fhex(boost)}, v18
            v_cmp_gt_i32 vcc, s12, v16
            v_cvt_f32_u32 v17, s63
            v_cndmask_b32 v18, v18, v19, vcc
            v_mul_f32 v17, {fhex(up2 if m == 2 else (upk if (m == 9 and upk) else up))}, v17
            v_min_f32 v18, v18, v17
            """)
        a(f"""
        v_cvt_u32_f32 v17, v18
        v_mul_u32_u24 v18, {p_m}, v17
        v_lshrrev_b32 v18, 4, v18
        v_sub_u32 v16, v16, v18
        v_readfirstlane_b32 s63, v17
        v_readfirstlane_b32 s1, v16
        v_add_u32 v16, s60, v16
        """)
        if agg:
            a(f"""
            v_mov_b32 v20, v16
            v_mov_b32 v21, {TAG}
            v_mov_b32 v22, v17
            v_mov_b32 v23, {TAG}
            s_mov_b32 s12, {WS_LINE + 1280*m}
            s_mov_b64 exec, 1
            buffer_store_dwordx4 v[20:23], v1, s[48:51], s12 offen sc1
            s_mov_b64 exec, -1
            """)
        line_write(m)
        a(f"L_tmg{m}:")
        if agg and follow: tm_follow(m, gate)
    if pf:
        for hw_, (ptr, nb, n_, key) in enumerate([(P_WO, 4096*1024, 16, 'w'), (P_WG, 512*3584, 7, 'f'), (P_WU, 512*3584, 7, 'f'), (P_WM, 512*6144, 12, 'a')]):
            if key not in pf: continue
            a(f"s_cmp_lg_u32 s7, {hw_}\ns_cbranch_scc1 L_npf{hw_}")
            srd(8, ptr, nb)
            a(f"s_mul_i32 s12, s2, {n_*1024}")
            for i in range(n_):
                a(f"buffer_load_dwordx4 v[{64+4*i}:{67+4*i}], v1, s[8:11], s12 offen offset:{(i&3)*1024}")
                if i & 3 == 3: a("s_add_u32 s12, s12, 0x1000")
                if i >= pfthr - 1: a(f"s_waitcnt vmcnt({pfthr-1})")
            a(f"s_waitcnt vmcnt(0)\nL_npf{hw_}:")
    wait_flags("L_wf", F_WF, 16, 4)
    srd(8, P_WO, 0 if 'w' in skip else 4096 * 1024)
    a("s_lshl_b32 s13, s4, 17\ns_lshl_b32 s12, s7, 8\ns_add_u32 s13, s13, s12")
    if late1:
        dma_wide(32, 10, "s13", thr, hooks={hk: lambda: tm_publish(1, 0)}, pol=wpol, key='s4')
    else:
        dma_wide(32, 10, "s13", thr, hooks=({5: lambda: tm_publish(1, 0), 9 + 6*alag: lambda: tm_gather(1, lagK, 0, 4*f1, 1, False), 5 + 6*(lagK + flag_): lambda: tm_follow(1, lagK)} if agg else {5: lambda: tm_publish(1, 0), 5 + 6*lagK: lambda: tm_gather(1, lagK, 0, 4*f1, 1)}), pol=wpol, key='s4')
    a("s_waitcnt vmcnt(0)")
    tr_wide(64, 4)
    if mk and not late1:
        tm_publish(9, mk)
        tm_gather(9, mk + 1, 4*mk, 4*fk/mk, mk)
    a("s_cmp_lg_u32 s68, 2\ns_cbranch_scc1 L_noA2")
    gemv64(3, "a", thrA, False)
    a("L_noA2:")
    SB, TREG = [10, 11, 12, 13], [4, 5, 6, 14]
    RX, RGA, RGB = 2, 3, 15
    def ffn_cols(dst_tile, dst_sub):
        a(f"""
        v_lshrrev_b32 v{dst_tile}, 4, v0
        v_and_b32 v{dst_sub}, 3, v0
        v_lshl_add_u32 v{dst_tile}, v{dst_tile}, 2, v{dst_sub}
        v_bfe_u32 v{dst_sub}, v0, 2, 2
        """)
    a("s_cmp_lt_u32 s68, 4\ns_cbranch_scc1 L_nored1\ns_cmp_lg_u32 s68, 5\ns_cbranch_scc1 L_noffn1")
    srd(8, P_WG, 0 if 'f' in skip else 512 * 3584)
    RSF = 128 if contig else 3584
    a(f"s_lshl_b32 s13, s69, {16 if contig else 7}\ns_mul_i32 s12, s7, {128*RSF}\ns_add_u32 s46, s13, s12\ns_mov_b32 s13, s46\ns_lshl_b32 s14, s7, 15")
    dma_mid("s13", "s14", thrF, RSF)
    srd(8, P_WU, 0 if 'f' in skip else 512 * 3584)
    a("s_mov_b32 s13, s46\ns_add_u32 s14, s14, 0x4000")
    dma_mid("s13", "s14", thrF, RSF)
    a("L_noffn1:")
    a("L_nored1:")
    if late1:
        tm_gather(1, lagK, 0, 4*f1, 1)
        if mk:
            tm_publish(9, mk)
            tm_gather(9, mk + 1, 4*mk, 4*fk/mk, mk)
    if dry: dryrun(2, "s_cmp_ge_u32")
    stamp(7)
    tm_publish(2, KL)
    a("s_cmp_lg_u32 s7, 0\ns_cbranch_scc1 L_nofac")
    wait_flags("L_kd", F_KD, 16, 16)
    q4 = ("quad_perm:[1,0,3,2]", "quad_perm:[2,3,0,1]")
    a(f"""
    v_and_b32 v{TA}, 3, v0
    v_lshlrev_b32 v{TA}, 4, v{TA}
    v_add_u32 v{TA}, {L_FL}, v{TA}
    ds_read_b64 v[24:25], v{TA} offset:{F_ST}
    s_waitcnt lgkmcnt(0)
    v_mov_b32 v28, v24
    """)
    allreduce("v_max_f32", [28], [], rows_only=True, steps=q4)
    a(f"v_sub_f32 v30, v24, v28\nv_mul_f32 v30, {LOG2E}, v30\nv_exp_f32 v30, v30\nv_mul_f32 v30, v25, v30")
    allreduce("v_add_f32", [30], [], rows_only=True, steps=q4)
    a(f"""
    v_mov_b32 v29, {TAG}
    v_mov_b32 v31, {TAG}
    s_lshl_b32 s13, s15, 7
    s_add_u32 s13, s13, {WS_STATS}
    s_lshl_b32 s12, s6, 4
    s_add_u32 s14, s13, s12
    s_xor_b32 s12, s12, 16
    s_add_u32 s13, s13, s12
    s_mov_b64 exec, 1
    buffer_store_dwordx4 v[28:31], v1, s[48:51], s14 offen sc1
    s_mov_b64 exec, -1
    """)
    tm_gather(2, KL + lagV, 4*KL, 4*f2/(KL - mk), KL)
    if agg:
        wait_row("L_stw", KL + 2)
        sfetch("L_poll_st", "s13", 0)
    else:
        a(f"v_mov_b32 v{TB}, 0")
        poll("L_poll_st", [f"buffer_load_dwordx4 v[16:19], v{TB}, s[48:51], s13 offen sc1"], tags_words([17, 19]), sleep=32)
    a(f"""
    v_max_f32 v17, v16, v28
    v_sub_f32 v16, v16, v17
    v_sub_f32 v28, v28, v17
    v_sub_f32 v24, v24, v17
    v_mul_f32 v16, {LOG2E}, v16
    v_mul_f32 v28, {LOG2E}, v28
    v_mul_f32 v24, {LOG2E}, v24
    v_exp_f32 v16, v16
    v_exp_f32 v28, v28
    v_exp_f32 v24, v24
    v_mul_f32 v16, v16, v18
    v_fmac_f32 v16, v28, v30
    v_rcp_f32 v16, v16
    v_mov_b32 v25, 1
    v_mul_f32 v24, v24, v16
    ds_write_b64 v{TA}, v[24:25] offset:{F_FAC}
    """)
    a("L_nofac:")
    a("s_cmp_lt_u32 s68, 4\ns_cbranch_scc1 L_nored2")
    wait_row("L_kd2", KL + 1)
    a("s_cmp_lg_u32 s68, 5\ns_cbranch_scc1 L_noffn2")
    ffn_cols(TA, TB)
    a(f"""
    v_lshlrev_b32 v{TA}, 8, v{TA}
    v_lshl_add_u32 v{TA}, v{TB}, 4, v{TA}
    s_lshl_b32 s12, s7, 6
    s_add_u32 s12, s12, {WS_MOD + 96*256}
    s_add_u32 s13, s12, 0x1000
    s_add_u32 s14, s12, 0x2000
    s_add_u32 s46, s12, 0x3000
    """)
    poll("L_poll_sb", [f"buffer_load_dwordx4 v[{16+4*i}:{19+4*i}], v{TA}, s[48:51], {sr} offen sc1" for i, sr in enumerate(["s12", "s13", "s14", "s46"])],
         tags_words([17 + 2*k for k in range(8)]), sleep=16)
    for k in range(4):
        a(f"v_mov_b32 v{SB[k]}, v{16+2*k}")
        unpack(32, 33, 24 + 2*k)
        a(f"v_add_f32 v32, 1.0, v32\nv_add_f32 v33, 1.0, v33\nv_cvt_pk_bf16_f32 v{TREG[k]}, v32, v33")
    a("L_noffn2:")
    srd(52, P_X, 4096)
    a(f"""
    v_bfe_u32 v{TA}, v0, 2, 2
    v_and_b32 v{TB}, 3, v0
    v_lshlrev_b32 v{TC}, 5, v{TA}
    v_lshl_add_u32 v{TC}, v{TB}, 1, v{TC}
    s_lshl_b32 s71, s69, 7
    s_lshl_b32 s12, s7, 3
    s_add_u32 s71, s71, s12
    buffer_load_ushort v{RX}, v{TC}, s[52:55], s71 offen
    v_lshlrev_b32 v{TA}, 8, v{TA}
    v_lshrrev_b32 v{TC}, 1, v{TB}
    v_lshl_add_u32 v{TA}, v{TC}, 3, v{TA}
    s_and_b32 s12, s69, 7
    s_lshl_b32 s12, s12, 10
    s_lshl_b32 s13, s7, 4
    s_add_u32 s12, s12, s13
    s_lshr_b32 s13, s69, 3
    s_lshl_b32 s13, s13, 6
    s_add_u32 s12, s12, s13
    s_add_u32 s13, s12, {WS_MOD + 160*256}
    s_add_u32 s12, s12, {WS_MOD + 64*256}
    """)
    poll("L_poll_ga", [f"buffer_load_dwordx2 v[16:17], v{TA}, s[48:51], s12 offen sc1", f"buffer_load_dwordx2 v[18:19], v{TA}, s[48:51], s13 offen sc1"],
         tags_words([17, 19]), sleep=16)
    a(f"v_and_b32 v{TB}, 1, v0\nv_cmp_eq_u32 vcc, 1, v{TB}")
    for k, r in enumerate([RGA, RGB]):
        unpack(24, 25, 16 + 2*k)
        a(f"v_cndmask_b32 v{r}, v24, v25, vcc")
    a(f"v_lshlrev_b32 v{RX}, 16, v{RX}")
    a(f"v_and_b32 v{TA}, 31, v0\nv_lshlrev_b32 v{TA}, 7, v{TA}\ns_mov_b32 s12, {WS_XCC}")
    poll("L_poll_xcc", [f"buffer_load_dwordx2 v[16:17], v{TA}, s[48:51], s12 offen sc1"], tags_words([17]), sleep=16)
    a(f"v_cmp_eq_u32 vcc, s62, v16\ns_cmp_eq_u64 vcc, exec\ns_cselect_b32 s44, {1 if fast else 0}, 0")
    a("L_nored2:")
    prevp = 4 * KL
    def milestones(lst):
        nonlocal prevp
        for i, mv in lst:
            p_ = 4 * (KL + mv) + E // 4
            tm_publish(3 + i, KL + mv)
            tm_gather(3 + i, KL + mv + lag3, p_, 16 * f3 / (p_ - prevp), KL + mv)
            prevp = p_
    MS = list(enumerate(ms))
    if touchp:
        wait_row("L_tchp", KL + touchp)
        a(f"""
        s_lshl_b32 s12, s15, 1
        s_add_u32 s12, s12, s6
        s_lshl_b32 s12, s12, 11
        s_lshl_b32 s13, s7, 9
        s_add_u32 s12, s12, s13
        s_add_u32 s12, s12, {WS_PART1}
        s_mov_b32 exec_hi, 0
        buffer_load_dwordx4 v[24:27], v1, s[48:51], s12 offen sc1
        s_mov_b64 exec, -1
        s_waitcnt vmcnt(0)
        """)
    milestones([x for x in MS if x[1] + lag3 + (flag_ if agg else 0) <= touch])
    if touch:
        a("s_cmp_lt_u32 s68, 4\ns_cbranch_scc1 L_notouch")
        wait_row("L_tch", KL + touch)
        a(f"""
        v_lshrrev_b32 v{TA}, 2, v0
        v_and_b32 v{TB}, 3, v0
        v_lshlrev_b32 v{TC}, 13, v{TA}
        v_lshl_add_u32 v{TC}, v{TB}, 4, v{TC}
        v_lshlrev_b32 v{TA}, 11, v{TA}
        v_lshl_add_u32 v{TA}, v{TB}, 4, v{TA}
        s_lshl_b32 s12, s7, 11
        s_add_u32 s12, s12, {WS_X1}
        buffer_load_dwordx4 v[16:19], v1, s[48:51], s12 offen sc1
        buffer_load_dwordx4 v[20:23], v1, s[48:51], s12 offen offset:1024 sc1
        s_lshl_b32 s12, s69, 8
        s_lshl_b32 s13, s7, 6
        s_add_u32 s12, s12, s13
        s_add_u32 s12, s12, {WS_PART2}
        s_add_u32 s13, s12, 0x20000
        buffer_load_dwordx4 v[24:27], v{TC}, s[48:51], s12 offen sc1
        buffer_load_dwordx4 v[28:31], v{TC}, s[48:51], s13 offen sc1
        """)
        if otouch:
            srd(52, P_OUT, 4096)
            a("buffer_load_ushort v32, v0, s[52:55], s71 offen")
        if touch1:
            a(f"""
            s_and_b32 s12, s69, 7
            s_lshl_b32 s12, s12, 8
            s_lshl_b32 s13, s7, 6
            s_add_u32 s12, s12, s13
            s_lshr_b32 s13, s69, 3
            s_lshl_b32 s13, s13, 17
            s_add_u32 s12, s12, s13
            s_add_u32 s12, s12, {WS_PART1}
            """)
            for i in range(4):
                a(f"buffer_load_dwordx4 v[{32+4*i}:{35+4*i}], v{TA}, s[48:51], s12 offen sc1\ns_add_u32 s12, s12, 0x8000")
        a("s_waitcnt vmcnt(0)\nL_notouch:")
    milestones([x for x in MS if x[1] + lag3 + (flag_ if agg else 0) > touch])
    AF, DD = 16, 32
    bn = {"n": 0}
    def barrier():
        if not dry: a("s_barrier"); return
        bn["n"] += 1
        a(f"s_cmp_eq_u32 s0, 1\ns_cbranch_scc1 L_nb{bn['n']}\ns_barrier\nL_nb{bn['n']}:")
    a(f"""
    L_tail0:
    s_mov_b64 exec, -1
    s_waitcnt vmcnt(0) lgkmcnt(0)
    v_bfe_u32 v{TB}, v0, 1, 2
    v_mul_u32_u24 v{TB}, {OP_STRIDE}, v{TB}
    v_lshrrev_b32 v{TA}, 4, v0
    v_lshl_add_u32 v{TB}, v{TA}, 4, v{TB}
    v_and_b32 v{TA}, 1, v0
    v_lshl_add_u32 v{TB}, v{TA}, 7, v{TB}
    v_add_u32 v{TB}, {L_OP}, v{TB}
    v_mul_u32_u24 v{TA}, 0xaaaa, v{TA}
    v_add_u32 v{TA}, 0x4444, v{TA}
    s_lshl_b32 s12, s15, 1
    s_add_u32 s12, s12, s6
    s_lshl_b32 s12, s12, 11
    s_lshl_b32 s13, s7, 9
    s_add_u32 s12, s12, s13
    s_add_u32 s12, s12, {WS_PART1}
    s_and_b32 s18, {TAG}, 0xff
    s_bfe_u32 s19, {TAG}, 0x80008
    s_bfe_u32 s20, {TAG}, 0x80010
    s_lshr_b32 s21, {TAG}, 24
    v_mov_b32 v{TC}, 0xffffff00
    """)
    for i in range(32): a(f"v_mov_b32 v{DD+i}, 0")
    P1V = 28
    a(f"""
    v_lshrrev_b32 v{P1V}, 2, v0
    v_and_b32 v{P1V+1}, 3, v0
    v_lshlrev_b32 v{P1V}, 11, v{P1V}
    v_lshl_add_u32 v{P1V}, v{P1V+1}, 4, v{P1V}
    s_and_b32 s26, s69, 7
    s_lshl_b32 s26, s26, 8
    s_lshl_b32 s13, s7, 6
    s_add_u32 s26, s26, s13
    s_lshr_b32 s13, s69, 3
    s_lshl_b32 s14, s13, 11
    s_add_u32 s22, s26, s14
    s_lshl_b32 s13, s13, 17
    s_add_u32 s26, s26, s13
    s_add_u32 s26, s26, {WS_PART1}
    s_add_u32 s27, s26, 0x8000
    s_add_u32 s14, s26, 0x10000
    s_add_u32 s67, s26, 0x18000
    s_add_u32 s23, s22, {WS_X1}
    """)
    P1S = ["s26", "s27", "s14", "s67"]
    if p1q:
        a(f"""
        s_bfe_u32 s26, s69, 0x20001
        s_lshl_b32 s26, s26, 9
        s_and_b32 s27, s69, 1
        s_lshl_b32 s27, s27, 6
        s_add_u32 s26, s26, s27
        s_lshl_b32 s27, s7, 15
        s_add_u32 s26, s26, s27
        s_add_u32 s26, s26, s13
        s_add_u32 s26, s26, {WS_PART1}
        """)
        P1S = ["s26"]
    stamp(8)
    barrier()
    if dbg: a("s_memrealtime s[96:97]")
    stamp(9)
    for s in range(2): a(f"ds_read_b128 v[{AF+4*s}:{AF+4*s+3}], v{TB} offset:{64*s}")
    a("s_waitcnt lgkmcnt(0)")
    def smf(d, af, b, ix): a(f"v_smfmac_f32_16x16x64_bf16 v[{d}:{d+3}], v[{af}:{af+3}], v[{b}:{b+7}], v{ix}")
    order = [0, 4, 1, 5, 2, 6, 3, 7]
    OQ = 24
    work = []
    def fin(t):
        d = DD + 4*t
        w_ = [f"v_pk_add_f32 v[{d}:{d+1}], v[{d}:{d+1}], v[{d+2}:{d+3}]", f"v_add_f32 v{d}, v{d}, v{d+1}"]
        return w_
    def fin2(k):
        x, y = DD + 4*k, DD + 4*(k+4)
        return [f"v_permlane16_swap_b32 v{x}, v{y}", f"v_add_f32 v{OQ+k}, v{x}, v{y}", f"v_and_or_b32 v{OQ+k}, v{OQ+k}, v{TC}, s{18+k}"]
    for i, t in enumerate(order):
        if i >= 3: work += fin(order[i-3])
        if i >= 5 and (i - 5) % 2 == 0: work += fin2((i - 5) // 2)
        for sx in range(2):
            smf(DD + 4*t, AF + 4*sx, 64 + (t*4 + 2*sx)*4, TA)
            for _ in range(2):
                if work: a(work.pop(0))
    work += fin(order[5]) + fin(order[6]) + fin2(2) + fin(order[7]) + fin2(3)
    for w_ in work: a(w_)
    if p1q: a("s_mov_b32 exec_lo, 0xff")
    a(f"s_mov_b32 exec_hi, 0\nbuffer_store_dwordx4 v[{OQ}:{OQ+3}], v1, s[48:51], s12 offen sc1\ns_mov_b64 exec, -1")
    stamp(10)
    a("s_cmp_lt_u32 s68, 4\ns_cbranch_scc1 L_hend")
    if p1first:
        stamp(4)
        for i, sr in enumerate(P1S): a(f"buffer_load_dwordx4 v[{32+4*i}:{35+4*i}], v{P1V}, s[48:51], {sr} offen sc1")
    a("s_cmp_lg_u32 s68, 5\ns_cbranch_scc1 L_noffn3")
    SC8, SH8 = 48, 56
    HW_, HF_, GF_, GW_, PO_, MS_ = 10, 11, 12, 13, 4, 5
    mid_bases()
    tr_mid(64, 0)
    tr_mid(128, 0x4000)
    for k in range(4): unpack(SC8 + 2*k, SC8 + 2*k + 1, TREG[k])
    for k in range(4): unpack(SH8 + 2*k, SH8 + 2*k + 1, SB[k])
    IX_ = 6
    act_addr(HF_, "hi", TB)
    ffn_cols(TA, TB)
    a(f"""
    v_lshlrev_b32 v{HW_}, 4, v{TA}
    v_lshl_add_u32 v{HW_}, v{TB}, 2, v{HW_}
    s_mul_i32 s13, s7, {ACT_STRIDE}
    s_add_u32 s13, s13, {L_ACT}
    v_add_u32 v{HW_}, s13, v{HW_}
    v_mul_u32_u24 v{GF_}, {GB_STRIDE}, v{TB}
    v_lshlrev_b32 v{GW_}, 2, v{TB}
    v_and_b32 v{IX_}, 1, v0
    v_lshl_add_u32 v{HF_}, v{IX_}, 9, v{HF_}
    v_lshl_add_u32 v{GF_}, v{IX_}, 6, v{GF_}
    v_lshl_add_u32 v{GW_}, v{IX_}, 1, v{GW_}
    v_mul_u32_u24 v{IX_}, 0xaaaa, v{IX_}
    v_add_u32 v{IX_}, 0x4444, v{IX_}
    v_bfe_u32 v{TB}, v0, 1, 1
    v_lshl_add_u32 v{GW_}, v{TB}, 6, v{GW_}
    v_lshrrev_b32 v{TB}, 4, v0
    v_lshl_add_u32 v{GF_}, v{TB}, 4, v{GF_}
    v_add_u32 v{GF_}, {L_GB}, v{GF_}
    v_mul_u32_u24 v{TA}, {GB_STRIDE}, v{TB}
    s_lshl_b32 s13, s7, 4
    s_add_u32 s13, s13, {L_GB}
    v_add3_u32 v{GW_}, v{GW_}, v{TA}, s13
    v_and_b32 v{TA}, 15, v0
    v_lshlrev_b32 v{TB}, 11, v{TB}
    v_lshl_add_u32 v{PO_}, v{TA}, 4, v{TB}
    v_mov_b32 v{MS_}, 0xffffff00
    """)
    a("L_noffn3:")
    a(f"""
    v_lshrrev_b32 v{TC}, 2, v0
    v_and_b32 v{TB}, 3, v0
    v_lshlrev_b32 v{TC}, 13, v{TC}
    v_lshl_add_u32 v{TC}, v{TB}, 4, v{TC}
    v_lshlrev_b32 v{TB}, 2, v0
    v_mov_b32 v{TA}, v{P1V}
    """)
    if pwait: a(f"s_sleep {pwait}")
    if not p1first: stamp(4)
    spin_begin()
    if p1first: a("s_branch L_poll_p1w")
    a("L_poll_p1:")
    spin_check()
    for i, sr in enumerate(P1S): a(f"buffer_load_dwordx4 v[{32+4*i}:{35+4*i}], v{TA}, s[48:51], {sr} offen sc1")
    a("L_poll_p1w:")
    tags_bytes(len(P1S), 44 if p1q else 32)()
    a("s_cmp_eq_u64 vcc, exec\ns_cbranch_scc0 L_poll_p1")
    stamp(11)
    if diag: a("s_mov_b32 s82, s70")
    def colsum(n):
        st_ = 1
        while st_ < n:
            for i in range(0, n, 2*st_):
                for k in (0, 2): pk("add", 16+4*i+k, 16+4*i+k, 16+4*(i+st_)+k)
            st_ *= 2
        a("""
        v_add_f32_dpp v20, v16, v16 row_ror:8 row_mask:0xf bank_mask:0x3
        v_add_f32_dpp v21, v17, v17 row_ror:8 row_mask:0xf bank_mask:0x3
        v_add_f32_dpp v20, v18, v18 row_ror:8 row_mask:0xf bank_mask:0xc
        v_add_f32_dpp v21, v19, v19 row_ror:8 row_mask:0xf bank_mask:0xc
        v_add_f32_dpp v16, v20, v20 row_shl:4 row_mask:0xf bank_mask:0x5
        v_add_f32_dpp v16, v21, v21 row_shr:4 row_mask:0xf bank_mask:0xa
        """)
        allreduce("v_add_f32", [16], [17], steps=())
    def resid(gate):
        bf16r(16, 16)
        a(f"v_mul_f32 v16, v16, v{gate}")
        bf16r(16, 16)
        a(f"v_add_f32 v16, v16, v{RX}")
    colsum(4)
    resid(RGA)
    a(f"""
    v_mov_b32 v41, {TAG}
    v_mov_b32 v43, {TAG}
    v_mov_b32_dpp v17, v16 quad_perm:[1,1,1,1] {FULL}
    v_mov_b32_dpp v18, v16 quad_perm:[2,2,2,2] {FULL}
    v_mov_b32_dpp v19, v16 quad_perm:[3,3,3,3] {FULL}
    v_cvt_pk_bf16_f32 v40, v16, v17
    v_cvt_pk_bf16_f32 v42, v18, v19
    s_mov_b64 exec, 0x1111
    """)
    def hstore(lbl, stores):
        a(f"s_cmp_eq_u32 s44, 1\ns_cbranch_scc0 {lbl}_s")
        for st_ in stores: a(f"{st_} {fpol}")
        a(f"s_branch {lbl}_e\n{lbl}_s:")
        for st_ in stores: a(f"{st_} sc1")
        a(f"{lbl}_e:")
    hstore("L_sx1", [f"buffer_store_dwordx4 v[40:43], v{TB}, s[48:51], s23 offen"])
    a("s_mov_b64 exec, -1")
    stamp(12)
    bf16r(RX, 16)
    a("s_cmp_lg_u32 s68, 5\ns_cbranch_scc1 L_red2")
    a(f"""
    s_lshl_b32 s12, s7, 11
    s_add_u32 s12, s12, {WS_X1}
    s_lshl_b32 s13, s69, 13
    s_lshl_b32 s14, s7, 9
    s_add_u32 s13, s13, s14
    s_add_u32 s23, s13, {WS_PART2}
    """)
    poll("L_poll_x1", ["buffer_load_dwordx4 v[16:19], v1, s[48:51], s12 offen sc1", "buffer_load_dwordx4 v[20:23], v1, s[48:51], s12 offen offset:1024 sc1"],
         tags_xor([17, 19, 21, 23], 24))
    stamp(1)
    X2, S2 = 24, 32
    for k in range(4): unpack(X2 + 2*k, X2 + 2*k + 1, 16 + 2*k)
    ln_norm(X2, S2)
    ln_affine(X2, SC8, SH8, 16)
    G, U, GT = 56, 60, 14
    a(f"ds_write2_b32 v{HW_}, v16, v17 offset0:0 offset1:128\nds_write2_b32 v{HW_}, v18, v19 offset0:64 offset1:192")
    for i in range(8): a(f"v_mov_b32 v{G+i}, 0")
    a("s_waitcnt lgkmcnt(0)")
    barrier()
    for k in range(8): a(f"ds_read_b128 v[{16+4*k}:{19+4*k}], v{HF_} offset:{k*64}")
    for k in range(8):
        a(f"s_waitcnt lgkmcnt({7-k})")
        smf(G, 16 + 4*k, 64 + 8*k, IX_)
    DZ = 64
    gelu = [f"v_add_f32 v{G}, v{G}, v{G+1}", f"v_cvt_pk_bf16_f32 v{G}, 0, v{G}", f"v_mul_f32 v{GT}, v{G}, v{G}", f"v_mul_f32 v{GT}, 0x3d372713, v{GT}",
            f"v_fma_f32 v{GT}, v{GT}, v{G}, v{G}", f"v_mul_f32 v{GT}, 0x40135761, v{GT}", f"v_exp_f32 v{GT}, -v{GT}",
            f"v_add_f32 v{GT}, 1.0, v{GT}", f"v_rcp_f32 v{GT}, v{GT}", f"v_mul_f32 v{GT}, v{GT}, v{G}", f"v_cvt_pk_bf16_f32 v{GT}, 0, v{GT}"]
    zero = [f"v_mov_b32 v{DZ+4*t+r}, 0" for t in range(8) for r in range(2)]
    for k in range(8):
        smf(U, 16 + 4*k, 128 + 8*k, IX_)
        if k < 3:
            for _ in range(2): a(zero.pop(0))
        else:
            a(gelu.pop(0)); a(gelu.pop(0))
    while gelu: a(gelu.pop(0))
    a(f"v_add_f32 v{U}, v{U}, v{U+1}")
    bf16r(U, U)
    a(f"""
    v_mul_f32 v{GT}, v{GT}, v{U}
    v_cvt_pk_bf16_f32 v{GT}, v{GT}, v{GT}
    ds_write_b16 v{GW_}, v{GT}
    """)
    while zero: a(zero.pop(0))
    if epearly:
        a(f"""
        s_or_b32 s12, s2, s7
        s_cbranch_scc1 L_noep
        s_mov_b64 exec, 1
        v_mov_b32 v17, {TAG}
        buffer_store_dword v17, v1, s[48:51], 0 offen sc1
        s_mov_b64 exec, -1
        L_noep:
        """)
    a("s_waitcnt lgkmcnt(0)")
    barrier()
    a(f"""
    ds_read_b128 v[{AF}:{AF+3}], v{GF_}
    s_waitcnt lgkmcnt(0)
    """)
    assert not zero
    fw = []
    for t in range(8):
        smf(DZ + 4*t, AF, 192 + 8*t, IX_)
        if t >= 4:
            tt = t - 4
            a(f"v_add_f32 v{24+tt}, v{DZ+4*tt}, v{DZ+4*tt+1}")
            a(f"v_and_or_b32 v{24+tt}, v{24+tt}, v{MS_}, s{18+(tt&3)}")
    for tt in range(4, 8):
        a(f"v_add_f32 v{24+tt}, v{DZ+4*tt}, v{DZ+4*tt+1}")
        a(f"v_and_or_b32 v{24+tt}, v{24+tt}, v{MS_}, s{18+(tt&3)}")
    hstore("L_sp2", [f"buffer_store_dwordx4 v[{24+4*g}:{27+4*g}], v{PO_}, s[48:51], s23 offen offset:{256*g}" for g in range(2)])
    stamp(2)
    a("L_red2:")
    a(f"""
    s_add_u32 s12, s22, {WS_PART2}
    s_add_u32 s13, s12, 0x20000
    v_mov_b32 v36, s18
    v_mov_b32 v37, s19
    v_mov_b32 v38, s20
    v_mov_b32 v39, s21
    v_bfe_u32 v{TA}, v0, 2, 2
    v_and_b32 v{TB}, 3, v0
    v_lshlrev_b32 v{TA}, 5, v{TA}
    v_lshl_add_u32 v{TA}, v{TB}, 1, v{TA}
    """)
    srd(52, P_OUT, 4096)
    if dry: a("s_cmp_eq_u32 s0, 1\ns_cselect_b32 s54, 0, s54")
    poll("L_poll_p2", [f"buffer_load_dwordx4 v[32:35], v{TC}, s[48:51], s12 offen sc1", "s_mov_b32 exec_hi, 0xffff",
                       f"buffer_load_dwordx4 v[36:39], v{TC}, s[48:51], s13 offen sc1"],
         tags_bytes(2, 44), post="s_mov_b64 exec, -1")
    stamp(13)
    colsum(2)
    resid(RGB)
    a(f"""
    v_cvt_pk_bf16_f32 v16, v16, v16
    s_mov_b64 exec, 0xffff
    buffer_store_short v16, v{TA}, s[52:55], s71 offen {opol}
    """)
    if not epearly or dbg or pad:
        a(f"""
        s_or_b32 s12, s2, s7
        s_cbranch_scc1 L_hend
        s_mov_b64 exec, 1
        v_mov_b32 v17, {TAG}
        v_mov_b32 v18, 0
        buffer_store_dword v17, v18, s[48:51], 0 offen sc1
        """)
    if dbg:
        a("s_cmp_eq_u32 s0, 1\ns_cbranch_scc1 L_hend\ns_memrealtime s[94:95]\ns_waitcnt lgkmcnt(0)\ns_sub_u32 s94, s94, s60\ns_sub_u32 s96, s96, s60\ns_sub_u32 s98, s98, s60")
        srd(8, 40, 256)
        for i, r in enumerate([98, 91, 92, 93, 96, 94]):
            a(f"v_mov_b32 v17, s{r}\nbuffer_store_dword v17, v18, s[8:11], 0 offen offset:{4*i}")
    if pad:
        a(f"s_cmp_eq_u32 s0, 1\ns_cbranch_scc1 L_hend\nL_pad:\ns_memrealtime s[94:95]\ns_waitcnt lgkmcnt(0)\ns_sub_u32 s94, s94, s60\ns_cmp_lt_u32 s94, {pad}\ns_cbranch_scc1 L_pad")
    a("L_hend:")
    if dry: a("s_cmp_eq_u32 s0, 1\ns_cbranch_scc0 L_fin\ns_cmp_ge_u32 s68, 4\ns_cbranch_scc1 L_afterdry1\ns_branch L_afterdry2\nL_fin:")
    stamp(14)
    if diag:
        a(f"""
        s_mov_b64 exec, -1
        v_lshlrev_b32 v1, 4, v0
        v_add_u32 v20, {L_FL+F_TT}, v1
        s_mov_b32 exec_hi, 0
        ds_read_b128 v[16:19], v20
        s_lshl_b32 s12, s2, 9
        s_add_u32 s12, s12, {WS_DBG + 0x40000}
        s_waitcnt lgkmcnt(0)
        buffer_store_dwordx4 v[16:19], v1, s[48:51], s12 offen
        """)
    dump_stamps(15)
    a("L_end:")
    a("s_endpgm")
    a('.section .rodata,"a"')
    a(".p2align 6")
    a(f".amdhsa_kernel {NAME}_kernel")
    a("""
    .amdhsa_next_free_vgpr 256
    .amdhsa_next_free_sgpr 102
    .amdhsa_accum_offset 256
    .amdhsa_group_segment_fixed_size 0
    .amdhsa_kernarg_size 112
    .amdhsa_user_sgpr_count 2
    .amdhsa_user_sgpr_kernarg_segment_ptr 1
    .amdhsa_system_sgpr_workgroup_id_x 1
    .amdhsa_float_denorm_mode_32 3
    .end_amdhsa_kernel
    """)
    return out + a.text()

if __name__ == "__main__":
    kw = eval("dict(" + (sys.argv[2] if len(sys.argv) > 2 else "") + ")")
    open(sys.argv[1], "w").write(gen(**kw))
```

```python
import sys
from asmlib import Asm

NAME = "adaLN_cond__mha_block_cached__geglu_ffn__decode"
WS_MOD = 0x1000
WS_Q = 0x10000
WS_STATS = 0x20000
WS_X1 = 0x28000
WS_PART2 = 0x40000
WS_PART1 = 0x80000
WS_FAST = 0
WS_XCC = 0x30000
WS_LINE = 0x34000
AGG = 255
WS_TM, TMSTR = 0x280000, 4352
WS_DBG, WS_SIZE = 0x200000, 0x400000
L_W, L_ACT, L_Q, L_OP, L_GB, L_FL = 0, 0x20000, 0x21200, 0x21400, 0x21A00, 0x21E00
ACT_STRIDE, OP_STRIDE, GB_STRIDE = 1088, 320, 192
LDS_BYTES = 0x22200
F_FAC, F_KD, F_WF, F_WQ, F_WQD, F_H, F_G1, F_G2, F_ST, F_TT = 0, 64, 80, 96, 112, 128, 144, 160, 192, 256
NFFN = 28
SPIN_MAX = 1 << 20
P_X, P_K, P_V, P_WQ, P_WO, P_WG, P_WU, P_WD, P_C, P_WM, P_OUT, P_WS = 16, 18, 20, 22, 24, 28, 30, 32, 34, 36, 38, 42
TAG = "s45"
LOG2E, SCALE, HIMASK = "s64", "s65", "s66"


DOC = """;
;    the partner workgroup, output projection, and (workgroups with id % 8 == 0) reduction, LayerNorm, GEGLU FFN.
;  * load balance: every streamer compares its progress with a pace line averaged over a sample of workgroups
;    and picks how many loads it keeps in flight for the next 16 KB (4..7), so that all CUs finish together.
;  * sleeps appear only as back-off inside polling loops; every polling loop is bounded.
"""

def gen(D=5, A=8, E=4, P=48, PL=32, DP=5, D2=7, NE=1, thr=3, thrA=16, thrF=16, late1=True, hk=8, upk=None, up2=1.0, thrQ=4, thrD=3, slp=16, diag=False,
        levels=((4,-70),(4.5,-20),(5,40),(6,110),(8,None)), f1=0.147, f2=0.965, f3=0.985, ms=(3, 7, 11), lagK=2, lagV=1, lag3=1, early=30, D0=None, N0=0, gq=40, gm=20,
        kctl=True, fast=True, fpol='', touch=10, touch1=False, touchp=0, pwait=0, contig=False, mk=5, fk=0.97, nb0=8, mpoll=False, trlate=False, ilv=0, perm='w0 w1 t2 h t3', diag2=False, fa_at=13, wpol='nt', noround=0, endat=99, endD=7, endbias=0, fin=7, epearly=True, opol='', otouch=False, p1first=False, p1q=False, wsh=0, psw=80, rotw=None, rotm=None, pf='', pfthr=16, xp=0, xb=None, sym=False, agg=True, aslp=24, alag=1, flag_=1, J=80, up=1.03, eth=45, boost=0.92, ek=0.0011, e0=10, fsplit=(2, 6), spf='', sgran=128, tsh=1, nojT=True, dry=True, lastctl=True, tlb=True, dbg=False, pad=0, l2warm=True, skip=''):
    a = Asm()
    def stamp(k):
        if diag: a(f"s_memrealtime s[{72+2*k}:{73+2*k}]")
    def srd(reg, ptr, nbytes):
        a(f"s_mov_b32 s{reg}, s{ptr}\ns_mov_b32 s{reg+1}, s{ptr+1}\ns_mov_b32 s{reg+2}, {nbytes}\ns_mov_b32 s{reg+3}, 0x20000")
    def dump_stamps(n):
        if not diag: return
        a("s_waitcnt lgkmcnt(0)")
        a("s_mov_b64 exec, 1")
        a("s_lshl_b32 s46, s2, 3\ns_add_u32 s46, s46, s3\ns_lshl_b32 s46, s46, 6")
        a(f"s_add_u32 s46, s46, {WS_DBG}")
        a("v_mov_b32 v1, 0")
        for k in range(n):
            a(f"v_mov_b32 v2, s{72+2*k}")
            a(f"buffer_store_dword v2, v1, s[48:51], s46 offen offset:{4*k}")
    FULL = "row_mask:0xf bank_mask:0xf"
    def allreduce(op, rs, tmps, rows_only=False, steps=("quad_perm:[1,0,3,2]", "quad_perm:[2,3,0,1]", "row_half_mirror", "row_mirror")):
        for st in steps:
            for r in rs: a(f"{op}_dpp v{r}, v{r}, v{r} {st} {FULL}")
        if rows_only: return
        for sw in ("v_permlane16_swap_b32", "v_permlane32_swap_b32"):
            for r, t in zip(rs, tmps): a(f"v_mov_b32 v{t}, v{r}")
            for r, t in zip(rs, tmps): a(f"{sw} v{r}, v{t}")
            for r, t in zip(rs, tmps): a(f"{op} v{r}, v{r}, v{t}")
    def bf16r(d, s):
        a(f"v_cvt_pk_bf16_f32 v{d}, 0, v{s}")
    def bf16r2(lo, hi, t):
        a(f"v_cvt_pk_bf16_f32 v{t}, v{lo}, v{hi}\nv_lshlrev_b32 v{lo}, 16, v{t}\nv_and_b32 v{hi}, {HIMASK}, v{t}")
    def unpack(lo, hi, s):
        a(f"v_lshlrev_b32 v{lo}, 16, v{s}\nv_and_b32 v{hi}, {HIMASK}, v{s}")
    def spin_begin(): a("s_mov_b32 s70, 0")
    def spin_check(): a(f"s_add_u32 s70, s70, 1\ns_cmp_gt_u32 s70, {SPIN_MAX}\ns_cbranch_scc1 L_end")
    MKTAG = "s_mul_i32 s45, s44, 1664525\ns_add_u32 s45, s45, 1013904223"
    BAR0 = "s_load_dword s44, s[42:43], 0\ns_barrier"
    def set_flag(row, widx, va, vb):
        a(f"s_lshl_b32 s47, {widx}, 2\ns_add_u32 s47, s47, {L_FL+row}\nv_mov_b32 v{va}, s47\nv_mov_b32 v{vb}, 1\nds_write_b32 v{va}, v{vb}")
    def wait_flags(lbl, row, t, sleep):
        spin_begin()
        a(f"v_mov_b32 v{t+4}, {L_FL+row}")
        a(f"{lbl}:")
        spin_check()
        if sleep: a(f"s_sleep {sleep}")
        a(f"""
        ds_read_b128 v[{t}:{t+3}], v{t+4}
        s_waitcnt lgkmcnt(0)
        v_and_b32 v{t}, v{t}, v{t+1}
        v_and_b32 v{t+2}, v{t+2}, v{t+3}
        v_and_b32 v{t}, v{t}, v{t+2}
        v_readfirstlane_b32 s47, v{t}
        s_cmp_eq_u32 s47, 1
        s_cbranch_scc0 {lbl}
        """)

    hdr = open("cdna_kernels/" + NAME + ".s.ref").read().split("; Override launch")[0]
    out = hdr + f"; @launch grid=(256,1,1) block=(512,1,1) lds={LDS_BYTES}\n" + DOC
    a('.amdgcn_target "amdgcn-amd-amdhsa--gfx950"')
    a(".text")
    a(f".globl {NAME}_kernel")
    a(".p2align 8")
    a(f".type {NAME}_kernel,@function")
    a(f"{NAME}_kernel:")
    a("""
    s_cmp_ge_u32 s2, 256
    s_cbranch_scc1 L_end
    s_load_dwordx16 s[16:31], s[0:1], 0
    s_load_dwordx8 s[32:39], s[0:1], 64
    s_load_dwordx4 s[40:43], s[0:1], 96
    """)
    if diag:
        for k in range(1, 15): a(f"s_mov_b32 s{72+2*k}, 0")
    stamp(0)
    a("""
    v_lshrrev_b32 v1, 6, v0
    v_and_b32 v0, 63, v0
    v_readfirstlane_b32 s3, v1
    v_lshlrev_b32 v1, 4, v0
    s_lshr_b32 s12, s2, 3
    s_and_b32 s4, s12, 3
    s_lshl_b32 s4, s4, 3
    s_and_b32 s13, s2, 7
    s_add_u32 s4, s4, s13
    s_bfe_u32 s5, s12, 0x20002
    s_lshr_b32 s6, s12, 4
    s_mov_b32 s64, 0x3fb8aa3b
    s_mov_b32 s65, 0x3db504f3
    s_mov_b32 s66, 0xffff0000
    s_lshl_b32 s15, s5, 5
    s_add_u32 s15, s15, s4
    s_cmp_ge_u32 s3, 4
    s_cbranch_scc1 L_helper
    """)

    PB = {sym: 12 + i for i, sym in enumerate(perm.split())} if perm else {'w0': 12, 'w1': 13, 't2': 14, 't3': 15, 'h': 20}
    def goff(g): return ((g & 1) << PB['t2']) + (((g >> 1) & 1) << PB['t3']) + ((g >> 2) << ((17 + xp) if perm else 16))
    Q, MK, BB, ACC, PT, XX, YY, T0, T1, SC, RING = 2, 6, 10, 14, 18, 34, 42, 46, 47, 48, 64
    if xb is not None:
        xp = 1
        a(f"""
        s_andn2_b32 s13, s15, {1 << xb}
        s_lshl_b32 s13, s13, 21
        s_bfe_u32 s14, s15, {0x10000 + xb}
        s_lshl_b32 s14, s14, 17
        s_add_u32 s13, s13, s14
        s_mov_b32 s67, 0
        """)
    elif xp:
        a(f"""
        s_lshr_b32 s13, s5, {xp}
        s_lshl_b32 s13, s13, 5
        s_add_u32 s13, s13, s4
        s_lshl_b32 s13, s13, {21 + xp}
        s_and_b32 s14, s5, {(1 << xp) - 1}
        s_lshl_b32 s14, s14, 17
        s_add_u32 s13, s13, s14
        """)
    else: a("s_lshl_b32 s13, s15, 21")
    a(f"""
    s_lshl_b32 s14, s6, {PB['h']}
    s_add_u32 s13, s13, s14
    s_and_b32 s14, s3, 1
    s_lshl_b32 s14, s14, {PB['w0']}
    s_add_u32 s13, s13, s14
    s_lshr_b32 s14, s3, 1
    s_lshl_b32 s14, s14, {PB['w1']}
    s_add_u32 s13, s13, s14
    s_mov_b32 s12, s13
    s_lshl_b32 s14, s3, 15
    s_waitcnt lgkmcnt(0)
    s_mov_b32 s0, 0
    """)
    if diag2: stamp(1)
    srd(8, P_K, 0x10000000)
    st = {"issued": 0, "landed": 0}
    PT_ = P + PL
    assert P % 4 == 0 and PL <= 32
    def ldsoff(n): return ((n - P + 16) % 32) * 1024
    def slot(n):
        if n < P: return RING + 4 * n
        if n < PT_: return RING + 4 * (16 + n - P)
        return RING + 4 * ((n - PT_) % 16)
    def issue(n):
        if P <= n < PT_:
            if n & 3 == 0: a(f"s_add_u32 m0, s14, {ldsoff(n)}")
            a(f"buffer_load_dwordx4 v1, s[8:11], s12 offen offset:{(n&3)*1024} nt lds")
        else:
            r = slot(n)
            a(f"buffer_load_dwordx4 v[{r}:{r+3}], v1, s[8:11], s12 offen offset:{(n&3)*1024} nt")
        if n & 3 == 3: a(f"s_add_u32 s12, s12, {(goff((n >> 2) + 1) - goff(n >> 2)) & 0xffffffff}")
        if xb is not None and n & 15 == 15:
            a(f"s_add_u32 s67, s67, 1\ns_and_b32 s68, s67, 7\ns_cselect_b32 s68, 0, {((1 << (21 + xb)) - (1 << 21))}\ns_add_u32 s12, s12, s68")
        st["issued"] = n + 1
    def throttle(d=None):
        d = d or D
        a(f"s_waitcnt vmcnt({d-1})")
        st["landed"] = max(st["landed"], st["issued"] - (d - 1))
    def ensure(n):
        if n >= st["landed"]:
            k = st["issued"] - 1 - n
            a(f"s_waitcnt vmcnt({k})"); st["landed"] = n + 1
    for n in range(PT_):
        if n == P + 16: wait_flags("L_wqd", F_WQD, PT, 0)
        dd_ = D0 if (D0 and n < N0) else DP
        if n >= dd_: throttle(dd_)
        if diag2 and n == dd_: stamp(2)
        if diag2 and n == 2*dd_: stamp(3)
        if diag2 and n == 20: stamp(5)
        issue(n)
        if n == max(DP, D0 or 0) - 1:
            srd(48, P_WS, WS_SIZE)
            a(f"""
            s_mov_b32 s60, 0xaaaaaaaa
            s_mov_b32 s61, 0xaaaaaaaa
            s_mov_b32 s62, 0xcccccccc
            s_mov_b32 s63, 0xcccccccc
            v_and_b32 v{T0}, 15, v0
            v_and_b32 v{T1}, 1, v0
            v_lshlrev_b32 v{T1}, 4, v{T1}
            v_mov_b32 v{PT}, 0xffff
            v_lshlrev_b32 v{T1}, v{T1}, v{PT}
            v_lshrrev_b32 v{PT}, 1, v{T0}
            """)
            for t in range(4):
                a(f"v_cmp_eq_u32 vcc, {t}, v{PT}\nv_cndmask_b32 v{MK+t}, 0, v{T1}, vcc")
            for t in range(4): a(f"v_mov_b32 v{ACC+t}, 0")
            a(f"v_lshlrev_b32 v{T0}, 4, v{T0}\nv_add_u32 v{T0}, {L_Q}, v{T0}")
        if n == nb0: a("s_barrier")
        if n == gm: set_flag(F_G1, "s3", PT, PT+1)
        if n == gq: set_flag(F_G2, "s3", PT, PT+1)
    if not diag2: stamp(1)
    a("s_barrier")
    if not diag2: stamp(2)
    a(f"ds_read_b128 v[{Q}:{Q+3}], v{T0}\nv_add_u32 v{T0}, s14, v1\ns_waitcnt lgkmcnt(0)")
    def kdots(n):
        r = slot(n); p = PT + n % 16
        a(f"v_dot2_f32_bf16 v{p}, v{r}, v{Q}, 0")
        for i in range(1, 4): a(f"v_dot2_f32_bf16 v{p}, v{r+i}, v{Q+i}, v{p}")
    def kreduce(dst):
        for j in range(8): a(f"v_add_f32_dpp v{XX+j}, v{PT+j}, v{PT+j} row_ror:8 row_mask:0xf bank_mask:0x3")
        for j in range(8): a(f"v_add_f32_dpp v{XX+j}, v{PT+8+j}, v{PT+8+j} row_ror:8 row_mask:0xf bank_mask:0xc")
        for j in range(4): a(f"v_add_f32_dpp v{YY+j}, v{XX+j}, v{XX+j} row_half_mirror row_mask:0xf bank_mask:0x5")
        for j in range(4): a(f"v_add_f32_dpp v{YY+j}, v{XX+4+j}, v{XX+4+j} row_half_mirror row_mask:0xf bank_mask:0xa")
        for j in range(2):
            a(f"v_cndmask_b32 v{XX+2*j}, v{YY+j+2}, v{YY+j}, s[62:63]")
            a(f"v_cndmask_b32 v{XX+2*j+1}, v{YY+j}, v{YY+j+2}, s[62:63]")
        for j in range(2):
            a(f"v_add_f32_dpp v{XX+4+j}, v{XX+2*j}, v{XX+2*j+1} quad_perm:[2,3,0,1] {FULL}")
        a(f"v_cndmask_b32 v{XX}, v{XX+5}, v{XX+4}, s[60:61]")
        a(f"v_cndmask_b32 v{XX+1}, v{XX+4}, v{XX+5}, s[60:61]")
        a(f"v_add_f32_dpp v{XX+2}, v{XX}, v{XX+1} quad_perm:[1,0,3,2] {FULL}")
        if noround < 1: bf16r(XX+2, XX+2)
        a(f"v_mul_f32 v{XX+2}, {SCALE}, v{XX+2}")
        if noround < 2: bf16r(dst, XX+2)
        else: a(f"v_mov_b32 v{dst}, v{XX+2}")
    tgt = -(-(PT_ + 16 - A + 4) // 16) * 16
    NPEEL = tgt // 16
    KL = 16 - NPEEL
    cons = {"n": 0}
    def consume_k_upto(m):
        while cons["n"] < m:
            n = cons["n"]
            if n == P:
                a("s_waitcnt lgkmcnt(0)")
                set_flag(F_WF, "s3", T0, T1)
            ensure(n); kdots(n); cons["n"] += 1
            m2 = n - 16 + P
            if n >= 16 and P <= m2 < PT_:
                ensure(m2)
                r = slot(m2)
                a(f"ds_read_b128 v[{r}:{r+3}], v{T0} offset:{ldsoff(m2)}")
            if n % 16 == 15: kreduce(SC + n // 16 + KL)
    nsteps = tgt + A - PT_
    for s in range(nsteps):
        n = PT_ + s
        prev = s if s < 16 else n - 16
        if s <= 16: want = 1 + -(-PT_ * s // 16)
        else: want = PT_ + 1 + -(-(tgt - PT_ - 1) * (s - 16) // (nsteps - 16))
        want = min(want, max(st["landed"], PT_))
        consume_k_upto(min(max(want, prev + 1), tgt))
        throttle(); issue(n)
    a("s_memrealtime s[52:53]")
    consume_k_upto(tgt)
    FA, FAD, TTA, TTV = 128, 132, 133, 134
    LV = [x[0] for x in levels]
    def ln_(dd): return str(dd).replace(".", "p")
    def dstep(dd, j):
        import math
        return int(math.floor((j + 1) * dd) - math.floor(j * dd))
    a(f"""
    s_mov_b32 s14, 0
    s_mov_b32 s56, 0
    s_mov_b32 s57, 0
    s_mov_b32 s58, 0
    s_mov_b32 s59, 0
    s_mov_b32 s68, {100000 if nojT else J}
    s_and_b32 s69, s2, 7
    s_cselect_b32 s69, {J}, s68
    s_cselect_b32 s71, 0, {tsh}
    s_lshl_b32 s47, s3, 4
    s_add_u32 s47, s47, {L_FL+F_FAC}
    v_mov_b32 v{FAD}, s47
    s_lshl_b32 s47, s3, 2
    s_add_u32 s47, s47, {L_FL+F_TT}
    v_mov_b32 v{TTA}, s47
    v_mov_b32 v{FA+3}, 0
    """)
    def record():
        a(f"""
        s_waitcnt lgkmcnt(0)
        s_or_b32 s53, s52, 1
        v_mov_b32 v{TTV}, s53
        ds_write_b32 v{TTA}, v{TTV}
        v_add_u32 v{TTA}, 16, v{TTA}
        """)
    def dispatch(pre):
        a(f"""
        v_readfirstlane_b32 s55, v{FA+3}
        v_readfirstlane_b32 s54, v{FA+2}
        s_cmp_eq_u32 s55, 0
        s_cbranch_scc1 {pre}{ln_(D)}
        s_mul_i32 s55, s55, s56
        s_lshr_b32 s55, s55, 4
        s_sub_u32 s52, s52, s54
        s_sub_u32 s52, s52, s55
        """)
        if J:
            a(f"""
            s_sub_u32 s55, s52, s57
            s_mov_b32 s57, s52
            s_cmp_gt_i32 s55, s69
            s_cselect_b32 s55, s55, 0
            s_add_u32 s59, s59, s55
            s_cmp_eq_u32 s54, s58
            s_cselect_b32 s59, s59, 0
            s_mov_b32 s58, s54
            s_sub_u32 s52, s52, s59
            """)
        if tsh: a("s_lshl_b32 s52, s52, s71")
        if wsh: a(f"s_cmp_lt_u32 s56, {psw}\ns_cselect_b32 s55, {wsh}, 0\ns_ashr_i32 s52, s52, s55")
        for dd, th in levels:
            if th is None: a(f"s_branch {pre}{ln_(dd)}")
            else: a(f"s_cmp_lt_i32 s52, {th}\ns_cbranch_scc1 {pre}{ln_(dd)}")
    a("; ---- K loop: record progress, choose the prefetch depth, run one 16-tile body")
    a("L_kdisp:")
    record()
    a(f"s_cmp_ge_u32 s14, {KL}\ns_cbranch_scc1 L_kdone")
    if kctl: dispatch("L_k")
    for dd in (LV if kctl else [D]):
        assert dd <= A
        a(f"L_k{ln_(dd)}:")
        for j in range(16):
            n = tgt + j
            if j == fa_at: a(f"ds_read_b128 v[{FA}:{FA+3}], v{FAD}")
            a(f"s_waitcnt vmcnt({dstep(dd, j)-1})")
            if j == 16 - A:
                a(f"s_cmp_eq_u32 s14, {KL-1}\ns_cselect_b32 s8, s{P_V}, s8\ns_cselect_b32 s9, s{P_V+1}, s9\ns_cselect_b32 s12, s13, s12")
            issue(n + A)
            if j == 15: a("s_memrealtime s[52:53]")
            kdots(n)
            if j == 7:
                for i in range(15): a(f"v_mov_b32 v{SC+i}, v{SC+i+1}")
        kreduce(SC + 15)
        a("s_add_u32 s14, s14, 1\ns_add_u32 s56, s56, 4\ns_branch L_kdisp")
    a("L_kdone:")
    if not diag2: stamp(3)
    ex = {"n": 256 + A}
    def extra():
        if ex["n"] < 256 + A + E:
            a(f"s_waitcnt vmcnt({D-1})"); issue(ex["n"]); ex["n"] += 1
    extra()
    M, Ls = PT, PT + 1
    a(f"v_max3_f32 v{M}, v{SC}, v{SC+1}, v{SC+2}")
    for i in range(3, 15, 2): a(f"v_max3_f32 v{M}, v{M}, v{SC+i}, v{SC+i+1}")
    a(f"v_max_f32 v{M}, v{M}, v{SC+15}")
    allreduce("v_max_f32", [M], [T0])
    a(f"v_mul_f32 v{T1}, {LOG2E}, v{M}")
    extra()
    for i in range(16): a(f"v_fma_f32 v{SC+i}, v{SC+i}, {LOG2E}, -v{T1}")
    for i in range(16): a(f"v_exp_f32 v{SC+i}, v{SC+i}")
    extra()
    a(f"v_add_f32 v{Ls}, v{SC}, v{SC+1}\nv_add_f32 v{Ls+1}, v{SC+2}, v{SC+3}")
    for i in range(4, 16, 2): a(f"v_add_f32 v{Ls}, v{Ls}, v{SC+i}\nv_add_f32 v{Ls+1}, v{Ls+1}, v{SC+i+1}")
    a(f"v_add_f32 v{Ls}, v{Ls}, v{Ls+1}")
    for i in range(16): a(f"v_cvt_pk_bf16_f32 v{SC+i}, v{SC+i}, v{SC+i}")
    extra()
    allreduce("v_add_f32", [Ls], [T0])
    a(f"ds_write_b64 v{FAD}, v[{M}:{Ls}] offset:{F_ST-F_FAC}")
    set_flag(F_KD, "s3", PT+5, PT+6)
    while ex["n"] < 256 + A + E: extra()
    a("s_memrealtime s[52:53]")
    AV = A + E
    assert AV <= 15
    a(f"""
    v_lshrrev_b32 v{PT}, 4, v0
    v_lshlrev_b32 v{PT}, 5, v{PT}
    v_bfe_u32 v{PT+1}, v0, 1, 1
    v_lshl_add_u32 v{PT}, v{PT+1}, 7, v{PT}
    v_bfe_u32 v{PT+1}, v0, 2, 1
    v_lshl_add_u32 v{PT}, v{PT+1}, 2, v{PT}
    v_and_b32 v{PT+1}, 1, v0
    v_lshl_add_u32 v{PT}, v{PT+1}, 1, v{PT}
    s_mul_i32 s46, s3, {OP_STRIDE}
    s_add_u32 s46, s46, {L_OP}
    v_add_u32 v{PT}, s46, v{PT}
    s_mov_b32 s14, 0
    s_add_u32 s56, s56, {E//4}
    s_waitcnt lgkmcnt(0)
    """)
    def vbody(dd, last, timed):
        assert dd <= AV
        for j in range(16):
            n = 256 + j
            if j == fa_at: a(f"ds_read_b128 v[{FA}:{FA+3}], v{FAD}")
            for t in range(4): a(f"v_and_b32_dpp v{BB+t}, v{SC}, v{MK+t} row_newbcast:{j} {FULL}")
            a(f"s_waitcnt vmcnt({dstep(dd, j)-1})")
            if j == 16 - AV and last:
                a("s_cmp_eq_u32 s14, 15\ns_cselect_b32 s10, 0, s10")
            issue(n + AV)
            r = slot(n)
            if j == 15 and timed: a("s_memrealtime s[52:53]")
            a(f"v_mfma_f32_16x16x32_bf16 v[{ACC}:{ACC+3}], v[{r}:{r+3}], v[{BB}:{BB+3}], v[{ACC}:{ACC+3}]")
        if lastctl and not fin: a("s_cmp_eq_u32 s14, 15\ns_cbranch_scc1 L_sepi")
        for i in range(15): a(f"v_mov_b32 v{SC+i}, v{SC+i+1}")
        a("s_add_u32 s14, s14, 1\ns_add_u32 s56, s56, 4")
    assert NE >= 1
    a("s_branch L_vd1")
    a("; ---- V loop")
    a("L_vdisp:")
    if lastctl:
        record()
    else:
        record()
        a(f"s_cmp_ge_u32 s14, {16-NE}\ns_cbranch_scc1 L_vlast")
    if fin: a("s_cmp_eq_u32 s14, 15\ns_cbranch_scc1 L_vfin")
    if endat < 16: a(f"s_cmp_ge_u32 s14, {endat}\ns_cbranch_scc1 L_v{ln_(endD)}")
    if endbias: a(f"s_cmp_ge_u32 s14, 14\ns_cselect_b32 s55, {endbias}, 0\ns_add_u32 s52, s52, s55\ns_add_u32 s57, s57, s55")
    a("L_vd1:")
    dispatch("L_v")
    for dd in LV:
        a(f"L_v{ln_(dd)}:")
        vbody(dd, lastctl and not fin, True)
        a("s_branch L_vdisp")
    if fin:
        a("L_vfin:")
        a(f"ds_read_b128 v[{FA}:{FA+3}], v{FAD}")
        st["issued"] = 496 + AV; st["landed"] = 496 + AV - max(int(x + 0.999) for x in LV)
        def vcons(n):
            j = n - 496
            bb = BB if j & 1 else XX
            for t in range(4): a(f"v_and_b32_dpp v{bb+t}, v{SC}, v{MK+t} row_newbcast:{j} {FULL}")
            ensure(n)
            r = slot(n)
            a(f"v_mfma_f32_16x16x32_bf16 v[{ACC}:{ACC+3}], v[{r}:{r+3}], v[{bb}:{bb+3}], v[{ACC}:{ACC+3}]")
        c_ = 496
        for n in range(496 + AV, 512):
            throttle(fin); issue(n)
            for _ in range(2):
                if c_ < st["landed"]: vcons(c_); c_ += 1
        a("L_vfin2:")
        while c_ < 512: vcons(c_); c_ += 1
    if not lastctl:
        a("L_vlast:")
        vbody(D2, True, False)
        a("s_cmp_lt_u32 s14, 16\ns_cbranch_scc1 L_vlast")
    a("L_sepi:")
    if not fin: a("s_nop 7")
    stamp(4)
    a(f"s_waitcnt lgkmcnt(0)\nv_readfirstlane_b32 s46, v{FA+1}\ns_mov_b32 s70, 0\ns_or_b32 s46, s46, s0\ns_cmp_lg_u32 s46, 0\ns_cbranch_scc0 L_facspin")
    a("L_facok:")
    for t in range(4): a(f"v_mul_f32 v{ACC+t}, v{ACC+t}, v{FA}")
    a(f"v_cvt_pk_bf16_f32 v{ACC}, v{ACC}, v{ACC+1}\nv_cvt_pk_bf16_f32 v{ACC+2}, v{ACC+2}, v{ACC+3}")
    a(f"""
    s_mov_b32 exec_lo, 0x00ff00ff
    s_mov_b32 exec_hi, 0x00ff00ff
    ds_write_b16 v{PT}, v{ACC}
    ds_write_b16_d16_hi v{PT}, v{ACC} offset:8
    ds_write_b16 v{PT}, v{ACC+2} offset:16
    ds_write_b16_d16_hi v{PT}, v{ACC+2} offset:24
    s_waitcnt lgkmcnt(0)
    """)
    if dry: a("s_cmp_eq_u32 s0, 1\ns_cbranch_scc1 L_tail0")
    a("s_barrier")
    if not diag2: stamp(5)
    dump_stamps(6)
    a("s_endpgm")
    a("L_facspin:")
    spin_check()
    a(f"ds_read_b128 v[{FA}:{FA+3}], v{FAD}\ns_waitcnt lgkmcnt(0)\nv_readfirstlane_b32 s46, v{FA+1}\ns_cmp_eq_u32 s46, 1\ns_cbranch_scc0 L_facspin\ns_branch L_facok")

    a("L_helper:")
    TRB, DA, DB, DN, TA, TB, TC = 2, 4, 5, 6, 7, 8, 9
    a(f"""
    s_memrealtime s[60:61]
    s_sub_u32 s7, s3, 4
    """)
    def lane_consts():
        a(f"""
        v_lshrrev_b32 v{TA}, 4, v0
        v_bfe_u32 v{TB}, v0, 2, 2
        v_and_b32 v{TC}, 3, v0
        v_lshl_add_u32 v{TRB}, v{TA}, 3, v{TB}
        v_lshlrev_b32 v{TRB}, 8, v{TRB}
        v_lshl_add_u32 v{TRB}, v{TC}, 3, v{TRB}
        v_and_b32 v{TC}, 1, v{TA}
        v_lshl_add_u32 v{TB}, v{TC}, 2, v{TB}
        v_lshl_add_u32 v{TRB}, v{TB}, 5, v{TRB}
        s_lshl_b32 s12, s7, 15
        v_add_u32 v{TRB}, s12, v{TRB}
        v_and_b32 v{TB}, 15, v0
        v_lshlrev_b32 v{TC}, 1, v{TA}
        v_xor_b32 v{TB}, v{TB}, v{TC}
        v_lshlrev_b32 v{DN}, 4, v{TB}
        v_mov_b32 v{DA}, 0
        """)
    lane_consts()
    a(f"""
    s_bfe_u32 s13, s2, {0x40003 if sym else 0x50003}
    s_lshl_b32 s69, s13, {1 if sym else 0}
    {"s_add_u32 s69, s69, s6" if sym else ""}
    s_and_b32 s12, s2, 7
    s_mov_b32 s68, 4
    s_cmp_lt_u32 s69, {NFFN}
    s_cselect_b32 s68, 5, s68
    s_cmp_eq_u32 s12, 0
    s_cbranch_scc1 L_role
    s_mul_i32 s69, s13, 7
    s_add_u32 s69, s69, s12
    s_sub_u32 s69, s69, 1
    s_lshl_b32 s69, s69, {1 if sym else 0}
    {"s_add_u32 s69, s69, s6" if sym else ""}
    s_mov_b32 s68, 1
    s_cmp_lt_u32 s69, 16
    s_cbranch_scc1 L_role
    s_sub_u32 s69, s69, 16
    s_mov_b32 s68, 3
    s_cmp_lt_u32 s69, 64
    s_cbranch_scc1 L_role
    s_sub_u32 s69, s69, 48
    s_mov_b32 s68, 2
    s_cmp_lt_u32 s69, 48
    s_cbranch_scc1 L_role
    s_mov_b32 s68, 0
    L_role:
    """)
    a(f"""
    s_cmp_lg_u32 s7, 3
    s_cbranch_scc1 L_noinit
    s_and_b32 s12, s68, 1
    s_xor_b32 s12, s12, 1
    v_cmp_eq_u32 vcc, {F_WQD//16}, v0
    v_mov_b32 v17, s12
    v_cndmask_b32 v16, 0, v17, vcc
    v_mov_b32 v17, v16
    v_mov_b32 v18, v16
    v_mov_b32 v19, v16
    v_add_u32 v20, {L_FL}, v1
    ds_write_b128 v20, v[16:19]
    L_noinit:
    s_waitcnt lgkmcnt(0)
    s_mov_b32 s0, 0
    s_mov_b32 s71, 0
    """)
    srd(48, P_WS, WS_SIZE)
    def dma_seq(nins, stride, soff, ldsbase, infl, hooks, pol, sel, rot):
        if rot:
            a(rot)
            a(f"s_mov_b32 s59, {ldsbase}")
        for i in range(nins):
            if rot:
                if i: a(f"s_add_u32 s58, s58, 1\ns_and_b32 s58, s58, {nins-1}")
                a(f"s_lshl_b32 s57, s58, 10\ns_add_u32 m0, s59, s57\ns_mul_i32 s57, s58, {stride}\ns_add_u32 s57, s57, {soff}")
                so = "s57"
            else:
                a(f"s_mov_b32 m0, {ldsbase}" if i == 0 else "s_add_u32 m0, m0, 0x400")
                if i: a(f"s_add_u32 {soff}, {soff}, {stride}")
                so = soff
            a(f"buffer_load_dwordx4 v{DB if sel(i) else DA}, s[8:11], {so} offen {pol} lds")
            if i in hooks: hooks[i]()
            if i >= infl - 1: a(f"s_waitcnt vmcnt({infl-1})")
    def rot_code(src, mul, shr, gran, nins):
        return f"s_mul_i32 s58, {src}, {mul}\ns_lshr_b32 s58, s58, {shr}\ns_lshl_b32 s58, s58, {gran}\ns_and_b32 s58, s58, {nins-1}"
    def dma_wide(nins, rs_log2, soff, infl, hooks={}, pol='nt', key="s69"):
        a(f"v_lshrrev_b32 v{TA}, 4, v0\nv_lshl_add_u32 v{DA}, v{TA}, {rs_log2}, v{DN}\nv_xor_b32 v{DB}, 0x80, v{DA}")
        a("s_lshl_b32 s14, s7, 15")
        dma_seq(nins, 4 << rs_log2, soff, "s14", infl, hooks, pol, lambda i: (i >> 1) & 1, rot_code(key, rotw[0], rotw[1], 2, nins) if rotw else None)
    def dma_mid(soff, ldsbase, infl, rs, hooks={}, n=16):
        a(f"""
        v_lshrrev_b32 v{DA}, 3, v0
        v_mul_u32_u24 v{DA}, {rs}, v{DA}
        v_bfe_u32 v{DB}, v0, 4, 1
        v_lshlrev_b32 v{DB}, 1, v{DB}
        v_and_b32 v{TA}, 7, v0
        v_xor_b32 v{DB}, v{DB}, v{TA}
        v_lshl_add_u32 v{DA}, v{DB}, 4, v{DA}
        v_xor_b32 v{DB}, 64, v{DA}
        """)
        dma_seq(n, 8*rs, soff, ldsbase, infl, hooks, "nt", lambda i: i & 1, rot_code("s69", rotm[0], rotm[1], 1, 16) if rotm else None)
    def sprefetch(lbl, ptr, off, nrows, rs, rowbytes):
        per = rowbytes // sgran
        rows = max(1, 14 // per) if per <= 14 else 1
        while nrows % rows: rows -= 1
        a(f"s_mov_b32 s56, {off}\ns_mov_b32 s57, 0\n{lbl}:")
        for r_ in range(rows):
            for c_ in range(per):
                a(f"s_add_u32 s59, s56, {r_*rs + c_*sgran}\ns_load_dword s58, s[{ptr}:{ptr+1}], s59")
        a(f"s_waitcnt lgkmcnt(0)\ns_add_u32 s56, s56, {rows*rs}\ns_add_u32 s57, s57, {rows}\ns_cmp_lt_u32 s57, {nrows}\ns_cbranch_scc1 {lbl}")
    def mid_bases():
        a(f"""
        v_lshrrev_b32 v{TB}, 4, v0
        v_bfe_u32 v{TC}, v0, 2, 2
        v_lshl_add_u32 v{TA}, v{TB}, 3, v{TC}
        v_lshlrev_b32 v{TA}, 7, v{TA}
        v_and_b32 v{TB}, 1, v{TB}
        v_lshrrev_b32 v{TC}, 1, v{TC}
        v_lshl_add_u32 v{TB}, v{TB}, 1, v{TC}
        v_xor_b32 v{TB}, s7, v{TB}
        v_lshl_add_u32 v{TA}, v{TB}, 5, v{TA}
        v_and_b32 v{TB}, 3, v0
        v_lshl_add_u32 v{TA}, v{TB}, 3, v{TA}
        v_add_u32 v{TB}, 0x10000, v{TA}
        """)
    def tr_mid(dst, off):
        for s in range(16):
            r = dst + 4 * s
            ar = TA if s < 8 else TB
            o = off + ((s >> 2) & 1) * 0x8000 + (s & 3) * 4096
            a(f"ds_read_b64_tr_b16 v[{r}:{r+1}], v{ar} offset:{o}")
            a(f"ds_read_b64_tr_b16 v[{r+2}:{r+3}], v{ar} offset:{o+512}")
        a("s_waitcnt lgkmcnt(0)")
    def tr_wide(dst, nk):
        for t in range(8):
            ar = TA if t & 1 else TB
            a(f"v_xor_b32 v{ar}, {t << 5}, v{TRB}")
            for s in range(nk):
                r = dst + (t * nk + s) * 4
                a(f"ds_read_b64_tr_b16 v[{r}:{r+1}], v{ar} offset:{s*8192}")
                a(f"ds_read_b64_tr_b16 v[{r+2}:{r+3}], v{ar} offset:{s*8192+1024}")
        a("s_waitcnt lgkmcnt(0)")
    def act_addr(dst, rowsel, tmp):
        a(f"v_and_b32 v{dst}, 3, v0" if rowsel == "lo" else f"v_bfe_u32 v{dst}, v0, 2, 2")
        a(f"v_mul_u32_u24 v{dst}, {ACT_STRIDE}, v{dst}\nv_lshrrev_b32 v{tmp}, 4, v0\nv_lshl_add_u32 v{dst}, v{tmp}, 4, v{dst}\nv_add_u32 v{dst}, {L_ACT}, v{dst}")
    def poll(lbl, loads, tags, sleep=0, pre="", post=""):
        spin_begin()
        if sleep: a(f"s_branch {lbl}_go")
        a(f"{lbl}:")
        spin_check()
        if sleep: a(f"s_sleep {sleep}\n{lbl}_go:")
        a(pre)
        for l in loads: a(l)
        a(post)
        if not getattr(tags, "waits", False): a("s_waitcnt vmcnt(0)")
        tags()
        a(f"s_cmp_eq_u64 vcc, exec\ns_cbranch_scc0 {lbl}")
    def tags_words(regs):
        def f():
            a(f"v_cmp_eq_u32 vcc, {TAG}, v{regs[0]}")
            for r in regs[1:]: a(f"v_cmp_eq_u32 s[56:57], {TAG}, v{r}\ns_and_b64 vcc, vcc, s[56:57]")
        return f
    def tags_xor(regs, t):
        def f():
            a(f"v_xor_b32 v{t}, {TAG}, v{regs[0]}")
            for r in regs[1:]: a(f"v_xor_b32 v{t+1}, {TAG}, v{r}\nv_or_b32 v{t}, v{t}, v{t+1}")
            a(f"v_cmp_eq_u32 vcc, 0, v{t}")
        return f
    def tags_bytes(n, t):
        def f():
            for q in range(n):
                a(f"s_waitcnt vmcnt({n-1-q})")
                for i in range(4*q, 4*q + 4): a(f"v_xor_b32 v{16+i}, s{18+(i&3)}, v{32+i}")
                b_ = 16 + 4*q
                if q == 0: a(f"v_or3_b32 v{t}, v{b_}, v{b_+1}, v{b_+2}\nv_or_b32 v{t}, v{t}, v{b_+3}")
                else: a(f"v_or3_b32 v{t}, v{t}, v{b_}, v{b_+1}\nv_or3_b32 v{t}, v{t}, v{b_+2}, v{b_+3}")
            a(f"v_lshlrev_b32 v{t}, 24, v{t}\nv_cmp_eq_u32 vcc, 0, v{t}")
        f.waits = True
        return f
    def pk(op, d, x, y, mods=""):
        yy = y if isinstance(y, str) else f"v[{y}:{y+1}]"
        a(f"v_pk_{op}_f32 v[{d}:{d+1}], v[{x}:{x+1}], {yy} {mods}")
    NEG = "neg_lo:[0,1] neg_hi:[0,1]"
    def rnd8(x0):
        for k in range(8): bf16r(x0 + k, x0 + k)
    def ln_norm(x0, t0):
        a(f"v_readfirstlane_b32 s46, v{x0}")
        for k in range(4): pk("add", t0+4+2*k, x0+2*k, "s[46:47]", "op_sel_hi:[1,0] " + NEG)
        pk("mul", t0+2, t0+4, t0+4)
        pk("add", t0, t0+4, t0+6)
        a(f"v_pk_fma_f32 v[{t0+2}:{t0+3}], v[{t0+6}:{t0+7}], v[{t0+6}:{t0+7}], v[{t0+2}:{t0+3}]")
        pk("add", t0+4, t0+8, t0+10)
        a(f"v_pk_fma_f32 v[{t0+2}:{t0+3}], v[{t0+8}:{t0+9}], v[{t0+8}:{t0+9}], v[{t0+2}:{t0+3}]")
        pk("add", t0, t0, t0+4)
        a(f"v_pk_fma_f32 v[{t0+2}:{t0+3}], v[{t0+10}:{t0+11}], v[{t0+10}:{t0+11}], v[{t0+2}:{t0+3}]")
        m, q = t0, t0 + 2
        a(f"v_add_f32 v{m}, v{t0}, v{t0+1}\nv_add_f32 v{q}, v{t0+2}, v{t0+3}")
        allreduce("v_add_f32", [m, q], [], rows_only=True)
        for st_ in ("row_bcast:15 row_mask:0xa bank_mask:0xf", "row_bcast:31 row_mask:0xc bank_mask:0xf"):
            for r in (m, q): a(f"v_add_f32_dpp v{r}, v{r}, v{r} {st_}")
        a(f"""
        v_mul_f32 v{m}, 0x3b000000, v{m}
        v_mul_f32 v{q}, 0x3b000000, v{q}
        v_fma_f32 v{q}, -v{m}, v{m}, v{q}
        v_add_f32 v{m}, s46, v{m}
        v_max_f32 v{q}, 0, v{q}
        """)
        bf16r(m, m); bf16r(q, q)
        a(f"v_readlane_b32 s56, v{m}, 63\nv_add_f32 v{q}, 0x3727c5ac, v{q}")
        bf16r(q, q)
        a(f"v_sqrt_f32 v{q}, v{q}")
        for k in range(2): pk("add", x0+2*k, x0+2*k, "s[56:57]", "op_sel_hi:[1,0] " + NEG)
        bf16r(q, q)
        for k in range(2, 4): pk("add", x0+2*k, x0+2*k, "s[56:57]", "op_sel_hi:[1,0] " + NEG)
        a(f"v_rcp_f32 v{q}, v{q}")
        for k in range(3): bf16r(x0 + k, x0 + k)
        a(f"v_readlane_b32 s46, v{q}, 63")
        for k in range(3, 8): bf16r(x0 + k, x0 + k)
        for k in range(4): pk("mul", x0+2*k, x0+2*k, "s[46:47]", "op_sel_hi:[1,0]")
        rnd8(x0)
    def ln_affine(x0, sc8, sh8, t):
        for k in range(4): pk("mul", x0+2*k, x0+2*k, sc8+2*k)
        rnd8(x0)
        for k in range(4): pk("add", x0+2*k, x0+2*k, sh8+2*k)
        for k in range(4): a(f"v_cvt_pk_bf16_f32 v{t+k}, v{x0+2*k}, v{x0+2*k+1}")
    X8, ST, SA8, CA8, BW, DT = 24, 32, 40, 48, 192, 56
    def gemv64(tagn, kind, infl, first):
        isq = kind == "q"
        srd(52, P_X if isq else P_C, 4096)
        a(f"""
        v_lshlrev_b32 v10, 3, v0
        s_lshl_b32 s12, s7, 10
        buffer_load_dwordx2 v[12:13], v10, s[52:55], s12 offen
        buffer_load_dwordx2 v[14:15], v10, s[52:55], s12 offen offset:512
        """)
        rs = 8192 if isq else 6144
        srd(8, P_WQ if isq else P_WM, 0 if ({"q": "q", "A": "A", "a": "a"}[kind] in skip) else 512 * rs)
        if contig: rs = 128
        a(f"s_mul_i32 s13, s7, {128*rs}\ns_lshl_b32 s12, s69, {16 if contig else 7}\ns_add_u32 s13, s13, s12\ns_lshl_b32 s14, s7, 15")
        if kind == "a" and 'a' in spf: sprefetch("L_spa", P_WM, "s13", 128, rs, 128)
        dma_mid("s13", "s14", infl, rs, hooks=({min(infl, 16) - 1: lambda: a(BAR0)} if first else {}))
        a("s_waitcnt vmcnt(16)")
        if kind == "A": stamp(1)
        for k in range(4): unpack(X8 + 2*k, X8 + 2*k + 1, 12 + k)
        a(f"s_mul_i32 s12, s7, {ACT_STRIDE}\ns_add_u32 s12, s12, {L_ACT}\nv_add_u32 v10, s12, v10")
        if isq:
            ln_norm(X8, ST)
        else:
            for k in range(8): a(f"v_mul_f32 v{ST+k}, {LOG2E}, v{X8+k}")
            for k in range(8): a(f"v_exp_f32 v{ST+k}, -v{ST+k}")
            for k in range(8): a(f"v_add_f32 v{ST+k}, 1.0, v{ST+k}")
            for k in range(8): a(f"v_rcp_f32 v{ST+k}, v{ST+k}")
            for k in range(8): a(f"v_mul_f32 v{X8+k}, v{X8+k}, v{ST+k}")
            for k in range(4): a(f"v_cvt_pk_bf16_f32 v{16+k}, v{X8+2*k}, v{X8+2*k+1}")
            a("ds_write_b64 v10, v[16:17]\nds_write_b64 v10, v[18:19] offset:512")
        mid_bases()
        a("s_waitcnt vmcnt(0)")
        set_flag(F_WQ, "s7", 20, 21)
        wait_flags(f"L_wq{tagn}", F_WQ, 16, 0)
        if first: a(MKTAG)
        stamp(4 if isq else 2) if first else None
        tr_mid(BW, 0)
        if first: set_flag(F_WQD, "s7", 16, 17)
        act_addr(TC, "lo", TB)
        a(f"s_lshl_b32 s67, s69, 10\ns_lshl_b32 s12, s7, 8\ns_add_u32 s67, s67, s12\ns_add_u32 s67, s67, {WS_Q if isq else WS_MOD}")
        if isq:
            a(f"""
            v_lshrrev_b32 v{TA}, 2, v0
            v_lshlrev_b32 v{TA}, 8, v{TA}
            v_and_b32 v{TB}, 3, v0
            v_lshl_add_u32 v{TA}, v{TB}, 4, v{TA}
            s_lshl_b32 s12, s7, 6
            s_add_u32 s12, s12, {WS_MOD}
            s_add_u32 s13, s12, 0x1000
            s_add_u32 s14, s12, 0x2000
            s_add_u32 s46, s12, 0x3000
            """)
            if gm: wait_flags("L_g1", F_G1, 16, 4)
            G0 = 128
            poll("L_poll_mod", [f"buffer_load_dwordx4 v[{G0+4*i}:{G0+4*i+3}], v{TA}, s[48:51], {sr} offen sc1" for i, sr in enumerate(["s12", "s13", "s14", "s46"])],
                 tags_xor([G0 + 1 + 2*k for k in range(8)], 16), sleep=slp)
            stamp(5)
            for k in range(4): unpack(SA8 + 2*k, SA8 + 2*k + 1, G0 + 2*k)
            for k in range(4): unpack(CA8 + 2*k, CA8 + 2*k + 1, G0 + 8 + 2*k)
            for k in range(8): a(f"v_add_f32 v{CA8+k}, 1.0, v{CA8+k}")
            rnd8(CA8)
            ln_affine(X8, CA8, SA8, 16)
            a("ds_write_b64 v10, v[16:17]\nds_write_b64 v10, v[18:19] offset:512")
            set_flag(F_H, "s7", 20, 21)
            wait_flags("L_h", F_H, 16, 0)
        for hh in range(2):
            for s in range(8): a(f"ds_read_b128 v[{16+4*s}:{19+4*s}], v{TC} offset:{(8*hh+s)*64}")
            for s in range(8):
                a(f"s_waitcnt lgkmcnt({7-s})")
                k = 8*hh + s
                a(f"v_mfma_f32_16x16x32_bf16 v[{DT}:{DT+3}], v[{BW+4*k}:{BW+4*k+3}], v[{16+4*s}:{19+4*s}], " + ("0" if k == 0 else f"v[{DT}:{DT+3}]"))
        a(f"""
        v_and_b32 v{TC}, 3, v0
        v_lshrrev_b32 v{TA}, 4, v0
        v_lshlrev_b32 v{TA}, 4, v{TA}
        v_lshl_add_u32 v{TA}, v{TC}, 6, v{TA}
        v_mov_b32 v{DT+5}, {TAG}
        v_mov_b32 v{DT+7}, {TAG}
        v_cvt_pk_bf16_f32 v{DT+4}, v{DT}, v{DT+1}
        v_cvt_pk_bf16_f32 v{DT+6}, v{DT+2}, v{DT+3}
        s_mov_b32 exec_lo, 0x000f000f
        s_mov_b32 exec_hi, 0x000f000f
        buffer_store_dwordx4 v[{DT+4}:{DT+7}], v{TA}, s[48:51], s67 offen sc1
        s_mov_b64 exec, -1
        """)
        if first: stamp(13 if isq else 3)

    a("""
    s_cmp_eq_u32 s68, 3
    s_cbranch_scc1 L_qgemv
    s_cmp_eq_u32 s68, 5
    s_cbranch_scc1 L_down
    s_cmp_lg_u32 s68, 1
    s_cbranch_scc1 L_bar0
    """)
    gemv64(1, "A", 64, True)
    a("s_branch L_getq")
    a("L_qgemv:")
    gemv64(2, "q", thrQ, True)
    a("s_branch L_getq")
    a("L_down:")
    srd(8, P_WD, 0 if 'f' in skip else 1792 * 1024)
    a("s_lshl_b32 s13, s69, 16\ns_lshl_b32 s12, s7, 8\ns_add_u32 s13, s13, s12")
    dma_wide(16, 10, "s13", thrD, hooks={min(thrD, 16) - 1: lambda: a(BAR0)})
    a("s_waitcnt vmcnt(0)")
    tr_wide(192, 2)
    a(MKTAG)
    set_flag(F_WQD, "s7", 16, 17)
    a("s_branch L_getq")
    a("L_bar0:")
    if l2warm:
        a(f"""
        s_cmp_lg_u32 s7, 3
        s_cbranch_scc1 L_nowarm
        s_getpc_b64 s[12:13]
        L_pc:
        s_sub_u32 s12, s12, L_pc-{NAME}_kernel
        s_subb_u32 s13, s13, 0
        v_lshlrev_b32 v16, 7, v0
        s_mov_b32 s14, 0
        L_warm:
        v_cmp_gt_u32 vcc, L_end-{NAME}_kernel, v16
        s_and_saveexec_b64 s[46:47], vcc
        s_cbranch_execz L_warmd
        global_load_dword v17, v16, s[12:13]
        v_add_u32 v16, 0x2000, v16
        s_branch L_warm
        L_warmd:
        s_mov_b64 exec, -1
        L_nowarm:
        """)
    a(BAR0)
    a("s_waitcnt lgkmcnt(0)")
    a(MKTAG)
    a("L_getq:")
    def dryrun(n, cond):
        a(f"""
        s_cmp_lg_u32 s7, 1
        s_cbranch_scc1 L_nodry{n}
        {cond} s68, 4
        s_cbranch_scc1 L_nodry{n}
        s_waitcnt vmcnt(0)
        s_mov_b32 s0, 1
        s_mov_b32 s1, {TAG}
        s_mov_b32 {TAG}, 0
        s_mov_b32 s50, 0
        s_mov_b32 s44, 1
        v_mov_b32 v{PT}, {L_OP}
        s_branch {'L_vfin2' if fin else 'L_facok'}
        L_afterdry{n}:
        s_mov_b32 s0, 0
        s_mov_b32 {TAG}, s1
        s_mov_b32 s50, {WS_SIZE}
        s_mov_b64 exec, -1
        s_waitcnt vmcnt(0) lgkmcnt(0)
        """)
        if n == 1: lane_consts()
        a(f"L_nodry{n}:")
    if dry: dryrun(1, "s_cmp_lt_u32")
    a("s_cmp_lg_u32 s7, 2\ns_cbranch_scc1 L_bar1")
    a(f"""
    v_bfe_u32 v{TA}, v0, 2, 3
    v_lshlrev_b32 v{TA}, 8, v{TA}
    v_and_b32 v{TB}, 3, v0
    v_lshl_add_u32 v{TA}, v{TB}, 4, v{TA}
    s_lshl_b32 s12, s4, 11
    s_lshl_b32 s13, s5, 6
    s_add_u32 s12, s12, s13
    s_add_u32 s12, s12, {WS_Q}
    v_and_b32 v{TB}, 31, v0
    v_lshlrev_b32 v{TB}, 3, v{TB}
    v_add_u32 v{TB}, {L_Q}, v{TB}
    """)
    if gq: wait_flags("L_g2", F_G2, 16, 4)
    poll("L_poll_q", [f"buffer_load_dwordx4 v[16:19], v{TA}, s[48:51], s12 offen sc1"], tags_words([17, 19]), sleep=slp)
    a(f"v_mov_b32 v17, v18\nds_write_b64 v{TB}, v[16:17]\ns_waitcnt lgkmcnt(0)")
    a("L_bar1:")
    a("s_barrier")
    if dbg: a("s_memrealtime s[98:99]")
    stamp(6)
    a(f"""
    s_getreg_b32 s62, hwreg(HW_REG_XCC_ID)
    s_cmp_lt_u32 s68, 4
    s_cbranch_scc1 L_noxcc
    s_cmp_lg_u32 s7, 1
    s_cbranch_scc1 L_noxcc
    v_mov_b32 v16, s62
    v_mov_b32 v17, {TAG}
    s_lshl_b32 s12, s69, 7
    s_add_u32 s12, s12, {WS_XCC}
    s_mov_b64 exec, 1
    buffer_store_dwordx2 v[16:17], v1, s[48:51], s12 offen sc1
    s_mov_b64 exec, -1
    L_noxcc:
    """)
    if tlb:
        a("s_cmp_lg_u32 s7, 3\ns_cbranch_scc1 L_notlb\ns_mov_b64 exec, 1")
        srd(8, P_V, 0x10000000)
        a("s_lshl_b32 s12, s15, 21\ns_lshl_b32 s13, s6, 20\ns_add_u32 s12, s12, s13\nbuffer_load_dword v16, v1, s[8:11], s12 offen nt")
        srd(8, P_OUT, 4096)
        a("buffer_load_dword v17, v1, s[8:11], 0 offen nt")
        a(f"s_mov_b32 s12, {WS_TM}\nbuffer_load_dword v18, v1, s[48:51], s12 offen offset:1024 nt")
        a("s_mov_b64 exec, -1\ns_waitcnt vmcnt(0)\nL_notlb:")
    def wait_row(lbl, g):
        spin_begin()
        a(f"v_mov_b32 v20, {L_FL+F_TT+16*g}")
        a(f"s_branch {lbl}_go\n{lbl}:")
        spin_check()
        a(f"""
        s_sleep 8
        {lbl}_go:
        ds_read_b128 v[16:19], v20
        s_waitcnt lgkmcnt(0)
        v_and_b32 v21, v16, v17
        v_and_b32 v22, v18, v19
        v_and_b32 v21, v21, v22
        v_readfirstlane_b32 s47, v21
        s_bitcmp1_b32 s47, 0
        s_cbranch_scc0 {lbl}
        """)
    def tm_publish(m, g):
        a(f"""
        s_lshr_b32 s12, s2, 3
        s_xor_b32 s12, s12, s2
        s_and_b32 s12, s12, 1
        {"s_xor_b32 s12, s12, s6" if sym else "s_xor_b32 s14, s6, 1"}
        {"" if sym else "s_or_b32 s12, s12, s14"}
        s_or_b32 s12, s12, s68
        s_or_b32 s12, s12, s7
        s_cbranch_scc1 L_tmp{m}
        """)
        wait_row(f"L_tr{m}", g)
        for k in range(4): a(f"v_subrev_u32 v{16+k}, s60, v{16+k}")
        a(f"""
        v_add3_u32 v16, v16, v17, v18
        v_add_u32 v16, v16, v19
        v_lshrrev_b32 v16, 2, v16
        v_add_u32 v16, s60, v16
        v_mov_b32 v17, {TAG}
        v_mov_b32 v18, s60
        v_mov_b32 v19, {TAG}
        s_bfe_u32 s12, s2, {0x30003 if sym else 0x30004}
        s_lshl_b32 s12, s12, 3
        s_and_b32 s14, s2, 7
        s_add_u32 s12, s12, s14
        s_mul_i32 s12, s12, {TMSTR}
        s_add_u32 s12, s12, {WS_TM + 128*m}
        s_mov_b64 exec, 1
        buffer_store_dwordx4 v[16:19], v1, s[48:51], s12 offen sc1
        s_mov_b64 exec, -1
        L_tmp{m}:
        """)
    import struct
    def fhex(v): return hex(struct.unpack("<I", struct.pack("<f", v))[0])
    def sfetch(lbl, soff_reg, imm):
        a(f"""
        s_load_dwordx4 s[56:59], s[42:43], {soff_reg}
        s_waitcnt lgkmcnt(0)
        v_mov_b32 v16, s56
        v_mov_b32 v18, s58
        s_xor_b32 s57, s57, {TAG}
        s_xor_b32 s59, s59, {TAG}
        s_or_b32 s57, s57, s59
        s_cbranch_scc0 {lbl}_ok
        v_mov_b32 v20, 0
        """)
        poll(lbl, [f"buffer_load_dwordx4 v[16:19], v20, s[48:51], {soff_reg} offen sc1"], tags_words([17, 19]), sleep=32)
        a(f"{lbl}_ok:")
    def line_write(m):
        a(f"""
        s_cmp_ge_u32 s68, 4
        s_cselect_b32 s12, {early if 1 < m < 9 else 0}, 0
        v_subrev_u32 v16, s12, v16
        v_and_b32 v20, 3, v0
        v_lshlrev_b32 v20, 4, v20
        v_add_u32 v20, {L_FL+F_FAC+8}, v20
        ds_write_b64 v20, v[16:17]
        """)
    def tm_follow(m, gate):
        a(f"s_cmp_lg_u32 s7, 0\ns_cbranch_scc1 L_tmf{m}\ns_cmp_eq_u32 s2, {AGG}\ns_cbranch_scc1 L_tmf{m}")
        wait_row(f"L_tf{m}", gate + flag_)
        a(f"s_mov_b32 s12, {WS_LINE + 1280*m}")
        sfetch(f"L_poll_ln{m}", "s12", 0)
        a("v_mov_b32 v17, v18")
        line_write(m)
        a(f"L_tmf{m}:")
    def tm_gather(m, gate, p_m, mult, row, follow=True):
        a(f"s_cmp_lg_u32 s7, 0\ns_cbranch_scc1 L_tmg{m}")
        if agg: a(f"s_cmp_lg_u32 s2, {AGG}\ns_cbranch_scc1 L_tmg{m}")
        wait_row(f"L_tg{m}", row + alag if agg else gate)
        a(f"""
        v_and_b32 v21, 7, v0
        v_lshrrev_b32 v20, 3, v0
        v_max_u32 v20, 1, v20
        v_cmp_eq_u32 vcc, 0, v21
        v_cndmask_b32 v20, 0, v20, vcc
        v_add_u32 v20, v20, v0
        v_mul_u32_u24 v20, {TMSTR}, v20
        s_mov_b32 s12, {WS_TM + 128*m}
        """)
        poll(f"L_poll_tm{m}", ["buffer_load_dwordx4 v[16:19], v20, s[48:51], s12 offen sc1"], tags_words([17, 19]), sleep=aslp if agg else 48)
        a("v_sub_u32 v18, v16, v18\nv_subrev_u32 v16, s60, v16")
        allreduce("v_add_u32", [16, 18], [17, 19])
        a("v_ashrrev_i32 v16, 6, v16\nv_lshrrev_b32 v18, 6, v18")
        if m > 1: a("v_subrev_u32 v18, s61, v16")
        a(f"""
        v_readfirstlane_b32 s61, v16
        {f"v_readfirstlane_b32 s{90+m}, v16" if dbg else ""}
        v_cvt_f32_u32 v18, v18
        v_mul_f32 v18, {fhex(mult)}, v18
        """)
        if m > 1 and up:
            a(f"""
            s_mul_i32 s12, s63, {p_m}
            s_lshr_b32 s12, s12, 4
            s_add_u32 s12, s12, s1
            """)
            if ek:
                a(f"""
                s_sub_u32 s12, s12, {e0}
                v_subrev_u32 v19, s12, v16
                v_cvt_f32_i32 v19, v19
                v_mul_f32 v19, {fhex(ek)}, v19
                v_add_f32 v19, 1.0, v19
                v_min_f32 v19, 1.0, v19
                v_max_f32 v19, {fhex(boost)}, v19
                v_mul_f32 v18, v18, v19
                v_cvt_f32_u32 v17, s63
                """)
            else:
                a(f"""
                s_sub_u32 s12, s12, {eth}
                v_mul_f32 v19, {fhex(boost)}, v18
                v_cmp_gt_i32 vcc, s12, v16
                v_cvt_f32_u32 v17, s63
                v_cndmask_b32 v18, v18, v19, vcc
                """)
            a(f"""
            v_mul_f32 v17, {fhex(up2 if m == 2 else (upk if (m == 9 and upk) else up))}, v17
            v_min_f32 v18, v18, v17
            """)
        a(f"""
        v_cvt_u32_f32 v17, v18
        v_mul_u32_u24 v18, {p_m}, v17
        v_lshrrev_b32 v18, 4, v18
        v_sub_u32 v16, v16, v18
        v_readfirstlane_b32 s63, v17
        v_readfirstlane_b32 s1, v16
        v_add_u32 v16, s60, v16
        """)
        if agg:
            a(f"""
            v_mov_b32 v20, v16
            v_mov_b32 v21, {TAG}
            v_mov_b32 v22, v17
            v_mov_b32 v23, {TAG}
            s_mov_b32 s12, {WS_LINE + 1280*m}
            s_mov_b64 exec, 1
            buffer_store_dwordx4 v[20:23], v1, s[48:51], s12 offen sc1
            s_mov_b64 exec, -1
            """)
        line_write(m)
        a(f"L_tmg{m}:")
        if agg and follow: tm_follow(m, gate)
    if pf:
        for hw_, (ptr, nb, n_, key) in enumerate([(P_WO, 4096*1024, 16, 'w'), (P_WG, 512*3584, 7, 'f'), (P_WU, 512*3584, 7, 'f'), (P_WM, 512*6144, 12, 'a')]):
            if key not in pf: continue
            a(f"s_cmp_lg_u32 s7, {hw_}\ns_cbranch_scc1 L_npf{hw_}")
            srd(8, ptr, nb)
            a(f"s_mul_i32 s12, s2, {n_*1024}")
            for i in range(n_):
                a(f"buffer_load_dwordx4 v[{64+4*i}:{67+4*i}], v1, s[8:11], s12 offen offset:{(i&3)*1024}")
                if i & 3 == 3: a("s_add_u32 s12, s12, 0x1000")
                if i >= pfthr - 1: a(f"s_waitcnt vmcnt({pfthr-1})")
            a(f"s_waitcnt vmcnt(0)\nL_npf{hw_}:")
    if 'w' in spf:
        a("s_lshl_b32 s13, s4, 17\ns_lshr_b32 s12, s2, 5\ns_lshl_b32 s12, s12, 14\ns_add_u32 s13, s13, s12\ns_lshl_b32 s12, s7, 12\ns_add_u32 s13, s13, s12")
        sprefetch("L_spw", P_WO, "s13", 8, 512, 512)
    wait_flags("L_wf", F_WF, 16, 4)
    srd(8, P_WO, 0 if 'w' in skip else 4096 * 1024)
    a("s_lshl_b32 s13, s4, 17\ns_lshl_b32 s12, s7, 8\ns_add_u32 s13, s13, s12")
    if late1:
        dma_wide(32, 10, "s13", thr, hooks={hk: lambda: tm_publish(1, 0)}, pol=wpol, key='s4')
    else:
        dma_wide(32, 10, "s13", thr, hooks=({5: lambda: tm_publish(1, 0), 9 + 6*alag: lambda: tm_gather(1, lagK, 0, 4*f1, 1, False), 5 + 6*(lagK + flag_): lambda: tm_follow(1, lagK)} if agg else {5: lambda: tm_publish(1, 0), 5 + 6*lagK: lambda: tm_gather(1, lagK, 0, 4*f1, 1)}), pol=wpol, key='s4')
    a("s_waitcnt vmcnt(0)")
    tr_wide(64, 4)
    if mk and not late1:
        tm_publish(9, mk)
        tm_gather(9, mk + 1, 4*mk, 4*fk/mk, mk)
    a("s_cmp_lg_u32 s68, 2\ns_cbranch_scc1 L_noA2")
    gemv64(3, "a", thrA, False)
    a("L_noA2:")
    SB, TREG = [10, 11, 12, 13], [4, 5, 6, 14]
    RX, RGA, RGB = 2, 3, 15
    def ffn_cols(dst_tile, dst_sub):
        a(f"""
        v_lshrrev_b32 v{dst_tile}, 4, v0
        v_and_b32 v{dst_sub}, 3, v0
        v_lshl_add_u32 v{dst_tile}, v{dst_tile}, 2, v{dst_sub}
        v_bfe_u32 v{dst_sub}, v0, 2, 2
        """)
    RSF = 128 if contig else 3584
    pieces = list(enumerate(fsplit))
    PN = 32 // len(fsplit)
    def stage_upto(row):
        while pieces and pieces[0][1] < row:
            k, r_ = pieces.pop(0)
            mat, i0 = (k * PN) // 16, (k * PN) % 16
            a(f"s_cmp_lg_u32 s68, 5\ns_cbranch_scc1 L_noffn1{k}")
            wait_row(f"L_fs{k}", r_)
            srd(8, P_WU if mat else P_WG, 0 if 'f' in skip else 512 * 3584)
            a(f"s_lshl_b32 s13, s69, 7\ns_mul_i32 s12, s7, {128*3584}\ns_add_u32 s13, s13, s12\ns_add_u32 s13, s13, {i0*8*3584}\ns_lshl_b32 s14, s7, 15\ns_add_u32 s14, s14, {0x4000*mat + 1024*i0}")
            if 'f' in spf: sprefetch(f"L_spf{k}", P_WU if mat else P_WG, "s13", PN*8, 3584, 128)
            dma_mid("s13", "s14", thrF, 3584, n=PN)
            a(f"L_noffn1{k}:")
    FL = flag_ if agg else 0
    stage_upto(lagK + FL)
    tm_gather(1, lagK, 0, 4*f1, 1)
    stage_upto(mk + 1 + FL)
    tm_publish(9, mk)
    tm_gather(9, mk + 1, 4*mk, 4*fk/mk, mk)
    stage_upto(KL + 1)
    if dry: dryrun(2, "s_cmp_ge_u32")
    stamp(7)
    tm_publish(2, KL)
    a("s_cmp_lg_u32 s7, 0\ns_cbranch_scc1 L_nofac")
    wait_flags("L_kd", F_KD, 16, 16)
    q4 = ("quad_perm:[1,0,3,2]", "quad_perm:[2,3,0,1]")
    a(f"""
    v_and_b32 v{TA}, 3, v0
    v_lshlrev_b32 v{TA}, 4, v{TA}
    v_add_u32 v{TA}, {L_FL}, v{TA}
    ds_read_b64 v[24:25], v{TA} offset:{F_ST}
    s_waitcnt lgkmcnt(0)
    v_mov_b32 v28, v24
    """)
    allreduce("v_max_f32", [28], [], rows_only=True, steps=q4)
    a(f"v_sub_f32 v30, v24, v28\nv_mul_f32 v30, {LOG2E}, v30\nv_exp_f32 v30, v30\nv_mul_f32 v30, v25, v30")
    allreduce("v_add_f32", [30], [], rows_only=True, steps=q4)
    a(f"""
    v_mov_b32 v29, {TAG}
    v_mov_b32 v31, {TAG}
    s_lshl_b32 s13, s15, 7
    s_add_u32 s13, s13, {WS_STATS}
    s_lshl_b32 s12, s6, 4
    s_add_u32 s14, s13, s12
    s_xor_b32 s12, s12, 16
    s_add_u32 s13, s13, s12
    s_mov_b64 exec, 1
    buffer_store_dwordx4 v[28:31], v1, s[48:51], s14 offen sc1
    s_mov_b64 exec, -1
    """)
    tm_gather(2, KL + lagV, 4*KL, 4*f2/(KL - mk), KL)
    if agg:
        wait_row("L_stw", KL + 2)
        sfetch("L_poll_st", "s13", 0)
    else:
        a(f"v_mov_b32 v{TB}, 0")
        poll("L_poll_st", [f"buffer_load_dwordx4 v[16:19], v{TB}, s[48:51], s13 offen sc1"], tags_words([17, 19]), sleep=32)
    a(f"""
    v_max_f32 v17, v16, v28
    v_sub_f32 v16, v16, v17
    v_sub_f32 v28, v28, v17
    v_sub_f32 v24, v24, v17
    v_mul_f32 v16, {LOG2E}, v16
    v_mul_f32 v28, {LOG2E}, v28
    v_mul_f32 v24, {LOG2E}, v24
    v_exp_f32 v16, v16
    v_exp_f32 v28, v28
    v_exp_f32 v24, v24
    v_mul_f32 v16, v16, v18
    v_fmac_f32 v16, v28, v30
    v_rcp_f32 v16, v16
    v_mov_b32 v25, 1
    v_mul_f32 v24, v24, v16
    ds_write_b64 v{TA}, v[24:25] offset:{F_FAC}
    """)
    a("L_nofac:")
    def constants():
        a("s_cmp_lt_u32 s68, 4\ns_cbranch_scc1 L_nored2")
        wait_row("L_kd2", KL + 1)
        a("s_cmp_lg_u32 s68, 5\ns_cbranch_scc1 L_noffn2")
        ffn_cols(TA, TB)
        a(f"""
        v_lshlrev_b32 v{TA}, 8, v{TA}
        v_lshl_add_u32 v{TA}, v{TB}, 4, v{TA}
        s_lshl_b32 s12, s7, 6
        s_add_u32 s12, s12, {WS_MOD + 96*256}
        s_add_u32 s13, s12, 0x1000
        s_add_u32 s14, s12, 0x2000
        s_add_u32 s46, s12, 0x3000
        """)
        poll("L_poll_sb", [f"buffer_load_dwordx4 v[{16+4*i}:{19+4*i}], v{TA}, s[48:51], {sr} offen sc1" for i, sr in enumerate(["s12", "s13", "s14", "s46"])],
             tags_words([17 + 2*k for k in range(8)]), sleep=16)
        for k in range(4):
            a(f"v_mov_b32 v{SB[k]}, v{16+2*k}")
            unpack(32, 33, 24 + 2*k)
            a(f"v_add_f32 v32, 1.0, v32\nv_add_f32 v33, 1.0, v33\nv_cvt_pk_bf16_f32 v{TREG[k]}, v32, v33")
        a("L_noffn2:")
        srd(52, P_X, 4096)
        a(f"""
        v_bfe_u32 v{TA}, v0, 2, 2
        v_and_b32 v{TB}, 3, v0
        v_lshlrev_b32 v{TC}, 5, v{TA}
        v_lshl_add_u32 v{TC}, v{TB}, 1, v{TC}
        s_lshl_b32 s71, s69, 7
        s_lshl_b32 s12, s7, 3
        s_add_u32 s71, s71, s12
        buffer_load_ushort v{RX}, v{TC}, s[52:55], s71 offen
        v_lshlrev_b32 v{TA}, 8, v{TA}
        v_lshrrev_b32 v{TC}, 1, v{TB}
        v_lshl_add_u32 v{TA}, v{TC}, 3, v{TA}
        s_and_b32 s12, s69, 7
        s_lshl_b32 s12, s12, 10
        s_lshl_b32 s13, s7, 4
        s_add_u32 s12, s12, s13
        s_lshr_b32 s13, s69, 3
        s_lshl_b32 s13, s13, 6
        s_add_u32 s12, s12, s13
        s_add_u32 s13, s12, {WS_MOD + 160*256}
        s_add_u32 s12, s12, {WS_MOD + 64*256}
        """)
        poll("L_poll_ga", [f"buffer_load_dwordx2 v[16:17], v{TA}, s[48:51], s12 offen sc1", f"buffer_load_dwordx2 v[18:19], v{TA}, s[48:51], s13 offen sc1"],
             tags_words([17, 19]), sleep=16)
        a(f"v_and_b32 v{TB}, 1, v0\nv_cmp_eq_u32 vcc, 1, v{TB}")
        for k, r in enumerate([RGA, RGB]):
            unpack(24, 25, 16 + 2*k)
            a(f"v_cndmask_b32 v{r}, v24, v25, vcc")
        a(f"v_lshlrev_b32 v{RX}, 16, v{RX}")
        a(f"v_and_b32 v{TA}, 31, v0\nv_lshlrev_b32 v{TA}, 7, v{TA}\ns_mov_b32 s12, {WS_XCC}")
        poll("L_poll_xcc", [f"buffer_load_dwordx2 v[16:17], v{TA}, s[48:51], s12 offen sc1"], tags_words([17]), sleep=16)
        a(f"v_cmp_eq_u32 vcc, s62, v16\ns_cmp_eq_u64 vcc, exec\ns_cselect_b32 s44, {1 if fast else 0}, 0")
        a("L_nored2:")
    done_c = []
    def maybe_constants():
        if not pieces and not done_c:
            done_c.append(1); constants()
    prevp = 4 * KL
    def milestones(lst):
        nonlocal prevp
        for i, mv in lst:
            p_ = 4 * (KL + mv) + E // 4
            stage_upto(KL + mv + lag3 + FL); maybe_constants()
            tm_publish(3 + i, KL + mv)
            tm_gather(3 + i, KL + mv + lag3, p_, 16 * f3 / (p_ - prevp), KL + mv)
            prevp = p_
    MS = list(enumerate(ms))
    if touchp:
        wait_row("L_tchp", KL + touchp)
        a(f"""
        s_lshl_b32 s12, s15, 1
        s_add_u32 s12, s12, s6
        s_lshl_b32 s12, s12, 11
        s_lshl_b32 s13, s7, 9
        s_add_u32 s12, s12, s13
        s_add_u32 s12, s12, {WS_PART1}
        s_mov_b32 exec_hi, 0
        buffer_load_dwordx4 v[24:27], v1, s[48:51], s12 offen sc1
        s_mov_b64 exec, -1
        s_waitcnt vmcnt(0)
        """)
    milestones([x for x in MS if x[1] + lag3 + (flag_ if agg else 0) <= touch])
    stage_upto(99); maybe_constants()
    if touch:
        a("s_cmp_lt_u32 s68, 4\ns_cbranch_scc1 L_notouch")
        wait_row("L_tch", KL + touch)
        a(f"""
        v_lshrrev_b32 v{TA}, 2, v0
        v_and_b32 v{TB}, 3, v0
        v_lshlrev_b32 v{TC}, 13, v{TA}
        v_lshl_add_u32 v{TC}, v{TB}, 4, v{TC}
        v_lshlrev_b32 v{TA}, 11, v{TA}
        v_lshl_add_u32 v{TA}, v{TB}, 4, v{TA}
        s_lshl_b32 s12, s7, 11
        s_add_u32 s12, s12, {WS_X1}
        buffer_load_dwordx4 v[16:19], v1, s[48:51], s12 offen sc1
        buffer_load_dwordx4 v[20:23], v1, s[48:51], s12 offen offset:1024 sc1
        s_lshl_b32 s12, s69, 8
        s_lshl_b32 s13, s7, 6
        s_add_u32 s12, s12, s13
        s_add_u32 s12, s12, {WS_PART2}
        s_add_u32 s13, s12, 0x20000
        buffer_load_dwordx4 v[24:27], v{TC}, s[48:51], s12 offen sc1
        buffer_load_dwordx4 v[28:31], v{TC}, s[48:51], s13 offen sc1
        """)
        if otouch:
            srd(52, P_OUT, 4096)
            a("buffer_load_ushort v32, v0, s[52:55], s71 offen")
        if touch1:
            a(f"""
            s_and_b32 s12, s69, 7
            s_lshl_b32 s12, s12, 8
            s_lshl_b32 s13, s7, 6
            s_add_u32 s12, s12, s13
            s_lshr_b32 s13, s69, 3
            s_lshl_b32 s13, s13, 17
            s_add_u32 s12, s12, s13
            s_add_u32 s12, s12, {WS_PART1}
            """)
            for i in range(4):
                a(f"buffer_load_dwordx4 v[{32+4*i}:{35+4*i}], v{TA}, s[48:51], s12 offen sc1\ns_add_u32 s12, s12, 0x8000")
        a("s_waitcnt vmcnt(0)\nL_notouch:")
    milestones([x for x in MS if x[1] + lag3 + (flag_ if agg else 0) > touch])
    AF, DD = 16, 32
    bn = {"n": 0}
    def barrier():
        if not dry: a("s_barrier"); return
        bn["n"] += 1
        a(f"s_cmp_eq_u32 s0, 1\ns_cbranch_scc1 L_nb{bn['n']}\ns_barrier\nL_nb{bn['n']}:")
    a(f"""
    L_tail0:
    s_mov_b64 exec, -1
    s_waitcnt vmcnt(0) lgkmcnt(0)
    v_bfe_u32 v{TB}, v0, 1, 2
    v_mul_u32_u24 v{TB}, {OP_STRIDE}, v{TB}
    v_lshrrev_b32 v{TA}, 4, v0
    v_lshl_add_u32 v{TB}, v{TA}, 4, v{TB}
    v_and_b32 v{TA}, 1, v0
    v_lshl_add_u32 v{TB}, v{TA}, 7, v{TB}
    v_add_u32 v{TB}, {L_OP}, v{TB}
    v_mul_u32_u24 v{TA}, 0xaaaa, v{TA}
    v_add_u32 v{TA}, 0x4444, v{TA}
    s_lshl_b32 s12, s15, 1
    s_add_u32 s12, s12, s6
    s_lshl_b32 s12, s12, 11
    s_lshl_b32 s13, s7, 9
    s_add_u32 s12, s12, s13
    s_add_u32 s12, s12, {WS_PART1}
    s_and_b32 s18, {TAG}, 0xff
    s_bfe_u32 s19, {TAG}, 0x80008
    s_bfe_u32 s20, {TAG}, 0x80010
    s_lshr_b32 s21, {TAG}, 24
    v_mov_b32 v{TC}, 0xffffff00
    """)
    for i in range(32): a(f"v_mov_b32 v{DD+i}, 0")
    P1V = 28
    a(f"""
    v_lshrrev_b32 v{P1V}, 2, v0
    v_and_b32 v{P1V+1}, 3, v0
    v_lshlrev_b32 v{P1V}, 11, v{P1V}
    v_lshl_add_u32 v{P1V}, v{P1V+1}, 4, v{P1V}
    s_and_b32 s26, s69, 7
    s_lshl_b32 s26, s26, 8
    s_lshl_b32 s13, s7, 6
    s_add_u32 s26, s26, s13
    s_lshr_b32 s13, s69, 3
    s_lshl_b32 s14, s13, 11
    s_add_u32 s22, s26, s14
    s_lshl_b32 s13, s13, 17
    s_add_u32 s26, s26, s13
    s_add_u32 s26, s26, {WS_PART1}
    s_add_u32 s27, s26, 0x8000
    s_add_u32 s14, s26, 0x10000
    s_add_u32 s67, s26, 0x18000
    s_add_u32 s23, s22, {WS_X1}
    """)
    P1S = ["s26", "s27", "s14", "s67"]
    if p1q:
        a(f"""
        s_bfe_u32 s26, s69, 0x20001
        s_lshl_b32 s26, s26, 9
        s_and_b32 s27, s69, 1
        s_lshl_b32 s27, s27, 6
        s_add_u32 s26, s26, s27
        s_lshl_b32 s27, s7, 15
        s_add_u32 s26, s26, s27
        s_add_u32 s26, s26, s13
        s_add_u32 s26, s26, {WS_PART1}
        """)
        P1S = ["s26"]
    stamp(8)
    barrier()
    if dbg: a("s_memrealtime s[96:97]")
    stamp(9)
    for s in range(2): a(f"ds_read_b128 v[{AF+4*s}:{AF+4*s+3}], v{TB} offset:{64*s}")
    a("s_waitcnt lgkmcnt(0)")
    def smf(d, af, b, ix): a(f"v_smfmac_f32_16x16x64_bf16 v[{d}:{d+3}], v[{af}:{af+3}], v[{b}:{b+7}], v{ix}")
    order = [0, 4, 1, 5, 2, 6, 3, 7]
    OQ = 24
    work = []
    def fin(t):
        d = DD + 4*t
        w_ = [f"v_pk_add_f32 v[{d}:{d+1}], v[{d}:{d+1}], v[{d+2}:{d+3}]", f"v_add_f32 v{d}, v{d}, v{d+1}"]
        return w_
    def fin2(k):
        x, y = DD + 4*k, DD + 4*(k+4)
        return [f"v_permlane16_swap_b32 v{x}, v{y}", f"v_add_f32 v{OQ+k}, v{x}, v{y}", f"v_and_or_b32 v{OQ+k}, v{OQ+k}, v{TC}, s{18+k}"]
    for i, t in enumerate(order):
        if i >= 3: work += fin(order[i-3])
        if i >= 5 and (i - 5) % 2 == 0: work += fin2((i - 5) // 2)
        for sx in range(2):
            smf(DD + 4*t, AF + 4*sx, 64 + (t*4 + 2*sx)*4, TA)
            for _ in range(2):
                if work: a(work.pop(0))
    work += fin(order[5]) + fin(order[6]) + fin2(2) + fin(order[7]) + fin2(3)
    for w_ in work: a(w_)
    if p1q: a("s_mov_b32 exec_lo, 0xff")
    a(f"s_mov_b32 exec_hi, 0\nbuffer_store_dwordx4 v[{OQ}:{OQ+3}], v1, s[48:51], s12 offen sc1\ns_mov_b64 exec, -1")
    stamp(10)
    a("s_cmp_lt_u32 s68, 4\ns_cbranch_scc1 L_hend")
    if p1first:
        stamp(4)
        for i, sr in enumerate(P1S): a(f"buffer_load_dwordx4 v[{32+4*i}:{35+4*i}], v{P1V}, s[48:51], {sr} offen sc1")
    a("s_cmp_lg_u32 s68, 5\ns_cbranch_scc1 L_noffn3")
    SC8, SH8 = 48, 56
    HW_, HF_, GF_, GW_, PO_, MS_ = 10, 11, 12, 13, 4, 5
    mid_bases()
    tr_mid(64, 0)
    tr_mid(128, 0x4000)
    for k in range(4): unpack(SC8 + 2*k, SC8 + 2*k + 1, TREG[k])
    for k in range(4): unpack(SH8 + 2*k, SH8 + 2*k + 1, SB[k])
    IX_ = 6
    act_addr(HF_, "hi", TB)
    ffn_cols(TA, TB)
    a(f"""
    v_lshlrev_b32 v{HW_}, 4, v{TA}
    v_lshl_add_u32 v{HW_}, v{TB}, 2, v{HW_}
    s_mul_i32 s13, s7, {ACT_STRIDE}
    s_add_u32 s13, s13, {L_ACT}
    v_add_u32 v{HW_}, s13, v{HW_}
    v_mul_u32_u24 v{GF_}, {GB_STRIDE}, v{TB}
    v_lshlrev_b32 v{GW_}, 2, v{TB}
    v_and_b32 v{IX_}, 1, v0
    v_lshl_add_u32 v{HF_}, v{IX_}, 9, v{HF_}
    v_lshl_add_u32 v{GF_}, v{IX_}, 6, v{GF_}
    v_lshl_add_u32 v{GW_}, v{IX_}, 1, v{GW_}
    v_mul_u32_u24 v{IX_}, 0xaaaa, v{IX_}
    v_add_u32 v{IX_}, 0x4444, v{IX_}
    v_bfe_u32 v{TB}, v0, 1, 1
    v_lshl_add_u32 v{GW_}, v{TB}, 6, v{GW_}
    v_lshrrev_b32 v{TB}, 4, v0
    v_lshl_add_u32 v{GF_}, v{TB}, 4, v{GF_}
    v_add_u32 v{GF_}, {L_GB}, v{GF_}
    v_mul_u32_u24 v{TA}, {GB_STRIDE}, v{TB}
    s_lshl_b32 s13, s7, 4
    s_add_u32 s13, s13, {L_GB}
    v_add3_u32 v{GW_}, v{GW_}, v{TA}, s13
    v_and_b32 v{TA}, 15, v0
    v_lshlrev_b32 v{TB}, 11, v{TB}
    v_lshl_add_u32 v{PO_}, v{TA}, 4, v{TB}
    v_mov_b32 v{MS_}, 0xffffff00
    """)
    a("L_noffn3:")
    a(f"""
    v_lshrrev_b32 v{TC}, 2, v0
    v_and_b32 v{TB}, 3, v0
    v_lshlrev_b32 v{TC}, 13, v{TC}
    v_lshl_add_u32 v{TC}, v{TB}, 4, v{TC}
    v_lshlrev_b32 v{TB}, 2, v0
    v_mov_b32 v{TA}, v{P1V}
    """)
    if pwait: a(f"s_sleep {pwait}")
    if not p1first: stamp(4)
    spin_begin()
    if p1first: a("s_branch L_poll_p1w")
    a("L_poll_p1:")
    spin_check()
    for i, sr in enumerate(P1S): a(f"buffer_load_dwordx4 v[{32+4*i}:{35+4*i}], v{TA}, s[48:51], {sr} offen sc1")
    a("L_poll_p1w:")
    tags_bytes(len(P1S), 44 if p1q else 32)()
    a("s_cmp_eq_u64 vcc, exec\ns_cbranch_scc0 L_poll_p1")
    stamp(11)
    if diag: a("s_mov_b32 s82, s70")
    def colsum(n):
        st_ = 1
        while st_ < n:
            for i in range(0, n, 2*st_):
                for k in (0, 2): pk("add", 16+4*i+k, 16+4*i+k, 16+4*(i+st_)+k)
            st_ *= 2
        a("""
        v_add_f32_dpp v20, v16, v16 row_ror:8 row_mask:0xf bank_mask:0x3
        v_add_f32_dpp v21, v17, v17 row_ror:8 row_mask:0xf bank_mask:0x3
        v_add_f32_dpp v20, v18, v18 row_ror:8 row_mask:0xf bank_mask:0xc
        v_add_f32_dpp v21, v19, v19 row_ror:8 row_mask:0xf bank_mask:0xc
        v_add_f32_dpp v16, v20, v20 row_shl:4 row_mask:0xf bank_mask:0x5
        v_add_f32_dpp v16, v21, v21 row_shr:4 row_mask:0xf bank_mask:0xa
        """)
        allreduce("v_add_f32", [16], [17], steps=())
    def resid(gate):
        bf16r(16, 16)
        a(f"v_mul_f32 v16, v16, v{gate}")
        bf16r(16, 16)
        a(f"v_add_f32 v16, v16, v{RX}")
    colsum(4)
    resid(RGA)
    a(f"""
    v_mov_b32 v41, {TAG}
    v_mov_b32 v43, {TAG}
    v_mov_b32_dpp v17, v16 quad_perm:[1,1,1,1] {FULL}
    v_mov_b32_dpp v18, v16 quad_perm:[2,2,2,2] {FULL}
    v_mov_b32_dpp v19, v16 quad_perm:[3,3,3,3] {FULL}
    v_cvt_pk_bf16_f32 v40, v16, v17
    v_cvt_pk_bf16_f32 v42, v18, v19
    s_mov_b64 exec, 0x1111
    """)
    def hstore(lbl, stores):
        a(f"s_cmp_eq_u32 s44, 1\ns_cbranch_scc0 {lbl}_s")
        for st_ in stores: a(f"{st_} {fpol}")
        a(f"s_branch {lbl}_e\n{lbl}_s:")
        for st_ in stores: a(f"{st_} sc1")
        a(f"{lbl}_e:")
    hstore("L_sx1", [f"buffer_store_dwordx4 v[40:43], v{TB}, s[48:51], s23 offen"])
    a("s_mov_b64 exec, -1")
    stamp(12)
    bf16r(RX, 16)
    a("s_cmp_lg_u32 s68, 5\ns_cbranch_scc1 L_red2")
    a(f"""
    s_lshl_b32 s12, s7, 11
    s_add_u32 s12, s12, {WS_X1}
    s_lshl_b32 s13, s69, 13
    s_lshl_b32 s14, s7, 9
    s_add_u32 s13, s13, s14
    s_add_u32 s23, s13, {WS_PART2}
    """)
    poll("L_poll_x1", ["buffer_load_dwordx4 v[16:19], v1, s[48:51], s12 offen sc1", "buffer_load_dwordx4 v[20:23], v1, s[48:51], s12 offen offset:1024 sc1"],
         tags_xor([17, 19, 21, 23], 24))
    stamp(1)
    X2, S2 = 24, 32
    for k in range(4): unpack(X2 + 2*k, X2 + 2*k + 1, 16 + 2*k)
    ln_norm(X2, S2)
    ln_affine(X2, SC8, SH8, 16)
    G, U, GT = 56, 60, 14
    a(f"ds_write2_b32 v{HW_}, v16, v17 offset0:0 offset1:128\nds_write2_b32 v{HW_}, v18, v19 offset0:64 offset1:192")
    for i in range(8): a(f"v_mov_b32 v{G+i}, 0")
    a("s_waitcnt lgkmcnt(0)")
    barrier()
    for k in range(8): a(f"ds_read_b128 v[{16+4*k}:{19+4*k}], v{HF_} offset:{k*64}")
    for k in range(8):
        a(f"s_waitcnt lgkmcnt({7-k})")
        smf(G, 16 + 4*k, 64 + 8*k, IX_)
    DZ = 64
    gelu = [f"v_add_f32 v{G}, v{G}, v{G+1}", f"v_cvt_pk_bf16_f32 v{G}, 0, v{G}", f"v_mul_f32 v{GT}, v{G}, v{G}", f"v_mul_f32 v{GT}, 0x3d372713, v{GT}",
            f"v_fma_f32 v{GT}, v{GT}, v{G}, v{G}", f"v_mul_f32 v{GT}, 0x40135761, v{GT}", f"v_exp_f32 v{GT}, -v{GT}",
            f"v_add_f32 v{GT}, 1.0, v{GT}", f"v_rcp_f32 v{GT}, v{GT}", f"v_mul_f32 v{GT}, v{GT}, v{G}", f"v_cvt_pk_bf16_f32 v{GT}, 0, v{GT}"]
    zero = [f"v_mov_b32 v{DZ+4*t+r}, 0" for t in range(8) for r in range(2)]
    for k in range(8):
        smf(U, 16 + 4*k, 128 + 8*k, IX_)
        if k < 3:
            for _ in range(2): a(zero.pop(0))
        else:
            a(gelu.pop(0)); a(gelu.pop(0))
    while gelu: a(gelu.pop(0))
    a(f"v_add_f32 v{U}, v{U}, v{U+1}")
    bf16r(U, U)
    a(f"""
    v_mul_f32 v{GT}, v{GT}, v{U}
    v_cvt_pk_bf16_f32 v{GT}, v{GT}, v{GT}
    ds_write_b16 v{GW_}, v{GT}
    """)
    while zero: a(zero.pop(0))
    if epearly:
        a(f"""
        s_or_b32 s12, s2, s7
        s_cbranch_scc1 L_noep
        s_mov_b64 exec, 1
        v_mov_b32 v17, {TAG}
        buffer_store_dword v17, v1, s[48:51], 0 offen sc1
        s_mov_b64 exec, -1
        L_noep:
        """)
    a("s_waitcnt lgkmcnt(0)")
    barrier()
    a(f"""
    ds_read_b128 v[{AF}:{AF+3}], v{GF_}
    s_waitcnt lgkmcnt(0)
    """)
    assert not zero
    fw = []
    for t in range(8):
        smf(DZ + 4*t, AF, 192 + 8*t, IX_)
        if t >= 4:
            tt = t - 4
            a(f"v_add_f32 v{24+tt}, v{DZ+4*tt}, v{DZ+4*tt+1}")
            a(f"v_and_or_b32 v{24+tt}, v{24+tt}, v{MS_}, s{18+(tt&3)}")
    for tt in range(4, 8):
        a(f"v_add_f32 v{24+tt}, v{DZ+4*tt}, v{DZ+4*tt+1}")
        a(f"v_and_or_b32 v{24+tt}, v{24+tt}, v{MS_}, s{18+(tt&3)}")
    hstore("L_sp2", [f"buffer_store_dwordx4 v[{24+4*g}:{27+4*g}], v{PO_}, s[48:51], s23 offen offset:{256*g}" for g in range(2)])
    stamp(2)
    a("L_red2:")
    a(f"""
    s_add_u32 s12, s22, {WS_PART2}
    s_add_u32 s13, s12, 0x20000
    v_mov_b32 v36, s18
    v_mov_b32 v37, s19
    v_mov_b32 v38, s20
    v_mov_b32 v39, s21
    v_bfe_u32 v{TA}, v0, 2, 2
    v_and_b32 v{TB}, 3, v0
    v_lshlrev_b32 v{TA}, 5, v{TA}
    v_lshl_add_u32 v{TA}, v{TB}, 1, v{TA}
    """)
    srd(52, P_OUT, 4096)
    if dry: a("s_cmp_eq_u32 s0, 1\ns_cselect_b32 s54, 0, s54")
    poll("L_poll_p2", [f"buffer_load_dwordx4 v[32:35], v{TC}, s[48:51], s12 offen sc1", "s_mov_b32 exec_hi, 0xffff",
                       f"buffer_load_dwordx4 v[36:39], v{TC}, s[48:51], s13 offen sc1"],
         tags_bytes(2, 44), post="s_mov_b64 exec, -1")
    stamp(13)
    colsum(2)
    resid(RGB)
    a(f"""
    v_cvt_pk_bf16_f32 v16, v16, v16
    s_mov_b64 exec, 0xffff
    buffer_store_short v16, v{TA}, s[52:55], s71 offen {opol}
    """)
    if not epearly or dbg or pad:
        a(f"""
        s_or_b32 s12, s2, s7
        s_cbranch_scc1 L_hend
        s_mov_b64 exec, 1
        v_mov_b32 v17, {TAG}
        v_mov_b32 v18, 0
        buffer_store_dword v17, v18, s[48:51], 0 offen sc1
        """)
    if dbg:
        a("s_cmp_eq_u32 s0, 1\ns_cbranch_scc1 L_hend\ns_memrealtime s[94:95]\ns_waitcnt lgkmcnt(0)\ns_sub_u32 s94, s94, s60\ns_sub_u32 s96, s96, s60\ns_sub_u32 s98, s98, s60")
        srd(8, 40, 256)
        for i, r in enumerate([98, 91, 92, 93, 96, 94]):
            a(f"v_mov_b32 v17, s{r}\nbuffer_store_dword v17, v18, s[8:11], 0 offen offset:{4*i}")
    if pad:
        a(f"s_cmp_eq_u32 s0, 1\ns_cbranch_scc1 L_hend\nL_pad:\ns_memrealtime s[94:95]\ns_waitcnt lgkmcnt(0)\ns_sub_u32 s94, s94, s60\ns_cmp_lt_u32 s94, {pad}\ns_cbranch_scc1 L_pad")
    a("L_hend:")
    if dry: a("s_cmp_eq_u32 s0, 1\ns_cbranch_scc0 L_fin\ns_cmp_ge_u32 s68, 4\ns_cbranch_scc1 L_afterdry1\ns_branch L_afterdry2\nL_fin:")
    stamp(14)
    if diag:
        a(f"""
        s_mov_b64 exec, -1
        v_lshlrev_b32 v1, 4, v0
        v_add_u32 v20, {L_FL+F_TT}, v1
        s_mov_b32 exec_hi, 0
        ds_read_b128 v[16:19], v20
        s_lshl_b32 s12, s2, 9
        s_add_u32 s12, s12, {WS_DBG + 0x40000}
        s_waitcnt lgkmcnt(0)
        buffer_store_dwordx4 v[16:19], v1, s[48:51], s12 offen
        """)
    dump_stamps(15)
    a("L_end:")
    a("s_endpgm")
    a('.section .rodata,"a"')
    a(".p2align 6")
    a(f".amdhsa_kernel {NAME}_kernel")
    a("""
    .amdhsa_next_free_vgpr 256
    .amdhsa_next_free_sgpr 102
    .amdhsa_accum_offset 256
    .amdhsa_group_segment_fixed_size 0
    .amdhsa_kernarg_size 112
    .amdhsa_user_sgpr_count 2
    .amdhsa_user_sgpr_kernarg_segment_ptr 1
    .amdhsa_system_sgpr_workgroup_id_x 1
    .amdhsa_float_denorm_mode_32 3
    .end_amdhsa_kernel
    """)
    return out + a.text()

if __name__ == "__main__":
    kw = eval("dict(" + (sys.argv[2] if len(sys.argv) > 2 else "") + ")")
    open(sys.argv[1], "w").write(gen(**kw))
```

```python
import sys
from asmlib import Asm

NAME = "adaLN_cond__mha_block_cached__geglu_ffn__decode"
WS_MOD = 0x1000
WS_Q = 0x10000
WS_STATS = 0x20000
WS_X1 = 0x28000
WS_PART2 = 0x40000
WS_PART1 = 0x80000
WS_FAST = 0
WS_XCC = 0x30000
WS_LINE = 0x34000
AGG = 255
WS_TM, TMSTR = 0x280000, 4352
WS_DBG, WS_SIZE = 0x200000, 0x400000
L_W, L_ACT, L_Q, L_OP, L_GB, L_FL = 0, 0x20000, 0x21200, 0x21400, 0x21A00, 0x21E00
ACT_STRIDE, OP_STRIDE, GB_STRIDE = 1088, 320, 192
LDS_BYTES = 0x22200
F_FAC, F_KD, F_WF, F_WQ, F_WQD, F_H, F_G1, F_G2, F_ST, F_TT = 0, 64, 80, 96, 112, 128, 144, 160, 192, 256
NFFN = 28
SPIN_MAX = 1 << 20
P_X, P_K, P_V, P_WQ, P_WO, P_WG, P_WU, P_WD, P_C, P_WM, P_OUT, P_WS = 16, 18, 20, 22, 24, 28, 30, 32, 34, 36, 38, 42
TAG = "s45"
LOG2E, SCALE, HIMASK = "s64", "s65", "s66"


DOC = """;
;    The two workgroups of a head take alternate 32 KB blocks, so they work in the same DRAM pages.
;    the partner workgroup, output projection, and (workgroups with id % 8 == 0) reduction, LayerNorm, GEGLU FFN.
;  * load balance: every streamer compares its progress with a pace line averaged over a sample of workgroups
;    and picks how many loads it keeps in flight for the next 16 KB (4..8), so that all CUs finish together.
;  * sleeps appear only as back-off inside polling loops; every polling loop is bounded.
"""

def gen(D=5, A=8, E=4, P=48, PL=32, DP=5, D2=7, NE=1, thr=3, thrA=16, thrF=16, late1=True, hk=8, upk=None, up2=1.0, thrQ=4, thrD=3, slp=16, diag=False,
        levels=((4,-70),(4.5,-20),(5,40),(6,110),(8,None)), f1=0.147, f2=0.965, f3=0.985, ms=(3, 7, 11), lagK=2, lagV=1, lag3=1, early=30, D0=None, N0=0, gq=40, gm=20,
        kctl=True, fast=True, fpol='', touch=10, touch1=False, touchp=0, pwait=0, contig=False, mk=5, fk=0.97, nb0=8, mpoll=False, trlate=False, ilv=0, perm='w0 w1 t2 h t3', diag2=False, fa_at=13, wpol='nt', noround=0, endat=99, endD=7, endbias=0, fin=7, epearly=True, opol='', otouch=False, p1first=False, p1q=False, wsh=0, psw=80, rotw=None, rotm=None, pf='', pfthr=16, xp=0, xb=None, sym=False, agg=True, aslp=24, alag=1, flag_=1, J=80, up=1.03, eth=45, boost=0.92, ek=0.0011, e0=10, fsplit=(2, 6), spf='w', sgran=128, tsh=1, nojT=True, dry=True, lastctl=True, tlb=True, dbg=False, pad=0, l2warm=True, skip=''):
    a = Asm()
    def stamp(k):
        if diag: a(f"s_memrealtime s[{72+2*k}:{73+2*k}]")
    def srd(reg, ptr, nbytes):
        a(f"s_mov_b32 s{reg}, s{ptr}\ns_mov_b32 s{reg+1}, s{ptr+1}\ns_mov_b32 s{reg+2}, {nbytes}\ns_mov_b32 s{reg+3}, 0x20000")
    def dump_stamps(n):
        if not diag: return
        a("s_waitcnt lgkmcnt(0)")
        a("s_mov_b64 exec, 1")
        a("s_lshl_b32 s46, s2, 3\ns_add_u32 s46, s46, s3\ns_lshl_b32 s46, s46, 6")
        a(f"s_add_u32 s46, s46, {WS_DBG}")
        a("v_mov_b32 v1, 0")
        for k in range(n):
            a(f"v_mov_b32 v2, s{72+2*k}")
            a(f"buffer_store_dword v2, v1, s[48:51], s46 offen offset:{4*k}")
    FULL = "row_mask:0xf bank_mask:0xf"
    def allreduce(op, rs, tmps, rows_only=False, steps=("quad_perm:[1,0,3,2]", "quad_perm:[2,3,0,1]", "row_half_mirror", "row_mirror")):
        for st in steps:
            for r in rs: a(f"{op}_dpp v{r}, v{r}, v{r} {st} {FULL}")
        if rows_only: return
        for sw in ("v_permlane16_swap_b32", "v_permlane32_swap_b32"):
            for r, t in zip(rs, tmps): a(f"v_mov_b32 v{t}, v{r}")
            for r, t in zip(rs, tmps): a(f"{sw} v{r}, v{t}")
            for r, t in zip(rs, tmps): a(f"{op} v{r}, v{r}, v{t}")
    def bf16r(d, s):
        a(f"v_cvt_pk_bf16_f32 v{d}, 0, v{s}")
    def bf16r2(lo, hi, t):
        a(f"v_cvt_pk_bf16_f32 v{t}, v{lo}, v{hi}\nv_lshlrev_b32 v{lo}, 16, v{t}\nv_and_b32 v{hi}, {HIMASK}, v{t}")
    def unpack(lo, hi, s):
        a(f"v_lshlrev_b32 v{lo}, 16, v{s}\nv_and_b32 v{hi}, {HIMASK}, v{s}")
    def spin_begin(): a("s_mov_b32 s70, 0")
    def spin_check(): a(f"s_add_u32 s70, s70, 1\ns_cmp_gt_u32 s70, {SPIN_MAX}\ns_cbranch_scc1 L_end")
    MKTAG = "s_mul_i32 s45, s44, 1664525\ns_add_u32 s45, s45, 1013904223"
    BAR0 = "s_load_dword s44, s[42:43], 0\ns_barrier"
    def set_flag(row, widx, va, vb):
        a(f"s_lshl_b32 s47, {widx}, 2\ns_add_u32 s47, s47, {L_FL+row}\nv_mov_b32 v{va}, s47\nv_mov_b32 v{vb}, 1\nds_write_b32 v{va}, v{vb}")
    def wait_flags(lbl, row, t, sleep):
        spin_begin()
        a(f"v_mov_b32 v{t+4}, {L_FL+row}")
        a(f"{lbl}:")
        spin_check()
        if sleep: a(f"s_sleep {sleep}")
        a(f"""
        ds_read_b128 v[{t}:{t+3}], v{t+4}
        s_waitcnt lgkmcnt(0)
        v_and_b32 v{t}, v{t}, v{t+1}
        v_and_b32 v{t+2}, v{t+2}, v{t+3}
        v_and_b32 v{t}, v{t}, v{t+2}
        v_readfirstlane_b32 s47, v{t}
        s_cmp_eq_u32 s47, 1
        s_cbranch_scc0 {lbl}
        """)

    hdr = open("cdna_kernels/" + NAME + ".s.ref").read().split("; Override launch")[0]
    out = hdr + f"; @launch grid=(256,1,1) block=(512,1,1) lds={LDS_BYTES}\n" + DOC
    a('.amdgcn_target "amdgcn-amd-amdhsa--gfx950"')
    a(".text")
    a(f".globl {NAME}_kernel")
    a(".p2align 8")
    a(f".type {NAME}_kernel,@function")
    a(f"{NAME}_kernel:")
    a("""
    s_cmp_ge_u32 s2, 256
    s_cbranch_scc1 L_end
    s_load_dwordx16 s[16:31], s[0:1], 0
    s_load_dwordx8 s[32:39], s[0:1], 64
    s_load_dwordx4 s[40:43], s[0:1], 96
    """)
    if diag:
        for k in range(1, 15): a(f"s_mov_b32 s{72+2*k}, 0")
    stamp(0)
    a("""
    v_lshrrev_b32 v1, 6, v0
    v_and_b32 v0, 63, v0
    v_readfirstlane_b32 s3, v1
    v_lshlrev_b32 v1, 4, v0
    s_lshr_b32 s12, s2, 3
    s_and_b32 s4, s12, 3
    s_lshl_b32 s4, s4, 3
    s_and_b32 s13, s2, 7
    s_add_u32 s4, s4, s13
    s_bfe_u32 s5, s12, 0x20002
    s_lshr_b32 s6, s12, 4
    s_mov_b32 s64, 0x3fb8aa3b
    s_mov_b32 s65, 0x3db504f3
    s_mov_b32 s66, 0xffff0000
    s_lshl_b32 s15, s5, 5
    s_add_u32 s15, s15, s4
    s_cmp_ge_u32 s3, 4
    s_cbranch_scc1 L_helper
    """)

    PB = {sym: 12 + i for i, sym in enumerate(perm.split())} if perm else {'w0': 12, 'w1': 13, 't2': 14, 't3': 15, 'h': 20}
    def goff(g): return ((g & 1) << PB['t2']) + (((g >> 1) & 1) << PB['t3']) + ((g >> 2) << ((17 + xp) if perm else 16))
    Q, MK, BB, ACC, PT, XX, YY, T0, T1, SC, RING = 2, 6, 10, 14, 18, 34, 42, 46, 47, 48, 64
    if xb is not None:
        xp = 1
        a(f"""
        s_andn2_b32 s13, s15, {1 << xb}
        s_lshl_b32 s13, s13, 21
        s_bfe_u32 s14, s15, {0x10000 + xb}
        s_lshl_b32 s14, s14, 17
        s_add_u32 s13, s13, s14
        s_mov_b32 s67, 0
        """)
    elif xp:
        a(f"""
        s_lshr_b32 s13, s5, {xp}
        s_lshl_b32 s13, s13, 5
        s_add_u32 s13, s13, s4
        s_lshl_b32 s13, s13, {21 + xp}
        s_and_b32 s14, s5, {(1 << xp) - 1}
        s_lshl_b32 s14, s14, 17
        s_add_u32 s13, s13, s14
        """)
    else: a("s_lshl_b32 s13, s15, 21")
    a(f"""
    s_lshl_b32 s14, s6, {PB['h']}
    s_add_u32 s13, s13, s14
    s_and_b32 s14, s3, 1
    s_lshl_b32 s14, s14, {PB['w0']}
    s_add_u32 s13, s13, s14
    s_lshr_b32 s14, s3, 1
    s_lshl_b32 s14, s14, {PB['w1']}
    s_add_u32 s13, s13, s14
    s_mov_b32 s12, s13
    s_lshl_b32 s14, s3, 15
    s_waitcnt lgkmcnt(0)
    s_mov_b32 s0, 0
    """)
    if diag2: stamp(1)
    srd(8, P_K, 0x10000000)
    st = {"issued": 0, "landed": 0}
    PT_ = P + PL
    assert P % 4 == 0 and PL <= 32
    def ldsoff(n): return ((n - P + 16) % 32) * 1024
    def slot(n):
        if n < P: return RING + 4 * n
        if n < PT_: return RING + 4 * (16 + n - P)
        return RING + 4 * ((n - PT_) % 16)
    def issue(n):
        if P <= n < PT_:
            if n & 3 == 0: a(f"s_add_u32 m0, s14, {ldsoff(n)}")
            a(f"buffer_load_dwordx4 v1, s[8:11], s12 offen offset:{(n&3)*1024} nt lds")
        else:
            r = slot(n)
            a(f"buffer_load_dwordx4 v[{r}:{r+3}], v1, s[8:11], s12 offen offset:{(n&3)*1024} nt")
        if n & 3 == 3: a(f"s_add_u32 s12, s12, {(goff((n >> 2) + 1) - goff(n >> 2)) & 0xffffffff}")
        if xb is not None and n & 15 == 15:
            a(f"s_add_u32 s67, s67, 1\ns_and_b32 s68, s67, 7\ns_cselect_b32 s68, 0, {((1 << (21 + xb)) - (1 << 21))}\ns_add_u32 s12, s12, s68")
        st["issued"] = n + 1
    def throttle(d=None):
        d = d or D
        a(f"s_waitcnt vmcnt({d-1})")
        st["landed"] = max(st["landed"], st["issued"] - (d - 1))
    def ensure(n):
        if n >= st["landed"]:
            k = st["issued"] - 1 - n
            a(f"s_waitcnt vmcnt({k})"); st["landed"] = n + 1
    for n in range(PT_):
        if n == P + 16: wait_flags("L_wqd", F_WQD, PT, 0)
        dd_ = D0 if (D0 and n < N0) else DP
        if n >= dd_: throttle(dd_)
        if diag2 and n == dd_: stamp(2)
        if diag2 and n == 2*dd_: stamp(3)
        if diag2 and n == 20: stamp(5)
        issue(n)
        if n == max(DP, D0 or 0) - 1:
            srd(48, P_WS, WS_SIZE)
            a(f"""
            s_mov_b32 s60, 0xaaaaaaaa
            s_mov_b32 s61, 0xaaaaaaaa
            s_mov_b32 s62, 0xcccccccc
            s_mov_b32 s63, 0xcccccccc
            v_and_b32 v{T0}, 15, v0
            v_and_b32 v{T1}, 1, v0
            v_lshlrev_b32 v{T1}, 4, v{T1}
            v_mov_b32 v{PT}, 0xffff
            v_lshlrev_b32 v{T1}, v{T1}, v{PT}
            v_lshrrev_b32 v{PT}, 1, v{T0}
            """)
            for t in range(4):
                a(f"v_cmp_eq_u32 vcc, {t}, v{PT}\nv_cndmask_b32 v{MK+t}, 0, v{T1}, vcc")
            for t in range(4): a(f"v_mov_b32 v{ACC+t}, 0")
            a(f"v_lshlrev_b32 v{T0}, 4, v{T0}\nv_add_u32 v{T0}, {L_Q}, v{T0}")
        if n == nb0: a("s_barrier")
        if n == gm: set_flag(F_G1, "s3", PT, PT+1)
        if n == gq: set_flag(F_G2, "s3", PT, PT+1)
    if not diag2: stamp(1)
    a("s_barrier")
    if not diag2: stamp(2)
    a(f"ds_read_b128 v[{Q}:{Q+3}], v{T0}\nv_add_u32 v{T0}, s14, v1\ns_waitcnt lgkmcnt(0)")
    def kdots(n):
        r = slot(n); p = PT + n % 16
        a(f"v_dot2_f32_bf16 v{p}, v{r}, v{Q}, 0")
        for i in range(1, 4): a(f"v_dot2_f32_bf16 v{p}, v{r+i}, v{Q+i}, v{p}")
    def kreduce(dst):
        for j in range(8): a(f"v_add_f32_dpp v{XX+j}, v{PT+j}, v{PT+j} row_ror:8 row_mask:0xf bank_mask:0x3")
        for j in range(8): a(f"v_add_f32_dpp v{XX+j}, v{PT+8+j}, v{PT+8+j} row_ror:8 row_mask:0xf bank_mask:0xc")
        for j in range(4): a(f"v_add_f32_dpp v{YY+j}, v{XX+j}, v{XX+j} row_half_mirror row_mask:0xf bank_mask:0x5")
        for j in range(4): a(f"v_add_f32_dpp v{YY+j}, v{XX+4+j}, v{XX+4+j} row_half_mirror row_mask:0xf bank_mask:0xa")
        for j in range(2):
            a(f"v_cndmask_b32 v{XX+2*j}, v{YY+j+2}, v{YY+j}, s[62:63]")
            a(f"v_cndmask_b32 v{XX+2*j+1}, v{YY+j}, v{YY+j+2}, s[62:63]")
        for j in range(2):
            a(f"v_add_f32_dpp v{XX+4+j}, v{XX+2*j}, v{XX+2*j+1} quad_perm:[2,3,0,1] {FULL}")
        a(f"v_cndmask_b32 v{XX}, v{XX+5}, v{XX+4}, s[60:61]")
        a(f"v_cndmask_b32 v{XX+1}, v{XX+4}, v{XX+5}, s[60:61]")
        a(f"v_add_f32_dpp v{XX+2}, v{XX}, v{XX+1} quad_perm:[1,0,3,2] {FULL}")
        if noround < 1: bf16r(XX+2, XX+2)
        a(f"v_mul_f32 v{XX+2}, {SCALE}, v{XX+2}")
        if noround < 2: bf16r(dst, XX+2)
        else: a(f"v_mov_b32 v{dst}, v{XX+2}")
    tgt = -(-(PT_ + 16 - A + 4) // 16) * 16
    NPEEL = tgt // 16
    KL = 16 - NPEEL
    cons = {"n": 0}
    def consume_k_upto(m):
        while cons["n"] < m:
            n = cons["n"]
            if n == P:
                a("s_waitcnt lgkmcnt(0)")
                set_flag(F_WF, "s3", T0, T1)
            ensure(n); kdots(n); cons["n"] += 1
            m2 = n - 16 + P
            if n >= 16 and P <= m2 < PT_:
                ensure(m2)
                r = slot(m2)
                a(f"ds_read_b128 v[{r}:{r+3}], v{T0} offset:{ldsoff(m2)}")
            if n % 16 == 15: kreduce(SC + n // 16 + KL)
    nsteps = tgt + A - PT_
    for s in range(nsteps):
        n = PT_ + s
        prev = s if s < 16 else n - 16
        if s <= 16: want = 1 + -(-PT_ * s // 16)
        else: want = PT_ + 1 + -(-(tgt - PT_ - 1) * (s - 16) // (nsteps - 16))
        want = min(want, max(st["landed"], PT_))
        consume_k_upto(min(max(want, prev + 1), tgt))
        throttle(); issue(n)
    a("s_memrealtime s[52:53]")
    consume_k_upto(tgt)
    FA, FAD, TTA, TTV = 128, 132, 133, 134
    LV = [x[0] for x in levels]
    def ln_(dd): return str(dd).replace(".", "p")
    def dstep(dd, j):
        import math
        return int(math.floor((j + 1) * dd) - math.floor(j * dd))
    a(f"""
    s_mov_b32 s14, 0
    s_mov_b32 s56, 0
    s_mov_b32 s57, 0
    s_mov_b32 s58, 0
    s_mov_b32 s59, 0
    s_mov_b32 s68, {100000 if nojT else J}
    s_and_b32 s69, s2, 7
    s_cselect_b32 s69, {J}, s68
    s_cselect_b32 s71, 0, {tsh}
    s_lshl_b32 s47, s3, 4
    s_add_u32 s47, s47, {L_FL+F_FAC}
    v_mov_b32 v{FAD}, s47
    s_lshl_b32 s47, s3, 2
    s_add_u32 s47, s47, {L_FL+F_TT}
    v_mov_b32 v{TTA}, s47
    v_mov_b32 v{FA+3}, 0
    """)
    def record():
        a(f"""
        s_waitcnt lgkmcnt(0)
        s_or_b32 s53, s52, 1
        v_mov_b32 v{TTV}, s53
        ds_write_b32 v{TTA}, v{TTV}
        v_add_u32 v{TTA}, 16, v{TTA}
        """)
    def dispatch(pre):
        a(f"""
        v_readfirstlane_b32 s55, v{FA+3}
        v_readfirstlane_b32 s54, v{FA+2}
        s_cmp_eq_u32 s55, 0
        s_cbranch_scc1 {pre}{ln_(D)}
        s_mul_i32 s55, s55, s56
        s_lshr_b32 s55, s55, 4
        s_sub_u32 s52, s52, s54
        s_sub_u32 s52, s52, s55
        """)
        if J:
            a(f"""
            s_sub_u32 s55, s52, s57
            s_mov_b32 s57, s52
            s_cmp_gt_i32 s55, s69
            s_cselect_b32 s55, s55, 0
            s_add_u32 s59, s59, s55
            s_cmp_eq_u32 s54, s58
            s_cselect_b32 s59, s59, 0
            s_mov_b32 s58, s54
            s_sub_u32 s52, s52, s59
            """)
        if tsh: a("s_lshl_b32 s52, s52, s71")
        if wsh: a(f"s_cmp_lt_u32 s56, {psw}\ns_cselect_b32 s55, {wsh}, 0\ns_ashr_i32 s52, s52, s55")
        for dd, th in levels:
            if th is None: a(f"s_branch {pre}{ln_(dd)}")
            else: a(f"s_cmp_lt_i32 s52, {th}\ns_cbranch_scc1 {pre}{ln_(dd)}")
    a("; ---- K loop: record progress, choose the prefetch depth, run one 16-tile body")
    a("L_kdisp:")
    record()
    a(f"s_cmp_ge_u32 s14, {KL}\ns_cbranch_scc1 L_kdone")
    if kctl: dispatch("L_k")
    for dd in (LV if kctl else [D]):
        assert dd <= A
        a(f"L_k{ln_(dd)}:")
        for j in range(16):
            n = tgt + j
            if j == fa_at: a(f"ds_read_b128 v[{FA}:{FA+3}], v{FAD}")
            a(f"s_waitcnt vmcnt({dstep(dd, j)-1})")
            if j == 16 - A:
                a(f"s_cmp_eq_u32 s14, {KL-1}\ns_cselect_b32 s8, s{P_V}, s8\ns_cselect_b32 s9, s{P_V+1}, s9\ns_cselect_b32 s12, s13, s12")
            issue(n + A)
            if j == 15: a("s_memrealtime s[52:53]")
            kdots(n)
            if j == 7:
                for i in range(15): a(f"v_mov_b32 v{SC+i}, v{SC+i+1}")
        kreduce(SC + 15)
        a("s_add_u32 s14, s14, 1\ns_add_u32 s56, s56, 4\ns_branch L_kdisp")
    a("L_kdone:")
    if not diag2: stamp(3)
    ex = {"n": 256 + A}
    def extra():
        if ex["n"] < 256 + A + E:
            a(f"s_waitcnt vmcnt({D-1})"); issue(ex["n"]); ex["n"] += 1
    extra()
    M, Ls = PT, PT + 1
    a(f"v_max3_f32 v{M}, v{SC}, v{SC+1}, v{SC+2}")
    for i in range(3, 15, 2): a(f"v_max3_f32 v{M}, v{M}, v{SC+i}, v{SC+i+1}")
    a(f"v_max_f32 v{M}, v{M}, v{SC+15}")
    allreduce("v_max_f32", [M], [T0])
    a(f"v_mul_f32 v{T1}, {LOG2E}, v{M}")
    extra()
    for i in range(16): a(f"v_fma_f32 v{SC+i}, v{SC+i}, {LOG2E}, -v{T1}")
    for i in range(16): a(f"v_exp_f32 v{SC+i}, v{SC+i}")
    extra()
    a(f"v_add_f32 v{Ls}, v{SC}, v{SC+1}\nv_add_f32 v{Ls+1}, v{SC+2}, v{SC+3}")
    for i in range(4, 16, 2): a(f"v_add_f32 v{Ls}, v{Ls}, v{SC+i}\nv_add_f32 v{Ls+1}, v{Ls+1}, v{SC+i+1}")
    a(f"v_add_f32 v{Ls}, v{Ls}, v{Ls+1}")
    for i in range(16): a(f"v_cvt_pk_bf16_f32 v{SC+i}, v{SC+i}, v{SC+i}")
    extra()
    allreduce("v_add_f32", [Ls], [T0])
    a(f"ds_write_b64 v{FAD}, v[{M}:{Ls}] offset:{F_ST-F_FAC}")
    set_flag(F_KD, "s3", PT+5, PT+6)
    while ex["n"] < 256 + A + E: extra()
    a("s_memrealtime s[52:53]")
    AV = A + E
    assert AV <= 15
    a(f"""
    v_lshrrev_b32 v{PT}, 4, v0
    v_lshlrev_b32 v{PT}, 5, v{PT}
    v_bfe_u32 v{PT+1}, v0, 1, 1
    v_lshl_add_u32 v{PT}, v{PT+1}, 7, v{PT}
    v_bfe_u32 v{PT+1}, v0, 2, 1
    v_lshl_add_u32 v{PT}, v{PT+1}, 2, v{PT}
    v_and_b32 v{PT+1}, 1, v0
    v_lshl_add_u32 v{PT}, v{PT+1}, 1, v{PT}
    s_mul_i32 s46, s3, {OP_STRIDE}
    s_add_u32 s46, s46, {L_OP}
    v_add_u32 v{PT}, s46, v{PT}
    s_mov_b32 s14, 0
    s_add_u32 s56, s56, {E//4}
    s_waitcnt lgkmcnt(0)
    """)
    def vbody(dd, last, timed):
        assert dd <= AV
        for j in range(16):
            n = 256 + j
            if j == fa_at: a(f"ds_read_b128 v[{FA}:{FA+3}], v{FAD}")
            for t in range(4): a(f"v_and_b32_dpp v{BB+t}, v{SC}, v{MK+t} row_newbcast:{j} {FULL}")
            a(f"s_waitcnt vmcnt({dstep(dd, j)-1})")
            if j == 16 - AV and last:
                a("s_cmp_eq_u32 s14, 15\ns_cselect_b32 s10, 0, s10")
            issue(n + AV)
            r = slot(n)
            if j == 15 and timed: a("s_memrealtime s[52:53]")
            a(f"v_mfma_f32_16x16x32_bf16 v[{ACC}:{ACC+3}], v[{r}:{r+3}], v[{BB}:{BB+3}], v[{ACC}:{ACC+3}]")
        if lastctl and not fin: a("s_cmp_eq_u32 s14, 15\ns_cbranch_scc1 L_sepi")
        for i in range(15): a(f"v_mov_b32 v{SC+i}, v{SC+i+1}")
        a("s_add_u32 s14, s14, 1\ns_add_u32 s56, s56, 4")
    assert NE >= 1
    a("s_branch L_vd1")
    a("; ---- V loop")
    a("L_vdisp:")
    if lastctl:
        record()
    else:
        record()
        a(f"s_cmp_ge_u32 s14, {16-NE}\ns_cbranch_scc1 L_vlast")
    if fin: a("s_cmp_eq_u32 s14, 15\ns_cbranch_scc1 L_vfin")
    if endat < 16: a(f"s_cmp_ge_u32 s14, {endat}\ns_cbranch_scc1 L_v{ln_(endD)}")
    if endbias: a(f"s_cmp_ge_u32 s14, 14\ns_cselect_b32 s55, {endbias}, 0\ns_add_u32 s52, s52, s55\ns_add_u32 s57, s57, s55")
    a("L_vd1:")
    dispatch("L_v")
    for dd in LV:
        a(f"L_v{ln_(dd)}:")
        vbody(dd, lastctl and not fin, True)
        a("s_branch L_vdisp")
    if fin:
        a("L_vfin:")
        a(f"ds_read_b128 v[{FA}:{FA+3}], v{FAD}")
        st["issued"] = 496 + AV; st["landed"] = 496 + AV - max(int(x + 0.999) for x in LV)
        def vcons(n):
            j = n - 496
            bb = BB if j & 1 else XX
            for t in range(4): a(f"v_and_b32_dpp v{bb+t}, v{SC}, v{MK+t} row_newbcast:{j} {FULL}")
            ensure(n)
            r = slot(n)
            a(f"v_mfma_f32_16x16x32_bf16 v[{ACC}:{ACC+3}], v[{r}:{r+3}], v[{bb}:{bb+3}], v[{ACC}:{ACC+3}]")
        c_ = 496
        for n in range(496 + AV, 512):
            throttle(fin); issue(n)
            for _ in range(2):
                if c_ < st["landed"]: vcons(c_); c_ += 1
        a("L_vfin2:")
        while c_ < 512: vcons(c_); c_ += 1
    if not lastctl:
        a("L_vlast:")
        vbody(D2, True, False)
        a("s_cmp_lt_u32 s14, 16\ns_cbranch_scc1 L_vlast")
    a("L_sepi:")
    if not fin: a("s_nop 7")
    stamp(4)
    a(f"s_waitcnt lgkmcnt(0)\nv_readfirstlane_b32 s46, v{FA+1}\ns_mov_b32 s70, 0\ns_or_b32 s46, s46, s0\ns_cmp_lg_u32 s46, 0\ns_cbranch_scc0 L_facspin")
    a("L_facok:")
    for t in range(4): a(f"v_mul_f32 v{ACC+t}, v{ACC+t}, v{FA}")
    a(f"v_cvt_pk_bf16_f32 v{ACC}, v{ACC}, v{ACC+1}\nv_cvt_pk_bf16_f32 v{ACC+2}, v{ACC+2}, v{ACC+3}")
    a(f"""
    s_mov_b32 exec_lo, 0x00ff00ff
    s_mov_b32 exec_hi, 0x00ff00ff
    ds_write_b16 v{PT}, v{ACC}
    ds_write_b16_d16_hi v{PT}, v{ACC} offset:8
    ds_write_b16 v{PT}, v{ACC+2} offset:16
    ds_write_b16_d16_hi v{PT}, v{ACC+2} offset:24
    s_waitcnt lgkmcnt(0)
    """)
    if dry: a("s_cmp_eq_u32 s0, 1\ns_cbranch_scc1 L_tail0")
    a("s_barrier")
    if not diag2: stamp(5)
    dump_stamps(6)
    a("s_endpgm")
    a("L_facspin:")
    spin_check()
    a(f"ds_read_b128 v[{FA}:{FA+3}], v{FAD}\ns_waitcnt lgkmcnt(0)\nv_readfirstlane_b32 s46, v{FA+1}\ns_cmp_eq_u32 s46, 1\ns_cbranch_scc0 L_facspin\ns_branch L_facok")

    a("L_helper:")
    TRB, DA, DB, DN, TA, TB, TC = 2, 4, 5, 6, 7, 8, 9
    a(f"""
    s_memrealtime s[60:61]
    s_sub_u32 s7, s3, 4
    """)
    def lane_consts():
        a(f"""
        v_lshrrev_b32 v{TA}, 4, v0
        v_bfe_u32 v{TB}, v0, 2, 2
        v_and_b32 v{TC}, 3, v0
        v_lshl_add_u32 v{TRB}, v{TA}, 3, v{TB}
        v_lshlrev_b32 v{TRB}, 8, v{TRB}
        v_lshl_add_u32 v{TRB}, v{TC}, 3, v{TRB}
        v_and_b32 v{TC}, 1, v{TA}
        v_lshl_add_u32 v{TB}, v{TC}, 2, v{TB}
        v_lshl_add_u32 v{TRB}, v{TB}, 5, v{TRB}
        s_lshl_b32 s12, s7, 15
        v_add_u32 v{TRB}, s12, v{TRB}
        v_and_b32 v{TB}, 15, v0
        v_lshlrev_b32 v{TC}, 1, v{TA}
        v_xor_b32 v{TB}, v{TB}, v{TC}
        v_lshlrev_b32 v{DN}, 4, v{TB}
        v_mov_b32 v{DA}, 0
        """)
    lane_consts()
    a(f"""
    s_bfe_u32 s13, s2, {0x40003 if sym else 0x50003}
    s_lshl_b32 s69, s13, {1 if sym else 0}
    {"s_add_u32 s69, s69, s6" if sym else ""}
    s_and_b32 s12, s2, 7
    s_mov_b32 s68, 4
    s_cmp_lt_u32 s69, {NFFN}
    s_cselect_b32 s68, 5, s68
    s_cmp_eq_u32 s12, 0
    s_cbranch_scc1 L_role
    s_mul_i32 s69, s13, 7
    s_add_u32 s69, s69, s12
    s_sub_u32 s69, s69, 1
    s_lshl_b32 s69, s69, {1 if sym else 0}
    {"s_add_u32 s69, s69, s6" if sym else ""}
    s_mov_b32 s68, 1
    s_cmp_lt_u32 s69, 16
    s_cbranch_scc1 L_role
    s_sub_u32 s69, s69, 16
    s_mov_b32 s68, 3
    s_cmp_lt_u32 s69, 64
    s_cbranch_scc1 L_role
    s_sub_u32 s69, s69, 48
    s_mov_b32 s68, 2
    s_cmp_lt_u32 s69, 48
    s_cbranch_scc1 L_role
    s_mov_b32 s68, 0
    L_role:
    """)
    a(f"""
    s_cmp_lg_u32 s7, 3
    s_cbranch_scc1 L_noinit
    s_and_b32 s12, s68, 1
    s_xor_b32 s12, s12, 1
    v_cmp_eq_u32 vcc, {F_WQD//16}, v0
    v_mov_b32 v17, s12
    v_cndmask_b32 v16, 0, v17, vcc
    v_mov_b32 v17, v16
    v_mov_b32 v18, v16
    v_mov_b32 v19, v16
    v_add_u32 v20, {L_FL}, v1
    ds_write_b128 v20, v[16:19]
    L_noinit:
    s_waitcnt lgkmcnt(0)
    s_mov_b32 s0, 0
    s_mov_b32 s71, 0
    """)
    srd(48, P_WS, WS_SIZE)
    def dma_seq(nins, stride, soff, ldsbase, infl, hooks, pol, sel, rot):
        if rot:
            a(rot)
            a(f"s_mov_b32 s59, {ldsbase}")
        for i in range(nins):
            if rot:
                if i: a(f"s_add_u32 s58, s58, 1\ns_and_b32 s58, s58, {nins-1}")
                a(f"s_lshl_b32 s57, s58, 10\ns_add_u32 m0, s59, s57\ns_mul_i32 s57, s58, {stride}\ns_add_u32 s57, s57, {soff}")
                so = "s57"
            else:
                a(f"s_mov_b32 m0, {ldsbase}" if i == 0 else "s_add_u32 m0, m0, 0x400")
                if i: a(f"s_add_u32 {soff}, {soff}, {stride}")
                so = soff
            a(f"buffer_load_dwordx4 v{DB if sel(i) else DA}, s[8:11], {so} offen {pol} lds")
            if i in hooks: hooks[i]()
            if i >= infl - 1: a(f"s_waitcnt vmcnt({infl-1})")
    def rot_code(src, mul, shr, gran, nins):
        return f"s_mul_i32 s58, {src}, {mul}\ns_lshr_b32 s58, s58, {shr}\ns_lshl_b32 s58, s58, {gran}\ns_and_b32 s58, s58, {nins-1}"
    def dma_wide(nins, rs_log2, soff, infl, hooks={}, pol='nt', key="s69"):
        a(f"v_lshrrev_b32 v{TA}, 4, v0\nv_lshl_add_u32 v{DA}, v{TA}, {rs_log2}, v{DN}\nv_xor_b32 v{DB}, 0x80, v{DA}")
        a("s_lshl_b32 s14, s7, 15")
        dma_seq(nins, 4 << rs_log2, soff, "s14", infl, hooks, pol, lambda i: (i >> 1) & 1, rot_code(key, rotw[0], rotw[1], 2, nins) if rotw else None)
    def dma_mid(soff, ldsbase, infl, rs, hooks={}, n=16):
        a(f"""
        v_lshrrev_b32 v{DA}, 3, v0
        v_mul_u32_u24 v{DA}, {rs}, v{DA}
        v_bfe_u32 v{DB}, v0, 4, 1
        v_lshlrev_b32 v{DB}, 1, v{DB}
        v_and_b32 v{TA}, 7, v0
        v_xor_b32 v{DB}, v{DB}, v{TA}
        v_lshl_add_u32 v{DA}, v{DB}, 4, v{DA}
        v_xor_b32 v{DB}, 64, v{DA}
        """)
        dma_seq(n, 8*rs, soff, ldsbase, infl, hooks, "nt", lambda i: i & 1, rot_code("s69", rotm[0], rotm[1], 1, 16) if rotm else None)
    def sprefetch(lbl, ptr, off, nrows, rs, rowbytes):
        per = rowbytes // sgran
        rows = max(1, 16 // per)
        while nrows % rows: rows -= 1
        a(f"s_mov_b32 s56, {off}\ns_mov_b32 s57, 0\n{lbl}:")
        for r_ in range(rows):
            for c_ in range(per):
                a(f"s_add_u32 s59, s56, {r_*rs + c_*sgran}\ns_load_dword s58, s[{ptr}:{ptr+1}], s59")
        a(f"s_waitcnt lgkmcnt(0)\ns_add_u32 s56, s56, {rows*rs}\ns_add_u32 s57, s57, {rows}\ns_cmp_lt_u32 s57, {nrows}\ns_cbranch_scc1 {lbl}")
    def mid_bases():
        a(f"""
        v_lshrrev_b32 v{TB}, 4, v0
        v_bfe_u32 v{TC}, v0, 2, 2
        v_lshl_add_u32 v{TA}, v{TB}, 3, v{TC}
        v_lshlrev_b32 v{TA}, 7, v{TA}
        v_and_b32 v{TB}, 1, v{TB}
        v_lshrrev_b32 v{TC}, 1, v{TC}
        v_lshl_add_u32 v{TB}, v{TB}, 1, v{TC}
        v_xor_b32 v{TB}, s7, v{TB}
        v_lshl_add_u32 v{TA}, v{TB}, 5, v{TA}
        v_and_b32 v{TB}, 3, v0
        v_lshl_add_u32 v{TA}, v{TB}, 3, v{TA}
        v_add_u32 v{TB}, 0x10000, v{TA}
        """)
    def tr_mid(dst, off):
        for s in range(16):
            r = dst + 4 * s
            ar = TA if s < 8 else TB
            o = off + ((s >> 2) & 1) * 0x8000 + (s & 3) * 4096
            a(f"ds_read_b64_tr_b16 v[{r}:{r+1}], v{ar} offset:{o}")
            a(f"ds_read_b64_tr_b16 v[{r+2}:{r+3}], v{ar} offset:{o+512}")
        a("s_waitcnt lgkmcnt(0)")
    def tr_wide(dst, nk):
        for t in range(8):
            ar = TA if t & 1 else TB
            a(f"v_xor_b32 v{ar}, {t << 5}, v{TRB}")
            for s in range(nk):
                r = dst + (t * nk + s) * 4
                a(f"ds_read_b64_tr_b16 v[{r}:{r+1}], v{ar} offset:{s*8192}")
                a(f"ds_read_b64_tr_b16 v[{r+2}:{r+3}], v{ar} offset:{s*8192+1024}")
        a("s_waitcnt lgkmcnt(0)")
    def act_addr(dst, rowsel, tmp):
        a(f"v_and_b32 v{dst}, 3, v0" if rowsel == "lo" else f"v_bfe_u32 v{dst}, v0, 2, 2")
        a(f"v_mul_u32_u24 v{dst}, {ACT_STRIDE}, v{dst}\nv_lshrrev_b32 v{tmp}, 4, v0\nv_lshl_add_u32 v{dst}, v{tmp}, 4, v{dst}\nv_add_u32 v{dst}, {L_ACT}, v{dst}")
    def poll(lbl, loads, tags, sleep=0, pre="", post=""):
        spin_begin()
        if sleep: a(f"s_branch {lbl}_go")
        a(f"{lbl}:")
        spin_check()
        if sleep: a(f"s_sleep {sleep}\n{lbl}_go:")
        a(pre)
        for l in loads: a(l)
        a(post)
        if not getattr(tags, "waits", False): a("s_waitcnt vmcnt(0)")
        tags()
        a(f"s_cmp_eq_u64 vcc, exec\ns_cbranch_scc0 {lbl}")
    def tags_words(regs):
        def f():
            a(f"v_cmp_eq_u32 vcc, {TAG}, v{regs[0]}")
            for r in regs[1:]: a(f"v_cmp_eq_u32 s[56:57], {TAG}, v{r}\ns_and_b64 vcc, vcc, s[56:57]")
        return f
    def tags_xor(regs, t):
        def f():
            a(f"v_xor_b32 v{t}, {TAG}, v{regs[0]}")
            for r in regs[1:]: a(f"v_xor_b32 v{t+1}, {TAG}, v{r}\nv_or_b32 v{t}, v{t}, v{t+1}")
            a(f"v_cmp_eq_u32 vcc, 0, v{t}")
        return f
    def tags_bytes(n, t):
        def f():
            for q in range(n):
                a(f"s_waitcnt vmcnt({n-1-q})")
                for i in range(4*q, 4*q + 4): a(f"v_xor_b32 v{16+i}, s{18+(i&3)}, v{32+i}")
                b_ = 16 + 4*q
                if q == 0: a(f"v_or3_b32 v{t}, v{b_}, v{b_+1}, v{b_+2}\nv_or_b32 v{t}, v{t}, v{b_+3}")
                else: a(f"v_or3_b32 v{t}, v{t}, v{b_}, v{b_+1}\nv_or3_b32 v{t}, v{t}, v{b_+2}, v{b_+3}")
            a(f"v_lshlrev_b32 v{t}, 24, v{t}\nv_cmp_eq_u32 vcc, 0, v{t}")
        f.waits = True
        return f
    def pk(op, d, x, y, mods=""):
        yy = y if isinstance(y, str) else f"v[{y}:{y+1}]"
        a(f"v_pk_{op}_f32 v[{d}:{d+1}], v[{x}:{x+1}], {yy} {mods}")
    NEG = "neg_lo:[0,1] neg_hi:[0,1]"
    def rnd8(x0):
        for k in range(8): bf16r(x0 + k, x0 + k)
    def ln_norm(x0, t0):
        a(f"v_readfirstlane_b32 s46, v{x0}")
        for k in range(4): pk("add", t0+4+2*k, x0+2*k, "s[46:47]", "op_sel_hi:[1,0] " + NEG)
        pk("mul", t0+2, t0+4, t0+4)
        pk("add", t0, t0+4, t0+6)
        a(f"v_pk_fma_f32 v[{t0+2}:{t0+3}], v[{t0+6}:{t0+7}], v[{t0+6}:{t0+7}], v[{t0+2}:{t0+3}]")
        pk("add", t0+4, t0+8, t0+10)
        a(f"v_pk_fma_f32 v[{t0+2}:{t0+3}], v[{t0+8}:{t0+9}], v[{t0+8}:{t0+9}], v[{t0+2}:{t0+3}]")
        pk("add", t0, t0, t0+4)
        a(f"v_pk_fma_f32 v[{t0+2}:{t0+3}], v[{t0+10}:{t0+11}], v[{t0+10}:{t0+11}], v[{t0+2}:{t0+3}]")
        m, q = t0, t0 + 2
        a(f"v_add_f32 v{m}, v{t0}, v{t0+1}\nv_add_f32 v{q}, v{t0+2}, v{t0+3}")
        allreduce("v_add_f32", [m, q], [], rows_only=True)
        for st_ in ("row_bcast:15 row_mask:0xa bank_mask:0xf", "row_bcast:31 row_mask:0xc bank_mask:0xf"):
            for r in (m, q): a(f"v_add_f32_dpp v{r}, v{r}, v{r} {st_}")
        a(f"""
        v_mul_f32 v{m}, 0x3b000000, v{m}
        v_mul_f32 v{q}, 0x3b000000, v{q}
        v_fma_f32 v{q}, -v{m}, v{m}, v{q}
        v_add_f32 v{m}, s46, v{m}
        v_max_f32 v{q}, 0, v{q}
        """)
        bf16r(m, m); bf16r(q, q)
        a(f"v_readlane_b32 s56, v{m}, 63\nv_add_f32 v{q}, 0x3727c5ac, v{q}")
        bf16r(q, q)
        a(f"v_sqrt_f32 v{q}, v{q}")
        for k in range(2): pk("add", x0+2*k, x0+2*k, "s[56:57]", "op_sel_hi:[1,0] " + NEG)
        bf16r(q, q)
        for k in range(2, 4): pk("add", x0+2*k, x0+2*k, "s[56:57]", "op_sel_hi:[1,0] " + NEG)
        a(f"v_rcp_f32 v{q}, v{q}")
        for k in range(3): bf16r(x0 + k, x0 + k)
        a(f"v_readlane_b32 s46, v{q}, 63")
        for k in range(3, 8): bf16r(x0 + k, x0 + k)
        for k in range(4): pk("mul", x0+2*k, x0+2*k, "s[46:47]", "op_sel_hi:[1,0]")
        rnd8(x0)
    def ln_affine(x0, sc8, sh8, t):
        for k in range(4): pk("mul", x0+2*k, x0+2*k, sc8+2*k)
        rnd8(x0)
        for k in range(4): pk("add", x0+2*k, x0+2*k, sh8+2*k)
        for k in range(4): a(f"v_cvt_pk_bf16_f32 v{t+k}, v{x0+2*k}, v{x0+2*k+1}")
    X8, ST, SA8, CA8, BW, DT = 24, 32, 40, 48, 192, 56
    def gemv64(tagn, kind, infl, first):
        isq = kind == "q"
        srd(52, P_X if isq else P_C, 4096)
        a(f"""
        v_lshlrev_b32 v10, 3, v0
        s_lshl_b32 s12, s7, 10
        buffer_load_dwordx2 v[12:13], v10, s[52:55], s12 offen
        buffer_load_dwordx2 v[14:15], v10, s[52:55], s12 offen offset:512
        """)
        rs = 8192 if isq else 6144
        srd(8, P_WQ if isq else P_WM, 0 if ({"q": "q", "A": "A", "a": "a"}[kind] in skip) else 512 * rs)
        if contig: rs = 128
        a(f"s_mul_i32 s13, s7, {128*rs}\ns_lshl_b32 s12, s69, {16 if contig else 7}\ns_add_u32 s13, s13, s12\ns_lshl_b32 s14, s7, 15")
        if kind == "a" and 'a' in spf: sprefetch("L_spa", P_WM, "s13", 128, rs, 128)
        dma_mid("s13", "s14", infl, rs, hooks=({min(infl, 16) - 1: lambda: a(BAR0)} if first else {}))
        a("s_waitcnt vmcnt(16)")
        if kind == "A": stamp(1)
        for k in range(4): unpack(X8 + 2*k, X8 + 2*k + 1, 12 + k)
        a(f"s_mul_i32 s12, s7, {ACT_STRIDE}\ns_add_u32 s12, s12, {L_ACT}\nv_add_u32 v10, s12, v10")
        if isq:
            ln_norm(X8, ST)
        else:
            for k in range(8): a(f"v_mul_f32 v{ST+k}, {LOG2E}, v{X8+k}")
            for k in range(8): a(f"v_exp_f32 v{ST+k}, -v{ST+k}")
            for k in range(8): a(f"v_add_f32 v{ST+k}, 1.0, v{ST+k}")
            for k in range(8): a(f"v_rcp_f32 v{ST+k}, v{ST+k}")
            for k in range(8): a(f"v_mul_f32 v{X8+k}, v{X8+k}, v{ST+k}")
            for k in range(4): a(f"v_cvt_pk_bf16_f32 v{16+k}, v{X8+2*k}, v{X8+2*k+1}")
            a("ds_write_b64 v10, v[16:17]\nds_write_b64 v10, v[18:19] offset:512")
        mid_bases()
        a("s_waitcnt vmcnt(0)")
        set_flag(F_WQ, "s7", 20, 21)
        wait_flags(f"L_wq{tagn}", F_WQ, 16, 0)
        if first: a(MKTAG)
        stamp(4 if isq else 2) if first else None
        tr_mid(BW, 0)
        if first: set_flag(F_WQD, "s7", 16, 17)
        act_addr(TC, "lo", TB)
        a(f"s_lshl_b32 s67, s69, 10\ns_lshl_b32 s12, s7, 8\ns_add_u32 s67, s67, s12\ns_add_u32 s67, s67, {WS_Q if isq else WS_MOD}")
        if isq:
            a(f"""
            v_lshrrev_b32 v{TA}, 2, v0
            v_lshlrev_b32 v{TA}, 8, v{TA}
            v_and_b32 v{TB}, 3, v0
            v_lshl_add_u32 v{TA}, v{TB}, 4, v{TA}
            s_lshl_b32 s12, s7, 6
            s_add_u32 s12, s12, {WS_MOD}
            s_add_u32 s13, s12, 0x1000
            s_add_u32 s14, s12, 0x2000
            s_add_u32 s46, s12, 0x3000
            """)
            if gm: wait_flags("L_g1", F_G1, 16, 4)
            G0 = 128
            poll("L_poll_mod", [f"buffer_load_dwordx4 v[{G0+4*i}:{G0+4*i+3}], v{TA}, s[48:51], {sr} offen sc1" for i, sr in enumerate(["s12", "s13", "s14", "s46"])],
                 tags_xor([G0 + 1 + 2*k for k in range(8)], 16), sleep=slp)
            stamp(5)
            for k in range(4): unpack(SA8 + 2*k, SA8 + 2*k + 1, G0 + 2*k)
            for k in range(4): unpack(CA8 + 2*k, CA8 + 2*k + 1, G0 + 8 + 2*k)
            for k in range(8): a(f"v_add_f32 v{CA8+k}, 1.0, v{CA8+k}")
            rnd8(CA8)
            ln_affine(X8, CA8, SA8, 16)
            a("ds_write_b64 v10, v[16:17]\nds_write_b64 v10, v[18:19] offset:512")
            set_flag(F_H, "s7", 20, 21)
            wait_flags("L_h", F_H, 16, 0)
        for hh in range(2):
            for s in range(8): a(f"ds_read_b128 v[{16+4*s}:{19+4*s}], v{TC} offset:{(8*hh+s)*64}")
            for s in range(8):
                a(f"s_waitcnt lgkmcnt({7-s})")
                k = 8*hh + s
                a(f"v_mfma_f32_16x16x32_bf16 v[{DT}:{DT+3}], v[{BW+4*k}:{BW+4*k+3}], v[{16+4*s}:{19+4*s}], " + ("0" if k == 0 else f"v[{DT}:{DT+3}]"))
        a(f"""
        v_and_b32 v{TC}, 3, v0
        v_lshrrev_b32 v{TA}, 4, v0
        v_lshlrev_b32 v{TA}, 4, v{TA}
        v_lshl_add_u32 v{TA}, v{TC}, 6, v{TA}
        v_mov_b32 v{DT+5}, {TAG}
        v_mov_b32 v{DT+7}, {TAG}
        v_cvt_pk_bf16_f32 v{DT+4}, v{DT}, v{DT+1}
        v_cvt_pk_bf16_f32 v{DT+6}, v{DT+2}, v{DT+3}
        s_mov_b32 exec_lo, 0x000f000f
        s_mov_b32 exec_hi, 0x000f000f
        buffer_store_dwordx4 v[{DT+4}:{DT+7}], v{TA}, s[48:51], s67 offen sc1
        s_mov_b64 exec, -1
        """)
        if first: stamp(13 if isq else 3)

    a("""
    s_cmp_eq_u32 s68, 3
    s_cbranch_scc1 L_qgemv
    s_cmp_eq_u32 s68, 5
    s_cbranch_scc1 L_down
    s_cmp_lg_u32 s68, 1
    s_cbranch_scc1 L_bar0
    """)
    gemv64(1, "A", 64, True)
    a("s_branch L_getq")
    a("L_qgemv:")
    gemv64(2, "q", thrQ, True)
    a("s_branch L_getq")
    a("L_down:")
    srd(8, P_WD, 0 if 'f' in skip else 1792 * 1024)
    a("s_lshl_b32 s13, s69, 16\ns_lshl_b32 s12, s7, 8\ns_add_u32 s13, s13, s12")
    dma_wide(16, 10, "s13", thrD, hooks={min(thrD, 16) - 1: lambda: a(BAR0)})
    a("s_waitcnt vmcnt(0)")
    tr_wide(192, 2)
    a(MKTAG)
    set_flag(F_WQD, "s7", 16, 17)
    a("s_branch L_getq")
    a("L_bar0:")
    if l2warm:
        a(f"""
        s_cmp_lg_u32 s7, 3
        s_cbranch_scc1 L_nowarm
        s_getpc_b64 s[12:13]
        L_pc:
        s_sub_u32 s12, s12, L_pc-{NAME}_kernel
        s_subb_u32 s13, s13, 0
        v_lshlrev_b32 v16, 7, v0
        s_mov_b32 s14, 0
        L_warm:
        v_cmp_gt_u32 vcc, L_end-{NAME}_kernel, v16
        s_and_saveexec_b64 s[46:47], vcc
        s_cbranch_execz L_warmd
        global_load_dword v17, v16, s[12:13]
        v_add_u32 v16, 0x2000, v16
        s_branch L_warm
        L_warmd:
        s_mov_b64 exec, -1
        L_nowarm:
        """)
    a(BAR0)
    a("s_waitcnt lgkmcnt(0)")
    a(MKTAG)
    a("L_getq:")
    def dryrun(n, cond):
        a(f"""
        s_cmp_lg_u32 s7, 1
        s_cbranch_scc1 L_nodry{n}
        {cond} s68, 4
        s_cbranch_scc1 L_nodry{n}
        s_waitcnt vmcnt(0)
        s_mov_b32 s0, 1
        s_mov_b32 s1, {TAG}
        s_mov_b32 {TAG}, 0
        s_mov_b32 s50, 0
        s_mov_b32 s44, 1
        v_mov_b32 v{PT}, {L_OP}
        s_branch {'L_vfin2' if fin else 'L_facok'}
        L_afterdry{n}:
        s_mov_b32 s0, 0
        s_mov_b32 {TAG}, s1
        s_mov_b32 s50, {WS_SIZE}
        s_mov_b64 exec, -1
        s_waitcnt vmcnt(0) lgkmcnt(0)
        """)
        if n == 1: lane_consts()
        a(f"L_nodry{n}:")
    if dry: dryrun(1, "s_cmp_lt_u32")
    a("s_cmp_lg_u32 s7, 2\ns_cbranch_scc1 L_bar1")
    a(f"""
    v_bfe_u32 v{TA}, v0, 2, 3
    v_lshlrev_b32 v{TA}, 8, v{TA}
    v_and_b32 v{TB}, 3, v0
    v_lshl_add_u32 v{TA}, v{TB}, 4, v{TA}
    s_lshl_b32 s12, s4, 11
    s_lshl_b32 s13, s5, 6
    s_add_u32 s12, s12, s13
    s_add_u32 s12, s12, {WS_Q}
    v_and_b32 v{TB}, 31, v0
    v_lshlrev_b32 v{TB}, 3, v{TB}
    v_add_u32 v{TB}, {L_Q}, v{TB}
    """)
    if gq: wait_flags("L_g2", F_G2, 16, 4)
    poll("L_poll_q", [f"buffer_load_dwordx4 v[16:19], v{TA}, s[48:51], s12 offen sc1"], tags_words([17, 19]), sleep=slp)
    a(f"v_mov_b32 v17, v18\nds_write_b64 v{TB}, v[16:17]\ns_waitcnt lgkmcnt(0)")
    a("L_bar1:")
    a("s_barrier")
    if dbg: a("s_memrealtime s[98:99]")
    stamp(6)
    a(f"""
    s_getreg_b32 s62, hwreg(HW_REG_XCC_ID)
    s_cmp_lt_u32 s68, 4
    s_cbranch_scc1 L_noxcc
    s_cmp_lg_u32 s7, 1
    s_cbranch_scc1 L_noxcc
    v_mov_b32 v16, s62
    v_mov_b32 v17, {TAG}
    s_lshl_b32 s12, s69, 7
    s_add_u32 s12, s12, {WS_XCC}
    s_mov_b64 exec, 1
    buffer_store_dwordx2 v[16:17], v1, s[48:51], s12 offen sc1
    s_mov_b64 exec, -1
    L_noxcc:
    """)
    if tlb:
        a("s_cmp_lg_u32 s7, 3\ns_cbranch_scc1 L_notlb\ns_mov_b64 exec, 1")
        srd(8, P_V, 0x10000000)
        a("s_lshl_b32 s12, s15, 21\ns_lshl_b32 s13, s6, 20\ns_add_u32 s12, s12, s13\nbuffer_load_dword v16, v1, s[8:11], s12 offen nt")
        srd(8, P_OUT, 4096)
        a("buffer_load_dword v17, v1, s[8:11], 0 offen nt")
        a(f"s_mov_b32 s12, {WS_TM}\nbuffer_load_dword v18, v1, s[48:51], s12 offen offset:1024 nt")
        a("s_mov_b64 exec, -1\ns_waitcnt vmcnt(0)\nL_notlb:")
    def wait_row(lbl, g):
        spin_begin()
        a(f"v_mov_b32 v20, {L_FL+F_TT+16*g}")
        a(f"s_branch {lbl}_go\n{lbl}:")
        spin_check()
        a(f"""
        s_sleep 8
        {lbl}_go:
        ds_read_b128 v[16:19], v20
        s_waitcnt lgkmcnt(0)
        v_and_b32 v21, v16, v17
        v_and_b32 v22, v18, v19
        v_and_b32 v21, v21, v22
        v_readfirstlane_b32 s47, v21
        s_bitcmp1_b32 s47, 0
        s_cbranch_scc0 {lbl}
        """)
    def tm_publish(m, g):
        a(f"""
        s_lshr_b32 s12, s2, 3
        s_xor_b32 s12, s12, s2
        s_and_b32 s12, s12, 1
        {"s_xor_b32 s12, s12, s6" if sym else "s_xor_b32 s14, s6, 1"}
        {"" if sym else "s_or_b32 s12, s12, s14"}
        s_or_b32 s12, s12, s68
        s_or_b32 s12, s12, s7
        s_cbranch_scc1 L_tmp{m}
        """)
        wait_row(f"L_tr{m}", g)
        for k in range(4): a(f"v_subrev_u32 v{16+k}, s60, v{16+k}")
        a(f"""
        v_add3_u32 v16, v16, v17, v18
        v_add_u32 v16, v16, v19
        v_lshrrev_b32 v16, 2, v16
        v_add_u32 v16, s60, v16
        v_mov_b32 v17, {TAG}
        v_mov_b32 v18, s60
        v_mov_b32 v19, {TAG}
        s_bfe_u32 s12, s2, {0x30003 if sym else 0x30004}
        s_lshl_b32 s12, s12, 3
        s_and_b32 s14, s2, 7
        s_add_u32 s12, s12, s14
        s_mul_i32 s12, s12, {TMSTR}
        s_add_u32 s12, s12, {WS_TM + 128*m}
        s_mov_b64 exec, 1
        buffer_store_dwordx4 v[16:19], v1, s[48:51], s12 offen sc1
        s_mov_b64 exec, -1
        L_tmp{m}:
        """)
    import struct
    def fhex(v): return hex(struct.unpack("<I", struct.pack("<f", v))[0])
    def sfetch(lbl, soff_reg, imm):
        a(f"""
        s_load_dwordx4 s[56:59], s[42:43], {soff_reg}
        s_waitcnt lgkmcnt(0)
        v_mov_b32 v16, s56
        v_mov_b32 v18, s58
        s_xor_b32 s57, s57, {TAG}
        s_xor_b32 s59, s59, {TAG}
        s_or_b32 s57, s57, s59
        s_cbranch_scc0 {lbl}_ok
        v_mov_b32 v20, 0
        """)
        poll(lbl, [f"buffer_load_dwordx4 v[16:19], v20, s[48:51], {soff_reg} offen sc1"], tags_words([17, 19]), sleep=32)
        a(f"{lbl}_ok:")
    def line_write(m):
        a(f"""
        s_cmp_ge_u32 s68, 4
        s_cselect_b32 s12, {early if 1 < m < 9 else 0}, 0
        v_subrev_u32 v16, s12, v16
        v_and_b32 v20, 3, v0
        v_lshlrev_b32 v20, 4, v20
        v_add_u32 v20, {L_FL+F_FAC+8}, v20
        ds_write_b64 v20, v[16:17]
        """)
    def tm_follow(m, gate):
        a(f"s_cmp_lg_u32 s7, 0\ns_cbranch_scc1 L_tmf{m}\ns_cmp_eq_u32 s2, {AGG}\ns_cbranch_scc1 L_tmf{m}")
        wait_row(f"L_tf{m}", gate + flag_)
        a(f"s_mov_b32 s12, {WS_LINE + 1280*m}")
        sfetch(f"L_poll_ln{m}", "s12", 0)
        a("v_mov_b32 v17, v18")
        line_write(m)
        a(f"L_tmf{m}:")
    def tm_gather(m, gate, p_m, mult, row, follow=True):
        a(f"s_cmp_lg_u32 s7, 0\ns_cbranch_scc1 L_tmg{m}")
        if agg: a(f"s_cmp_lg_u32 s2, {AGG}\ns_cbranch_scc1 L_tmg{m}")
        wait_row(f"L_tg{m}", row + alag if agg else gate)
        a(f"""
        v_and_b32 v21, 7, v0
        v_lshrrev_b32 v20, 3, v0
        v_max_u32 v20, 1, v20
        v_cmp_eq_u32 vcc, 0, v21
        v_cndmask_b32 v20, 0, v20, vcc
        v_add_u32 v20, v20, v0
        v_mul_u32_u24 v20, {TMSTR}, v20
        s_mov_b32 s12, {WS_TM + 128*m}
        """)
        poll(f"L_poll_tm{m}", ["buffer_load_dwordx4 v[16:19], v20, s[48:51], s12 offen sc1"], tags_words([17, 19]), sleep=aslp if agg else 48)
        a("v_sub_u32 v18, v16, v18\nv_subrev_u32 v16, s60, v16")
        allreduce("v_add_u32", [16, 18], [17, 19])
        a("v_ashrrev_i32 v16, 6, v16\nv_lshrrev_b32 v18, 6, v18")
        if m > 1: a("v_subrev_u32 v18, s61, v16")
        a(f"""
        v_readfirstlane_b32 s61, v16
        {f"v_readfirstlane_b32 s{90+m}, v16" if dbg else ""}
        v_cvt_f32_u32 v18, v18
        v_mul_f32 v18, {fhex(mult)}, v18
        """)
        if m > 1 and up:
            a(f"""
            s_mul_i32 s12, s63, {p_m}
            s_lshr_b32 s12, s12, 4
            s_add_u32 s12, s12, s1
            """)
            if ek:
                a(f"""
                s_sub_u32 s12, s12, {e0}
                v_subrev_u32 v19, s12, v16
                v_cvt_f32_i32 v19, v19
                v_mul_f32 v19, {fhex(ek)}, v19
                v_add_f32 v19, 1.0, v19
                v_min_f32 v19, 1.0, v19
                v_max_f32 v19, {fhex(boost)}, v19
                v_mul_f32 v18, v18, v19
                v_cvt_f32_u32 v17, s63
                """)
            else:
                a(f"""
                s_sub_u32 s12, s12, {eth}
                v_mul_f32 v19, {fhex(boost)}, v18
                v_cmp_gt_i32 vcc, s12, v16
                v_cvt_f32_u32 v17, s63
                v_cndmask_b32 v18, v18, v19, vcc
                """)
            a(f"""
            v_mul_f32 v17, {fhex(up2 if m == 2 else (upk if (m == 9 and upk) else up))}, v17
            v_min_f32 v18, v18, v17
            """)
        a(f"""
        v_cvt_u32_f32 v17, v18
        v_mul_u32_u24 v18, {p_m}, v17
        v_lshrrev_b32 v18, 4, v18
        v_sub_u32 v16, v16, v18
        v_readfirstlane_b32 s63, v17
        v_readfirstlane_b32 s1, v16
        v_add_u32 v16, s60, v16
        """)
        if agg:
            a(f"""
            v_mov_b32 v20, v16
            v_mov_b32 v21, {TAG}
            v_mov_b32 v22, v17
            v_mov_b32 v23, {TAG}
            s_mov_b32 s12, {WS_LINE + 1280*m}
            s_mov_b64 exec, 1
            buffer_store_dwordx4 v[20:23], v1, s[48:51], s12 offen sc1
            s_mov_b64 exec, -1
            """)
        line_write(m)
        a(f"L_tmg{m}:")
        if agg and follow: tm_follow(m, gate)
    if pf:
        for hw_, (ptr, nb, n_, key) in enumerate([(P_WO, 4096*1024, 16, 'w'), (P_WG, 512*3584, 7, 'f'), (P_WU, 512*3584, 7, 'f'), (P_WM, 512*6144, 12, 'a')]):
            if key not in pf: continue
            a(f"s_cmp_lg_u32 s7, {hw_}\ns_cbranch_scc1 L_npf{hw_}")
            srd(8, ptr, nb)
            a(f"s_mul_i32 s12, s2, {n_*1024}")
            for i in range(n_):
                a(f"buffer_load_dwordx4 v[{64+4*i}:{67+4*i}], v1, s[8:11], s12 offen offset:{(i&3)*1024}")
                if i & 3 == 3: a("s_add_u32 s12, s12, 0x1000")
                if i >= pfthr - 1: a(f"s_waitcnt vmcnt({pfthr-1})")
            a(f"s_waitcnt vmcnt(0)\nL_npf{hw_}:")
    if 'w' in spf:
        a("s_lshl_b32 s13, s4, 17\ns_lshr_b32 s12, s2, 5\ns_lshl_b32 s12, s12, 14\ns_add_u32 s13, s13, s12\ns_lshl_b32 s12, s7, 12\ns_add_u32 s13, s13, s12")
        sprefetch("L_spw", P_WO, "s13", 8, 512, 512)
    wait_flags("L_wf", F_WF, 16, 4)
    srd(8, P_WO, 0 if 'w' in skip else 4096 * 1024)
    a("s_lshl_b32 s13, s4, 17\ns_lshl_b32 s12, s7, 8\ns_add_u32 s13, s13, s12")
    if late1:
        hooks_ = {hk: lambda: tm_publish(1, 0)}
        if 'g' in spf:
            a(f"""
            s_cmp_eq_u32 s68, 5
            s_cselect_b32 s26, s{P_WG}, s{P_WM}
            s_cselect_b32 s27, s{P_WG+1}, s{P_WM+1}
            s_cselect_b32 s41, 3584, 0
            s_cmp_eq_u32 s68, 2
            s_cselect_b32 s41, 6144, s41
            s_lshl_b32 s40, s41, 7
            s_mul_i32 s40, s40, s7
            s_lshl_b32 s12, s69, 7
            s_add_u32 s40, s40, s12
            """)
            def mk_hook(i):
                def f():
                    if i == hk: tm_publish(1, 0)
                    a(f"s_cmp_eq_u32 s41, 0\ns_cbranch_scc1 L_hp{i}")
                    for _ in range(4): a("s_load_dword s58, s[26:27], s40\ns_add_u32 s40, s40, s41")
                    a(f"L_hp{i}:")
                return f
            hooks_ = {i: mk_hook(i) for i in range(32)}
        dma_wide(32, 10, "s13", thr, hooks=hooks_, pol=wpol, key='s4')
    else:
        dma_wide(32, 10, "s13", thr, hooks=({5: lambda: tm_publish(1, 0), 9 + 6*alag: lambda: tm_gather(1, lagK, 0, 4*f1, 1, False), 5 + 6*(lagK + flag_): lambda: tm_follow(1, lagK)} if agg else {5: lambda: tm_publish(1, 0), 5 + 6*lagK: lambda: tm_gather(1, lagK, 0, 4*f1, 1)}), pol=wpol, key='s4')
    a("s_waitcnt vmcnt(0)")
    tr_wide(64, 4)
    if mk and not late1:
        tm_publish(9, mk)
        tm_gather(9, mk + 1, 4*mk, 4*fk/mk, mk)
    a("s_cmp_lg_u32 s68, 2\ns_cbranch_scc1 L_noA2")
    gemv64(3, "a", thrA, False)
    a("L_noA2:")
    SB, TREG = [10, 11, 12, 13], [4, 5, 6, 14]
    RX, RGA, RGB = 2, 3, 15
    def ffn_cols(dst_tile, dst_sub):
        a(f"""
        v_lshrrev_b32 v{dst_tile}, 4, v0
        v_and_b32 v{dst_sub}, 3, v0
        v_lshl_add_u32 v{dst_tile}, v{dst_tile}, 2, v{dst_sub}
        v_bfe_u32 v{dst_sub}, v0, 2, 2
        """)
    RSF = 128 if contig else 3584
    pieces = list(enumerate(fsplit))
    PN = 32 // len(fsplit)
    def stage_upto(row):
        while pieces and pieces[0][1] < row:
            k, r_ = pieces.pop(0)
            mat, i0 = (k * PN) // 16, (k * PN) % 16
            a(f"s_cmp_lg_u32 s68, 5\ns_cbranch_scc1 L_noffn1{k}")
            srd(8, P_WU if mat else P_WG, 0 if 'f' in skip else 512 * 3584)
            a(f"s_lshl_b32 s13, s69, 7\ns_mul_i32 s12, s7, {128*3584}\ns_add_u32 s13, s13, s12\ns_add_u32 s13, s13, {i0*8*3584}\ns_lshl_b32 s14, s7, 15\ns_add_u32 s14, s14, {0x4000*mat + 1024*i0}")
            if 'f' in spf or ('u' in spf and mat): sprefetch(f"L_spf{k}", P_WU if mat else P_WG, "s13", PN*8, 3584, 128)
            wait_row(f"L_fs{k}", r_)
            dma_mid("s13", "s14", thrF, 3584, n=PN)
            a(f"L_noffn1{k}:")
    FL = flag_ if agg else 0
    stage_upto(lagK + FL)
    tm_gather(1, lagK, 0, 4*f1, 1)
    stage_upto(mk + 1 + FL)
    tm_publish(9, mk)
    tm_gather(9, mk + 1, 4*mk, 4*fk/mk, mk)
    stage_upto(KL + 1)
    if dry: dryrun(2, "s_cmp_ge_u32")
    stamp(7)
    tm_publish(2, KL)
    a("s_cmp_lg_u32 s7, 0\ns_cbranch_scc1 L_nofac")
    wait_flags("L_kd", F_KD, 16, 16)
    q4 = ("quad_perm:[1,0,3,2]", "quad_perm:[2,3,0,1]")
    a(f"""
    v_and_b32 v{TA}, 3, v0
    v_lshlrev_b32 v{TA}, 4, v{TA}
    v_add_u32 v{TA}, {L_FL}, v{TA}
    ds_read_b64 v[24:25], v{TA} offset:{F_ST}
    s_waitcnt lgkmcnt(0)
    v_mov_b32 v28, v24
    """)
    allreduce("v_max_f32", [28], [], rows_only=True, steps=q4)
    a(f"v_sub_f32 v30, v24, v28\nv_mul_f32 v30, {LOG2E}, v30\nv_exp_f32 v30, v30\nv_mul_f32 v30, v25, v30")
    allreduce("v_add_f32", [30], [], rows_only=True, steps=q4)
    a(f"""
    v_mov_b32 v29, {TAG}
    v_mov_b32 v31, {TAG}
    s_lshl_b32 s13, s15, 7
    s_add_u32 s13, s13, {WS_STATS}
    s_lshl_b32 s12, s6, 4
    s_add_u32 s14, s13, s12
    s_xor_b32 s12, s12, 16
    s_add_u32 s13, s13, s12
    s_mov_b64 exec, 1
    buffer_store_dwordx4 v[28:31], v1, s[48:51], s14 offen sc1
    s_mov_b64 exec, -1
    """)
    tm_gather(2, KL + lagV, 4*KL, 4*f2/(KL - mk), KL)
    if agg:
        wait_row("L_stw", KL + 2)
        sfetch("L_poll_st", "s13", 0)
    else:
        a(f"v_mov_b32 v{TB}, 0")
        poll("L_poll_st", [f"buffer_load_dwordx4 v[16:19], v{TB}, s[48:51], s13 offen sc1"], tags_words([17, 19]), sleep=32)
    a(f"""
    v_max_f32 v17, v16, v28
    v_sub_f32 v16, v16, v17
    v_sub_f32 v28, v28, v17
    v_sub_f32 v24, v24, v17
    v_mul_f32 v16, {LOG2E}, v16
    v_mul_f32 v28, {LOG2E}, v28
    v_mul_f32 v24, {LOG2E}, v24
    v_exp_f32 v16, v16
    v_exp_f32 v28, v28
    v_exp_f32 v24, v24
    v_mul_f32 v16, v16, v18
    v_fmac_f32 v16, v28, v30
    v_rcp_f32 v16, v16
    v_mov_b32 v25, 1
    v_mul_f32 v24, v24, v16
    ds_write_b64 v{TA}, v[24:25] offset:{F_FAC}
    """)
    a("L_nofac:")
    def constants():
        a("s_cmp_lt_u32 s68, 4\ns_cbranch_scc1 L_nored2")
        wait_row("L_kd2", KL + 1)
        a("s_cmp_lg_u32 s68, 5\ns_cbranch_scc1 L_noffn2")
        ffn_cols(TA, TB)
        a(f"""
        v_lshlrev_b32 v{TA}, 8, v{TA}
        v_lshl_add_u32 v{TA}, v{TB}, 4, v{TA}
        s_lshl_b32 s12, s7, 6
        s_add_u32 s12, s12, {WS_MOD + 96*256}
        s_add_u32 s13, s12, 0x1000
        s_add_u32 s14, s12, 0x2000
        s_add_u32 s46, s12, 0x3000
        """)
        poll("L_poll_sb", [f"buffer_load_dwordx4 v[{16+4*i}:{19+4*i}], v{TA}, s[48:51], {sr} offen sc1" for i, sr in enumerate(["s12", "s13", "s14", "s46"])],
             tags_words([17 + 2*k for k in range(8)]), sleep=16)
        for k in range(4):
            a(f"v_mov_b32 v{SB[k]}, v{16+2*k}")
            unpack(32, 33, 24 + 2*k)
            a(f"v_add_f32 v32, 1.0, v32\nv_add_f32 v33, 1.0, v33\nv_cvt_pk_bf16_f32 v{TREG[k]}, v32, v33")
        a("L_noffn2:")
        srd(52, P_X, 4096)
        a(f"""
        v_bfe_u32 v{TA}, v0, 2, 2
        v_and_b32 v{TB}, 3, v0
        v_lshlrev_b32 v{TC}, 5, v{TA}
        v_lshl_add_u32 v{TC}, v{TB}, 1, v{TC}
        s_lshl_b32 s71, s69, 7
        s_lshl_b32 s12, s7, 3
        s_add_u32 s71, s71, s12
        buffer_load_ushort v{RX}, v{TC}, s[52:55], s71 offen
        v_lshlrev_b32 v{TA}, 8, v{TA}
        v_lshrrev_b32 v{TC}, 1, v{TB}
        v_lshl_add_u32 v{TA}, v{TC}, 3, v{TA}
        s_and_b32 s12, s69, 7
        s_lshl_b32 s12, s12, 10
        s_lshl_b32 s13, s7, 4
        s_add_u32 s12, s12, s13
        s_lshr_b32 s13, s69, 3
        s_lshl_b32 s13, s13, 6
        s_add_u32 s12, s12, s13
        s_add_u32 s13, s12, {WS_MOD + 160*256}
        s_add_u32 s12, s12, {WS_MOD + 64*256}
        """)
        poll("L_poll_ga", [f"buffer_load_dwordx2 v[16:17], v{TA}, s[48:51], s12 offen sc1", f"buffer_load_dwordx2 v[18:19], v{TA}, s[48:51], s13 offen sc1"],
             tags_words([17, 19]), sleep=16)
        a(f"v_and_b32 v{TB}, 1, v0\nv_cmp_eq_u32 vcc, 1, v{TB}")
        for k, r in enumerate([RGA, RGB]):
            unpack(24, 25, 16 + 2*k)
            a(f"v_cndmask_b32 v{r}, v24, v25, vcc")
        a(f"v_lshlrev_b32 v{RX}, 16, v{RX}")
        a(f"v_and_b32 v{TA}, 31, v0\nv_lshlrev_b32 v{TA}, 7, v{TA}\ns_mov_b32 s12, {WS_XCC}")
        poll("L_poll_xcc", [f"buffer_load_dwordx2 v[16:17], v{TA}, s[48:51], s12 offen sc1"], tags_words([17]), sleep=16)
        a(f"v_cmp_eq_u32 vcc, s62, v16\ns_cmp_eq_u64 vcc, exec\ns_cselect_b32 s44, {1 if fast else 0}, 0")
        a("L_nored2:")
    done_c = []
    def maybe_constants():
        if not pieces and not done_c:
            done_c.append(1); constants()
    prevp = 4 * KL
    def milestones(lst):
        nonlocal prevp
        for i, mv in lst:
            p_ = 4 * (KL + mv) + E // 4
            stage_upto(KL + mv + lag3 + FL); maybe_constants()
            tm_publish(3 + i, KL + mv)
            tm_gather(3 + i, KL + mv + lag3, p_, 16 * f3 / (p_ - prevp), KL + mv)
            prevp = p_
    MS = list(enumerate(ms))
    if touchp:
        wait_row("L_tchp", KL + touchp)
        a(f"""
        s_lshl_b32 s12, s15, 1
        s_add_u32 s12, s12, s6
        s_lshl_b32 s12, s12, 11
        s_lshl_b32 s13, s7, 9
        s_add_u32 s12, s12, s13
        s_add_u32 s12, s12, {WS_PART1}
        s_mov_b32 exec_hi, 0
        buffer_load_dwordx4 v[24:27], v1, s[48:51], s12 offen sc1
        s_mov_b64 exec, -1
        s_waitcnt vmcnt(0)
        """)
    milestones([x for x in MS if x[1] + lag3 + (flag_ if agg else 0) <= touch])
    stage_upto(99); maybe_constants()
    if touch:
        a("s_cmp_lt_u32 s68, 4\ns_cbranch_scc1 L_notouch")
        wait_row("L_tch", KL + touch)
        a(f"""
        v_lshrrev_b32 v{TA}, 2, v0
        v_and_b32 v{TB}, 3, v0
        v_lshlrev_b32 v{TC}, 13, v{TA}
        v_lshl_add_u32 v{TC}, v{TB}, 4, v{TC}
        v_lshlrev_b32 v{TA}, 11, v{TA}
        v_lshl_add_u32 v{TA}, v{TB}, 4, v{TA}
        s_lshl_b32 s12, s7, 11
        s_add_u32 s12, s12, {WS_X1}
        buffer_load_dwordx4 v[16:19], v1, s[48:51], s12 offen sc1
        buffer_load_dwordx4 v[20:23], v1, s[48:51], s12 offen offset:1024 sc1
        s_lshl_b32 s12, s69, 8
        s_lshl_b32 s13, s7, 6
        s_add_u32 s12, s12, s13
        s_add_u32 s12, s12, {WS_PART2}
        s_add_u32 s13, s12, 0x20000
        buffer_load_dwordx4 v[24:27], v{TC}, s[48:51], s12 offen sc1
        buffer_load_dwordx4 v[28:31], v{TC}, s[48:51], s13 offen sc1
        """)
        if otouch:
            srd(52, P_OUT, 4096)
            a("buffer_load_ushort v32, v0, s[52:55], s71 offen")
        if touch1:
            a(f"""
            s_and_b32 s12, s69, 7
            s_lshl_b32 s12, s12, 8
            s_lshl_b32 s13, s7, 6
            s_add_u32 s12, s12, s13
            s_lshr_b32 s13, s69, 3
            s_lshl_b32 s13, s13, 17
            s_add_u32 s12, s12, s13
            s_add_u32 s12, s12, {WS_PART1}
            """)
            for i in range(4):
                a(f"buffer_load_dwordx4 v[{32+4*i}:{35+4*i}], v{TA}, s[48:51], s12 offen sc1\ns_add_u32 s12, s12, 0x8000")
        a("s_waitcnt vmcnt(0)\nL_notouch:")
    milestones([x for x in MS if x[1] + lag3 + (flag_ if agg else 0) > touch])
    AF, DD = 16, 32
    bn = {"n": 0}
    def barrier():
        if not dry: a("s_barrier"); return
        bn["n"] += 1
        a(f"s_cmp_eq_u32 s0, 1\ns_cbranch_scc1 L_nb{bn['n']}\ns_barrier\nL_nb{bn['n']}:")
    a(f"""
    L_tail0:
    s_mov_b64 exec, -1
    s_waitcnt vmcnt(0) lgkmcnt(0)
    v_bfe_u32 v{TB}, v0, 1, 2
    v_mul_u32_u24 v{TB}, {OP_STRIDE}, v{TB}
    v_lshrrev_b32 v{TA}, 4, v0
    v_lshl_add_u32 v{TB}, v{TA}, 4, v{TB}
    v_and_b32 v{TA}, 1, v0
    v_lshl_add_u32 v{TB}, v{TA}, 7, v{TB}
    v_add_u32 v{TB}, {L_OP}, v{TB}
    v_mul_u32_u24 v{TA}, 0xaaaa, v{TA}
    v_add_u32 v{TA}, 0x4444, v{TA}
    s_lshl_b32 s12, s15, 1
    s_add_u32 s12, s12, s6
    s_lshl_b32 s12, s12, 11
    s_lshl_b32 s13, s7, 9
    s_add_u32 s12, s12, s13
    s_add_u32 s12, s12, {WS_PART1}
    s_and_b32 s18, {TAG}, 0xff
    s_bfe_u32 s19, {TAG}, 0x80008
    s_bfe_u32 s20, {TAG}, 0x80010
    s_lshr_b32 s21, {TAG}, 24
    v_mov_b32 v{TC}, 0xffffff00
    """)
    for i in range(32): a(f"v_mov_b32 v{DD+i}, 0")
    P1V = 28
    a(f"""
    v_lshrrev_b32 v{P1V}, 2, v0
    v_and_b32 v{P1V+1}, 3, v0
    v_lshlrev_b32 v{P1V}, 11, v{P1V}
    v_lshl_add_u32 v{P1V}, v{P1V+1}, 4, v{P1V}
    s_and_b32 s26, s69, 7
    s_lshl_b32 s26, s26, 8
    s_lshl_b32 s13, s7, 6
    s_add_u32 s26, s26, s13
    s_lshr_b32 s13, s69, 3
    s_lshl_b32 s14, s13, 11
    s_add_u32 s22, s26, s14
    s_lshl_b32 s13, s13, 17
    s_add_u32 s26, s26, s13
    s_add_u32 s26, s26, {WS_PART1}
    s_add_u32 s27, s26, 0x8000
    s_add_u32 s14, s26, 0x10000
    s_add_u32 s67, s26, 0x18000
    s_add_u32 s23, s22, {WS_X1}
    """)
    P1S = ["s26", "s27", "s14", "s67"]
    if p1q:
        a(f"""
        s_bfe_u32 s26, s69, 0x20001
        s_lshl_b32 s26, s26, 9
        s_and_b32 s27, s69, 1
        s_lshl_b32 s27, s27, 6
        s_add_u32 s26, s26, s27
        s_lshl_b32 s27, s7, 15
        s_add_u32 s26, s26, s27
        s_add_u32 s26, s26, s13
        s_add_u32 s26, s26, {WS_PART1}
        """)
        P1S = ["s26"]
    stamp(8)
    barrier()
    if dbg: a("s_memrealtime s[96:97]")
    stamp(9)
    for s in range(2): a(f"ds_read_b128 v[{AF+4*s}:{AF+4*s+3}], v{TB} offset:{64*s}")
    a("s_waitcnt lgkmcnt(0)")
    def smf(d, af, b, ix): a(f"v_smfmac_f32_16x16x64_bf16 v[{d}:{d+3}], v[{af}:{af+3}], v[{b}:{b+7}], v{ix}")
    order = [0, 4, 1, 5, 2, 6, 3, 7]
    OQ = 24
    work = []
    def fin(t):
        d = DD + 4*t
        w_ = [f"v_pk_add_f32 v[{d}:{d+1}], v[{d}:{d+1}], v[{d+2}:{d+3}]", f"v_add_f32 v{d}, v{d}, v{d+1}"]
        return w_
    def fin2(k):
        x, y = DD + 4*k, DD + 4*(k+4)
        return [f"v_permlane16_swap_b32 v{x}, v{y}", f"v_add_f32 v{OQ+k}, v{x}, v{y}", f"v_and_or_b32 v{OQ+k}, v{OQ+k}, v{TC}, s{18+k}"]
    for i, t in enumerate(order):
        if i >= 3: work += fin(order[i-3])
        if i >= 5 and (i - 5) % 2 == 0: work += fin2((i - 5) // 2)
        for sx in range(2):
            smf(DD + 4*t, AF + 4*sx, 64 + (t*4 + 2*sx)*4, TA)
            for _ in range(2):
                if work: a(work.pop(0))
    work += fin(order[5]) + fin(order[6]) + fin2(2) + fin(order[7]) + fin2(3)
    for w_ in work: a(w_)
    if p1q: a("s_mov_b32 exec_lo, 0xff")
    a(f"s_mov_b32 exec_hi, 0\nbuffer_store_dwordx4 v[{OQ}:{OQ+3}], v1, s[48:51], s12 offen sc1\ns_mov_b64 exec, -1")
    stamp(10)
    a("s_cmp_lt_u32 s68, 4\ns_cbranch_scc1 L_hend")
    if p1first:
        stamp(4)
        for i, sr in enumerate(P1S): a(f"buffer_load_dwordx4 v[{32+4*i}:{35+4*i}], v{P1V}, s[48:51], {sr} offen sc1")
    a("s_cmp_lg_u32 s68, 5\ns_cbranch_scc1 L_noffn3")
    SC8, SH8 = 48, 56
    HW_, HF_, GF_, GW_, PO_, MS_ = 10, 11, 12, 13, 4, 5
    mid_bases()
    tr_mid(64, 0)
    tr_mid(128, 0x4000)
    for k in range(4): unpack(SC8 + 2*k, SC8 + 2*k + 1, TREG[k])
    for k in range(4): unpack(SH8 + 2*k, SH8 + 2*k + 1, SB[k])
    IX_ = 6
    act_addr(HF_, "hi", TB)
    ffn_cols(TA, TB)
    a(f"""
    v_lshlrev_b32 v{HW_}, 4, v{TA}
    v_lshl_add_u32 v{HW_}, v{TB}, 2, v{HW_}
    s_mul_i32 s13, s7, {ACT_STRIDE}
    s_add_u32 s13, s13, {L_ACT}
    v_add_u32 v{HW_}, s13, v{HW_}
    v_mul_u32_u24 v{GF_}, {GB_STRIDE}, v{TB}
    v_lshlrev_b32 v{GW_}, 2, v{TB}
    v_and_b32 v{IX_}, 1, v0
    v_lshl_add_u32 v{HF_}, v{IX_}, 9, v{HF_}
    v_lshl_add_u32 v{GF_}, v{IX_}, 6, v{GF_}
    v_lshl_add_u32 v{GW_}, v{IX_}, 1, v{GW_}
    v_mul_u32_u24 v{IX_}, 0xaaaa, v{IX_}
    v_add_u32 v{IX_}, 0x4444, v{IX_}
    v_bfe_u32 v{TB}, v0, 1, 1
    v_lshl_add_u32 v{GW_}, v{TB}, 6, v{GW_}
    v_lshrrev_b32 v{TB}, 4, v0
    v_lshl_add_u32 v{GF_}, v{TB}, 4, v{GF_}
    v_add_u32 v{GF_}, {L_GB}, v{GF_}
    v_mul_u32_u24 v{TA}, {GB_STRIDE}, v{TB}
    s_lshl_b32 s13, s7, 4
    s_add_u32 s13, s13, {L_GB}
    v_add3_u32 v{GW_}, v{GW_}, v{TA}, s13
    v_and_b32 v{TA}, 15, v0
    v_lshlrev_b32 v{TB}, 11, v{TB}
    v_lshl_add_u32 v{PO_}, v{TA}, 4, v{TB}
    v_mov_b32 v{MS_}, 0xffffff00
    """)
    a("L_noffn3:")
    a(f"""
    v_lshrrev_b32 v{TC}, 2, v0
    v_and_b32 v{TB}, 3, v0
    v_lshlrev_b32 v{TC}, 13, v{TC}
    v_lshl_add_u32 v{TC}, v{TB}, 4, v{TC}
    v_lshlrev_b32 v{TB}, 2, v0
    v_mov_b32 v{TA}, v{P1V}
    """)
    if pwait: a(f"s_sleep {pwait}")
    if not p1first: stamp(4)
    spin_begin()
    if p1first: a("s_branch L_poll_p1w")
    a("L_poll_p1:")
    spin_check()
    for i, sr in enumerate(P1S): a(f"buffer_load_dwordx4 v[{32+4*i}:{35+4*i}], v{TA}, s[48:51], {sr} offen sc1")
    a("L_poll_p1w:")
    tags_bytes(len(P1S), 44 if p1q else 32)()
    a("s_cmp_eq_u64 vcc, exec\ns_cbranch_scc0 L_poll_p1")
    stamp(11)
    if diag: a("s_mov_b32 s82, s70")
    def colsum(n):
        st_ = 1
        while st_ < n:
            for i in range(0, n, 2*st_):
                for k in (0, 2): pk("add", 16+4*i+k, 16+4*i+k, 16+4*(i+st_)+k)
            st_ *= 2
        a("""
        v_add_f32_dpp v20, v16, v16 row_ror:8 row_mask:0xf bank_mask:0x3
        v_add_f32_dpp v21, v17, v17 row_ror:8 row_mask:0xf bank_mask:0x3
        v_add_f32_dpp v20, v18, v18 row_ror:8 row_mask:0xf bank_mask:0xc
        v_add_f32_dpp v21, v19, v19 row_ror:8 row_mask:0xf bank_mask:0xc
        v_add_f32_dpp v16, v20, v20 row_shl:4 row_mask:0xf bank_mask:0x5
        v_add_f32_dpp v16, v21, v21 row_shr:4 row_mask:0xf bank_mask:0xa
        """)
        allreduce("v_add_f32", [16], [17], steps=())
    def resid(gate):
        bf16r(16, 16)
        a(f"v_mul_f32 v16, v16, v{gate}")
        bf16r(16, 16)
        a(f"v_add_f32 v16, v16, v{RX}")
    colsum(4)
    resid(RGA)
    a(f"""
    v_mov_b32 v41, {TAG}
    v_mov_b32 v43, {TAG}
    v_mov_b32_dpp v17, v16 quad_perm:[1,1,1,1] {FULL}
    v_mov_b32_dpp v18, v16 quad_perm:[2,2,2,2] {FULL}
    v_mov_b32_dpp v19, v16 quad_perm:[3,3,3,3] {FULL}
    v_cvt_pk_bf16_f32 v40, v16, v17
    v_cvt_pk_bf16_f32 v42, v18, v19
    s_mov_b64 exec, 0x1111
    """)
    def hstore(lbl, stores):
        a(f"s_cmp_eq_u32 s44, 1\ns_cbranch_scc0 {lbl}_s")
        for st_ in stores: a(f"{st_} {fpol}")
        a(f"s_branch {lbl}_e\n{lbl}_s:")
        for st_ in stores: a(f"{st_} sc1")
        a(f"{lbl}_e:")
    hstore("L_sx1", [f"buffer_store_dwordx4 v[40:43], v{TB}, s[48:51], s23 offen"])
    a("s_mov_b64 exec, -1")
    stamp(12)
    bf16r(RX, 16)
    a("s_cmp_lg_u32 s68, 5\ns_cbranch_scc1 L_red2")
    a(f"""
    s_lshl_b32 s12, s7, 11
    s_add_u32 s12, s12, {WS_X1}
    s_lshl_b32 s13, s69, 13
    s_lshl_b32 s14, s7, 9
    s_add_u32 s13, s13, s14
    s_add_u32 s23, s13, {WS_PART2}
    """)
    poll("L_poll_x1", ["buffer_load_dwordx4 v[16:19], v1, s[48:51], s12 offen sc1", "buffer_load_dwordx4 v[20:23], v1, s[48:51], s12 offen offset:1024 sc1"],
         tags_xor([17, 19, 21, 23], 24))
    stamp(1)
    X2, S2 = 24, 32
    for k in range(4): unpack(X2 + 2*k, X2 + 2*k + 1, 16 + 2*k)
    ln_norm(X2, S2)
    ln_affine(X2, SC8, SH8, 16)
    G, U, GT = 56, 60, 14
    a(f"ds_write2_b32 v{HW_}, v16, v17 offset0:0 offset1:128\nds_write2_b32 v{HW_}, v18, v19 offset0:64 offset1:192")
    for i in range(8): a(f"v_mov_b32 v{G+i}, 0")
    a("s_waitcnt lgkmcnt(0)")
    barrier()
    for k in range(8): a(f"ds_read_b128 v[{16+4*k}:{19+4*k}], v{HF_} offset:{k*64}")
    for k in range(8):
        a(f"s_waitcnt lgkmcnt({7-k})")
        smf(G, 16 + 4*k, 64 + 8*k, IX_)
    DZ = 64
    gelu = [f"v_add_f32 v{G}, v{G}, v{G+1}", f"v_cvt_pk_bf16_f32 v{G}, 0, v{G}", f"v_mul_f32 v{GT}, v{G}, v{G}", f"v_mul_f32 v{GT}, 0x3d372713, v{GT}",
            f"v_fma_f32 v{GT}, v{GT}, v{G}, v{G}", f"v_mul_f32 v{GT}, 0x40135761, v{GT}", f"v_exp_f32 v{GT}, -v{GT}",
            f"v_add_f32 v{GT}, 1.0, v{GT}", f"v_rcp_f32 v{GT}, v{GT}", f"v_mul_f32 v{GT}, v{GT}, v{G}", f"v_cvt_pk_bf16_f32 v{GT}, 0, v{GT}"]
    zero = [f"v_mov_b32 v{DZ+4*t+r}, 0" for t in range(8) for r in range(2)]
    for k in range(8):
        smf(U, 16 + 4*k, 128 + 8*k, IX_)
        if k < 3:
            for _ in range(2): a(zero.pop(0))
        else:
            a(gelu.pop(0)); a(gelu.pop(0))
    while gelu: a(gelu.pop(0))
    a(f"v_add_f32 v{U}, v{U}, v{U+1}")
    bf16r(U, U)
    a(f"""
    v_mul_f32 v{GT}, v{GT}, v{U}
    v_cvt_pk_bf16_f32 v{GT}, v{GT}, v{GT}
    ds_write_b16 v{GW_}, v{GT}
    """)
    while zero: a(zero.pop(0))
    if epearly:
        a(f"""
        s_or_b32 s12, s2, s7
        s_cbranch_scc1 L_noep
        s_mov_b64 exec, 1
        v_mov_b32 v17, {TAG}
        buffer_store_dword v17, v1, s[48:51], 0 offen sc1
        s_mov_b64 exec, -1
        L_noep:
        """)
    a("s_waitcnt lgkmcnt(0)")
    barrier()
    a(f"""
    ds_read_b128 v[{AF}:{AF+3}], v{GF_}
    s_waitcnt lgkmcnt(0)
    """)
    assert not zero
    fw = []
    for t in range(8):
        smf(DZ + 4*t, AF, 192 + 8*t, IX_)
        if t >= 4:
            tt = t - 4
            a(f"v_add_f32 v{24+tt}, v{DZ+4*tt}, v{DZ+4*tt+1}")
            a(f"v_and_or_b32 v{24+tt}, v{24+tt}, v{MS_}, s{18+(tt&3)}")
    for tt in range(4, 8):
        a(f"v_add_f32 v{24+tt}, v{DZ+4*tt}, v{DZ+4*tt+1}")
        a(f"v_and_or_b32 v{24+tt}, v{24+tt}, v{MS_}, s{18+(tt&3)}")
    hstore("L_sp2", [f"buffer_store_dwordx4 v[{24+4*g}:{27+4*g}], v{PO_}, s[48:51], s23 offen offset:{256*g}" for g in range(2)])
    stamp(2)
    a("L_red2:")
    a(f"""
    s_add_u32 s12, s22, {WS_PART2}
    s_add_u32 s13, s12, 0x20000
    v_mov_b32 v36, s18
    v_mov_b32 v37, s19
    v_mov_b32 v38, s20
    v_mov_b32 v39, s21
    v_bfe_u32 v{TA}, v0, 2, 2
    v_and_b32 v{TB}, 3, v0
    v_lshlrev_b32 v{TA}, 5, v{TA}
    v_lshl_add_u32 v{TA}, v{TB}, 1, v{TA}
    """)
    srd(52, P_OUT, 4096)
    if dry: a("s_cmp_eq_u32 s0, 1\ns_cselect_b32 s54, 0, s54")
    poll("L_poll_p2", [f"buffer_load_dwordx4 v[32:35], v{TC}, s[48:51], s12 offen sc1", "s_mov_b32 exec_hi, 0xffff",
                       f"buffer_load_dwordx4 v[36:39], v{TC}, s[48:51], s13 offen sc1"],
         tags_bytes(2, 44), post="s_mov_b64 exec, -1")
    stamp(13)
    colsum(2)
    resid(RGB)
    a(f"""
    v_cvt_pk_bf16_f32 v16, v16, v16
    s_mov_b64 exec, 0xffff
    buffer_store_short v16, v{TA}, s[52:55], s71 offen {opol}
    """)
    if not epearly or dbg or pad:
        a(f"""
        s_or_b32 s12, s2, s7
        s_cbranch_scc1 L_hend
        s_mov_b64 exec, 1
        v_mov_b32 v17, {TAG}
        v_mov_b32 v18, 0
        buffer_store_dword v17, v18, s[48:51], 0 offen sc1
        """)
    if dbg:
        a("s_cmp_eq_u32 s0, 1\ns_cbranch_scc1 L_hend\ns_memrealtime s[94:95]\ns_waitcnt lgkmcnt(0)\ns_sub_u32 s94, s94, s60\ns_sub_u32 s96, s96, s60\ns_sub_u32 s98, s98, s60")
        srd(8, 40, 256)
        for i, r in enumerate([98, 91, 92, 93, 96, 94]):
            a(f"v_mov_b32 v17, s{r}\nbuffer_store_dword v17, v18, s[8:11], 0 offen offset:{4*i}")
    if pad:
        a(f"s_cmp_eq_u32 s0, 1\ns_cbranch_scc1 L_hend\nL_pad:\ns_memrealtime s[94:95]\ns_waitcnt lgkmcnt(0)\ns_sub_u32 s94, s94, s60\ns_cmp_lt_u32 s94, {pad}\ns_cbranch_scc1 L_pad")
    a("L_hend:")
    if dry: a("s_cmp_eq_u32 s0, 1\ns_cbranch_scc0 L_fin\ns_cmp_ge_u32 s68, 4\ns_cbranch_scc1 L_afterdry1\ns_branch L_afterdry2\nL_fin:")
    stamp(14)
    if diag:
        a(f"""
        s_mov_b64 exec, -1
        v_lshlrev_b32 v1, 4, v0
        v_add_u32 v20, {L_FL+F_TT}, v1
        s_mov_b32 exec_hi, 0
        ds_read_b128 v[16:19], v20
        s_lshl_b32 s12, s2, 9
        s_add_u32 s12, s12, {WS_DBG + 0x40000}
        s_waitcnt lgkmcnt(0)
        buffer_store_dwordx4 v[16:19], v1, s[48:51], s12 offen
        """)
    dump_stamps(15)
    a("L_end:")
    a("s_endpgm")
    a('.section .rodata,"a"')
    a(".p2align 6")
    a(f".amdhsa_kernel {NAME}_kernel")
    a("""
    .amdhsa_next_free_vgpr 256
    .amdhsa_next_free_sgpr 102
    .amdhsa_accum_offset 256
    .amdhsa_group_segment_fixed_size 0
    .amdhsa_kernarg_size 112
    .amdhsa_user_sgpr_count 2
    .amdhsa_user_sgpr_kernarg_segment_ptr 1
    .amdhsa_system_sgpr_workgroup_id_x 1
    .amdhsa_float_denorm_mode_32 3
    .end_amdhsa_kernel
    """)
    return out + a.text()

if __name__ == "__main__":
    kw = eval("dict(" + (sys.argv[2] if len(sys.argv) > 2 else "") + ")")
    open(sys.argv[1], "w").write(gen(**kw))
```

```python
import sys
from asmlib import Asm

NAME = "adaLN_cond__mha_block_cached__geglu_ffn__decode"
WS_MOD = 0x1000
WS_Q = 0x10000
WS_STATS = 0x20000
WS_X1 = 0x28000
WS_PART2 = 0x40000
WS_PART1 = 0x80000
WS_FAST = 0
WS_XCC = 0x30000
WS_LINE = 0x34000
AGG = 255
WS_TM, TMSTR = 0x280000, 4352
WS_DBG, WS_SIZE = 0x200000, 0x400000
L_W, L_ACT, L_Q, L_OP, L_GB, L_FL = 0, 0x20000, 0x21200, 0x21400, 0x21A00, 0x21E00
ACT_STRIDE, OP_STRIDE, GB_STRIDE = 1088, 320, 192
LDS_BYTES = 0x22200
F_FAC, F_KD, F_WF, F_WQ, F_WQD, F_H, F_G1, F_G2, F_ST, F_TT = 0, 64, 80, 96, 112, 128, 144, 160, 192, 256
NFFN = 28
SPIN_MAX = 1 << 20
P_X, P_K, P_V, P_WQ, P_WO, P_WG, P_WU, P_WD, P_C, P_WM, P_OUT, P_WS = 16, 18, 20, 22, 24, 28, 30, 32, 34, 36, 38, 42
TAG = "s45"
LOG2E, SCALE, HIMASK = "s64", "s65", "s66"


DOC = """;
;    The two workgroups of a head take alternate 32 KB blocks, so they work in the same DRAM pages.
;    the partner workgroup, output projection, and (workgroups with id % 8 == 0) reduction, LayerNorm, GEGLU FFN.
;  * load balance: every streamer compares its progress with a pace line averaged over a sample of workgroups
;    and picks how many loads it keeps in flight for the next 16 KB (4..8), so that all CUs finish together.
;  * sleeps appear only as back-off inside polling loops; every polling loop is bounded.
"""

def gen(D=5, A=8, E=4, P=48, PL=32, DP=5, D2=7, NE=1, thr=3, thrA=16, thrF=16, late1=True, hk=8, upk=None, up2=1.0, thrQ=4, thrD=3, slp=16, diag=False,
        levels=((4,-70),(4.5,-20),(5,40),(6,110),(8,None)), f1=0.147, f2=0.965, f3=0.985, ms=(3, 7, 11), lagK=2, lagV=1, lag3=1, early=30, D0=None, N0=0, gq=40, gm=20,
        kctl=True, fast=True, fpol='', touch=10, touch1=False, touchp=0, pwait=0, contig=False, mk=5, fk=0.97, nb0=8, mpoll=False, trlate=False, ilv=0, perm='w0 w1 t2 h t3', perm7=None, front=False, stouch=False, j2=True, frontw=True, diag2=False, fa_at=13, wpol='nt', noround=0, endat=99, endD=7, endbias=0, fin=7, epearly=True, opol='', otouch=False, p1first=False, p1q=False, wsh=0, psw=80, rotw=None, rotm=None, pf='', pfthr=16, xp=0, xb=None, sym=False, agg=True, aslp=24, alag=1, flag_=1, J=140, up=1.03, eth=45, boost=0.92, ek=0.0011, e0=10, fsplit=(2, 6), spf='w', sgran=128, tsh=1, nojT=True, dry=True, lastctl=True, tlb=True, dbg=False, pad=0, l2warm=True, skip=''):
    a = Asm()
    def stamp(k):
        if diag: a(f"s_memrealtime s[{72+2*k}:{73+2*k}]")
    def srd(reg, ptr, nbytes):
        a(f"s_mov_b32 s{reg}, s{ptr}\ns_mov_b32 s{reg+1}, s{ptr+1}\ns_mov_b32 s{reg+2}, {nbytes}\ns_mov_b32 s{reg+3}, 0x20000")
    def dump_stamps(n):
        if not diag: return
        a("s_waitcnt lgkmcnt(0)")
        a("s_mov_b64 exec, 1")
        a("s_lshl_b32 s46, s2, 3\ns_add_u32 s46, s46, s3\ns_lshl_b32 s46, s46, 6")
        a(f"s_add_u32 s46, s46, {WS_DBG}")
        a("v_mov_b32 v1, 0")
        for k in range(n):
            a(f"v_mov_b32 v2, s{72+2*k}")
            a(f"buffer_store_dword v2, v1, s[48:51], s46 offen offset:{4*k}")
    FULL = "row_mask:0xf bank_mask:0xf"
    def allreduce(op, rs, tmps, rows_only=False, steps=("quad_perm:[1,0,3,2]", "quad_perm:[2,3,0,1]", "row_half_mirror", "row_mirror")):
        for st in steps:
            for r in rs: a(f"{op}_dpp v{r}, v{r}, v{r} {st} {FULL}")
        if rows_only: return
        for sw in ("v_permlane16_swap_b32", "v_permlane32_swap_b32"):
            for r, t in zip(rs, tmps): a(f"v_mov_b32 v{t}, v{r}")
            for r, t in zip(rs, tmps): a(f"{sw} v{r}, v{t}")
            for r, t in zip(rs, tmps): a(f"{op} v{r}, v{r}, v{t}")
    def bf16r(d, s):
        a(f"v_cvt_pk_bf16_f32 v{d}, 0, v{s}")
    def bf16r2(lo, hi, t):
        a(f"v_cvt_pk_bf16_f32 v{t}, v{lo}, v{hi}\nv_lshlrev_b32 v{lo}, 16, v{t}\nv_and_b32 v{hi}, {HIMASK}, v{t}")
    def unpack(lo, hi, s):
        a(f"v_lshlrev_b32 v{lo}, 16, v{s}\nv_and_b32 v{hi}, {HIMASK}, v{s}")
    def spin_begin(): a("s_mov_b32 s70, 0")
    def spin_check(): a(f"s_add_u32 s70, s70, 1\ns_cmp_gt_u32 s70, {SPIN_MAX}\ns_cbranch_scc1 L_end")
    MKTAG = "s_mul_i32 s45, s44, 1664525\ns_add_u32 s45, s45, 1013904223"
    BAR0 = "s_load_dword s44, s[42:43], 0\ns_barrier"
    def set_flag(row, widx, va, vb):
        a(f"s_lshl_b32 s47, {widx}, 2\ns_add_u32 s47, s47, {L_FL+row}\nv_mov_b32 v{va}, s47\nv_mov_b32 v{vb}, 1\nds_write_b32 v{va}, v{vb}")
    def wait_flags(lbl, row, t, sleep):
        spin_begin()
        a(f"v_mov_b32 v{t+4}, {L_FL+row}")
        a(f"{lbl}:")
        spin_check()
        if sleep: a(f"s_sleep {sleep}")
        a(f"""
        ds_read_b128 v[{t}:{t+3}], v{t+4}
        s_waitcnt lgkmcnt(0)
        v_and_b32 v{t}, v{t}, v{t+1}
        v_and_b32 v{t+2}, v{t+2}, v{t+3}
        v_and_b32 v{t}, v{t}, v{t+2}
        v_readfirstlane_b32 s47, v{t}
        s_cmp_eq_u32 s47, 1
        s_cbranch_scc0 {lbl}
        """)

    hdr = open("cdna_kernels/" + NAME + ".s.ref").read().split("; Override launch")[0]
    out = hdr + f"; @launch grid=(256,1,1) block=(512,1,1) lds={LDS_BYTES}\n" + DOC
    a('.amdgcn_target "amdgcn-amd-amdhsa--gfx950"')
    a(".text")
    a(f".globl {NAME}_kernel")
    a(".p2align 8")
    a(f".type {NAME}_kernel,@function")
    a(f"{NAME}_kernel:")
    a("""
    s_cmp_ge_u32 s2, 256
    s_cbranch_scc1 L_end
    s_load_dwordx16 s[16:31], s[0:1], 0
    s_load_dwordx8 s[32:39], s[0:1], 64
    s_load_dwordx4 s[40:43], s[0:1], 96
    """)
    if diag:
        for k in range(1, 15): a(f"s_mov_b32 s{72+2*k}, 0")
    stamp(0)
    a("""
    v_lshrrev_b32 v1, 6, v0
    v_and_b32 v0, 63, v0
    v_readfirstlane_b32 s3, v1
    v_lshlrev_b32 v1, 4, v0
    s_lshr_b32 s12, s2, 3
    s_and_b32 s4, s12, 3
    s_lshl_b32 s4, s4, 3
    s_and_b32 s13, s2, 7
    s_add_u32 s4, s4, s13
    s_bfe_u32 s5, s12, 0x20002
    s_lshr_b32 s6, s12, 4
    s_mov_b32 s64, 0x3fb8aa3b
    s_mov_b32 s65, 0x3db504f3
    s_mov_b32 s66, 0xffff0000
    s_lshl_b32 s15, s5, 5
    s_add_u32 s15, s15, s4
    s_cmp_ge_u32 s3, 4
    s_cbranch_scc1 L_helper
    """)

    PB = {sym: 12 + i for i, sym in enumerate(perm.split())} if perm else {'w0': 12, 'w1': 13, 't2': 14, 't3': 15, 'h': 20}
    if perm7: PB = {sym: 10 + i for i, sym in enumerate(perm7.split())}
    def noff(n): return sum(((n >> k) & 1) << PB[f"t{k}"] for k in range(4)) + ((n >> 4) << 17)
    def goff(g): return ((g & 1) << PB['t2']) + (((g >> 1) & 1) << PB['t3']) + ((g >> 2) << ((17 + xp) if perm else 16))
    Q, MK, BB, ACC, PT, XX, YY, T0, T1, SC, RING = 2, 6, 10, 14, 18, 34, 42, 46, 47, 48, 64
    if xb is not None:
        xp = 1
        a(f"""
        s_andn2_b32 s13, s15, {1 << xb}
        s_lshl_b32 s13, s13, 21
        s_bfe_u32 s14, s15, {0x10000 + xb}
        s_lshl_b32 s14, s14, 17
        s_add_u32 s13, s13, s14
        s_mov_b32 s67, 0
        """)
    elif xp:
        a(f"""
        s_lshr_b32 s13, s5, {xp}
        s_lshl_b32 s13, s13, 5
        s_add_u32 s13, s13, s4
        s_lshl_b32 s13, s13, {21 + xp}
        s_and_b32 s14, s5, {(1 << xp) - 1}
        s_lshl_b32 s14, s14, 17
        s_add_u32 s13, s13, s14
        """)
    else: a("s_lshl_b32 s13, s15, 21")
    a(f"""
    s_lshl_b32 s14, s6, {PB['h']}
    s_add_u32 s13, s13, s14
    s_and_b32 s14, s3, 1
    s_lshl_b32 s14, s14, {PB['w0']}
    s_add_u32 s13, s13, s14
    s_lshr_b32 s14, s3, 1
    s_lshl_b32 s14, s14, {PB['w1']}
    s_add_u32 s13, s13, s14
    s_mov_b32 s12, s13
    s_lshl_b32 s14, s3, 15
    s_waitcnt lgkmcnt(0)
    s_mov_b32 s0, 0
    """)
    if diag2: stamp(1)
    srd(8, P_K, 0x10000000)
    st = {"issued": 0, "landed": 0}
    PT_ = P + PL
    assert P % 4 == 0 and PL <= 32
    def ldsoff(n): return ((n - P + 16) % 32) * 1024
    def slot(n):
        if n < P: return RING + 4 * n
        if n < PT_: return RING + 4 * (16 + n - P)
        return RING + 4 * ((n - PT_) % 16)
    def issue(n):
        imm = 0 if perm7 else (n & 3) * 1024
        if P <= n < PT_:
            if n & 3 == 0 or perm7: a(f"s_add_u32 m0, s14, {ldsoff(n)}")
            a(f"buffer_load_dwordx4 v1, s[8:11], s12 offen offset:{imm} nt lds")
        else:
            r = slot(n)
            a(f"buffer_load_dwordx4 v[{r}:{r+3}], v1, s[8:11], s12 offen offset:{imm} nt")
        if perm7: a(f"s_add_u32 s12, s12, {(noff(n + 1) - noff(n)) & 0xffffffff}")
        elif n & 3 == 3: a(f"s_add_u32 s12, s12, {(goff((n >> 2) + 1) - goff(n >> 2)) & 0xffffffff}")
        if xb is not None and n & 15 == 15:
            a(f"s_add_u32 s67, s67, 1\ns_and_b32 s68, s67, 7\ns_cselect_b32 s68, 0, {((1 << (21 + xb)) - (1 << 21))}\ns_add_u32 s12, s12, s68")
        st["issued"] = n + 1
    def throttle(d=None):
        d = d or D
        a(f"s_waitcnt vmcnt({d-1})")
        st["landed"] = max(st["landed"], st["issued"] - (d - 1))
    def ensure(n):
        if n >= st["landed"]:
            k = st["issued"] - 1 - n
            a(f"s_waitcnt vmcnt({k})"); st["landed"] = n + 1
    for n in range(PT_):
        if n == P + 16: wait_flags("L_wqd", F_WQD, PT, 0)
        dd_ = D0 if (D0 and n < N0) else DP
        if n >= dd_: throttle(dd_)
        if diag2 and n == dd_: stamp(2)
        if diag2 and n == 2*dd_: stamp(3)
        if diag2 and n == 20: stamp(5)
        issue(n)
        if n == max(DP, D0 or 0) - 1:
            srd(48, P_WS, WS_SIZE)
            a(f"""
            s_mov_b32 s60, 0xaaaaaaaa
            s_mov_b32 s61, 0xaaaaaaaa
            s_mov_b32 s62, 0xcccccccc
            s_mov_b32 s63, 0xcccccccc
            v_and_b32 v{T0}, 15, v0
            v_and_b32 v{T1}, 1, v0
            v_lshlrev_b32 v{T1}, 4, v{T1}
            v_mov_b32 v{PT}, 0xffff
            v_lshlrev_b32 v{T1}, v{T1}, v{PT}
            v_lshrrev_b32 v{PT}, 1, v{T0}
            """)
            for t in range(4):
                a(f"v_cmp_eq_u32 vcc, {t}, v{PT}\nv_cndmask_b32 v{MK+t}, 0, v{T1}, vcc")
            for t in range(4): a(f"v_mov_b32 v{ACC+t}, 0")
            a(f"v_lshlrev_b32 v{T0}, 4, v{T0}\nv_add_u32 v{T0}, {L_Q}, v{T0}")
        if n == nb0: a("s_barrier")
        if n == gm: set_flag(F_G1, "s3", PT, PT+1)
        if n == gq: set_flag(F_G2, "s3", PT, PT+1)
    if not diag2: stamp(1)
    a("s_barrier")
    if not diag2: stamp(2)
    a(f"ds_read_b128 v[{Q}:{Q+3}], v{T0}\nv_add_u32 v{T0}, s14, v1\ns_waitcnt lgkmcnt(0)")
    def kdots(n):
        r = slot(n); p = PT + n % 16
        a(f"v_dot2_f32_bf16 v{p}, v{r}, v{Q}, 0")
        for i in range(1, 4): a(f"v_dot2_f32_bf16 v{p}, v{r+i}, v{Q+i}, v{p}")
    def kreduce(dst):
        for j in range(8): a(f"v_add_f32_dpp v{XX+j}, v{PT+j}, v{PT+j} row_ror:8 row_mask:0xf bank_mask:0x3")
        for j in range(8): a(f"v_add_f32_dpp v{XX+j}, v{PT+8+j}, v{PT+8+j} row_ror:8 row_mask:0xf bank_mask:0xc")
        for j in range(4): a(f"v_add_f32_dpp v{YY+j}, v{XX+j}, v{XX+j} row_half_mirror row_mask:0xf bank_mask:0x5")
        for j in range(4): a(f"v_add_f32_dpp v{YY+j}, v{XX+4+j}, v{XX+4+j} row_half_mirror row_mask:0xf bank_mask:0xa")
        for j in range(2):
            a(f"v_cndmask_b32 v{XX+2*j}, v{YY+j+2}, v{YY+j}, s[62:63]")
            a(f"v_cndmask_b32 v{XX+2*j+1}, v{YY+j}, v{YY+j+2}, s[62:63]")
        for j in range(2):
            a(f"v_add_f32_dpp v{XX+4+j}, v{XX+2*j}, v{XX+2*j+1} quad_perm:[2,3,0,1] {FULL}")
        a(f"v_cndmask_b32 v{XX}, v{XX+5}, v{XX+4}, s[60:61]")
        a(f"v_cndmask_b32 v{XX+1}, v{XX+4}, v{XX+5}, s[60:61]")
        a(f"v_add_f32_dpp v{XX+2}, v{XX}, v{XX+1} quad_perm:[1,0,3,2] {FULL}")
        if noround < 1: bf16r(XX+2, XX+2)
        a(f"v_mul_f32 v{XX+2}, {SCALE}, v{XX+2}")
        if noround < 2: bf16r(dst, XX+2)
        else: a(f"v_mov_b32 v{dst}, v{XX+2}")
    tgt = -(-(PT_ + 16 - A + 4) // 16) * 16
    NPEEL = tgt // 16
    KL = 16 - NPEEL
    cons = {"n": 0}
    def consume_k_upto(m):
        while cons["n"] < m:
            n = cons["n"]
            if n == P:
                a("s_waitcnt lgkmcnt(0)")
                set_flag(F_WF, "s3", T0, T1)
            ensure(n); kdots(n); cons["n"] += 1
            m2 = n - 16 + P
            if n >= 16 and P <= m2 < PT_:
                ensure(m2)
                r = slot(m2)
                a(f"ds_read_b128 v[{r}:{r+3}], v{T0} offset:{ldsoff(m2)}")
            if n % 16 == 15: kreduce(SC + n // 16 + KL)
    nsteps = tgt + A - PT_
    for s in range(nsteps):
        n = PT_ + s
        prev = s if s < 16 else n - 16
        if s <= 16: want = 1 + -(-PT_ * s // 16)
        else: want = PT_ + 1 + -(-(tgt - PT_ - 1) * (s - 16) // (nsteps - 16))
        want = min(want, max(st["landed"], PT_))
        consume_k_upto(min(max(want, prev + 1), tgt))
        throttle(); issue(n)
    a("s_memrealtime s[52:53]")
    consume_k_upto(tgt)
    FA, FAD, TTA, TTV = 128, 132, 133, 134
    LV = [x[0] for x in levels]
    def ln_(dd): return str(dd).replace(".", "p")
    def dstep(dd, j):
        import math
        return int(math.floor((j + 1) * dd) - math.floor(j * dd))
    a(f"""
    s_mov_b32 s14, 0
    s_mov_b32 s56, 0
    s_mov_b32 s57, 0
    s_mov_b32 s58, 0
    s_mov_b32 s59, 0
    s_mov_b32 s68, {100000 if nojT else J}
    s_and_b32 s69, s2, 7
    s_cselect_b32 s69, {J}, s68
    s_cselect_b32 s71, 0, {tsh}
    s_mov_b32 s67, 0
    s_mov_b32 s68, 0
    s_lshl_b32 s47, s3, 4
    s_add_u32 s47, s47, {L_FL+F_FAC}
    v_mov_b32 v{FAD}, s47
    s_lshl_b32 s47, s3, 2
    s_add_u32 s47, s47, {L_FL+F_TT}
    v_mov_b32 v{TTA}, s47
    v_mov_b32 v{FA+3}, 0
    """)
    def record():
        a(f"""
        s_waitcnt lgkmcnt(0)
        s_or_b32 s53, s52, 1
        v_mov_b32 v{TTV}, s53
        ds_write_b32 v{TTA}, v{TTV}
        v_add_u32 v{TTA}, 16, v{TTA}
        """)
    def dispatch(pre):
        a(f"""
        v_readfirstlane_b32 s55, v{FA+3}
        v_readfirstlane_b32 s54, v{FA+2}
        s_sub_u32 s53, s52, s57
        s_mov_b32 s57, s52
        s_cmp_eq_u32 s55, 0
        s_cbranch_scc1 {pre}{ln_(D)}
        s_sub_u32 s52, s52, s54
        s_lshr_b32 s54, s55, 16
        s_and_b32 s55, s55, 0xffff
        s_lshr_b32 s47, s55, 2
        s_sub_u32 s53, s53, s47
        s_mul_i32 s55, s55, s56
        s_lshr_b32 s55, s55, 4
        s_sub_u32 s52, s52, s55
        s_cmp_gt_i32 s53, s69
        s_cselect_b32 s67, s58, s67
        s_cselect_b32 s68, s59, s68
        s_cselect_b32 s58, s53, s58
        s_cselect_b32 s59, s56, s59
        s_cmp_gt_u32 s59, s54
        s_cselect_b32 s55, s58, 0
        s_sub_u32 s52, s52, s55
        s_cmp_gt_u32 s68, s54
        s_cselect_b32 s55, s67, 0
        s_sub_u32 s52, s52, s55
        """)
        if tsh: a("s_lshl_b32 s52, s52, s71")
        if wsh: a(f"s_cmp_lt_u32 s56, {psw}\ns_cselect_b32 s55, {wsh}, 0\ns_ashr_i32 s52, s52, s55")
        for dd, th in levels:
            if th is None: a(f"s_branch {pre}{ln_(dd)}")
            else: a(f"s_cmp_lt_i32 s52, {th}\ns_cbranch_scc1 {pre}{ln_(dd)}")
    a("; ---- K loop: record progress, choose the prefetch depth, run one 16-tile body")
    a("L_kdisp:")
    record()
    a(f"s_cmp_ge_u32 s14, {KL}\ns_cbranch_scc1 L_kdone")
    if kctl: dispatch("L_k")
    for dd in (LV if kctl else [D]):
        assert dd <= A
        a(f"L_k{ln_(dd)}:")
        for j in range(16):
            n = tgt + j
            if j == fa_at: a(f"ds_read_b128 v[{FA}:{FA+3}], v{FAD}")
            a(f"s_waitcnt vmcnt({dstep(dd, j)-1})")
            if j == 16 - A:
                a(f"s_cmp_eq_u32 s14, {KL-1}\ns_cselect_b32 s8, s{P_V}, s8\ns_cselect_b32 s9, s{P_V+1}, s9\ns_cselect_b32 s12, s13, s12")
            issue(n + A)
            if j == 15: a("s_memrealtime s[52:53]")
            kdots(n)
            if j == 7:
                for i in range(15): a(f"v_mov_b32 v{SC+i}, v{SC+i+1}")
        kreduce(SC + 15)
        a("s_add_u32 s14, s14, 1\ns_add_u32 s56, s56, 4\ns_branch L_kdisp")
    a("L_kdone:")
    a("s_add_u32 s57, s57, 70")
    if not diag2: stamp(3)
    ex = {"n": 256 + A}
    def extra():
        if ex["n"] < 256 + A + E:
            a(f"s_waitcnt vmcnt({D-1})"); issue(ex["n"]); ex["n"] += 1
    extra()
    M, Ls = PT, PT + 1
    a(f"v_max3_f32 v{M}, v{SC}, v{SC+1}, v{SC+2}")
    for i in range(3, 15, 2): a(f"v_max3_f32 v{M}, v{M}, v{SC+i}, v{SC+i+1}")
    a(f"v_max_f32 v{M}, v{M}, v{SC+15}")
    allreduce("v_max_f32", [M], [T0])
    a(f"v_mul_f32 v{T1}, {LOG2E}, v{M}")
    extra()
    for i in range(16): a(f"v_fma_f32 v{SC+i}, v{SC+i}, {LOG2E}, -v{T1}")
    for i in range(16): a(f"v_exp_f32 v{SC+i}, v{SC+i}")
    extra()
    a(f"v_add_f32 v{Ls}, v{SC}, v{SC+1}\nv_add_f32 v{Ls+1}, v{SC+2}, v{SC+3}")
    for i in range(4, 16, 2): a(f"v_add_f32 v{Ls}, v{Ls}, v{SC+i}\nv_add_f32 v{Ls+1}, v{Ls+1}, v{SC+i+1}")
    a(f"v_add_f32 v{Ls}, v{Ls}, v{Ls+1}")
    for i in range(16): a(f"v_cvt_pk_bf16_f32 v{SC+i}, v{SC+i}, v{SC+i}")
    extra()
    allreduce("v_add_f32", [Ls], [T0])
    a(f"ds_write_b64 v{FAD}, v[{M}:{Ls}] offset:{F_ST-F_FAC}")
    set_flag(F_KD, "s3", PT+5, PT+6)
    while ex["n"] < 256 + A + E: extra()
    a("s_memrealtime s[52:53]")
    AV = A + E
    assert AV <= 15
    a(f"""
    v_lshrrev_b32 v{PT}, 4, v0
    v_lshlrev_b32 v{PT}, 5, v{PT}
    v_bfe_u32 v{PT+1}, v0, 1, 1
    v_lshl_add_u32 v{PT}, v{PT+1}, 7, v{PT}
    v_bfe_u32 v{PT+1}, v0, 2, 1
    v_lshl_add_u32 v{PT}, v{PT+1}, 2, v{PT}
    v_and_b32 v{PT+1}, 1, v0
    v_lshl_add_u32 v{PT}, v{PT+1}, 1, v{PT}
    s_mul_i32 s46, s3, {OP_STRIDE}
    s_add_u32 s46, s46, {L_OP}
    v_add_u32 v{PT}, s46, v{PT}
    s_mov_b32 s14, 0
    s_add_u32 s56, s56, {E//4}
    s_waitcnt lgkmcnt(0)
    """)
    def vbody(dd, last, timed):
        assert dd <= AV
        for j in range(16):
            n = 256 + j
            if j == fa_at: a(f"ds_read_b128 v[{FA}:{FA+3}], v{FAD}")
            for t in range(4): a(f"v_and_b32_dpp v{BB+t}, v{SC}, v{MK+t} row_newbcast:{j} {FULL}")
            a(f"s_waitcnt vmcnt({dstep(dd, j)-1})")
            if j == 16 - AV and last:
                a("s_cmp_eq_u32 s14, 15\ns_cselect_b32 s10, 0, s10")
            issue(n + AV)
            r = slot(n)
            if j == 15 and timed: a("s_memrealtime s[52:53]")
            a(f"v_mfma_f32_16x16x32_bf16 v[{ACC}:{ACC+3}], v[{r}:{r+3}], v[{BB}:{BB+3}], v[{ACC}:{ACC+3}]")
        if lastctl and not fin: a("s_cmp_eq_u32 s14, 15\ns_cbranch_scc1 L_sepi")
        for i in range(15): a(f"v_mov_b32 v{SC+i}, v{SC+i+1}")
        a("s_add_u32 s14, s14, 1\ns_add_u32 s56, s56, 4")
    assert NE >= 1
    a("s_branch L_vd1")
    a("; ---- V loop")
    a("L_vdisp:")
    if lastctl:
        record()
    else:
        record()
        a(f"s_cmp_ge_u32 s14, {16-NE}\ns_cbranch_scc1 L_vlast")
    if fin: a("s_cmp_eq_u32 s14, 15\ns_cbranch_scc1 L_vfin")
    if endat < 16: a(f"s_cmp_ge_u32 s14, {endat}\ns_cbranch_scc1 L_v{ln_(endD)}")
    if endbias: a(f"s_cmp_ge_u32 s14, 14\ns_cselect_b32 s55, {endbias}, 0\ns_add_u32 s52, s52, s55\ns_add_u32 s57, s57, s55")
    a("L_vd1:")
    dispatch("L_v")
    for dd in LV:
        a(f"L_v{ln_(dd)}:")
        vbody(dd, lastctl and not fin, True)
        a("s_branch L_vdisp")
    if fin:
        a("L_vfin:")
        a(f"ds_read_b128 v[{FA}:{FA+3}], v{FAD}")
        st["issued"] = 496 + AV; st["landed"] = 496 + AV - max(int(x + 0.999) for x in LV)
        def vcons(n):
            j = n - 496
            bb = BB if j & 1 else XX
            for t in range(4): a(f"v_and_b32_dpp v{bb+t}, v{SC}, v{MK+t} row_newbcast:{j} {FULL}")
            ensure(n)
            r = slot(n)
            a(f"v_mfma_f32_16x16x32_bf16 v[{ACC}:{ACC+3}], v[{r}:{r+3}], v[{bb}:{bb+3}], v[{ACC}:{ACC+3}]")
        c_ = 496
        for n in range(496 + AV, 512):
            throttle(fin); issue(n)
            for _ in range(2):
                if c_ < st["landed"]: vcons(c_); c_ += 1
        a("L_vfin2:")
        while c_ < 512: vcons(c_); c_ += 1
    if not lastctl:
        a("L_vlast:")
        vbody(D2, True, False)
        a("s_cmp_lt_u32 s14, 16\ns_cbranch_scc1 L_vlast")
    a("L_sepi:")
    if not fin: a("s_nop 7")
    stamp(4)
    a(f"s_waitcnt lgkmcnt(0)\nv_readfirstlane_b32 s46, v{FA+1}\ns_mov_b32 s70, 0\ns_or_b32 s46, s46, s0\ns_cmp_lg_u32 s46, 0\ns_cbranch_scc0 L_facspin")
    a("L_facok:")
    for t in range(4): a(f"v_mul_f32 v{ACC+t}, v{ACC+t}, v{FA}")
    a(f"v_cvt_pk_bf16_f32 v{ACC}, v{ACC}, v{ACC+1}\nv_cvt_pk_bf16_f32 v{ACC+2}, v{ACC+2}, v{ACC+3}")
    a(f"""
    s_mov_b32 exec_lo, 0x00ff00ff
    s_mov_b32 exec_hi, 0x00ff00ff
    ds_write_b16 v{PT}, v{ACC}
    ds_write_b16_d16_hi v{PT}, v{ACC} offset:8
    ds_write_b16 v{PT}, v{ACC+2} offset:16
    ds_write_b16_d16_hi v{PT}, v{ACC+2} offset:24
    s_waitcnt lgkmcnt(0)
    """)
    if dry: a("s_cmp_eq_u32 s0, 1\ns_cbranch_scc1 L_tail0")
    a("s_barrier")
    if not diag2: stamp(5)
    dump_stamps(6)
    a("s_endpgm")
    a("L_facspin:")
    spin_check()
    a(f"ds_read_b128 v[{FA}:{FA+3}], v{FAD}\ns_waitcnt lgkmcnt(0)\nv_readfirstlane_b32 s46, v{FA+1}\ns_cmp_eq_u32 s46, 1\ns_cbranch_scc0 L_facspin\ns_branch L_facok")

    a("L_helper:")
    TRB, DA, DB, DN, TA, TB, TC = 2, 4, 5, 6, 7, 8, 9
    a(f"""
    s_memrealtime s[60:61]
    s_sub_u32 s7, s3, 4
    """)
    def lane_consts():
        a(f"""
        v_lshrrev_b32 v{TA}, 4, v0
        v_bfe_u32 v{TB}, v0, 2, 2
        v_and_b32 v{TC}, 3, v0
        v_lshl_add_u32 v{TRB}, v{TA}, 3, v{TB}
        v_lshlrev_b32 v{TRB}, 8, v{TRB}
        v_lshl_add_u32 v{TRB}, v{TC}, 3, v{TRB}
        v_and_b32 v{TC}, 1, v{TA}
        v_lshl_add_u32 v{TB}, v{TC}, 2, v{TB}
        v_lshl_add_u32 v{TRB}, v{TB}, 5, v{TRB}
        s_lshl_b32 s12, s7, 15
        v_add_u32 v{TRB}, s12, v{TRB}
        v_and_b32 v{TB}, 15, v0
        v_lshlrev_b32 v{TC}, 1, v{TA}
        v_xor_b32 v{TB}, v{TB}, v{TC}
        v_lshlrev_b32 v{DN}, 4, v{TB}
        v_mov_b32 v{DA}, 0
        """)
    lane_consts()
    a(f"""
    s_bfe_u32 s13, s2, {0x40003 if sym else 0x50003}
    s_lshl_b32 s69, s13, {1 if sym else 0}
    {"s_add_u32 s69, s69, s6" if sym else ""}
    s_and_b32 s12, s2, 7
    s_mov_b32 s68, 4
    s_cmp_lt_u32 s69, {NFFN}
    s_cselect_b32 s68, 5, s68
    s_cmp_eq_u32 s12, 0
    s_cbranch_scc1 L_role
    s_mul_i32 s69, s13, 7
    s_add_u32 s69, s69, s12
    s_sub_u32 s69, s69, 1
    s_lshl_b32 s69, s69, {1 if sym else 0}
    {"s_add_u32 s69, s69, s6" if sym else ""}
    s_mov_b32 s68, 1
    s_cmp_lt_u32 s69, {48 if front else 16}
    s_cbranch_scc1 L_role
    s_sub_u32 s69, s69, {48 if front else 16}
    s_mov_b32 s68, 3
    s_cmp_lt_u32 s69, 64
    s_cbranch_scc1 L_role
    s_sub_u32 s69, s69, 48
    s_mov_b32 s68, 2
    s_cmp_lt_u32 s69, {0 if front else 48}
    s_cbranch_scc1 L_role
    s_mov_b32 s68, 0
    L_role:
    """)
    a(f"""
    s_cmp_lg_u32 s7, 3
    s_cbranch_scc1 L_noinit
    s_and_b32 s12, s68, 1
    s_xor_b32 s12, s12, 1
    v_cmp_eq_u32 vcc, {F_WQD//16}, v0
    v_mov_b32 v17, s12
    v_cndmask_b32 v16, 0, v17, vcc
    v_mov_b32 v17, v16
    v_mov_b32 v18, v16
    v_mov_b32 v19, v16
    v_add_u32 v20, {L_FL}, v1
    ds_write_b128 v20, v[16:19]
    L_noinit:
    s_waitcnt lgkmcnt(0)
    s_mov_b32 s0, 0
    s_mov_b32 s71, 0
    """)
    srd(48, P_WS, WS_SIZE)
    def dma_seq(nins, stride, soff, ldsbase, infl, hooks, pol, sel, rot):
        if rot:
            a(rot)
            a(f"s_mov_b32 s59, {ldsbase}")
        for i in range(nins):
            if rot:
                if i: a(f"s_add_u32 s58, s58, 1\ns_and_b32 s58, s58, {nins-1}")
                a(f"s_lshl_b32 s57, s58, 10\ns_add_u32 m0, s59, s57\ns_mul_i32 s57, s58, {stride}\ns_add_u32 s57, s57, {soff}")
                so = "s57"
            else:
                a(f"s_mov_b32 m0, {ldsbase}" if i == 0 else "s_add_u32 m0, m0, 0x400")
                if i: a(f"s_add_u32 {soff}, {soff}, {stride}")
                so = soff
            a(f"buffer_load_dwordx4 v{DB if sel(i) else DA}, s[8:11], {so} offen {pol} lds")
            if i in hooks: hooks[i]()
            if i >= infl - 1: a(f"s_waitcnt vmcnt({infl-1})")
    def rot_code(src, mul, shr, gran, nins):
        return f"s_mul_i32 s58, {src}, {mul}\ns_lshr_b32 s58, s58, {shr}\ns_lshl_b32 s58, s58, {gran}\ns_and_b32 s58, s58, {nins-1}"
    def dma_wide(nins, rs_log2, soff, infl, hooks={}, pol='nt', key="s69"):
        a(f"v_lshrrev_b32 v{TA}, 4, v0\nv_lshl_add_u32 v{DA}, v{TA}, {rs_log2}, v{DN}\nv_xor_b32 v{DB}, 0x80, v{DA}")
        a("s_lshl_b32 s14, s7, 15")
        dma_seq(nins, 4 << rs_log2, soff, "s14", infl, hooks, pol, lambda i: (i >> 1) & 1, rot_code(key, rotw[0], rotw[1], 2, nins) if rotw else None)
    def dma_mid(soff, ldsbase, infl, rs, hooks={}, n=16):
        a(f"""
        v_lshrrev_b32 v{DA}, 3, v0
        v_mul_u32_u24 v{DA}, {rs}, v{DA}
        v_bfe_u32 v{DB}, v0, 4, 1
        v_lshlrev_b32 v{DB}, 1, v{DB}
        v_and_b32 v{TA}, 7, v0
        v_xor_b32 v{DB}, v{DB}, v{TA}
        v_lshl_add_u32 v{DA}, v{DB}, 4, v{DA}
        v_xor_b32 v{DB}, 64, v{DA}
        """)
        dma_seq(n, 8*rs, soff, ldsbase, infl, hooks, "nt", lambda i: i & 1, rot_code("s69", rotm[0], rotm[1], 1, 16) if rotm else None)
    def sprefetch(lbl, ptr, off, nrows, rs, rowbytes):
        per = rowbytes // sgran
        rows = max(1, 16 // per)
        while nrows % rows: rows -= 1
        a(f"s_mov_b32 s56, {off}\ns_mov_b32 s57, 0\n{lbl}:")
        for r_ in range(rows):
            for c_ in range(per):
                a(f"s_add_u32 s59, s56, {r_*rs + c_*sgran}\ns_load_dword s58, s[{ptr}:{ptr+1}], s59")
        a(f"s_waitcnt lgkmcnt(0)\ns_add_u32 s56, s56, {rows*rs}\ns_add_u32 s57, s57, {rows}\ns_cmp_lt_u32 s57, {nrows}\ns_cbranch_scc1 {lbl}")
    def mid_bases():
        a(f"""
        v_lshrrev_b32 v{TB}, 4, v0
        v_bfe_u32 v{TC}, v0, 2, 2
        v_lshl_add_u32 v{TA}, v{TB}, 3, v{TC}
        v_lshlrev_b32 v{TA}, 7, v{TA}
        v_and_b32 v{TB}, 1, v{TB}
        v_lshrrev_b32 v{TC}, 1, v{TC}
        v_lshl_add_u32 v{TB}, v{TB}, 1, v{TC}
        v_xor_b32 v{TB}, s7, v{TB}
        v_lshl_add_u32 v{TA}, v{TB}, 5, v{TA}
        v_and_b32 v{TB}, 3, v0
        v_lshl_add_u32 v{TA}, v{TB}, 3, v{TA}
        v_add_u32 v{TB}, 0x10000, v{TA}
        """)
    def tr_mid(dst, off):
        for s in range(16):
            r = dst + 4 * s
            ar = TA if s < 8 else TB
            o = off + ((s >> 2) & 1) * 0x8000 + (s & 3) * 4096
            a(f"ds_read_b64_tr_b16 v[{r}:{r+1}], v{ar} offset:{o}")
            a(f"ds_read_b64_tr_b16 v[{r+2}:{r+3}], v{ar} offset:{o+512}")
        a("s_waitcnt lgkmcnt(0)")
    def tr_wide(dst, nk):
        for t in range(8):
            ar = TA if t & 1 else TB
            a(f"v_xor_b32 v{ar}, {t << 5}, v{TRB}")
            for s in range(nk):
                r = dst + (t * nk + s) * 4
                a(f"ds_read_b64_tr_b16 v[{r}:{r+1}], v{ar} offset:{s*8192}")
                a(f"ds_read_b64_tr_b16 v[{r+2}:{r+3}], v{ar} offset:{s*8192+1024}")
        a("s_waitcnt lgkmcnt(0)")
    def act_addr(dst, rowsel, tmp):
        a(f"v_and_b32 v{dst}, 3, v0" if rowsel == "lo" else f"v_bfe_u32 v{dst}, v0, 2, 2")
        a(f"v_mul_u32_u24 v{dst}, {ACT_STRIDE}, v{dst}\nv_lshrrev_b32 v{tmp}, 4, v0\nv_lshl_add_u32 v{dst}, v{tmp}, 4, v{dst}\nv_add_u32 v{dst}, {L_ACT}, v{dst}")
    def poll(lbl, loads, tags, sleep=0, pre="", post=""):
        spin_begin()
        if sleep: a(f"s_branch {lbl}_go")
        a(f"{lbl}:")
        spin_check()
        if sleep: a(f"s_sleep {sleep}\n{lbl}_go:")
        a(pre)
        for l in loads: a(l)
        a(post)
        if not getattr(tags, "waits", False): a("s_waitcnt vmcnt(0)")
        tags()
        a(f"s_cmp_eq_u64 vcc, exec\ns_cbranch_scc0 {lbl}")
    def tags_words(regs):
        def f():
            a(f"v_cmp_eq_u32 vcc, {TAG}, v{regs[0]}")
            for r in regs[1:]: a(f"v_cmp_eq_u32 s[56:57], {TAG}, v{r}\ns_and_b64 vcc, vcc, s[56:57]")
        return f
    def tags_xor(regs, t):
        def f():
            a(f"v_xor_b32 v{t}, {TAG}, v{regs[0]}")
            for r in regs[1:]: a(f"v_xor_b32 v{t+1}, {TAG}, v{r}\nv_or_b32 v{t}, v{t}, v{t+1}")
            a(f"v_cmp_eq_u32 vcc, 0, v{t}")
        return f
    def tags_bytes(n, t):
        def f():
            for q in range(n):
                a(f"s_waitcnt vmcnt({n-1-q})")
                for i in range(4*q, 4*q + 4): a(f"v_xor_b32 v{16+i}, s{18+(i&3)}, v{32+i}")
                b_ = 16 + 4*q
                if q == 0: a(f"v_or3_b32 v{t}, v{b_}, v{b_+1}, v{b_+2}\nv_or_b32 v{t}, v{t}, v{b_+3}")
                else: a(f"v_or3_b32 v{t}, v{t}, v{b_}, v{b_+1}\nv_or3_b32 v{t}, v{t}, v{b_+2}, v{b_+3}")
            a(f"v_lshlrev_b32 v{t}, 24, v{t}\nv_cmp_eq_u32 vcc, 0, v{t}")
        f.waits = True
        return f
    def pk(op, d, x, y, mods=""):
        yy = y if isinstance(y, str) else f"v[{y}:{y+1}]"
        a(f"v_pk_{op}_f32 v[{d}:{d+1}], v[{x}:{x+1}], {yy} {mods}")
    NEG = "neg_lo:[0,1] neg_hi:[0,1]"
    def rnd8(x0):
        for k in range(8): bf16r(x0 + k, x0 + k)
    def ln_norm(x0, t0):
        a(f"v_readfirstlane_b32 s46, v{x0}")
        for k in range(4): pk("add", t0+4+2*k, x0+2*k, "s[46:47]", "op_sel_hi:[1,0] " + NEG)
        pk("mul", t0+2, t0+4, t0+4)
        pk("add", t0, t0+4, t0+6)
        a(f"v_pk_fma_f32 v[{t0+2}:{t0+3}], v[{t0+6}:{t0+7}], v[{t0+6}:{t0+7}], v[{t0+2}:{t0+3}]")
        pk("add", t0+4, t0+8, t0+10)
        a(f"v_pk_fma_f32 v[{t0+2}:{t0+3}], v[{t0+8}:{t0+9}], v[{t0+8}:{t0+9}], v[{t0+2}:{t0+3}]")
        pk("add", t0, t0, t0+4)
        a(f"v_pk_fma_f32 v[{t0+2}:{t0+3}], v[{t0+10}:{t0+11}], v[{t0+10}:{t0+11}], v[{t0+2}:{t0+3}]")
        m, q = t0, t0 + 2
        a(f"v_add_f32 v{m}, v{t0}, v{t0+1}\nv_add_f32 v{q}, v{t0+2}, v{t0+3}")
        allreduce("v_add_f32", [m, q], [], rows_only=True)
        for st_ in ("row_bcast:15 row_mask:0xa bank_mask:0xf", "row_bcast:31 row_mask:0xc bank_mask:0xf"):
            for r in (m, q): a(f"v_add_f32_dpp v{r}, v{r}, v{r} {st_}")
        a(f"""
        v_mul_f32 v{m}, 0x3b000000, v{m}
        v_mul_f32 v{q}, 0x3b000000, v{q}
        v_fma_f32 v{q}, -v{m}, v{m}, v{q}
        v_add_f32 v{m}, s46, v{m}
        v_max_f32 v{q}, 0, v{q}
        """)
        bf16r(m, m); bf16r(q, q)
        a(f"v_readlane_b32 s56, v{m}, 63\nv_add_f32 v{q}, 0x3727c5ac, v{q}")
        bf16r(q, q)
        a(f"v_sqrt_f32 v{q}, v{q}")
        for k in range(2): pk("add", x0+2*k, x0+2*k, "s[56:57]", "op_sel_hi:[1,0] " + NEG)
        bf16r(q, q)
        for k in range(2, 4): pk("add", x0+2*k, x0+2*k, "s[56:57]", "op_sel_hi:[1,0] " + NEG)
        a(f"v_rcp_f32 v{q}, v{q}")
        for k in range(3): bf16r(x0 + k, x0 + k)
        a(f"v_readlane_b32 s46, v{q}, 63")
        for k in range(3, 8): bf16r(x0 + k, x0 + k)
        for k in range(4): pk("mul", x0+2*k, x0+2*k, "s[46:47]", "op_sel_hi:[1,0]")
        rnd8(x0)
    def ln_affine(x0, sc8, sh8, t):
        for k in range(4): pk("mul", x0+2*k, x0+2*k, sc8+2*k)
        rnd8(x0)
        for k in range(4): pk("add", x0+2*k, x0+2*k, sh8+2*k)
        for k in range(4): a(f"v_cvt_pk_bf16_f32 v{t+k}, v{x0+2*k}, v{x0+2*k+1}")
    X8, ST, SA8, CA8, BW, DT = 24, 32, 40, 48, 192, 56
    def gemv64(tagn, kind, infl, first):
        isq = kind == "q"
        srd(52, P_X if isq else P_C, 4096)
        a(f"""
        v_lshlrev_b32 v10, 3, v0
        s_lshl_b32 s12, s7, 10
        buffer_load_dwordx2 v[12:13], v10, s[52:55], s12 offen
        buffer_load_dwordx2 v[14:15], v10, s[52:55], s12 offen offset:512
        """)
        rs = 8192 if isq else 6144
        srd(8, P_WQ if isq else P_WM, 0 if ({"q": "q", "A": "A", "a": "a"}[kind] in skip) else 512 * rs)
        if contig: rs = 128
        a(f"s_mul_i32 s13, s7, {128*rs}\ns_lshl_b32 s12, s69, {16 if contig else 7}\ns_add_u32 s13, s13, s12\ns_lshl_b32 s14, s7, 15")
        if kind == "a" and 'a' in spf: sprefetch("L_spa", P_WM, "s13", 128, rs, 128)
        dma_mid("s13", "s14", infl, rs, hooks=({min(infl, 16) - 1: lambda: a(BAR0)} if first else {}))
        a("s_waitcnt vmcnt(16)")
        if kind == "A": stamp(1)
        for k in range(4): unpack(X8 + 2*k, X8 + 2*k + 1, 12 + k)
        a(f"s_mul_i32 s12, s7, {ACT_STRIDE}\ns_add_u32 s12, s12, {L_ACT}\nv_add_u32 v10, s12, v10")
        if isq:
            ln_norm(X8, ST)
        else:
            for k in range(8): a(f"v_mul_f32 v{ST+k}, {LOG2E}, v{X8+k}")
            for k in range(8): a(f"v_exp_f32 v{ST+k}, -v{ST+k}")
            for k in range(8): a(f"v_add_f32 v{ST+k}, 1.0, v{ST+k}")
            for k in range(8): a(f"v_rcp_f32 v{ST+k}, v{ST+k}")
            for k in range(8): a(f"v_mul_f32 v{X8+k}, v{X8+k}, v{ST+k}")
            for k in range(4): a(f"v_cvt_pk_bf16_f32 v{16+k}, v{X8+2*k}, v{X8+2*k+1}")
            a("ds_write_b64 v10, v[16:17]\nds_write_b64 v10, v[18:19] offset:512")
        mid_bases()
        a("s_waitcnt vmcnt(0)")
        set_flag(F_WQ, "s7", 20, 21)
        wait_flags(f"L_wq{tagn}", F_WQ, 16, 0)
        if first: a(MKTAG)
        stamp(4 if isq else 2) if first else None
        tr_mid(BW, 0)
        if first: set_flag(F_WQD, "s7", 16, 17)
        act_addr(TC, "lo", TB)
        a(f"s_lshl_b32 s67, s69, 10\ns_lshl_b32 s12, s7, 8\ns_add_u32 s67, s67, s12\ns_add_u32 s67, s67, {WS_Q if isq else WS_MOD}")
        if isq:
            a(f"""
            v_lshrrev_b32 v{TA}, 2, v0
            v_lshlrev_b32 v{TA}, 8, v{TA}
            v_and_b32 v{TB}, 3, v0
            v_lshl_add_u32 v{TA}, v{TB}, 4, v{TA}
            s_lshl_b32 s12, s7, 6
            s_add_u32 s12, s12, {WS_MOD}
            s_add_u32 s13, s12, 0x1000
            s_add_u32 s14, s12, 0x2000
            s_add_u32 s46, s12, 0x3000
            """)
            if gm: wait_flags("L_g1", F_G1, 16, 4)
            G0 = 128
            poll("L_poll_mod", [f"buffer_load_dwordx4 v[{G0+4*i}:{G0+4*i+3}], v{TA}, s[48:51], {sr} offen sc1" for i, sr in enumerate(["s12", "s13", "s14", "s46"])],
                 tags_xor([G0 + 1 + 2*k for k in range(8)], 16), sleep=slp)
            stamp(5)
            for k in range(4): unpack(SA8 + 2*k, SA8 + 2*k + 1, G0 + 2*k)
            for k in range(4): unpack(CA8 + 2*k, CA8 + 2*k + 1, G0 + 8 + 2*k)
            for k in range(8): a(f"v_add_f32 v{CA8+k}, 1.0, v{CA8+k}")
            rnd8(CA8)
            ln_affine(X8, CA8, SA8, 16)
            a("ds_write_b64 v10, v[16:17]\nds_write_b64 v10, v[18:19] offset:512")
            set_flag(F_H, "s7", 20, 21)
            wait_flags("L_h", F_H, 16, 0)
        for hh in range(2):
            for s in range(8): a(f"ds_read_b128 v[{16+4*s}:{19+4*s}], v{TC} offset:{(8*hh+s)*64}")
            for s in range(8):
                a(f"s_waitcnt lgkmcnt({7-s})")
                k = 8*hh + s
                a(f"v_mfma_f32_16x16x32_bf16 v[{DT}:{DT+3}], v[{BW+4*k}:{BW+4*k+3}], v[{16+4*s}:{19+4*s}], " + ("0" if k == 0 else f"v[{DT}:{DT+3}]"))
        a(f"""
        v_and_b32 v{TC}, 3, v0
        v_lshrrev_b32 v{TA}, 4, v0
        v_lshlrev_b32 v{TA}, 4, v{TA}
        v_lshl_add_u32 v{TA}, v{TC}, 6, v{TA}
        v_mov_b32 v{DT+5}, {TAG}
        v_mov_b32 v{DT+7}, {TAG}
        v_cvt_pk_bf16_f32 v{DT+4}, v{DT}, v{DT+1}
        v_cvt_pk_bf16_f32 v{DT+6}, v{DT+2}, v{DT+3}
        s_mov_b32 exec_lo, 0x000f000f
        s_mov_b32 exec_hi, 0x000f000f
        buffer_store_dwordx4 v[{DT+4}:{DT+7}], v{TA}, s[48:51], s67 offen sc1
        s_mov_b64 exec, -1
        """)
        if first: stamp(13 if isq else 3)

    a("""
    s_cmp_eq_u32 s68, 3
    s_cbranch_scc1 L_qgemv
    s_cmp_eq_u32 s68, 5
    s_cbranch_scc1 L_down
    s_cmp_lg_u32 s68, 1
    s_cbranch_scc1 L_bar0
    """)
    gemv64(1, "A", 64, True)
    a("s_branch L_getq")
    a("L_qgemv:")
    gemv64(2, "q", thrQ, True)
    a("s_branch L_getq")
    a("L_down:")
    srd(8, P_WD, 0 if 'f' in skip else 1792 * 1024)
    a("s_lshl_b32 s13, s69, 16\ns_lshl_b32 s12, s7, 8\ns_add_u32 s13, s13, s12")
    dma_wide(16, 10, "s13", thrD, hooks={min(thrD, 16) - 1: lambda: a(BAR0)})
    a("s_waitcnt vmcnt(0)")
    tr_wide(192, 2)
    a(MKTAG)
    set_flag(F_WQD, "s7", 16, 17)
    a("s_branch L_getq")
    a("L_bar0:")
    if front and frontw:
        a("s_cmp_lg_u32 s68, 0\ns_cbranch_scc1 L_nofw")
        srd(8, P_WO, 4096 * 1024)
        a("s_lshl_b32 s13, s4, 17\ns_lshl_b32 s12, s5, 15\ns_add_u32 s13, s13, s12\ns_lshl_b32 s12, s7, 13\ns_add_u32 s13, s13, s12")
        for i in range(8):
            a(f"buffer_load_dwordx4 v[{64+4*i}:{67+4*i}], v1, s[8:11], s13 offen offset:{(i&3)*1024}")
            if i == 3: a("s_add_u32 s13, s13, 0x1000")
        a("L_nofw:")
    if l2warm:
        a(f"""
        s_cmp_lg_u32 s7, 3
        s_cbranch_scc1 L_nowarm
        s_getpc_b64 s[12:13]
        L_pc:
        s_sub_u32 s12, s12, L_pc-{NAME}_kernel
        s_subb_u32 s13, s13, 0
        v_lshlrev_b32 v16, 7, v0
        s_mov_b32 s14, 0
        L_warm:
        v_cmp_gt_u32 vcc, L_end-{NAME}_kernel, v16
        s_and_saveexec_b64 s[46:47], vcc
        s_cbranch_execz L_warmd
        global_load_dword v17, v16, s[12:13]
        v_add_u32 v16, 0x2000, v16
        s_branch L_warm
        L_warmd:
        s_mov_b64 exec, -1
        L_nowarm:
        """)
    a(BAR0)
    a("s_waitcnt lgkmcnt(0)")
    a(MKTAG)
    a("L_getq:")
    def dryrun(n, cond):
        a(f"""
        s_cmp_lg_u32 s7, 1
        s_cbranch_scc1 L_nodry{n}
        {cond} s68, 4
        s_cbranch_scc1 L_nodry{n}
        s_waitcnt vmcnt(0)
        s_mov_b32 s0, 1
        s_mov_b32 s1, {TAG}
        s_mov_b32 {TAG}, 0
        s_mov_b32 s50, 0
        s_mov_b32 s44, 1
        v_mov_b32 v{PT}, {L_OP}
        s_branch {'L_vfin2' if fin else 'L_facok'}
        L_afterdry{n}:
        s_mov_b32 s0, 0
        s_mov_b32 {TAG}, s1
        s_mov_b32 s50, {WS_SIZE}
        s_mov_b64 exec, -1
        s_waitcnt vmcnt(0) lgkmcnt(0)
        """)
        if n == 1: lane_consts()
        a(f"L_nodry{n}:")
    if dry: dryrun(1, "s_cmp_lt_u32")
    a("s_cmp_lg_u32 s7, 2\ns_cbranch_scc1 L_bar1")
    a(f"""
    v_bfe_u32 v{TA}, v0, 2, 3
    v_lshlrev_b32 v{TA}, 8, v{TA}
    v_and_b32 v{TB}, 3, v0
    v_lshl_add_u32 v{TA}, v{TB}, 4, v{TA}
    s_lshl_b32 s12, s4, 11
    s_lshl_b32 s13, s5, 6
    s_add_u32 s12, s12, s13
    s_add_u32 s12, s12, {WS_Q}
    v_and_b32 v{TB}, 31, v0
    v_lshlrev_b32 v{TB}, 3, v{TB}
    v_add_u32 v{TB}, {L_Q}, v{TB}
    """)
    if gq: wait_flags("L_g2", F_G2, 16, 4)
    poll("L_poll_q", [f"buffer_load_dwordx4 v[16:19], v{TA}, s[48:51], s12 offen sc1"], tags_words([17, 19]), sleep=slp)
    a(f"v_mov_b32 v17, v18\nds_write_b64 v{TB}, v[16:17]\ns_waitcnt lgkmcnt(0)")
    a("L_bar1:")
    a("s_barrier")
    if dbg: a("s_memrealtime s[98:99]")
    stamp(6)
    a(f"""
    s_getreg_b32 s62, hwreg(HW_REG_XCC_ID)
    s_cmp_lt_u32 s68, 4
    s_cbranch_scc1 L_noxcc
    s_cmp_lg_u32 s7, 1
    s_cbranch_scc1 L_noxcc
    v_mov_b32 v16, s62
    v_mov_b32 v17, {TAG}
    s_lshl_b32 s12, s69, 7
    s_add_u32 s12, s12, {WS_XCC}
    s_mov_b64 exec, 1
    buffer_store_dwordx2 v[16:17], v1, s[48:51], s12 offen sc1
    s_mov_b64 exec, -1
    L_noxcc:
    """)
    if tlb:
        a("s_cmp_lg_u32 s7, 3\ns_cbranch_scc1 L_notlb\ns_mov_b64 exec, 1")
        srd(8, P_V, 0x10000000)
        a("s_lshl_b32 s12, s15, 21\ns_lshl_b32 s13, s6, 20\ns_add_u32 s12, s12, s13\nbuffer_load_dword v16, v1, s[8:11], s12 offen nt")
        srd(8, P_OUT, 4096)
        a("buffer_load_dword v17, v1, s[8:11], 0 offen nt")
        a(f"s_mov_b32 s12, {WS_TM}\nbuffer_load_dword v18, v1, s[48:51], s12 offen offset:1024 nt")
        a("s_mov_b64 exec, -1\ns_waitcnt vmcnt(0)\nL_notlb:")
    def wait_row(lbl, g):
        spin_begin()
        a(f"v_mov_b32 v20, {L_FL+F_TT+16*g}")
        a(f"s_branch {lbl}_go\n{lbl}:")
        spin_check()
        a(f"""
        s_sleep 8
        {lbl}_go:
        ds_read_b128 v[16:19], v20
        s_waitcnt lgkmcnt(0)
        v_and_b32 v21, v16, v17
        v_and_b32 v22, v18, v19
        v_and_b32 v21, v21, v22
        v_readfirstlane_b32 s47, v21
        s_bitcmp1_b32 s47, 0
        s_cbranch_scc0 {lbl}
        """)
    def tm_publish(m, g):
        a(f"""
        s_lshr_b32 s12, s2, 3
        s_xor_b32 s12, s12, s2
        s_and_b32 s12, s12, 1
        {"s_xor_b32 s12, s12, s6" if sym else "s_xor_b32 s14, s6, 1"}
        {"" if sym else "s_or_b32 s12, s12, s14"}
        s_or_b32 s12, s12, s68
        s_or_b32 s12, s12, s7
        s_cbranch_scc1 L_tmp{m}
        """)
        wait_row(f"L_tr{m}", g)
        for k in range(4): a(f"v_subrev_u32 v{16+k}, s60, v{16+k}")
        a(f"""
        v_add3_u32 v16, v16, v17, v18
        v_add_u32 v16, v16, v19
        v_lshrrev_b32 v16, 2, v16
        v_add_u32 v16, s60, v16
        v_mov_b32 v17, {TAG}
        v_mov_b32 v18, s60
        v_mov_b32 v19, {TAG}
        s_bfe_u32 s12, s2, {0x30003 if sym else 0x30004}
        s_lshl_b32 s12, s12, 3
        s_and_b32 s14, s2, 7
        s_add_u32 s12, s12, s14
        s_mul_i32 s12, s12, {TMSTR}
        s_add_u32 s12, s12, {WS_TM + 128*m}
        s_mov_b64 exec, 1
        buffer_store_dwordx4 v[16:19], v1, s[48:51], s12 offen sc1
        s_mov_b64 exec, -1
        L_tmp{m}:
        """)
    import struct
    def fhex(v): return hex(struct.unpack("<I", struct.pack("<f", v))[0])
    def sfetch(lbl, soff_reg, imm):
        a(f"""
        s_load_dwordx4 s[56:59], s[42:43], {soff_reg}
        s_waitcnt lgkmcnt(0)
        v_mov_b32 v16, s56
        v_mov_b32 v18, s58
        s_xor_b32 s57, s57, {TAG}
        s_xor_b32 s59, s59, {TAG}
        s_or_b32 s57, s57, s59
        s_cbranch_scc0 {lbl}_ok
        v_mov_b32 v20, 0
        """)
        poll(lbl, [f"buffer_load_dwordx4 v[16:19], v20, s[48:51], {soff_reg} offen sc1"], tags_words([17, 19]), sleep=32)
        a(f"{lbl}_ok:")
    def line_write(m):
        a(f"""
        s_cmp_ge_u32 s68, 4
        s_cselect_b32 s12, {early if 1 < m < 9 else 0}, 0
        v_subrev_u32 v16, s12, v16
        v_and_b32 v20, 3, v0
        v_lshlrev_b32 v20, 4, v20
        v_add_u32 v20, {L_FL+F_FAC+8}, v20
        ds_write_b64 v20, v[16:17]
        """)
    def tm_follow(m, gate):
        a(f"s_cmp_lg_u32 s7, 0\ns_cbranch_scc1 L_tmf{m}\ns_cmp_eq_u32 s2, {AGG}\ns_cbranch_scc1 L_tmf{m}")
        wait_row(f"L_tf{m}", gate + flag_)
        a(f"s_mov_b32 s12, {WS_LINE + 1280*m}")
        sfetch(f"L_poll_ln{m}", "s12", 0)
        a("v_mov_b32 v17, v18")
        line_write(m)
        a(f"L_tmf{m}:")
    def tm_gather(m, gate, p_m, mult, row, follow=True):
        a(f"s_cmp_lg_u32 s7, 0\ns_cbranch_scc1 L_tmg{m}")
        if agg: a(f"s_cmp_lg_u32 s2, {AGG}\ns_cbranch_scc1 L_tmg{m}")
        wait_row(f"L_tg{m}", row + alag if agg else gate)
        a(f"""
        v_and_b32 v21, 7, v0
        v_lshrrev_b32 v20, 3, v0
        v_max_u32 v20, 1, v20
        v_cmp_eq_u32 vcc, 0, v21
        v_cndmask_b32 v20, 0, v20, vcc
        v_add_u32 v20, v20, v0
        v_mul_u32_u24 v20, {TMSTR}, v20
        s_mov_b32 s12, {WS_TM + 128*m}
        """)
        poll(f"L_poll_tm{m}", ["buffer_load_dwordx4 v[16:19], v20, s[48:51], s12 offen sc1"], tags_words([17, 19]), sleep=aslp if agg else 48)
        a("v_sub_u32 v18, v16, v18\nv_subrev_u32 v16, s60, v16")
        allreduce("v_add_u32", [16, 18], [17, 19])
        a("v_ashrrev_i32 v16, 6, v16\nv_lshrrev_b32 v18, 6, v18")
        if m > 1: a("v_subrev_u32 v18, s61, v16")
        a(f"""
        v_readfirstlane_b32 s61, v16
        {f"v_readfirstlane_b32 s{90+m}, v16" if dbg else ""}
        v_cvt_f32_u32 v18, v18
        v_mul_f32 v18, {fhex(mult)}, v18
        """)
        if m > 1 and up:
            a(f"""
            s_mul_i32 s12, s63, {p_m}
            s_lshr_b32 s12, s12, 4
            s_add_u32 s12, s12, s1
            """)
            if ek:
                a(f"""
                s_sub_u32 s12, s12, {e0}
                v_subrev_u32 v19, s12, v16
                v_cvt_f32_i32 v19, v19
                v_mul_f32 v19, {fhex(ek)}, v19
                v_add_f32 v19, 1.0, v19
                v_min_f32 v19, 1.0, v19
                v_max_f32 v19, {fhex(boost)}, v19
                v_mul_f32 v18, v18, v19
                v_cvt_f32_u32 v17, s63
                """)
            else:
                a(f"""
                s_sub_u32 s12, s12, {eth}
                v_mul_f32 v19, {fhex(boost)}, v18
                v_cmp_gt_i32 vcc, s12, v16
                v_cvt_f32_u32 v17, s63
                v_cndmask_b32 v18, v18, v19, vcc
                """)
            a(f"""
            v_mul_f32 v17, {fhex(up2 if m == 2 else (upk if (m == 9 and upk) else up))}, v17
            v_min_f32 v18, v18, v17
            """)
        a(f"""
        v_cvt_u32_f32 v17, v18
        v_mul_u32_u24 v18, {p_m}, v17
        v_lshrrev_b32 v18, 4, v18
        v_sub_u32 v16, v16, v18
        v_readfirstlane_b32 s63, v17
        v_readfirstlane_b32 s1, v16
        v_add_u32 v16, s60, v16
        v_min_u32 v17, 0xffff, v17
        v_or_b32 v17, {p_m << 16}, v17
        """)
        if agg:
            a(f"""
            v_mov_b32 v20, v16
            v_mov_b32 v21, {TAG}
            v_mov_b32 v22, v17
            v_mov_b32 v23, {TAG}
            s_mov_b32 s12, {WS_LINE + 1280*m}
            s_mov_b64 exec, 1
            buffer_store_dwordx4 v[20:23], v1, s[48:51], s12 offen sc1
            s_mov_b64 exec, -1
            """)
        line_write(m)
        a(f"L_tmg{m}:")
        if agg and follow: tm_follow(m, gate)
    if pf:
        for hw_, (ptr, nb, n_, key) in enumerate([(P_WO, 4096*1024, 16, 'w'), (P_WG, 512*3584, 7, 'f'), (P_WU, 512*3584, 7, 'f'), (P_WM, 512*6144, 12, 'a')]):
            if key not in pf: continue
            a(f"s_cmp_lg_u32 s7, {hw_}\ns_cbranch_scc1 L_npf{hw_}")
            srd(8, ptr, nb)
            a(f"s_mul_i32 s12, s2, {n_*1024}")
            for i in range(n_):
                a(f"buffer_load_dwordx4 v[{64+4*i}:{67+4*i}], v1, s[8:11], s12 offen offset:{(i&3)*1024}")
                if i & 3 == 3: a("s_add_u32 s12, s12, 0x1000")
                if i >= pfthr - 1: a(f"s_waitcnt vmcnt({pfthr-1})")
            a(f"s_waitcnt vmcnt(0)\nL_npf{hw_}:")
    if 'w' in spf:
        if front and frontw: a("s_cmp_lt_u32 s68, 4\ns_cbranch_scc1 L_nospw")
        a("s_lshl_b32 s13, s4, 17\ns_lshr_b32 s12, s2, 5\ns_lshl_b32 s12, s12, 14\ns_add_u32 s13, s13, s12\ns_lshl_b32 s12, s7, 12\ns_add_u32 s13, s13, s12")
        sprefetch("L_spw", P_WO, "s13", 8, 512, 512)
        a("L_nospw:")
    wait_flags("L_wf", F_WF, 16, 4)
    srd(8, P_WO, 0 if 'w' in skip else 4096 * 1024)
    a("s_lshl_b32 s13, s4, 17\ns_lshl_b32 s12, s7, 8\ns_add_u32 s13, s13, s12")
    if late1:
        hooks_ = {hk: lambda: tm_publish(1, 0)}
        if 'g' in spf:
            a(f"""
            s_cmp_eq_u32 s68, 5
            s_cselect_b32 s26, s{P_WG}, s{P_WM}
            s_cselect_b32 s27, s{P_WG+1}, s{P_WM+1}
            s_cselect_b32 s41, 3584, 0
            s_cmp_eq_u32 s68, 2
            s_cselect_b32 s41, 6144, s41
            s_lshl_b32 s40, s41, 7
            s_mul_i32 s40, s40, s7
            s_lshl_b32 s12, s69, 7
            s_add_u32 s40, s40, s12
            """)
            def mk_hook(i):
                def f():
                    if i == hk: tm_publish(1, 0)
                    a(f"s_cmp_eq_u32 s41, 0\ns_cbranch_scc1 L_hp{i}")
                    for _ in range(4): a("s_load_dword s58, s[26:27], s40\ns_add_u32 s40, s40, s41")
                    a(f"L_hp{i}:")
                return f
            hooks_ = {i: mk_hook(i) for i in range(32)}
        dma_wide(32, 10, "s13", thr, hooks=hooks_, pol=wpol, key='s4')
    else:
        dma_wide(32, 10, "s13", thr, hooks=({5: lambda: tm_publish(1, 0), 9 + 6*alag: lambda: tm_gather(1, lagK, 0, 4*f1, 1, False), 5 + 6*(lagK + flag_): lambda: tm_follow(1, lagK)} if agg else {5: lambda: tm_publish(1, 0), 5 + 6*lagK: lambda: tm_gather(1, lagK, 0, 4*f1, 1)}), pol=wpol, key='s4')
    a("s_waitcnt vmcnt(0)")
    tr_wide(64, 4)
    if mk and not late1:
        tm_publish(9, mk)
        tm_gather(9, mk + 1, 4*mk, 4*fk/mk, mk)
    if not front:
        a("s_cmp_lg_u32 s68, 2\ns_cbranch_scc1 L_noA2")
        gemv64(3, "a", thrA, False)
        a("L_noA2:")
    SB, TREG = [10, 11, 12, 13], [4, 5, 6, 14]
    RX, RGA, RGB = 2, 3, 15
    def ffn_cols(dst_tile, dst_sub):
        a(f"""
        v_lshrrev_b32 v{dst_tile}, 4, v0
        v_and_b32 v{dst_sub}, 3, v0
        v_lshl_add_u32 v{dst_tile}, v{dst_tile}, 2, v{dst_sub}
        v_bfe_u32 v{dst_sub}, v0, 2, 2
        """)
    RSF = 128 if contig else 3584
    pieces = list(enumerate(fsplit))
    PN = 32 // len(fsplit)
    def stage_upto(row):
        while pieces and pieces[0][1] < row:
            k, r_ = pieces.pop(0)
            mat, i0 = (k * PN) // 16, (k * PN) % 16
            a(f"s_cmp_lg_u32 s68, 5\ns_cbranch_scc1 L_noffn1{k}")
            srd(8, P_WU if mat else P_WG, 0 if 'f' in skip else 512 * 3584)
            a(f"s_lshl_b32 s13, s69, 7\ns_mul_i32 s12, s7, {128*3584}\ns_add_u32 s13, s13, s12\ns_add_u32 s13, s13, {i0*8*3584}\ns_lshl_b32 s14, s7, 15\ns_add_u32 s14, s14, {0x4000*mat + 1024*i0}")
            if 'f' in spf or ('u' in spf and mat): sprefetch(f"L_spf{k}", P_WU if mat else P_WG, "s13", PN*8, 3584, 128)
            wait_row(f"L_fs{k}", r_)
            dma_mid("s13", "s14", thrF, 3584, n=PN)
            a(f"L_noffn1{k}:")
    FL = flag_ if agg else 0
    stage_upto(lagK + FL)
    tm_gather(1, lagK, 0, 4*f1, 1)
    stage_upto(mk + 1 + FL)
    tm_publish(9, mk)
    tm_gather(9, mk + 1, 4*mk, 4*fk/mk, mk)
    stage_upto(KL + 1)
    if dry: dryrun(2, "s_cmp_ge_u32")
    stamp(7)
    tm_publish(2, KL)
    a("s_cmp_lg_u32 s7, 0\ns_cbranch_scc1 L_nofac")
    wait_flags("L_kd", F_KD, 16, 16)
    q4 = ("quad_perm:[1,0,3,2]", "quad_perm:[2,3,0,1]")
    a(f"""
    v_and_b32 v{TA}, 3, v0
    v_lshlrev_b32 v{TA}, 4, v{TA}
    v_add_u32 v{TA}, {L_FL}, v{TA}
    ds_read_b64 v[24:25], v{TA} offset:{F_ST}
    s_waitcnt lgkmcnt(0)
    v_mov_b32 v28, v24
    """)
    allreduce("v_max_f32", [28], [], rows_only=True, steps=q4)
    a(f"v_sub_f32 v30, v24, v28\nv_mul_f32 v30, {LOG2E}, v30\nv_exp_f32 v30, v30\nv_mul_f32 v30, v25, v30")
    allreduce("v_add_f32", [30], [], rows_only=True, steps=q4)
    a(f"""
    v_mov_b32 v29, {TAG}
    v_mov_b32 v31, {TAG}
    s_lshl_b32 s13, s15, 7
    s_add_u32 s13, s13, {WS_STATS}
    s_lshl_b32 s12, s6, 4
    s_add_u32 s14, s13, s12
    s_xor_b32 s12, s12, 16
    s_add_u32 s13, s13, s12
    s_mov_b64 exec, 1
    buffer_store_dwordx4 v[28:31], v1, s[48:51], s14 offen sc1
    s_mov_b64 exec, -1
    """)
    tm_gather(2, KL + lagV, 4*KL, 4*f2/(KL - mk), KL)
    if agg:
        wait_row("L_stw", KL + 2)
        sfetch("L_poll_st", "s13", 0)
    else:
        a(f"v_mov_b32 v{TB}, 0")
        poll("L_poll_st", [f"buffer_load_dwordx4 v[16:19], v{TB}, s[48:51], s13 offen sc1"], tags_words([17, 19]), sleep=32)
    a(f"""
    v_max_f32 v17, v16, v28
    v_sub_f32 v16, v16, v17
    v_sub_f32 v28, v28, v17
    v_sub_f32 v24, v24, v17
    v_mul_f32 v16, {LOG2E}, v16
    v_mul_f32 v28, {LOG2E}, v28
    v_mul_f32 v24, {LOG2E}, v24
    v_exp_f32 v16, v16
    v_exp_f32 v28, v28
    v_exp_f32 v24, v24
    v_mul_f32 v16, v16, v18
    v_fmac_f32 v16, v28, v30
    v_rcp_f32 v16, v16
    v_mov_b32 v25, 1
    v_mul_f32 v24, v24, v16
    ds_write_b64 v{TA}, v[24:25] offset:{F_FAC}
    """)
    a("L_nofac:")
    def constants():
        a("s_cmp_lt_u32 s68, 4\ns_cbranch_scc1 L_nored2")
        wait_row("L_kd2", KL + 1)
        a("s_cmp_lg_u32 s68, 5\ns_cbranch_scc1 L_noffn2")
        ffn_cols(TA, TB)
        a(f"""
        v_lshlrev_b32 v{TA}, 8, v{TA}
        v_lshl_add_u32 v{TA}, v{TB}, 4, v{TA}
        s_lshl_b32 s12, s7, 6
        s_add_u32 s12, s12, {WS_MOD + 96*256}
        s_add_u32 s13, s12, 0x1000
        s_add_u32 s14, s12, 0x2000
        s_add_u32 s46, s12, 0x3000
        """)
        poll("L_poll_sb", [f"buffer_load_dwordx4 v[{16+4*i}:{19+4*i}], v{TA}, s[48:51], {sr} offen sc1" for i, sr in enumerate(["s12", "s13", "s14", "s46"])],
             tags_words([17 + 2*k for k in range(8)]), sleep=16)
        for k in range(4):
            a(f"v_mov_b32 v{SB[k]}, v{16+2*k}")
            unpack(32, 33, 24 + 2*k)
            a(f"v_add_f32 v32, 1.0, v32\nv_add_f32 v33, 1.0, v33\nv_cvt_pk_bf16_f32 v{TREG[k]}, v32, v33")
        a("L_noffn2:")
        srd(52, P_X, 4096)
        a(f"""
        v_bfe_u32 v{TA}, v0, 2, 2
        v_and_b32 v{TB}, 3, v0
        v_lshlrev_b32 v{TC}, 5, v{TA}
        v_lshl_add_u32 v{TC}, v{TB}, 1, v{TC}
        s_lshl_b32 s71, s69, 7
        s_lshl_b32 s12, s7, 3
        s_add_u32 s71, s71, s12
        buffer_load_ushort v{RX}, v{TC}, s[52:55], s71 offen
        v_lshlrev_b32 v{TA}, 8, v{TA}
        v_lshrrev_b32 v{TC}, 1, v{TB}
        v_lshl_add_u32 v{TA}, v{TC}, 3, v{TA}
        s_and_b32 s12, s69, 7
        s_lshl_b32 s12, s12, 10
        s_lshl_b32 s13, s7, 4
        s_add_u32 s12, s12, s13
        s_lshr_b32 s13, s69, 3
        s_lshl_b32 s13, s13, 6
        s_add_u32 s12, s12, s13
        s_add_u32 s13, s12, {WS_MOD + 160*256}
        s_add_u32 s12, s12, {WS_MOD + 64*256}
        """)
        poll("L_poll_ga", [f"buffer_load_dwordx2 v[16:17], v{TA}, s[48:51], s12 offen sc1", f"buffer_load_dwordx2 v[18:19], v{TA}, s[48:51], s13 offen sc1"],
             tags_words([17, 19]), sleep=16)
        a(f"v_and_b32 v{TB}, 1, v0\nv_cmp_eq_u32 vcc, 1, v{TB}")
        for k, r in enumerate([RGA, RGB]):
            unpack(24, 25, 16 + 2*k)
            a(f"v_cndmask_b32 v{r}, v24, v25, vcc")
        a(f"v_lshlrev_b32 v{RX}, 16, v{RX}")
        a(f"v_and_b32 v{TA}, 31, v0\nv_lshlrev_b32 v{TA}, 7, v{TA}\ns_mov_b32 s12, {WS_XCC}")
        poll("L_poll_xcc", [f"buffer_load_dwordx2 v[16:17], v{TA}, s[48:51], s12 offen sc1"], tags_words([17]), sleep=16)
        a(f"v_cmp_eq_u32 vcc, s62, v16\ns_cmp_eq_u64 vcc, exec\ns_cselect_b32 s44, {1 if fast else 0}, 0")
        a("L_nored2:")
    done_c = []
    def maybe_constants():
        if not pieces and not done_c:
            done_c.append(1); constants()
    prevp = 4 * KL
    def milestones(lst):
        nonlocal prevp
        for i, mv in lst:
            p_ = 4 * (KL + mv) + E // 4
            stage_upto(KL + mv + lag3 + FL); maybe_constants()
            tm_publish(3 + i, KL + mv)
            tm_gather(3 + i, KL + mv + lag3, p_, 16 * f3 / (p_ - prevp), KL + mv)
            prevp = p_
    MS = list(enumerate(ms))
    if touchp:
        wait_row("L_tchp", KL + touchp)
        a(f"""
        s_lshl_b32 s12, s15, 1
        s_add_u32 s12, s12, s6
        s_lshl_b32 s12, s12, 11
        s_lshl_b32 s13, s7, 9
        s_add_u32 s12, s12, s13
        s_add_u32 s12, s12, {WS_PART1}
        """)
        if stouch: sprefetch("L_spt", P_WS, "s12", 1, 512, 512)
        else: a("s_mov_b32 exec_hi, 0\nbuffer_load_dwordx4 v[24:27], v1, s[48:51], s12 offen sc1\ns_mov_b64 exec, -1\ns_waitcnt vmcnt(0)")
    milestones([x for x in MS if x[1] + lag3 + (flag_ if agg else 0) <= touch])
    stage_upto(99); maybe_constants()
    if touch:
        a("s_cmp_lt_u32 s68, 4\ns_cbranch_scc1 L_notouch")
        wait_row("L_tch", KL + touch)
        a(f"""
        v_lshrrev_b32 v{TA}, 2, v0
        v_and_b32 v{TB}, 3, v0
        v_lshlrev_b32 v{TC}, 13, v{TA}
        v_lshl_add_u32 v{TC}, v{TB}, 4, v{TC}
        v_lshlrev_b32 v{TA}, 11, v{TA}
        v_lshl_add_u32 v{TA}, v{TB}, 4, v{TA}
        s_lshl_b32 s12, s7, 11
        s_add_u32 s12, s12, {WS_X1}
        buffer_load_dwordx4 v[16:19], v1, s[48:51], s12 offen sc1
        buffer_load_dwordx4 v[20:23], v1, s[48:51], s12 offen offset:1024 sc1
        s_lshl_b32 s12, s69, 8
        s_lshl_b32 s13, s7, 6
        s_add_u32 s12, s12, s13
        s_add_u32 s12, s12, {WS_PART2}
        s_add_u32 s13, s12, 0x20000
        buffer_load_dwordx4 v[24:27], v{TC}, s[48:51], s12 offen sc1
        buffer_load_dwordx4 v[28:31], v{TC}, s[48:51], s13 offen sc1
        """)
        if otouch:
            srd(52, P_OUT, 4096)
            a("buffer_load_ushort v32, v0, s[52:55], s71 offen")
        if touch1:
            a(f"""
            s_and_b32 s12, s69, 7
            s_lshl_b32 s12, s12, 8
            s_lshl_b32 s13, s7, 6
            s_add_u32 s12, s12, s13
            s_lshr_b32 s13, s69, 3
            s_lshl_b32 s13, s13, 17
            s_add_u32 s12, s12, s13
            s_add_u32 s12, s12, {WS_PART1}
            """)
            for i in range(4):
                a(f"buffer_load_dwordx4 v[{32+4*i}:{35+4*i}], v{TA}, s[48:51], s12 offen sc1\ns_add_u32 s12, s12, 0x8000")
        a("s_waitcnt vmcnt(0)\nL_notouch:")
    milestones([x for x in MS if x[1] + lag3 + (flag_ if agg else 0) > touch])
    AF, DD = 16, 32
    bn = {"n": 0}
    def barrier():
        if not dry: a("s_barrier"); return
        bn["n"] += 1
        a(f"s_cmp_eq_u32 s0, 1\ns_cbranch_scc1 L_nb{bn['n']}\ns_barrier\nL_nb{bn['n']}:")
    a(f"""
    L_tail0:
    s_mov_b64 exec, -1
    s_waitcnt vmcnt(0) lgkmcnt(0)
    v_bfe_u32 v{TB}, v0, 1, 2
    v_mul_u32_u24 v{TB}, {OP_STRIDE}, v{TB}
    v_lshrrev_b32 v{TA}, 4, v0
    v_lshl_add_u32 v{TB}, v{TA}, 4, v{TB}
    v_and_b32 v{TA}, 1, v0
    v_lshl_add_u32 v{TB}, v{TA}, 7, v{TB}
    v_add_u32 v{TB}, {L_OP}, v{TB}
    v_mul_u32_u24 v{TA}, 0xaaaa, v{TA}
    v_add_u32 v{TA}, 0x4444, v{TA}
    s_lshl_b32 s12, s15, 1
    s_add_u32 s12, s12, s6
    s_lshl_b32 s12, s12, 11
    s_lshl_b32 s13, s7, 9
    s_add_u32 s12, s12, s13
    s_add_u32 s12, s12, {WS_PART1}
    s_and_b32 s18, {TAG}, 0xff
    s_bfe_u32 s19, {TAG}, 0x80008
    s_bfe_u32 s20, {TAG}, 0x80010
    s_lshr_b32 s21, {TAG}, 24
    v_mov_b32 v{TC}, 0xffffff00
    """)
    for i in range(32): a(f"v_mov_b32 v{DD+i}, 0")
    P1V = 28
    a(f"""
    v_lshrrev_b32 v{P1V}, 2, v0
    v_and_b32 v{P1V+1}, 3, v0
    v_lshlrev_b32 v{P1V}, 11, v{P1V}
    v_lshl_add_u32 v{P1V}, v{P1V+1}, 4, v{P1V}
    s_and_b32 s26, s69, 7
    s_lshl_b32 s26, s26, 8
    s_lshl_b32 s13, s7, 6
    s_add_u32 s26, s26, s13
    s_lshr_b32 s13, s69, 3
    s_lshl_b32 s14, s13, 11
    s_add_u32 s22, s26, s14
    s_lshl_b32 s13, s13, 17
    s_add_u32 s26, s26, s13
    s_add_u32 s26, s26, {WS_PART1}
    s_add_u32 s27, s26, 0x8000
    s_add_u32 s14, s26, 0x10000
    s_add_u32 s67, s26, 0x18000
    s_add_u32 s23, s22, {WS_X1}
    """)
    P1S = ["s26", "s27", "s14", "s67"]
    if p1q:
        a(f"""
        s_bfe_u32 s26, s69, 0x20001
        s_lshl_b32 s26, s26, 9
        s_and_b32 s27, s69, 1
        s_lshl_b32 s27, s27, 6
        s_add_u32 s26, s26, s27
        s_lshl_b32 s27, s7, 15
        s_add_u32 s26, s26, s27
        s_add_u32 s26, s26, s13
        s_add_u32 s26, s26, {WS_PART1}
        """)
        P1S = ["s26"]
    stamp(8)
    barrier()
    if dbg: a("s_memrealtime s[96:97]")
    stamp(9)
    for s in range(2): a(f"ds_read_b128 v[{AF+4*s}:{AF+4*s+3}], v{TB} offset:{64*s}")
    a("s_waitcnt lgkmcnt(0)")
    def smf(d, af, b, ix): a(f"v_smfmac_f32_16x16x64_bf16 v[{d}:{d+3}], v[{af}:{af+3}], v[{b}:{b+7}], v{ix}")
    order = [0, 4, 1, 5, 2, 6, 3, 7]
    OQ = 24
    work = []
    def fin(t):
        d = DD + 4*t
        w_ = [f"v_pk_add_f32 v[{d}:{d+1}], v[{d}:{d+1}], v[{d+2}:{d+3}]", f"v_add_f32 v{d}, v{d}, v{d+1}"]
        return w_
    def fin2(k):
        x, y = DD + 4*k, DD + 4*(k+4)
        return [f"v_permlane16_swap_b32 v{x}, v{y}", f"v_add_f32 v{OQ+k}, v{x}, v{y}", f"v_and_or_b32 v{OQ+k}, v{OQ+k}, v{TC}, s{18+k}"]
    for i, t in enumerate(order):
        if i >= 3: work += fin(order[i-3])
        if i >= 5 and (i - 5) % 2 == 0: work += fin2((i - 5) // 2)
        for sx in range(2):
            smf(DD + 4*t, AF + 4*sx, 64 + (t*4 + 2*sx)*4, TA)
            for _ in range(2):
                if work: a(work.pop(0))
    work += fin(order[5]) + fin(order[6]) + fin2(2) + fin(order[7]) + fin2(3)
    for w_ in work: a(w_)
    if p1q: a("s_mov_b32 exec_lo, 0xff")
    a(f"s_mov_b32 exec_hi, 0\nbuffer_store_dwordx4 v[{OQ}:{OQ+3}], v1, s[48:51], s12 offen sc1\ns_mov_b64 exec, -1")
    stamp(10)
    a("s_cmp_lt_u32 s68, 4\ns_cbranch_scc1 L_hend")
    if p1first:
        stamp(4)
        for i, sr in enumerate(P1S): a(f"buffer_load_dwordx4 v[{32+4*i}:{35+4*i}], v{P1V}, s[48:51], {sr} offen sc1")
    a("s_cmp_lg_u32 s68, 5\ns_cbranch_scc1 L_noffn3")
    SC8, SH8 = 48, 56
    HW_, HF_, GF_, GW_, PO_, MS_ = 10, 11, 12, 13, 4, 5
    mid_bases()
    tr_mid(64, 0)
    tr_mid(128, 0x4000)
    for k in range(4): unpack(SC8 + 2*k, SC8 + 2*k + 1, TREG[k])
    for k in range(4): unpack(SH8 + 2*k, SH8 + 2*k + 1, SB[k])
    IX_ = 6
    act_addr(HF_, "hi", TB)
    ffn_cols(TA, TB)
    a(f"""
    v_lshlrev_b32 v{HW_}, 4, v{TA}
    v_lshl_add_u32 v{HW_}, v{TB}, 2, v{HW_}
    s_mul_i32 s13, s7, {ACT_STRIDE}
    s_add_u32 s13, s13, {L_ACT}
    v_add_u32 v{HW_}, s13, v{HW_}
    v_mul_u32_u24 v{GF_}, {GB_STRIDE}, v{TB}
    v_lshlrev_b32 v{GW_}, 2, v{TB}
    v_and_b32 v{IX_}, 1, v0
    v_lshl_add_u32 v{HF_}, v{IX_}, 9, v{HF_}
    v_lshl_add_u32 v{GF_}, v{IX_}, 6, v{GF_}
    v_lshl_add_u32 v{GW_}, v{IX_}, 1, v{GW_}
    v_mul_u32_u24 v{IX_}, 0xaaaa, v{IX_}
    v_add_u32 v{IX_}, 0x4444, v{IX_}
    v_bfe_u32 v{TB}, v0, 1, 1
    v_lshl_add_u32 v{GW_}, v{TB}, 6, v{GW_}
    v_lshrrev_b32 v{TB}, 4, v0
    v_lshl_add_u32 v{GF_}, v{TB}, 4, v{GF_}
    v_add_u32 v{GF_}, {L_GB}, v{GF_}
    v_mul_u32_u24 v{TA}, {GB_STRIDE}, v{TB}
    s_lshl_b32 s13, s7, 4
    s_add_u32 s13, s13, {L_GB}
    v_add3_u32 v{GW_}, v{GW_}, v{TA}, s13
    v_and_b32 v{TA}, 15, v0
    v_lshlrev_b32 v{TB}, 11, v{TB}
    v_lshl_add_u32 v{PO_}, v{TA}, 4, v{TB}
    v_mov_b32 v{MS_}, 0xffffff00
    """)
    a("L_noffn3:")
    a(f"""
    v_lshrrev_b32 v{TC}, 2, v0
    v_and_b32 v{TB}, 3, v0
    v_lshlrev_b32 v{TC}, 13, v{TC}
    v_lshl_add_u32 v{TC}, v{TB}, 4, v{TC}
    v_lshlrev_b32 v{TB}, 2, v0
    v_mov_b32 v{TA}, v{P1V}
    """)
    if pwait: a(f"s_sleep {pwait}")
    if not p1first: stamp(4)
    spin_begin()
    if p1first: a("s_branch L_poll_p1w")
    a("L_poll_p1:")
    spin_check()
    for i, sr in enumerate(P1S): a(f"buffer_load_dwordx4 v[{32+4*i}:{35+4*i}], v{TA}, s[48:51], {sr} offen sc1")
    a("L_poll_p1w:")
    tags_bytes(len(P1S), 44 if p1q else 32)()
    a("s_cmp_eq_u64 vcc, exec\ns_cbranch_scc0 L_poll_p1")
    stamp(11)
    if diag: a("s_mov_b32 s82, s70")
    def colsum(n):
        st_ = 1
        while st_ < n:
            for i in range(0, n, 2*st_):
                for k in (0, 2): pk("add", 16+4*i+k, 16+4*i+k, 16+4*(i+st_)+k)
            st_ *= 2
        a("""
        v_add_f32_dpp v20, v16, v16 row_ror:8 row_mask:0xf bank_mask:0x3
        v_add_f32_dpp v21, v17, v17 row_ror:8 row_mask:0xf bank_mask:0x3
        v_add_f32_dpp v20, v18, v18 row_ror:8 row_mask:0xf bank_mask:0xc
        v_add_f32_dpp v21, v19, v19 row_ror:8 row_mask:0xf bank_mask:0xc
        v_add_f32_dpp v16, v20, v20 row_shl:4 row_mask:0xf bank_mask:0x5
        v_add_f32_dpp v16, v21, v21 row_shr:4 row_mask:0xf bank_mask:0xa
        """)
        allreduce("v_add_f32", [16], [17], steps=())
    def resid(gate):
        bf16r(16, 16)
        a(f"v_mul_f32 v16, v16, v{gate}")
        bf16r(16, 16)
        a(f"v_add_f32 v16, v16, v{RX}")
    colsum(4)
    resid(RGA)
    a(f"""
    v_mov_b32 v41, {TAG}
    v_mov_b32 v43, {TAG}
    v_mov_b32_dpp v17, v16 quad_perm:[1,1,1,1] {FULL}
    v_mov_b32_dpp v18, v16 quad_perm:[2,2,2,2] {FULL}
    v_mov_b32_dpp v19, v16 quad_perm:[3,3,3,3] {FULL}
    v_cvt_pk_bf16_f32 v40, v16, v17
    v_cvt_pk_bf16_f32 v42, v18, v19
    s_mov_b64 exec, 0x1111
    """)
    def hstore(lbl, stores):
        a(f"s_cmp_eq_u32 s44, 1\ns_cbranch_scc0 {lbl}_s")
        for st_ in stores: a(f"{st_} {fpol}")
        a(f"s_branch {lbl}_e\n{lbl}_s:")
        for st_ in stores: a(f"{st_} sc1")
        a(f"{lbl}_e:")
    hstore("L_sx1", [f"buffer_store_dwordx4 v[40:43], v{TB}, s[48:51], s23 offen"])
    a("s_mov_b64 exec, -1")
    stamp(12)
    bf16r(RX, 16)
    a("s_cmp_lg_u32 s68, 5\ns_cbranch_scc1 L_red2")
    a(f"""
    s_lshl_b32 s12, s7, 11
    s_add_u32 s12, s12, {WS_X1}
    s_lshl_b32 s13, s69, 13
    s_lshl_b32 s14, s7, 9
    s_add_u32 s13, s13, s14
    s_add_u32 s23, s13, {WS_PART2}
    """)
    poll("L_poll_x1", ["buffer_load_dwordx4 v[16:19], v1, s[48:51], s12 offen sc1", "buffer_load_dwordx4 v[20:23], v1, s[48:51], s12 offen offset:1024 sc1"],
         tags_xor([17, 19, 21, 23], 24))
    stamp(1)
    X2, S2 = 24, 32
    for k in range(4): unpack(X2 + 2*k, X2 + 2*k + 1, 16 + 2*k)
    ln_norm(X2, S2)
    ln_affine(X2, SC8, SH8, 16)
    G, U, GT = 56, 60, 14
    a(f"ds_write2_b32 v{HW_}, v16, v17 offset0:0 offset1:128\nds_write2_b32 v{HW_}, v18, v19 offset0:64 offset1:192")
    for i in range(8): a(f"v_mov_b32 v{G+i}, 0")
    a("s_waitcnt lgkmcnt(0)")
    barrier()
    for k in range(8): a(f"ds_read_b128 v[{16+4*k}:{19+4*k}], v{HF_} offset:{k*64}")
    for k in range(8):
        a(f"s_waitcnt lgkmcnt({7-k})")
        smf(G, 16 + 4*k, 64 + 8*k, IX_)
    DZ = 64
    gelu = [f"v_add_f32 v{G}, v{G}, v{G+1}", f"v_cvt_pk_bf16_f32 v{G}, 0, v{G}", f"v_mul_f32 v{GT}, v{G}, v{G}", f"v_mul_f32 v{GT}, 0x3d372713, v{GT}",
            f"v_fma_f32 v{GT}, v{GT}, v{G}, v{G}", f"v_mul_f32 v{GT}, 0x40135761, v{GT}", f"v_exp_f32 v{GT}, -v{GT}",
            f"v_add_f32 v{GT}, 1.0, v{GT}", f"v_rcp_f32 v{GT}, v{GT}", f"v_mul_f32 v{GT}, v{GT}, v{G}", f"v_cvt_pk_bf16_f32 v{GT}, 0, v{GT}"]
    zero = [f"v_mov_b32 v{DZ+4*t+r}, 0" for t in range(8) for r in range(2)]
    for k in range(8):
        smf(U, 16 + 4*k, 128 + 8*k, IX_)
        if k < 3:
            for _ in range(2): a(zero.pop(0))
        else:
            a(gelu.pop(0)); a(gelu.pop(0))
    while gelu: a(gelu.pop(0))
    a(f"v_add_f32 v{U}, v{U}, v{U+1}")
    bf16r(U, U)
    a(f"""
    v_mul_f32 v{GT}, v{GT}, v{U}
    v_cvt_pk_bf16_f32 v{GT}, v{GT}, v{GT}
    ds_write_b16 v{GW_}, v{GT}
    """)
    while zero: a(zero.pop(0))
    if epearly:
        a(f"""
        s_or_b32 s12, s2, s7
        s_cbranch_scc1 L_noep
        s_mov_b64 exec, 1
        v_mov_b32 v17, {TAG}
        buffer_store_dword v17, v1, s[48:51], 0 offen sc1
        s_mov_b64 exec, -1
        L_noep:
        """)
    a("s_waitcnt lgkmcnt(0)")
    barrier()
    a(f"""
    ds_read_b128 v[{AF}:{AF+3}], v{GF_}
    s_waitcnt lgkmcnt(0)
    """)
    assert not zero
    fw = []
    for t in range(8):
        smf(DZ + 4*t, AF, 192 + 8*t, IX_)
        if t >= 4:
            tt = t - 4
            a(f"v_add_f32 v{24+tt}, v{DZ+4*tt}, v{DZ+4*tt+1}")
            a(f"v_and_or_b32 v{24+tt}, v{24+tt}, v{MS_}, s{18+(tt&3)}")
    for tt in range(4, 8):
        a(f"v_add_f32 v{24+tt}, v{DZ+4*tt}, v{DZ+4*tt+1}")
        a(f"v_and_or_b32 v{24+tt}, v{24+tt}, v{MS_}, s{18+(tt&3)}")
    hstore("L_sp2", [f"buffer_store_dwordx4 v[{24+4*g}:{27+4*g}], v{PO_}, s[48:51], s23 offen offset:{256*g}" for g in range(2)])
    stamp(2)
    a("L_red2:")
    a(f"""
    s_add_u32 s12, s22, {WS_PART2}
    s_add_u32 s13, s12, 0x20000
    v_mov_b32 v36, s18
    v_mov_b32 v37, s19
    v_mov_b32 v38, s20
    v_mov_b32 v39, s21
    v_bfe_u32 v{TA}, v0, 2, 2
    v_and_b32 v{TB}, 3, v0
    v_lshlrev_b32 v{TA}, 5, v{TA}
    v_lshl_add_u32 v{TA}, v{TB}, 1, v{TA}
    """)
    srd(52, P_OUT, 4096)
    if dry: a("s_cmp_eq_u32 s0, 1\ns_cselect_b32 s54, 0, s54")
    poll("L_poll_p2", [f"buffer_load_dwordx4 v[32:35], v{TC}, s[48:51], s12 offen sc1", "s_mov_b32 exec_hi, 0xffff",
                       f"buffer_load_dwordx4 v[36:39], v{TC}, s[48:51], s13 offen sc1"],
         tags_bytes(2, 44), post="s_mov_b64 exec, -1")
    stamp(13)
    colsum(2)
    resid(RGB)
    a(f"""
    v_cvt_pk_bf16_f32 v16, v16, v16
    s_mov_b64 exec, 0xffff
    buffer_store_short v16, v{TA}, s[52:55], s71 offen {opol}
    """)
    if not epearly or dbg or pad:
        a(f"""
        s_or_b32 s12, s2, s7
        s_cbranch_scc1 L_hend
        s_mov_b64 exec, 1
        v_mov_b32 v17, {TAG}
        v_mov_b32 v18, 0
        buffer_store_dword v17, v18, s[48:51], 0 offen sc1
        """)
    if dbg:
        a("s_cmp_eq_u32 s0, 1\ns_cbranch_scc1 L_hend\ns_memrealtime s[94:95]\ns_waitcnt lgkmcnt(0)\ns_sub_u32 s94, s94, s60\ns_sub_u32 s96, s96, s60\ns_sub_u32 s98, s98, s60")
        srd(8, 40, 256)
        for i, r in enumerate([98, 91, 92, 93, 96, 94]):
            a(f"v_mov_b32 v17, s{r}\nbuffer_store_dword v17, v18, s[8:11], 0 offen offset:{4*i}")
    if pad:
        a(f"s_cmp_eq_u32 s0, 1\ns_cbranch_scc1 L_hend\nL_pad:\ns_memrealtime s[94:95]\ns_waitcnt lgkmcnt(0)\ns_sub_u32 s94, s94, s60\ns_cmp_lt_u32 s94, {pad}\ns_cbranch_scc1 L_pad")
    a("L_hend:")
    if dry: a("s_cmp_eq_u32 s0, 1\ns_cbranch_scc0 L_fin\ns_cmp_ge_u32 s68, 4\ns_cbranch_scc1 L_afterdry1\ns_branch L_afterdry2\nL_fin:")
    stamp(14)
    if diag:
        a(f"""
        s_mov_b64 exec, -1
        v_lshlrev_b32 v1, 4, v0
        v_add_u32 v20, {L_FL+F_TT}, v1
        s_mov_b32 exec_hi, 0
        ds_read_b128 v[16:19], v20
        s_lshl_b32 s12, s2, 9
        s_add_u32 s12, s12, {WS_DBG + 0x40000}
        s_waitcnt lgkmcnt(0)
        buffer_store_dwordx4 v[16:19], v1, s[48:51], s12 offen
        """)
    dump_stamps(15)
    a("L_end:")
    a("s_endpgm")
    a('.section .rodata,"a"')
    a(".p2align 6")
    a(f".amdhsa_kernel {NAME}_kernel")
    a("""
    .amdhsa_next_free_vgpr 256
    .amdhsa_next_free_sgpr 102
    .amdhsa_accum_offset 256
    .amdhsa_group_segment_fixed_size 0
    .amdhsa_kernarg_size 112
    .amdhsa_user_sgpr_count 2
    .amdhsa_user_sgpr_kernarg_segment_ptr 1
    .amdhsa_system_sgpr_workgroup_id_x 1
    .amdhsa_float_denorm_mode_32 3
    .end_amdhsa_kernel
    """)
    return out + a.text()

if __name__ == "__main__":
    kw = eval("dict(" + (sys.argv[2] if len(sys.argv) > 2 else "") + ")")
    open(sys.argv[1], "w").write(gen(**kw))
```

```python
import sys
from asmlib import Asm

NAME = "adaLN_cond__mha_block_cached__geglu_ffn__decode"
WS_MOD = 0x1000
WS_Q = 0x10000
WS_STATS = 0x20000
WS_X1 = 0x28000
WS_PART2 = 0x40000
WS_PART1 = 0x80000
WS_FAST = 0
WS_XCC = 0x30000
WS_LINE = 0x34000
AGG = 255
WS_TM, TMSTR = 0x280000, 4352
WS_DBG, WS_SIZE = 0x200000, 0x400000
L_W, L_ACT, L_Q, L_OP, L_GB, L_FL = 0, 0x20000, 0x21200, 0x21400, 0x21A00, 0x21E00
ACT_STRIDE, OP_STRIDE, GB_STRIDE = 1088, 320, 192
LDS_BYTES = 0x22200
F_FAC, F_KD, F_WF, F_WQ, F_WQD, F_H, F_G1, F_G2, F_ST, F_TT = 0, 64, 80, 96, 112, 128, 144, 160, 192, 256
NFFN = 28
SPIN_MAX = 1 << 20
P_X, P_K, P_V, P_WQ, P_WO, P_WG, P_WU, P_WD, P_C, P_WM, P_OUT, P_WS = 16, 18, 20, 22, 24, 28, 30, 32, 34, 36, 38, 42
TAG = "s45"
LOG2E, SCALE, HIMASK = "s64", "s65", "s66"


DOC = """;
;    The two workgroups of a head take alternate 32 KB blocks, so they work in the same DRAM pages.
;    the partner workgroup, output projection, and (workgroups with id % 8 == 0) reduction, LayerNorm, GEGLU FFN.
;  * load balance: every streamer compares its progress with a pace line averaged over a sample of workgroups
;    and picks how many loads it keeps in flight for the next 16 KB (4..8), so that all CUs finish together.
;  * sleeps appear only as back-off inside polling loops; every polling loop is bounded.
"""

def gen(D=5, A=8, E=4, P=48, PL=32, DP=5, D2=7, NE=1, thr=2, thrA=16, thrF=2, late1=False, hk=5, upk=None, up2=1.03, thrQ=4, thrD=3, slp=32, diag=False,
        levels=((4,-80),(4.5,-35),(5,30),(6,100),(8,None)), f1=0.13, f2=0.985, f3=0.985, ms=(3, 7, 11), lagK=2, lagV=1, lag3=1, early=30, D0=None, N0=0, gq=60, gm=24,
        kctl=True, fast=True, fpol='', touch=10, touch1=False, touchp=0, pwait=0, contig=False, mk=5, fk=1.01, nb0=8, mpoll=False, trlate=False, ilv=0, perm='w0 w1 t2 h t3', perm7=None, front=1, frontf=True, frontT=0, sparse=0, spol='', fnb=4, stouch=False, j2=True, frontw=True, diag2=False, fa_at=13, wpol='nt', noround=0, endat=99, endD=7, endbias=0, fin=7, epearly=True, opol='', otouch=False, p1first=False, p1q=False, wsh=0, psw=80, rotw=None, rotm=None, pf='', pfthr=16, xp=0, xb=None, sym=False, agg=True, aslp=24, alag=1, flag_=1, J=140, up=1.03, eth=45, boost=0.92, ek=0.0011, e0=10, fsplit=(3, 7), spf='w', sgran=128, tsh=1, nojT=True, dry=True, lastctl=True, tlb=True, dbg=False, pad=0, l2warm=True, skip=''):
    a = Asm()
    if front:
        thrQ, thrD, nb0, D0, N0 = 16, 16, fnb, None, 0
    def stamp(k):
        if diag: a(f"s_memrealtime s[{72+2*k}:{73+2*k}]")
    def srd(reg, ptr, nbytes):
        a(f"s_mov_b32 s{reg}, s{ptr}\ns_mov_b32 s{reg+1}, s{ptr+1}\ns_mov_b32 s{reg+2}, {nbytes}\ns_mov_b32 s{reg+3}, 0x20000")
    def dump_stamps(n):
        if not diag: return
        a("s_waitcnt lgkmcnt(0)")
        a("s_mov_b64 exec, 1")
        a("s_lshl_b32 s46, s2, 3\ns_add_u32 s46, s46, s3\ns_lshl_b32 s46, s46, 6")
        a(f"s_add_u32 s46, s46, {WS_DBG}")
        a("v_mov_b32 v1, 0")
        for k in range(n):
            a(f"v_mov_b32 v2, s{72+2*k}")
            a(f"buffer_store_dword v2, v1, s[48:51], s46 offen offset:{4*k}")
    FULL = "row_mask:0xf bank_mask:0xf"
    def allreduce(op, rs, tmps, rows_only=False, steps=("quad_perm:[1,0,3,2]", "quad_perm:[2,3,0,1]", "row_half_mirror", "row_mirror")):
        for st in steps:
            for r in rs: a(f"{op}_dpp v{r}, v{r}, v{r} {st} {FULL}")
        if rows_only: return
        for sw in ("v_permlane16_swap_b32", "v_permlane32_swap_b32"):
            for r, t in zip(rs, tmps): a(f"v_mov_b32 v{t}, v{r}")
            for r, t in zip(rs, tmps): a(f"{sw} v{r}, v{t}")
            for r, t in zip(rs, tmps): a(f"{op} v{r}, v{r}, v{t}")
    def bf16r(d, s):
        a(f"v_cvt_pk_bf16_f32 v{d}, 0, v{s}")
    def bf16r2(lo, hi, t):
        a(f"v_cvt_pk_bf16_f32 v{t}, v{lo}, v{hi}\nv_lshlrev_b32 v{lo}, 16, v{t}\nv_and_b32 v{hi}, {HIMASK}, v{t}")
    def unpack(lo, hi, s):
        a(f"v_lshlrev_b32 v{lo}, 16, v{s}\nv_and_b32 v{hi}, {HIMASK}, v{s}")
    def spin_begin(): a("s_mov_b32 s70, 0")
    def spin_check(): a(f"s_add_u32 s70, s70, 1\ns_cmp_gt_u32 s70, {SPIN_MAX}\ns_cbranch_scc1 L_end")
    MKTAG = "s_mul_i32 s45, s44, 1664525\ns_add_u32 s45, s45, 1013904223"
    BAR0 = "s_load_dword s44, s[42:43], 0\ns_barrier"
    def set_flag(row, widx, va, vb):
        a(f"s_lshl_b32 s47, {widx}, 2\ns_add_u32 s47, s47, {L_FL+row}\nv_mov_b32 v{va}, s47\nv_mov_b32 v{vb}, 1\nds_write_b32 v{va}, v{vb}")
    def wait_flags(lbl, row, t, sleep):
        spin_begin()
        a(f"v_mov_b32 v{t+4}, {L_FL+row}")
        a(f"{lbl}:")
        spin_check()
        if sleep: a(f"s_sleep {sleep}")
        a(f"""
        ds_read_b128 v[{t}:{t+3}], v{t+4}
        s_waitcnt lgkmcnt(0)
        v_and_b32 v{t}, v{t}, v{t+1}
        v_and_b32 v{t+2}, v{t+2}, v{t+3}
        v_and_b32 v{t}, v{t}, v{t+2}
        v_readfirstlane_b32 s47, v{t}
        s_cmp_eq_u32 s47, 1
        s_cbranch_scc0 {lbl}
        """)

    hdr = open("cdna_kernels/" + NAME + ".s.ref").read().split("; Override launch")[0]
    out = hdr + f"; @launch grid=(256,1,1) block=(512,1,1) lds={LDS_BYTES}\n" + DOC
    a('.amdgcn_target "amdgcn-amd-amdhsa--gfx950"')
    a(".text")
    a(f".globl {NAME}_kernel")
    a(".p2align 8")
    a(f".type {NAME}_kernel,@function")
    a(f"{NAME}_kernel:")
    a("""
    s_cmp_ge_u32 s2, 256
    s_cbranch_scc1 L_end
    s_load_dwordx16 s[16:31], s[0:1], 0
    s_load_dwordx8 s[32:39], s[0:1], 64
    s_load_dwordx4 s[40:43], s[0:1], 96
    """)
    if diag:
        for k in range(1, 15): a(f"s_mov_b32 s{72+2*k}, 0")
    stamp(0)
    a("""
    v_lshrrev_b32 v1, 6, v0
    v_and_b32 v0, 63, v0
    v_readfirstlane_b32 s3, v1
    v_lshlrev_b32 v1, 4, v0
    s_lshr_b32 s12, s2, 3
    s_and_b32 s4, s12, 3
    s_lshl_b32 s4, s4, 3
    s_and_b32 s13, s2, 7
    s_add_u32 s4, s4, s13
    s_bfe_u32 s5, s12, 0x20002
    s_lshr_b32 s6, s12, 4
    s_mov_b32 s64, 0x3fb8aa3b
    s_mov_b32 s65, 0x3db504f3
    s_mov_b32 s66, 0xffff0000
    s_lshl_b32 s15, s5, 5
    s_add_u32 s15, s15, s4
    s_cmp_ge_u32 s3, 4
    s_cbranch_scc1 L_helper
    """)

    PB = {sym: 12 + i for i, sym in enumerate(perm.split())} if perm else {'w0': 12, 'w1': 13, 't2': 14, 't3': 15, 'h': 20}
    if perm7: PB = {sym: 10 + i for i, sym in enumerate(perm7.split())}
    def noff(n): return sum(((n >> k) & 1) << PB[f"t{k}"] for k in range(4)) + ((n >> 4) << 17)
    def goff(g): return ((g & 1) << PB['t2']) + (((g >> 1) & 1) << PB['t3']) + ((g >> 2) << ((17 + xp) if perm else 16))
    Q, MK, BB, ACC, PT, XX, YY, T0, T1, SC, RING = 2, 6, 10, 14, 18, 34, 42, 46, 47, 48, 64
    if xb is not None:
        xp = 1
        a(f"""
        s_andn2_b32 s13, s15, {1 << xb}
        s_lshl_b32 s13, s13, 21
        s_bfe_u32 s14, s15, {0x10000 + xb}
        s_lshl_b32 s14, s14, 17
        s_add_u32 s13, s13, s14
        s_mov_b32 s67, 0
        """)
    elif xp:
        a(f"""
        s_lshr_b32 s13, s5, {xp}
        s_lshl_b32 s13, s13, 5
        s_add_u32 s13, s13, s4
        s_lshl_b32 s13, s13, {21 + xp}
        s_and_b32 s14, s5, {(1 << xp) - 1}
        s_lshl_b32 s14, s14, 17
        s_add_u32 s13, s13, s14
        """)
    else: a("s_lshl_b32 s13, s15, 21")
    a(f"""
    s_lshl_b32 s14, s6, {PB['h']}
    s_add_u32 s13, s13, s14
    s_and_b32 s14, s3, 1
    s_lshl_b32 s14, s14, {PB['w0']}
    s_add_u32 s13, s13, s14
    s_lshr_b32 s14, s3, 1
    s_lshl_b32 s14, s14, {PB['w1']}
    s_add_u32 s13, s13, s14
    s_mov_b32 s12, s13
    s_lshl_b32 s14, s3, 15
    s_waitcnt lgkmcnt(0)
    s_mov_b32 s0, 0
    """)
    if diag2: stamp(1)
    srd(8, P_K, 0x10000000)
    st = {"issued": 0, "landed": 0}
    PT_ = P + PL
    assert P % 4 == 0 and PL <= 32
    def ldsoff(n): return ((n - P + 16) % 32) * 1024
    def slot(n):
        if n < P: return RING + 4 * n
        if n < PT_: return RING + 4 * (16 + n - P)
        return RING + 4 * ((n - PT_) % 16)
    def issue(n):
        imm = 0 if perm7 else (n & 3) * 1024
        if P <= n < PT_:
            if n & 3 == 0 or perm7: a(f"s_add_u32 m0, s14, {ldsoff(n)}")
            a(f"buffer_load_dwordx4 v1, s[8:11], s12 offen offset:{imm} nt lds")
        else:
            r = slot(n)
            a(f"buffer_load_dwordx4 v[{r}:{r+3}], v1, s[8:11], s12 offen offset:{imm} nt")
        if perm7: a(f"s_add_u32 s12, s12, {(noff(n + 1) - noff(n)) & 0xffffffff}")
        elif n & 3 == 3: a(f"s_add_u32 s12, s12, {(goff((n >> 2) + 1) - goff(n >> 2)) & 0xffffffff}")
        if xb is not None and n & 15 == 15:
            a(f"s_add_u32 s67, s67, 1\ns_and_b32 s68, s67, 7\ns_cselect_b32 s68, 0, {((1 << (21 + xb)) - (1 << 21))}\ns_add_u32 s12, s12, s68")
        st["issued"] = n + 1
    def throttle(d=None):
        d = d or D
        a(f"s_waitcnt vmcnt({d-1})")
        st["landed"] = max(st["landed"], st["issued"] - (d - 1))
    def ensure(n):
        if n >= st["landed"]:
            k = st["issued"] - 1 - n
            a(f"s_waitcnt vmcnt({k})"); st["landed"] = n + 1
    for n in range(PT_):
        if n == P + 16: wait_flags("L_wqd", F_WQD, PT, 0)
        dd_ = D0 if (D0 and n < N0) else DP
        if n >= dd_: throttle(dd_)
        if diag2 and n == dd_: stamp(2)
        if diag2 and n == 2*dd_: stamp(3)
        if diag2 and n == 20: stamp(5)
        issue(n)
        if n == max(DP, D0 or 0) - 1:
            srd(48, P_WS, WS_SIZE)
            a(f"""
            s_mov_b32 s60, 0xaaaaaaaa
            s_mov_b32 s61, 0xaaaaaaaa
            s_mov_b32 s62, 0xcccccccc
            s_mov_b32 s63, 0xcccccccc
            v_and_b32 v{T0}, 15, v0
            v_and_b32 v{T1}, 1, v0
            v_lshlrev_b32 v{T1}, 4, v{T1}
            v_mov_b32 v{PT}, 0xffff
            v_lshlrev_b32 v{T1}, v{T1}, v{PT}
            v_lshrrev_b32 v{PT}, 1, v{T0}
            """)
            for t in range(4):
                a(f"v_cmp_eq_u32 vcc, {t}, v{PT}\nv_cndmask_b32 v{MK+t}, 0, v{T1}, vcc")
            for t in range(4): a(f"v_mov_b32 v{ACC+t}, 0")
            a(f"v_lshlrev_b32 v{T0}, 4, v{T0}\nv_add_u32 v{T0}, {L_Q}, v{T0}")
        if n == nb0: a("s_barrier")
        if n == gm: set_flag(F_G1, "s3", PT, PT+1)
        if n == gq: set_flag(F_G2, "s3", PT, PT+1)
    if not diag2: stamp(1)
    a("s_barrier")
    if not diag2: stamp(2)
    a(f"ds_read_b128 v[{Q}:{Q+3}], v{T0}\nv_add_u32 v{T0}, s14, v1\ns_waitcnt lgkmcnt(0)")
    def kdots(n):
        r = slot(n); p = PT + n % 16
        a(f"v_dot2_f32_bf16 v{p}, v{r}, v{Q}, 0")
        for i in range(1, 4): a(f"v_dot2_f32_bf16 v{p}, v{r+i}, v{Q+i}, v{p}")
    def kreduce(dst):
        for j in range(8): a(f"v_add_f32_dpp v{XX+j}, v{PT+j}, v{PT+j} row_ror:8 row_mask:0xf bank_mask:0x3")
        for j in range(8): a(f"v_add_f32_dpp v{XX+j}, v{PT+8+j}, v{PT+8+j} row_ror:8 row_mask:0xf bank_mask:0xc")
        for j in range(4): a(f"v_add_f32_dpp v{YY+j}, v{XX+j}, v{XX+j} row_half_mirror row_mask:0xf bank_mask:0x5")
        for j in range(4): a(f"v_add_f32_dpp v{YY+j}, v{XX+4+j}, v{XX+4+j} row_half_mirror row_mask:0xf bank_mask:0xa")
        for j in range(2):
            a(f"v_cndmask_b32 v{XX+2*j}, v{YY+j+2}, v{YY+j}, s[62:63]")
            a(f"v_cndmask_b32 v{XX+2*j+1}, v{YY+j}, v{YY+j+2}, s[62:63]")
        for j in range(2):
            a(f"v_add_f32_dpp v{XX+4+j}, v{XX+2*j}, v{XX+2*j+1} quad_perm:[2,3,0,1] {FULL}")
        a(f"v_cndmask_b32 v{XX}, v{XX+5}, v{XX+4}, s[60:61]")
        a(f"v_cndmask_b32 v{XX+1}, v{XX+4}, v{XX+5}, s[60:61]")
        a(f"v_add_f32_dpp v{XX+2}, v{XX}, v{XX+1} quad_perm:[1,0,3,2] {FULL}")
        if noround < 1: bf16r(XX+2, XX+2)
        a(f"v_mul_f32 v{XX+2}, {SCALE}, v{XX+2}")
        if noround < 2: bf16r(dst, XX+2)
        else: a(f"v_mov_b32 v{dst}, v{XX+2}")
    tgt = -(-(PT_ + 16 - A + 4) // 16) * 16
    NPEEL = tgt // 16
    KL = 16 - NPEEL
    cons = {"n": 0}
    def consume_k_upto(m):
        while cons["n"] < m:
            n = cons["n"]
            if n == P:
                a("s_waitcnt lgkmcnt(0)")
                set_flag(F_WF, "s3", T0, T1)
            ensure(n); kdots(n); cons["n"] += 1
            m2 = n - 16 + P
            if n >= 16 and P <= m2 < PT_:
                ensure(m2)
                r = slot(m2)
                a(f"ds_read_b128 v[{r}:{r+3}], v{T0} offset:{ldsoff(m2)}")
            if n % 16 == 15: kreduce(SC + n // 16 + KL)
    nsteps = tgt + A - PT_
    for s in range(nsteps):
        n = PT_ + s
        prev = s if s < 16 else n - 16
        if s <= 16: want = 1 + -(-PT_ * s // 16)
        else: want = PT_ + 1 + -(-(tgt - PT_ - 1) * (s - 16) // (nsteps - 16))
        want = min(want, max(st["landed"], PT_))
        consume_k_upto(min(max(want, prev + 1), tgt))
        throttle(); issue(n)
    a("s_memrealtime s[52:53]")
    consume_k_upto(tgt)
    FA, FAD, TTA, TTV = 128, 132, 133, 134
    LV = [x[0] for x in levels]
    def ln_(dd): return str(dd).replace(".", "p")
    def dstep(dd, j):
        import math
        return int(math.floor((j + 1) * dd) - math.floor(j * dd))
    a(f"""
    s_mov_b32 s14, 0
    s_mov_b32 s56, 0
    s_mov_b32 s57, 0
    s_mov_b32 s58, 0
    s_mov_b32 s59, 0
    s_mov_b32 s68, {100000 if nojT else J}
    s_and_b32 s69, s2, 7
    s_cselect_b32 s69, {J}, s68
    s_cselect_b32 s71, 0, {tsh}
    s_mov_b32 s67, 0
    s_mov_b32 s68, 0
    s_lshl_b32 s47, s3, 4
    s_add_u32 s47, s47, {L_FL+F_FAC}
    v_mov_b32 v{FAD}, s47
    s_lshl_b32 s47, s3, 2
    s_add_u32 s47, s47, {L_FL+F_TT}
    v_mov_b32 v{TTA}, s47
    v_mov_b32 v{FA+3}, 0
    """)
    def record():
        a(f"""
        s_waitcnt lgkmcnt(0)
        s_or_b32 s53, s52, 1
        v_mov_b32 v{TTV}, s53
        ds_write_b32 v{TTA}, v{TTV}
        v_add_u32 v{TTA}, 16, v{TTA}
        """)
    def dispatch(pre):
        a(f"""
        v_readfirstlane_b32 s55, v{FA+3}
        v_readfirstlane_b32 s54, v{FA+2}
        s_sub_u32 s53, s52, s57
        s_mov_b32 s57, s52
        s_cmp_eq_u32 s55, 0
        s_cbranch_scc1 {pre}{ln_(D)}
        s_sub_u32 s52, s52, s54
        s_lshr_b32 s54, s55, 16
        s_and_b32 s55, s55, 0xffff
        s_lshr_b32 s47, s55, 2
        s_sub_u32 s53, s53, s47
        s_mul_i32 s55, s55, s56
        s_lshr_b32 s55, s55, 4
        s_sub_u32 s52, s52, s55
        s_cmp_gt_i32 s53, s69
        s_cselect_b32 s67, s58, s67
        s_cselect_b32 s68, s59, s68
        s_cselect_b32 s58, s53, s58
        s_cselect_b32 s59, s56, s59
        s_cmp_gt_u32 s59, s54
        s_cselect_b32 s55, s58, 0
        s_sub_u32 s52, s52, s55
        s_cmp_gt_u32 s68, s54
        s_cselect_b32 s55, s67, 0
        s_sub_u32 s52, s52, s55
        """)
        if tsh: a("s_lshl_b32 s52, s52, s71")
        if wsh: a(f"s_cmp_lt_u32 s56, {psw}\ns_cselect_b32 s55, {wsh}, 0\ns_ashr_i32 s52, s52, s55")
        for dd, th in levels:
            if th is None: a(f"s_branch {pre}{ln_(dd)}")
            else: a(f"s_cmp_lt_i32 s52, {th}\ns_cbranch_scc1 {pre}{ln_(dd)}")
    a("; ---- K loop: record progress, choose the prefetch depth, run one 16-tile body")
    a("L_kdisp:")
    record()
    a(f"s_cmp_ge_u32 s14, {KL}\ns_cbranch_scc1 L_kdone")
    if kctl: dispatch("L_k")
    for dd in (LV if kctl else [D]):
        assert dd <= A
        a(f"L_k{ln_(dd)}:")
        for j in range(16):
            n = tgt + j
            if j == fa_at: a(f"ds_read_b128 v[{FA}:{FA+3}], v{FAD}")
            a(f"s_waitcnt vmcnt({dstep(dd, j)-1})")
            if j == 16 - A:
                a(f"s_cmp_eq_u32 s14, {KL-1}\ns_cselect_b32 s8, s{P_V}, s8\ns_cselect_b32 s9, s{P_V+1}, s9\ns_cselect_b32 s12, s13, s12")
            issue(n + A)
            if j == 15: a("s_memrealtime s[52:53]")
            kdots(n)
            if j == 7:
                for i in range(15): a(f"v_mov_b32 v{SC+i}, v{SC+i+1}")
        kreduce(SC + 15)
        a("s_add_u32 s14, s14, 1\ns_add_u32 s56, s56, 4\ns_branch L_kdisp")
    a("L_kdone:")
    a("s_add_u32 s57, s57, 70")
    if not diag2: stamp(3)
    ex = {"n": 256 + A}
    def extra():
        if ex["n"] < 256 + A + E:
            a(f"s_waitcnt vmcnt({D-1})"); issue(ex["n"]); ex["n"] += 1
    extra()
    M, Ls = PT, PT + 1
    a(f"v_max3_f32 v{M}, v{SC}, v{SC+1}, v{SC+2}")
    for i in range(3, 15, 2): a(f"v_max3_f32 v{M}, v{M}, v{SC+i}, v{SC+i+1}")
    a(f"v_max_f32 v{M}, v{M}, v{SC+15}")
    allreduce("v_max_f32", [M], [T0])
    a(f"v_mul_f32 v{T1}, {LOG2E}, v{M}")
    extra()
    for i in range(16): a(f"v_fma_f32 v{SC+i}, v{SC+i}, {LOG2E}, -v{T1}")
    for i in range(16): a(f"v_exp_f32 v{SC+i}, v{SC+i}")
    extra()
    a(f"v_add_f32 v{Ls}, v{SC}, v{SC+1}\nv_add_f32 v{Ls+1}, v{SC+2}, v{SC+3}")
    for i in range(4, 16, 2): a(f"v_add_f32 v{Ls}, v{Ls}, v{SC+i}\nv_add_f32 v{Ls+1}, v{Ls+1}, v{SC+i+1}")
    a(f"v_add_f32 v{Ls}, v{Ls}, v{Ls+1}")
    for i in range(16): a(f"v_cvt_pk_bf16_f32 v{SC+i}, v{SC+i}, v{SC+i}")
    extra()
    allreduce("v_add_f32", [Ls], [T0])
    a(f"ds_write_b64 v{FAD}, v[{M}:{Ls}] offset:{F_ST-F_FAC}")
    set_flag(F_KD, "s3", PT+5, PT+6)
    while ex["n"] < 256 + A + E: extra()
    a("s_memrealtime s[52:53]")
    AV = A + E
    assert AV <= 15
    a(f"""
    v_lshrrev_b32 v{PT}, 4, v0
    v_lshlrev_b32 v{PT}, 5, v{PT}
    v_bfe_u32 v{PT+1}, v0, 1, 1
    v_lshl_add_u32 v{PT}, v{PT+1}, 7, v{PT}
    v_bfe_u32 v{PT+1}, v0, 2, 1
    v_lshl_add_u32 v{PT}, v{PT+1}, 2, v{PT}
    v_and_b32 v{PT+1}, 1, v0
    v_lshl_add_u32 v{PT}, v{PT+1}, 1, v{PT}
    s_mul_i32 s46, s3, {OP_STRIDE}
    s_add_u32 s46, s46, {L_OP}
    v_add_u32 v{PT}, s46, v{PT}
    s_mov_b32 s14, 0
    s_add_u32 s56, s56, {E//4}
    s_waitcnt lgkmcnt(0)
    """)
    def vbody(dd, last, timed):
        assert dd <= AV
        for j in range(16):
            n = 256 + j
            if j == fa_at: a(f"ds_read_b128 v[{FA}:{FA+3}], v{FAD}")
            for t in range(4): a(f"v_and_b32_dpp v{BB+t}, v{SC}, v{MK+t} row_newbcast:{j} {FULL}")
            a(f"s_waitcnt vmcnt({dstep(dd, j)-1})")
            if j == 16 - AV and last:
                a("s_cmp_eq_u32 s14, 15\ns_cselect_b32 s10, 0, s10")
            issue(n + AV)
            r = slot(n)
            if j == 15 and timed: a("s_memrealtime s[52:53]")
            a(f"v_mfma_f32_16x16x32_bf16 v[{ACC}:{ACC+3}], v[{r}:{r+3}], v[{BB}:{BB+3}], v[{ACC}:{ACC+3}]")
        if lastctl and not fin: a("s_cmp_eq_u32 s14, 15\ns_cbranch_scc1 L_sepi")
        for i in range(15): a(f"v_mov_b32 v{SC+i}, v{SC+i+1}")
        a("s_add_u32 s14, s14, 1\ns_add_u32 s56, s56, 4")
    assert NE >= 1
    a("s_branch L_vd1")
    a("; ---- V loop")
    a("L_vdisp:")
    if lastctl:
        record()
    else:
        record()
        a(f"s_cmp_ge_u32 s14, {16-NE}\ns_cbranch_scc1 L_vlast")
    if fin: a("s_cmp_eq_u32 s14, 15\ns_cbranch_scc1 L_vfin")
    if endat < 16: a(f"s_cmp_ge_u32 s14, {endat}\ns_cbranch_scc1 L_v{ln_(endD)}")
    if endbias: a(f"s_cmp_ge_u32 s14, 14\ns_cselect_b32 s55, {endbias}, 0\ns_add_u32 s52, s52, s55\ns_add_u32 s57, s57, s55")
    a("L_vd1:")
    dispatch("L_v")
    for dd in LV:
        a(f"L_v{ln_(dd)}:")
        vbody(dd, lastctl and not fin, True)
        a("s_branch L_vdisp")
    if fin:
        a("L_vfin:")
        a(f"ds_read_b128 v[{FA}:{FA+3}], v{FAD}")
        st["issued"] = 496 + AV; st["landed"] = 496 + AV - max(int(x + 0.999) for x in LV)
        def vcons(n):
            j = n - 496
            bb = BB if j & 1 else XX
            for t in range(4): a(f"v_and_b32_dpp v{bb+t}, v{SC}, v{MK+t} row_newbcast:{j} {FULL}")
            ensure(n)
            r = slot(n)
            a(f"v_mfma_f32_16x16x32_bf16 v[{ACC}:{ACC+3}], v[{r}:{r+3}], v[{bb}:{bb+3}], v[{ACC}:{ACC+3}]")
        c_ = 496
        for n in range(496 + AV, 512):
            throttle(fin); issue(n)
            for _ in range(2):
                if c_ < st["landed"]: vcons(c_); c_ += 1
        a("L_vfin2:")
        while c_ < 512: vcons(c_); c_ += 1
    if not lastctl:
        a("L_vlast:")
        vbody(D2, True, False)
        a("s_cmp_lt_u32 s14, 16\ns_cbranch_scc1 L_vlast")
    a("L_sepi:")
    if not fin: a("s_nop 7")
    stamp(4)
    a(f"s_waitcnt lgkmcnt(0)\nv_readfirstlane_b32 s46, v{FA+1}\ns_mov_b32 s70, 0\ns_or_b32 s46, s46, s0\ns_cmp_lg_u32 s46, 0\ns_cbranch_scc0 L_facspin")
    a("L_facok:")
    for t in range(4): a(f"v_mul_f32 v{ACC+t}, v{ACC+t}, v{FA}")
    a(f"v_cvt_pk_bf16_f32 v{ACC}, v{ACC}, v{ACC+1}\nv_cvt_pk_bf16_f32 v{ACC+2}, v{ACC+2}, v{ACC+3}")
    a(f"""
    s_mov_b32 exec_lo, 0x00ff00ff
    s_mov_b32 exec_hi, 0x00ff00ff
    ds_write_b16 v{PT}, v{ACC}
    ds_write_b16_d16_hi v{PT}, v{ACC} offset:8
    ds_write_b16 v{PT}, v{ACC+2} offset:16
    ds_write_b16_d16_hi v{PT}, v{ACC+2} offset:24
    s_waitcnt lgkmcnt(0)
    """)
    if dry: a("s_cmp_eq_u32 s0, 1\ns_cbranch_scc1 L_tail0")
    a("s_barrier")
    if not diag2: stamp(5)
    dump_stamps(6)
    a("s_endpgm")
    a("L_facspin:")
    spin_check()
    a(f"ds_read_b128 v[{FA}:{FA+3}], v{FAD}\ns_waitcnt lgkmcnt(0)\nv_readfirstlane_b32 s46, v{FA+1}\ns_cmp_eq_u32 s46, 1\ns_cbranch_scc0 L_facspin\ns_branch L_facok")

    a("L_helper:")
    TRB, DA, DB, DN, TA, TB, TC = 2, 4, 5, 6, 7, 8, 9
    a(f"""
    s_memrealtime s[60:61]
    s_sub_u32 s7, s3, 4
    """)
    def lane_consts():
        a(f"""
        v_lshrrev_b32 v{TA}, 4, v0
        v_bfe_u32 v{TB}, v0, 2, 2
        v_and_b32 v{TC}, 3, v0
        v_lshl_add_u32 v{TRB}, v{TA}, 3, v{TB}
        v_lshlrev_b32 v{TRB}, 8, v{TRB}
        v_lshl_add_u32 v{TRB}, v{TC}, 3, v{TRB}
        v_and_b32 v{TC}, 1, v{TA}
        v_lshl_add_u32 v{TB}, v{TC}, 2, v{TB}
        v_lshl_add_u32 v{TRB}, v{TB}, 5, v{TRB}
        s_lshl_b32 s12, s7, 15
        v_add_u32 v{TRB}, s12, v{TRB}
        v_and_b32 v{TB}, 15, v0
        v_lshlrev_b32 v{TC}, 1, v{TA}
        v_xor_b32 v{TB}, v{TB}, v{TC}
        v_lshlrev_b32 v{DN}, 4, v{TB}
        v_mov_b32 v{DA}, 0
        """)
    lane_consts()
    a(f"""
    s_bfe_u32 s13, s2, {0x40003 if sym else 0x50003}
    s_lshl_b32 s69, s13, {1 if sym else 0}
    {"s_add_u32 s69, s69, s6" if sym else ""}
    s_and_b32 s12, s2, 7
    s_mov_b32 s68, 4
    s_cmp_lt_u32 s69, {NFFN}
    s_cselect_b32 s68, 5, s68
    s_cmp_eq_u32 s12, 0
    s_cbranch_scc1 L_role
    s_mul_i32 s69, s13, 7
    s_add_u32 s69, s69, s12
    s_sub_u32 s69, s69, 1
    s_lshl_b32 s69, s69, {1 if sym else 0}
    {"s_add_u32 s69, s69, s6" if sym else ""}
    s_mov_b32 s68, 1
    s_cmp_lt_u32 s69, {48 if front else 16}
    s_cbranch_scc1 L_role
    s_sub_u32 s69, s69, {48 if front else 16}
    s_mov_b32 s68, 3
    s_cmp_lt_u32 s69, 64
    s_cbranch_scc1 L_role
    s_sub_u32 s69, s69, 48
    s_mov_b32 s68, 2
    s_cmp_lt_u32 s69, {0 if front else 48}
    s_cbranch_scc1 L_role
    s_mov_b32 s68, 0
    L_role:
    """)
    a(f"""
    s_cmp_lg_u32 s7, 3
    s_cbranch_scc1 L_noinit
    s_and_b32 s12, s68, 1
    s_xor_b32 s12, s12, 1
    v_cmp_eq_u32 vcc, {F_WQD//16}, v0
    v_mov_b32 v17, s12
    v_cndmask_b32 v16, 0, v17, vcc
    v_mov_b32 v17, v16
    v_mov_b32 v18, v16
    v_mov_b32 v19, v16
    v_add_u32 v20, {L_FL}, v1
    ds_write_b128 v20, v[16:19]
    L_noinit:
    s_waitcnt lgkmcnt(0)
    s_mov_b32 s0, 0
    s_mov_b32 s71, 0
    """)
    srd(48, P_WS, WS_SIZE)
    def dma_seq(nins, stride, soff, ldsbase, infl, hooks, pol, sel, rot):
        if rot:
            a(rot)
            a(f"s_mov_b32 s59, {ldsbase}")
        for i in range(nins):
            if rot:
                if i: a(f"s_add_u32 s58, s58, 1\ns_and_b32 s58, s58, {nins-1}")
                a(f"s_lshl_b32 s57, s58, 10\ns_add_u32 m0, s59, s57\ns_mul_i32 s57, s58, {stride}\ns_add_u32 s57, s57, {soff}")
                so = "s57"
            else:
                a(f"s_mov_b32 m0, {ldsbase}" if i == 0 else "s_add_u32 m0, m0, 0x400")
                if i: a(f"s_add_u32 {soff}, {soff}, {stride}")
                so = soff
            a(f"buffer_load_dwordx4 v{DB if sel(i) else DA}, s[8:11], {so} offen {pol} lds")
            if i in hooks: hooks[i]()
            if i >= infl - 1: a(f"s_waitcnt vmcnt({infl-1})")
    def rot_code(src, mul, shr, gran, nins):
        return f"s_mul_i32 s58, {src}, {mul}\ns_lshr_b32 s58, s58, {shr}\ns_lshl_b32 s58, s58, {gran}\ns_and_b32 s58, s58, {nins-1}"
    def dma_wide(nins, rs_log2, soff, infl, hooks={}, pol='nt', key="s69"):
        a(f"v_lshrrev_b32 v{TA}, 4, v0\nv_lshl_add_u32 v{DA}, v{TA}, {rs_log2}, v{DN}\nv_xor_b32 v{DB}, 0x80, v{DA}")
        a("s_lshl_b32 s14, s7, 15")
        dma_seq(nins, 4 << rs_log2, soff, "s14", infl, hooks, pol, lambda i: (i >> 1) & 1, rot_code(key, rotw[0], rotw[1], 2, nins) if rotw else None)
    def dma_mid(soff, ldsbase, infl, rs, hooks={}, n=16):
        a(f"""
        v_lshrrev_b32 v{DA}, 3, v0
        v_mul_u32_u24 v{DA}, {rs}, v{DA}
        v_bfe_u32 v{DB}, v0, 4, 1
        v_lshlrev_b32 v{DB}, 1, v{DB}
        v_and_b32 v{TA}, 7, v0
        v_xor_b32 v{DB}, v{DB}, v{TA}
        v_lshl_add_u32 v{DA}, v{DB}, 4, v{DA}
        v_xor_b32 v{DB}, 64, v{DA}
        """)
        dma_seq(n, 8*rs, soff, ldsbase, infl, hooks, "nt", lambda i: i & 1, rot_code("s69", rotm[0], rotm[1], 1, 16) if rotm else None)
    def sprefetch(lbl, ptr, off, nrows, rs, rowbytes):
        per = rowbytes // sgran
        rows = max(1, 16 // per)
        while nrows % rows: rows -= 1
        a(f"s_mov_b32 s56, {off}\ns_mov_b32 s57, 0\n{lbl}:")
        for r_ in range(rows):
            for c_ in range(per):
                a(f"s_add_u32 s59, s56, {r_*rs + c_*sgran}\ns_load_dword s58, s[{ptr}:{ptr+1}], s59")
        a(f"s_waitcnt lgkmcnt(0)\ns_add_u32 s56, s56, {rows*rs}\ns_add_u32 s57, s57, {rows}\ns_cmp_lt_u32 s57, {nrows}\ns_cbranch_scc1 {lbl}")
    def mid_bases():
        a(f"""
        v_lshrrev_b32 v{TB}, 4, v0
        v_bfe_u32 v{TC}, v0, 2, 2
        v_lshl_add_u32 v{TA}, v{TB}, 3, v{TC}
        v_lshlrev_b32 v{TA}, 7, v{TA}
        v_and_b32 v{TB}, 1, v{TB}
        v_lshrrev_b32 v{TC}, 1, v{TC}
        v_lshl_add_u32 v{TB}, v{TB}, 1, v{TC}
        v_xor_b32 v{TB}, s7, v{TB}
        v_lshl_add_u32 v{TA}, v{TB}, 5, v{TA}
        v_and_b32 v{TB}, 3, v0
        v_lshl_add_u32 v{TA}, v{TB}, 3, v{TA}
        v_add_u32 v{TB}, 0x10000, v{TA}
        """)
    def tr_mid(dst, off):
        for s in range(16):
            r = dst + 4 * s
            ar = TA if s < 8 else TB
            o = off + ((s >> 2) & 1) * 0x8000 + (s & 3) * 4096
            a(f"ds_read_b64_tr_b16 v[{r}:{r+1}], v{ar} offset:{o}")
            a(f"ds_read_b64_tr_b16 v[{r+2}:{r+3}], v{ar} offset:{o+512}")
        a("s_waitcnt lgkmcnt(0)")
    def tr_wide(dst, nk):
        for t in range(8):
            ar = TA if t & 1 else TB
            a(f"v_xor_b32 v{ar}, {t << 5}, v{TRB}")
            for s in range(nk):
                r = dst + (t * nk + s) * 4
                a(f"ds_read_b64_tr_b16 v[{r}:{r+1}], v{ar} offset:{s*8192}")
                a(f"ds_read_b64_tr_b16 v[{r+2}:{r+3}], v{ar} offset:{s*8192+1024}")
        a("s_waitcnt lgkmcnt(0)")
    def act_addr(dst, rowsel, tmp):
        a(f"v_and_b32 v{dst}, 3, v0" if rowsel == "lo" else f"v_bfe_u32 v{dst}, v0, 2, 2")
        a(f"v_mul_u32_u24 v{dst}, {ACT_STRIDE}, v{dst}\nv_lshrrev_b32 v{tmp}, 4, v0\nv_lshl_add_u32 v{dst}, v{tmp}, 4, v{dst}\nv_add_u32 v{dst}, {L_ACT}, v{dst}")
    def poll(lbl, loads, tags, sleep=0, pre="", post=""):
        spin_begin()
        if sleep: a(f"s_branch {lbl}_go")
        a(f"{lbl}:")
        spin_check()
        if sleep: a(f"s_sleep {sleep}\n{lbl}_go:")
        a(pre)
        for l in loads: a(l)
        a(post)
        if not getattr(tags, "waits", False): a("s_waitcnt vmcnt(0)")
        tags()
        a(f"s_cmp_eq_u64 vcc, exec\ns_cbranch_scc0 {lbl}")
    def tags_words(regs):
        def f():
            a(f"v_cmp_eq_u32 vcc, {TAG}, v{regs[0]}")
            for r in regs[1:]: a(f"v_cmp_eq_u32 s[56:57], {TAG}, v{r}\ns_and_b64 vcc, vcc, s[56:57]")
        return f
    def tags_xor(regs, t):
        def f():
            a(f"v_xor_b32 v{t}, {TAG}, v{regs[0]}")
            for r in regs[1:]: a(f"v_xor_b32 v{t+1}, {TAG}, v{r}\nv_or_b32 v{t}, v{t}, v{t+1}")
            a(f"v_cmp_eq_u32 vcc, 0, v{t}")
        return f
    def tags_bytes(n, t):
        def f():
            for q in range(n):
                a(f"s_waitcnt vmcnt({n-1-q})")
                for i in range(4*q, 4*q + 4): a(f"v_xor_b32 v{16+i}, s{18+(i&3)}, v{32+i}")
                b_ = 16 + 4*q
                if q == 0: a(f"v_or3_b32 v{t}, v{b_}, v{b_+1}, v{b_+2}\nv_or_b32 v{t}, v{t}, v{b_+3}")
                else: a(f"v_or3_b32 v{t}, v{t}, v{b_}, v{b_+1}\nv_or3_b32 v{t}, v{t}, v{b_+2}, v{b_+3}")
            a(f"v_lshlrev_b32 v{t}, 24, v{t}\nv_cmp_eq_u32 vcc, 0, v{t}")
        f.waits = True
        return f
    def pk(op, d, x, y, mods=""):
        yy = y if isinstance(y, str) else f"v[{y}:{y+1}]"
        a(f"v_pk_{op}_f32 v[{d}:{d+1}], v[{x}:{x+1}], {yy} {mods}")
    NEG = "neg_lo:[0,1] neg_hi:[0,1]"
    def rnd8(x0):
        for k in range(8): bf16r(x0 + k, x0 + k)
    def ln_norm(x0, t0):
        a(f"v_readfirstlane_b32 s46, v{x0}")
        for k in range(4): pk("add", t0+4+2*k, x0+2*k, "s[46:47]", "op_sel_hi:[1,0] " + NEG)
        pk("mul", t0+2, t0+4, t0+4)
        pk("add", t0, t0+4, t0+6)
        a(f"v_pk_fma_f32 v[{t0+2}:{t0+3}], v[{t0+6}:{t0+7}], v[{t0+6}:{t0+7}], v[{t0+2}:{t0+3}]")
        pk("add", t0+4, t0+8, t0+10)
        a(f"v_pk_fma_f32 v[{t0+2}:{t0+3}], v[{t0+8}:{t0+9}], v[{t0+8}:{t0+9}], v[{t0+2}:{t0+3}]")
        pk("add", t0, t0, t0+4)
        a(f"v_pk_fma_f32 v[{t0+2}:{t0+3}], v[{t0+10}:{t0+11}], v[{t0+10}:{t0+11}], v[{t0+2}:{t0+3}]")
        m, q = t0, t0 + 2
        a(f"v_add_f32 v{m}, v{t0}, v{t0+1}\nv_add_f32 v{q}, v{t0+2}, v{t0+3}")
        allreduce("v_add_f32", [m, q], [], rows_only=True)
        for st_ in ("row_bcast:15 row_mask:0xa bank_mask:0xf", "row_bcast:31 row_mask:0xc bank_mask:0xf"):
            for r in (m, q): a(f"v_add_f32_dpp v{r}, v{r}, v{r} {st_}")
        a(f"""
        v_mul_f32 v{m}, 0x3b000000, v{m}
        v_mul_f32 v{q}, 0x3b000000, v{q}
        v_fma_f32 v{q}, -v{m}, v{m}, v{q}
        v_add_f32 v{m}, s46, v{m}
        v_max_f32 v{q}, 0, v{q}
        """)
        bf16r(m, m); bf16r(q, q)
        a(f"v_readlane_b32 s56, v{m}, 63\nv_add_f32 v{q}, 0x3727c5ac, v{q}")
        bf16r(q, q)
        a(f"v_sqrt_f32 v{q}, v{q}")
        for k in range(2): pk("add", x0+2*k, x0+2*k, "s[56:57]", "op_sel_hi:[1,0] " + NEG)
        bf16r(q, q)
        for k in range(2, 4): pk("add", x0+2*k, x0+2*k, "s[56:57]", "op_sel_hi:[1,0] " + NEG)
        a(f"v_rcp_f32 v{q}, v{q}")
        for k in range(3): bf16r(x0 + k, x0 + k)
        a(f"v_readlane_b32 s46, v{q}, 63")
        for k in range(3, 8): bf16r(x0 + k, x0 + k)
        for k in range(4): pk("mul", x0+2*k, x0+2*k, "s[46:47]", "op_sel_hi:[1,0]")
        rnd8(x0)
    def ln_affine(x0, sc8, sh8, t):
        for k in range(4): pk("mul", x0+2*k, x0+2*k, sc8+2*k)
        rnd8(x0)
        for k in range(4): pk("add", x0+2*k, x0+2*k, sh8+2*k)
        for k in range(4): a(f"v_cvt_pk_bf16_f32 v{t+k}, v{x0+2*k}, v{x0+2*k+1}")
    X8, ST, SA8, CA8, BW, DT = 24, 32, 40, 48, 192, 56
    def gemv64(tagn, kind, infl, first):
        isq = kind == "q"
        srd(52, P_X if isq else P_C, 4096)
        a(f"""
        v_lshlrev_b32 v10, 3, v0
        s_lshl_b32 s12, s7, 10
        buffer_load_dwordx2 v[12:13], v10, s[52:55], s12 offen
        buffer_load_dwordx2 v[14:15], v10, s[52:55], s12 offen offset:512
        """)
        rs = 8192 if isq else 6144
        srd(8, P_WQ if isq else P_WM, 0 if ({"q": "q", "A": "A", "a": "a"}[kind] in skip) else 512 * rs)
        if contig: rs = 128
        a(f"s_mul_i32 s13, s7, {128*rs}\ns_lshl_b32 s12, s69, {16 if contig else 7}\ns_add_u32 s13, s13, s12\ns_lshl_b32 s14, s7, 15")
        if kind == "a" and 'a' in spf: sprefetch("L_spa", P_WM, "s13", 128, rs, 128)
        dma_mid("s13", "s14", infl, rs, hooks=({min(infl, 16) - 1: lambda: a(BAR0)} if first else {}))
        a("s_waitcnt vmcnt(16)")
        if kind == "A": stamp(1)
        for k in range(4): unpack(X8 + 2*k, X8 + 2*k + 1, 12 + k)
        a(f"s_mul_i32 s12, s7, {ACT_STRIDE}\ns_add_u32 s12, s12, {L_ACT}\nv_add_u32 v10, s12, v10")
        if isq:
            ln_norm(X8, ST)
        else:
            for k in range(8): a(f"v_mul_f32 v{ST+k}, {LOG2E}, v{X8+k}")
            for k in range(8): a(f"v_exp_f32 v{ST+k}, -v{ST+k}")
            for k in range(8): a(f"v_add_f32 v{ST+k}, 1.0, v{ST+k}")
            for k in range(8): a(f"v_rcp_f32 v{ST+k}, v{ST+k}")
            for k in range(8): a(f"v_mul_f32 v{X8+k}, v{X8+k}, v{ST+k}")
            for k in range(4): a(f"v_cvt_pk_bf16_f32 v{16+k}, v{X8+2*k}, v{X8+2*k+1}")
            a("ds_write_b64 v10, v[16:17]\nds_write_b64 v10, v[18:19] offset:512")
        mid_bases()
        a("s_waitcnt vmcnt(0)")
        set_flag(F_WQ, "s7", 20, 21)
        wait_flags(f"L_wq{tagn}", F_WQ, 16, 0)
        if first: a(MKTAG)
        stamp(4 if isq else 2) if first else None
        tr_mid(BW, 0)
        if first: set_flag(F_WQD, "s7", 16, 17)
        act_addr(TC, "lo", TB)
        a(f"s_lshl_b32 s67, s69, 10\ns_lshl_b32 s12, s7, 8\ns_add_u32 s67, s67, s12\ns_add_u32 s67, s67, {WS_Q if isq else WS_MOD}")
        if isq:
            a(f"""
            v_lshrrev_b32 v{TA}, 2, v0
            v_lshlrev_b32 v{TA}, 8, v{TA}
            v_and_b32 v{TB}, 3, v0
            v_lshl_add_u32 v{TA}, v{TB}, 4, v{TA}
            s_lshl_b32 s12, s7, 6
            s_add_u32 s12, s12, {WS_MOD}
            s_add_u32 s13, s12, 0x1000
            s_add_u32 s14, s12, 0x2000
            s_add_u32 s46, s12, 0x3000
            """)
            if gm: wait_flags("L_g1", F_G1, 16, 4)
            G0 = 128
            poll("L_poll_mod", [f"buffer_load_dwordx4 v[{G0+4*i}:{G0+4*i+3}], v{TA}, s[48:51], {sr} offen sc1" for i, sr in enumerate(["s12", "s13", "s14", "s46"])],
                 tags_xor([G0 + 1 + 2*k for k in range(8)], 16), sleep=slp)
            stamp(5)
            for k in range(4): unpack(SA8 + 2*k, SA8 + 2*k + 1, G0 + 2*k)
            for k in range(4): unpack(CA8 + 2*k, CA8 + 2*k + 1, G0 + 8 + 2*k)
            for k in range(8): a(f"v_add_f32 v{CA8+k}, 1.0, v{CA8+k}")
            rnd8(CA8)
            ln_affine(X8, CA8, SA8, 16)
            a("ds_write_b64 v10, v[16:17]\nds_write_b64 v10, v[18:19] offset:512")
            set_flag(F_H, "s7", 20, 21)
            wait_flags("L_h", F_H, 16, 0)
        for hh in range(2):
            for s in range(8): a(f"ds_read_b128 v[{16+4*s}:{19+4*s}], v{TC} offset:{(8*hh+s)*64}")
            for s in range(8):
                a(f"s_waitcnt lgkmcnt({7-s})")
                k = 8*hh + s
                a(f"v_mfma_f32_16x16x32_bf16 v[{DT}:{DT+3}], v[{BW+4*k}:{BW+4*k+3}], v[{16+4*s}:{19+4*s}], " + ("0" if k == 0 else f"v[{DT}:{DT+3}]"))
        a(f"""
        v_and_b32 v{TC}, 3, v0
        v_lshrrev_b32 v{TA}, 4, v0
        v_lshlrev_b32 v{TA}, 4, v{TA}
        v_lshl_add_u32 v{TA}, v{TC}, 6, v{TA}
        v_mov_b32 v{DT+5}, {TAG}
        v_mov_b32 v{DT+7}, {TAG}
        v_cvt_pk_bf16_f32 v{DT+4}, v{DT}, v{DT+1}
        v_cvt_pk_bf16_f32 v{DT+6}, v{DT+2}, v{DT+3}
        s_mov_b32 exec_lo, 0x000f000f
        s_mov_b32 exec_hi, 0x000f000f
        buffer_store_dwordx4 v[{DT+4}:{DT+7}], v{TA}, s[48:51], s67 offen sc1
        s_mov_b64 exec, -1
        """)
        if first: stamp(13 if isq else 3)

    if front:
        a("s_cmp_lt_u32 s68, 4\ns_cbranch_scc1 L_noTw")
        srd(8, P_WO, 4096 * 1024)
        a("s_lshl_b32 s13, s4, 17\ns_lshr_b32 s12, s2, 5\ns_lshl_b32 s12, s12, 14\ns_add_u32 s13, s13, s12\ns_lshl_b32 s12, s7, 12\ns_add_u32 s13, s13, s12")
        for i in range(4): a(f"buffer_load_dwordx4 v[{64+4*i}:{67+4*i}], v1, s[8:11], s13 offen offset:{i*1024}")
        for k_ in range(frontT):
            srd(8, P_WU if k_ else P_WG, 512 * 3584)
            a("s_lshl_b32 s13, s69, 2\ns_add_u32 s13, s13, s7\ns_mul_i32 s13, s13, 14336")
            for i in range(14):
                a(f"buffer_load_dwordx4 v[{80+56*k_+4*i}:{83+56*k_+4*i}], v1, s[8:11], s13 offen offset:{(i&3)*1024}")
                if i & 3 == 3: a("s_add_u32 s13, s13, 0x1000")
        a("L_noTw:")
    a("""
    s_cmp_eq_u32 s68, 3
    s_cbranch_scc1 L_qgemv
    s_cmp_eq_u32 s68, 5
    s_cbranch_scc1 L_down
    s_cmp_lg_u32 s68, 1
    s_cbranch_scc1 L_bar0
    """)
    gemv64(1, "A", 64, True)
    a("s_branch L_getq")
    a("L_qgemv:")
    gemv64(2, "q", thrQ, True)
    a("s_branch L_getq")
    a("L_down:")
    srd(8, P_WD, 0 if 'f' in skip else 1792 * 1024)
    a("s_lshl_b32 s13, s69, 16\ns_lshl_b32 s12, s7, 8\ns_add_u32 s13, s13, s12")
    dma_wide(16, 10, "s13", thrD, hooks={min(thrD, 16) - 1: lambda: a(BAR0)})
    a("s_waitcnt vmcnt(0)")
    tr_wide(192, 2)
    a(MKTAG)
    set_flag(F_WQD, "s7", 16, 17)
    a("s_branch L_getq")
    a("L_bar0:")
    def burst(n, r0):
        for i in range(n):
            a(f"buffer_load_dwordx4 v[{r0+4*i}:{r0+4*i+3}], v1, s[8:11], s13 offen offset:{(i&3)*1024}")
            if i & 3 == 3: a("s_add_u32 s13, s13, 0x1000")
    if front and frontw:
        a("s_cmp_lg_u32 s68, 0\ns_cbranch_scc1 L_nofw")
        srd(8, P_WO, 4096 * 1024)
        a("s_lshl_b32 s13, s4, 17\ns_lshl_b32 s12, s5, 15\ns_add_u32 s13, s13, s12\ns_lshl_b32 s12, s7, 13\ns_add_u32 s13, s13, s12")
        burst(8, 64)
        if frontf and frontT == 0:
            srd(8, P_WG, 512 * 3584)
            a(f"""
            s_sub_u32 s13, s69, 16
            s_cmp_ge_u32 s13, 56
            s_cselect_b32 s8, s{P_WU}, s8
            s_cselect_b32 s9, s{P_WU+1}, s9
            s_cselect_b32 s12, 56, 0
            s_sub_u32 s13, s13, s12
            s_lshl_b32 s13, s13, 15
            s_lshl_b32 s12, s7, 13
            s_add_u32 s13, s13, s12
            """)
            if sparse:
                a(f"v_mul_u32_u24 v16, {sparse}, v0")
                for i in range(128 // sparse):
                    a(f"buffer_load_dword v{96+i}, v16, s[8:11], s13 offen {spol}\ns_add_u32 s13, s13, {64*sparse}")
            else: burst(8, 96)
        elif frontf and frontT == 1:
            srd(8, P_WU, 512 * 3584)
            a("s_sub_u32 s13, s69, 16\ns_lshl_b32 s13, s13, 14\ns_lshl_b32 s12, s7, 12\ns_add_u32 s13, s13, s12")
            burst(4, 96)
        a("L_nofw:")
    if l2warm:
        a(f"""
        s_cmp_lg_u32 s7, 3
        s_cbranch_scc1 L_nowarm
        s_getpc_b64 s[12:13]
        L_pc:
        s_sub_u32 s12, s12, L_pc-{NAME}_kernel
        s_subb_u32 s13, s13, 0
        v_lshlrev_b32 v16, 7, v0
        s_mov_b32 s14, 0
        L_warm:
        v_cmp_gt_u32 vcc, L_end-{NAME}_kernel, v16
        s_and_saveexec_b64 s[46:47], vcc
        s_cbranch_execz L_warmd
        global_load_dword v17, v16, s[12:13]
        v_add_u32 v16, 0x2000, v16
        s_branch L_warm
        L_warmd:
        s_mov_b64 exec, -1
        L_nowarm:
        """)
    a(BAR0)
    a("s_waitcnt lgkmcnt(0)")
    a(MKTAG)
    a("L_getq:")
    def dryrun(n, cond):
        a(f"""
        s_cmp_lg_u32 s7, 1
        s_cbranch_scc1 L_nodry{n}
        {cond} s68, 4
        s_cbranch_scc1 L_nodry{n}
        s_waitcnt vmcnt(0)
        s_mov_b32 s0, 1
        s_mov_b32 s1, {TAG}
        s_mov_b32 {TAG}, 0
        s_mov_b32 s50, 0
        s_mov_b32 s44, 1
        v_mov_b32 v{PT}, {L_OP}
        s_branch {'L_vfin2' if fin else 'L_facok'}
        L_afterdry{n}:
        s_mov_b32 s0, 0
        s_mov_b32 {TAG}, s1
        s_mov_b32 s50, {WS_SIZE}
        s_mov_b64 exec, -1
        s_waitcnt vmcnt(0) lgkmcnt(0)
        """)
        if n == 1: lane_consts()
        a(f"L_nodry{n}:")
    if dry: dryrun(1, "s_cmp_lt_u32")
    a("s_cmp_lg_u32 s7, 2\ns_cbranch_scc1 L_bar1")
    a(f"""
    v_bfe_u32 v{TA}, v0, 2, 3
    v_lshlrev_b32 v{TA}, 8, v{TA}
    v_and_b32 v{TB}, 3, v0
    v_lshl_add_u32 v{TA}, v{TB}, 4, v{TA}
    s_lshl_b32 s12, s4, 11
    s_lshl_b32 s13, s5, 6
    s_add_u32 s12, s12, s13
    s_add_u32 s12, s12, {WS_Q}
    v_and_b32 v{TB}, 31, v0
    v_lshlrev_b32 v{TB}, 3, v{TB}
    v_add_u32 v{TB}, {L_Q}, v{TB}
    """)
    if gq: wait_flags("L_g2", F_G2, 16, 4)
    poll("L_poll_q", [f"buffer_load_dwordx4 v[16:19], v{TA}, s[48:51], s12 offen sc1"], tags_words([17, 19]), sleep=slp)
    a(f"v_mov_b32 v17, v18\nds_write_b64 v{TB}, v[16:17]\ns_waitcnt lgkmcnt(0)")
    a("L_bar1:")
    a("s_barrier")
    if dbg: a("s_memrealtime s[98:99]")
    stamp(6)
    a(f"""
    s_getreg_b32 s62, hwreg(HW_REG_XCC_ID)
    s_cmp_lt_u32 s68, 4
    s_cbranch_scc1 L_noxcc
    s_cmp_lg_u32 s7, 1
    s_cbranch_scc1 L_noxcc
    v_mov_b32 v16, s62
    v_mov_b32 v17, {TAG}
    s_lshl_b32 s12, s69, 7
    s_add_u32 s12, s12, {WS_XCC}
    s_mov_b64 exec, 1
    buffer_store_dwordx2 v[16:17], v1, s[48:51], s12 offen sc1
    s_mov_b64 exec, -1
    L_noxcc:
    """)
    if tlb:
        a("s_cmp_lg_u32 s7, 3\ns_cbranch_scc1 L_notlb\ns_mov_b64 exec, 1")
        srd(8, P_V, 0x10000000)
        a("s_lshl_b32 s12, s15, 21\ns_lshl_b32 s13, s6, 20\ns_add_u32 s12, s12, s13\nbuffer_load_dword v16, v1, s[8:11], s12 offen nt")
        srd(8, P_OUT, 4096)
        a("buffer_load_dword v17, v1, s[8:11], 0 offen nt")
        a(f"s_mov_b32 s12, {WS_TM}\nbuffer_load_dword v18, v1, s[48:51], s12 offen offset:1024 nt")
        a("s_mov_b64 exec, -1\ns_waitcnt vmcnt(0)\nL_notlb:")
    def wait_row(lbl, g):
        spin_begin()
        a(f"v_mov_b32 v20, {L_FL+F_TT+16*g}")
        a(f"s_branch {lbl}_go\n{lbl}:")
        spin_check()
        a(f"""
        s_sleep 8
        {lbl}_go:
        ds_read_b128 v[16:19], v20
        s_waitcnt lgkmcnt(0)
        v_and_b32 v21, v16, v17
        v_and_b32 v22, v18, v19
        v_and_b32 v21, v21, v22
        v_readfirstlane_b32 s47, v21
        s_bitcmp1_b32 s47, 0
        s_cbranch_scc0 {lbl}
        """)
    def tm_publish(m, g):
        a(f"""
        s_lshr_b32 s12, s2, 3
        s_xor_b32 s12, s12, s2
        s_and_b32 s12, s12, 1
        {"s_xor_b32 s12, s12, s6" if sym else "s_xor_b32 s14, s6, 1"}
        {"" if sym else "s_or_b32 s12, s12, s14"}
        s_or_b32 s12, s12, s68
        s_or_b32 s12, s12, s7
        s_cbranch_scc1 L_tmp{m}
        """)
        wait_row(f"L_tr{m}", g)
        for k in range(4): a(f"v_subrev_u32 v{16+k}, s60, v{16+k}")
        a(f"""
        v_add3_u32 v16, v16, v17, v18
        v_add_u32 v16, v16, v19
        v_lshrrev_b32 v16, 2, v16
        v_add_u32 v16, s60, v16
        v_mov_b32 v17, {TAG}
        v_mov_b32 v18, s60
        v_mov_b32 v19, {TAG}
        s_bfe_u32 s12, s2, {0x30003 if sym else 0x30004}
        s_lshl_b32 s12, s12, 3
        s_and_b32 s14, s2, 7
        s_add_u32 s12, s12, s14
        s_mul_i32 s12, s12, {TMSTR}
        s_add_u32 s12, s12, {WS_TM + 128*m}
        s_mov_b64 exec, 1
        buffer_store_dwordx4 v[16:19], v1, s[48:51], s12 offen sc1
        s_mov_b64 exec, -1
        L_tmp{m}:
        """)
    import struct
    def fhex(v): return hex(struct.unpack("<I", struct.pack("<f", v))[0])
    def sfetch(lbl, soff_reg, imm):
        a(f"""
        s_load_dwordx4 s[56:59], s[42:43], {soff_reg}
        s_waitcnt lgkmcnt(0)
        v_mov_b32 v16, s56
        v_mov_b32 v18, s58
        s_xor_b32 s57, s57, {TAG}
        s_xor_b32 s59, s59, {TAG}
        s_or_b32 s57, s57, s59
        s_cbranch_scc0 {lbl}_ok
        v_mov_b32 v20, 0
        """)
        poll(lbl, [f"buffer_load_dwordx4 v[16:19], v20, s[48:51], {soff_reg} offen sc1"], tags_words([17, 19]), sleep=32)
        a(f"{lbl}_ok:")
    def line_write(m):
        a(f"""
        s_cmp_ge_u32 s68, 4
        s_cselect_b32 s12, {early if 1 < m < 9 else 0}, 0
        v_subrev_u32 v16, s12, v16
        v_and_b32 v20, 3, v0
        v_lshlrev_b32 v20, 4, v20
        v_add_u32 v20, {L_FL+F_FAC+8}, v20
        ds_write_b64 v20, v[16:17]
        """)
    def tm_follow(m, gate):
        a(f"s_cmp_lg_u32 s7, 0\ns_cbranch_scc1 L_tmf{m}\ns_cmp_eq_u32 s2, {AGG}\ns_cbranch_scc1 L_tmf{m}")
        wait_row(f"L_tf{m}", gate + flag_)
        a(f"s_mov_b32 s12, {WS_LINE + 1280*m}")
        sfetch(f"L_poll_ln{m}", "s12", 0)
        a("v_mov_b32 v17, v18")
        line_write(m)
        a(f"L_tmf{m}:")
    def tm_gather(m, gate, p_m, mult, row, follow=True):
        a(f"s_cmp_lg_u32 s7, 0\ns_cbranch_scc1 L_tmg{m}")
        if agg: a(f"s_cmp_lg_u32 s2, {AGG}\ns_cbranch_scc1 L_tmg{m}")
        wait_row(f"L_tg{m}", row + alag if agg else gate)
        a(f"""
        v_and_b32 v21, 7, v0
        v_lshrrev_b32 v20, 3, v0
        v_max_u32 v20, 1, v20
        v_cmp_eq_u32 vcc, 0, v21
        v_cndmask_b32 v20, 0, v20, vcc
        v_add_u32 v20, v20, v0
        v_mul_u32_u24 v20, {TMSTR}, v20
        s_mov_b32 s12, {WS_TM + 128*m}
        """)
        poll(f"L_poll_tm{m}", ["buffer_load_dwordx4 v[16:19], v20, s[48:51], s12 offen sc1"], tags_words([17, 19]), sleep=aslp if agg else 48)
        a("v_sub_u32 v18, v16, v18\nv_subrev_u32 v16, s60, v16")
        allreduce("v_add_u32", [16, 18], [17, 19])
        a("v_ashrrev_i32 v16, 6, v16\nv_lshrrev_b32 v18, 6, v18")
        if m > 1: a("v_subrev_u32 v18, s61, v16")
        a(f"""
        v_readfirstlane_b32 s61, v16
        {f"v_readfirstlane_b32 s{90+m}, v16" if dbg else ""}
        v_cvt_f32_u32 v18, v18
        v_mul_f32 v18, {fhex(mult)}, v18
        """)
        if m > 1 and up:
            a(f"""
            s_mul_i32 s12, s63, {p_m}
            s_lshr_b32 s12, s12, 4
            s_add_u32 s12, s12, s1
            """)
            if ek:
                a(f"""
                s_sub_u32 s12, s12, {e0}
                v_subrev_u32 v19, s12, v16
                v_cvt_f32_i32 v19, v19
                v_mul_f32 v19, {fhex(ek)}, v19
                v_add_f32 v19, 1.0, v19
                v_min_f32 v19, 1.0, v19
                v_max_f32 v19, {fhex(boost)}, v19
                v_mul_f32 v18, v18, v19
                v_cvt_f32_u32 v17, s63
                """)
            else:
                a(f"""
                s_sub_u32 s12, s12, {eth}
                v_mul_f32 v19, {fhex(boost)}, v18
                v_cmp_gt_i32 vcc, s12, v16
                v_cvt_f32_u32 v17, s63
                v_cndmask_b32 v18, v18, v19, vcc
                """)
            a(f"""
            v_mul_f32 v17, {fhex(up2 if m == 2 else (upk if (m == 9 and upk) else up))}, v17
            v_min_f32 v18, v18, v17
            """)
        a(f"""
        v_cvt_u32_f32 v17, v18
        v_mul_u32_u24 v18, {p_m}, v17
        v_lshrrev_b32 v18, 4, v18
        v_sub_u32 v16, v16, v18
        v_readfirstlane_b32 s63, v17
        v_readfirstlane_b32 s1, v16
        v_add_u32 v16, s60, v16
        v_min_u32 v17, 0xffff, v17
        v_or_b32 v17, {p_m << 16}, v17
        """)
        if agg:
            a(f"""
            v_mov_b32 v20, v16
            v_mov_b32 v21, {TAG}
            v_mov_b32 v22, v17
            v_mov_b32 v23, {TAG}
            s_mov_b32 s12, {WS_LINE + 1280*m}
            s_mov_b64 exec, 1
            buffer_store_dwordx4 v[20:23], v1, s[48:51], s12 offen sc1
            s_mov_b64 exec, -1
            """)
        line_write(m)
        a(f"L_tmg{m}:")
        if agg and follow: tm_follow(m, gate)
    if pf:
        for hw_, (ptr, nb, n_, key) in enumerate([(P_WO, 4096*1024, 16, 'w'), (P_WG, 512*3584, 7, 'f'), (P_WU, 512*3584, 7, 'f'), (P_WM, 512*6144, 12, 'a')]):
            if key not in pf: continue
            a(f"s_cmp_lg_u32 s7, {hw_}\ns_cbranch_scc1 L_npf{hw_}")
            srd(8, ptr, nb)
            a(f"s_mul_i32 s12, s2, {n_*1024}")
            for i in range(n_):
                a(f"buffer_load_dwordx4 v[{64+4*i}:{67+4*i}], v1, s[8:11], s12 offen offset:{(i&3)*1024}")
                if i & 3 == 3: a("s_add_u32 s12, s12, 0x1000")
                if i >= pfthr - 1: a(f"s_waitcnt vmcnt({pfthr-1})")
            a(f"s_waitcnt vmcnt(0)\nL_npf{hw_}:")
    if 'w' in spf and not front:
        if front and frontw: a("s_cmp_lt_u32 s68, 4\ns_cbranch_scc1 L_nospw")
        a("s_lshl_b32 s13, s4, 17\ns_lshr_b32 s12, s2, 5\ns_lshl_b32 s12, s12, 14\ns_add_u32 s13, s13, s12\ns_lshl_b32 s12, s7, 12\ns_add_u32 s13, s13, s12")
        sprefetch("L_spw", P_WO, "s13", 8, 512, 512)
        a("L_nospw:")
    wait_flags("L_wf", F_WF, 16, 4)
    srd(8, P_WO, 0 if 'w' in skip else 4096 * 1024)
    a("s_lshl_b32 s13, s4, 17\ns_lshl_b32 s12, s7, 8\ns_add_u32 s13, s13, s12")
    if late1:
        hooks_ = {hk: lambda: tm_publish(1, 0)}
        if 'g' in spf:
            a(f"""
            s_cmp_eq_u32 s68, 5
            s_cselect_b32 s26, s{P_WG}, s{P_WM}
            s_cselect_b32 s27, s{P_WG+1}, s{P_WM+1}
            s_cselect_b32 s41, 3584, 0
            s_cmp_eq_u32 s68, 2
            s_cselect_b32 s41, 6144, s41
            s_lshl_b32 s40, s41, 7
            s_mul_i32 s40, s40, s7
            s_lshl_b32 s12, s69, 7
            s_add_u32 s40, s40, s12
            """)
            def mk_hook(i):
                def f():
                    if i == hk: tm_publish(1, 0)
                    a(f"s_cmp_eq_u32 s41, 0\ns_cbranch_scc1 L_hp{i}")
                    for _ in range(4): a("s_load_dword s58, s[26:27], s40\ns_add_u32 s40, s40, s41")
                    a(f"L_hp{i}:")
                return f
            hooks_ = {i: mk_hook(i) for i in range(32)}
        dma_wide(32, 10, "s13", thr, hooks=hooks_, pol=wpol, key='s4')
    else:
        dma_wide(32, 10, "s13", thr, hooks=({5: lambda: tm_publish(1, 0), 9 + 6*alag: lambda: tm_gather(1, lagK, 0, 4*f1, 1, False), 5 + 6*(lagK + flag_): lambda: tm_follow(1, lagK)} if agg else {5: lambda: tm_publish(1, 0), 5 + 6*lagK: lambda: tm_gather(1, lagK, 0, 4*f1, 1)}), pol=wpol, key='s4')
    a("s_waitcnt vmcnt(0)")
    tr_wide(64, 4)
    if not front:
        a("s_cmp_lg_u32 s68, 2\ns_cbranch_scc1 L_noA2")
        gemv64(3, "a", thrA, False)
        a("L_noA2:")
    SB, TREG = [10, 11, 12, 13], [4, 5, 6, 14]
    RX, RGA, RGB = 2, 3, 15
    def ffn_cols(dst_tile, dst_sub):
        a(f"""
        v_lshrrev_b32 v{dst_tile}, 4, v0
        v_and_b32 v{dst_sub}, 3, v0
        v_lshl_add_u32 v{dst_tile}, v{dst_tile}, 2, v{dst_sub}
        v_bfe_u32 v{dst_sub}, v0, 2, 2
        """)
    RSF = 128 if contig else 3584
    pieces = list(enumerate(fsplit))
    PN = 32 // len(fsplit)
    def stage_upto(row):
        while pieces and pieces[0][1] < row:
            k, r_ = pieces.pop(0)
            mat, i0 = (k * PN) // 16, (k * PN) % 16
            a(f"s_cmp_lg_u32 s68, 5\ns_cbranch_scc1 L_noffn1{k}")
            srd(8, P_WU if mat else P_WG, 0 if 'f' in skip else 512 * 3584)
            a(f"s_lshl_b32 s13, s69, 7\ns_mul_i32 s12, s7, {128*3584}\ns_add_u32 s13, s13, s12\ns_add_u32 s13, s13, {i0*8*3584}\ns_lshl_b32 s14, s7, 15\ns_add_u32 s14, s14, {0x4000*mat + 1024*i0}")
            if 'f' in spf or ('u' in spf and mat): sprefetch(f"L_spf{k}", P_WU if mat else P_WG, "s13", PN*8, 3584, 128)
            wait_row(f"L_fs{k}", r_)
            dma_mid("s13", "s14", thrF, 3584, n=PN)
            a(f"L_noffn1{k}:")
    FL = flag_ if agg else 0
    stage_upto(lagK + FL)
    if late1: tm_gather(1, lagK, 0, 4*f1, 1)
    stage_upto(mk + 1 + FL)
    tm_publish(9, mk)
    tm_gather(9, mk + 1, 4*mk, 4*fk/mk, mk)
    stage_upto(KL + 1)
    if dry: dryrun(2, "s_cmp_ge_u32")
    stamp(7)
    tm_publish(2, KL)
    a("s_cmp_lg_u32 s7, 0\ns_cbranch_scc1 L_nofac")
    wait_flags("L_kd", F_KD, 16, 16)
    q4 = ("quad_perm:[1,0,3,2]", "quad_perm:[2,3,0,1]")
    a(f"""
    v_and_b32 v{TA}, 3, v0
    v_lshlrev_b32 v{TA}, 4, v{TA}
    v_add_u32 v{TA}, {L_FL}, v{TA}
    ds_read_b64 v[24:25], v{TA} offset:{F_ST}
    s_waitcnt lgkmcnt(0)
    v_mov_b32 v28, v24
    """)
    allreduce("v_max_f32", [28], [], rows_only=True, steps=q4)
    a(f"v_sub_f32 v30, v24, v28\nv_mul_f32 v30, {LOG2E}, v30\nv_exp_f32 v30, v30\nv_mul_f32 v30, v25, v30")
    allreduce("v_add_f32", [30], [], rows_only=True, steps=q4)
    a(f"""
    v_mov_b32 v29, {TAG}
    v_mov_b32 v31, {TAG}
    s_lshl_b32 s13, s15, 7
    s_add_u32 s13, s13, {WS_STATS}
    s_lshl_b32 s12, s6, 4
    s_add_u32 s14, s13, s12
    s_xor_b32 s12, s12, 16
    s_add_u32 s13, s13, s12
    s_mov_b64 exec, 1
    buffer_store_dwordx4 v[28:31], v1, s[48:51], s14 offen sc1
    s_mov_b64 exec, -1
    """)
    tm_gather(2, KL + lagV, 4*KL, 4*f2/(KL - mk), KL)
    if agg:
        wait_row("L_stw", KL + 2)
        sfetch("L_poll_st", "s13", 0)
    else:
        a(f"v_mov_b32 v{TB}, 0")
        poll("L_poll_st", [f"buffer_load_dwordx4 v[16:19], v{TB}, s[48:51], s13 offen sc1"], tags_words([17, 19]), sleep=32)
    a(f"""
    v_max_f32 v17, v16, v28
    v_sub_f32 v16, v16, v17
    v_sub_f32 v28, v28, v17
    v_sub_f32 v24, v24, v17
    v_mul_f32 v16, {LOG2E}, v16
    v_mul_f32 v28, {LOG2E}, v28
    v_mul_f32 v24, {LOG2E}, v24
    v_exp_f32 v16, v16
    v_exp_f32 v28, v28
    v_exp_f32 v24, v24
    v_mul_f32 v16, v16, v18
    v_fmac_f32 v16, v28, v30
    v_rcp_f32 v16, v16
    v_mov_b32 v25, 1
    v_mul_f32 v24, v24, v16
    ds_write_b64 v{TA}, v[24:25] offset:{F_FAC}
    """)
    a("L_nofac:")
    def constants():
        a("s_cmp_lt_u32 s68, 4\ns_cbranch_scc1 L_nored2")
        wait_row("L_kd2", KL + 1)
        a("s_cmp_lg_u32 s68, 5\ns_cbranch_scc1 L_noffn2")
        ffn_cols(TA, TB)
        a(f"""
        v_lshlrev_b32 v{TA}, 8, v{TA}
        v_lshl_add_u32 v{TA}, v{TB}, 4, v{TA}
        s_lshl_b32 s12, s7, 6
        s_add_u32 s12, s12, {WS_MOD + 96*256}
        s_add_u32 s13, s12, 0x1000
        s_add_u32 s14, s12, 0x2000
        s_add_u32 s46, s12, 0x3000
        """)
        poll("L_poll_sb", [f"buffer_load_dwordx4 v[{16+4*i}:{19+4*i}], v{TA}, s[48:51], {sr} offen sc1" for i, sr in enumerate(["s12", "s13", "s14", "s46"])],
             tags_words([17 + 2*k for k in range(8)]), sleep=16)
        for k in range(4):
            a(f"v_mov_b32 v{SB[k]}, v{16+2*k}")
            unpack(32, 33, 24 + 2*k)
            a(f"v_add_f32 v32, 1.0, v32\nv_add_f32 v33, 1.0, v33\nv_cvt_pk_bf16_f32 v{TREG[k]}, v32, v33")
        a("L_noffn2:")
        srd(52, P_X, 4096)
        a(f"""
        v_bfe_u32 v{TA}, v0, 2, 2
        v_and_b32 v{TB}, 3, v0
        v_lshlrev_b32 v{TC}, 5, v{TA}
        v_lshl_add_u32 v{TC}, v{TB}, 1, v{TC}
        s_lshl_b32 s71, s69, 7
        s_lshl_b32 s12, s7, 3
        s_add_u32 s71, s71, s12
        buffer_load_ushort v{RX}, v{TC}, s[52:55], s71 offen
        v_lshlrev_b32 v{TA}, 8, v{TA}
        v_lshrrev_b32 v{TC}, 1, v{TB}
        v_lshl_add_u32 v{TA}, v{TC}, 3, v{TA}
        s_and_b32 s12, s69, 7
        s_lshl_b32 s12, s12, 10
        s_lshl_b32 s13, s7, 4
        s_add_u32 s12, s12, s13
        s_lshr_b32 s13, s69, 3
        s_lshl_b32 s13, s13, 6
        s_add_u32 s12, s12, s13
        s_add_u32 s13, s12, {WS_MOD + 160*256}
        s_add_u32 s12, s12, {WS_MOD + 64*256}
        """)
        poll("L_poll_ga", [f"buffer_load_dwordx2 v[16:17], v{TA}, s[48:51], s12 offen sc1", f"buffer_load_dwordx2 v[18:19], v{TA}, s[48:51], s13 offen sc1"],
             tags_words([17, 19]), sleep=16)
        a(f"v_and_b32 v{TB}, 1, v0\nv_cmp_eq_u32 vcc, 1, v{TB}")
        for k, r in enumerate([RGA, RGB]):
            unpack(24, 25, 16 + 2*k)
            a(f"v_cndmask_b32 v{r}, v24, v25, vcc")
        a(f"v_lshlrev_b32 v{RX}, 16, v{RX}")
        a(f"v_and_b32 v{TA}, 31, v0\nv_lshlrev_b32 v{TA}, 7, v{TA}\ns_mov_b32 s12, {WS_XCC}")
        poll("L_poll_xcc", [f"buffer_load_dwordx2 v[16:17], v{TA}, s[48:51], s12 offen sc1"], tags_words([17]), sleep=16)
        a(f"v_cmp_eq_u32 vcc, s62, v16\ns_cmp_eq_u64 vcc, exec\ns_cselect_b32 s44, {1 if fast else 0}, 0")
        a("L_nored2:")
    done_c = []
    def maybe_constants():
        if not pieces and not done_c:
            done_c.append(1); constants()
    prevp = 4 * KL
    def milestones(lst):
        nonlocal prevp
        for i, mv in lst:
            p_ = 4 * (KL + mv) + E // 4
            stage_upto(KL + mv + lag3 + FL); maybe_constants()
            tm_publish(3 + i, KL + mv)
            tm_gather(3 + i, KL + mv + lag3, p_, 16 * f3 / (p_ - prevp), KL + mv)
            prevp = p_
    MS = list(enumerate(ms))
    if touchp:
        wait_row("L_tchp", KL + touchp)
        a(f"""
        s_lshl_b32 s12, s15, 1
        s_add_u32 s12, s12, s6
        s_lshl_b32 s12, s12, 11
        s_lshl_b32 s13, s7, 9
        s_add_u32 s12, s12, s13
        s_add_u32 s12, s12, {WS_PART1}
        """)
        if stouch: sprefetch("L_spt", P_WS, "s12", 1, 512, 512)
        else: a("s_mov_b32 exec_hi, 0\nbuffer_load_dwordx4 v[24:27], v1, s[48:51], s12 offen sc1\ns_mov_b64 exec, -1\ns_waitcnt vmcnt(0)")
    milestones([x for x in MS if x[1] + lag3 + (flag_ if agg else 0) <= touch])
    stage_upto(99); maybe_constants()
    if touch:
        a("s_cmp_lt_u32 s68, 4\ns_cbranch_scc1 L_notouch")
        wait_row("L_tch", KL + touch)
        a(f"""
        v_lshrrev_b32 v{TA}, 2, v0
        v_and_b32 v{TB}, 3, v0
        v_lshlrev_b32 v{TC}, 13, v{TA}
        v_lshl_add_u32 v{TC}, v{TB}, 4, v{TC}
        v_lshlrev_b32 v{TA}, 11, v{TA}
        v_lshl_add_u32 v{TA}, v{TB}, 4, v{TA}
        s_lshl_b32 s12, s7, 11
        s_add_u32 s12, s12, {WS_X1}
        buffer_load_dwordx4 v[16:19], v1, s[48:51], s12 offen sc1
        buffer_load_dwordx4 v[20:23], v1, s[48:51], s12 offen offset:1024 sc1
        s_lshl_b32 s12, s69, 8
        s_lshl_b32 s13, s7, 6
        s_add_u32 s12, s12, s13
        s_add_u32 s12, s12, {WS_PART2}
        s_add_u32 s13, s12, 0x20000
        buffer_load_dwordx4 v[24:27], v{TC}, s[48:51], s12 offen sc1
        buffer_load_dwordx4 v[28:31], v{TC}, s[48:51], s13 offen sc1
        """)
        if otouch:
            srd(52, P_OUT, 4096)
            a("buffer_load_ushort v32, v0, s[52:55], s71 offen")
        if touch1:
            a(f"""
            s_and_b32 s12, s69, 7
            s_lshl_b32 s12, s12, 8
            s_lshl_b32 s13, s7, 6
            s_add_u32 s12, s12, s13
            s_lshr_b32 s13, s69, 3
            s_lshl_b32 s13, s13, 17
            s_add_u32 s12, s12, s13
            s_add_u32 s12, s12, {WS_PART1}
            """)
            for i in range(4):
                a(f"buffer_load_dwordx4 v[{32+4*i}:{35+4*i}], v{TA}, s[48:51], s12 offen sc1\ns_add_u32 s12, s12, 0x8000")
        a("s_waitcnt vmcnt(0)\nL_notouch:")
    milestones([x for x in MS if x[1] + lag3 + (flag_ if agg else 0) > touch])
    AF, DD = 16, 32
    bn = {"n": 0}
    def barrier():
        if not dry: a("s_barrier"); return
        bn["n"] += 1
        a(f"s_cmp_eq_u32 s0, 1\ns_cbranch_scc1 L_nb{bn['n']}\ns_barrier\nL_nb{bn['n']}:")
    a(f"""
    L_tail0:
    s_mov_b64 exec, -1
    s_waitcnt vmcnt(0) lgkmcnt(0)
    v_bfe_u32 v{TB}, v0, 1, 2
    v_mul_u32_u24 v{TB}, {OP_STRIDE}, v{TB}
    v_lshrrev_b32 v{TA}, 4, v0
    v_lshl_add_u32 v{TB}, v{TA}, 4, v{TB}
    v_and_b32 v{TA}, 1, v0
    v_lshl_add_u32 v{TB}, v{TA}, 7, v{TB}
    v_add_u32 v{TB}, {L_OP}, v{TB}
    v_mul_u32_u24 v{TA}, 0xaaaa, v{TA}
    v_add_u32 v{TA}, 0x4444, v{TA}
    s_lshl_b32 s12, s15, 1
    s_add_u32 s12, s12, s6
    s_lshl_b32 s12, s12, 11
    s_lshl_b32 s13, s7, 9
    s_add_u32 s12, s12, s13
    s_add_u32 s12, s12, {WS_PART1}
    s_and_b32 s18, {TAG}, 0xff
    s_bfe_u32 s19, {TAG}, 0x80008
    s_bfe_u32 s20, {TAG}, 0x80010
    s_lshr_b32 s21, {TAG}, 24
    v_mov_b32 v{TC}, 0xffffff00
    """)
    for i in range(32): a(f"v_mov_b32 v{DD+i}, 0")
    P1V = 28
    a(f"""
    v_lshrrev_b32 v{P1V}, 2, v0
    v_and_b32 v{P1V+1}, 3, v0
    v_lshlrev_b32 v{P1V}, 11, v{P1V}
    v_lshl_add_u32 v{P1V}, v{P1V+1}, 4, v{P1V}
    s_and_b32 s26, s69, 7
    s_lshl_b32 s26, s26, 8
    s_lshl_b32 s13, s7, 6
    s_add_u32 s26, s26, s13
    s_lshr_b32 s13, s69, 3
    s_lshl_b32 s14, s13, 11
    s_add_u32 s22, s26, s14
    s_lshl_b32 s13, s13, 17
    s_add_u32 s26, s26, s13
    s_add_u32 s26, s26, {WS_PART1}
    s_add_u32 s27, s26, 0x8000
    s_add_u32 s14, s26, 0x10000
    s_add_u32 s67, s26, 0x18000
    s_add_u32 s23, s22, {WS_X1}
    """)
    P1S = ["s26", "s27", "s14", "s67"]
    if p1q:
        a(f"""
        s_bfe_u32 s26, s69, 0x20001
        s_lshl_b32 s26, s26, 9
        s_and_b32 s27, s69, 1
        s_lshl_b32 s27, s27, 6
        s_add_u32 s26, s26, s27
        s_lshl_b32 s27, s7, 15
        s_add_u32 s26, s26, s27
        s_add_u32 s26, s26, s13
        s_add_u32 s26, s26, {WS_PART1}
        """)
        P1S = ["s26"]
    stamp(8)
    barrier()
    if dbg: a("s_memrealtime s[96:97]")
    stamp(9)
    for s in range(2): a(f"ds_read_b128 v[{AF+4*s}:{AF+4*s+3}], v{TB} offset:{64*s}")
    a("s_waitcnt lgkmcnt(0)")
    def smf(d, af, b, ix): a(f"v_smfmac_f32_16x16x64_bf16 v[{d}:{d+3}], v[{af}:{af+3}], v[{b}:{b+7}], v{ix}")
    order = [0, 4, 1, 5, 2, 6, 3, 7]
    OQ = 24
    work = []
    def fin(t):
        d = DD + 4*t
        w_ = [f"v_pk_add_f32 v[{d}:{d+1}], v[{d}:{d+1}], v[{d+2}:{d+3}]", f"v_add_f32 v{d}, v{d}, v{d+1}"]
        return w_
    def fin2(k):
        x, y = DD + 4*k, DD + 4*(k+4)
        return [f"v_permlane16_swap_b32 v{x}, v{y}", f"v_add_f32 v{OQ+k}, v{x}, v{y}", f"v_and_or_b32 v{OQ+k}, v{OQ+k}, v{TC}, s{18+k}"]
    for i, t in enumerate(order):
        if i >= 3: work += fin(order[i-3])
        if i >= 5 and (i - 5) % 2 == 0: work += fin2((i - 5) // 2)
        for sx in range(2):
            smf(DD + 4*t, AF + 4*sx, 64 + (t*4 + 2*sx)*4, TA)
            for _ in range(2):
                if work: a(work.pop(0))
    work += fin(order[5]) + fin(order[6]) + fin2(2) + fin(order[7]) + fin2(3)
    for w_ in work: a(w_)
    if p1q: a("s_mov_b32 exec_lo, 0xff")
    a(f"s_mov_b32 exec_hi, 0\nbuffer_store_dwordx4 v[{OQ}:{OQ+3}], v1, s[48:51], s12 offen sc1\ns_mov_b64 exec, -1")
    stamp(10)
    a("s_cmp_lt_u32 s68, 4\ns_cbranch_scc1 L_hend")
    if p1first:
        stamp(4)
        for i, sr in enumerate(P1S): a(f"buffer_load_dwordx4 v[{32+4*i}:{35+4*i}], v{P1V}, s[48:51], {sr} offen sc1")
    a("s_cmp_lg_u32 s68, 5\ns_cbranch_scc1 L_noffn3")
    SC8, SH8 = 48, 56
    HW_, HF_, GF_, GW_, PO_, MS_ = 10, 11, 12, 13, 4, 5
    mid_bases()
    tr_mid(64, 0)
    tr_mid(128, 0x4000)
    for k in range(4): unpack(SC8 + 2*k, SC8 + 2*k + 1, TREG[k])
    for k in range(4): unpack(SH8 + 2*k, SH8 + 2*k + 1, SB[k])
    IX_ = 6
    act_addr(HF_, "hi", TB)
    ffn_cols(TA, TB)
    a(f"""
    v_lshlrev_b32 v{HW_}, 4, v{TA}
    v_lshl_add_u32 v{HW_}, v{TB}, 2, v{HW_}
    s_mul_i32 s13, s7, {ACT_STRIDE}
    s_add_u32 s13, s13, {L_ACT}
    v_add_u32 v{HW_}, s13, v{HW_}
    v_mul_u32_u24 v{GF_}, {GB_STRIDE}, v{TB}
    v_lshlrev_b32 v{GW_}, 2, v{TB}
    v_and_b32 v{IX_}, 1, v0
    v_lshl_add_u32 v{HF_}, v{IX_}, 9, v{HF_}
    v_lshl_add_u32 v{GF_}, v{IX_}, 6, v{GF_}
    v_lshl_add_u32 v{GW_}, v{IX_}, 1, v{GW_}
    v_mul_u32_u24 v{IX_}, 0xaaaa, v{IX_}
    v_add_u32 v{IX_}, 0x4444, v{IX_}
    v_bfe_u32 v{TB}, v0, 1, 1
    v_lshl_add_u32 v{GW_}, v{TB}, 6, v{GW_}
    v_lshrrev_b32 v{TB}, 4, v0
    v_lshl_add_u32 v{GF_}, v{TB}, 4, v{GF_}
    v_add_u32 v{GF_}, {L_GB}, v{GF_}
    v_mul_u32_u24 v{TA}, {GB_STRIDE}, v{TB}
    s_lshl_b32 s13, s7, 4
    s_add_u32 s13, s13, {L_GB}
    v_add3_u32 v{GW_}, v{GW_}, v{TA}, s13
    v_and_b32 v{TA}, 15, v0
    v_lshlrev_b32 v{TB}, 11, v{TB}
    v_lshl_add_u32 v{PO_}, v{TA}, 4, v{TB}
    v_mov_b32 v{MS_}, 0xffffff00
    """)
    a("L_noffn3:")
    a(f"""
    v_lshrrev_b32 v{TC}, 2, v0
    v_and_b32 v{TB}, 3, v0
    v_lshlrev_b32 v{TC}, 13, v{TC}
    v_lshl_add_u32 v{TC}, v{TB}, 4, v{TC}
    v_lshlrev_b32 v{TB}, 2, v0
    v_mov_b32 v{TA}, v{P1V}
    """)
    if pwait: a(f"s_sleep {pwait}")
    if not p1first: stamp(4)
    spin_begin()
    if p1first: a("s_branch L_poll_p1w")
    a("L_poll_p1:")
    spin_check()
    for i, sr in enumerate(P1S): a(f"buffer_load_dwordx4 v[{32+4*i}:{35+4*i}], v{TA}, s[48:51], {sr} offen sc1")
    a("L_poll_p1w:")
    tags_bytes(len(P1S), 44 if p1q else 32)()
    a("s_cmp_eq_u64 vcc, exec\ns_cbranch_scc0 L_poll_p1")
    stamp(11)
    if diag: a("s_mov_b32 s82, s70")
    def colsum(n):
        st_ = 1
        while st_ < n:
            for i in range(0, n, 2*st_):
                for k in (0, 2): pk("add", 16+4*i+k, 16+4*i+k, 16+4*(i+st_)+k)
            st_ *= 2
        a("""
        v_add_f32_dpp v20, v16, v16 row_ror:8 row_mask:0xf bank_mask:0x3
        v_add_f32_dpp v21, v17, v17 row_ror:8 row_mask:0xf bank_mask:0x3
        v_add_f32_dpp v20, v18, v18 row_ror:8 row_mask:0xf bank_mask:0xc
        v_add_f32_dpp v21, v19, v19 row_ror:8 row_mask:0xf bank_mask:0xc
        v_add_f32_dpp v16, v20, v20 row_shl:4 row_mask:0xf bank_mask:0x5
        v_add_f32_dpp v16, v21, v21 row_shr:4 row_mask:0xf bank_mask:0xa
        """)
        allreduce("v_add_f32", [16], [17], steps=())
    def resid(gate):
        bf16r(16, 16)
        a(f"v_mul_f32 v16, v16, v{gate}")
        bf16r(16, 16)
        a(f"v_add_f32 v16, v16, v{RX}")
    colsum(4)
    resid(RGA)
    a(f"""
    v_mov_b32 v41, {TAG}
    v_mov_b32 v43, {TAG}
    v_mov_b32_dpp v17, v16 quad_perm:[1,1,1,1] {FULL}
    v_mov_b32_dpp v18, v16 quad_perm:[2,2,2,2] {FULL}
    v_mov_b32_dpp v19, v16 quad_perm:[3,3,3,3] {FULL}
    v_cvt_pk_bf16_f32 v40, v16, v17
    v_cvt_pk_bf16_f32 v42, v18, v19
    s_mov_b64 exec, 0x1111
    """)
    def hstore(lbl, stores):
        a(f"s_cmp_eq_u32 s44, 1\ns_cbranch_scc0 {lbl}_s")
        for st_ in stores: a(f"{st_} {fpol}")
        a(f"s_branch {lbl}_e\n{lbl}_s:")
        for st_ in stores: a(f"{st_} sc1")
        a(f"{lbl}_e:")
    hstore("L_sx1", [f"buffer_store_dwordx4 v[40:43], v{TB}, s[48:51], s23 offen"])
    a("s_mov_b64 exec, -1")
    stamp(12)
    bf16r(RX, 16)
    a("s_cmp_lg_u32 s68, 5\ns_cbranch_scc1 L_red2")
    a(f"""
    s_lshl_b32 s12, s7, 11
    s_add_u32 s12, s12, {WS_X1}
    s_lshl_b32 s13, s69, 13
    s_lshl_b32 s14, s7, 9
    s_add_u32 s13, s13, s14
    s_add_u32 s23, s13, {WS_PART2}
    """)
    poll("L_poll_x1", ["buffer_load_dwordx4 v[16:19], v1, s[48:51], s12 offen sc1", "buffer_load_dwordx4 v[20:23], v1, s[48:51], s12 offen offset:1024 sc1"],
         tags_xor([17, 19, 21, 23], 24))
    stamp(1)
    X2, S2 = 24, 32
    for k in range(4): unpack(X2 + 2*k, X2 + 2*k + 1, 16 + 2*k)
    ln_norm(X2, S2)
    ln_affine(X2, SC8, SH8, 16)
    G, U, GT = 56, 60, 14
    a(f"ds_write2_b32 v{HW_}, v16, v17 offset0:0 offset1:128\nds_write2_b32 v{HW_}, v18, v19 offset0:64 offset1:192")
    for i in range(8): a(f"v_mov_b32 v{G+i}, 0")
    a("s_waitcnt lgkmcnt(0)")
    barrier()
    for k in range(8): a(f"ds_read_b128 v[{16+4*k}:{19+4*k}], v{HF_} offset:{k*64}")
    for k in range(8):
        a(f"s_waitcnt lgkmcnt({7-k})")
        smf(G, 16 + 4*k, 64 + 8*k, IX_)
    DZ = 64
    gelu = [f"v_add_f32 v{G}, v{G}, v{G+1}", f"v_cvt_pk_bf16_f32 v{G}, 0, v{G}", f"v_mul_f32 v{GT}, v{G}, v{G}", f"v_mul_f32 v{GT}, 0x3d372713, v{GT}",
            f"v_fma_f32 v{GT}, v{GT}, v{G}, v{G}", f"v_mul_f32 v{GT}, 0x40135761, v{GT}", f"v_exp_f32 v{GT}, -v{GT}",
            f"v_add_f32 v{GT}, 1.0, v{GT}", f"v_rcp_f32 v{GT}, v{GT}", f"v_mul_f32 v{GT}, v{GT}, v{G}", f"v_cvt_pk_bf16_f32 v{GT}, 0, v{GT}"]
    zero = [f"v_mov_b32 v{DZ+4*t+r}, 0" for t in range(8) for r in range(2)]
    for k in range(8):
        smf(U, 16 + 4*k, 128 + 8*k, IX_)
        if k < 3:
            for _ in range(2): a(zero.pop(0))
        else:
            a(gelu.pop(0)); a(gelu.pop(0))
    while gelu: a(gelu.pop(0))
    a(f"v_add_f32 v{U}, v{U}, v{U+1}")
    bf16r(U, U)
    a(f"""
    v_mul_f32 v{GT}, v{GT}, v{U}
    v_cvt_pk_bf16_f32 v{GT}, v{GT}, v{GT}
    ds_write_b16 v{GW_}, v{GT}
    """)
    while zero: a(zero.pop(0))
    if epearly:
        a(f"""
        s_or_b32 s12, s2, s7
        s_cbranch_scc1 L_noep
        s_mov_b64 exec, 1
        v_mov_b32 v17, {TAG}
        buffer_store_dword v17, v1, s[48:51], 0 offen sc1
        s_mov_b64 exec, -1
        L_noep:
        """)
    a("s_waitcnt lgkmcnt(0)")
    barrier()
    a(f"""
    ds_read_b128 v[{AF}:{AF+3}], v{GF_}
    s_waitcnt lgkmcnt(0)
    """)
    assert not zero
    fw = []
    for t in range(8):
        smf(DZ + 4*t, AF, 192 + 8*t, IX_)
        if t >= 4:
            tt = t - 4
            a(f"v_add_f32 v{24+tt}, v{DZ+4*tt}, v{DZ+4*tt+1}")
            a(f"v_and_or_b32 v{24+tt}, v{24+tt}, v{MS_}, s{18+(tt&3)}")
    for tt in range(4, 8):
        a(f"v_add_f32 v{24+tt}, v{DZ+4*tt}, v{DZ+4*tt+1}")
        a(f"v_and_or_b32 v{24+tt}, v{24+tt}, v{MS_}, s{18+(tt&3)}")
    hstore("L_sp2", [f"buffer_store_dwordx4 v[{24+4*g}:{27+4*g}], v{PO_}, s[48:51], s23 offen offset:{256*g}" for g in range(2)])
    stamp(2)
    a("L_red2:")
    a(f"""
    s_add_u32 s12, s22, {WS_PART2}
    s_add_u32 s13, s12, 0x20000
    v_mov_b32 v36, s18
    v_mov_b32 v37, s19
    v_mov_b32 v38, s20
    v_mov_b32 v39, s21
    v_bfe_u32 v{TA}, v0, 2, 2
    v_and_b32 v{TB}, 3, v0
    v_lshlrev_b32 v{TA}, 5, v{TA}
    v_lshl_add_u32 v{TA}, v{TB}, 1, v{TA}
    """)
    srd(52, P_OUT, 4096)
    if dry: a("s_cmp_eq_u32 s0, 1\ns_cselect_b32 s54, 0, s54")
    poll("L_poll_p2", [f"buffer_load_dwordx4 v[32:35], v{TC}, s[48:51], s12 offen sc1", "s_mov_b32 exec_hi, 0xffff",
                       f"buffer_load_dwordx4 v[36:39], v{TC}, s[48:51], s13 offen sc1"],
         tags_bytes(2, 44), post="s_mov_b64 exec, -1")
    stamp(13)
    colsum(2)
    resid(RGB)
    a(f"""
    v_cvt_pk_bf16_f32 v16, v16, v16
    s_mov_b64 exec, 0xffff
    buffer_store_short v16, v{TA}, s[52:55], s71 offen {opol}
    """)
    if not epearly or dbg or pad:
        a(f"""
        s_or_b32 s12, s2, s7
        s_cbranch_scc1 L_hend
        s_mov_b64 exec, 1
        v_mov_b32 v17, {TAG}
        v_mov_b32 v18, 0
        buffer_store_dword v17, v18, s[48:51], 0 offen sc1
        """)
    if dbg:
        a("s_cmp_eq_u32 s0, 1\ns_cbranch_scc1 L_hend\ns_memrealtime s[94:95]\ns_waitcnt lgkmcnt(0)\ns_sub_u32 s94, s94, s60\ns_sub_u32 s96, s96, s60\ns_sub_u32 s98, s98, s60")
        srd(8, 40, 256)
        for i, r in enumerate([98, 91, 92, 93, 96, 94]):
            a(f"v_mov_b32 v17, s{r}\nbuffer_store_dword v17, v18, s[8:11], 0 offen offset:{4*i}")
    if pad:
        a(f"s_cmp_eq_u32 s0, 1\ns_cbranch_scc1 L_hend\nL_pad:\ns_memrealtime s[94:95]\ns_waitcnt lgkmcnt(0)\ns_sub_u32 s94, s94, s60\ns_cmp_lt_u32 s94, {pad}\ns_cbranch_scc1 L_pad")
    a("L_hend:")
    if dry: a("s_cmp_eq_u32 s0, 1\ns_cbranch_scc0 L_fin\ns_cmp_ge_u32 s68, 4\ns_cbranch_scc1 L_afterdry1\ns_branch L_afterdry2\nL_fin:")
    stamp(14)
    if diag:
        a(f"""
        s_mov_b64 exec, -1
        v_lshlrev_b32 v1, 4, v0
        v_add_u32 v20, {L_FL+F_TT}, v1
        s_mov_b32 exec_hi, 0
        ds_read_b128 v[16:19], v20
        s_lshl_b32 s12, s2, 9
        s_add_u32 s12, s12, {WS_DBG + 0x40000}
        s_waitcnt lgkmcnt(0)
        buffer_store_dwordx4 v[16:19], v1, s[48:51], s12 offen
        """)
    dump_stamps(15)
    a("L_end:")
    a("s_endpgm")
    a('.section .rodata,"a"')
    a(".p2align 6")
    a(f".amdhsa_kernel {NAME}_kernel")
    a("""
    .amdhsa_next_free_vgpr 256
    .amdhsa_next_free_sgpr 102
    .amdhsa_accum_offset 256
    .amdhsa_group_segment_fixed_size 0
    .amdhsa_kernarg_size 112
    .amdhsa_user_sgpr_count 2
    .amdhsa_user_sgpr_kernarg_segment_ptr 1
    .amdhsa_system_sgpr_workgroup_id_x 1
    .amdhsa_float_denorm_mode_32 3
    .end_amdhsa_kernel
    """)
    return out + a.text()

if __name__ == "__main__":
    kw = eval("dict(" + (sys.argv[2] if len(sys.argv) > 2 else "") + ")")
    open(sys.argv[1], "w").write(gen(**kw))
```

```python
import sys
from asmlib import Asm

NAME = "adaLN_cond__mha_block_cached__geglu_ffn__decode"
WS_MOD = 0x1000
WS_Q = 0x10000
WS_STATS = 0x20000
WS_X1 = 0x28000
WS_PART2 = 0x40000
WS_PART1 = 0x80000
WS_FAST = 0
WS_XCC = 0x30000
WS_LINE = 0x34000
AGG = 255
WS_TM, TMSTR = 0x280000, 4352
WS_DBG, WS_SIZE = 0x200000, 0x400000
L_W, L_ACT, L_Q, L_OP, L_GB, L_FL = 0, 0x20000, 0x21200, 0x21400, 0x21A00, 0x21E00
ACT_STRIDE, OP_STRIDE, GB_STRIDE = 1088, 320, 192
LDS_BYTES = 0x22200
F_FAC, F_KD, F_WF, F_WQ, F_WQD, F_H, F_G1, F_G2, F_ST, F_TT = 0, 64, 80, 96, 112, 128, 144, 160, 192, 256
NFFN = 28
SPIN_MAX = 1 << 20
P_X, P_K, P_V, P_WQ, P_WO, P_WG, P_WU, P_WD, P_C, P_WM, P_OUT, P_WS = 16, 18, 20, 22, 24, 28, 30, 32, 34, 36, 38, 42
TAG = "s45"
LOG2E, SCALE, HIMASK = "s64", "s65", "s66"


DOC = """;
;    The two workgroups of a head take alternate 32 KB blocks, so they work in the same DRAM pages.
;    the partner workgroup, output projection, and (workgroups with id % 8 == 0) reduction, LayerNorm, GEGLU FFN.
;  * load balance: every streamer compares its progress with a pace line averaged over a sample of workgroups
;    and picks how many loads it keeps in flight for the next 16 KB (4..8), so that all CUs finish together.
;  * sleeps appear only as back-off inside polling loops; every polling loop is bounded.
"""

def gen(D=5, A=8, E=4, P=48, PL=32, DP=5, D2=7, NE=1, thr=2, thrA=16, thrF=2, late1=False, hk=5, upk=None, up2=1.03, thrQ=4, thrD=3, slp=32, diag=False,
        levels=((4,-70),(4.5,-25),(5,45),(6,140),(8,None)), f1=0.13, f2=0.985, f3=0.99, ms=(3, 7, 11), lagK=2, lagV=1, lag3=1, early=30, D0=None, N0=0, gq=60, gm=24,
        kctl=True, fast=True, fpol='', touch=10, touch1=False, touchp=0, pwait=0, contig=False, mk=5, fk=1.01, nb0=8, mpoll=False, trlate=False, ilv=0, perm='w0 w1 t2 h t3', perm7=None, front=1, frontf=True, frontT=0, sparse=0, wst=True, wstp='sc1', spol='', fnb=4, stouch=False, j2=True, frontw=True, diag2=False, fa_at=13, wpol='nt', noround=0, endat=99, endD=7, endbias=0, fin=7, epearly=True, opol='', otouch=False, p1first=False, p1q=False, wsh=0, psw=80, rotw=None, rotm=None, pf='', pfthr=16, xp=0, xb=None, sym=False, agg=True, aslp=24, alag=1, flag_=1, J=140, up=1.03, eth=45, boost=0.92, ek=0.0006, e0=10, fsplit=(3, 7), spf='w', sgran=128, tsh=1, nojT=True, dry=True, lastctl=True, tlb=True, dbg=False, pad=0, l2warm=True, skip=''):
    a = Asm()
    if front:
        thrQ, thrD, nb0, D0, N0 = 16, 16, fnb, None, 0
    def stamp(k):
        if diag: a(f"s_memrealtime s[{72+2*k}:{73+2*k}]")
    def srd(reg, ptr, nbytes):
        a(f"s_mov_b32 s{reg}, s{ptr}\ns_mov_b32 s{reg+1}, s{ptr+1}\ns_mov_b32 s{reg+2}, {nbytes}\ns_mov_b32 s{reg+3}, 0x20000")
    def dump_stamps(n):
        if not diag: return
        a("s_waitcnt lgkmcnt(0)")
        a("s_mov_b64 exec, 1")
        a("s_lshl_b32 s46, s2, 3\ns_add_u32 s46, s46, s3\ns_lshl_b32 s46, s46, 6")
        a(f"s_add_u32 s46, s46, {WS_DBG}")
        a("v_mov_b32 v1, 0")
        for k in range(n):
            a(f"v_mov_b32 v2, s{72+2*k}")
            a(f"buffer_store_dword v2, v1, s[48:51], s46 offen offset:{4*k}")
    FULL = "row_mask:0xf bank_mask:0xf"
    def allreduce(op, rs, tmps, rows_only=False, steps=("quad_perm:[1,0,3,2]", "quad_perm:[2,3,0,1]", "row_half_mirror", "row_mirror")):
        for st in steps:
            for r in rs: a(f"{op}_dpp v{r}, v{r}, v{r} {st} {FULL}")
        if rows_only: return
        for sw in ("v_permlane16_swap_b32", "v_permlane32_swap_b32"):
            for r, t in zip(rs, tmps): a(f"v_mov_b32 v{t}, v{r}")
            for r, t in zip(rs, tmps): a(f"{sw} v{r}, v{t}")
            for r, t in zip(rs, tmps): a(f"{op} v{r}, v{r}, v{t}")
    def bf16r(d, s):
        a(f"v_cvt_pk_bf16_f32 v{d}, 0, v{s}")
    def bf16r2(lo, hi, t):
        a(f"v_cvt_pk_bf16_f32 v{t}, v{lo}, v{hi}\nv_lshlrev_b32 v{lo}, 16, v{t}\nv_and_b32 v{hi}, {HIMASK}, v{t}")
    def unpack(lo, hi, s):
        a(f"v_lshlrev_b32 v{lo}, 16, v{s}\nv_and_b32 v{hi}, {HIMASK}, v{s}")
    def spin_begin(): a("s_mov_b32 s70, 0")
    def spin_check(): a(f"s_add_u32 s70, s70, 1\ns_cmp_gt_u32 s70, {SPIN_MAX}\ns_cbranch_scc1 L_end")
    MKTAG = "s_mul_i32 s45, s44, 1664525\ns_add_u32 s45, s45, 1013904223"
    BAR0 = "s_load_dword s44, s[42:43], 0\ns_barrier"
    def set_flag(row, widx, va, vb):
        a(f"s_lshl_b32 s47, {widx}, 2\ns_add_u32 s47, s47, {L_FL+row}\nv_mov_b32 v{va}, s47\nv_mov_b32 v{vb}, 1\nds_write_b32 v{va}, v{vb}")
    def wait_flags(lbl, row, t, sleep):
        spin_begin()
        a(f"v_mov_b32 v{t+4}, {L_FL+row}")
        a(f"{lbl}:")
        spin_check()
        if sleep: a(f"s_sleep {sleep}")
        a(f"""
        ds_read_b128 v[{t}:{t+3}], v{t+4}
        s_waitcnt lgkmcnt(0)
        v_and_b32 v{t}, v{t}, v{t+1}
        v_and_b32 v{t+2}, v{t+2}, v{t+3}
        v_and_b32 v{t}, v{t}, v{t+2}
        v_readfirstlane_b32 s47, v{t}
        s_cmp_eq_u32 s47, 1
        s_cbranch_scc0 {lbl}
        """)

    hdr = open("cdna_kernels/" + NAME + ".s.ref").read().split("; Override launch")[0]
    out = hdr + f"; @launch grid=(256,1,1) block=(512,1,1) lds={LDS_BYTES}\n" + DOC
    a('.amdgcn_target "amdgcn-amd-amdhsa--gfx950"')
    a(".text")
    a(f".globl {NAME}_kernel")
    a(".p2align 8")
    a(f".type {NAME}_kernel,@function")
    a(f"{NAME}_kernel:")
    a("""
    s_cmp_ge_u32 s2, 256
    s_cbranch_scc1 L_end
    s_load_dwordx16 s[16:31], s[0:1], 0
    s_load_dwordx8 s[32:39], s[0:1], 64
    s_load_dwordx4 s[40:43], s[0:1], 96
    """)
    if diag:
        for k in range(1, 15): a(f"s_mov_b32 s{72+2*k}, 0")
    stamp(0)
    a("""
    v_lshrrev_b32 v1, 6, v0
    v_and_b32 v0, 63, v0
    v_readfirstlane_b32 s3, v1
    v_lshlrev_b32 v1, 4, v0
    s_lshr_b32 s12, s2, 3
    s_and_b32 s4, s12, 3
    s_lshl_b32 s4, s4, 3
    s_and_b32 s13, s2, 7
    s_add_u32 s4, s4, s13
    s_bfe_u32 s5, s12, 0x20002
    s_lshr_b32 s6, s12, 4
    s_mov_b32 s64, 0x3fb8aa3b
    s_mov_b32 s65, 0x3db504f3
    s_mov_b32 s66, 0xffff0000
    s_lshl_b32 s15, s5, 5
    s_add_u32 s15, s15, s4
    s_cmp_ge_u32 s3, 4
    s_cbranch_scc1 L_helper
    """)

    PB = {sym: 12 + i for i, sym in enumerate(perm.split())} if perm else {'w0': 12, 'w1': 13, 't2': 14, 't3': 15, 'h': 20}
    if perm7: PB = {sym: 10 + i for i, sym in enumerate(perm7.split())}
    def noff(n): return sum(((n >> k) & 1) << PB[f"t{k}"] for k in range(4)) + ((n >> 4) << 17)
    def goff(g): return ((g & 1) << PB['t2']) + (((g >> 1) & 1) << PB['t3']) + ((g >> 2) << ((17 + xp) if perm else 16))
    Q, MK, BB, ACC, PT, XX, YY, T0, T1, SC, RING = 2, 6, 10, 14, 18, 34, 42, 46, 47, 48, 64
    if xb is not None:
        xp = 1
        a(f"""
        s_andn2_b32 s13, s15, {1 << xb}
        s_lshl_b32 s13, s13, 21
        s_bfe_u32 s14, s15, {0x10000 + xb}
        s_lshl_b32 s14, s14, 17
        s_add_u32 s13, s13, s14
        s_mov_b32 s67, 0
        """)
    elif xp:
        a(f"""
        s_lshr_b32 s13, s5, {xp}
        s_lshl_b32 s13, s13, 5
        s_add_u32 s13, s13, s4
        s_lshl_b32 s13, s13, {21 + xp}
        s_and_b32 s14, s5, {(1 << xp) - 1}
        s_lshl_b32 s14, s14, 17
        s_add_u32 s13, s13, s14
        """)
    else: a("s_lshl_b32 s13, s15, 21")
    a(f"""
    s_lshl_b32 s14, s6, {PB['h']}
    s_add_u32 s13, s13, s14
    s_and_b32 s14, s3, 1
    s_lshl_b32 s14, s14, {PB['w0']}
    s_add_u32 s13, s13, s14
    s_lshr_b32 s14, s3, 1
    s_lshl_b32 s14, s14, {PB['w1']}
    s_add_u32 s13, s13, s14
    s_mov_b32 s12, s13
    s_lshl_b32 s14, s3, 15
    s_waitcnt lgkmcnt(0)
    s_mov_b32 s0, 0
    """)
    if diag2: stamp(1)
    srd(8, P_K, 0x10000000)
    st = {"issued": 0, "landed": 0}
    PT_ = P + PL
    assert P % 4 == 0 and PL <= 32
    def ldsoff(n): return ((n - P + 16) % 32) * 1024
    def slot(n):
        if n < P: return RING + 4 * n
        if n < PT_: return RING + 4 * (16 + n - P)
        return RING + 4 * ((n - PT_) % 16)
    def issue(n):
        imm = 0 if perm7 else (n & 3) * 1024
        if P <= n < PT_:
            if n & 3 == 0 or perm7: a(f"s_add_u32 m0, s14, {ldsoff(n)}")
            a(f"buffer_load_dwordx4 v1, s[8:11], s12 offen offset:{imm} nt lds")
        else:
            r = slot(n)
            a(f"buffer_load_dwordx4 v[{r}:{r+3}], v1, s[8:11], s12 offen offset:{imm} nt")
        if perm7: a(f"s_add_u32 s12, s12, {(noff(n + 1) - noff(n)) & 0xffffffff}")
        elif n & 3 == 3: a(f"s_add_u32 s12, s12, {(goff((n >> 2) + 1) - goff(n >> 2)) & 0xffffffff}")
        if xb is not None and n & 15 == 15:
            a(f"s_add_u32 s67, s67, 1\ns_and_b32 s68, s67, 7\ns_cselect_b32 s68, 0, {((1 << (21 + xb)) - (1 << 21))}\ns_add_u32 s12, s12, s68")
        st["issued"] = n + 1
    def throttle(d=None):
        d = d or D
        a(f"s_waitcnt vmcnt({d-1})")
        st["landed"] = max(st["landed"], st["issued"] - (d - 1))
    def ensure(n):
        if n >= st["landed"]:
            k = st["issued"] - 1 - n
            a(f"s_waitcnt vmcnt({k})"); st["landed"] = n + 1
    for n in range(PT_):
        if n == P + 16: wait_flags("L_wqd", F_WQD, PT, 0)
        dd_ = D0 if (D0 and n < N0) else DP
        if n >= dd_: throttle(dd_)
        if diag2 and n == dd_: stamp(2)
        if diag2 and n == 2*dd_: stamp(3)
        if diag2 and n == 20: stamp(5)
        issue(n)
        if n == max(DP, D0 or 0) - 1:
            srd(48, P_WS, WS_SIZE)
            a(f"""
            s_mov_b32 s60, 0xaaaaaaaa
            s_mov_b32 s61, 0xaaaaaaaa
            s_mov_b32 s62, 0xcccccccc
            s_mov_b32 s63, 0xcccccccc
            v_and_b32 v{T0}, 15, v0
            v_and_b32 v{T1}, 1, v0
            v_lshlrev_b32 v{T1}, 4, v{T1}
            v_mov_b32 v{PT}, 0xffff
            v_lshlrev_b32 v{T1}, v{T1}, v{PT}
            v_lshrrev_b32 v{PT}, 1, v{T0}
            """)
            for t in range(4):
                a(f"v_cmp_eq_u32 vcc, {t}, v{PT}\nv_cndmask_b32 v{MK+t}, 0, v{T1}, vcc")
            for t in range(4): a(f"v_mov_b32 v{ACC+t}, 0")
            a(f"v_lshlrev_b32 v{T0}, 4, v{T0}\nv_add_u32 v{T0}, {L_Q}, v{T0}")
        if n == nb0: a("s_barrier")
        if n == gm: set_flag(F_G1, "s3", PT, PT+1)
        if n == gq: set_flag(F_G2, "s3", PT, PT+1)
    if not diag2: stamp(1)
    a("s_barrier")
    if not diag2: stamp(2)
    a(f"ds_read_b128 v[{Q}:{Q+3}], v{T0}\nv_add_u32 v{T0}, s14, v1\ns_waitcnt lgkmcnt(0)")
    def kdots(n):
        r = slot(n); p = PT + n % 16
        a(f"v_dot2_f32_bf16 v{p}, v{r}, v{Q}, 0")
        for i in range(1, 4): a(f"v_dot2_f32_bf16 v{p}, v{r+i}, v{Q+i}, v{p}")
    def kreduce(dst):
        for j in range(8): a(f"v_add_f32_dpp v{XX+j}, v{PT+j}, v{PT+j} row_ror:8 row_mask:0xf bank_mask:0x3")
        for j in range(8): a(f"v_add_f32_dpp v{XX+j}, v{PT+8+j}, v{PT+8+j} row_ror:8 row_mask:0xf bank_mask:0xc")
        for j in range(4): a(f"v_add_f32_dpp v{YY+j}, v{XX+j}, v{XX+j} row_half_mirror row_mask:0xf bank_mask:0x5")
        for j in range(4): a(f"v_add_f32_dpp v{YY+j}, v{XX+4+j}, v{XX+4+j} row_half_mirror row_mask:0xf bank_mask:0xa")
        for j in range(2):
            a(f"v_cndmask_b32 v{XX+2*j}, v{YY+j+2}, v{YY+j}, s[62:63]")
            a(f"v_cndmask_b32 v{XX+2*j+1}, v{YY+j}, v{YY+j+2}, s[62:63]")
        for j in range(2):
            a(f"v_add_f32_dpp v{XX+4+j}, v{XX+2*j}, v{XX+2*j+1} quad_perm:[2,3,0,1] {FULL}")
        a(f"v_cndmask_b32 v{XX}, v{XX+5}, v{XX+4}, s[60:61]")
        a(f"v_cndmask_b32 v{XX+1}, v{XX+4}, v{XX+5}, s[60:61]")
        a(f"v_add_f32_dpp v{XX+2}, v{XX}, v{XX+1} quad_perm:[1,0,3,2] {FULL}")
        if noround < 1: bf16r(XX+2, XX+2)
        a(f"v_mul_f32 v{XX+2}, {SCALE}, v{XX+2}")
        if noround < 2: bf16r(dst, XX+2)
        else: a(f"v_mov_b32 v{dst}, v{XX+2}")
    tgt = -(-(PT_ + 16 - A + 4) // 16) * 16
    NPEEL = tgt // 16
    KL = 16 - NPEEL
    cons = {"n": 0}
    def consume_k_upto(m):
        while cons["n"] < m:
            n = cons["n"]
            if n == P:
                a("s_waitcnt lgkmcnt(0)")
                set_flag(F_WF, "s3", T0, T1)
            ensure(n); kdots(n); cons["n"] += 1
            m2 = n - 16 + P
            if n >= 16 and P <= m2 < PT_:
                ensure(m2)
                r = slot(m2)
                a(f"ds_read_b128 v[{r}:{r+3}], v{T0} offset:{ldsoff(m2)}")
            if n % 16 == 15: kreduce(SC + n // 16 + KL)
    nsteps = tgt + A - PT_
    for s in range(nsteps):
        n = PT_ + s
        prev = s if s < 16 else n - 16
        if s <= 16: want = 1 + -(-PT_ * s // 16)
        else: want = PT_ + 1 + -(-(tgt - PT_ - 1) * (s - 16) // (nsteps - 16))
        want = min(want, max(st["landed"], PT_))
        consume_k_upto(min(max(want, prev + 1), tgt))
        throttle(); issue(n)
    a("s_memrealtime s[52:53]")
    consume_k_upto(tgt)
    FA, FAD, TTA, TTV = 128, 132, 133, 134
    LV = [x[0] for x in levels]
    def ln_(dd): return str(dd).replace(".", "p")
    def dstep(dd, j):
        import math
        return int(math.floor((j + 1) * dd) - math.floor(j * dd))
    a(f"""
    s_mov_b32 s14, 0
    s_mov_b32 s56, 0
    s_mov_b32 s57, 0
    s_mov_b32 s58, 0
    s_mov_b32 s59, 0
    s_mov_b32 s68, {100000 if nojT else J}
    s_and_b32 s69, s2, 7
    s_cselect_b32 s69, {J}, s68
    s_cselect_b32 s71, 0, {tsh}
    s_mov_b32 s67, 0
    s_mov_b32 s68, 0
    s_lshl_b32 s47, s3, 4
    s_add_u32 s47, s47, {L_FL+F_FAC}
    v_mov_b32 v{FAD}, s47
    s_lshl_b32 s47, s3, 2
    s_add_u32 s47, s47, {L_FL+F_TT}
    v_mov_b32 v{TTA}, s47
    v_mov_b32 v{FA+3}, 0
    """)
    def record():
        a(f"""
        s_waitcnt lgkmcnt(0)
        s_or_b32 s53, s52, 1
        v_mov_b32 v{TTV}, s53
        ds_write_b32 v{TTA}, v{TTV}
        v_add_u32 v{TTA}, 16, v{TTA}
        """)
    def dispatch(pre):
        a(f"""
        v_readfirstlane_b32 s55, v{FA+3}
        v_readfirstlane_b32 s54, v{FA+2}
        s_sub_u32 s53, s52, s57
        s_mov_b32 s57, s52
        s_cmp_eq_u32 s55, 0
        s_cbranch_scc1 {pre}{ln_(D)}
        s_sub_u32 s52, s52, s54
        s_lshr_b32 s54, s55, 16
        s_and_b32 s55, s55, 0xffff
        s_lshr_b32 s47, s55, 2
        s_sub_u32 s53, s53, s47
        s_mul_i32 s55, s55, s56
        s_lshr_b32 s55, s55, 4
        s_sub_u32 s52, s52, s55
        s_cmp_gt_i32 s53, s69
        s_cselect_b32 s67, s58, s67
        s_cselect_b32 s68, s59, s68
        s_cselect_b32 s58, s53, s58
        s_cselect_b32 s59, s56, s59
        s_cmp_gt_u32 s59, s54
        s_cselect_b32 s55, s58, 0
        s_sub_u32 s52, s52, s55
        s_cmp_gt_u32 s68, s54
        s_cselect_b32 s55, s67, 0
        s_sub_u32 s52, s52, s55
        """)
        if tsh: a("s_lshl_b32 s52, s52, s71")
        if wsh: a(f"s_cmp_lt_u32 s56, {psw}\ns_cselect_b32 s55, {wsh}, 0\ns_ashr_i32 s52, s52, s55")
        for dd, th in levels:
            if th is None: a(f"s_branch {pre}{ln_(dd)}")
            else: a(f"s_cmp_lt_i32 s52, {th}\ns_cbranch_scc1 {pre}{ln_(dd)}")
    a("; ---- K loop: record progress, choose the prefetch depth, run one 16-tile body")
    a("L_kdisp:")
    record()
    a(f"s_cmp_ge_u32 s14, {KL}\ns_cbranch_scc1 L_kdone")
    if kctl: dispatch("L_k")
    for dd in (LV if kctl else [D]):
        assert dd <= A
        a(f"L_k{ln_(dd)}:")
        for j in range(16):
            n = tgt + j
            if j == fa_at: a(f"ds_read_b128 v[{FA}:{FA+3}], v{FAD}")
            a(f"s_waitcnt vmcnt({dstep(dd, j)-1})")
            if j == 16 - A:
                a(f"s_cmp_eq_u32 s14, {KL-1}\ns_cselect_b32 s8, s{P_V}, s8\ns_cselect_b32 s9, s{P_V+1}, s9\ns_cselect_b32 s12, s13, s12")
            issue(n + A)
            if j == 15: a("s_memrealtime s[52:53]")
            kdots(n)
            if j == 7:
                for i in range(15): a(f"v_mov_b32 v{SC+i}, v{SC+i+1}")
        kreduce(SC + 15)
        a("s_add_u32 s14, s14, 1\ns_add_u32 s56, s56, 4\ns_branch L_kdisp")
    a("L_kdone:")
    a("s_add_u32 s57, s57, 70")
    if not diag2: stamp(3)
    ex = {"n": 256 + A}
    def extra():
        if ex["n"] < 256 + A + E:
            a(f"s_waitcnt vmcnt({D-1})"); issue(ex["n"]); ex["n"] += 1
    extra()
    M, Ls = PT, PT + 1
    a(f"v_max3_f32 v{M}, v{SC}, v{SC+1}, v{SC+2}")
    for i in range(3, 15, 2): a(f"v_max3_f32 v{M}, v{M}, v{SC+i}, v{SC+i+1}")
    a(f"v_max_f32 v{M}, v{M}, v{SC+15}")
    allreduce("v_max_f32", [M], [T0])
    a(f"v_mul_f32 v{T1}, {LOG2E}, v{M}")
    extra()
    for i in range(16): a(f"v_fma_f32 v{SC+i}, v{SC+i}, {LOG2E}, -v{T1}")
    for i in range(16): a(f"v_exp_f32 v{SC+i}, v{SC+i}")
    extra()
    a(f"v_add_f32 v{Ls}, v{SC}, v{SC+1}\nv_add_f32 v{Ls+1}, v{SC+2}, v{SC+3}")
    for i in range(4, 16, 2): a(f"v_add_f32 v{Ls}, v{Ls}, v{SC+i}\nv_add_f32 v{Ls+1}, v{Ls+1}, v{SC+i+1}")
    a(f"v_add_f32 v{Ls}, v{Ls}, v{Ls+1}")
    for i in range(16): a(f"v_cvt_pk_bf16_f32 v{SC+i}, v{SC+i}, v{SC+i}")
    extra()
    allreduce("v_add_f32", [Ls], [T0])
    a(f"ds_write_b64 v{FAD}, v[{M}:{Ls}] offset:{F_ST-F_FAC}")
    set_flag(F_KD, "s3", PT+5, PT+6)
    while ex["n"] < 256 + A + E: extra()
    a("s_memrealtime s[52:53]")
    AV = A + E
    assert AV <= 15
    a(f"""
    v_lshrrev_b32 v{PT}, 4, v0
    v_lshlrev_b32 v{PT}, 5, v{PT}
    v_bfe_u32 v{PT+1}, v0, 1, 1
    v_lshl_add_u32 v{PT}, v{PT+1}, 7, v{PT}
    v_bfe_u32 v{PT+1}, v0, 2, 1
    v_lshl_add_u32 v{PT}, v{PT+1}, 2, v{PT}
    v_and_b32 v{PT+1}, 1, v0
    v_lshl_add_u32 v{PT}, v{PT+1}, 1, v{PT}
    s_mul_i32 s46, s3, {OP_STRIDE}
    s_add_u32 s46, s46, {L_OP}
    v_add_u32 v{PT}, s46, v{PT}
    s_mov_b32 s14, 0
    s_add_u32 s56, s56, {E//4}
    s_waitcnt lgkmcnt(0)
    """)
    def vbody(dd, last, timed):
        assert dd <= AV
        for j in range(16):
            n = 256 + j
            if j == fa_at: a(f"ds_read_b128 v[{FA}:{FA+3}], v{FAD}")
            for t in range(4): a(f"v_and_b32_dpp v{BB+t}, v{SC}, v{MK+t} row_newbcast:{j} {FULL}")
            a(f"s_waitcnt vmcnt({dstep(dd, j)-1})")
            if j == 16 - AV and last:
                a("s_cmp_eq_u32 s14, 15\ns_cselect_b32 s10, 0, s10")
            issue(n + AV)
            r = slot(n)
            if j == 15 and timed: a("s_memrealtime s[52:53]")
            a(f"v_mfma_f32_16x16x32_bf16 v[{ACC}:{ACC+3}], v[{r}:{r+3}], v[{BB}:{BB+3}], v[{ACC}:{ACC+3}]")
        if lastctl and not fin: a("s_cmp_eq_u32 s14, 15\ns_cbranch_scc1 L_sepi")
        for i in range(15): a(f"v_mov_b32 v{SC+i}, v{SC+i+1}")
        a("s_add_u32 s14, s14, 1\ns_add_u32 s56, s56, 4")
    assert NE >= 1
    a("s_branch L_vd1")
    a("; ---- V loop")
    a("L_vdisp:")
    if lastctl:
        record()
    else:
        record()
        a(f"s_cmp_ge_u32 s14, {16-NE}\ns_cbranch_scc1 L_vlast")
    if fin: a("s_cmp_eq_u32 s14, 15\ns_cbranch_scc1 L_vfin")
    if endat < 16: a(f"s_cmp_ge_u32 s14, {endat}\ns_cbranch_scc1 L_v{ln_(endD)}")
    if endbias: a(f"s_cmp_ge_u32 s14, 14\ns_cselect_b32 s55, {endbias}, 0\ns_add_u32 s52, s52, s55\ns_add_u32 s57, s57, s55")
    a("L_vd1:")
    dispatch("L_v")
    for dd in LV:
        a(f"L_v{ln_(dd)}:")
        vbody(dd, lastctl and not fin, True)
        a("s_branch L_vdisp")
    if fin:
        a("L_vfin:")
        a(f"ds_read_b128 v[{FA}:{FA+3}], v{FAD}")
        st["issued"] = 496 + AV; st["landed"] = 496 + AV - max(int(x + 0.999) for x in LV)
        def vcons(n):
            j = n - 496
            bb = BB if j & 1 else XX
            for t in range(4): a(f"v_and_b32_dpp v{bb+t}, v{SC}, v{MK+t} row_newbcast:{j} {FULL}")
            ensure(n)
            r = slot(n)
            a(f"v_mfma_f32_16x16x32_bf16 v[{ACC}:{ACC+3}], v[{r}:{r+3}], v[{bb}:{bb+3}], v[{ACC}:{ACC+3}]")
        c_ = 496
        for n in range(496 + AV, 512):
            throttle(fin); issue(n)
            for _ in range(2):
                if c_ < st["landed"]: vcons(c_); c_ += 1
        a("L_vfin2:")
        while c_ < 512: vcons(c_); c_ += 1
    if not lastctl:
        a("L_vlast:")
        vbody(D2, True, False)
        a("s_cmp_lt_u32 s14, 16\ns_cbranch_scc1 L_vlast")
    a("L_sepi:")
    if not fin: a("s_nop 7")
    stamp(4)
    a(f"s_waitcnt lgkmcnt(0)\nv_readfirstlane_b32 s46, v{FA+1}\ns_mov_b32 s70, 0\ns_or_b32 s46, s46, s0\ns_cmp_lg_u32 s46, 0\ns_cbranch_scc0 L_facspin")
    a("L_facok:")
    for t in range(4): a(f"v_mul_f32 v{ACC+t}, v{ACC+t}, v{FA}")
    a(f"v_cvt_pk_bf16_f32 v{ACC}, v{ACC}, v{ACC+1}\nv_cvt_pk_bf16_f32 v{ACC+2}, v{ACC+2}, v{ACC+3}")
    a(f"""
    s_mov_b32 exec_lo, 0x00ff00ff
    s_mov_b32 exec_hi, 0x00ff00ff
    ds_write_b16 v{PT}, v{ACC}
    ds_write_b16_d16_hi v{PT}, v{ACC} offset:8
    ds_write_b16 v{PT}, v{ACC+2} offset:16
    ds_write_b16_d16_hi v{PT}, v{ACC+2} offset:24
    s_waitcnt lgkmcnt(0)
    """)
    if dry: a("s_cmp_eq_u32 s0, 1\ns_cbranch_scc1 L_tail0")
    a("s_barrier")
    if not diag2: stamp(5)
    dump_stamps(6)
    a("s_endpgm")
    a("L_facspin:")
    spin_check()
    a(f"ds_read_b128 v[{FA}:{FA+3}], v{FAD}\ns_waitcnt lgkmcnt(0)\nv_readfirstlane_b32 s46, v{FA+1}\ns_cmp_eq_u32 s46, 1\ns_cbranch_scc0 L_facspin\ns_branch L_facok")

    a("L_helper:")
    TRB, DA, DB, DN, TA, TB, TC = 2, 4, 5, 6, 7, 8, 9
    a(f"""
    s_memrealtime s[60:61]
    s_sub_u32 s7, s3, 4
    """)
    def lane_consts():
        a(f"""
        v_lshrrev_b32 v{TA}, 4, v0
        v_bfe_u32 v{TB}, v0, 2, 2
        v_and_b32 v{TC}, 3, v0
        v_lshl_add_u32 v{TRB}, v{TA}, 3, v{TB}
        v_lshlrev_b32 v{TRB}, 8, v{TRB}
        v_lshl_add_u32 v{TRB}, v{TC}, 3, v{TRB}
        v_and_b32 v{TC}, 1, v{TA}
        v_lshl_add_u32 v{TB}, v{TC}, 2, v{TB}
        v_lshl_add_u32 v{TRB}, v{TB}, 5, v{TRB}
        s_lshl_b32 s12, s7, 15
        v_add_u32 v{TRB}, s12, v{TRB}
        v_and_b32 v{TB}, 15, v0
        v_lshlrev_b32 v{TC}, 1, v{TA}
        v_xor_b32 v{TB}, v{TB}, v{TC}
        v_lshlrev_b32 v{DN}, 4, v{TB}
        v_mov_b32 v{DA}, 0
        """)
    lane_consts()
    a(f"""
    s_bfe_u32 s13, s2, {0x40003 if sym else 0x50003}
    s_lshl_b32 s69, s13, {1 if sym else 0}
    {"s_add_u32 s69, s69, s6" if sym else ""}
    s_and_b32 s12, s2, 7
    s_mov_b32 s68, 4
    s_cmp_lt_u32 s69, {NFFN}
    s_cselect_b32 s68, 5, s68
    s_cmp_eq_u32 s12, 0
    s_cbranch_scc1 L_role
    s_mul_i32 s69, s13, 7
    s_add_u32 s69, s69, s12
    s_sub_u32 s69, s69, 1
    s_lshl_b32 s69, s69, {1 if sym else 0}
    {"s_add_u32 s69, s69, s6" if sym else ""}
    s_mov_b32 s68, 1
    s_cmp_lt_u32 s69, {48 if front else 16}
    s_cbranch_scc1 L_role
    s_sub_u32 s69, s69, {48 if front else 16}
    s_mov_b32 s68, 3
    s_cmp_lt_u32 s69, 64
    s_cbranch_scc1 L_role
    s_sub_u32 s69, s69, 48
    s_mov_b32 s68, 2
    s_cmp_lt_u32 s69, {0 if front else 48}
    s_cbranch_scc1 L_role
    s_mov_b32 s68, 0
    L_role:
    """)
    a(f"""
    s_cmp_lg_u32 s7, 3
    s_cbranch_scc1 L_noinit
    s_and_b32 s12, s68, 1
    s_xor_b32 s12, s12, 1
    v_cmp_eq_u32 vcc, {F_WQD//16}, v0
    v_mov_b32 v17, s12
    v_cndmask_b32 v16, 0, v17, vcc
    v_mov_b32 v17, v16
    v_mov_b32 v18, v16
    v_mov_b32 v19, v16
    v_add_u32 v20, {L_FL}, v1
    ds_write_b128 v20, v[16:19]
    L_noinit:
    s_waitcnt lgkmcnt(0)
    s_mov_b32 s0, 0
    s_mov_b32 s71, 0
    """)
    srd(48, P_WS, WS_SIZE)
    def dma_seq(nins, stride, soff, ldsbase, infl, hooks, pol, sel, rot):
        if rot:
            a(rot)
            a(f"s_mov_b32 s59, {ldsbase}")
        for i in range(nins):
            if rot:
                if i: a(f"s_add_u32 s58, s58, 1\ns_and_b32 s58, s58, {nins-1}")
                a(f"s_lshl_b32 s57, s58, 10\ns_add_u32 m0, s59, s57\ns_mul_i32 s57, s58, {stride}\ns_add_u32 s57, s57, {soff}")
                so = "s57"
            else:
                a(f"s_mov_b32 m0, {ldsbase}" if i == 0 else "s_add_u32 m0, m0, 0x400")
                if i: a(f"s_add_u32 {soff}, {soff}, {stride}")
                so = soff
            a(f"buffer_load_dwordx4 v{DB if sel(i) else DA}, s[8:11], {so} offen {pol} lds")
            if i in hooks: hooks[i]()
            if i >= infl - 1: a(f"s_waitcnt vmcnt({infl-1})")
    def rot_code(src, mul, shr, gran, nins):
        return f"s_mul_i32 s58, {src}, {mul}\ns_lshr_b32 s58, s58, {shr}\ns_lshl_b32 s58, s58, {gran}\ns_and_b32 s58, s58, {nins-1}"
    def dma_wide(nins, rs_log2, soff, infl, hooks={}, pol='nt', key="s69"):
        a(f"v_lshrrev_b32 v{TA}, 4, v0\nv_lshl_add_u32 v{DA}, v{TA}, {rs_log2}, v{DN}\nv_xor_b32 v{DB}, 0x80, v{DA}")
        a("s_lshl_b32 s14, s7, 15")
        dma_seq(nins, 4 << rs_log2, soff, "s14", infl, hooks, pol, lambda i: (i >> 1) & 1, rot_code(key, rotw[0], rotw[1], 2, nins) if rotw else None)
    def dma_mid(soff, ldsbase, infl, rs, hooks={}, n=16):
        a(f"""
        v_lshrrev_b32 v{DA}, 3, v0
        v_mul_u32_u24 v{DA}, {rs}, v{DA}
        v_bfe_u32 v{DB}, v0, 4, 1
        v_lshlrev_b32 v{DB}, 1, v{DB}
        v_and_b32 v{TA}, 7, v0
        v_xor_b32 v{DB}, v{DB}, v{TA}
        v_lshl_add_u32 v{DA}, v{DB}, 4, v{DA}
        v_xor_b32 v{DB}, 64, v{DA}
        """)
        dma_seq(n, 8*rs, soff, ldsbase, infl, hooks, "nt", lambda i: i & 1, rot_code("s69", rotm[0], rotm[1], 1, 16) if rotm else None)
    def sprefetch(lbl, ptr, off, nrows, rs, rowbytes):
        per = rowbytes // sgran
        rows = max(1, 16 // per)
        while nrows % rows: rows -= 1
        a(f"s_mov_b32 s56, {off}\ns_mov_b32 s57, 0\n{lbl}:")
        for r_ in range(rows):
            for c_ in range(per):
                a(f"s_add_u32 s59, s56, {r_*rs + c_*sgran}\ns_load_dword s58, s[{ptr}:{ptr+1}], s59")
        a(f"s_waitcnt lgkmcnt(0)\ns_add_u32 s56, s56, {rows*rs}\ns_add_u32 s57, s57, {rows}\ns_cmp_lt_u32 s57, {nrows}\ns_cbranch_scc1 {lbl}")
    def mid_bases():
        a(f"""
        v_lshrrev_b32 v{TB}, 4, v0
        v_bfe_u32 v{TC}, v0, 2, 2
        v_lshl_add_u32 v{TA}, v{TB}, 3, v{TC}
        v_lshlrev_b32 v{TA}, 7, v{TA}
        v_and_b32 v{TB}, 1, v{TB}
        v_lshrrev_b32 v{TC}, 1, v{TC}
        v_lshl_add_u32 v{TB}, v{TB}, 1, v{TC}
        v_xor_b32 v{TB}, s7, v{TB}
        v_lshl_add_u32 v{TA}, v{TB}, 5, v{TA}
        v_and_b32 v{TB}, 3, v0
        v_lshl_add_u32 v{TA}, v{TB}, 3, v{TA}
        v_add_u32 v{TB}, 0x10000, v{TA}
        """)
    def tr_mid(dst, off):
        for s in range(16):
            r = dst + 4 * s
            ar = TA if s < 8 else TB
            o = off + ((s >> 2) & 1) * 0x8000 + (s & 3) * 4096
            a(f"ds_read_b64_tr_b16 v[{r}:{r+1}], v{ar} offset:{o}")
            a(f"ds_read_b64_tr_b16 v[{r+2}:{r+3}], v{ar} offset:{o+512}")
        a("s_waitcnt lgkmcnt(0)")
    def tr_wide(dst, nk):
        for t in range(8):
            ar = TA if t & 1 else TB
            a(f"v_xor_b32 v{ar}, {t << 5}, v{TRB}")
            for s in range(nk):
                r = dst + (t * nk + s) * 4
                a(f"ds_read_b64_tr_b16 v[{r}:{r+1}], v{ar} offset:{s*8192}")
                a(f"ds_read_b64_tr_b16 v[{r+2}:{r+3}], v{ar} offset:{s*8192+1024}")
        a("s_waitcnt lgkmcnt(0)")
    def act_addr(dst, rowsel, tmp):
        a(f"v_and_b32 v{dst}, 3, v0" if rowsel == "lo" else f"v_bfe_u32 v{dst}, v0, 2, 2")
        a(f"v_mul_u32_u24 v{dst}, {ACT_STRIDE}, v{dst}\nv_lshrrev_b32 v{tmp}, 4, v0\nv_lshl_add_u32 v{dst}, v{tmp}, 4, v{dst}\nv_add_u32 v{dst}, {L_ACT}, v{dst}")
    def poll(lbl, loads, tags, sleep=0, pre="", post=""):
        spin_begin()
        if sleep: a(f"s_branch {lbl}_go")
        a(f"{lbl}:")
        spin_check()
        if sleep: a(f"s_sleep {sleep}\n{lbl}_go:")
        a(pre)
        for l in loads: a(l)
        a(post)
        if not getattr(tags, "waits", False): a("s_waitcnt vmcnt(0)")
        tags()
        a(f"s_cmp_eq_u64 vcc, exec\ns_cbranch_scc0 {lbl}")
    def tags_words(regs):
        def f():
            a(f"v_cmp_eq_u32 vcc, {TAG}, v{regs[0]}")
            for r in regs[1:]: a(f"v_cmp_eq_u32 s[56:57], {TAG}, v{r}\ns_and_b64 vcc, vcc, s[56:57]")
        return f
    def tags_xor(regs, t):
        def f():
            a(f"v_xor_b32 v{t}, {TAG}, v{regs[0]}")
            for r in regs[1:]: a(f"v_xor_b32 v{t+1}, {TAG}, v{r}\nv_or_b32 v{t}, v{t}, v{t+1}")
            a(f"v_cmp_eq_u32 vcc, 0, v{t}")
        return f
    def tags_bytes(n, t):
        def f():
            for q in range(n):
                a(f"s_waitcnt vmcnt({n-1-q})")
                for i in range(4*q, 4*q + 4): a(f"v_xor_b32 v{16+i}, s{18+(i&3)}, v{32+i}")
                b_ = 16 + 4*q
                if q == 0: a(f"v_or3_b32 v{t}, v{b_}, v{b_+1}, v{b_+2}\nv_or_b32 v{t}, v{t}, v{b_+3}")
                else: a(f"v_or3_b32 v{t}, v{t}, v{b_}, v{b_+1}\nv_or3_b32 v{t}, v{t}, v{b_+2}, v{b_+3}")
            a(f"v_lshlrev_b32 v{t}, 24, v{t}\nv_cmp_eq_u32 vcc, 0, v{t}")
        f.waits = True
        return f
    def pk(op, d, x, y, mods=""):
        yy = y if isinstance(y, str) else f"v[{y}:{y+1}]"
        a(f"v_pk_{op}_f32 v[{d}:{d+1}], v[{x}:{x+1}], {yy} {mods}")
    NEG = "neg_lo:[0,1] neg_hi:[0,1]"
    def rnd8(x0):
        for k in range(8): bf16r(x0 + k, x0 + k)
    def ln_norm(x0, t0):
        a(f"v_readfirstlane_b32 s46, v{x0}")
        for k in range(4): pk("add", t0+4+2*k, x0+2*k, "s[46:47]", "op_sel_hi:[1,0] " + NEG)
        pk("mul", t0+2, t0+4, t0+4)
        pk("add", t0, t0+4, t0+6)
        a(f"v_pk_fma_f32 v[{t0+2}:{t0+3}], v[{t0+6}:{t0+7}], v[{t0+6}:{t0+7}], v[{t0+2}:{t0+3}]")
        pk("add", t0+4, t0+8, t0+10)
        a(f"v_pk_fma_f32 v[{t0+2}:{t0+3}], v[{t0+8}:{t0+9}], v[{t0+8}:{t0+9}], v[{t0+2}:{t0+3}]")
        pk("add", t0, t0, t0+4)
        a(f"v_pk_fma_f32 v[{t0+2}:{t0+3}], v[{t0+10}:{t0+11}], v[{t0+10}:{t0+11}], v[{t0+2}:{t0+3}]")
        m, q = t0, t0 + 2
        a(f"v_add_f32 v{m}, v{t0}, v{t0+1}\nv_add_f32 v{q}, v{t0+2}, v{t0+3}")
        allreduce("v_add_f32", [m, q], [], rows_only=True)
        for st_ in ("row_bcast:15 row_mask:0xa bank_mask:0xf", "row_bcast:31 row_mask:0xc bank_mask:0xf"):
            for r in (m, q): a(f"v_add_f32_dpp v{r}, v{r}, v{r} {st_}")
        a(f"""
        v_mul_f32 v{m}, 0x3b000000, v{m}
        v_mul_f32 v{q}, 0x3b000000, v{q}
        v_fma_f32 v{q}, -v{m}, v{m}, v{q}
        v_add_f32 v{m}, s46, v{m}
        v_max_f32 v{q}, 0, v{q}
        """)
        bf16r(m, m); bf16r(q, q)
        a(f"v_readlane_b32 s56, v{m}, 63\nv_add_f32 v{q}, 0x3727c5ac, v{q}")
        bf16r(q, q)
        a(f"v_sqrt_f32 v{q}, v{q}")
        for k in range(2): pk("add", x0+2*k, x0+2*k, "s[56:57]", "op_sel_hi:[1,0] " + NEG)
        bf16r(q, q)
        for k in range(2, 4): pk("add", x0+2*k, x0+2*k, "s[56:57]", "op_sel_hi:[1,0] " + NEG)
        a(f"v_rcp_f32 v{q}, v{q}")
        for k in range(3): bf16r(x0 + k, x0 + k)
        a(f"v_readlane_b32 s46, v{q}, 63")
        for k in range(3, 8): bf16r(x0 + k, x0 + k)
        for k in range(4): pk("mul", x0+2*k, x0+2*k, "s[46:47]", "op_sel_hi:[1,0]")
        rnd8(x0)
    def ln_affine(x0, sc8, sh8, t):
        for k in range(4): pk("mul", x0+2*k, x0+2*k, sc8+2*k)
        rnd8(x0)
        for k in range(4): pk("add", x0+2*k, x0+2*k, sh8+2*k)
        for k in range(4): a(f"v_cvt_pk_bf16_f32 v{t+k}, v{x0+2*k}, v{x0+2*k+1}")
    X8, ST, SA8, CA8, BW, DT = 24, 32, 40, 48, 192, 56
    def gemv64(tagn, kind, infl, first):
        isq = kind == "q"
        srd(52, P_X if isq else P_C, 4096)
        a(f"""
        v_lshlrev_b32 v10, 3, v0
        s_lshl_b32 s12, s7, 10
        buffer_load_dwordx2 v[12:13], v10, s[52:55], s12 offen
        buffer_load_dwordx2 v[14:15], v10, s[52:55], s12 offen offset:512
        """)
        rs = 8192 if isq else 6144
        srd(8, P_WQ if isq else P_WM, 0 if ({"q": "q", "A": "A", "a": "a"}[kind] in skip) else 512 * rs)
        if contig: rs = 128
        a(f"s_mul_i32 s13, s7, {128*rs}\ns_lshl_b32 s12, s69, {16 if contig else 7}\ns_add_u32 s13, s13, s12\ns_lshl_b32 s14, s7, 15")
        if kind == "a" and 'a' in spf: sprefetch("L_spa", P_WM, "s13", 128, rs, 128)
        dma_mid("s13", "s14", infl, rs, hooks=({min(infl, 16) - 1: lambda: a(BAR0)} if first else {}))
        a("s_waitcnt vmcnt(16)")
        if kind == "A": stamp(1)
        for k in range(4): unpack(X8 + 2*k, X8 + 2*k + 1, 12 + k)
        a(f"s_mul_i32 s12, s7, {ACT_STRIDE}\ns_add_u32 s12, s12, {L_ACT}\nv_add_u32 v10, s12, v10")
        if isq:
            ln_norm(X8, ST)
        else:
            for k in range(8): a(f"v_mul_f32 v{ST+k}, {LOG2E}, v{X8+k}")
            for k in range(8): a(f"v_exp_f32 v{ST+k}, -v{ST+k}")
            for k in range(8): a(f"v_add_f32 v{ST+k}, 1.0, v{ST+k}")
            for k in range(8): a(f"v_rcp_f32 v{ST+k}, v{ST+k}")
            for k in range(8): a(f"v_mul_f32 v{X8+k}, v{X8+k}, v{ST+k}")
            for k in range(4): a(f"v_cvt_pk_bf16_f32 v{16+k}, v{X8+2*k}, v{X8+2*k+1}")
            a("ds_write_b64 v10, v[16:17]\nds_write_b64 v10, v[18:19] offset:512")
        mid_bases()
        a("s_waitcnt vmcnt(0)")
        set_flag(F_WQ, "s7", 20, 21)
        wait_flags(f"L_wq{tagn}", F_WQ, 16, 0)
        if first: a(MKTAG)
        stamp(4 if isq else 2) if first else None
        tr_mid(BW, 0)
        if first: set_flag(F_WQD, "s7", 16, 17)
        act_addr(TC, "lo", TB)
        a(f"s_lshl_b32 s67, s69, 10\ns_lshl_b32 s12, s7, 8\ns_add_u32 s67, s67, s12\ns_add_u32 s67, s67, {WS_Q if isq else WS_MOD}")
        if isq:
            a(f"""
            v_lshrrev_b32 v{TA}, 2, v0
            v_lshlrev_b32 v{TA}, 8, v{TA}
            v_and_b32 v{TB}, 3, v0
            v_lshl_add_u32 v{TA}, v{TB}, 4, v{TA}
            s_lshl_b32 s12, s7, 6
            s_add_u32 s12, s12, {WS_MOD}
            s_add_u32 s13, s12, 0x1000
            s_add_u32 s14, s12, 0x2000
            s_add_u32 s46, s12, 0x3000
            """)
            if gm: wait_flags("L_g1", F_G1, 16, 4)
            G0 = 128
            poll("L_poll_mod", [f"buffer_load_dwordx4 v[{G0+4*i}:{G0+4*i+3}], v{TA}, s[48:51], {sr} offen sc1" for i, sr in enumerate(["s12", "s13", "s14", "s46"])],
                 tags_xor([G0 + 1 + 2*k for k in range(8)], 16), sleep=slp)
            stamp(5)
            for k in range(4): unpack(SA8 + 2*k, SA8 + 2*k + 1, G0 + 2*k)
            for k in range(4): unpack(CA8 + 2*k, CA8 + 2*k + 1, G0 + 8 + 2*k)
            for k in range(8): a(f"v_add_f32 v{CA8+k}, 1.0, v{CA8+k}")
            rnd8(CA8)
            ln_affine(X8, CA8, SA8, 16)
            a("ds_write_b64 v10, v[16:17]\nds_write_b64 v10, v[18:19] offset:512")
            set_flag(F_H, "s7", 20, 21)
            wait_flags("L_h", F_H, 16, 0)
        for hh in range(2):
            for s in range(8): a(f"ds_read_b128 v[{16+4*s}:{19+4*s}], v{TC} offset:{(8*hh+s)*64}")
            for s in range(8):
                a(f"s_waitcnt lgkmcnt({7-s})")
                k = 8*hh + s
                a(f"v_mfma_f32_16x16x32_bf16 v[{DT}:{DT+3}], v[{BW+4*k}:{BW+4*k+3}], v[{16+4*s}:{19+4*s}], " + ("0" if k == 0 else f"v[{DT}:{DT+3}]"))
        a(f"""
        v_and_b32 v{TC}, 3, v0
        v_lshrrev_b32 v{TA}, 4, v0
        v_lshlrev_b32 v{TA}, 4, v{TA}
        v_lshl_add_u32 v{TA}, v{TC}, 6, v{TA}
        v_mov_b32 v{DT+5}, {TAG}
        v_mov_b32 v{DT+7}, {TAG}
        v_cvt_pk_bf16_f32 v{DT+4}, v{DT}, v{DT+1}
        v_cvt_pk_bf16_f32 v{DT+6}, v{DT+2}, v{DT+3}
        s_mov_b32 exec_lo, 0x000f000f
        s_mov_b32 exec_hi, 0x000f000f
        buffer_store_dwordx4 v[{DT+4}:{DT+7}], v{TA}, s[48:51], s67 offen sc1
        s_mov_b64 exec, -1
        """)
        if first: stamp(13 if isq else 3)

    if wst:
        a(f"""
        s_cmp_lg_u32 s7, 2
        s_cbranch_scc1 L_nowst
        v_lshlrev_b32 v16, 7, v0
        s_lshl_b32 s12, s2, 12
        s_mov_b32 exec_hi, 0
        buffer_load_dword v60, v16, s[48:51], s12 offen {wstp}
        s_cmp_ge_u32 s2, 64
        s_cbranch_scc1 L_nowst2
        s_mul_i32 s12, s2, {TMSTR}
        s_add_u32 s12, s12, {WS_TM}
        s_mov_b32 exec_lo, 0x3ff
        buffer_load_dword v61, v16, s[48:51], s12 offen {wstp}
        L_nowst2:
        s_mov_b64 exec, -1
        L_nowst:
        """)
    if front:
        a("s_cmp_lt_u32 s68, 4\ns_cbranch_scc1 L_noTw")
        srd(8, P_WO, 4096 * 1024)
        a("s_lshl_b32 s13, s4, 17\ns_lshr_b32 s12, s2, 5\ns_lshl_b32 s12, s12, 14\ns_add_u32 s13, s13, s12\ns_lshl_b32 s12, s7, 12\ns_add_u32 s13, s13, s12")
        for i in range(4): a(f"buffer_load_dwordx4 v[{64+4*i}:{67+4*i}], v1, s[8:11], s13 offen offset:{i*1024}")
        for k_ in range(frontT):
            srd(8, P_WU if k_ else P_WG, 512 * 3584)
            a("s_lshl_b32 s13, s69, 2\ns_add_u32 s13, s13, s7\ns_mul_i32 s13, s13, 14336")
            for i in range(14):
                a(f"buffer_load_dwordx4 v[{80+56*k_+4*i}:{83+56*k_+4*i}], v1, s[8:11], s13 offen offset:{(i&3)*1024}")
                if i & 3 == 3: a("s_add_u32 s13, s13, 0x1000")
        a("L_noTw:")
    a("""
    s_cmp_eq_u32 s68, 3
    s_cbranch_scc1 L_qgemv
    s_cmp_eq_u32 s68, 5
    s_cbranch_scc1 L_down
    s_cmp_lg_u32 s68, 1
    s_cbranch_scc1 L_bar0
    """)
    gemv64(1, "A", 64, True)
    a("s_branch L_getq")
    a("L_qgemv:")
    gemv64(2, "q", thrQ, True)
    a("s_branch L_getq")
    a("L_down:")
    srd(8, P_WD, 0 if 'f' in skip else 1792 * 1024)
    a("s_lshl_b32 s13, s69, 16\ns_lshl_b32 s12, s7, 8\ns_add_u32 s13, s13, s12")
    dma_wide(16, 10, "s13", thrD, hooks={min(thrD, 16) - 1: lambda: a(BAR0)})
    a("s_waitcnt vmcnt(0)")
    tr_wide(192, 2)
    a(MKTAG)
    set_flag(F_WQD, "s7", 16, 17)
    a("s_branch L_getq")
    a("L_bar0:")
    def burst(n, r0):
        for i in range(n):
            a(f"buffer_load_dwordx4 v[{r0+4*i}:{r0+4*i+3}], v1, s[8:11], s13 offen offset:{(i&3)*1024}")
            if i & 3 == 3: a("s_add_u32 s13, s13, 0x1000")
    if front and frontw:
        a("s_cmp_lg_u32 s68, 0\ns_cbranch_scc1 L_nofw")
        srd(8, P_WO, 4096 * 1024)
        a("s_lshl_b32 s13, s4, 17\ns_lshl_b32 s12, s5, 15\ns_add_u32 s13, s13, s12\ns_lshl_b32 s12, s7, 13\ns_add_u32 s13, s13, s12")
        burst(8, 64)
        if frontf and frontT == 0:
            srd(8, P_WG, 512 * 3584)
            a(f"""
            s_sub_u32 s13, s69, 16
            s_cmp_ge_u32 s13, 56
            s_cselect_b32 s8, s{P_WU}, s8
            s_cselect_b32 s9, s{P_WU+1}, s9
            s_cselect_b32 s12, 56, 0
            s_sub_u32 s13, s13, s12
            s_lshl_b32 s13, s13, 15
            s_lshl_b32 s12, s7, 13
            s_add_u32 s13, s13, s12
            """)
            if sparse:
                a(f"v_mul_u32_u24 v16, {sparse}, v0")
                for i in range(128 // sparse):
                    a(f"buffer_load_dword v{96+i}, v16, s[8:11], s13 offen {spol}\ns_add_u32 s13, s13, {64*sparse}")
            else: burst(8, 96)
        elif frontf and frontT == 1:
            srd(8, P_WU, 512 * 3584)
            a("s_sub_u32 s13, s69, 16\ns_lshl_b32 s13, s13, 14\ns_lshl_b32 s12, s7, 12\ns_add_u32 s13, s13, s12")
            burst(4, 96)
        a("L_nofw:")
    if l2warm:
        a(f"""
        s_cmp_lg_u32 s7, 3
        s_cbranch_scc1 L_nowarm
        s_getpc_b64 s[12:13]
        L_pc:
        s_sub_u32 s12, s12, L_pc-{NAME}_kernel
        s_subb_u32 s13, s13, 0
        v_lshlrev_b32 v16, 7, v0
        s_mov_b32 s14, 0
        L_warm:
        v_cmp_gt_u32 vcc, L_end-{NAME}_kernel, v16
        s_and_saveexec_b64 s[46:47], vcc
        s_cbranch_execz L_warmd
        global_load_dword v17, v16, s[12:13]
        v_add_u32 v16, 0x2000, v16
        s_branch L_warm
        L_warmd:
        s_mov_b64 exec, -1
        L_nowarm:
        """)
    a(BAR0)
    a("s_waitcnt lgkmcnt(0)")
    a(MKTAG)
    a("L_getq:")
    def dryrun(n, cond):
        a(f"""
        s_cmp_lg_u32 s7, 1
        s_cbranch_scc1 L_nodry{n}
        {cond} s68, 4
        s_cbranch_scc1 L_nodry{n}
        s_waitcnt vmcnt(0)
        s_mov_b32 s0, 1
        s_mov_b32 s1, {TAG}
        s_mov_b32 {TAG}, 0
        s_mov_b32 s50, 0
        s_mov_b32 s44, 1
        v_mov_b32 v{PT}, {L_OP}
        s_branch {'L_vfin2' if fin else 'L_facok'}
        L_afterdry{n}:
        s_mov_b32 s0, 0
        s_mov_b32 {TAG}, s1
        s_mov_b32 s50, {WS_SIZE}
        s_mov_b64 exec, -1
        s_waitcnt vmcnt(0) lgkmcnt(0)
        """)
        if n == 1: lane_consts()
        a(f"L_nodry{n}:")
    if dry: dryrun(1, "s_cmp_lt_u32")
    a("s_cmp_lg_u32 s7, 2\ns_cbranch_scc1 L_bar1")
    a(f"""
    v_bfe_u32 v{TA}, v0, 2, 3
    v_lshlrev_b32 v{TA}, 8, v{TA}
    v_and_b32 v{TB}, 3, v0
    v_lshl_add_u32 v{TA}, v{TB}, 4, v{TA}
    s_lshl_b32 s12, s4, 11
    s_lshl_b32 s13, s5, 6
    s_add_u32 s12, s12, s13
    s_add_u32 s12, s12, {WS_Q}
    v_and_b32 v{TB}, 31, v0
    v_lshlrev_b32 v{TB}, 3, v{TB}
    v_add_u32 v{TB}, {L_Q}, v{TB}
    """)
    if gq: wait_flags("L_g2", F_G2, 16, 4)
    poll("L_poll_q", [f"buffer_load_dwordx4 v[16:19], v{TA}, s[48:51], s12 offen sc1"], tags_words([17, 19]), sleep=slp)
    a(f"v_mov_b32 v17, v18\nds_write_b64 v{TB}, v[16:17]\ns_waitcnt lgkmcnt(0)")
    a("L_bar1:")
    a("s_barrier")
    if dbg: a("s_memrealtime s[98:99]")
    stamp(6)
    a(f"""
    s_getreg_b32 s62, hwreg(HW_REG_XCC_ID)
    s_cmp_lt_u32 s68, 4
    s_cbranch_scc1 L_noxcc
    s_cmp_lg_u32 s7, 1
    s_cbranch_scc1 L_noxcc
    v_mov_b32 v16, s62
    v_mov_b32 v17, {TAG}
    s_lshl_b32 s12, s69, 7
    s_add_u32 s12, s12, {WS_XCC}
    s_mov_b64 exec, 1
    buffer_store_dwordx2 v[16:17], v1, s[48:51], s12 offen sc1
    s_mov_b64 exec, -1
    L_noxcc:
    """)
    if tlb:
        a("s_cmp_lg_u32 s7, 3\ns_cbranch_scc1 L_notlb\ns_mov_b64 exec, 1")
        srd(8, P_V, 0x10000000)
        a("s_lshl_b32 s12, s15, 21\ns_lshl_b32 s13, s6, 20\ns_add_u32 s12, s12, s13\nbuffer_load_dword v16, v1, s[8:11], s12 offen nt")
        srd(8, P_OUT, 4096)
        a("buffer_load_dword v17, v1, s[8:11], 0 offen nt")
        a(f"s_mov_b32 s12, {WS_TM}\nbuffer_load_dword v18, v1, s[48:51], s12 offen offset:1024 nt")
        a("s_mov_b64 exec, -1\ns_waitcnt vmcnt(0)\nL_notlb:")
    def wait_row(lbl, g):
        spin_begin()
        a(f"v_mov_b32 v20, {L_FL+F_TT+16*g}")
        a(f"s_branch {lbl}_go\n{lbl}:")
        spin_check()
        a(f"""
        s_sleep 8
        {lbl}_go:
        ds_read_b128 v[16:19], v20
        s_waitcnt lgkmcnt(0)
        v_and_b32 v21, v16, v17
        v_and_b32 v22, v18, v19
        v_and_b32 v21, v21, v22
        v_readfirstlane_b32 s47, v21
        s_bitcmp1_b32 s47, 0
        s_cbranch_scc0 {lbl}
        """)
    def tm_publish(m, g):
        a(f"""
        s_lshr_b32 s12, s2, 3
        s_xor_b32 s12, s12, s2
        s_and_b32 s12, s12, 1
        {"s_xor_b32 s12, s12, s6" if sym else "s_xor_b32 s14, s6, 1"}
        {"" if sym else "s_or_b32 s12, s12, s14"}
        s_or_b32 s12, s12, s68
        s_or_b32 s12, s12, s7
        s_cbranch_scc1 L_tmp{m}
        """)
        wait_row(f"L_tr{m}", g)
        for k in range(4): a(f"v_subrev_u32 v{16+k}, s60, v{16+k}")
        a(f"""
        v_add3_u32 v16, v16, v17, v18
        v_add_u32 v16, v16, v19
        v_lshrrev_b32 v16, 2, v16
        v_add_u32 v16, s60, v16
        v_mov_b32 v17, {TAG}
        v_mov_b32 v18, s60
        v_mov_b32 v19, {TAG}
        s_bfe_u32 s12, s2, {0x30003 if sym else 0x30004}
        s_lshl_b32 s12, s12, 3
        s_and_b32 s14, s2, 7
        s_add_u32 s12, s12, s14
        s_mul_i32 s12, s12, {TMSTR}
        s_add_u32 s12, s12, {WS_TM + 128*m}
        s_mov_b64 exec, 1
        buffer_store_dwordx4 v[16:19], v1, s[48:51], s12 offen sc1
        s_mov_b64 exec, -1
        L_tmp{m}:
        """)
    import struct
    def fhex(v): return hex(struct.unpack("<I", struct.pack("<f", v))[0])
    def sfetch(lbl, soff_reg, imm):
        a(f"""
        s_load_dwordx4 s[56:59], s[42:43], {soff_reg}
        s_waitcnt lgkmcnt(0)
        v_mov_b32 v16, s56
        v_mov_b32 v18, s58
        s_xor_b32 s57, s57, {TAG}
        s_xor_b32 s59, s59, {TAG}
        s_or_b32 s57, s57, s59
        s_cbranch_scc0 {lbl}_ok
        v_mov_b32 v20, 0
        """)
        poll(lbl, [f"buffer_load_dwordx4 v[16:19], v20, s[48:51], {soff_reg} offen sc1"], tags_words([17, 19]), sleep=32)
        a(f"{lbl}_ok:")
    def line_write(m):
        a(f"""
        s_cmp_ge_u32 s68, 4
        s_cselect_b32 s12, {early if 1 < m < 9 else 0}, 0
        v_subrev_u32 v16, s12, v16
        v_and_b32 v20, 3, v0
        v_lshlrev_b32 v20, 4, v20
        v_add_u32 v20, {L_FL+F_FAC+8}, v20
        ds_write_b64 v20, v[16:17]
        """)
    def tm_follow(m, gate):
        a(f"s_cmp_lg_u32 s7, 0\ns_cbranch_scc1 L_tmf{m}\ns_cmp_eq_u32 s2, {AGG}\ns_cbranch_scc1 L_tmf{m}")
        wait_row(f"L_tf{m}", gate + flag_)
        a(f"s_mov_b32 s12, {WS_LINE + 1280*m}")
        sfetch(f"L_poll_ln{m}", "s12", 0)
        a("v_mov_b32 v17, v18")
        line_write(m)
        a(f"L_tmf{m}:")
    def tm_gather(m, gate, p_m, mult, row, follow=True):
        a(f"s_cmp_lg_u32 s7, 0\ns_cbranch_scc1 L_tmg{m}")
        if agg: a(f"s_cmp_lg_u32 s2, {AGG}\ns_cbranch_scc1 L_tmg{m}")
        wait_row(f"L_tg{m}", row + alag if agg else gate)
        a(f"""
        v_and_b32 v21, 7, v0
        v_lshrrev_b32 v20, 3, v0
        v_max_u32 v20, 1, v20
        v_cmp_eq_u32 vcc, 0, v21
        v_cndmask_b32 v20, 0, v20, vcc
        v_add_u32 v20, v20, v0
        v_mul_u32_u24 v20, {TMSTR}, v20
        s_mov_b32 s12, {WS_TM + 128*m}
        """)
        poll(f"L_poll_tm{m}", ["buffer_load_dwordx4 v[16:19], v20, s[48:51], s12 offen sc1"], tags_words([17, 19]), sleep=aslp if agg else 48)
        a("v_sub_u32 v18, v16, v18\nv_subrev_u32 v16, s60, v16")
        allreduce("v_add_u32", [16, 18], [17, 19])
        a("v_ashrrev_i32 v16, 6, v16\nv_lshrrev_b32 v18, 6, v18")
        if m > 1: a("v_subrev_u32 v18, s61, v16")
        a(f"""
        v_readfirstlane_b32 s61, v16
        {f"v_readfirstlane_b32 s{90+m}, v16" if dbg else ""}
        v_cvt_f32_u32 v18, v18
        v_mul_f32 v18, {fhex(mult)}, v18
        """)
        if m > 1 and up:
            a(f"""
            s_mul_i32 s12, s63, {p_m}
            s_lshr_b32 s12, s12, 4
            s_add_u32 s12, s12, s1
            """)
            if ek:
                a(f"""
                s_sub_u32 s12, s12, {e0}
                v_subrev_u32 v19, s12, v16
                v_cvt_f32_i32 v19, v19
                v_mul_f32 v19, {fhex(ek)}, v19
                v_add_f32 v19, 1.0, v19
                v_min_f32 v19, 1.0, v19
                v_max_f32 v19, {fhex(boost)}, v19
                v_mul_f32 v18, v18, v19
                v_cvt_f32_u32 v17, s63
                """)
            else:
                a(f"""
                s_sub_u32 s12, s12, {eth}
                v_mul_f32 v19, {fhex(boost)}, v18
                v_cmp_gt_i32 vcc, s12, v16
                v_cvt_f32_u32 v17, s63
                v_cndmask_b32 v18, v18, v19, vcc
                """)
            a(f"""
            v_mul_f32 v17, {fhex(up2 if m == 2 else (upk if (m == 9 and upk) else up))}, v17
            v_min_f32 v18, v18, v17
            """)
        a(f"""
        v_cvt_u32_f32 v17, v18
        v_mul_u32_u24 v18, {p_m}, v17
        v_lshrrev_b32 v18, 4, v18
        v_sub_u32 v16, v16, v18
        v_readfirstlane_b32 s63, v17
        v_readfirstlane_b32 s1, v16
        v_add_u32 v16, s60, v16
        v_min_u32 v17, 0xffff, v17
        v_or_b32 v17, {p_m << 16}, v17
        """)
        if agg:
            a(f"""
            v_mov_b32 v20, v16
            v_mov_b32 v21, {TAG}
            v_mov_b32 v22, v17
            v_mov_b32 v23, {TAG}
            s_mov_b32 s12, {WS_LINE + 1280*m}
            s_mov_b64 exec, 1
            buffer_store_dwordx4 v[20:23], v1, s[48:51], s12 offen sc1
            s_mov_b64 exec, -1
            """)
        line_write(m)
        a(f"L_tmg{m}:")
        if agg and follow: tm_follow(m, gate)
    if pf:
        for hw_, (ptr, nb, n_, key) in enumerate([(P_WO, 4096*1024, 16, 'w'), (P_WG, 512*3584, 7, 'f'), (P_WU, 512*3584, 7, 'f'), (P_WM, 512*6144, 12, 'a')]):
            if key not in pf: continue
            a(f"s_cmp_lg_u32 s7, {hw_}\ns_cbranch_scc1 L_npf{hw_}")
            srd(8, ptr, nb)
            a(f"s_mul_i32 s12, s2, {n_*1024}")
            for i in range(n_):
                a(f"buffer_load_dwordx4 v[{64+4*i}:{67+4*i}], v1, s[8:11], s12 offen offset:{(i&3)*1024}")
                if i & 3 == 3: a("s_add_u32 s12, s12, 0x1000")
                if i >= pfthr - 1: a(f"s_waitcnt vmcnt({pfthr-1})")
            a(f"s_waitcnt vmcnt(0)\nL_npf{hw_}:")
    if 'w' in spf and not front:
        if front and frontw: a("s_cmp_lt_u32 s68, 4\ns_cbranch_scc1 L_nospw")
        a("s_lshl_b32 s13, s4, 17\ns_lshr_b32 s12, s2, 5\ns_lshl_b32 s12, s12, 14\ns_add_u32 s13, s13, s12\ns_lshl_b32 s12, s7, 12\ns_add_u32 s13, s13, s12")
        sprefetch("L_spw", P_WO, "s13", 8, 512, 512)
        a("L_nospw:")
    wait_flags("L_wf", F_WF, 16, 4)
    srd(8, P_WO, 0 if 'w' in skip else 4096 * 1024)
    a("s_lshl_b32 s13, s4, 17\ns_lshl_b32 s12, s7, 8\ns_add_u32 s13, s13, s12")
    if late1:
        hooks_ = {hk: lambda: tm_publish(1, 0)}
        if 'g' in spf:
            a(f"""
            s_cmp_eq_u32 s68, 5
            s_cselect_b32 s26, s{P_WG}, s{P_WM}
            s_cselect_b32 s27, s{P_WG+1}, s{P_WM+1}
            s_cselect_b32 s41, 3584, 0
            s_cmp_eq_u32 s68, 2
            s_cselect_b32 s41, 6144, s41
            s_lshl_b32 s40, s41, 7
            s_mul_i32 s40, s40, s7
            s_lshl_b32 s12, s69, 7
            s_add_u32 s40, s40, s12
            """)
            def mk_hook(i):
                def f():
                    if i == hk: tm_publish(1, 0)
                    a(f"s_cmp_eq_u32 s41, 0\ns_cbranch_scc1 L_hp{i}")
                    for _ in range(4): a("s_load_dword s58, s[26:27], s40\ns_add_u32 s40, s40, s41")
                    a(f"L_hp{i}:")
                return f
            hooks_ = {i: mk_hook(i) for i in range(32)}
        dma_wide(32, 10, "s13", thr, hooks=hooks_, pol=wpol, key='s4')
    else:
        dma_wide(32, 10, "s13", thr, hooks=({5: lambda: tm_publish(1, 0), 9 + 6*alag: lambda: tm_gather(1, lagK, 0, 4*f1, 1, False), 5 + 6*(lagK + flag_): lambda: tm_follow(1, lagK)} if agg else {5: lambda: tm_publish(1, 0), 5 + 6*lagK: lambda: tm_gather(1, lagK, 0, 4*f1, 1)}), pol=wpol, key='s4')
    a("s_waitcnt vmcnt(0)")
    tr_wide(64, 4)
    if not front:
        a("s_cmp_lg_u32 s68, 2\ns_cbranch_scc1 L_noA2")
        gemv64(3, "a", thrA, False)
        a("L_noA2:")
    SB, TREG = [10, 11, 12, 13], [4, 5, 6, 14]
    RX, RGA, RGB = 2, 3, 15
    def ffn_cols(dst_tile, dst_sub):
        a(f"""
        v_lshrrev_b32 v{dst_tile}, 4, v0
        v_and_b32 v{dst_sub}, 3, v0
        v_lshl_add_u32 v{dst_tile}, v{dst_tile}, 2, v{dst_sub}
        v_bfe_u32 v{dst_sub}, v0, 2, 2
        """)
    RSF = 128 if contig else 3584
    pieces = list(enumerate(fsplit))
    PN = 32 // len(fsplit)
    def stage_upto(row):
        while pieces and pieces[0][1] < row:
            k, r_ = pieces.pop(0)
            mat, i0 = (k * PN) // 16, (k * PN) % 16
            a(f"s_cmp_lg_u32 s68, 5\ns_cbranch_scc1 L_noffn1{k}")
            srd(8, P_WU if mat else P_WG, 0 if 'f' in skip else 512 * 3584)
            a(f"s_lshl_b32 s13, s69, 7\ns_mul_i32 s12, s7, {128*3584}\ns_add_u32 s13, s13, s12\ns_add_u32 s13, s13, {i0*8*3584}\ns_lshl_b32 s14, s7, 15\ns_add_u32 s14, s14, {0x4000*mat + 1024*i0}")
            if 'f' in spf or ('u' in spf and mat): sprefetch(f"L_spf{k}", P_WU if mat else P_WG, "s13", PN*8, 3584, 128)
            wait_row(f"L_fs{k}", r_)
            dma_mid("s13", "s14", thrF, 3584, n=PN)
            a(f"L_noffn1{k}:")
    FL = flag_ if agg else 0
    stage_upto(lagK + FL)
    if late1: tm_gather(1, lagK, 0, 4*f1, 1)
    stage_upto(mk + 1 + FL)
    tm_publish(9, mk)
    tm_gather(9, mk + 1, 4*mk, 4*fk/mk, mk)
    stage_upto(KL + 1)
    if dry: dryrun(2, "s_cmp_ge_u32")
    stamp(7)
    tm_publish(2, KL)
    a("s_cmp_lg_u32 s7, 0\ns_cbranch_scc1 L_nofac")
    wait_flags("L_kd", F_KD, 16, 16)
    q4 = ("quad_perm:[1,0,3,2]", "quad_perm:[2,3,0,1]")
    a(f"""
    v_and_b32 v{TA}, 3, v0
    v_lshlrev_b32 v{TA}, 4, v{TA}
    v_add_u32 v{TA}, {L_FL}, v{TA}
    ds_read_b64 v[24:25], v{TA} offset:{F_ST}
    s_waitcnt lgkmcnt(0)
    v_mov_b32 v28, v24
    """)
    allreduce("v_max_f32", [28], [], rows_only=True, steps=q4)
    a(f"v_sub_f32 v30, v24, v28\nv_mul_f32 v30, {LOG2E}, v30\nv_exp_f32 v30, v30\nv_mul_f32 v30, v25, v30")
    allreduce("v_add_f32", [30], [], rows_only=True, steps=q4)
    a(f"""
    v_mov_b32 v29, {TAG}
    v_mov_b32 v31, {TAG}
    s_lshl_b32 s13, s15, 7
    s_add_u32 s13, s13, {WS_STATS}
    s_lshl_b32 s12, s6, 4
    s_add_u32 s14, s13, s12
    s_xor_b32 s12, s12, 16
    s_add_u32 s13, s13, s12
    s_mov_b64 exec, 1
    buffer_store_dwordx4 v[28:31], v1, s[48:51], s14 offen sc1
    s_mov_b64 exec, -1
    """)
    tm_gather(2, KL + lagV, 4*KL, 4*f2/(KL - mk), KL)
    if agg:
        wait_row("L_stw", KL + 2)
        sfetch("L_poll_st", "s13", 0)
    else:
        a(f"v_mov_b32 v{TB}, 0")
        poll("L_poll_st", [f"buffer_load_dwordx4 v[16:19], v{TB}, s[48:51], s13 offen sc1"], tags_words([17, 19]), sleep=32)
    a(f"""
    v_max_f32 v17, v16, v28
    v_sub_f32 v16, v16, v17
    v_sub_f32 v28, v28, v17
    v_sub_f32 v24, v24, v17
    v_mul_f32 v16, {LOG2E}, v16
    v_mul_f32 v28, {LOG2E}, v28
    v_mul_f32 v24, {LOG2E}, v24
    v_exp_f32 v16, v16
    v_exp_f32 v28, v28
    v_exp_f32 v24, v24
    v_mul_f32 v16, v16, v18
    v_fmac_f32 v16, v28, v30
    v_rcp_f32 v16, v16
    v_mov_b32 v25, 1
    v_mul_f32 v24, v24, v16
    ds_write_b64 v{TA}, v[24:25] offset:{F_FAC}
    """)
    a("L_nofac:")
    def constants():
        a("s_cmp_lt_u32 s68, 4\ns_cbranch_scc1 L_nored2")
        wait_row("L_kd2", KL + 1)
        a("s_cmp_lg_u32 s68, 5\ns_cbranch_scc1 L_noffn2")
        ffn_cols(TA, TB)
        a(f"""
        v_lshlrev_b32 v{TA}, 8, v{TA}
        v_lshl_add_u32 v{TA}, v{TB}, 4, v{TA}
        s_lshl_b32 s12, s7, 6
        s_add_u32 s12, s12, {WS_MOD + 96*256}
        s_add_u32 s13, s12, 0x1000
        s_add_u32 s14, s12, 0x2000
        s_add_u32 s46, s12, 0x3000
        """)
        poll("L_poll_sb", [f"buffer_load_dwordx4 v[{16+4*i}:{19+4*i}], v{TA}, s[48:51], {sr} offen sc1" for i, sr in enumerate(["s12", "s13", "s14", "s46"])],
             tags_words([17 + 2*k for k in range(8)]), sleep=16)
        for k in range(4):
            a(f"v_mov_b32 v{SB[k]}, v{16+2*k}")
            unpack(32, 33, 24 + 2*k)
            a(f"v_add_f32 v32, 1.0, v32\nv_add_f32 v33, 1.0, v33\nv_cvt_pk_bf16_f32 v{TREG[k]}, v32, v33")
        a("L_noffn2:")
        srd(52, P_X, 4096)
        a(f"""
        v_bfe_u32 v{TA}, v0, 2, 2
        v_and_b32 v{TB}, 3, v0
        v_lshlrev_b32 v{TC}, 5, v{TA}
        v_lshl_add_u32 v{TC}, v{TB}, 1, v{TC}
        s_lshl_b32 s71, s69, 7
        s_lshl_b32 s12, s7, 3
        s_add_u32 s71, s71, s12
        buffer_load_ushort v{RX}, v{TC}, s[52:55], s71 offen
        v_lshlrev_b32 v{TA}, 8, v{TA}
        v_lshrrev_b32 v{TC}, 1, v{TB}
        v_lshl_add_u32 v{TA}, v{TC}, 3, v{TA}
        s_and_b32 s12, s69, 7
        s_lshl_b32 s12, s12, 10
        s_lshl_b32 s13, s7, 4
        s_add_u32 s12, s12, s13
        s_lshr_b32 s13, s69, 3
        s_lshl_b32 s13, s13, 6
        s_add_u32 s12, s12, s13
        s_add_u32 s13, s12, {WS_MOD + 160*256}
        s_add_u32 s12, s12, {WS_MOD + 64*256}
        """)
        poll("L_poll_ga", [f"buffer_load_dwordx2 v[16:17], v{TA}, s[48:51], s12 offen sc1", f"buffer_load_dwordx2 v[18:19], v{TA}, s[48:51], s13 offen sc1"],
             tags_words([17, 19]), sleep=16)
        a(f"v_and_b32 v{TB}, 1, v0\nv_cmp_eq_u32 vcc, 1, v{TB}")
        for k, r in enumerate([RGA, RGB]):
            unpack(24, 25, 16 + 2*k)
            a(f"v_cndmask_b32 v{r}, v24, v25, vcc")
        a(f"v_lshlrev_b32 v{RX}, 16, v{RX}")
        a(f"v_and_b32 v{TA}, 31, v0\nv_lshlrev_b32 v{TA}, 7, v{TA}\ns_mov_b32 s12, {WS_XCC}")
        poll("L_poll_xcc", [f"buffer_load_dwordx2 v[16:17], v{TA}, s[48:51], s12 offen sc1"], tags_words([17]), sleep=16)
        a(f"v_cmp_eq_u32 vcc, s62, v16\ns_cmp_eq_u64 vcc, exec\ns_cselect_b32 s44, {1 if fast else 0}, 0")
        a("L_nored2:")
    done_c = []
    def maybe_constants():
        if not pieces and not done_c:
            done_c.append(1); constants()
    prevp = 4 * KL
    def milestones(lst):
        nonlocal prevp
        for i, mv in lst:
            p_ = 4 * (KL + mv) + E // 4
            stage_upto(KL + mv + lag3 + FL); maybe_constants()
            tm_publish(3 + i, KL + mv)
            tm_gather(3 + i, KL + mv + lag3, p_, 16 * f3 / (p_ - prevp), KL + mv)
            prevp = p_
    MS = list(enumerate(ms))
    if touchp:
        wait_row("L_tchp", KL + touchp)
        a(f"""
        s_lshl_b32 s12, s15, 1
        s_add_u32 s12, s12, s6
        s_lshl_b32 s12, s12, 11
        s_lshl_b32 s13, s7, 9
        s_add_u32 s12, s12, s13
        s_add_u32 s12, s12, {WS_PART1}
        """)
        if stouch: sprefetch("L_spt", P_WS, "s12", 1, 512, 512)
        else: a("s_mov_b32 exec_hi, 0\nbuffer_load_dwordx4 v[24:27], v1, s[48:51], s12 offen sc1\ns_mov_b64 exec, -1\ns_waitcnt vmcnt(0)")
    milestones([x for x in MS if x[1] + lag3 + (flag_ if agg else 0) <= touch])
    stage_upto(99); maybe_constants()
    if touch:
        a("s_cmp_lt_u32 s68, 4\ns_cbranch_scc1 L_notouch")
        wait_row("L_tch", KL + touch)
        a(f"""
        v_lshrrev_b32 v{TA}, 2, v0
        v_and_b32 v{TB}, 3, v0
        v_lshlrev_b32 v{TC}, 13, v{TA}
        v_lshl_add_u32 v{TC}, v{TB}, 4, v{TC}
        v_lshlrev_b32 v{TA}, 11, v{TA}
        v_lshl_add_u32 v{TA}, v{TB}, 4, v{TA}
        s_lshl_b32 s12, s7, 11
        s_add_u32 s12, s12, {WS_X1}
        buffer_load_dwordx4 v[16:19], v1, s[48:51], s12 offen sc1
        buffer_load_dwordx4 v[20:23], v1, s[48:51], s12 offen offset:1024 sc1
        s_lshl_b32 s12, s69, 8
        s_lshl_b32 s13, s7, 6
        s_add_u32 s12, s12, s13
        s_add_u32 s12, s12, {WS_PART2}
        s_add_u32 s13, s12, 0x20000
        buffer_load_dwordx4 v[24:27], v{TC}, s[48:51], s12 offen sc1
        buffer_load_dwordx4 v[28:31], v{TC}, s[48:51], s13 offen sc1
        """)
        if otouch:
            srd(52, P_OUT, 4096)
            a("buffer_load_ushort v32, v0, s[52:55], s71 offen")
        if touch1:
            a(f"""
            s_and_b32 s12, s69, 7
            s_lshl_b32 s12, s12, 8
            s_lshl_b32 s13, s7, 6
            s_add_u32 s12, s12, s13
            s_lshr_b32 s13, s69, 3
            s_lshl_b32 s13, s13, 17
            s_add_u32 s12, s12, s13
            s_add_u32 s12, s12, {WS_PART1}
            """)
            for i in range(4):
                a(f"buffer_load_dwordx4 v[{32+4*i}:{35+4*i}], v{TA}, s[48:51], s12 offen sc1\ns_add_u32 s12, s12, 0x8000")
        a("s_waitcnt vmcnt(0)\nL_notouch:")
    milestones([x for x in MS if x[1] + lag3 + (flag_ if agg else 0) > touch])
    AF, DD = 16, 32
    bn = {"n": 0}
    def barrier():
        if not dry: a("s_barrier"); return
        bn["n"] += 1
        a(f"s_cmp_eq_u32 s0, 1\ns_cbranch_scc1 L_nb{bn['n']}\ns_barrier\nL_nb{bn['n']}:")
    a(f"""
    L_tail0:
    s_mov_b64 exec, -1
    s_waitcnt vmcnt(0) lgkmcnt(0)
    v_bfe_u32 v{TB}, v0, 1, 2
    v_mul_u32_u24 v{TB}, {OP_STRIDE}, v{TB}
    v_lshrrev_b32 v{TA}, 4, v0
    v_lshl_add_u32 v{TB}, v{TA}, 4, v{TB}
    v_and_b32 v{TA}, 1, v0
    v_lshl_add_u32 v{TB}, v{TA}, 7, v{TB}
    v_add_u32 v{TB}, {L_OP}, v{TB}
    v_mul_u32_u24 v{TA}, 0xaaaa, v{TA}
    v_add_u32 v{TA}, 0x4444, v{TA}
    s_lshl_b32 s12, s15, 1
    s_add_u32 s12, s12, s6
    s_lshl_b32 s12, s12, 11
    s_lshl_b32 s13, s7, 9
    s_add_u32 s12, s12, s13
    s_add_u32 s12, s12, {WS_PART1}
    s_and_b32 s18, {TAG}, 0xff
    s_bfe_u32 s19, {TAG}, 0x80008
    s_bfe_u32 s20, {TAG}, 0x80010
    s_lshr_b32 s21, {TAG}, 24
    v_mov_b32 v{TC}, 0xffffff00
    """)
    for i in range(32): a(f"v_mov_b32 v{DD+i}, 0")
    P1V = 28
    a(f"""
    v_lshrrev_b32 v{P1V}, 2, v0
    v_and_b32 v{P1V+1}, 3, v0
    v_lshlrev_b32 v{P1V}, 11, v{P1V}
    v_lshl_add_u32 v{P1V}, v{P1V+1}, 4, v{P1V}
    s_and_b32 s26, s69, 7
    s_lshl_b32 s26, s26, 8
    s_lshl_b32 s13, s7, 6
    s_add_u32 s26, s26, s13
    s_lshr_b32 s13, s69, 3
    s_lshl_b32 s14, s13, 11
    s_add_u32 s22, s26, s14
    s_lshl_b32 s13, s13, 17
    s_add_u32 s26, s26, s13
    s_add_u32 s26, s26, {WS_PART1}
    s_add_u32 s27, s26, 0x8000
    s_add_u32 s14, s26, 0x10000
    s_add_u32 s67, s26, 0x18000
    s_add_u32 s23, s22, {WS_X1}
    """)
    P1S = ["s26", "s27", "s14", "s67"]
    if p1q:
        a(f"""
        s_bfe_u32 s26, s69, 0x20001
        s_lshl_b32 s26, s26, 9
        s_and_b32 s27, s69, 1
        s_lshl_b32 s27, s27, 6
        s_add_u32 s26, s26, s27
        s_lshl_b32 s27, s7, 15
        s_add_u32 s26, s26, s27
        s_add_u32 s26, s26, s13
        s_add_u32 s26, s26, {WS_PART1}
        """)
        P1S = ["s26"]
    stamp(8)
    barrier()
    if dbg: a("s_memrealtime s[96:97]")
    stamp(9)
    for s in range(2): a(f"ds_read_b128 v[{AF+4*s}:{AF+4*s+3}], v{TB} offset:{64*s}")
    a("s_waitcnt lgkmcnt(0)")
    def smf(d, af, b, ix): a(f"v_smfmac_f32_16x16x64_bf16 v[{d}:{d+3}], v[{af}:{af+3}], v[{b}:{b+7}], v{ix}")
    order = [0, 4, 1, 5, 2, 6, 3, 7]
    OQ = 24
    work = []
    def fin(t):
        d = DD + 4*t
        w_ = [f"v_pk_add_f32 v[{d}:{d+1}], v[{d}:{d+1}], v[{d+2}:{d+3}]", f"v_add_f32 v{d}, v{d}, v{d+1}"]
        return w_
    def fin2(k):
        x, y = DD + 4*k, DD + 4*(k+4)
        return [f"v_permlane16_swap_b32 v{x}, v{y}", f"v_add_f32 v{OQ+k}, v{x}, v{y}", f"v_and_or_b32 v{OQ+k}, v{OQ+k}, v{TC}, s{18+k}"]
    for i, t in enumerate(order):
        if i >= 3: work += fin(order[i-3])
        if i >= 5 and (i - 5) % 2 == 0: work += fin2((i - 5) // 2)
        for sx in range(2):
            smf(DD + 4*t, AF + 4*sx, 64 + (t*4 + 2*sx)*4, TA)
            for _ in range(2):
                if work: a(work.pop(0))
    work += fin(order[5]) + fin(order[6]) + fin2(2) + fin(order[7]) + fin2(3)
    for w_ in work: a(w_)
    if p1q: a("s_mov_b32 exec_lo, 0xff")
    a(f"s_mov_b32 exec_hi, 0\nbuffer_store_dwordx4 v[{OQ}:{OQ+3}], v1, s[48:51], s12 offen sc1\ns_mov_b64 exec, -1")
    stamp(10)
    a("s_cmp_lt_u32 s68, 4\ns_cbranch_scc1 L_hend")
    if p1first:
        stamp(4)
        for i, sr in enumerate(P1S): a(f"buffer_load_dwordx4 v[{32+4*i}:{35+4*i}], v{P1V}, s[48:51], {sr} offen sc1")
    a("s_cmp_lg_u32 s68, 5\ns_cbranch_scc1 L_noffn3")
    SC8, SH8 = 48, 56
    HW_, HF_, GF_, GW_, PO_, MS_ = 10, 11, 12, 13, 4, 5
    mid_bases()
    tr_mid(64, 0)
    tr_mid(128, 0x4000)
    for k in range(4): unpack(SC8 + 2*k, SC8 + 2*k + 1, TREG[k])
    for k in range(4): unpack(SH8 + 2*k, SH8 + 2*k + 1, SB[k])
    IX_ = 6
    act_addr(HF_, "hi", TB)
    ffn_cols(TA, TB)
    a(f"""
    v_lshlrev_b32 v{HW_}, 4, v{TA}
    v_lshl_add_u32 v{HW_}, v{TB}, 2, v{HW_}
    s_mul_i32 s13, s7, {ACT_STRIDE}
    s_add_u32 s13, s13, {L_ACT}
    v_add_u32 v{HW_}, s13, v{HW_}
    v_mul_u32_u24 v{GF_}, {GB_STRIDE}, v{TB}
    v_lshlrev_b32 v{GW_}, 2, v{TB}
    v_and_b32 v{IX_}, 1, v0
    v_lshl_add_u32 v{HF_}, v{IX_}, 9, v{HF_}
    v_lshl_add_u32 v{GF_}, v{IX_}, 6, v{GF_}
    v_lshl_add_u32 v{GW_}, v{IX_}, 1, v{GW_}
    v_mul_u32_u24 v{IX_}, 0xaaaa, v{IX_}
    v_add_u32 v{IX_}, 0x4444, v{IX_}
    v_bfe_u32 v{TB}, v0, 1, 1
    v_lshl_add_u32 v{GW_}, v{TB}, 6, v{GW_}
    v_lshrrev_b32 v{TB}, 4, v0
    v_lshl_add_u32 v{GF_}, v{TB}, 4, v{GF_}
    v_add_u32 v{GF_}, {L_GB}, v{GF_}
    v_mul_u32_u24 v{TA}, {GB_STRIDE}, v{TB}
    s_lshl_b32 s13, s7, 4
    s_add_u32 s13, s13, {L_GB}
    v_add3_u32 v{GW_}, v{GW_}, v{TA}, s13
    v_and_b32 v{TA}, 15, v0
    v_lshlrev_b32 v{TB}, 11, v{TB}
    v_lshl_add_u32 v{PO_}, v{TA}, 4, v{TB}
    v_mov_b32 v{MS_}, 0xffffff00
    """)
    a("L_noffn3:")
    a(f"""
    v_lshrrev_b32 v{TC}, 2, v0
    v_and_b32 v{TB}, 3, v0
    v_lshlrev_b32 v{TC}, 13, v{TC}
    v_lshl_add_u32 v{TC}, v{TB}, 4, v{TC}
    v_lshlrev_b32 v{TB}, 2, v0
    v_mov_b32 v{TA}, v{P1V}
    """)
    if pwait: a(f"s_sleep {pwait}")
    if not p1first: stamp(4)
    spin_begin()
    if p1first: a("s_branch L_poll_p1w")
    a("L_poll_p1:")
    spin_check()
    for i, sr in enumerate(P1S): a(f"buffer_load_dwordx4 v[{32+4*i}:{35+4*i}], v{TA}, s[48:51], {sr} offen sc1")
    a("L_poll_p1w:")
    tags_bytes(len(P1S), 44 if p1q else 32)()
    a("s_cmp_eq_u64 vcc, exec\ns_cbranch_scc0 L_poll_p1")
    stamp(11)
    if diag: a("s_mov_b32 s82, s70")
    def colsum(n):
        st_ = 1
        while st_ < n:
            for i in range(0, n, 2*st_):
                for k in (0, 2): pk("add", 16+4*i+k, 16+4*i+k, 16+4*(i+st_)+k)
            st_ *= 2
        a("""
        v_add_f32_dpp v20, v16, v16 row_ror:8 row_mask:0xf bank_mask:0x3
        v_add_f32_dpp v21, v17, v17 row_ror:8 row_mask:0xf bank_mask:0x3
        v_add_f32_dpp v20, v18, v18 row_ror:8 row_mask:0xf bank_mask:0xc
        v_add_f32_dpp v21, v19, v19 row_ror:8 row_mask:0xf bank_mask:0xc
        v_add_f32_dpp v16, v20, v20 row_shl:4 row_mask:0xf bank_mask:0x5
        v_add_f32_dpp v16, v21, v21 row_shr:4 row_mask:0xf bank_mask:0xa
        """)
        allreduce("v_add_f32", [16], [17], steps=())
    def resid(gate):
        bf16r(16, 16)
        a(f"v_mul_f32 v16, v16, v{gate}")
        bf16r(16, 16)
        a(f"v_add_f32 v16, v16, v{RX}")
    colsum(4)
    resid(RGA)
    a(f"""
    v_mov_b32 v41, {TAG}
    v_mov_b32 v43, {TAG}
    v_mov_b32_dpp v17, v16 quad_perm:[1,1,1,1] {FULL}
    v_mov_b32_dpp v18, v16 quad_perm:[2,2,2,2] {FULL}
    v_mov_b32_dpp v19, v16 quad_perm:[3,3,3,3] {FULL}
    v_cvt_pk_bf16_f32 v40, v16, v17
    v_cvt_pk_bf16_f32 v42, v18, v19
    s_mov_b64 exec, 0x1111
    """)
    def hstore(lbl, stores):
        a(f"s_cmp_eq_u32 s44, 1\ns_cbranch_scc0 {lbl}_s")
        for st_ in stores: a(f"{st_} {fpol}")
        a(f"s_branch {lbl}_e\n{lbl}_s:")
        for st_ in stores: a(f"{st_} sc1")
        a(f"{lbl}_e:")
    hstore("L_sx1", [f"buffer_store_dwordx4 v[40:43], v{TB}, s[48:51], s23 offen"])
    a("s_mov_b64 exec, -1")
    stamp(12)
    bf16r(RX, 16)
    a("s_cmp_lg_u32 s68, 5\ns_cbranch_scc1 L_red2")
    a(f"""
    s_lshl_b32 s12, s7, 11
    s_add_u32 s12, s12, {WS_X1}
    s_lshl_b32 s13, s69, 13
    s_lshl_b32 s14, s7, 9
    s_add_u32 s13, s13, s14
    s_add_u32 s23, s13, {WS_PART2}
    """)
    poll("L_poll_x1", ["buffer_load_dwordx4 v[16:19], v1, s[48:51], s12 offen sc1", "buffer_load_dwordx4 v[20:23], v1, s[48:51], s12 offen offset:1024 sc1"],
         tags_xor([17, 19, 21, 23], 24))
    stamp(1)
    X2, S2 = 24, 32
    for k in range(4): unpack(X2 + 2*k, X2 + 2*k + 1, 16 + 2*k)
    ln_norm(X2, S2)
    ln_affine(X2, SC8, SH8, 16)
    G, U, GT = 56, 60, 14
    a(f"ds_write2_b32 v{HW_}, v16, v17 offset0:0 offset1:128\nds_write2_b32 v{HW_}, v18, v19 offset0:64 offset1:192")
    for i in range(8): a(f"v_mov_b32 v{G+i}, 0")
    a("s_waitcnt lgkmcnt(0)")
    barrier()
    for k in range(8): a(f"ds_read_b128 v[{16+4*k}:{19+4*k}], v{HF_} offset:{k*64}")
    for k in range(8):
        a(f"s_waitcnt lgkmcnt({7-k})")
        smf(G, 16 + 4*k, 64 + 8*k, IX_)
    DZ = 64
    gelu = [f"v_add_f32 v{G}, v{G}, v{G+1}", f"v_cvt_pk_bf16_f32 v{G}, 0, v{G}", f"v_mul_f32 v{GT}, v{G}, v{G}", f"v_mul_f32 v{GT}, 0x3d372713, v{GT}",
            f"v_fma_f32 v{GT}, v{GT}, v{G}, v{G}", f"v_mul_f32 v{GT}, 0x40135761, v{GT}", f"v_exp_f32 v{GT}, -v{GT}",
            f"v_add_f32 v{GT}, 1.0, v{GT}", f"v_rcp_f32 v{GT}, v{GT}", f"v_mul_f32 v{GT}, v{GT}, v{G}", f"v_cvt_pk_bf16_f32 v{GT}, 0, v{GT}"]
    zero = [f"v_mov_b32 v{DZ+4*t+r}, 0" for t in range(8) for r in range(2)]
    for k in range(8):
        smf(U, 16 + 4*k, 128 + 8*k, IX_)
        if k < 3:
            for _ in range(2): a(zero.pop(0))
        else:
            a(gelu.pop(0)); a(gelu.pop(0))
    while gelu: a(gelu.pop(0))
    a(f"v_add_f32 v{U}, v{U}, v{U+1}")
    bf16r(U, U)
    a(f"""
    v_mul_f32 v{GT}, v{GT}, v{U}
    v_cvt_pk_bf16_f32 v{GT}, v{GT}, v{GT}
    ds_write_b16 v{GW_}, v{GT}
    """)
    while zero: a(zero.pop(0))
    if epearly:
        a(f"""
        s_or_b32 s12, s2, s7
        s_cbranch_scc1 L_noep
        s_mov_b64 exec, 1
        v_mov_b32 v17, {TAG}
        buffer_store_dword v17, v1, s[48:51], 0 offen sc1
        s_mov_b64 exec, -1
        L_noep:
        """)
    a("s_waitcnt lgkmcnt(0)")
    barrier()
    a(f"""
    ds_read_b128 v[{AF}:{AF+3}], v{GF_}
    s_waitcnt lgkmcnt(0)
    """)
    assert not zero
    fw = []
    for t in range(8):
        smf(DZ + 4*t, AF, 192 + 8*t, IX_)
        if t >= 4:
            tt = t - 4
            a(f"v_add_f32 v{24+tt}, v{DZ+4*tt}, v{DZ+4*tt+1}")
            a(f"v_and_or_b32 v{24+tt}, v{24+tt}, v{MS_}, s{18+(tt&3)}")
    for tt in range(4, 8):
        a(f"v_add_f32 v{24+tt}, v{DZ+4*tt}, v{DZ+4*tt+1}")
        a(f"v_and_or_b32 v{24+tt}, v{24+tt}, v{MS_}, s{18+(tt&3)}")
    hstore("L_sp2", [f"buffer_store_dwordx4 v[{24+4*g}:{27+4*g}], v{PO_}, s[48:51], s23 offen offset:{256*g}" for g in range(2)])
    stamp(2)
    a("L_red2:")
    a(f"""
    s_add_u32 s12, s22, {WS_PART2}
    s_add_u32 s13, s12, 0x20000
    v_mov_b32 v36, s18
    v_mov_b32 v37, s19
    v_mov_b32 v38, s20
    v_mov_b32 v39, s21
    v_bfe_u32 v{TA}, v0, 2, 2
    v_and_b32 v{TB}, 3, v0
    v_lshlrev_b32 v{TA}, 5, v{TA}
    v_lshl_add_u32 v{TA}, v{TB}, 1, v{TA}
    """)
    srd(52, P_OUT, 4096)
    if dry: a("s_cmp_eq_u32 s0, 1\ns_cselect_b32 s54, 0, s54")
    poll("L_poll_p2", [f"buffer_load_dwordx4 v[32:35], v{TC}, s[48:51], s12 offen sc1", "s_mov_b32 exec_hi, 0xffff",
                       f"buffer_load_dwordx4 v[36:39], v{TC}, s[48:51], s13 offen sc1"],
         tags_bytes(2, 44), post="s_mov_b64 exec, -1")
    stamp(13)
    colsum(2)
    resid(RGB)
    a(f"""
    v_cvt_pk_bf16_f32 v16, v16, v16
    s_mov_b64 exec, 0xffff
    buffer_store_short v16, v{TA}, s[52:55], s71 offen {opol}
    """)
    if not epearly or dbg or pad:
        a(f"""
        s_or_b32 s12, s2, s7
        s_cbranch_scc1 L_hend
        s_mov_b64 exec, 1
        v_mov_b32 v17, {TAG}
        v_mov_b32 v18, 0
        buffer_store_dword v17, v18, s[48:51], 0 offen sc1
        """)
    if dbg:
        a("s_cmp_eq_u32 s0, 1\ns_cbranch_scc1 L_hend\ns_memrealtime s[94:95]\ns_waitcnt lgkmcnt(0)\ns_sub_u32 s94, s94, s60\ns_sub_u32 s96, s96, s60\ns_sub_u32 s98, s98, s60")
        srd(8, 40, 256)
        for i, r in enumerate([98, 91, 92, 93, 96, 94]):
            a(f"v_mov_b32 v17, s{r}\nbuffer_store_dword v17, v18, s[8:11], 0 offen offset:{4*i}")
    if pad:
        a(f"s_cmp_eq_u32 s0, 1\ns_cbranch_scc1 L_hend\nL_pad:\ns_memrealtime s[94:95]\ns_waitcnt lgkmcnt(0)\ns_sub_u32 s94, s94, s60\ns_cmp_lt_u32 s94, {pad}\ns_cbranch_scc1 L_pad")
    a("L_hend:")
    if dry: a("s_cmp_eq_u32 s0, 1\ns_cbranch_scc0 L_fin\ns_cmp_ge_u32 s68, 4\ns_cbranch_scc1 L_afterdry1\ns_branch L_afterdry2\nL_fin:")
    stamp(14)
    if diag:
        a(f"""
        s_mov_b64 exec, -1
        v_lshlrev_b32 v1, 4, v0
        v_add_u32 v20, {L_FL+F_TT}, v1
        s_mov_b32 exec_hi, 0
        ds_read_b128 v[16:19], v20
        s_lshl_b32 s12, s2, 9
        s_add_u32 s12, s12, {WS_DBG + 0x40000}
        s_waitcnt lgkmcnt(0)
        buffer_store_dwordx4 v[16:19], v1, s[48:51], s12 offen
        """)
    dump_stamps(15)
    a("L_end:")
    a("s_endpgm")
    a('.section .rodata,"a"')
    a(".p2align 6")
    a(f".amdhsa_kernel {NAME}_kernel")
    a("""
    .amdhsa_next_free_vgpr 256
    .amdhsa_next_free_sgpr 102
    .amdhsa_accum_offset 256
    .amdhsa_group_segment_fixed_size 0
    .amdhsa_kernarg_size 112
    .amdhsa_user_sgpr_count 2
    .amdhsa_user_sgpr_kernarg_segment_ptr 1
    .amdhsa_system_sgpr_workgroup_id_x 1
    .amdhsa_float_denorm_mode_32 3
    .end_amdhsa_kernel
    """)
    return out + a.text()

if __name__ == "__main__":
    kw = eval("dict(" + (sys.argv[2] if len(sys.argv) > 2 else "") + ")")
    open(sys.argv[1], "w").write(gen(**kw))
```

```python
import sys
from asmlib import Asm

NAME = "adaLN_cond__mha_block_cached__geglu_ffn__decode"
WS_MOD = 0x1000
WS_Q = 0x10000
WS_STATS = 0x20000
WS_X1 = 0x28000
WS_PART2 = 0x40000
WS_PART1 = 0x80000
WS_FAST = 0
WS_XCC = 0x30000
WS_LINE = 0x34000
AGG = 255
WS_TM, TMSTR = 0x280000, 4352
WS_DBG, WS_SIZE = 0x200000, 0x400000
L_W, L_ACT, L_Q, L_OP, L_GB, L_FL = 0, 0x20000, 0x21200, 0x21400, 0x21A00, 0x21E00
ACT_STRIDE, OP_STRIDE, GB_STRIDE = 1088, 320, 192
LDS_BYTES = 0x22200
F_FAC, F_KD, F_WF, F_WQ, F_WQD, F_H, F_G1, F_G2, F_ST, F_TT = 0, 64, 80, 96, 112, 128, 144, 160, 192, 256
NFFN = 28
SPIN_MAX = 1 << 20
P_X, P_K, P_V, P_WQ, P_WO, P_WG, P_WU, P_WD, P_C, P_WM, P_OUT, P_WS = 16, 18, 20, 22, 24, 28, 30, 32, 34, 36, 38, 42
TAG = "s45"
LOG2E, SCALE, HIMASK = "s64", "s65", "s66"


DOC = """;
;    The two workgroups of a head take alternate 32 KB blocks, so they work in the same DRAM pages.
;    the partner workgroup, output projection, and (workgroups with id % 8 == 0) reduction, LayerNorm, GEGLU FFN.
;  * load balance: every streamer compares its progress with a pace line averaged over a sample of workgroups
;    and picks how many loads it keeps in flight for the next 16 KB (4..8), so that all CUs finish together.
;  * sleeps appear only as back-off inside polling loops; every polling loop is bounded.
"""

def gen(D=5, A=8, E=4, P=48, PL=32, DP=6, D2=7, NE=1, thr=2, thrA=16, thrF=2, late1=False, hk=5, upk=None, up2=1.03, thrQ=4, thrD=3, slp=32, diag=False,
        levels=((4,-70),(4.5,-25),(5,45),(6,140),(8,None)), f1=0.13, f2=0.985, f3=0.99, ms=(3, 7, 11), lagK=2, lagV=1, lag3=1, early=30, D0=None, N0=0, gq=60, gm=24,
        kctl=True, fast=True, fpol='', touch=10, touch1=False, touchp=0, pwait=0, contig=False, mk=5, fk=1.01, nb0=8, mpoll=False, trlate=False, ilv=0, perm='w0 w1 t2 h t3', perm7=None, front=1, frontf=True, frontT=0, sparse=0, wst=True, wstp='sc1', diag3=False, l2early=0, delay=None, pe=0, esh=1, eoff=0, spol='', fnb=4, stouch=False, j2=True, frontw=True, diag2=False, fa_at=13, wpol='nt', noround=0, endat=99, endD=7, endbias=0, fin=7, epearly=True, opol='', otouch=False, p1first=False, p1q=False, wsh=0, psw=80, rotw=None, rotm=None, pf='', pfthr=16, xp=0, xb=None, sym=False, agg=True, aslp=24, alag=1, flag_=1, J=140, up=1.03, eth=45, boost=0.92, ek=0.0006, e0=10, fsplit=(3, 7), spf='w', sgran=128, tsh=1, nojT=True, dry=True, lastctl=True, tlb=True, dbg=False, pad=0, l2warm=True, skip=''):
    a = Asm()
    if front:
        thrQ, thrD, nb0, D0, N0 = 16, 16, fnb, None, 0
    def stamp(k):
        if diag: a(f"s_memrealtime s[{72+2*k}:{73+2*k}]")
    def srd(reg, ptr, nbytes):
        a(f"s_mov_b32 s{reg}, s{ptr}\ns_mov_b32 s{reg+1}, s{ptr+1}\ns_mov_b32 s{reg+2}, {nbytes}\ns_mov_b32 s{reg+3}, 0x20000")
    def dump_stamps(n):
        if not diag: return
        a("s_waitcnt lgkmcnt(0)")
        a("s_mov_b64 exec, 1")
        a("s_lshl_b32 s46, s2, 3\ns_add_u32 s46, s46, s3\ns_lshl_b32 s46, s46, 6")
        a(f"s_add_u32 s46, s46, {WS_DBG}")
        a("v_mov_b32 v1, 0")
        for k in range(n):
            a(f"v_mov_b32 v2, s{72+2*k}")
            a(f"buffer_store_dword v2, v1, s[48:51], s46 offen offset:{4*k}")
    FULL = "row_mask:0xf bank_mask:0xf"
    def allreduce(op, rs, tmps, rows_only=False, steps=("quad_perm:[1,0,3,2]", "quad_perm:[2,3,0,1]", "row_half_mirror", "row_mirror")):
        for st in steps:
            for r in rs: a(f"{op}_dpp v{r}, v{r}, v{r} {st} {FULL}")
        if rows_only: return
        for sw in ("v_permlane16_swap_b32", "v_permlane32_swap_b32"):
            for r, t in zip(rs, tmps): a(f"v_mov_b32 v{t}, v{r}")
            for r, t in zip(rs, tmps): a(f"{sw} v{r}, v{t}")
            for r, t in zip(rs, tmps): a(f"{op} v{r}, v{r}, v{t}")
    def bf16r(d, s):
        a(f"v_cvt_pk_bf16_f32 v{d}, 0, v{s}")
    def bf16r2(lo, hi, t):
        a(f"v_cvt_pk_bf16_f32 v{t}, v{lo}, v{hi}\nv_lshlrev_b32 v{lo}, 16, v{t}\nv_and_b32 v{hi}, {HIMASK}, v{t}")
    def unpack(lo, hi, s):
        a(f"v_lshlrev_b32 v{lo}, 16, v{s}\nv_and_b32 v{hi}, {HIMASK}, v{s}")
    def spin_begin(): a("s_mov_b32 s70, 0")
    def spin_check(): a(f"s_add_u32 s70, s70, 1\ns_cmp_gt_u32 s70, {SPIN_MAX}\ns_cbranch_scc1 L_end")
    MKTAG = "s_mul_i32 s45, s44, 1664525\ns_add_u32 s45, s45, 1013904223"
    BAR0 = "s_load_dword s44, s[42:43], 0\ns_barrier"
    def set_flag(row, widx, va, vb):
        a(f"s_lshl_b32 s47, {widx}, 2\ns_add_u32 s47, s47, {L_FL+row}\nv_mov_b32 v{va}, s47\nv_mov_b32 v{vb}, 1\nds_write_b32 v{va}, v{vb}")
    def wait_flags(lbl, row, t, sleep):
        spin_begin()
        a(f"v_mov_b32 v{t+4}, {L_FL+row}")
        a(f"{lbl}:")
        spin_check()
        if sleep: a(f"s_sleep {sleep}")
        a(f"""
        ds_read_b128 v[{t}:{t+3}], v{t+4}
        s_waitcnt lgkmcnt(0)
        v_and_b32 v{t}, v{t}, v{t+1}
        v_and_b32 v{t+2}, v{t+2}, v{t+3}
        v_and_b32 v{t}, v{t}, v{t+2}
        v_readfirstlane_b32 s47, v{t}
        s_cmp_eq_u32 s47, 1
        s_cbranch_scc0 {lbl}
        """)

    hdr = open("cdna_kernels/" + NAME + ".s.ref").read().split("; Override launch")[0]
    out = hdr + f"; @launch grid=(256,1,1) block=(512,1,1) lds={LDS_BYTES}\n" + DOC
    a('.amdgcn_target "amdgcn-amd-amdhsa--gfx950"')
    a(".text")
    a(f".globl {NAME}_kernel")
    a(".p2align 8")
    a(f".type {NAME}_kernel,@function")
    a(f"{NAME}_kernel:")
    a("""
    s_cmp_ge_u32 s2, 256
    s_cbranch_scc1 L_end
    s_load_dwordx16 s[16:31], s[0:1], 0
    s_load_dwordx8 s[32:39], s[0:1], 64
    s_load_dwordx4 s[40:43], s[0:1], 96
    """)
    if diag:
        for k in range(1, 15): a(f"s_mov_b32 s{72+2*k}, 0")
    stamp(0)
    a("""
    v_lshrrev_b32 v1, 6, v0
    v_and_b32 v0, 63, v0
    v_readfirstlane_b32 s3, v1
    v_lshlrev_b32 v1, 4, v0
    s_lshr_b32 s12, s2, 3
    s_and_b32 s4, s12, 3
    s_lshl_b32 s4, s4, 3
    s_and_b32 s13, s2, 7
    s_add_u32 s4, s4, s13
    s_bfe_u32 s5, s12, 0x20002
    s_lshr_b32 s6, s12, 4
    s_mov_b32 s64, 0x3fb8aa3b
    s_mov_b32 s65, 0x3db504f3
    s_mov_b32 s66, 0xffff0000
    s_lshl_b32 s15, s5, 5
    s_add_u32 s15, s15, s4
    """)
    if delay:
        msk, val, wmask, n_ = delay
        a(f"s_and_b32 s12, s2, {msk}\ns_cmp_lg_u32 s12, {val}\ns_cbranch_scc1 L_nodelay\ns_lshr_b32 s12, {wmask}, s3\ns_and_b32 s12, s12, 1\ns_cbranch_scc0 L_nodelay")
        for _ in range(n_): a("s_sleep 127")
        a("L_nodelay:")
    a("""
    s_cmp_ge_u32 s3, 4
    s_cbranch_scc1 L_helper
    """)

    PB = {sym: 12 + i for i, sym in enumerate(perm.split())} if perm else {'w0': 12, 'w1': 13, 't2': 14, 't3': 15, 'h': 20}
    if perm7: PB = {sym: 10 + i for i, sym in enumerate(perm7.split())}
    def noff(n): return sum(((n >> k) & 1) << PB[f"t{k}"] for k in range(4)) + ((n >> 4) << 17)
    def goff(g): return ((g & 1) << PB['t2']) + (((g >> 1) & 1) << PB['t3']) + ((g >> 2) << ((17 + xp) if perm else 16))
    Q, MK, BB, ACC, PT, XX, YY, T0, T1, SC, RING = 2, 6, 10, 14, 18, 34, 42, 46, 47, 48, 64
    if xb is not None:
        xp = 1
        a(f"""
        s_andn2_b32 s13, s15, {1 << xb}
        s_lshl_b32 s13, s13, 21
        s_bfe_u32 s14, s15, {0x10000 + xb}
        s_lshl_b32 s14, s14, 17
        s_add_u32 s13, s13, s14
        s_mov_b32 s44, 0
        """)
    elif xp:
        a(f"""
        s_lshr_b32 s13, s5, {xp}
        s_lshl_b32 s13, s13, 5
        s_add_u32 s13, s13, s4
        s_lshl_b32 s13, s13, {21 + xp}
        s_and_b32 s14, s5, {(1 << xp) - 1}
        s_lshl_b32 s14, s14, 17
        s_add_u32 s13, s13, s14
        """)
    else: a("s_lshl_b32 s13, s15, 21")
    a(f"""
    s_lshl_b32 s14, s6, {PB['h']}
    s_add_u32 s13, s13, s14
    s_and_b32 s14, s3, 1
    s_lshl_b32 s14, s14, {PB['w0']}
    s_add_u32 s13, s13, s14
    s_lshr_b32 s14, s3, 1
    s_lshl_b32 s14, s14, {PB['w1']}
    s_add_u32 s13, s13, s14
    s_mov_b32 s12, s13
    s_lshl_b32 s14, s3, 15
    s_waitcnt lgkmcnt(0)
    s_mov_b32 s0, 0
    """)
    if diag2: stamp(1)
    srd(8, P_K, 0x10000000)
    st = {"issued": 0, "landed": 0}
    PT_ = P + PL
    assert P % 4 == 0 and PL <= 32
    def ldsoff(n): return ((n - P + 16) % 32) * 1024
    def slot(n):
        if n < P: return RING + 4 * n
        if n < PT_: return RING + 4 * (16 + n - P)
        return RING + 4 * ((n - PT_) % 16)
    def issue(n):
        imm = 0 if perm7 else (n & 3) * 1024
        if P <= n < PT_:
            if n & 3 == 0 or perm7: a(f"s_add_u32 m0, s14, {ldsoff(n)}")
            a(f"buffer_load_dwordx4 v1, s[8:11], s12 offen offset:{imm} nt lds")
        else:
            r = slot(n)
            a(f"buffer_load_dwordx4 v[{r}:{r+3}], v1, s[8:11], s12 offen offset:{imm} nt")
        if perm7: a(f"s_add_u32 s12, s12, {(noff(n + 1) - noff(n)) & 0xffffffff}")
        elif n & 3 == 3: a(f"s_add_u32 s12, s12, {(goff((n >> 2) + 1) - goff(n >> 2)) & 0xffffffff}")
        if xb is not None and n & 15 == 15:
            a(f"s_add_u32 s44, s44, 1\ns_and_b32 s45, s44, 7\ns_cselect_b32 s45, 0, {((1 << (21 + xb)) - (1 << 21))}\ns_add_u32 s12, s12, s45")
        st["issued"] = n + 1
    def throttle(d=None):
        d = d or D
        a(f"s_waitcnt vmcnt({d-1})")
        st["landed"] = max(st["landed"], st["issued"] - (d - 1))
    def ensure(n):
        if n >= st["landed"]:
            k = st["issued"] - 1 - n
            a(f"s_waitcnt vmcnt({k})"); st["landed"] = n + 1
    for n in range(PT_):
        if n == P + 16: wait_flags("L_wqd", F_WQD, PT, 0)
        dd_ = D0 if (D0 and n < N0) else DP
        if n >= dd_: throttle(dd_)
        if diag2 and n == dd_: stamp(2)
        if diag2 and n == 2*dd_: stamp(3)
        if diag2 and n == 20: stamp(5)
        issue(n)
        if n == min(max(DP, D0 or 0) - 1, nb0):
            srd(48, P_WS, WS_SIZE)
            a(f"""
            s_mov_b32 s60, 0xaaaaaaaa
            s_mov_b32 s61, 0xaaaaaaaa
            s_mov_b32 s62, 0xcccccccc
            s_mov_b32 s63, 0xcccccccc
            v_and_b32 v{T0}, 15, v0
            v_and_b32 v{T1}, 1, v0
            v_lshlrev_b32 v{T1}, 4, v{T1}
            v_mov_b32 v{PT}, 0xffff
            v_lshlrev_b32 v{T1}, v{T1}, v{PT}
            v_lshrrev_b32 v{PT}, 1, v{T0}
            """)
            for t in range(4):
                a(f"v_cmp_eq_u32 vcc, {t}, v{PT}\nv_cndmask_b32 v{MK+t}, 0, v{T1}, vcc")
            for t in range(4): a(f"v_mov_b32 v{ACC+t}, 0")
            a(f"v_lshlrev_b32 v{T0}, 4, v{T0}\nv_add_u32 v{T0}, {L_Q}, v{T0}")
        if n == nb0: a("s_barrier")
        if n == gm: set_flag(F_G1, "s3", PT, PT+1)
        if n == gq: set_flag(F_G2, "s3", PT, PT+1)
    if not diag2: stamp(1)
    a("s_barrier")
    if not diag2: stamp(2)
    a(f"ds_read_b128 v[{Q}:{Q+3}], v{T0}\nv_add_u32 v{T0}, s14, v1\ns_waitcnt lgkmcnt(0)")
    def kdots(n):
        r = slot(n); p = PT + n % 16
        a(f"v_dot2_f32_bf16 v{p}, v{r}, v{Q}, 0")
        for i in range(1, 4): a(f"v_dot2_f32_bf16 v{p}, v{r+i}, v{Q+i}, v{p}")
    def kreduce(dst):
        for j in range(8): a(f"v_add_f32_dpp v{XX+j}, v{PT+j}, v{PT+j} row_ror:8 row_mask:0xf bank_mask:0x3")
        for j in range(8): a(f"v_add_f32_dpp v{XX+j}, v{PT+8+j}, v{PT+8+j} row_ror:8 row_mask:0xf bank_mask:0xc")
        for j in range(4): a(f"v_add_f32_dpp v{YY+j}, v{XX+j}, v{XX+j} row_half_mirror row_mask:0xf bank_mask:0x5")
        for j in range(4): a(f"v_add_f32_dpp v{YY+j}, v{XX+4+j}, v{XX+4+j} row_half_mirror row_mask:0xf bank_mask:0xa")
        for j in range(2):
            a(f"v_cndmask_b32 v{XX+2*j}, v{YY+j+2}, v{YY+j}, s[62:63]")
            a(f"v_cndmask_b32 v{XX+2*j+1}, v{YY+j}, v{YY+j+2}, s[62:63]")
        for j in range(2):
            a(f"v_add_f32_dpp v{XX+4+j}, v{XX+2*j}, v{XX+2*j+1} quad_perm:[2,3,0,1] {FULL}")
        a(f"v_cndmask_b32 v{XX}, v{XX+5}, v{XX+4}, s[60:61]")
        a(f"v_cndmask_b32 v{XX+1}, v{XX+4}, v{XX+5}, s[60:61]")
        a(f"v_add_f32_dpp v{XX+2}, v{XX}, v{XX+1} quad_perm:[1,0,3,2] {FULL}")
        if noround < 1: bf16r(XX+2, XX+2)
        a(f"v_mul_f32 v{XX+2}, {SCALE}, v{XX+2}")
        if noround < 2: bf16r(dst, XX+2)
        else: a(f"v_mov_b32 v{dst}, v{XX+2}")
    tgt = -(-(PT_ + 16 - A + 4) // 16) * 16
    NPEEL = tgt // 16
    KL = 16 - NPEEL
    cons = {"n": 0}
    def consume_k_upto(m):
        while cons["n"] < m:
            n = cons["n"]
            if n == P:
                a("s_waitcnt lgkmcnt(0)")
                set_flag(F_WF, "s3", T0, T1)
            ensure(n); kdots(n); cons["n"] += 1
            m2 = n - 16 + P
            if n >= 16 and P <= m2 < PT_:
                ensure(m2)
                r = slot(m2)
                a(f"ds_read_b128 v[{r}:{r+3}], v{T0} offset:{ldsoff(m2)}")
            if n % 16 == 15: kreduce(SC + n // 16 + KL)
    nsteps = tgt + A - PT_
    for s in range(nsteps):
        n = PT_ + s
        prev = s if s < 16 else n - 16
        if s <= 16: want = 1 + -(-PT_ * s // 16)
        else: want = PT_ + 1 + -(-(tgt - PT_ - 1) * (s - 16) // (nsteps - 16))
        want = min(want, max(st["landed"], PT_))
        consume_k_upto(min(max(want, prev + 1), tgt))
        throttle(); issue(n)
    a("s_memrealtime s[52:53]")
    consume_k_upto(tgt)
    FA, FAD, TTA, TTV = 128, 132, 133, 134
    LV = [x[0] for x in levels]
    def ln_(dd): return str(dd).replace(".", "p")
    def dstep(dd, j):
        import math
        return int(math.floor((j + 1) * dd) - math.floor(j * dd))
    a(f"""
    s_mov_b32 s14, 0
    s_mov_b32 s56, 0
    s_mov_b32 s57, 0
    s_mov_b32 s58, 0
    s_mov_b32 s59, 0
    s_mov_b32 s68, {100000 if nojT else J}
    s_and_b32 s69, s2, 7
    s_cselect_b32 s69, {J}, s68
    s_cselect_b32 s71, 0, {tsh}
    s_mov_b32 s67, 0
    s_mov_b32 s68, 0
    s_lshl_b32 s47, s3, 4
    s_add_u32 s47, s47, {L_FL+F_FAC}
    v_mov_b32 v{FAD}, s47
    s_lshl_b32 s47, s3, 2
    s_add_u32 s47, s47, {L_FL+F_TT}
    v_mov_b32 v{TTA}, s47
    v_mov_b32 v{FA+3}, 0
    """)
    def record():
        a(f"""
        s_waitcnt lgkmcnt(0)
        s_or_b32 s53, s52, 1
        v_mov_b32 v{TTV}, s53
        ds_write_b32 v{TTA}, v{TTV}
        v_add_u32 v{TTA}, 16, v{TTA}
        """)
    def dispatch(pre):
        a(f"""
        v_readfirstlane_b32 s55, v{FA+3}
        v_readfirstlane_b32 s54, v{FA+2}
        s_sub_u32 s53, s52, s57
        s_mov_b32 s57, s52
        s_cmp_eq_u32 s55, 0
        s_cbranch_scc1 {pre}{ln_(D)}
        s_sub_u32 s52, s52, s54
        s_lshr_b32 s54, s55, 16
        s_and_b32 s55, s55, 0xffff
        s_lshr_b32 s47, s55, 2
        s_sub_u32 s53, s53, s47
        s_mul_i32 s55, s55, s56
        s_lshr_b32 s55, s55, 4
        s_sub_u32 s52, s52, s55
        s_cmp_gt_i32 s53, s69
        s_cselect_b32 s67, s58, s67
        s_cselect_b32 s68, s59, s68
        s_cselect_b32 s58, s53, s58
        s_cselect_b32 s59, s56, s59
        s_cmp_gt_u32 s59, s54
        s_cselect_b32 s55, s58, 0
        s_sub_u32 s52, s52, s55
        s_cmp_gt_u32 s68, s54
        s_cselect_b32 s55, s67, 0
        s_sub_u32 s52, s52, s55
        """)
        if tsh: a("s_lshl_b32 s52, s52, s71")
        if pe and pre == "L_v": a(f"s_cmp_ge_u32 s56, {pe}\ns_cselect_b32 s55, {esh}, 0\ns_cselect_b32 s54, {eoff}, 0\ns_sub_u32 s52, s52, s54\ns_lshl_b32 s52, s52, s55")
        if wsh: a(f"s_cmp_lt_u32 s56, {psw}\ns_cselect_b32 s55, {wsh}, 0\ns_ashr_i32 s52, s52, s55")
        for dd, th in levels:
            if th is None: a(f"s_branch {pre}{ln_(dd)}")
            else: a(f"s_cmp_lt_i32 s52, {th}\ns_cbranch_scc1 {pre}{ln_(dd)}")
    a("; ---- K loop: record progress, choose the prefetch depth, run one 16-tile body")
    a("L_kdisp:")
    record()
    a(f"s_cmp_ge_u32 s14, {KL}\ns_cbranch_scc1 L_kdone")
    if kctl: dispatch("L_k")
    for dd in (LV if kctl else [D]):
        assert dd <= A
        a(f"L_k{ln_(dd)}:")
        for j in range(16):
            n = tgt + j
            if j == fa_at: a(f"ds_read_b128 v[{FA}:{FA+3}], v{FAD}")
            a(f"s_waitcnt vmcnt({dstep(dd, j)-1})")
            if j == 16 - A:
                a(f"s_cmp_eq_u32 s14, {KL-1}\ns_cselect_b32 s8, s{P_V}, s8\ns_cselect_b32 s9, s{P_V+1}, s9\ns_cselect_b32 s12, s13, s12")
            issue(n + A)
            if j == 15: a("s_memrealtime s[52:53]")
            kdots(n)
            if j == 7:
                for i in range(15): a(f"v_mov_b32 v{SC+i}, v{SC+i+1}")
        kreduce(SC + 15)
        a("s_add_u32 s14, s14, 1\ns_add_u32 s56, s56, 4\ns_branch L_kdisp")
    a("L_kdone:")
    a("s_add_u32 s57, s57, 70")
    if not diag2: stamp(3)
    ex = {"n": 256 + A}
    def extra():
        if ex["n"] < 256 + A + E:
            a(f"s_waitcnt vmcnt({D-1})"); issue(ex["n"]); ex["n"] += 1
    extra()
    M, Ls = PT, PT + 1
    a(f"v_max3_f32 v{M}, v{SC}, v{SC+1}, v{SC+2}")
    for i in range(3, 15, 2): a(f"v_max3_f32 v{M}, v{M}, v{SC+i}, v{SC+i+1}")
    a(f"v_max_f32 v{M}, v{M}, v{SC+15}")
    allreduce("v_max_f32", [M], [T0])
    a(f"v_mul_f32 v{T1}, {LOG2E}, v{M}")
    extra()
    for i in range(16): a(f"v_fma_f32 v{SC+i}, v{SC+i}, {LOG2E}, -v{T1}")
    for i in range(16): a(f"v_exp_f32 v{SC+i}, v{SC+i}")
    extra()
    a(f"v_add_f32 v{Ls}, v{SC}, v{SC+1}\nv_add_f32 v{Ls+1}, v{SC+2}, v{SC+3}")
    for i in range(4, 16, 2): a(f"v_add_f32 v{Ls}, v{Ls}, v{SC+i}\nv_add_f32 v{Ls+1}, v{Ls+1}, v{SC+i+1}")
    a(f"v_add_f32 v{Ls}, v{Ls}, v{Ls+1}")
    for i in range(16): a(f"v_cvt_pk_bf16_f32 v{SC+i}, v{SC+i}, v{SC+i}")
    extra()
    allreduce("v_add_f32", [Ls], [T0])
    a(f"ds_write_b64 v{FAD}, v[{M}:{Ls}] offset:{F_ST-F_FAC}")
    set_flag(F_KD, "s3", PT+5, PT+6)
    while ex["n"] < 256 + A + E: extra()
    a("s_memrealtime s[52:53]")
    AV = A + E
    assert AV <= 15
    a(f"""
    v_lshrrev_b32 v{PT}, 4, v0
    v_lshlrev_b32 v{PT}, 5, v{PT}
    v_bfe_u32 v{PT+1}, v0, 1, 1
    v_lshl_add_u32 v{PT}, v{PT+1}, 7, v{PT}
    v_bfe_u32 v{PT+1}, v0, 2, 1
    v_lshl_add_u32 v{PT}, v{PT+1}, 2, v{PT}
    v_and_b32 v{PT+1}, 1, v0
    v_lshl_add_u32 v{PT}, v{PT+1}, 1, v{PT}
    s_mul_i32 s46, s3, {OP_STRIDE}
    s_add_u32 s46, s46, {L_OP}
    v_add_u32 v{PT}, s46, v{PT}
    s_mov_b32 s14, 0
    s_add_u32 s56, s56, {E//4}
    s_waitcnt lgkmcnt(0)
    """)
    def vbody(dd, last, timed):
        assert dd <= AV
        for j in range(16):
            n = 256 + j
            if j == fa_at: a(f"ds_read_b128 v[{FA}:{FA+3}], v{FAD}")
            for t in range(4): a(f"v_and_b32_dpp v{BB+t}, v{SC}, v{MK+t} row_newbcast:{j} {FULL}")
            a(f"s_waitcnt vmcnt({dstep(dd, j)-1})")
            if j == 16 - AV and last:
                a("s_cmp_eq_u32 s14, 15\ns_cselect_b32 s10, 0, s10")
            issue(n + AV)
            r = slot(n)
            if j == 15 and timed: a("s_memrealtime s[52:53]")
            a(f"v_mfma_f32_16x16x32_bf16 v[{ACC}:{ACC+3}], v[{r}:{r+3}], v[{BB}:{BB+3}], v[{ACC}:{ACC+3}]")
        if lastctl and not fin: a("s_cmp_eq_u32 s14, 15\ns_cbranch_scc1 L_sepi")
        for i in range(15): a(f"v_mov_b32 v{SC+i}, v{SC+i+1}")
        a("s_add_u32 s14, s14, 1\ns_add_u32 s56, s56, 4")
    assert NE >= 1
    a("s_branch L_vd1")
    a("; ---- V loop")
    a("L_vdisp:")
    if lastctl:
        record()
    else:
        record()
        a(f"s_cmp_ge_u32 s14, {16-NE}\ns_cbranch_scc1 L_vlast")
    if fin: a("s_cmp_eq_u32 s14, 15\ns_cbranch_scc1 L_vfin")
    if endat < 16: a(f"s_cmp_ge_u32 s14, {endat}\ns_cbranch_scc1 L_v{ln_(endD)}")
    if endbias: a(f"s_cmp_ge_u32 s14, 14\ns_cselect_b32 s55, {endbias}, 0\ns_add_u32 s52, s52, s55\ns_add_u32 s57, s57, s55")
    a("L_vd1:")
    dispatch("L_v")
    for dd in LV:
        a(f"L_v{ln_(dd)}:")
        vbody(dd, lastctl and not fin, True)
        a("s_branch L_vdisp")
    if fin:
        a("L_vfin:")
        a(f"ds_read_b128 v[{FA}:{FA+3}], v{FAD}")
        st["issued"] = 496 + AV; st["landed"] = 496 + AV - max(int(x + 0.999) for x in LV)
        def vcons(n):
            j = n - 496
            bb = BB if j & 1 else XX
            for t in range(4): a(f"v_and_b32_dpp v{bb+t}, v{SC}, v{MK+t} row_newbcast:{j} {FULL}")
            ensure(n)
            r = slot(n)
            a(f"v_mfma_f32_16x16x32_bf16 v[{ACC}:{ACC+3}], v[{r}:{r+3}], v[{bb}:{bb+3}], v[{ACC}:{ACC+3}]")
        c_ = 496
        for n in range(496 + AV, 512):
            throttle(fin); issue(n)
            for _ in range(2):
                if c_ < st["landed"]: vcons(c_); c_ += 1
        a("L_vfin2:")
        while c_ < 512: vcons(c_); c_ += 1
    if not lastctl:
        a("L_vlast:")
        vbody(D2, True, False)
        a("s_cmp_lt_u32 s14, 16\ns_cbranch_scc1 L_vlast")
    a("L_sepi:")
    if not fin: a("s_nop 7")
    stamp(4)
    a(f"s_waitcnt lgkmcnt(0)\nv_readfirstlane_b32 s46, v{FA+1}\ns_mov_b32 s70, 0\ns_or_b32 s46, s46, s0\ns_cmp_lg_u32 s46, 0\ns_cbranch_scc0 L_facspin")
    a("L_facok:")
    for t in range(4): a(f"v_mul_f32 v{ACC+t}, v{ACC+t}, v{FA}")
    a(f"v_cvt_pk_bf16_f32 v{ACC}, v{ACC}, v{ACC+1}\nv_cvt_pk_bf16_f32 v{ACC+2}, v{ACC+2}, v{ACC+3}")
    a(f"""
    s_mov_b32 exec_lo, 0x00ff00ff
    s_mov_b32 exec_hi, 0x00ff00ff
    ds_write_b16 v{PT}, v{ACC}
    ds_write_b16_d16_hi v{PT}, v{ACC} offset:8
    ds_write_b16 v{PT}, v{ACC+2} offset:16
    ds_write_b16_d16_hi v{PT}, v{ACC+2} offset:24
    s_waitcnt lgkmcnt(0)
    """)
    if dry: a("s_cmp_eq_u32 s0, 1\ns_cbranch_scc1 L_tail0")
    a("s_barrier")
    if not diag2: stamp(5)
    dump_stamps(6)
    a("s_endpgm")
    a("L_facspin:")
    spin_check()
    a(f"ds_read_b128 v[{FA}:{FA+3}], v{FAD}\ns_waitcnt lgkmcnt(0)\nv_readfirstlane_b32 s46, v{FA+1}\ns_cmp_eq_u32 s46, 1\ns_cbranch_scc0 L_facspin\ns_branch L_facok")

    a("L_helper:")
    TRB, DA, DB, DN, TA, TB, TC = 2, 4, 5, 6, 7, 8, 9
    a(f"""
    s_memrealtime s[60:61]
    s_sub_u32 s7, s3, 4
    """)
    def lane_consts():
        a(f"""
        v_lshrrev_b32 v{TA}, 4, v0
        v_bfe_u32 v{TB}, v0, 2, 2
        v_and_b32 v{TC}, 3, v0
        v_lshl_add_u32 v{TRB}, v{TA}, 3, v{TB}
        v_lshlrev_b32 v{TRB}, 8, v{TRB}
        v_lshl_add_u32 v{TRB}, v{TC}, 3, v{TRB}
        v_and_b32 v{TC}, 1, v{TA}
        v_lshl_add_u32 v{TB}, v{TC}, 2, v{TB}
        v_lshl_add_u32 v{TRB}, v{TB}, 5, v{TRB}
        s_lshl_b32 s12, s7, 15
        v_add_u32 v{TRB}, s12, v{TRB}
        v_and_b32 v{TB}, 15, v0
        v_lshlrev_b32 v{TC}, 1, v{TA}
        v_xor_b32 v{TB}, v{TB}, v{TC}
        v_lshlrev_b32 v{DN}, 4, v{TB}
        v_mov_b32 v{DA}, 0
        """)
    lane_consts()
    a(f"""
    s_bfe_u32 s13, s2, {0x40003 if sym else 0x50003}
    s_lshl_b32 s69, s13, {1 if sym else 0}
    {"s_add_u32 s69, s69, s6" if sym else ""}
    s_and_b32 s12, s2, 7
    s_mov_b32 s68, 4
    s_cmp_lt_u32 s69, {NFFN}
    s_cselect_b32 s68, 5, s68
    s_cmp_eq_u32 s12, 0
    s_cbranch_scc1 L_role
    s_mul_i32 s69, s13, 7
    s_add_u32 s69, s69, s12
    s_sub_u32 s69, s69, 1
    s_lshl_b32 s69, s69, {1 if sym else 0}
    {"s_add_u32 s69, s69, s6" if sym else ""}
    s_mov_b32 s68, 1
    s_cmp_lt_u32 s69, {48 if front else 16}
    s_cbranch_scc1 L_role
    s_sub_u32 s69, s69, {48 if front else 16}
    s_mov_b32 s68, 3
    s_cmp_lt_u32 s69, 64
    s_cbranch_scc1 L_role
    s_sub_u32 s69, s69, 48
    s_mov_b32 s68, 2
    s_cmp_lt_u32 s69, {0 if front else 48}
    s_cbranch_scc1 L_role
    s_mov_b32 s68, 0
    L_role:
    """)
    a(f"""
    s_cmp_lg_u32 s7, 3
    s_cbranch_scc1 L_noinit
    s_and_b32 s12, s68, 1
    s_xor_b32 s12, s12, 1
    v_cmp_eq_u32 vcc, {F_WQD//16}, v0
    v_mov_b32 v17, s12
    v_cndmask_b32 v16, 0, v17, vcc
    v_mov_b32 v17, v16
    v_mov_b32 v18, v16
    v_mov_b32 v19, v16
    v_add_u32 v20, {L_FL}, v1
    ds_write_b128 v20, v[16:19]
    L_noinit:
    s_waitcnt lgkmcnt(0)
    s_mov_b32 s0, 0
    s_mov_b32 s71, 0
    """)
    if diag3: stamp(8)
    srd(48, P_WS, WS_SIZE)
    def dma_seq(nins, stride, soff, ldsbase, infl, hooks, pol, sel, rot):
        if rot:
            a(rot)
            a(f"s_mov_b32 s59, {ldsbase}")
        for i in range(nins):
            if rot:
                if i: a(f"s_add_u32 s58, s58, 1\ns_and_b32 s58, s58, {nins-1}")
                a(f"s_lshl_b32 s57, s58, 10\ns_add_u32 m0, s59, s57\ns_mul_i32 s57, s58, {stride}\ns_add_u32 s57, s57, {soff}")
                so = "s57"
            else:
                a(f"s_mov_b32 m0, {ldsbase}" if i == 0 else "s_add_u32 m0, m0, 0x400")
                if i: a(f"s_add_u32 {soff}, {soff}, {stride}")
                so = soff
            a(f"buffer_load_dwordx4 v{DB if sel(i) else DA}, s[8:11], {so} offen {pol} lds")
            if i in hooks: hooks[i]()
            if i >= infl - 1: a(f"s_waitcnt vmcnt({infl-1})")
    def rot_code(src, mul, shr, gran, nins):
        return f"s_mul_i32 s58, {src}, {mul}\ns_lshr_b32 s58, s58, {shr}\ns_lshl_b32 s58, s58, {gran}\ns_and_b32 s58, s58, {nins-1}"
    def dma_wide(nins, rs_log2, soff, infl, hooks={}, pol='nt', key="s69"):
        a(f"v_lshrrev_b32 v{TA}, 4, v0\nv_lshl_add_u32 v{DA}, v{TA}, {rs_log2}, v{DN}\nv_xor_b32 v{DB}, 0x80, v{DA}")
        a("s_lshl_b32 s14, s7, 15")
        dma_seq(nins, 4 << rs_log2, soff, "s14", infl, hooks, pol, lambda i: (i >> 1) & 1, rot_code(key, rotw[0], rotw[1], 2, nins) if rotw else None)
    def dma_mid(soff, ldsbase, infl, rs, hooks={}, n=16):
        a(f"""
        v_lshrrev_b32 v{DA}, 3, v0
        v_mul_u32_u24 v{DA}, {rs}, v{DA}
        v_bfe_u32 v{DB}, v0, 4, 1
        v_lshlrev_b32 v{DB}, 1, v{DB}
        v_and_b32 v{TA}, 7, v0
        v_xor_b32 v{DB}, v{DB}, v{TA}
        v_lshl_add_u32 v{DA}, v{DB}, 4, v{DA}
        v_xor_b32 v{DB}, 64, v{DA}
        """)
        dma_seq(n, 8*rs, soff, ldsbase, infl, hooks, "nt", lambda i: i & 1, rot_code("s69", rotm[0], rotm[1], 1, 16) if rotm else None)
    def sprefetch(lbl, ptr, off, nrows, rs, rowbytes):
        per = rowbytes // sgran
        rows = max(1, 16 // per)
        while nrows % rows: rows -= 1
        a(f"s_mov_b32 s56, {off}\ns_mov_b32 s57, 0\n{lbl}:")
        for r_ in range(rows):
            for c_ in range(per):
                a(f"s_add_u32 s59, s56, {r_*rs + c_*sgran}\ns_load_dword s58, s[{ptr}:{ptr+1}], s59")
        a(f"s_waitcnt lgkmcnt(0)\ns_add_u32 s56, s56, {rows*rs}\ns_add_u32 s57, s57, {rows}\ns_cmp_lt_u32 s57, {nrows}\ns_cbranch_scc1 {lbl}")
    def mid_bases():
        a(f"""
        v_lshrrev_b32 v{TB}, 4, v0
        v_bfe_u32 v{TC}, v0, 2, 2
        v_lshl_add_u32 v{TA}, v{TB}, 3, v{TC}
        v_lshlrev_b32 v{TA}, 7, v{TA}
        v_and_b32 v{TB}, 1, v{TB}
        v_lshrrev_b32 v{TC}, 1, v{TC}
        v_lshl_add_u32 v{TB}, v{TB}, 1, v{TC}
        v_xor_b32 v{TB}, s7, v{TB}
        v_lshl_add_u32 v{TA}, v{TB}, 5, v{TA}
        v_and_b32 v{TB}, 3, v0
        v_lshl_add_u32 v{TA}, v{TB}, 3, v{TA}
        v_add_u32 v{TB}, 0x10000, v{TA}
        """)
    def tr_mid(dst, off):
        for s in range(16):
            r = dst + 4 * s
            ar = TA if s < 8 else TB
            o = off + ((s >> 2) & 1) * 0x8000 + (s & 3) * 4096
            a(f"ds_read_b64_tr_b16 v[{r}:{r+1}], v{ar} offset:{o}")
            a(f"ds_read_b64_tr_b16 v[{r+2}:{r+3}], v{ar} offset:{o+512}")
        a("s_waitcnt lgkmcnt(0)")
    def tr_wide(dst, nk):
        for t in range(8):
            ar = TA if t & 1 else TB
            a(f"v_xor_b32 v{ar}, {t << 5}, v{TRB}")
            for s in range(nk):
                r = dst + (t * nk + s) * 4
                a(f"ds_read_b64_tr_b16 v[{r}:{r+1}], v{ar} offset:{s*8192}")
                a(f"ds_read_b64_tr_b16 v[{r+2}:{r+3}], v{ar} offset:{s*8192+1024}")
        a("s_waitcnt lgkmcnt(0)")
    def act_addr(dst, rowsel, tmp):
        a(f"v_and_b32 v{dst}, 3, v0" if rowsel == "lo" else f"v_bfe_u32 v{dst}, v0, 2, 2")
        a(f"v_mul_u32_u24 v{dst}, {ACT_STRIDE}, v{dst}\nv_lshrrev_b32 v{tmp}, 4, v0\nv_lshl_add_u32 v{dst}, v{tmp}, 4, v{dst}\nv_add_u32 v{dst}, {L_ACT}, v{dst}")
    def poll(lbl, loads, tags, sleep=0, pre="", post=""):
        spin_begin()
        if sleep: a(f"s_branch {lbl}_go")
        a(f"{lbl}:")
        spin_check()
        if sleep: a(f"s_sleep {sleep}\n{lbl}_go:")
        a(pre)
        for l in loads: a(l)
        a(post)
        if not getattr(tags, "waits", False): a("s_waitcnt vmcnt(0)")
        tags()
        a(f"s_cmp_eq_u64 vcc, exec\ns_cbranch_scc0 {lbl}")
    def tags_words(regs):
        def f():
            a(f"v_cmp_eq_u32 vcc, {TAG}, v{regs[0]}")
            for r in regs[1:]: a(f"v_cmp_eq_u32 s[56:57], {TAG}, v{r}\ns_and_b64 vcc, vcc, s[56:57]")
        return f
    def tags_xor(regs, t):
        def f():
            a(f"v_xor_b32 v{t}, {TAG}, v{regs[0]}")
            for r in regs[1:]: a(f"v_xor_b32 v{t+1}, {TAG}, v{r}\nv_or_b32 v{t}, v{t}, v{t+1}")
            a(f"v_cmp_eq_u32 vcc, 0, v{t}")
        return f
    def tags_bytes(n, t):
        def f():
            for q in range(n):
                a(f"s_waitcnt vmcnt({n-1-q})")
                for i in range(4*q, 4*q + 4): a(f"v_xor_b32 v{16+i}, s{18+(i&3)}, v{32+i}")
                b_ = 16 + 4*q
                if q == 0: a(f"v_or3_b32 v{t}, v{b_}, v{b_+1}, v{b_+2}\nv_or_b32 v{t}, v{t}, v{b_+3}")
                else: a(f"v_or3_b32 v{t}, v{t}, v{b_}, v{b_+1}\nv_or3_b32 v{t}, v{t}, v{b_+2}, v{b_+3}")
            a(f"v_lshlrev_b32 v{t}, 24, v{t}\nv_cmp_eq_u32 vcc, 0, v{t}")
        f.waits = True
        return f
    def pk(op, d, x, y, mods=""):
        yy = y if isinstance(y, str) else f"v[{y}:{y+1}]"
        a(f"v_pk_{op}_f32 v[{d}:{d+1}], v[{x}:{x+1}], {yy} {mods}")
    NEG = "neg_lo:[0,1] neg_hi:[0,1]"
    def rnd8(x0):
        for k in range(8): bf16r(x0 + k, x0 + k)
    def ln_norm(x0, t0):
        a(f"v_readfirstlane_b32 s46, v{x0}")
        for k in range(4): pk("add", t0+4+2*k, x0+2*k, "s[46:47]", "op_sel_hi:[1,0] " + NEG)
        pk("mul", t0+2, t0+4, t0+4)
        pk("add", t0, t0+4, t0+6)
        a(f"v_pk_fma_f32 v[{t0+2}:{t0+3}], v[{t0+6}:{t0+7}], v[{t0+6}:{t0+7}], v[{t0+2}:{t0+3}]")
        pk("add", t0+4, t0+8, t0+10)
        a(f"v_pk_fma_f32 v[{t0+2}:{t0+3}], v[{t0+8}:{t0+9}], v[{t0+8}:{t0+9}], v[{t0+2}:{t0+3}]")
        pk("add", t0, t0, t0+4)
        a(f"v_pk_fma_f32 v[{t0+2}:{t0+3}], v[{t0+10}:{t0+11}], v[{t0+10}:{t0+11}], v[{t0+2}:{t0+3}]")
        m, q = t0, t0 + 2
        a(f"v_add_f32 v{m}, v{t0}, v{t0+1}\nv_add_f32 v{q}, v{t0+2}, v{t0+3}")
        allreduce("v_add_f32", [m, q], [], rows_only=True)
        for st_ in ("row_bcast:15 row_mask:0xa bank_mask:0xf", "row_bcast:31 row_mask:0xc bank_mask:0xf"):
            for r in (m, q): a(f"v_add_f32_dpp v{r}, v{r}, v{r} {st_}")
        a(f"""
        v_mul_f32 v{m}, 0x3b000000, v{m}
        v_mul_f32 v{q}, 0x3b000000, v{q}
        v_fma_f32 v{q}, -v{m}, v{m}, v{q}
        v_add_f32 v{m}, s46, v{m}
        v_max_f32 v{q}, 0, v{q}
        """)
        bf16r(m, m); bf16r(q, q)
        a(f"v_readlane_b32 s56, v{m}, 63\nv_add_f32 v{q}, 0x3727c5ac, v{q}")
        bf16r(q, q)
        a(f"v_sqrt_f32 v{q}, v{q}")
        for k in range(2): pk("add", x0+2*k, x0+2*k, "s[56:57]", "op_sel_hi:[1,0] " + NEG)
        bf16r(q, q)
        for k in range(2, 4): pk("add", x0+2*k, x0+2*k, "s[56:57]", "op_sel_hi:[1,0] " + NEG)
        a(f"v_rcp_f32 v{q}, v{q}")
        for k in range(3): bf16r(x0 + k, x0 + k)
        a(f"v_readlane_b32 s46, v{q}, 63")
        for k in range(3, 8): bf16r(x0 + k, x0 + k)
        for k in range(4): pk("mul", x0+2*k, x0+2*k, "s[46:47]", "op_sel_hi:[1,0]")
        rnd8(x0)
    def ln_affine(x0, sc8, sh8, t):
        for k in range(4): pk("mul", x0+2*k, x0+2*k, sc8+2*k)
        rnd8(x0)
        for k in range(4): pk("add", x0+2*k, x0+2*k, sh8+2*k)
        for k in range(4): a(f"v_cvt_pk_bf16_f32 v{t+k}, v{x0+2*k}, v{x0+2*k+1}")
    X8, ST, SA8, CA8, BW, DT = 24, 32, 40, 48, 192, 56
    def gemv64(tagn, kind, infl, first):
        isq = kind == "q"
        srd(52, P_X if isq else P_C, 4096)
        a(f"""
        v_lshlrev_b32 v10, 3, v0
        s_lshl_b32 s12, s7, 10
        buffer_load_dwordx2 v[12:13], v10, s[52:55], s12 offen
        buffer_load_dwordx2 v[14:15], v10, s[52:55], s12 offen offset:512
        """)
        rs = 8192 if isq else 6144
        srd(8, P_WQ if isq else P_WM, 0 if ({"q": "q", "A": "A", "a": "a"}[kind] in skip) else 512 * rs)
        if contig: rs = 128
        a(f"s_mul_i32 s13, s7, {128*rs}\ns_lshl_b32 s12, s69, {16 if contig else 7}\ns_add_u32 s13, s13, s12\ns_lshl_b32 s14, s7, 15")
        if diag3 and first: stamp(7)
        if kind == "a" and 'a' in spf: sprefetch("L_spa", P_WM, "s13", 128, rs, 128)
        dma_mid("s13", "s14", infl, rs, hooks=({min(infl, 16) - 1: lambda: a(BAR0)} if first else {}))
        a("s_waitcnt vmcnt(16)")
        if kind == "A": stamp(1)
        for k in range(4): unpack(X8 + 2*k, X8 + 2*k + 1, 12 + k)
        a(f"s_mul_i32 s12, s7, {ACT_STRIDE}\ns_add_u32 s12, s12, {L_ACT}\nv_add_u32 v10, s12, v10")
        if isq:
            ln_norm(X8, ST)
        else:
            for k in range(8): a(f"v_mul_f32 v{ST+k}, {LOG2E}, v{X8+k}")
            for k in range(8): a(f"v_exp_f32 v{ST+k}, -v{ST+k}")
            for k in range(8): a(f"v_add_f32 v{ST+k}, 1.0, v{ST+k}")
            for k in range(8): a(f"v_rcp_f32 v{ST+k}, v{ST+k}")
            for k in range(8): a(f"v_mul_f32 v{X8+k}, v{X8+k}, v{ST+k}")
            for k in range(4): a(f"v_cvt_pk_bf16_f32 v{16+k}, v{X8+2*k}, v{X8+2*k+1}")
            a("ds_write_b64 v10, v[16:17]\nds_write_b64 v10, v[18:19] offset:512")
        mid_bases()
        a("s_waitcnt vmcnt(0)")
        set_flag(F_WQ, "s7", 20, 21)
        wait_flags(f"L_wq{tagn}", F_WQ, 16, 0)
        if first: a(MKTAG)
        stamp(4 if isq else 2) if first else None
        tr_mid(BW, 0)
        if first: set_flag(F_WQD, "s7", 16, 17)
        act_addr(TC, "lo", TB)
        a(f"s_lshl_b32 s67, s69, 10\ns_lshl_b32 s12, s7, 8\ns_add_u32 s67, s67, s12\ns_add_u32 s67, s67, {WS_Q if isq else WS_MOD}")
        if isq:
            a(f"""
            v_lshrrev_b32 v{TA}, 2, v0
            v_lshlrev_b32 v{TA}, 8, v{TA}
            v_and_b32 v{TB}, 3, v0
            v_lshl_add_u32 v{TA}, v{TB}, 4, v{TA}
            s_lshl_b32 s12, s7, 6
            s_add_u32 s12, s12, {WS_MOD}
            s_add_u32 s13, s12, 0x1000
            s_add_u32 s14, s12, 0x2000
            s_add_u32 s46, s12, 0x3000
            """)
            if gm: wait_flags("L_g1", F_G1, 16, 4)
            G0 = 128
            poll("L_poll_mod", [f"buffer_load_dwordx4 v[{G0+4*i}:{G0+4*i+3}], v{TA}, s[48:51], {sr} offen sc1" for i, sr in enumerate(["s12", "s13", "s14", "s46"])],
                 tags_xor([G0 + 1 + 2*k for k in range(8)], 16), sleep=slp)
            stamp(5)
            for k in range(4): unpack(SA8 + 2*k, SA8 + 2*k + 1, G0 + 2*k)
            for k in range(4): unpack(CA8 + 2*k, CA8 + 2*k + 1, G0 + 8 + 2*k)
            for k in range(8): a(f"v_add_f32 v{CA8+k}, 1.0, v{CA8+k}")
            rnd8(CA8)
            ln_affine(X8, CA8, SA8, 16)
            a("ds_write_b64 v10, v[16:17]\nds_write_b64 v10, v[18:19] offset:512")
            set_flag(F_H, "s7", 20, 21)
            wait_flags("L_h", F_H, 16, 0)
        for hh in range(2):
            for s in range(8): a(f"ds_read_b128 v[{16+4*s}:{19+4*s}], v{TC} offset:{(8*hh+s)*64}")
            for s in range(8):
                a(f"s_waitcnt lgkmcnt({7-s})")
                k = 8*hh + s
                a(f"v_mfma_f32_16x16x32_bf16 v[{DT}:{DT+3}], v[{BW+4*k}:{BW+4*k+3}], v[{16+4*s}:{19+4*s}], " + ("0" if k == 0 else f"v[{DT}:{DT+3}]"))
        a(f"""
        v_and_b32 v{TC}, 3, v0
        v_lshrrev_b32 v{TA}, 4, v0
        v_lshlrev_b32 v{TA}, 4, v{TA}
        v_lshl_add_u32 v{TA}, v{TC}, 6, v{TA}
        v_mov_b32 v{DT+5}, {TAG}
        v_mov_b32 v{DT+7}, {TAG}
        v_cvt_pk_bf16_f32 v{DT+4}, v{DT}, v{DT+1}
        v_cvt_pk_bf16_f32 v{DT+6}, v{DT+2}, v{DT+3}
        s_mov_b32 exec_lo, 0x000f000f
        s_mov_b32 exec_hi, 0x000f000f
        buffer_store_dwordx4 v[{DT+4}:{DT+7}], v{TA}, s[48:51], s67 offen sc1
        s_mov_b64 exec, -1
        """)
        if first: stamp(13 if isq else 3)

    def l2warm_code():
        if l2early: a(f"s_cmp_lt_u32 s2, {l2early}\ns_cbranch_scc1 L_nowarm")
        a(f"""
        s_cmp_lg_u32 s7, 3
        s_cbranch_scc1 L_nowarm
        s_getpc_b64 s[12:13]
        L_pc:
        s_sub_u32 s12, s12, L_pc-{NAME}_kernel
        s_subb_u32 s13, s13, 0
        v_lshlrev_b32 v16, 7, v0
        s_mov_b32 s14, 0
        L_warm:
        v_cmp_gt_u32 vcc, L_end-{NAME}_kernel, v16
        s_and_saveexec_b64 s[46:47], vcc
        s_cbranch_execz L_warmd
        global_load_dword v17, v16, s[12:13]
        v_add_u32 v16, 0x2000, v16
        s_branch L_warm
        L_warmd:
        s_mov_b64 exec, -1
        L_nowarm:
        """)
    if l2warm and l2early: l2warm_code()
    if wst:
        a(f"""
        s_cmp_lg_u32 s7, 2
        s_cbranch_scc1 L_nowst
        v_lshlrev_b32 v16, 7, v0
        s_lshl_b32 s12, s2, 12
        s_mov_b32 exec_hi, 0
        buffer_load_dword v60, v16, s[48:51], s12 offen {wstp}
        s_cmp_ge_u32 s2, 64
        s_cbranch_scc1 L_nowst2
        s_mul_i32 s12, s2, {TMSTR}
        s_add_u32 s12, s12, {WS_TM}
        s_mov_b32 exec_lo, 0x3ff
        buffer_load_dword v61, v16, s[48:51], s12 offen {wstp}
        L_nowst2:
        s_mov_b64 exec, -1
        L_nowst:
        """)
    if front:
        a("s_cmp_lt_u32 s68, 4\ns_cbranch_scc1 L_noTw")
        srd(8, P_WO, 4096 * 1024)
        a("s_lshl_b32 s13, s4, 17\ns_lshr_b32 s12, s2, 5\ns_lshl_b32 s12, s12, 14\ns_add_u32 s13, s13, s12\ns_lshl_b32 s12, s7, 12\ns_add_u32 s13, s13, s12")
        for i in range(4): a(f"buffer_load_dwordx4 v[{64+4*i}:{67+4*i}], v1, s[8:11], s13 offen offset:{i*1024}")
        for k_ in range(frontT):
            srd(8, P_WU if k_ else P_WG, 512 * 3584)
            a("s_lshl_b32 s13, s69, 2\ns_add_u32 s13, s13, s7\ns_mul_i32 s13, s13, 14336")
            for i in range(14):
                a(f"buffer_load_dwordx4 v[{80+56*k_+4*i}:{83+56*k_+4*i}], v1, s[8:11], s13 offen offset:{(i&3)*1024}")
                if i & 3 == 3: a("s_add_u32 s13, s13, 0x1000")
        a("L_noTw:")
    a("""
    s_cmp_eq_u32 s68, 3
    s_cbranch_scc1 L_qgemv
    s_cmp_eq_u32 s68, 5
    s_cbranch_scc1 L_down
    s_cmp_lg_u32 s68, 1
    s_cbranch_scc1 L_bar0
    """)
    gemv64(1, "A", 64, True)
    a("s_branch L_getq")
    a("L_qgemv:")
    gemv64(2, "q", thrQ, True)
    a("s_branch L_getq")
    a("L_down:")
    srd(8, P_WD, 0 if 'f' in skip else 1792 * 1024)
    a("s_lshl_b32 s13, s69, 16\ns_lshl_b32 s12, s7, 8\ns_add_u32 s13, s13, s12")
    if diag3: stamp(7)
    dma_wide(16, 10, "s13", thrD, hooks={min(thrD, 16) - 1: lambda: a(BAR0)})
    a("s_waitcnt vmcnt(0)")
    tr_wide(192, 2)
    a(MKTAG)
    set_flag(F_WQD, "s7", 16, 17)
    a("s_branch L_getq")
    a("L_bar0:")
    def burst(n, r0):
        for i in range(n):
            a(f"buffer_load_dwordx4 v[{r0+4*i}:{r0+4*i+3}], v1, s[8:11], s13 offen offset:{(i&3)*1024}")
            if i & 3 == 3: a("s_add_u32 s13, s13, 0x1000")
    if front and frontw:
        a("s_cmp_lg_u32 s68, 0\ns_cbranch_scc1 L_nofw")
        srd(8, P_WO, 4096 * 1024)
        a("s_lshl_b32 s13, s4, 17\ns_lshl_b32 s12, s5, 15\ns_add_u32 s13, s13, s12\ns_lshl_b32 s12, s7, 13\ns_add_u32 s13, s13, s12")
        if diag3: stamp(7)
        burst(8, 64)
        if frontf and frontT == 0:
            srd(8, P_WG, 512 * 3584)
            a(f"""
            s_sub_u32 s13, s69, 16
            s_cmp_ge_u32 s13, 56
            s_cselect_b32 s8, s{P_WU}, s8
            s_cselect_b32 s9, s{P_WU+1}, s9
            s_cselect_b32 s12, 56, 0
            s_sub_u32 s13, s13, s12
            s_lshl_b32 s13, s13, 15
            s_lshl_b32 s12, s7, 13
            s_add_u32 s13, s13, s12
            """)
            if sparse:
                a(f"v_mul_u32_u24 v16, {sparse}, v0")
                for i in range(128 // sparse):
                    a(f"buffer_load_dword v{96+i}, v16, s[8:11], s13 offen {spol}\ns_add_u32 s13, s13, {64*sparse}")
            else: burst(8, 96)
        elif frontf and frontT == 1:
            srd(8, P_WU, 512 * 3584)
            a("s_sub_u32 s13, s69, 16\ns_lshl_b32 s13, s13, 14\ns_lshl_b32 s12, s7, 12\ns_add_u32 s13, s13, s12")
            burst(4, 96)
        a("L_nofw:")
    if l2warm and not l2early: l2warm_code()
    a(BAR0)
    a("s_waitcnt lgkmcnt(0)")
    a(MKTAG)
    a("L_getq:")
    def dryrun(n, cond):
        a(f"""
        s_cmp_lg_u32 s7, 1
        s_cbranch_scc1 L_nodry{n}
        {cond} s68, 4
        s_cbranch_scc1 L_nodry{n}
        s_waitcnt vmcnt(0)
        s_mov_b32 s0, 1
        s_mov_b32 s1, {TAG}
        s_mov_b32 {TAG}, 0
        s_mov_b32 s50, 0
        s_mov_b32 s44, 1
        v_mov_b32 v{PT}, {L_OP}
        s_branch {'L_vfin2' if fin else 'L_facok'}
        L_afterdry{n}:
        s_mov_b32 s0, 0
        s_mov_b32 {TAG}, s1
        s_mov_b32 s50, {WS_SIZE}
        s_mov_b64 exec, -1
        s_waitcnt vmcnt(0) lgkmcnt(0)
        """)
        if n == 1: lane_consts()
        a(f"L_nodry{n}:")
    if dry: dryrun(1, "s_cmp_lt_u32")
    a("s_cmp_lg_u32 s7, 2\ns_cbranch_scc1 L_bar1")
    a(f"""
    v_bfe_u32 v{TA}, v0, 2, 3
    v_lshlrev_b32 v{TA}, 8, v{TA}
    v_and_b32 v{TB}, 3, v0
    v_lshl_add_u32 v{TA}, v{TB}, 4, v{TA}
    s_lshl_b32 s12, s4, 11
    s_lshl_b32 s13, s5, 6
    s_add_u32 s12, s12, s13
    s_add_u32 s12, s12, {WS_Q}
    v_and_b32 v{TB}, 31, v0
    v_lshlrev_b32 v{TB}, 3, v{TB}
    v_add_u32 v{TB}, {L_Q}, v{TB}
    """)
    if gq: wait_flags("L_g2", F_G2, 16, 4)
    poll("L_poll_q", [f"buffer_load_dwordx4 v[16:19], v{TA}, s[48:51], s12 offen sc1"], tags_words([17, 19]), sleep=slp)
    a(f"v_mov_b32 v17, v18\nds_write_b64 v{TB}, v[16:17]\ns_waitcnt lgkmcnt(0)")
    a("L_bar1:")
    a("s_barrier")
    if dbg: a("s_memrealtime s[98:99]")
    stamp(6)
    a(f"""
    s_getreg_b32 s62, hwreg(HW_REG_XCC_ID)
    s_cmp_lt_u32 s68, 4
    s_cbranch_scc1 L_noxcc
    s_cmp_lg_u32 s7, 1
    s_cbranch_scc1 L_noxcc
    v_mov_b32 v16, s62
    v_mov_b32 v17, {TAG}
    s_lshl_b32 s12, s69, 7
    s_add_u32 s12, s12, {WS_XCC}
    s_mov_b64 exec, 1
    buffer_store_dwordx2 v[16:17], v1, s[48:51], s12 offen sc1
    s_mov_b64 exec, -1
    L_noxcc:
    """)
    if tlb:
        a("s_cmp_lg_u32 s7, 3\ns_cbranch_scc1 L_notlb\ns_mov_b64 exec, 1")
        srd(8, P_V, 0x10000000)
        a("s_lshl_b32 s12, s15, 21\ns_lshl_b32 s13, s6, 20\ns_add_u32 s12, s12, s13\nbuffer_load_dword v16, v1, s[8:11], s12 offen nt")
        srd(8, P_OUT, 4096)
        a("buffer_load_dword v17, v1, s[8:11], 0 offen nt")
        a(f"s_mov_b32 s12, {WS_TM}\nbuffer_load_dword v18, v1, s[48:51], s12 offen offset:1024 nt")
        a("s_mov_b64 exec, -1\ns_waitcnt vmcnt(0)\nL_notlb:")
    def wait_row(lbl, g):
        spin_begin()
        a(f"v_mov_b32 v20, {L_FL+F_TT+16*g}")
        a(f"s_branch {lbl}_go\n{lbl}:")
        spin_check()
        a(f"""
        s_sleep 8
        {lbl}_go:
        ds_read_b128 v[16:19], v20
        s_waitcnt lgkmcnt(0)
        v_and_b32 v21, v16, v17
        v_and_b32 v22, v18, v19
        v_and_b32 v21, v21, v22
        v_readfirstlane_b32 s47, v21
        s_bitcmp1_b32 s47, 0
        s_cbranch_scc0 {lbl}
        """)
    def tm_publish(m, g):
        a(f"""
        s_lshr_b32 s12, s2, 3
        s_xor_b32 s12, s12, s2
        s_and_b32 s12, s12, 1
        {"s_xor_b32 s12, s12, s6" if sym else "s_xor_b32 s14, s6, 1"}
        {"" if sym else "s_or_b32 s12, s12, s14"}
        s_or_b32 s12, s12, s68
        s_or_b32 s12, s12, s7
        s_cbranch_scc1 L_tmp{m}
        """)
        wait_row(f"L_tr{m}", g)
        for k in range(4): a(f"v_subrev_u32 v{16+k}, s60, v{16+k}")
        a(f"""
        v_add3_u32 v16, v16, v17, v18
        v_add_u32 v16, v16, v19
        v_lshrrev_b32 v16, 2, v16
        v_add_u32 v16, s60, v16
        v_mov_b32 v17, {TAG}
        v_mov_b32 v18, s60
        v_mov_b32 v19, {TAG}
        s_bfe_u32 s12, s2, {0x30003 if sym else 0x30004}
        s_lshl_b32 s12, s12, 3
        s_and_b32 s14, s2, 7
        s_add_u32 s12, s12, s14
        s_mul_i32 s12, s12, {TMSTR}
        s_add_u32 s12, s12, {WS_TM + 128*m}
        s_mov_b64 exec, 1
        buffer_store_dwordx4 v[16:19], v1, s[48:51], s12 offen sc1
        s_mov_b64 exec, -1
        L_tmp{m}:
        """)
    import struct
    def fhex(v): return hex(struct.unpack("<I", struct.pack("<f", v))[0])
    def sfetch(lbl, soff_reg, imm):
        a(f"""
        s_load_dwordx4 s[56:59], s[42:43], {soff_reg}
        s_waitcnt lgkmcnt(0)
        v_mov_b32 v16, s56
        v_mov_b32 v18, s58
        s_xor_b32 s57, s57, {TAG}
        s_xor_b32 s59, s59, {TAG}
        s_or_b32 s57, s57, s59
        s_cbranch_scc0 {lbl}_ok
        v_mov_b32 v20, 0
        """)
        poll(lbl, [f"buffer_load_dwordx4 v[16:19], v20, s[48:51], {soff_reg} offen sc1"], tags_words([17, 19]), sleep=32)
        a(f"{lbl}_ok:")
    def line_write(m):
        a(f"""
        s_cmp_ge_u32 s68, 4
        s_cselect_b32 s12, {early if 1 < m < 9 else 0}, 0
        v_subrev_u32 v16, s12, v16
        v_and_b32 v20, 3, v0
        v_lshlrev_b32 v20, 4, v20
        v_add_u32 v20, {L_FL+F_FAC+8}, v20
        ds_write_b64 v20, v[16:17]
        """)
    def tm_follow(m, gate):
        a(f"s_cmp_lg_u32 s7, 0\ns_cbranch_scc1 L_tmf{m}\ns_cmp_eq_u32 s2, {AGG}\ns_cbranch_scc1 L_tmf{m}")
        wait_row(f"L_tf{m}", gate + flag_)
        a(f"s_mov_b32 s12, {WS_LINE + 1280*m}")
        sfetch(f"L_poll_ln{m}", "s12", 0)
        a("v_mov_b32 v17, v18")
        line_write(m)
        a(f"L_tmf{m}:")
    def tm_gather(m, gate, p_m, mult, row, follow=True):
        a(f"s_cmp_lg_u32 s7, 0\ns_cbranch_scc1 L_tmg{m}")
        if agg: a(f"s_cmp_lg_u32 s2, {AGG}\ns_cbranch_scc1 L_tmg{m}")
        wait_row(f"L_tg{m}", row + alag if agg else gate)
        a(f"""
        v_and_b32 v21, 7, v0
        v_lshrrev_b32 v20, 3, v0
        v_max_u32 v20, 1, v20
        v_cmp_eq_u32 vcc, 0, v21
        v_cndmask_b32 v20, 0, v20, vcc
        v_add_u32 v20, v20, v0
        v_mul_u32_u24 v20, {TMSTR}, v20
        s_mov_b32 s12, {WS_TM + 128*m}
        """)
        poll(f"L_poll_tm{m}", ["buffer_load_dwordx4 v[16:19], v20, s[48:51], s12 offen sc1"], tags_words([17, 19]), sleep=aslp if agg else 48)
        a("v_sub_u32 v18, v16, v18\nv_subrev_u32 v16, s60, v16")
        allreduce("v_add_u32", [16, 18], [17, 19])
        a("v_ashrrev_i32 v16, 6, v16\nv_lshrrev_b32 v18, 6, v18")
        if m > 1: a("v_subrev_u32 v18, s61, v16")
        a(f"""
        v_readfirstlane_b32 s61, v16
        {f"v_readfirstlane_b32 s{90+m}, v16" if dbg else ""}
        v_cvt_f32_u32 v18, v18
        v_mul_f32 v18, {fhex(mult)}, v18
        """)
        if m > 1 and up:
            a(f"""
            s_mul_i32 s12, s63, {p_m}
            s_lshr_b32 s12, s12, 4
            s_add_u32 s12, s12, s1
            """)
            if ek:
                a(f"""
                s_sub_u32 s12, s12, {e0}
                v_subrev_u32 v19, s12, v16
                v_cvt_f32_i32 v19, v19
                v_mul_f32 v19, {fhex(ek)}, v19
                v_add_f32 v19, 1.0, v19
                v_min_f32 v19, 1.0, v19
                v_max_f32 v19, {fhex(boost)}, v19
                v_mul_f32 v18, v18, v19
                v_cvt_f32_u32 v17, s63
                """)
            else:
                a(f"""
                s_sub_u32 s12, s12, {eth}
                v_mul_f32 v19, {fhex(boost)}, v18
                v_cmp_gt_i32 vcc, s12, v16
                v_cvt_f32_u32 v17, s63
                v_cndmask_b32 v18, v18, v19, vcc
                """)
            a(f"""
            v_mul_f32 v17, {fhex(up2 if m == 2 else (upk if (m == 9 and upk) else up))}, v17
            v_min_f32 v18, v18, v17
            """)
        a(f"""
        v_cvt_u32_f32 v17, v18
        v_mul_u32_u24 v18, {p_m}, v17
        v_lshrrev_b32 v18, 4, v18
        v_sub_u32 v16, v16, v18
        v_readfirstlane_b32 s63, v17
        v_readfirstlane_b32 s1, v16
        v_add_u32 v16, s60, v16
        v_min_u32 v17, 0xffff, v17
        v_or_b32 v17, {p_m << 16}, v17
        """)
        if agg:
            a(f"""
            v_mov_b32 v20, v16
            v_mov_b32 v21, {TAG}
            v_mov_b32 v22, v17
            v_mov_b32 v23, {TAG}
            s_mov_b32 s12, {WS_LINE + 1280*m}
            s_mov_b64 exec, 1
            buffer_store_dwordx4 v[20:23], v1, s[48:51], s12 offen sc1
            s_mov_b64 exec, -1
            """)
        line_write(m)
        a(f"L_tmg{m}:")
        if agg and follow: tm_follow(m, gate)
    if pf:
        for hw_, (ptr, nb, n_, key) in enumerate([(P_WO, 4096*1024, 16, 'w'), (P_WG, 512*3584, 7, 'f'), (P_WU, 512*3584, 7, 'f'), (P_WM, 512*6144, 12, 'a')]):
            if key not in pf: continue
            a(f"s_cmp_lg_u32 s7, {hw_}\ns_cbranch_scc1 L_npf{hw_}")
            srd(8, ptr, nb)
            a(f"s_mul_i32 s12, s2, {n_*1024}")
            for i in range(n_):
                a(f"buffer_load_dwordx4 v[{64+4*i}:{67+4*i}], v1, s[8:11], s12 offen offset:{(i&3)*1024}")
                if i & 3 == 3: a("s_add_u32 s12, s12, 0x1000")
                if i >= pfthr - 1: a(f"s_waitcnt vmcnt({pfthr-1})")
            a(f"s_waitcnt vmcnt(0)\nL_npf{hw_}:")
    if 'w' in spf and not front:
        if front and frontw: a("s_cmp_lt_u32 s68, 4\ns_cbranch_scc1 L_nospw")
        a("s_lshl_b32 s13, s4, 17\ns_lshr_b32 s12, s2, 5\ns_lshl_b32 s12, s12, 14\ns_add_u32 s13, s13, s12\ns_lshl_b32 s12, s7, 12\ns_add_u32 s13, s13, s12")
        sprefetch("L_spw", P_WO, "s13", 8, 512, 512)
        a("L_nospw:")
    wait_flags("L_wf", F_WF, 16, 4)
    srd(8, P_WO, 0 if 'w' in skip else 4096 * 1024)
    a("s_lshl_b32 s13, s4, 17\ns_lshl_b32 s12, s7, 8\ns_add_u32 s13, s13, s12")
    if late1:
        hooks_ = {hk: lambda: tm_publish(1, 0)}
        if 'g' in spf:
            a(f"""
            s_cmp_eq_u32 s68, 5
            s_cselect_b32 s26, s{P_WG}, s{P_WM}
            s_cselect_b32 s27, s{P_WG+1}, s{P_WM+1}
            s_cselect_b32 s41, 3584, 0
            s_cmp_eq_u32 s68, 2
            s_cselect_b32 s41, 6144, s41
            s_lshl_b32 s40, s41, 7
            s_mul_i32 s40, s40, s7
            s_lshl_b32 s12, s69, 7
            s_add_u32 s40, s40, s12
            """)
            def mk_hook(i):
                def f():
                    if i == hk: tm_publish(1, 0)
                    a(f"s_cmp_eq_u32 s41, 0\ns_cbranch_scc1 L_hp{i}")
                    for _ in range(4): a("s_load_dword s58, s[26:27], s40\ns_add_u32 s40, s40, s41")
                    a(f"L_hp{i}:")
                return f
            hooks_ = {i: mk_hook(i) for i in range(32)}
        dma_wide(32, 10, "s13", thr, hooks=hooks_, pol=wpol, key='s4')
    else:
        dma_wide(32, 10, "s13", thr, hooks=({5: lambda: tm_publish(1, 0), 9 + 6*alag: lambda: tm_gather(1, lagK, 0, 4*f1, 1, False), 5 + 6*(lagK + flag_): lambda: tm_follow(1, lagK)} if agg else {5: lambda: tm_publish(1, 0), 5 + 6*lagK: lambda: tm_gather(1, lagK, 0, 4*f1, 1)}), pol=wpol, key='s4')
    a("s_waitcnt vmcnt(0)")
    tr_wide(64, 4)
    if not front:
        a("s_cmp_lg_u32 s68, 2\ns_cbranch_scc1 L_noA2")
        gemv64(3, "a", thrA, False)
        a("L_noA2:")
    SB, TREG = [10, 11, 12, 13], [4, 5, 6, 14]
    RX, RGA, RGB = 2, 3, 15
    def ffn_cols(dst_tile, dst_sub):
        a(f"""
        v_lshrrev_b32 v{dst_tile}, 4, v0
        v_and_b32 v{dst_sub}, 3, v0
        v_lshl_add_u32 v{dst_tile}, v{dst_tile}, 2, v{dst_sub}
        v_bfe_u32 v{dst_sub}, v0, 2, 2
        """)
    RSF = 128 if contig else 3584
    pieces = list(enumerate(fsplit))
    PN = 32 // len(fsplit)
    def stage_upto(row):
        while pieces and pieces[0][1] < row:
            k, r_ = pieces.pop(0)
            mat, i0 = (k * PN) // 16, (k * PN) % 16
            a(f"s_cmp_lg_u32 s68, 5\ns_cbranch_scc1 L_noffn1{k}")
            srd(8, P_WU if mat else P_WG, 0 if 'f' in skip else 512 * 3584)
            a(f"s_lshl_b32 s13, s69, 7\ns_mul_i32 s12, s7, {128*3584}\ns_add_u32 s13, s13, s12\ns_add_u32 s13, s13, {i0*8*3584}\ns_lshl_b32 s14, s7, 15\ns_add_u32 s14, s14, {0x4000*mat + 1024*i0}")
            if 'f' in spf or ('u' in spf and mat): sprefetch(f"L_spf{k}", P_WU if mat else P_WG, "s13", PN*8, 3584, 128)
            wait_row(f"L_fs{k}", r_)
            dma_mid("s13", "s14", thrF, 3584, n=PN)
            a(f"L_noffn1{k}:")
    FL = flag_ if agg else 0
    stage_upto(lagK + FL)
    if late1: tm_gather(1, lagK, 0, 4*f1, 1)
    stage_upto(mk + 1 + FL)
    tm_publish(9, mk)
    tm_gather(9, mk + 1, 4*mk, 4*fk/mk, mk)
    stage_upto(KL + 1)
    if dry: dryrun(2, "s_cmp_ge_u32")
    if not diag3: stamp(7)
    tm_publish(2, KL)
    a("s_cmp_lg_u32 s7, 0\ns_cbranch_scc1 L_nofac")
    wait_flags("L_kd", F_KD, 16, 16)
    q4 = ("quad_perm:[1,0,3,2]", "quad_perm:[2,3,0,1]")
    a(f"""
    v_and_b32 v{TA}, 3, v0
    v_lshlrev_b32 v{TA}, 4, v{TA}
    v_add_u32 v{TA}, {L_FL}, v{TA}
    ds_read_b64 v[24:25], v{TA} offset:{F_ST}
    s_waitcnt lgkmcnt(0)
    v_mov_b32 v28, v24
    """)
    allreduce("v_max_f32", [28], [], rows_only=True, steps=q4)
    a(f"v_sub_f32 v30, v24, v28\nv_mul_f32 v30, {LOG2E}, v30\nv_exp_f32 v30, v30\nv_mul_f32 v30, v25, v30")
    allreduce("v_add_f32", [30], [], rows_only=True, steps=q4)
    a(f"""
    v_mov_b32 v29, {TAG}
    v_mov_b32 v31, {TAG}
    s_lshl_b32 s13, s15, 7
    s_add_u32 s13, s13, {WS_STATS}
    s_lshl_b32 s12, s6, 4
    s_add_u32 s14, s13, s12
    s_xor_b32 s12, s12, 16
    s_add_u32 s13, s13, s12
    s_mov_b64 exec, 1
    buffer_store_dwordx4 v[28:31], v1, s[48:51], s14 offen sc1
    s_mov_b64 exec, -1
    """)
    tm_gather(2, KL + lagV, 4*KL, 4*f2/(KL - mk), KL)
    if agg:
        wait_row("L_stw", KL + 2)
        sfetch("L_poll_st", "s13", 0)
    else:
        a(f"v_mov_b32 v{TB}, 0")
        poll("L_poll_st", [f"buffer_load_dwordx4 v[16:19], v{TB}, s[48:51], s13 offen sc1"], tags_words([17, 19]), sleep=32)
    a(f"""
    v_max_f32 v17, v16, v28
    v_sub_f32 v16, v16, v17
    v_sub_f32 v28, v28, v17
    v_sub_f32 v24, v24, v17
    v_mul_f32 v16, {LOG2E}, v16
    v_mul_f32 v28, {LOG2E}, v28
    v_mul_f32 v24, {LOG2E}, v24
    v_exp_f32 v16, v16
    v_exp_f32 v28, v28
    v_exp_f32 v24, v24
    v_mul_f32 v16, v16, v18
    v_fmac_f32 v16, v28, v30
    v_rcp_f32 v16, v16
    v_mov_b32 v25, 1
    v_mul_f32 v24, v24, v16
    ds_write_b64 v{TA}, v[24:25] offset:{F_FAC}
    """)
    a("L_nofac:")
    def constants():
        a("s_cmp_lt_u32 s68, 4\ns_cbranch_scc1 L_nored2")
        wait_row("L_kd2", KL + 1)
        a("s_cmp_lg_u32 s68, 5\ns_cbranch_scc1 L_noffn2")
        ffn_cols(TA, TB)
        a(f"""
        v_lshlrev_b32 v{TA}, 8, v{TA}
        v_lshl_add_u32 v{TA}, v{TB}, 4, v{TA}
        s_lshl_b32 s12, s7, 6
        s_add_u32 s12, s12, {WS_MOD + 96*256}
        s_add_u32 s13, s12, 0x1000
        s_add_u32 s14, s12, 0x2000
        s_add_u32 s46, s12, 0x3000
        """)
        poll("L_poll_sb", [f"buffer_load_dwordx4 v[{16+4*i}:{19+4*i}], v{TA}, s[48:51], {sr} offen sc1" for i, sr in enumerate(["s12", "s13", "s14", "s46"])],
             tags_words([17 + 2*k for k in range(8)]), sleep=16)
        for k in range(4):
            a(f"v_mov_b32 v{SB[k]}, v{16+2*k}")
            unpack(32, 33, 24 + 2*k)
            a(f"v_add_f32 v32, 1.0, v32\nv_add_f32 v33, 1.0, v33\nv_cvt_pk_bf16_f32 v{TREG[k]}, v32, v33")
        a("L_noffn2:")
        srd(52, P_X, 4096)
        a(f"""
        v_bfe_u32 v{TA}, v0, 2, 2
        v_and_b32 v{TB}, 3, v0
        v_lshlrev_b32 v{TC}, 5, v{TA}
        v_lshl_add_u32 v{TC}, v{TB}, 1, v{TC}
        s_lshl_b32 s71, s69, 7
        s_lshl_b32 s12, s7, 3
        s_add_u32 s71, s71, s12
        buffer_load_ushort v{RX}, v{TC}, s[52:55], s71 offen
        v_lshlrev_b32 v{TA}, 8, v{TA}
        v_lshrrev_b32 v{TC}, 1, v{TB}
        v_lshl_add_u32 v{TA}, v{TC}, 3, v{TA}
        s_and_b32 s12, s69, 7
        s_lshl_b32 s12, s12, 10
        s_lshl_b32 s13, s7, 4
        s_add_u32 s12, s12, s13
        s_lshr_b32 s13, s69, 3
        s_lshl_b32 s13, s13, 6
        s_add_u32 s12, s12, s13
        s_add_u32 s13, s12, {WS_MOD + 160*256}
        s_add_u32 s12, s12, {WS_MOD + 64*256}
        """)
        poll("L_poll_ga", [f"buffer_load_dwordx2 v[16:17], v{TA}, s[48:51], s12 offen sc1", f"buffer_load_dwordx2 v[18:19], v{TA}, s[48:51], s13 offen sc1"],
             tags_words([17, 19]), sleep=16)
        a(f"v_and_b32 v{TB}, 1, v0\nv_cmp_eq_u32 vcc, 1, v{TB}")
        for k, r in enumerate([RGA, RGB]):
            unpack(24, 25, 16 + 2*k)
            a(f"v_cndmask_b32 v{r}, v24, v25, vcc")
        a(f"v_lshlrev_b32 v{RX}, 16, v{RX}")
        a(f"v_and_b32 v{TA}, 31, v0\nv_lshlrev_b32 v{TA}, 7, v{TA}\ns_mov_b32 s12, {WS_XCC}")
        poll("L_poll_xcc", [f"buffer_load_dwordx2 v[16:17], v{TA}, s[48:51], s12 offen sc1"], tags_words([17]), sleep=16)
        a(f"v_cmp_eq_u32 vcc, s62, v16\ns_cmp_eq_u64 vcc, exec\ns_cselect_b32 s44, {1 if fast else 0}, 0")
        a("L_nored2:")
    done_c = []
    def maybe_constants():
        if not pieces and not done_c:
            done_c.append(1); constants()
    prevp = 4 * KL
    def milestones(lst):
        nonlocal prevp
        for i, mv in lst:
            p_ = 4 * (KL + mv) + E // 4
            stage_upto(KL + mv + lag3 + FL); maybe_constants()
            tm_publish(3 + i, KL + mv)
            tm_gather(3 + i, KL + mv + lag3, p_, 16 * f3 / (p_ - prevp), KL + mv)
            prevp = p_
    MS = list(enumerate(ms))
    if touchp:
        wait_row("L_tchp", KL + touchp)
        a(f"""
        s_lshl_b32 s12, s15, 1
        s_add_u32 s12, s12, s6
        s_lshl_b32 s12, s12, 11
        s_lshl_b32 s13, s7, 9
        s_add_u32 s12, s12, s13
        s_add_u32 s12, s12, {WS_PART1}
        """)
        if stouch: sprefetch("L_spt", P_WS, "s12", 1, 512, 512)
        else: a("s_mov_b32 exec_hi, 0\nbuffer_load_dwordx4 v[24:27], v1, s[48:51], s12 offen sc1\ns_mov_b64 exec, -1\ns_waitcnt vmcnt(0)")
    milestones([x for x in MS if x[1] + lag3 + (flag_ if agg else 0) <= touch])
    stage_upto(99); maybe_constants()
    if touch:
        a("s_cmp_lt_u32 s68, 4\ns_cbranch_scc1 L_notouch")
        wait_row("L_tch", KL + touch)
        a(f"""
        v_lshrrev_b32 v{TA}, 2, v0
        v_and_b32 v{TB}, 3, v0
        v_lshlrev_b32 v{TC}, 13, v{TA}
        v_lshl_add_u32 v{TC}, v{TB}, 4, v{TC}
        v_lshlrev_b32 v{TA}, 11, v{TA}
        v_lshl_add_u32 v{TA}, v{TB}, 4, v{TA}
        s_lshl_b32 s12, s7, 11
        s_add_u32 s12, s12, {WS_X1}
        buffer_load_dwordx4 v[16:19], v1, s[48:51], s12 offen sc1
        buffer_load_dwordx4 v[20:23], v1, s[48:51], s12 offen offset:1024 sc1
        s_lshl_b32 s12, s69, 8
        s_lshl_b32 s13, s7, 6
        s_add_u32 s12, s12, s13
        s_add_u32 s12, s12, {WS_PART2}
        s_add_u32 s13, s12, 0x20000
        buffer_load_dwordx4 v[24:27], v{TC}, s[48:51], s12 offen sc1
        buffer_load_dwordx4 v[28:31], v{TC}, s[48:51], s13 offen sc1
        """)
        if otouch:
            srd(52, P_OUT, 4096)
            a("buffer_load_ushort v32, v0, s[52:55], s71 offen")
        if touch1:
            a(f"""
            s_and_b32 s12, s69, 7
            s_lshl_b32 s12, s12, 8
            s_lshl_b32 s13, s7, 6
            s_add_u32 s12, s12, s13
            s_lshr_b32 s13, s69, 3
            s_lshl_b32 s13, s13, 17
            s_add_u32 s12, s12, s13
            s_add_u32 s12, s12, {WS_PART1}
            """)
            for i in range(4):
                a(f"buffer_load_dwordx4 v[{32+4*i}:{35+4*i}], v{TA}, s[48:51], s12 offen sc1\ns_add_u32 s12, s12, 0x8000")
        a("s_waitcnt vmcnt(0)\nL_notouch:")
    milestones([x for x in MS if x[1] + lag3 + (flag_ if agg else 0) > touch])
    AF, DD = 16, 32
    bn = {"n": 0}
    def barrier():
        if not dry: a("s_barrier"); return
        bn["n"] += 1
        a(f"s_cmp_eq_u32 s0, 1\ns_cbranch_scc1 L_nb{bn['n']}\ns_barrier\nL_nb{bn['n']}:")
    a(f"""
    L_tail0:
    s_mov_b64 exec, -1
    s_waitcnt vmcnt(0) lgkmcnt(0)
    v_bfe_u32 v{TB}, v0, 1, 2
    v_mul_u32_u24 v{TB}, {OP_STRIDE}, v{TB}
    v_lshrrev_b32 v{TA}, 4, v0
    v_lshl_add_u32 v{TB}, v{TA}, 4, v{TB}
    v_and_b32 v{TA}, 1, v0
    v_lshl_add_u32 v{TB}, v{TA}, 7, v{TB}
    v_add_u32 v{TB}, {L_OP}, v{TB}
    v_mul_u32_u24 v{TA}, 0xaaaa, v{TA}
    v_add_u32 v{TA}, 0x4444, v{TA}
    s_lshl_b32 s12, s15, 1
    s_add_u32 s12, s12, s6
    s_lshl_b32 s12, s12, 11
    s_lshl_b32 s13, s7, 9
    s_add_u32 s12, s12, s13
    s_add_u32 s12, s12, {WS_PART1}
    s_and_b32 s18, {TAG}, 0xff
    s_bfe_u32 s19, {TAG}, 0x80008
    s_bfe_u32 s20, {TAG}, 0x80010
    s_lshr_b32 s21, {TAG}, 24
    v_mov_b32 v{TC}, 0xffffff00
    """)
    for i in range(32): a(f"v_mov_b32 v{DD+i}, 0")
    P1V = 28
    a(f"""
    v_lshrrev_b32 v{P1V}, 2, v0
    v_and_b32 v{P1V+1}, 3, v0
    v_lshlrev_b32 v{P1V}, 11, v{P1V}
    v_lshl_add_u32 v{P1V}, v{P1V+1}, 4, v{P1V}
    s_and_b32 s26, s69, 7
    s_lshl_b32 s26, s26, 8
    s_lshl_b32 s13, s7, 6
    s_add_u32 s26, s26, s13
    s_lshr_b32 s13, s69, 3
    s_lshl_b32 s14, s13, 11
    s_add_u32 s22, s26, s14
    s_lshl_b32 s13, s13, 17
    s_add_u32 s26, s26, s13
    s_add_u32 s26, s26, {WS_PART1}
    s_add_u32 s27, s26, 0x8000
    s_add_u32 s14, s26, 0x10000
    s_add_u32 s67, s26, 0x18000
    s_add_u32 s23, s22, {WS_X1}
    """)
    P1S = ["s26", "s27", "s14", "s67"]
    if p1q:
        a(f"""
        s_bfe_u32 s26, s69, 0x20001
        s_lshl_b32 s26, s26, 9
        s_and_b32 s27, s69, 1
        s_lshl_b32 s27, s27, 6
        s_add_u32 s26, s26, s27
        s_lshl_b32 s27, s7, 15
        s_add_u32 s26, s26, s27
        s_add_u32 s26, s26, s13
        s_add_u32 s26, s26, {WS_PART1}
        """)
        P1S = ["s26"]
    if not diag3: stamp(8)
    barrier()
    if dbg: a("s_memrealtime s[96:97]")
    stamp(9)
    for s in range(2): a(f"ds_read_b128 v[{AF+4*s}:{AF+4*s+3}], v{TB} offset:{64*s}")
    a("s_waitcnt lgkmcnt(0)")
    def smf(d, af, b, ix): a(f"v_smfmac_f32_16x16x64_bf16 v[{d}:{d+3}], v[{af}:{af+3}], v[{b}:{b+7}], v{ix}")
    order = [0, 4, 1, 5, 2, 6, 3, 7]
    OQ = 24
    work = []
    def fin(t):
        d = DD + 4*t
        w_ = [f"v_pk_add_f32 v[{d}:{d+1}], v[{d}:{d+1}], v[{d+2}:{d+3}]", f"v_add_f32 v{d}, v{d}, v{d+1}"]
        return w_
    def fin2(k):
        x, y = DD + 4*k, DD + 4*(k+4)
        return [f"v_permlane16_swap_b32 v{x}, v{y}", f"v_add_f32 v{OQ+k}, v{x}, v{y}", f"v_and_or_b32 v{OQ+k}, v{OQ+k}, v{TC}, s{18+k}"]
    for i, t in enumerate(order):
        if i >= 3: work += fin(order[i-3])
        if i >= 5 and (i - 5) % 2 == 0: work += fin2((i - 5) // 2)
        for sx in range(2):
            smf(DD + 4*t, AF + 4*sx, 64 + (t*4 + 2*sx)*4, TA)
            for _ in range(2):
                if work: a(work.pop(0))
    work += fin(order[5]) + fin(order[6]) + fin2(2) + fin(order[7]) + fin2(3)
    for w_ in work: a(w_)
    if p1q: a("s_mov_b32 exec_lo, 0xff")
    a(f"s_mov_b32 exec_hi, 0\nbuffer_store_dwordx4 v[{OQ}:{OQ+3}], v1, s[48:51], s12 offen sc1\ns_mov_b64 exec, -1")
    stamp(10)
    a("s_cmp_lt_u32 s68, 4\ns_cbranch_scc1 L_hend")
    if p1first:
        stamp(4)
        for i, sr in enumerate(P1S): a(f"buffer_load_dwordx4 v[{32+4*i}:{35+4*i}], v{P1V}, s[48:51], {sr} offen sc1")
    a("s_cmp_lg_u32 s68, 5\ns_cbranch_scc1 L_noffn3")
    SC8, SH8 = 48, 56
    HW_, HF_, GF_, GW_, PO_, MS_ = 10, 11, 12, 13, 4, 5
    mid_bases()
    tr_mid(64, 0)
    tr_mid(128, 0x4000)
    for k in range(4): unpack(SC8 + 2*k, SC8 + 2*k + 1, TREG[k])
    for k in range(4): unpack(SH8 + 2*k, SH8 + 2*k + 1, SB[k])
    IX_ = 6
    act_addr(HF_, "hi", TB)
    ffn_cols(TA, TB)
    a(f"""
    v_lshlrev_b32 v{HW_}, 4, v{TA}
    v_lshl_add_u32 v{HW_}, v{TB}, 2, v{HW_}
    s_mul_i32 s13, s7, {ACT_STRIDE}
    s_add_u32 s13, s13, {L_ACT}
    v_add_u32 v{HW_}, s13, v{HW_}
    v_mul_u32_u24 v{GF_}, {GB_STRIDE}, v{TB}
    v_lshlrev_b32 v{GW_}, 2, v{TB}
    v_and_b32 v{IX_}, 1, v0
    v_lshl_add_u32 v{HF_}, v{IX_}, 9, v{HF_}
    v_lshl_add_u32 v{GF_}, v{IX_}, 6, v{GF_}
    v_lshl_add_u32 v{GW_}, v{IX_}, 1, v{GW_}
    v_mul_u32_u24 v{IX_}, 0xaaaa, v{IX_}
    v_add_u32 v{IX_}, 0x4444, v{IX_}
    v_bfe_u32 v{TB}, v0, 1, 1
    v_lshl_add_u32 v{GW_}, v{TB}, 6, v{GW_}
    v_lshrrev_b32 v{TB}, 4, v0
    v_lshl_add_u32 v{GF_}, v{TB}, 4, v{GF_}
    v_add_u32 v{GF_}, {L_GB}, v{GF_}
    v_mul_u32_u24 v{TA}, {GB_STRIDE}, v{TB}
    s_lshl_b32 s13, s7, 4
    s_add_u32 s13, s13, {L_GB}
    v_add3_u32 v{GW_}, v{GW_}, v{TA}, s13
    v_and_b32 v{TA}, 15, v0
    v_lshlrev_b32 v{TB}, 11, v{TB}
    v_lshl_add_u32 v{PO_}, v{TA}, 4, v{TB}
    v_mov_b32 v{MS_}, 0xffffff00
    """)
    a("L_noffn3:")
    a(f"""
    v_lshrrev_b32 v{TC}, 2, v0
    v_and_b32 v{TB}, 3, v0
    v_lshlrev_b32 v{TC}, 13, v{TC}
    v_lshl_add_u32 v{TC}, v{TB}, 4, v{TC}
    v_lshlrev_b32 v{TB}, 2, v0
    v_mov_b32 v{TA}, v{P1V}
    """)
    if pwait: a(f"s_sleep {pwait}")
    if not p1first: stamp(4)
    spin_begin()
    if p1first: a("s_branch L_poll_p1w")
    a("L_poll_p1:")
    spin_check()
    for i, sr in enumerate(P1S): a(f"buffer_load_dwordx4 v[{32+4*i}:{35+4*i}], v{TA}, s[48:51], {sr} offen sc1")
    a("L_poll_p1w:")
    tags_bytes(len(P1S), 44 if p1q else 32)()
    a("s_cmp_eq_u64 vcc, exec\ns_cbranch_scc0 L_poll_p1")
    stamp(11)
    if diag: a("s_mov_b32 s82, s70")
    def colsum(n):
        st_ = 1
        while st_ < n:
            for i in range(0, n, 2*st_):
                for k in (0, 2): pk("add", 16+4*i+k, 16+4*i+k, 16+4*(i+st_)+k)
            st_ *= 2
        a("""
        v_add_f32_dpp v20, v16, v16 row_ror:8 row_mask:0xf bank_mask:0x3
        v_add_f32_dpp v21, v17, v17 row_ror:8 row_mask:0xf bank_mask:0x3
        v_add_f32_dpp v20, v18, v18 row_ror:8 row_mask:0xf bank_mask:0xc
        v_add_f32_dpp v21, v19, v19 row_ror:8 row_mask:0xf bank_mask:0xc
        v_add_f32_dpp v16, v20, v20 row_shl:4 row_mask:0xf bank_mask:0x5
        v_add_f32_dpp v16, v21, v21 row_shr:4 row_mask:0xf bank_mask:0xa
        """)
        allreduce("v_add_f32", [16], [17], steps=())
    def resid(gate):
        bf16r(16, 16)
        a(f"v_mul_f32 v16, v16, v{gate}")
        bf16r(16, 16)
        a(f"v_add_f32 v16, v16, v{RX}")
    colsum(4)
    resid(RGA)
    a(f"""
    v_mov_b32 v41, {TAG}
    v_mov_b32 v43, {TAG}
    v_mov_b32_dpp v17, v16 quad_perm:[1,1,1,1] {FULL}
    v_mov_b32_dpp v18, v16 quad_perm:[2,2,2,2] {FULL}
    v_mov_b32_dpp v19, v16 quad_perm:[3,3,3,3] {FULL}
    v_cvt_pk_bf16_f32 v40, v16, v17
    v_cvt_pk_bf16_f32 v42, v18, v19
    s_mov_b64 exec, 0x1111
    """)
    def hstore(lbl, stores):
        a(f"s_cmp_eq_u32 s44, 1\ns_cbranch_scc0 {lbl}_s")
        for st_ in stores: a(f"{st_} {fpol}")
        a(f"s_branch {lbl}_e\n{lbl}_s:")
        for st_ in stores: a(f"{st_} sc1")
        a(f"{lbl}_e:")
    hstore("L_sx1", [f"buffer_store_dwordx4 v[40:43], v{TB}, s[48:51], s23 offen"])
    a("s_mov_b64 exec, -1")
    stamp(12)
    bf16r(RX, 16)
    a("s_cmp_lg_u32 s68, 5\ns_cbranch_scc1 L_red2")
    a(f"""
    s_lshl_b32 s12, s7, 11
    s_add_u32 s12, s12, {WS_X1}
    s_lshl_b32 s13, s69, 13
    s_lshl_b32 s14, s7, 9
    s_add_u32 s13, s13, s14
    s_add_u32 s23, s13, {WS_PART2}
    """)
    poll("L_poll_x1", ["buffer_load_dwordx4 v[16:19], v1, s[48:51], s12 offen sc1", "buffer_load_dwordx4 v[20:23], v1, s[48:51], s12 offen offset:1024 sc1"],
         tags_xor([17, 19, 21, 23], 24))
    stamp(1)
    X2, S2 = 24, 32
    for k in range(4): unpack(X2 + 2*k, X2 + 2*k + 1, 16 + 2*k)
    ln_norm(X2, S2)
    ln_affine(X2, SC8, SH8, 16)
    G, U, GT = 56, 60, 14
    a(f"ds_write2_b32 v{HW_}, v16, v17 offset0:0 offset1:128\nds_write2_b32 v{HW_}, v18, v19 offset0:64 offset1:192")
    for i in range(8): a(f"v_mov_b32 v{G+i}, 0")
    a("s_waitcnt lgkmcnt(0)")
    barrier()
    for k in range(8): a(f"ds_read_b128 v[{16+4*k}:{19+4*k}], v{HF_} offset:{k*64}")
    for k in range(8):
        a(f"s_waitcnt lgkmcnt({7-k})")
        smf(G, 16 + 4*k, 64 + 8*k, IX_)
    DZ = 64
    gelu = [f"v_add_f32 v{G}, v{G}, v{G+1}", f"v_cvt_pk_bf16_f32 v{G}, 0, v{G}", f"v_mul_f32 v{GT}, v{G}, v{G}", f"v_mul_f32 v{GT}, 0x3d372713, v{GT}",
            f"v_fma_f32 v{GT}, v{GT}, v{G}, v{G}", f"v_mul_f32 v{GT}, 0x40135761, v{GT}", f"v_exp_f32 v{GT}, -v{GT}",
            f"v_add_f32 v{GT}, 1.0, v{GT}", f"v_rcp_f32 v{GT}, v{GT}", f"v_mul_f32 v{GT}, v{GT}, v{G}", f"v_cvt_pk_bf16_f32 v{GT}, 0, v{GT}"]
    zero = [f"v_mov_b32 v{DZ+4*t+r}, 0" for t in range(8) for r in range(2)]
    for k in range(8):
        smf(U, 16 + 4*k, 128 + 8*k, IX_)
        if k < 3:
            for _ in range(2): a(zero.pop(0))
        else:
            a(gelu.pop(0)); a(gelu.pop(0))
    while gelu: a(gelu.pop(0))
    a(f"v_add_f32 v{U}, v{U}, v{U+1}")
    bf16r(U, U)
    a(f"""
    v_mul_f32 v{GT}, v{GT}, v{U}
    v_cvt_pk_bf16_f32 v{GT}, v{GT}, v{GT}
    ds_write_b16 v{GW_}, v{GT}
    """)
    while zero: a(zero.pop(0))
    if epearly:
        a(f"""
        s_or_b32 s12, s2, s7
        s_cbranch_scc1 L_noep
        s_mov_b64 exec, 1
        v_mov_b32 v17, {TAG}
        buffer_store_dword v17, v1, s[48:51], 0 offen sc1
        s_mov_b64 exec, -1
        L_noep:
        """)
    a("s_waitcnt lgkmcnt(0)")
    barrier()
    a(f"""
    ds_read_b128 v[{AF}:{AF+3}], v{GF_}
    s_waitcnt lgkmcnt(0)
    """)
    assert not zero
    fw = []
    for t in range(8):
        smf(DZ + 4*t, AF, 192 + 8*t, IX_)
        if t >= 4:
            tt = t - 4
            a(f"v_add_f32 v{24+tt}, v{DZ+4*tt}, v{DZ+4*tt+1}")
            a(f"v_and_or_b32 v{24+tt}, v{24+tt}, v{MS_}, s{18+(tt&3)}")
    for tt in range(4, 8):
        a(f"v_add_f32 v{24+tt}, v{DZ+4*tt}, v{DZ+4*tt+1}")
        a(f"v_and_or_b32 v{24+tt}, v{24+tt}, v{MS_}, s{18+(tt&3)}")
    hstore("L_sp2", [f"buffer_store_dwordx4 v[{24+4*g}:{27+4*g}], v{PO_}, s[48:51], s23 offen offset:{256*g}" for g in range(2)])
    stamp(2)
    a("L_red2:")
    a(f"""
    s_add_u32 s12, s22, {WS_PART2}
    s_add_u32 s13, s12, 0x20000
    v_mov_b32 v36, s18
    v_mov_b32 v37, s19
    v_mov_b32 v38, s20
    v_mov_b32 v39, s21
    v_bfe_u32 v{TA}, v0, 2, 2
    v_and_b32 v{TB}, 3, v0
    v_lshlrev_b32 v{TA}, 5, v{TA}
    v_lshl_add_u32 v{TA}, v{TB}, 1, v{TA}
    """)
    srd(52, P_OUT, 4096)
    if dry: a("s_cmp_eq_u32 s0, 1\ns_cselect_b32 s54, 0, s54")
    poll("L_poll_p2", [f"buffer_load_dwordx4 v[32:35], v{TC}, s[48:51], s12 offen sc1", "s_mov_b32 exec_hi, 0xffff",
                       f"buffer_load_dwordx4 v[36:39], v{TC}, s[48:51], s13 offen sc1"],
         tags_bytes(2, 44), post="s_mov_b64 exec, -1")
    stamp(13)
    colsum(2)
    resid(RGB)
    a(f"""
    v_cvt_pk_bf16_f32 v16, v16, v16
    s_mov_b64 exec, 0xffff
    buffer_store_short v16, v{TA}, s[52:55], s71 offen {opol}
    """)
    if not epearly or dbg or pad:
        a(f"""
        s_or_b32 s12, s2, s7
        s_cbranch_scc1 L_hend
        s_mov_b64 exec, 1
        v_mov_b32 v17, {TAG}
        v_mov_b32 v18, 0
        buffer_store_dword v17, v18, s[48:51], 0 offen sc1
        """)
    if dbg:
        a("s_cmp_eq_u32 s0, 1\ns_cbranch_scc1 L_hend\ns_memrealtime s[94:95]\ns_waitcnt lgkmcnt(0)\ns_sub_u32 s94, s94, s60\ns_sub_u32 s96, s96, s60\ns_sub_u32 s98, s98, s60")
        srd(8, 40, 256)
        for i, r in enumerate([98, 91, 92, 93, 96, 94]):
            a(f"v_mov_b32 v17, s{r}\nbuffer_store_dword v17, v18, s[8:11], 0 offen offset:{4*i}")
    if pad:
        a(f"s_cmp_eq_u32 s0, 1\ns_cbranch_scc1 L_hend\nL_pad:\ns_memrealtime s[94:95]\ns_waitcnt lgkmcnt(0)\ns_sub_u32 s94, s94, s60\ns_cmp_lt_u32 s94, {pad}\ns_cbranch_scc1 L_pad")
    a("L_hend:")
    if dry: a("s_cmp_eq_u32 s0, 1\ns_cbranch_scc0 L_fin\ns_cmp_ge_u32 s68, 4\ns_cbranch_scc1 L_afterdry1\ns_branch L_afterdry2\nL_fin:")
    stamp(14)
    if diag:
        a(f"""
        s_mov_b64 exec, -1
        v_lshlrev_b32 v1, 4, v0
        v_add_u32 v20, {L_FL+F_TT}, v1
        s_mov_b32 exec_hi, 0
        ds_read_b128 v[16:19], v20
        s_lshl_b32 s12, s2, 9
        s_add_u32 s12, s12, {WS_DBG + 0x40000}
        s_waitcnt lgkmcnt(0)
        buffer_store_dwordx4 v[16:19], v1, s[48:51], s12 offen
        """)
    dump_stamps(15)
    a("L_end:")
    a("s_endpgm")
    a('.section .rodata,"a"')
    a(".p2align 6")
    a(f".amdhsa_kernel {NAME}_kernel")
    a("""
    .amdhsa_next_free_vgpr 256
    .amdhsa_next_free_sgpr 102
    .amdhsa_accum_offset 256
    .amdhsa_group_segment_fixed_size 0
    .amdhsa_kernarg_size 112
    .amdhsa_user_sgpr_count 2
    .amdhsa_user_sgpr_kernarg_segment_ptr 1
    .amdhsa_system_sgpr_workgroup_id_x 1
    .amdhsa_float_denorm_mode_32 3
    .end_amdhsa_kernel
    """)
    return out + a.text()

if __name__ == "__main__":
    kw = eval("dict(" + (sys.argv[2] if len(sys.argv) > 2 else "") + ")")
    open(sys.argv[1], "w").write(gen(**kw))
```
